```python
import torch

def _softmax(x, axis=-1):
    return torch.softmax(x, dim=axis)
def _gelu(x):
    return torch.nn.functional.gelu(x, approximate="tanh")
def _silu(x):
    return torch.nn.functional.silu(x)
def _sigmoid(x):
    return torch.sigmoid(x)
def _layernorm(x, axis=-1, eps=1e-5):
    m = x.mean(dim=axis, keepdim=True)
    v = x.var(dim=axis, keepdim=True, unbiased=False)
    return (x - m) / torch.sqrt(v + eps)
def _scatter_add(tgt, idx, src, axis=0):
    return tgt.clone().index_add_(axis, idx, src)
def _segment_sum(src, seg, n):
    out = torch.zeros((n,) + src.shape[1:], dtype=src.dtype)
    return out.index_add_(0, seg, src)
def _pad(x, pw):
    flat = tuple(v for pair in reversed(pw) for v in pair)
    return torch.nn.functional.pad(x, flat)

kernel_name = 'concat_heads__ssm_conv_s4d__mha_block__prompt'

def setup_inputs():

    _w = (lambda a: (lambda t: t.to(torch.bfloat16) if t.is_floating_point() else t)(torch.as_tensor(a)))
    def _A_setup():
        Bsz, L, D, N = 1, 2048, 512, 128
        return {
            "u": _w((lambda *s: torch.randn(*s, dtype=torch.bfloat16) * 0.05)(Bsz, L, D)),
            "log_A_real": _w((lambda *s: torch.randn(*s, dtype=torch.bfloat16) * 6.4)(D, N) * 0.5),
            "A_imag": _w((lambda *s: torch.randn(*s, dtype=torch.bfloat16) * 0.1)(D, N) * 3.14),
            "C_real": _w((lambda *s: torch.randn(*s, dtype=torch.bfloat16) * 0.4)(D, N) / N ** 0.5),
            "C_imag": _w((lambda *s: torch.randn(*s, dtype=torch.bfloat16) * 0.4)(D, N) / N ** 0.5),
            "log_dt": _w((lambda *s: torch.randn(*s, dtype=torch.bfloat16) * 0.1)(D) * 0.5 - 4.0),
            "D_skip": _w((lambda *s: torch.randn(*s, dtype=torch.bfloat16) * 0.1)(D)),
        }
    _A_in = _A_setup()

    def _B_setup():
        B, S, D, H = 1, 2048, 512, 32
        return {
            "x": _w((lambda *s: torch.randn(*s, dtype=torch.bfloat16) * 0.2)(B, S, D)),
            "wqkv": _w((lambda *s: torch.randn(*s, dtype=torch.bfloat16) * 0.2)(D, 3 * D)),
            "wo": _w((lambda *s: torch.randn(*s, dtype=torch.bfloat16) * 0.05)(D, D)),
        }
    _B_in = _B_setup()

    return {
        "A_u": _A_in["u"],
        "A_log_A_real": _A_in["log_A_real"],
        "A_A_imag": _A_in["A_imag"],
        "A_C_real": _A_in["C_real"],
        "A_C_imag": _A_in["C_imag"],
        "A_log_dt": _A_in["log_dt"],
        "A_D_skip": _A_in["D_skip"],
        "B_x": _B_in["x"],
        "B_wqkv": _B_in["wqkv"],
        "B_wo": _B_in["wo"],
    }

def reference(A_u, A_log_A_real, A_A_imag, A_C_real, A_C_imag, A_log_dt, A_D_skip, B_x, B_wqkv, B_wo):
    def _A_ref(u, log_A_real, A_imag, C_real, C_imag, log_dt, D_skip):
        L = u.shape[1]
        dt = torch.exp(log_dt)
        A = -torch.exp(log_A_real) + 1j * A_imag
        C = (C_real + 1j * C_imag) * dt[:, None]
        pos = (lambda x, dt: x.to(dt))(torch.arange(L), log_dt.dtype)
        P = torch.exp((A * dt[:, None])[:, :, None] * pos[None, None, :])
        K = 2.0 * torch.einsum("dn,dnl->dl", C, P).real
        L2 = 2 * L
        u_t = (lambda x, *d: x.permute(*d))(u, 0, 2, 1)
        Kf = (lambda x, *a, **k: torch.fft.rfft(x.float(), *a, **k))(K, L2)
        Uf = (lambda x, *a, **k: torch.fft.rfft(x.float(), *a, **k))(u_t, L2)
        y = (lambda x, *a, **k: torch.fft.irfft(x, *a, **k).to(torch.bfloat16))(Uf * Kf[None, :, :], L2)[:, :, :L]
        y = (lambda x, *d: x.permute(*d))(y, 0, 2, 1)
        return y + u * D_skip[None, None, :]

    def _B_ref(x, wqkv, wo):
        B, S, D = x.shape
        H = 32
        Dh = D // H
        qkv = (lambda x, *d: x.permute(*d))((x @ wqkv).reshape(B, S, 3, H, Dh), 2, 0, 3, 1, 4)
        q, k, v = qkv[0], qkv[1], qkv[2]
        scores = torch.einsum("bhqd,bhkd->bhqk", q, k) * (Dh ** -0.5)
        p = _softmax(scores, axis=-1)
        o = torch.einsum("bhqk,bhkd->bhqd", p, v)
        return (lambda x, *d: x.permute(*d))(o, 0, 2, 1, 3).reshape(B, S, D) @ wo

    a = _A_ref(A_u, A_log_A_real, A_A_imag, A_C_real, A_C_imag, A_log_dt, A_D_skip)
    b = _B_ref(B_x, B_wqkv, B_wo)
    return torch.concatenate([a, b], axis=-1)
```

```python
class Asm:
    def __init__(self):
        self.L = []
        self.uid = 0
    def __call__(self, s=""):
        for line in s.split("\n"):
            self.L.append("    " + line.strip() if line.strip() and not line.strip().endswith(":") else line.strip())
    def label(self, name):
        self.L.append(name + ":")
    def newlabel(self, base="L"):
        self.uid += 1
        return f"{base}_{self.uid}"
    def comment(self, s):
        self.L.append("    ; " + s)
    def text(self):
        return "\n".join(self.L) + "\n"

def v(n, cnt=1):
    return f"v{n}" if cnt == 1 else f"v[{n}:{n+cnt-1}]"
def s(n, cnt=1):
    return f"s{n}" if cnt == 1 else f"s[{n}:{n+cnt-1}]"
def a(n, cnt=1):
    return f"a{n}" if cnt == 1 else f"a[{n}:{n+cnt-1}]"

def kernel_begin(A, name):
    A.L.append(".text")
    A.L.append(f".globl {name}")
    A.L.append(".p2align 8")
    A.L.append(f".type {name},@function")
    A.L.append(f"{name}:")

def kernel_desc(name, vgpr, sgpr=100, accum=None):
    accum = accum if accum is not None else ((vgpr + 3) // 4) * 4
    return f""".section .rodata,"a"
.p2align 6
.amdhsa_kernel {name}
  .amdhsa_next_free_vgpr {vgpr}
  .amdhsa_next_free_sgpr {sgpr}
  .amdhsa_accum_offset {accum}
  .amdhsa_group_segment_fixed_size 0
  .amdhsa_kernarg_size 104
  .amdhsa_user_sgpr_count 2
  .amdhsa_user_sgpr_kernarg_segment_ptr 1
  .amdhsa_system_sgpr_workgroup_id_x 1
.end_amdhsa_kernel
"""

def srd(A, dst, base_lo_sreg, nbytes, off=0):
    if off:
        A(f"s_add_u32 s{dst}, s{base_lo_sreg}, {off}")
        A(f"s_addc_u32 s{dst+1}, s{base_lo_sreg+1}, 0")
    else:
        A(f"s_mov_b32 s{dst}, s{base_lo_sreg}")
        A(f"s_mov_b32 s{dst+1}, s{base_lo_sreg+1}")
    A(f"s_mov_b32 s{dst+2}, {nbytes}")
    A(f"s_mov_b32 s{dst+3}, 0x00020000")
```

```python
from asmlib import *
from layout import *

class DSQ:
    def __init__(self, A): self.A = A; self.q = []
    def issue(self, tag): self.q.append(tag)
    def wait(self, tag):
        if tag not in self.q: return
        i = len(self.q) - 1 - self.q[::-1].index(tag)
        n = len(self.q) - 1 - i
        assert n <= 15
        self.A(f"s_waitcnt lgkmcnt({n})")
        self.q = self.q[i+1:]
    def drain(self):
        self.A("s_waitcnt lgkmcnt(0)"); self.q = []

vLANE16 = 1; vKA = 2; vVA = 3; vQ = 4
vKF = 8
vVF = 16
vS = 32
vP = 64
vO = 72
vM = 88
vT = 89
NT = 32
import os
SCHEDS = {
 'v0': "e0 e1 PV1 QK RK RV e2 e3 c0 e4 e5 c1 e6 e7 c2 e8 e9 c3 e10 e11 PV0 c4 e12 e13 c5 e14 e15 c6 c7",
 'v2': "e0 e1 PV1 RV e2 e3 c0 e4 e5 c1 QK RK e6 e7 c2 e8 e9 c3 e10 e11 PV0 e12 e13 c4 e14 e15 c5 c6 c7",
 'v3': "e0 e1 e2 PV1 RV e3 c0 e4 e5 c1 e6 QK RK e7 c2 e8 e9 c3 e10 e11 e12 PV0 e13 c4 e14 e15 c5 c6 c7",
 'v1': "e0 e1 PV1 RV e2 e3 c0 e4 e5 c1 QK RK e6 e7 c2 e8 e9 c3 e10 e11 PV0 c4 e12 e13 c5 e14 e15 c6 c7",
}
SCHED = SCHEDS[os.environ.get("SCHED", "v1")]
PRIOS = {'none': {}, 'a': {0: 3, 12: 2, 22: 1, 28: 0}, 'b': {0: 3, 8: 2, 16: 1, 24: 0}}
PRIO = PRIOS[os.environ.get("PRIO", "none")]

def attn_main(A, first_round_waits):
    q = DSQ(A)
    KF = lambda t: vKF + 4 * (t % 2)
    VF = lambda t, j: vVF + 8 * (t % 2) + 4 * j
    S = lambda t: vS + 16 * (t % 2)
    def rdK(t):
        if os.environ.get("NOLDS") and t > 3: return
        A(f"ds_read_b128 {v(KF(t),4)}, v{vKA} offset:{t*1024}"); q.issue(("K", t))
    def rdV(t):
        if os.environ.get("NOLDS") and t > 3: return
        if os.environ.get("NOEXEC"):
            A(f"ds_read_b128 {v(VF(t,0),4)}, v{vVA} offset:{t*1024}"); q.issue(("V0", t))
            A(f"ds_read_b128 {v(VF(t,1),4)}, v{vVA} offset:{t*1024+512}"); q.issue(("V1", t))
            return
        A("s_mov_b64 exec, s[20:21]")
        A(f"ds_read_b128 {v(VF(t,0),4)}, v{vVA} offset:{t*1024}"); q.issue(("V0", t))
        A(f"ds_read_b128 {v(VF(t,1),4)}, v{vVA} offset:{t*1024+512}"); q.issue(("V1", t))
        A("s_mov_b64 exec, -1")
    def qk(t):
        q.wait(("K", t))
        A(f"v_mfma_f32_32x32x16_bf16 {v(S(t),16)}, {v(KF(t),4)}, {v(vQ,4)}, 0")
    def e(t, i): A(f"v_exp_f32 v{S(t)+i}, v{S(t)+i}")
    def c(t, k): A(f"v_cvt_pk_bf16_f32 v{vP+k}, v{S(t)+2*k}, v{S(t)+2*k+1}")
    def pv(t, j):
        cc = "0" if (t == 0 and j == 0) else v(vO, 16)
        A(f"v_mfma_f32_32x32x16_bf16 {v(vO,16)}, {v(VF(t,j),4)}, {v(vP+4*j,4)}, {cc}")
    rdK(0); rdK(1); rdV(0)
    qk(0)
    A("s_nop 7"); A("s_nop 3")
    for t in range(NT):
        A.comment(f"--- tile {t}")
        if t in PRIO: A(f"s_setprio {PRIO[t]}")
        for tok in SCHED.split():
            if tok[0] == 'e': e(t, int(tok[1:]))
            elif tok[0] == 'c': c(t, int(tok[1:]))
            elif tok == 'PV1':
                if t > 0: pv(t - 1, 1)
            elif tok == 'QK':
                if t + 1 < NT: qk(t + 1)
            elif tok == 'PV0':
                q.wait(("V1", t)); pv(t, 0)
            elif tok == 'RK':
                if t in first_round_waits:
                    A(f"s_waitcnt vmcnt({first_round_waits[t]})")
                    A("s_barrier")
                if t + 2 < NT: rdK(t + 2)
            elif tok == 'RV':
                if t + 1 < NT: rdV(t + 1)
            else: raise ValueError(tok)
    A("s_nop 1")
    pv(NT - 1, 1)

def stamp(A, k):
    A(f"s_memtime s[{60+2*k}:{61+2*k}]")

NSTAMP = 16
def write_stamps_generic(A, wsreg, wavereg, last=4):
    stamp(A, last)
    A("s_memrealtime s[54:55]")
    A("s_waitcnt lgkmcnt(0)")
    A(f"s_add_u32 s92, s{wsreg}, {WS_END}")
    A(f"s_addc_u32 s93, s{wsreg+1}, 0")
    A("s_mov_b32 s94, 0x1000000")
    A("s_mov_b32 s95, 0x00020000")
    A(f"s_lshl_b32 s56, s2, 4"); A(f"s_add_u32 s56, s56, s{wavereg}"); A("s_lshl_b32 s56, s56, 7")
    for k in range(1, NSTAMP):
        A(f"s_sub_u32 s{60+2*k}, s{60+2*k}, s60")
    A("v_mov_b32 v16, 0")
    for k in range(NSTAMP):
        A(f"v_mov_b32 v{20+k}, s{60+2*k}" if k else "v_mov_b32 v20, 0")
    A("v_mov_b32 v36, s60"); A("v_mov_b32 v37, s54"); A("v_mov_b32 v38, s52"); A("v_mov_b32 v39, 0")
    for j in range(5):
        A(f"buffer_store_dwordx4 v[{20+4*j}:{23+4*j}], v16, s[92:95], s56 offen offset:{16*j}")
    A("s_waitcnt vmcnt(0)")

def write_stamps(A):
    write_stamps_generic(A, 4, 14, 4)

def gen_attn(name="attn_kernel", prof=False):
    A = Asm()
    kernel_begin(A, name)
    if prof:
        stamp(A, 0)
        A('s_memrealtime s[52:53]')
    A("s_cmp_ge_u32 s2, 256")
    A("s_cbranch_scc1 ATT_END")
    A(f"s_load_dwordx2 s[4:5], s[0:1], {KA_WS}")
    A("s_and_b32 s12, s2, 7")
    A("s_lshl_b32 s12, s12, 2")
    A("s_lshr_b32 s13, s2, 3")
    A("s_and_b32 s17, s13, 3")
    A("s_add_u32 s12, s12, s17")
    A("s_lshr_b32 s13, s2, 5")
    A("v_lshrrev_b32 v8, 6, v0")
    A("v_and_b32 v0, 63, v0")
    A("v_readfirstlane_b32 s14, v8")
    A(f"v_lshlrev_b32 v{vLANE16}, 4, v0")
    A("s_mov_b32 s20, 0x0000ffff")
    A("s_mov_b32 s21, 0x0000ffff")
    A("s_and_b32 s15, s14, 7")
    A("s_lshr_b32 s16, s14, 3")
    A("s_waitcnt lgkmcnt(0)")
    srd(A, 8, 4, WS_END)
    A("s_lshl_b32 s17, s12, 16")
    A("s_lshl_b32 s18, s13, 3")
    A("s_add_u32 s18, s18, s15")
    A("s_lshl_b32 s18, s18, 10")
    A("s_add_u32 s18, s18, s17")
    if WS_Q: A(f"s_add_u32 s18, s18, {WS_Q}")
    A(f"buffer_load_dwordx4 {v(vQ,4)}, v{vLANE16}, s[8:11], s18 offen")
    A("s_lshr_b32 s22, s14, 2")
    A("s_and_b32 s23, s14, 3")
    A("s_lshl_b32 s23, s23, 10")
    A("s_lshl_b32 s24, s22, 15")
    A("s_add_u32 s24, s24, s23")
    A("s_and_b32 s25, s22, 1")
    A("s_lshl_b32 s25, s25, 15")
    A("s_lshr_b32 s26, s22, 1")
    A("s_mul_i32 s26, s26, 0x%x" % (WS_V - WS_K))
    A("s_add_u32 s25, s25, s26")
    A("s_add_u32 s25, s25, s23")
    A("s_add_u32 s25, s25, s17")
    A(f"s_add_u32 s25, s25, {WS_K}")
    for r in range(8):
        A(f"s_mov_b32 m0, s24")
        if r < 7: A("s_add_u32 s24, s24, 4096")
        else: A("s_nop 0")
        A(f"buffer_load_dwordx4 v{vLANE16}, s[8:11], s25 offen lds")
        if r < 7: A("s_add_u32 s25, s25, 4096")
    A("s_lshl_b32 s17, s16, 15")
    A(f"v_add_u32 v{vKA}, s17, v{vLANE16}")
    A("v_lshrrev_b32 v8, 5, v0")
    A("v_lshlrev_b32 v8, 8, v8")
    A("v_and_b32 v9, 15, v0")
    A("v_lshlrev_b32 v9, 4, v9")
    A("s_add_u32 s17, s17, 65536")
    A(f"v_add3_u32 v{vVA}, v8, v9, s17")
    if os.environ.get("ZROWS"):
        A("v_and_b32 v8, 31, v0")
        A("v_cmp_eq_u32 vcc, 16, v8")
        A("v_mov_b32 v9, 0x3f803f80")
        A("v_cndmask_b32 v9, 0, v9, vcc")
        for i in range(16): A(f"v_mov_b32 v{vVF+i}, v9")
    else:
        for i in range(16): A(f"v_mov_b32 v{vVF+i}, 0x3f803f80")
    A(f"v_mov_b32 v{vM}, 0")
    if prof: stamp(A, 1)
    A("s_waitcnt vmcnt(7)")
    A("s_barrier")
    if prof: stamp(A, 2)
    attn_main(A, {2: 5, 10: 0})
    A("s_nop 15")
    if prof: stamp(A, 3)
    A("s_mov_b32 s28, 0x1f800000")
    A("s_mov_b32 s29, 0x5f800000")
    A(f"v_cmp_le_f32 vcc, s28, v{vO+8}")
    A(f"v_cmp_ge_f32 s[30:31], s29, v{vO+8}")
    A("s_nop 1")
    A("s_and_b64 vcc, vcc, s[30:31]")
    A("s_cmp_eq_u64 vcc, -1")
    if not os.environ.get("NOCHECK"): A("s_cbranch_scc0 ATT_FALLBACK")
    A.label("ATT_COMBINE")
    A("s_mul_i32 s17, s15, 3072")
    A("s_add_u32 s17, s17, 131072")
    A(f"v_add_u32 v{vT}, s17, v{vLANE16}")
    A("s_cmp_eq_u32 s16, 0")
    A("s_cbranch_scc1 ATT_LOW")
    A(f"ds_write_b128 v{vT}, {v(vO,4)}")
    A(f"ds_write_b128 v{vT}, {v(vO+4,4)} offset:1024")
    A(f"v_mov_b32 v{vO+9}, v{vM}")
    A(f"ds_write_b64 v{vT}, {v(vO+8,2)} offset:2048")
    A("s_waitcnt lgkmcnt(0)")
    A("s_barrier")
    if prof: write_stamps(A)
    A("s_endpgm")
    A.label("ATT_LOW")
    A("s_barrier")
    B = vS
    A(f"ds_read_b128 {v(B,4)}, v{vT}")
    A(f"ds_read_b128 {v(B+4,4)}, v{vT} offset:1024")
    A(f"ds_read_b64 {v(B+8,2)}, v{vT} offset:2048")
    A("s_waitcnt lgkmcnt(0)")
    t0, t1, t2 = vT + 1, vT + 2, vT + 3
    A(f"v_max_f32 v{t0}, v{vM}, v{B+9}")
    A(f"v_sub_f32 v{t1}, v{vM}, v{t0}")
    A(f"v_sub_f32 v{t2}, v{B+9}, v{t0}")
    A(f"v_exp_f32 v{t1}, v{t1}")
    A(f"v_exp_f32 v{t2}, v{t2}")
    A("s_nop 0")
    for i in range(9):
        A(f"v_mul_f32 v{vO+i}, v{vO+i}, v{t1}")
    for i in range(9):
        A(f"v_fmac_f32 v{vO+i}, v{B+i}, v{t2}")
    A(f"v_rcp_f32 v{t0}, v{vO+8}")
    A("s_nop 0")
    for i in range(8):
        A(f"v_mul_f32 v{vO+i}, v{vO+i}, v{t0}")
    for k in range(4):
        A(f"v_cvt_pk_bf16_f32 v{vP+k}, v{vO+2*k}, v{vO+2*k+1}")
    A("s_nop 1")
    A(f"v_permlane32_swap_b32 v{vP}, v{vP+2}")
    A(f"v_permlane32_swap_b32 v{vP+1}, v{vP+3}")
    A(f"s_add_u32 s18, s18, {WS_O - WS_Q}")
    A("s_nop 1")
    A(f"buffer_store_dwordx4 {v(vP,4)}, v{vLANE16}, s[8:11], s18 offen")
    A("s_waitcnt vmcnt(0)")
    if prof: write_stamps(A)
    A.label("ATT_END")
    A("s_endpgm")
    A.label("ATT_FALLBACK")
    A(f"v_mov_b32 v{vM}, 0xff800000")
    A(f"v_mov_b32 v{vT}, v{vKA}")
    A("s_mov_b32 s17, 0")
    A.label("ATT_FB1")
    A(f"ds_read_b128 {v(vKF,4)}, v{vT}")
    A(f"v_add_u32 v{vT}, 1024, v{vT}")
    A("s_waitcnt lgkmcnt(0)")
    A(f"v_mfma_f32_32x32x16_bf16 {v(vS,16)}, {v(vKF,4)}, {v(vQ,4)}, 0")
    A("s_nop 15")
    for k in range(8):
        A(f"v_max3_f32 v{vM}, v{vS+2*k}, v{vS+2*k+1}, v{vM}")
    A("s_add_u32 s17, s17, 1")
    A("s_cmp_lt_u32 s17, 32")
    A("s_cbranch_scc1 ATT_FB1")
    A(f"v_mov_b32 v{vT}, v{vM}")
    A(f"v_mov_b32 v{vT+1}, v{vM}")
    A("s_nop 1")
    A(f"v_permlane32_swap_b32 v{vT}, v{vT+1}")
    A("s_nop 1")
    A(f"v_max_f32 v{vM}, v{vT}, v{vT+1}")
    for i in range(16): A(f"v_mov_b32 v{vO+i}, 0")
    A(f"v_mov_b32 v{vT}, v{vKA}")
    A(f"v_mov_b32 v{vT+1}, v{vVA}")
    A("s_mov_b32 s17, 0")
    A.label("ATT_FB2")
    A(f"ds_read_b128 {v(vKF,4)}, v{vT}")
    A("s_mov_b64 exec, s[20:21]")
    A(f"ds_read_b128 {v(vVF,4)}, v{vT+1}")
    A(f"ds_read_b128 {v(vVF+4,4)}, v{vT+1} offset:512")
    A("s_mov_b64 exec, -1")
    A(f"v_add_u32 v{vT}, 1024, v{vT}")
    A(f"v_add_u32 v{vT+1}, 1024, v{vT+1}")
    A("s_waitcnt lgkmcnt(0)")
    A(f"v_mfma_f32_32x32x16_bf16 {v(vS,16)}, {v(vKF,4)}, {v(vQ,4)}, 0")
    A("s_nop 15")
    for i in range(16): A(f"v_sub_f32 v{vS+i}, v{vS+i}, v{vM}")
    for i in range(16): A(f"v_exp_f32 v{vS+i}, v{vS+i}")
    A("s_nop 0")
    for k in range(8): A(f"v_cvt_pk_bf16_f32 v{vP+k}, v{vS+2*k}, v{vS+2*k+1}")
    A("s_nop 1")
    A(f"v_mfma_f32_32x32x16_bf16 {v(vO,16)}, {v(vVF,4)}, {v(vP,4)}, {v(vO,16)}")
    A(f"v_mfma_f32_32x32x16_bf16 {v(vO,16)}, {v(vVF+4,4)}, {v(vP+4,4)}, {v(vO,16)}")
    A("s_add_u32 s17, s17, 1")
    A("s_cmp_lt_u32 s17, 32")
    A("s_cbranch_scc1 ATT_FB2")
    A("s_nop 15")
    A("s_branch ATT_COMBINE")
    return A.text(), kernel_desc(name, 96)

if __name__ == "__main__":
    import sys
    code, desc = gen_attn(prof=(len(sys.argv) > 1))
    hdr = "; @launch kernel=attn_kernel grid=(256,1,1) block=(1024,1,1) lds=163840\n.amdgcn_target \"amdgcn-amd-amdhsa--gfx950\"\n"
    open(os.environ.get("OUT", "attn.s"), "w").write(hdr + code + desc)
```

```python
from asmlib import *
from layout import *
import os
from k_attn import DSQ, stamp, write_stamps_generic

def gen_op(name="op_kernel", prof=False):
    A = Asm()
    kernel_begin(A, name)
    if prof:
        stamp(A, 0); A("s_memrealtime s[52:53]")
    A("s_cmp_ge_u32 s2, 256")
    A("s_cbranch_scc1 OP_END")
    A(f"s_load_dwordx4 s[4:7], s[0:1], {KA_WO}")
    A(f"s_load_dwordx2 s[36:37], s[0:1], {KA_WS}")
    A("s_and_b32 s12, s2, 7")
    A("s_lshl_b32 s12, s12, 3")
    A("s_lshr_b32 s13, s2, 5")
    A("s_add_u32 s12, s12, s13")
    A("s_lshr_b32 s13, s2, 3")
    A("s_and_b32 s13, s13, 3")
    A("v_lshrrev_b32 v8, 6, v0")
    A("v_and_b32 v0, 63, v0")
    A("v_readfirstlane_b32 s14, v8")
    A("v_lshlrev_b32 v1, 4, v0")
    A("v_lshrrev_b32 v2, 4, v0")
    A("v_and_b32 v3, 15, v0")
    A("v_lshlrev_b32 v4, 1, v2")
    A("v_xor_b32 v3, v3, v4")
    A("v_lshlrev_b32 v3, 4, v3")
    A("v_lshl_add_u32 v2, v2, 10, v3")
    A("v_xor_b32 v3, 128, v2")
    A("s_waitcnt lgkmcnt(0)")
    srd(A, 8, 4, 512*512*2)
    srd(A, 24, 6, 2048*1024*2)
    srd(A, 32, 36, WS_END)
    A("s_lshl_b32 s20, s14, 17")
    A("s_lshl_b32 s21, s12, 10")
    A("s_add_u32 s20, s20, s21")
    A(f"s_add_u32 s20, s20, {WS_O}")
    A("s_lshl_b32 s22, s14, 11")
    A("s_add_u32 m0, s22, 131072")
    A("s_nop 0")
    A("buffer_load_dwordx4 v1, s[32:35], s20 offen lds")
    A("s_add_u32 m0, s22, 132096")
    A("s_add_u32 s20, s20, 65536")
    A("buffer_load_dwordx4 v1, s[32:35], s20 offen lds")
    A("s_lshl_b32 s20, s14, 15")
    A("s_lshl_b32 s21, s13, 8")
    A("s_add_u32 s20, s20, s21")
    A("s_lshl_b32 s22, s14, 13")
    for i in range(8):
        A(f"s_add_u32 m0, s22, {i*1024}")
        if i: A("s_add_u32 s20, s20, 4096")
        else: A("s_nop 0")
        A(f"buffer_load_dwordx4 v{3 if (i>>1)&1 else 2}, s[8:11], s20 offen lds")
    if prof: stamp(A, 1)
    A("v_and_b32 v4, 15, v0")
    A("v_lshrrev_b32 v5, 4, v0")
    A("v_lshrrev_b32 v6, 2, v4")
    A("v_and_b32 v7, 1, v5")
    A("v_lshl_add_u32 v7, v7, 2, v6")
    A("s_and_b32 s15, s14, 7")
    A("v_xor_b32 v7, s15, v7")
    A("v_lshl_add_u32 v6, v5, 3, v6")
    A("v_lshlrev_b32 v6, 8, v6")
    A("v_lshl_add_u32 v6, v7, 5, v6")
    A("v_and_b32 v7, 3, v4")
    A("v_lshl_add_u32 v10, v7, 3, v6")
    A("v_add_u32 v11, 0x10000, v10")
    A("s_lshr_b32 s16, s14, 3")
    A("s_lshl_b32 s17, s16, 8")
    A("s_add_u32 s17, s17, 131072")
    A("v_lshlrev_b32 v12, 9, v5")
    A("v_lshl_add_u32 v12, v4, 4, v12")
    A("v_add_u32 v12, s17, v12")
    A("s_lshl_b32 s18, s12, 5")
    A("s_lshl_b32 s19, s16, 4")
    A("s_add_u32 s18, s18, s19")
    A("s_lshl_b32 s18, s18, 11")
    A("s_lshl_b32 s19, s13, 8")
    A("s_add_u32 s18, s18, s19")
    A("s_lshl_b32 s19, s15, 5")
    A("s_add_u32 s18, s18, s19")
    A("s_add_u32 s18, s18, 1024")
    A("v_lshlrev_b32 v13, 11, v4")
    A("v_lshl_add_u32 v13, v5, 3, v13")
    A("s_waitcnt vmcnt(0)")
    A("s_barrier")
    if prof: stamp(A, 2)
    q = DSQ(A)
    FW, FO, ACC = 16, 48, 80
    def rd(s_):
        b = s_ % 4
        base = 10 if s_ < 8 else 11
        off = (32 * (s_ % 8)) * 256
        A(f"ds_read_b64_tr_b16 {v(FW+4*b,2)}, v{base} offset:{off}"); q.issue(("w0", s_))
        A(f"ds_read_b64_tr_b16 {v(FW+4*b+2,2)}, v{base} offset:{off+1024}"); q.issue(("w1", s_))
        A(f"ds_read_b128 {v(FO+4*b,4)}, v12 offset:{s_*2048}"); q.issue(("o", s_))
    for s_ in range(3): rd(s_)
    for s_ in range(16):
        if s_ + 3 < 16: rd(s_ + 3)
        q.wait(("o", s_))
        b = s_ % 4
        cc = "0" if s_ == 0 else v(ACC, 4)
        A(f"v_mfma_f32_16x16x32_bf16 {v(ACC,4)}, {v(FW+4*b,4)}, {v(FO+4*b,4)}, {cc}")
    if prof: stamp(A, 3)
    A("s_nop 7")
    A(f"v_cvt_pk_bf16_f32 v{ACC+4}, v{ACC}, v{ACC+1}")
    A(f"v_cvt_pk_bf16_f32 v{ACC+5}, v{ACC+2}, v{ACC+3}")
    A(f"buffer_store_dwordx2 {v(ACC+4,2)}, v13, s[24:27], s18 offen")
    A("s_waitcnt vmcnt(0)")
    if prof: write_stamps_generic(A, 36, 14, 4)
    A.label("OP_END")
    A("s_endpgm")
    return A.text(), kernel_desc(name, 96)

if __name__ == "__main__":
    import sys
    code, desc = gen_op(prof=(len(sys.argv) > 1))
    hdr = "; @launch kernel=op_kernel grid=(256,1,1) block=(1024,1,1) lds=163840\n.amdgcn_target \"amdgcn-amd-amdhsa--gfx950\"\n"
    open(os.environ.get("OUT", "op.s"), "w").write(hdr + code + desc)
```

```python
from asmlib import *
from layout import *
import os, struct
from k_attn import DSQ, stamp, write_stamps_generic

C_SCALE = 0.25 * 1.4426950408889634
def f32bits(x): return struct.unpack("<I", struct.pack("<f", x))[0]

PROF = False
SLOT = 28672
NSLOT = int(os.environ.get('NSLOT', 3))
AHEAD = NSLOT - 1
vL16 = 1
vDX = 2
vDW = 5
vFR = 8
vACC = 64
vXA = 112
vWA = 118

def p1_setup(A):
    A("s_and_b32 s17, s2, 7")
    A("s_lshr_b32 s18, s2, 3")
    A("s_and_b32 s12, s17, 3")
    A("s_lshl_b32 s12, s12, 2")
    A("s_and_b32 s19, s18, 3")
    A("s_add_u32 s12, s12, s19")
    A("s_lshr_b32 s13, s17, 2")
    A("s_lshl_b32 s13, s13, 3")
    A("s_lshr_b32 s19, s18, 2")
    A("s_add_u32 s13, s13, s19")

vDX1 = 3
def p1_dma_setup(A):
    A("v_lshrrev_b32 v9, 3, v0")
    A("v_lshrrev_b32 v10, 1, v9")
    A("v_xor_b32 v10, v10, v0")
    A("v_and_b32 v10, 7, v10")
    A("v_lshlrev_b32 v10, 4, v10")
    A(f"v_lshl_add_u32 v{vDX}, v9, 10, v10")
    A(f"v_xor_b32 v{vDX1}, 64, v{vDX}")
    A("s_lshl_b32 s17, s15, 6")
    A("s_movk_i32 s18, 3072")
    A("s_mov_b32 s19, 43691")
    for i in range(2):
        A(f"v_add_u32 v9, s17, v0")
        if i: A(f"v_add_u32 v9, {512*i}, v9")
        A("v_mul_u32_u24 v10, s19, v9")
        A("v_lshrrev_b32 v10, 19, v10")
        A("v_mul_u32_u24 v11, 12, v10")
        A("v_sub_u32 v11, v9, v11")
        A("v_lshrrev_b32 v12, 2, v10")
        A("v_and_b32 v12, 2, v12")
        A("v_xor_b32 v11, v11, v12")
        A("v_lshrrev_b32 v12, 2, v11")
        A("v_and_b32 v11, 3, v11")
        A("v_lshlrev_b32 v11, 4, v11")
        A("v_lshl_add_u32 v11, v12, 10, v11")
        A(f"v_mad_u32_u24 v{vDW+i}, v10, s18, v11")

def p1_issue(A, c, nw):
    slot = (c % NSLOT) * SLOT
    A(f"s_add_u32 s26, s25, {c}")
    A("s_and_b32 s26, s26, 7")
    A(f"s_lshl_b32 s24, s26, 7")
    A(f"s_add_u32 s24, s24, s20")
    A(f"s_add_u32 m0, s22, {slot}")
    A(f"s_mul_i32 s27, s26, {64*3072}")
    A(f"buffer_load_dwordx4 v{vDX}, s[8:11], s24 offen lds")
    A(f"s_add_u32 m0, s22, {slot + 1024}")
    A(f"s_add_u32 s24, s24, 8192")
    A(f"buffer_load_dwordx4 v{vDX1}, s[8:11], s24 offen lds")
    A(f"s_add_u32 m0, s23, {slot}")
    A(f"s_add_u32 s27, s27, s21")
    A(f"buffer_load_dwordx4 v{vDW}, s[40:43], s27 offen lds")
    if nw == 2:
        A(f"s_add_u32 m0, s23, {slot + 8192}")
        A("s_nop 0")
        A(f"buffer_load_dwordx4 v{vDW+1}, s[40:43], s27 offen lds")

def waits(c, per): return per * (min(7, c - 1 + AHEAD if c > 0 else AHEAD - 1) - c)

def p1_loader(A, nw):
    for c in range(AHEAD): p1_issue(A, c, nw)
    for c in range(8):
        A(f"s_waitcnt vmcnt({waits(c, 2 + nw)})")
        A("s_barrier")
        if c + AHEAD < 8: p1_issue(A, c + AHEAD, nw)

def p1_compute(A):
    q = DSQ(A)
    def fr(buf): return vFR + 28 * buf
    def rd(step):
        c, ks2 = step // 2, step % 2
        slot = c % NSLOT
        st, so = slot // 2, (slot % 2) * SLOT
        b = fr(step % 2)
        for ti in range(4):
            if os.environ.get("NOX"): continue
            A(f"ds_read_b128 {v(b+4*ti,4)}, v{vXA+2*st+ks2} offset:{so + ti*2048}"); q.issue(("x", step, ti))
        for gi in range(3):
            for hf in range(2):
                if os.environ.get("NOW"): continue
                A(f"ds_read_b64_tr_b16 {v(b+16+4*gi+2*hf,2)}, v{vWA+st} offset:{so + 16384 + (32*ks2+4*hf)*192 + 64*gi}"); q.issue(("w", step, gi, hf))
    def mm(step):
        b = fr(step % 2)
        for gi in range(3):
            for ti in range(4):
                acc = vACC + (gi*4 + ti)*4
                X = v(b+4*ti, 4); W = v(b+16+4*gi, 4)
                cc = "0" if step == 0 else v(acc, 4)
                if gi == 0 and ti == 0: q.wait(("w", step, 0, 1))
                if gi > 0 and ti == 0: q.wait(("w", step, gi, 1))
                if os.environ.get("NOMM"): continue
                if gi < 2: A(f"v_mfma_f32_16x16x32_bf16 {v(acc,4)}, {W}, {X}, {cc}")
                else:      A(f"v_mfma_f32_16x16x32_bf16 {v(acc,4)}, {X}, {W}, {cc}")
    for c in range(8):
        A("s_barrier")
        if PROF: stamp(A, 2 + c)
        rd(2*c)
        if c > 0: mm(2*c - 1)
        rd(2*c + 1)
        mm(2*c)
        q.drain()
    mm(15)

def p1_epilogue(A):
    A("s_nop 7")
    A(f"s_mov_b32 s17, 0x{f32bits(C_SCALE):08x}")
    for ti in range(4):
        for r in range(4):
            A(f"v_mul_f32 v{vACC+ti*4+r}, s17, v{vACC+ti*4+r}")
    A("s_and_b32 s18, s14, 1")
    A("s_lshl_b32 s19, s13, 1")
    A("s_add_u32 s18, s18, s19")
    A("s_lshl_b32 s18, s18, 16")
    A("s_lshr_b32 s19, s14, 1")
    A("s_lshl_b32 s19, s19, 1")
    A("s_lshl_b32 s24, s12, 2")
    A("s_add_u32 s19, s19, s24")
    A("s_lshl_b32 s19, s19, 10")
    A("s_add_u32 s18, s18, s19")
    T = vFR
    n = 0
    for gi, base in ((1, WS_K), (2, WS_V), (0, WS_Q)):
        for pair in range(2):
            a0 = vACC + (gi*4 + 2*pair)*4; a1 = a0 + 4
            t = T + 4 * n; n += 1
            A(f"v_cvt_pk_bf16_f32 v{t}, v{a0}, v{a0+1}")
            A(f"v_cvt_pk_bf16_f32 v{t+1}, v{a0+2}, v{a0+3}")
            A(f"v_cvt_pk_bf16_f32 v{t+2}, v{a1}, v{a1+1}")
            A(f"v_cvt_pk_bf16_f32 v{t+3}, v{a1+2}, v{a1+3}")
            A(f"s_add_u32 s24, s18, {base + pair*1024}")
            A("s_nop 0")
            op = "v_permlane32_swap_b32" if gi == 2 else "v_permlane16_swap_b32"
            A(f"{op} v{t}, v{t+2}")
            A(f"{op} v{t+1}, v{t+3}")
            A("s_nop 1")
            A(f"buffer_store_dwordx4 {v(t,4)}, v{vL16}, s[32:35], s24 offen")

def gen_p1(name="p1_kernel", prof=False):
    global PROF
    PROF = prof
    A = Asm()
    kernel_begin(A, name)
    if prof:
        stamp(A, 0); A("s_memrealtime s[52:53]")
    A("s_cmp_ge_u32 s2, 256")
    A("s_cbranch_scc1 P1_END")
    A(f"s_load_dwordx4 s[4:7], s[0:1], {KA_X}")
    A(f"s_load_dwordx2 s[36:37], s[0:1], {KA_WS}")
    p1_setup(A)
    A("v_lshrrev_b32 v8, 6, v0")
    A("v_and_b32 v0, 63, v0")
    A("v_readfirstlane_b32 s14, v8")
    A(f"v_lshlrev_b32 v{vL16}, 4, v0")
    A("s_cmp_lt_u32 s14, 4")
    A("s_cbranch_scc1 P1_COMPUTE")
    A("s_cmp_ge_u32 s14, 12")
    A("s_cbranch_scc1 P1_IDLE")
    A("s_setprio 3")
    A("s_sub_u32 s15, s14, 4")
    p1_dma_setup(A)
    A("s_lshl_b32 s20, s12, 17")
    A("s_lshl_b32 s17, s15, 14")
    A("s_add_u32 s20, s20, s17")
    A("s_lshl_b32 s21, s13, 6")
    A("s_lshl_b32 s22, s15, 11")
    A("s_lshl_b32 s23, s15, 10")
    A("s_add_u32 s23, s23, 16384")
    if os.environ.get("NOROT"): A("s_mov_b32 s25, 0")
    else:
        A("s_lshr_b32 s25, s2, 5")
        A("s_lshr_b32 s17, s2, 3")
        A("s_and_b32 s17, s17, 3")
        A("s_lshl_b32 s17, s17, 1")
        A("s_add_u32 s25, s25, s17")
    A("s_mov_b32 s28, -1")
    A("s_mov_b32 s29, 0xffff")
    A("s_waitcnt lgkmcnt(0)")
    srd(A, 8, 4, 2048*512*2)
    srd(A, 40, 6, 512*1536*2)
    A("s_cmp_ge_u32 s15, 4")
    A("s_cbranch_scc1 P1_LOADER1")
    p1_loader(A, 2)
    A("s_endpgm")
    A.label("P1_LOADER1")
    p1_loader(A, 1)
    A("s_endpgm")
    A.label("P1_IDLE")
    for c in range(8): A("s_barrier")
    A("s_endpgm")
    A.label("P1_COMPUTE")
    A("v_and_b32 v4, 15, v0")
    A("v_lshrrev_b32 v5, 4, v0")
    A("v_lshrrev_b32 v6, 1, v4")
    A("v_xor_b32 v6, v6, v5")
    A("v_lshlrev_b32 v6, 4, v6")
    A("v_lshl_add_u32 v6, v4, 7, v6")
    A("s_lshr_b32 s17, s14, 1")
    A("s_lshl_b32 s17, s17, 13")
    A(f"v_add_u32 v{vXA}, s17, v6")
    A(f"v_xor_b32 v{vXA+1}, 64, v{vXA}")
    for st in range(1, (NSLOT + 1) // 2):
        A(f"v_add_u32 v{vXA+2*st}, {st*2*SLOT}, v{vXA}")
        A(f"v_add_u32 v{vXA+2*st+1}, {st*2*SLOT}, v{vXA+1}")
    A("v_lshrrev_b32 v6, 2, v4")
    A("v_lshl_add_u32 v6, v5, 3, v6")
    A("v_mul_u32_u24 v6, 192, v6")
    A("v_and_b32 v7, 3, v4")
    A("v_lshl_add_u32 v6, v7, 3, v6")
    A("s_and_b32 s17, s14, 1")
    A("v_xor_b32 v7, s17, v5")
    A("v_and_b32 v7, 1, v7")
    A(f"v_lshl_add_u32 v{vWA}, v7, 5, v6")
    for st in range(1, (NSLOT + 1) // 2):
        A(f"v_add_u32 v{vWA+st}, {st*2*SLOT}, v{vWA}")
    A("s_waitcnt lgkmcnt(0)")
    srd(A, 32, 36, WS_END)
    if prof: stamp(A, 1)
    p1_compute(A)
    if prof: stamp(A, 10)
    p1_epilogue(A)
    if prof: stamp(A, 11)
    A("s_waitcnt vmcnt(0)")
    if prof: write_stamps_generic(A, 36, 14, 12)
    A.label("P1_END")
    A("s_endpgm")
    return A.text(), kernel_desc(name, 128)

if __name__ == "__main__":
    import sys
    code, desc = gen_p1(prof=(len(sys.argv) > 1))
    hdr = "; @launch kernel=p1_kernel grid=(256,1,1) block=(1024,1,1) lds=163840\n.amdgcn_target \"amdgcn-amd-amdhsa--gfx950\"\n"
    open(os.environ.get("OUT", "p1.s"), "w").write(hdr + code + desc)
```

```python
from asmlib import *
from layout import *
import os, struct
from k_attn import DSQ, stamp, write_stamps_generic
from ssm_common import gather_table

def f32bits(x): return struct.unpack("<I", struct.pack("<f", x))[0]
LOG2E = 1.4426950408889634
INV2PI = 0.15915494309189535

L_TA = 0; L_TB = 16896; L_CH = 33792
L_T = 67584
L_KREV = 71680; KREV_SZ = 7680
L_RAW = 87040
L_UC = 95744; UC_RHO = 4160; UC_CH = 16640
L_PART = 0

def cmul(A, D, X, S, T):
    A(f"v_pk_mul_f32 {v(T,2)}, {v(X,2)}, {v(S,2)} op_sel:[0,0] op_sel_hi:[1,0]")
    A(f"v_pk_fma_f32 {v(D,2)}, {v(X,2)}, {v(S,2)}, {v(T,2)} op_sel:[1,1,0] op_sel_hi:[0,1,1] neg_lo:[0,1,0]")

def anchor(A, D, p, vt2, vw, tmp, conj=False):
    A(f"v_mul_f32 v{tmp}, {float(p)!r}, v{vt2}" if p in (1, 2, 4) else f"v_mul_f32 v{tmp}, 0x{f32bits(float(p)):08x}, v{vt2}")
    A(f"v_mul_f32 v{tmp+1}, {float(p)!r}, v{vw}" if p in (1, 2, 4) else f"v_mul_f32 v{tmp+1}, 0x{f32bits(float(p)):08x}, v{vw}")
    A(f"v_exp_f32 v{tmp}, v{tmp}")
    A(f"v_fract_f32 v{tmp+1}, v{tmp+1}")
    A(f"v_cos_f32 v{D}, v{tmp+1}")
    A(f"v_sin_f32 v{D+1}, v{tmp+1}")
    A("s_nop 0")
    A(f"v_mul_f32 v{D}, v{D}, v{tmp}")
    if conj: A(f"v_mul_f32_e64 v{D+1}, -v{D+1}, v{tmp}")
    else: A(f"v_mul_f32 v{D+1}, v{D+1}, v{tmp}")

def kgen_params(A, vLAR, vAIM, vCRE, vCIM, sLDT, vt2, vw, vY0, tmp):
    A(f"s_mov_b32 s47, 0x{f32bits(LOG2E):08x}")
    A(f"v_mov_b32 v{tmp}, s{sLDT}")
    A(f"v_lshlrev_b32 v{vLAR}, 16, v{vLAR}")
    A(f"v_mul_f32 v{tmp}, s47, v{tmp}")
    A(f"v_mul_f32 v{vLAR}, s47, v{vLAR}")
    A(f"v_exp_f32 v{tmp}, v{tmp}")
    A(f"v_exp_f32 v{vLAR}, v{vLAR}")
    A(f"v_lshlrev_b32 v{vAIM}, 16, v{vAIM}")
    A(f"v_cvt_pk_bf16_f32 v{tmp}, v{tmp}, v{vLAR}")
    A(f"v_lshlrev_b32 v{vCRE}, 16, v{vCRE}")
    A(f"v_and_b32 v{vLAR}, 0xffff0000, v{tmp}")
    A(f"v_lshlrev_b32 v{tmp}, 16, v{tmp}")
    A(f"v_lshlrev_b32 v{vCIM}, 16, v{vCIM}")
    A(f"v_mul_f32 v{vLAR}, v{vLAR}, v{tmp}")
    A(f"v_mul_f32 v{vAIM}, v{vAIM}, v{tmp}")
    A(f"v_mul_f32 v{vt2}, 0x{f32bits(-LOG2E):08x}, v{vLAR}")
    A(f"v_mul_f32 v{vw}, 0x{f32bits(INV2PI):08x}, v{vAIM}")
    A(f"v_add_f32 v{tmp}, v{tmp}, v{tmp}")
    A(f"v_mul_f32 v{vY0}, v{vCRE}, v{tmp}")
    A(f"v_mul_f32_e64 v{vY0+1}, -v{vCIM}, v{tmp}")

def kgen_bside(A, vt2, vw, vAddr):
    XE, XO, S, T, TMP, PK = 40, 42, 44, 46, 48, 50
    anchor(A, XO, 8, vt2, vw, TMP)
    A(f"v_mov_b32 v{XE}, 1.0"); A(f"v_mov_b32 v{XE+1}, 0")
    cmul(A, S, XO, XO, T)
    for b in range(0, 32, 2):
        A(f"v_cvt_pk_bf16_f32 v{PK}, v{XE}, v{XE+1}")
        A(f"v_cvt_pk_bf16_f32 v{PK+1}, v{XO}, v{XO+1}")
        if b < 30:
            cmul(A, XE, XE, S, T)
            cmul(A, XO, XO, S, T+6)
        A(f"ds_write_b32 v{vAddr}, v{PK} offset:{L_TB + b*528}")
        A(f"ds_write_b32 v{vAddr}, v{PK+1} offset:{L_TB + (b+1)*528}")
        PK = 50 + (2 if PK == 50 else 0) if False else PK
        PK = 54 if PK == 50 else 50

def kgen_aside(A, vt2, vw, vY0, vAddr):
    F1, F256, F2, F4, Y, Z, T, TMP = 40, 42, 44, 46, 48, 56, 58, 60
    pk = [62, 63, 64, 65]; n = [0]
    def put(reg, row):
        p = pk[n[0] % 4]; n[0] += 1
        A(f"v_cvt_pk_bf16_f32 v{p}, v{reg}, v{reg+1}")
        A(f"ds_write_b32 v{vAddr}, v{p} offset:{L_TA + row*528}")
    anchor(A, F1, 1, vt2, vw, TMP, conj=True)
    anchor(A, F256, 256, vt2, vw, TMP, conj=True)
    cmul(A, F2, F1, F1, T)
    cmul(A, Z, vY0, F256, T+4)
    cmul(A, F4, F2, F2, T)
    put(vY0, 0)
    cmul(A, Y, vY0, F1, T); put(Y, 1)
    put(Z, 8)
    for r in range(2, 8):
        cmul(A, Y, Y, F1, T); put(Y, r)
    cmul(A, Y, Z, F2, T); put(Y, 9)
    cmul(A, Y, Y, F2, T); put(Y, 10)
    cmul(A, Y, Y, F2, T); put(Y, 11)
    cmul(A, Z, Z, F256, T); put(Z, 12)
    cmul(A, Y, Z, F4, T); put(Y, 13)
    cmul(A, Z, Z, F256, T); put(Z, 14)
    cmul(A, Y, Z, F4, T); put(Y, 15)
    for r in range(16, 21):
        cmul(A, Z, Z, F256, T); put(Z, r)

def conv_part(A, p, vUA, vKB0, vKB1, ACC0, ACC1):
    rng = {0: range(0, 24), 1: range(24, 48), 2: range(48, 80), 3: range(80, 128)}[p]
    ks = list(rng)
    q = DSQ(A)
    NB = 4
    FA, FB0, FB1 = 8, 24, 40
    def rd(i):
        k = ks[i]; b = i % NB
        A(f"ds_read_b64 {v(FA+4*b,2)}, v{vUA} offset:{32*k}"); q.issue(("a0", i))
        A(f"ds_read_b64 {v(FA+4*b+2,2)}, v{vUA} offset:{32*k+8}"); q.issue(("a1", i))
        off = (k//2)*80 + (k%2)*32
        A(f"ds_read_b128 {v(FB1+4*b,4)}, v{vKB1} offset:{off}"); q.issue(("b1", i))
        if k < 64:
            A(f"ds_read_b128 {v(FB0+4*b,4)}, v{vKB0} offset:{off}"); q.issue(("b0", i))
    n = len(ks)
    for i in range(min(NB-1, n)): rd(i)
    first0 = first1 = True
    for i in range(n):
        if i + NB - 1 < n: rd(i + NB - 1)
        k = ks[i]; b = i % NB
        q.wait(("b1", i))
        A(f"v_mfma_f32_32x32x16_bf16 {v(ACC1,16)}, {v(FA+4*b,4)}, {v(FB1+4*b,4)}, {'0' if first1 else v(ACC1,16)}"); first1 = False
        if k < 64:
            q.wait(("b0", i))
            A(f"v_mfma_f32_32x32x16_bf16 {v(ACC0,16)}, {v(FA+4*b,4)}, {v(FB0+4*b,4)}, {'0' if first0 else v(ACC0,16)}"); first0 = False

def lds_dump(A, wsreg=36):
    L = A.newlabel("DUMP")
    A("s_cmp_ge_u32 s2, 4")
    A(f"s_cbranch_scc1 {L}")
    A(f"s_add_u32 s92, s{wsreg}, {32<<20}")
    A(f"s_addc_u32 s93, s{wsreg+1}, 0")
    A("s_mov_b32 s94, 0x1000000")
    A("s_mov_b32 s95, 0x00020000")
    A("s_lshl_b32 s56, s14, 13")
    A("v_add_u32 v110, s56, v1")
    A("s_lshl_b32 s57, s2, 17")
    A("v_add_u32 v111, s57, v110")
    for i in range(8):
        A(f"ds_read_b128 v[112:115], v110 offset:{i*1024}")
        A("s_waitcnt lgkmcnt(0)")
        A(f"s_mov_b32 s57, {i*1024}")
        A(f"buffer_store_dwordx4 v[112:115], v111, s[92:95], s57 offen")
        A("s_waitcnt vmcnt(0)")
    A.label(L)
    A("s_barrier")

def gen_ssm(name="ssm_kernel", prof=False):
    A = Asm()
    kernel_begin(A, name)
    if prof:
        stamp(A, 0); A("s_memrealtime s[52:53]")
    A("s_cmp_ge_u32 s2, 256")
    A("s_cbranch_scc1 SSM_END")
    A("s_load_dwordx16 s[16:31], s[0:1], 0")
    A(f"s_load_dwordx2 s[34:35], s[0:1], {KA_OUT}")
    A(f"s_load_dwordx2 s[36:37], s[0:1], {KA_WS}")
    A("s_and_b32 s12, s2, 7")
    A("s_lshl_b32 s12, s12, 5")
    A("s_lshr_b32 s13, s2, 3")
    A("s_add_u32 s12, s12, s13")
    A("s_lshl_b32 s12, s12, 1")
    A("v_lshrrev_b32 v8, 6, v0")
    A("v_and_b32 v0, 63, v0")
    A("v_readfirstlane_b32 s14, v8")
    A("v_lshlrev_b32 v1, 4, v0")
    A("v_lshlrev_b32 v2, 2, v0")
    A("s_getpc_b64 s[38:39]")
    A.label("SSM_PC")
    A("s_add_u32 s38, s38, GTAB-SSM_PC")
    A("s_addc_u32 s39, s39, 0")
    A("s_waitcnt lgkmcnt(0)")
    srd(A, 4, 16, 2048*512*2)
    srd(A, 8, 34, 2048*1024*2)
    A("s_lshl_b32 s15, s12, 1")
    A("s_add_u32 s40, s26, s15"); A("s_addc_u32 s41, s27, 0")
    A("s_add_u32 s42, s28, s15"); A("s_addc_u32 s43, s29, 0")
    A("s_load_dword s44, s[40:41], 0")
    A("s_load_dword s45, s[42:43], 0")
    A("v_lshlrev_b32 v3, 10, v0")
    A("s_lshl_b32 s46, s14, 17")
    A("s_add_u32 s46, s46, s15")
    A("s_lshl_b32 s47, s14, 9")
    A(f"s_add_u32 m0, s47, {L_RAW + 31*4}")
    A("s_nop 0")
    A("buffer_load_dword v3, s[4:7], s46 offen lds")
    A(f"s_add_u32 m0, s47, {L_RAW + 31*4 + 256}")
    A("s_add_u32 s46, s46, 65536")
    A("buffer_load_dword v3, s[4:7], s46 offen lds")
    A("v_mov_b32 v4, 0"); A("v_mov_b32 v5, 0"); A("v_mov_b32 v6, 0"); A("v_mov_b32 v7, 0")
    A("s_cmp_ge_u32 s14, 8")
    A("s_cbranch_scc0 SSM_KG")
    A("s_cmp_eq_u32 s14, 8")
    A("s_cbranch_scc0 SSM_Z2")
    A("v_cmp_gt_u32 vcc, 31, v0")
    A("s_and_saveexec_b64 s[48:49], vcc")
    A(f"v_add_u32 v9, {L_RAW}, v2")
    A("ds_write_b32 v9, v4")
    A(f"v_add_u32 v9, {L_RAW + 2079*4}, v2")
    A("ds_write_b32 v9, v4")
    A("s_mov_b64 exec, s[48:49]")
    A("s_branch SSM_B1")
    A.label("SSM_Z2")
    A("s_cmp_ge_u32 s14, 15")
    A("s_cbranch_scc1 SSM_B1")
    A("s_sub_u32 s47, s14, 9")
    A("s_cmp_ge_u32 s47, 3")
    A("s_cselect_b32 s48, 1, 0")
    A("s_mul_i32 s49, s48, 3")
    A("s_sub_u32 s47, s47, s49")
    A("s_lshl_b32 s47, s47, 10")
    A(f"s_mul_i32 s48, s48, {KREV_SZ}")
    A("s_add_u32 s47, s47, s48")
    A(f"s_add_u32 s47, s47, {L_KREV + 64*80}")
    A("v_add_u32 v9, s47, v1")
    A(f"s_add_u32 s48, s48, {L_KREV + KREV_SZ}")
    A("v_cmp_gt_u32 vcc, s48, v9")
    A("s_and_saveexec_b64 s[50:51], vcc")
    A("ds_write_b128 v9, v[4:7]")
    A("s_mov_b64 exec, s[50:51]")
    A("s_branch SSM_B1")
    A.label("SSM_KG")
    A("s_lshr_b32 s47, s14, 2")
    A("s_add_u32 s48, s12, s47")
    A("s_lshl_b32 s48, s48, 8")
    A("s_lshl_b32 s49, s14, 6")
    A("s_and_b32 s49, s49, 128")
    A("s_add_u32 s48, s48, s49")
    A("v_lshlrev_b32 v9, 1, v0")
    for i, (reg, base) in enumerate(((10, 18), (11, 20), (12, 22), (13, 24))):
        srd(A, 56, base, 512*128*2)
        A(f"buffer_load_ushort v{reg}, v9, s[56:59], s48 offen")
    A("s_lshl_b32 s50, s14, 11")
    A("v_lshlrev_b32 v14, 5, v0")
    A("v_add_u32 v14, s50, v14")
    A("s_cmp_ge_u32 s14, 4")
    A("s_cbranch_scc1 SSM_KG2")
    A("global_load_dwordx4 v[96:99], v14, s[38:39]")
    A("global_load_dwordx4 v[100:103], v14, s[38:39] offset:16")
    A.label("SSM_KG2")
    A(f"s_mul_i32 s50, s47, {L_CH}")
    A("s_lshl_b32 s49, s49, 1")
    A("s_add_u32 s50, s50, s49")
    A("v_add_u32 v15, s50, v2")
    A("s_waitcnt lgkmcnt(0)")
    A("s_cmp_eq_u32 s47, 0")
    A("s_cbranch_scc1 SSM_C0")
    A("s_and_b32 s50, s44, 0xffff0000")
    A("s_branch SSM_C1")
    A.label("SSM_C0")
    A("s_lshl_b32 s50, s44, 16")
    A.label("SSM_C1")
    A("s_bitcmp1_b32 s14, 2")
    A("s_cbranch_scc1 SSM_W0")
    A("s_waitcnt vmcnt(2)")
    A("s_branch SSM_W1")
    A.label("SSM_W0")
    A("s_waitcnt vmcnt(0)")
    A.label("SSM_W1")
    kgen_params(A, 10, 11, 12, 13, 50, 16, 17, 18, 20)
    A("s_bitcmp1_b32 s14, 0")
    A("s_cbranch_scc1 SSM_ASIDE")
    kgen_bside(A, 16, 17, 15)
    A("s_branch SSM_B1")
    A.label("SSM_ASIDE")
    kgen_aside(A, 16, 17, 18, 15)
    A.label("SSM_B1")
    if prof: stamp(A, 1)
    A("s_waitcnt vmcnt(0) lgkmcnt(0)")
    A("s_barrier")
    if prof: stamp(A, 2)
    if os.environ.get("DUMP") == "1": lds_dump(A)
    A("s_cmp_ge_u32 s14, 8")
    A("s_cbranch_scc1 SSM_B2")
    A("v_and_b32 v9, 15, v0")
    A("v_lshrrev_b32 v10, 4, v0")
    A("v_mul_u32_u24 v11, 528, v9")
    A("v_lshl_add_u32 v11, v10, 4, v11")
    A("s_lshr_b32 s47, s14, 2")
    A(f"s_mul_i32 s48, s47, {L_CH}")
    A("s_lshr_b32 s49, s14, 1"); A("s_and_b32 s49, s49, 1")
    A(f"s_mul_i32 s50, s49, {16*528}")
    A("s_add_u32 s50, s50, s48")
    A("v_add_u32 v12, s50, v11")
    A("s_and_b32 s51, s14, 1")
    A(f"s_mul_i32 s50, s51, {16*528}")
    A("s_add_u32 s50, s50, s48")
    A(f"s_add_u32 s50, s50, {L_TB}")
    A("v_add_u32 v13, s50, v11")
    for s_ in range(8):
        A(f"ds_read_b128 {v(16+4*s_,4)}, v12 offset:{s_*64}")
    for s_ in range(7):
        A(f"ds_read_b128 {v(48+4*s_,4)}, v13 offset:{s_*64}")
    A("s_waitcnt lgkmcnt(7)")
    A(f"ds_read_b128 {v(48+28,4)}, v13 offset:{7*64}")
    for s_ in range(8):
        A(f"s_waitcnt lgkmcnt({7-s_})")
        A(f"v_mfma_f32_16x16x32_bf16 v[80:83], {v(16+4*s_,4)}, {v(48+4*s_,4)}, {'0' if s_==0 else 'v[80:83]'}")
    A("s_lshl_b32 s50, s47, 11")
    A("s_lshl_b32 s48, s49, 10")
    A("s_add_u32 s50, s50, s48")
    A("s_lshl_b32 s48, s51, 5")
    A("s_add_u32 s50, s50, s48")
    A(f"s_add_u32 s50, s50, {L_T}")
    A("v_lshlrev_b32 v14, 8, v10")
    A("v_lshl_add_u32 v14, v9, 1, v14")
    A("v_add_u32 v14, s50, v14")
    A("s_and_b32 s48, s14, 3")
    A("s_cmp_eq_u32 s47, 0")
    A("s_cselect_b32 s49, 16, 0")
    A("s_lshl_b32 s49, s45, s49")
    A("s_and_b32 s49, s49, 0xffff0000")
    A("s_cmp_eq_u32 s48, 0")
    A("s_cselect_b32 s49, s49, 0")
    A("v_cmp_eq_u32 vcc, 0, v0")
    A("v_mov_b32 v15, s49")
    A("s_nop 3")
    A("v_cndmask_b32 v15, 0, v15, vcc")
    A("v_add_f32 v80, v80, v15")
    A("v_cvt_pk_bf16_f32 v84, v80, v81")
    A("v_cvt_pk_bf16_f32 v85, v82, v83")
    A("ds_write_b16 v14, v84")
    A("ds_write_b16_d16_hi v14, v84 offset:64")
    A("ds_write_b16 v14, v85 offset:128")
    A("ds_write_b16_d16_hi v14, v85 offset:192")
    A.label("SSM_B2")
    A("s_waitcnt lgkmcnt(0)")
    A("s_barrier")
    if prof: stamp(A, 3)
    A("s_cmp_ge_u32 s14, 8")
    A("s_cbranch_scc1 SSM_COPY")
    A("s_cmp_ge_u32 s14, 4")
    A("s_cbranch_scc1 SSM_B3")
    for e in range(8): A(f"v_add_u32 v{96+e}, {L_T}, v{96+e}")
    for c in range(2):
        for e in range(8):
            op = "ds_read_u16_d16_hi" if e % 2 else "ds_read_u16"
            A(f"{op} v{(32 if e % 2 else 16)+4*c+e//2}, v{96+e} offset:{c*2048}")
    A("s_lshl_b32 s47, s14, 6")
    A("v_add_u32 v9, s47, v0")
    A("v_lshrrev_b32 v10, 2, v9")
    A("v_mul_u32_u24 v10, 80, v10")
    A("v_and_b32 v9, 3, v9")
    A("v_lshl_add_u32 v10, v9, 4, v10")
    A(f"v_add_u32 v10, {L_KREV}, v10")
    A("s_waitcnt lgkmcnt(8)")
    for j in range(4): A(f"v_or_b32 v{16+j}, v{16+j}, v{32+j}")
    A("ds_write_b128 v10, v[16:19]")
    A("s_waitcnt lgkmcnt(1)")
    for j in range(4): A(f"v_or_b32 v{20+j}, v{20+j}, v{36+j}")
    A(f"ds_write_b128 v10, v[20:23] offset:{KREV_SZ}")
    A("s_branch SSM_B3")
    A.label("SSM_COPY")
    A("s_cmp_ge_u32 s14, 13")
    A("s_cbranch_scc1 SSM_B3")
    A("s_sub_u32 s47, s14, 8")
    A("s_lshl_b32 s47, s47, 6")
    A("v_add_u32 v9, s47, v0")
    A("v_cmp_gt_u32 vcc, 260, v9")
    A("s_and_saveexec_b64 s[48:49], vcc")
    A("v_lshlrev_b32 v10, 5, v9")
    A(f"v_add_u32 v10, {L_RAW}, v10")
    A("ds_read_b128 v[16:19], v10")
    A("ds_read_b128 v[20:23], v10 offset:16")
    A("ds_read_b128 v[24:27], v10 offset:32")
    A("v_lshlrev_b32 v11, 4, v9")
    A(f"v_add_u32 v11, {L_UC}, v11")
    A("s_mov_b32 s50, 0x05040100")
    A("s_mov_b32 s51, 0x07060302")
    A("s_waitcnt lgkmcnt(0)")
    n = 0
    for c in range(2):
        for rho in range(4):
            t = 32 + 4 * (n % 4); n += 1
            for j in range(4):
                lo = 16 + rho + 2*j
                A(f"v_perm_b32 v{t+j}, v{lo+1}, v{lo}, s{50+c}")
            A(f"ds_write_b128 v11, {v(t,4)} offset:{c*UC_CH + rho*UC_RHO}")
    A("s_mov_b64 exec, s[48:49]")
    A.label("SSM_B3")
    A("s_waitcnt lgkmcnt(0)")
    A("s_barrier")
    if prof: stamp(A, 4)
    if os.environ.get("DUMP") == "3": lds_dump(A)
    A("s_cmp_ge_u32 s14, 8")
    A("s_cbranch_scc1 SSM_B4")
    A("v_and_b32 v9, 31, v0")
    A("v_lshrrev_b32 v10, 5, v0")
    A("s_lshr_b32 s47, s14, 2")
    A("v_and_b32 v11, 3, v9")
    A(f"v_mul_u32_u24 v11, {UC_RHO}, v11")
    A("v_lshrrev_b32 v12, 2, v9")
    A("v_lshl_add_u32 v11, v12, 3, v11")
    A("v_lshl_add_u32 v11, v10, 4, v11")
    A(f"s_mul_i32 s48, s47, {UC_CH}")
    A(f"s_add_u32 s48, s48, {L_UC}")
    A("v_add_u32 v4, s48, v11")
    A("v_sub_u32 v11, 63, v9")
    A("v_mul_u32_u24 v11, 80, v11")
    A("v_lshl_add_u32 v11, v10, 4, v11")
    A(f"s_mul_i32 s48, s47, {KREV_SZ}")
    A(f"s_add_u32 s48, s48, {L_KREV}")
    A("v_add_u32 v5, s48, v11")
    A("v_subrev_u32 v6, 2560, v5")
    ACC0, ACC1 = 64, 80
    A("s_and_b32 s48, s14, 3")
    A(f"s_mul_i32 s49, s47, 28672")
    A("s_lshl_b32 s50, s48, 12")
    A("s_add_u32 s49, s49, s50")
    A("v_add_u32 v7, s49, v1")
    for p in range(4):
        if p < 3:
            A(f"s_cmp_eq_u32 s48, {p}")
            A(f"s_cbranch_scc0 SSM_CV{p+1}")
        conv_part(A, p, 4, 5, 6, ACC0, ACC1)
        A("s_nop 15")
        for qd in range(4):
            A(f"ds_write_b128 v7, {v(ACC1+4*qd,4)} offset:{L_PART + qd*1024}")
        if p < 3:
            for qd in range(4):
                A(f"ds_write_b128 v7, {v(ACC0+4*qd,4)} offset:{L_PART + 16384 + qd*1024}")
            A("s_branch SSM_B4")
            A.label(f"SSM_CV{p+1}")
    A.label("SSM_B4")
    A("s_waitcnt lgkmcnt(0)")
    A("s_barrier")
    if prof: stamp(A, 5)
    A("s_cmp_ge_u32 s14, 8")
    A("s_cbranch_scc1 SSM_FIN")
    A("s_lshr_b32 s47, s14, 2")
    A("s_and_b32 s48, s14, 3")
    A("s_lshl_b32 s49, s48, 10")
    A("v_add_u32 v4, s49, v1")
    A("s_cmp_eq_u32 s47, 0")
    A("s_cbranch_scc1 SSM_F0")
    for c in range(2):
        for p in range(4):
            A(f"ds_read_b128 {v(16+16*c+4*p,4)}, v4 offset:{L_PART + c*28672 + p*4096}")
    A("s_waitcnt lgkmcnt(0)")
    for c in range(2):
        for r in range(4):
            b = 16 + 16*c + r
            A(f"v_add_f32 v{b}, v{b}, v{b+4}"); A(f"v_add_f32 v{b+8}, v{b+8}, v{b+12}")
        for r in range(4):
            b = 16 + 16*c + r
            A(f"v_add_f32 v{b}, v{b}, v{b+8}")
    A("s_branch SSM_F1")
    A.label("SSM_F0")
    for c in range(2):
        for p in range(3):
            A(f"ds_read_b128 {v(16+16*c+4*p,4)}, v4 offset:{L_PART + c*28672 + 16384 + p*4096}")
    A("s_waitcnt lgkmcnt(0)")
    for c in range(2):
        for r in range(4):
            b = 16 + 16*c + r
            A(f"v_add_f32 v{b}, v{b}, v{b+4}")
        for r in range(4):
            b = 16 + 16*c + r
            A(f"v_add_f32 v{b}, v{b}, v{b+8}")
    A.label("SSM_F1")
    for r in range(4):
        A(f"v_cvt_pk_bf16_f32 v{48+r}, v{16+r}, v{32+r}")
    A("v_and_b32 v9, 31, v0")
    A("v_lshrrev_b32 v10, 5, v0")
    A("v_lshlrev_b32 v9, 16, v9")
    A("v_lshl_add_u32 v9, v10, 13, v9")
    A("s_lshl_b32 s49, s47, 21")
    A("s_lshl_b32 s50, s48, 14")
    A("s_add_u32 s49, s49, s50")
    A("s_lshl_b32 s50, s12, 1")
    A("s_add_u32 s49, s49, s50")
    A("s_add_u32 s50, s49, 4096")
    A("buffer_store_dword v48, v9, s[8:11], s49 offen")
    A("buffer_store_dword v49, v9, s[8:11], s49 offen offset:2048")
    A("buffer_store_dword v50, v9, s[8:11], s50 offen")
    A("buffer_store_dword v51, v9, s[8:11], s50 offen offset:2048")
    A.label("SSM_FIN")
    A("s_waitcnt vmcnt(0)")
    if prof: write_stamps_generic(A, 36, 14, 6)
    A.label("SSM_END")
    A("s_endpgm")
    A(".p2align 6")
    A(".type GTAB,@object")
    A.label("GTAB")
    t = gather_table()
    for i in range(0, 2048, 16):
        A(".long " + ", ".join(str(int(x)) for x in t[i:i+16]))
    A(".size GTAB, 8192")
    return A.text(), kernel_desc(name, 128)

if __name__ == "__main__":
    import sys
    code, desc = gen_ssm(prof=(len(sys.argv) > 1))
    hdr = "; @launch kernel=ssm_kernel grid=(256,1,1) block=(1024,1,1) lds=163840\n.amdgcn_target \"amdgcn-amd-amdhsa--gfx950\"\n"
    open(os.environ.get("OUT", "ssm.s"), "w").write(hdr + code + desc)
```

```python
WS_Q = 0x000000
WS_K = 0x200000
WS_V = 0x400000
WS_O = 0x600000
WS_END = 0x800000
KA_U, KA_LAR, KA_AIM, KA_CRE, KA_CIM, KA_LDT, KA_DSK, KA_X, KA_WQKV, KA_WO, KA_OUT, KA_DBG, KA_WS = [8*i for i in range(13)]
```

```python
import numpy as np
def bf16_round_int(j):
    x = np.array([j], dtype=np.float32)
    u = x.view(np.uint32)
    r = ((u + 0x7FFF + ((u >> 16) & 1)) >> 16).astype(np.uint32) << 16
    return int(r.view(np.float32)[0])
ROW_OFFS = [0,1,2,3,4,5,6,7, 256,258,260,262, 512,516,768,772, 1024,1280,1536,1792, 2048]
def tidx(p):
    for row, off in enumerate(ROW_OFFS):
        d = p - off
        if 0 <= d <= 248 and d % 8 == 0:
            cand = (row, d // 8)
            yield cand
def table_index(p):
    c = list(tidx(p))
    assert c, p
    return c[-1]
def gather_table():
    t = np.zeros(2048, dtype=np.uint32)
    for m in range(2048):
        j = 2047 - m
        p = bf16_round_int(j)
        row, b = table_index(p)
        t[m] = row * 64 + b * 2
    return t
if __name__ == "__main__":
    t = gather_table()
    print(t[:40], t[-40:])
    ps = sorted(set(bf16_round_int(j) for j in range(2048)))
    print(len(ps), ps[250:262], ps[-5:])
    d = np.load("inputs.npz"); ref = np.load("ref_out.npy")
    def rbf(x):
        x = np.ascontiguousarray(x, dtype=np.float32); u = x.view(np.uint32)
        return (((u + 0x7FFF + ((u >> 16) & 1)) >> 16) << 16).astype(np.uint32).view(np.float32)
    u = d["A_u"][0]; lar = d["A_log_A_real"]; aim = d["A_A_imag"]; cre = d["A_C_real"]; cim = d["A_C_imag"]; ldt = d["A_log_dt"]; dsk = d["A_D_skip"]
    errs = []
    for ch in [0, 1, 77, 300, 511]:
        dt = rbf(np.exp(ldt[ch:ch+1]))[0]
        a = rbf(np.exp(lar[ch])); zr = -(a * dt); zi = aim[ch] * dt
        z = zr.astype(np.float64) + 1j * zi.astype(np.float64)
        C2 = 2 * (cre[ch] * dt + 1j * cim[ch] * dt)
        A = np.array([np.conj(C2 * np.exp(z * off)) for off in ROW_OFFS])
        B = np.array([np.exp(z * 8 * b) for b in range(32)])
        Ar, Ai = rbf(A.real), rbf(A.imag); Br, Bi = rbf(B.real), rbf(B.imag)
        T = Ar @ Br.T + Ai @ Bi.T
        T[0, 0] += dsk[ch]
        T = rbf(T)
        R = T.reshape(-1)[(t // 64) * 32 + (t % 64) // 2]
        K = R[::-1]
        y = np.array([np.dot(K[:l+1][::-1].astype(np.float64), u[:l+1, ch]) for l in range(2048)])
        e = np.abs(rbf(y) - ref[:, ch])
        errs.append(e.max())
        print(ch, "max err", e.max(), "absmax", np.abs(ref[:, ch]).max())
```

```python
import os, sys
os.environ.setdefault("PRIO", "b")
from k_attn import gen_attn
from k_p1 import gen_p1
from k_op import gen_op
from k_ssm import gen_ssm
hdr_src = open("concat_heads__ssm_conv_s4d__mha_block__prompt.s.ref").read().split("\n")
hdr = [l for l in hdr_src if l.startswith(";") and "@launch" not in l and "Override launch" not in l and "grid=ceil" not in l]
ks = [("ssm_kernel", gen_ssm), ("p1_kernel", gen_p1), ("attn_kernel", gen_attn), ("op_kernel", gen_op)]
out = "\n".join(hdr) + "\n"
for n, _ in ks:
    out += f"; @launch kernel={n} grid=(256,1,1) block=(1024,1,1) lds=163840\n"
out += '.amdgcn_target "amdgcn-amd-amdhsa--gfx950"\n'
descs = ""
for n, g in ks:
    code, desc = g(name=n)
    out += code
    descs += desc
out += descs
open(sys.argv[1], "w").write(out)
```

```python
import os, struct, sys
from asmlib import *
from ssm_common import gather_table

NAME = "concat_heads__ssm_conv_s4d__mha_block__prompt_kernel"
PROF = bool(os.environ.get("PROF"))

def f32bits(x): return struct.unpack("<I", struct.pack("<f", x))[0]
LOG2E = 1.4426950408889634
INV2PI = 0.15915494309189535
C_SCALE = 0.25 * LOG2E

WS_Q = 0x000000; WS_K = 0x200000; WS_V = 0x400000; WS_O = 0x600000
WS_KC = 0x800000
WS_WOF = 0xA00000
WS_F1 = 0xA80000
WS_F2 = 0xA82000
WS_F3 = 0xA84000
WS_EP = 0xA88000
WS_TOTAL = 0xA90000
WS_PROF = 0xB00000
KA = dict(u=0, lar=8, aim=16, cre=24, cim=32, ldt=40, dsk=48, x=56, wqkv=64, wo=72, out=80, dbg=88, ws=96)
SP = dict(u=64, lar=66, aim=68, cre=70, cim=72, ldt=74, dsk=76, x=78, wqkv=80, wo=82, out=84, dbg=86, ws=88)
sWS = 44
sT = 90

class DSQ:
    def __init__(self, A): self.A = A; self.q = []
    def issue(self, tag): self.q.append(tag)
    def wait(self, tag):
        if tag not in self.q: return
        i = len(self.q) - 1 - self.q[::-1].index(tag)
        n = len(self.q) - 1 - i
        assert n <= 15, n
        self.A(f"s_waitcnt lgkmcnt({n})")
        self.q = self.q[i+1:]
    def drain(self):
        self.A("s_waitcnt lgkmcnt(0)"); self.q = []

def stamp(A, k):
    if PROF:
        A("s_memtime s[48:49]")
        A("s_waitcnt lgkmcnt(0)")
        A(f"v_writelane_b32 v125, s48, {k}")

def write_stamps(A):
    if not PROF: return
    A("s_memrealtime s[40:41]")
    A("s_waitcnt lgkmcnt(0)")
    A(f"v_writelane_b32 v125, s40, 62")
    A(f"v_writelane_b32 v125, s91, 63")
    A(f"s_add_u32 s92, s{SP['ws']}, {WS_PROF}")
    A(f"s_addc_u32 s93, s{SP['ws']+1}, 0")
    A("s_mov_b32 s94, 0x200000")
    A("s_mov_b32 s95, 0x00020000")
    A("s_lshl_b32 s42, s2, 4"); A("s_add_u32 s42, s42, s3"); A("s_lshl_b32 s42, s42, 8")
    A("v_lshlrev_b32 v16, 2, v0")
    A("buffer_store_dword v125, v16, s[92:95], s42 offen")
    A("s_waitcnt vmcnt(0)")

def poll(A, label, vaddr, soff, nlanes_mask_lo, vtmp):
    A(f"s_mov_b32 s30, {nlanes_mask_lo}")
    A("s_mov_b32 s31, 0")
    A("s_mov_b64 exec, s[30:31]")
    A("s_mov_b32 s29, 0")
    A.label(label)
    A(f"buffer_load_dword v{vtmp}, v{vaddr}, s[{sWS}:{sWS+3}], s{soff} offen sc1")
    A("s_add_u32 s29, s29, 1")
    A("s_waitcnt vmcnt(0)")
    A(f"v_cmp_ne_u32 vcc, s{sT}, v{vtmp}")
    A("s_cmp_gt_u32 s29, 0x40000")
    A(f"s_cbranch_scc1 {label}_x")
    A(f"s_cbranch_vccnz {label}")
    A.label(label + "_x")
    A("s_mov_b64 exec, -1")

def flag_store(A, soff, vtmp, vzero):
    A(f"v_mov_b32 v{vtmp}, s{sT}")
    A(f"v_mov_b32 v{vzero}, 0")
    A("s_mov_b64 exec, 1")
    A(f"buffer_store_dword v{vtmp}, v{vzero}, s[{sWS}:{sWS+3}], s{soff} offen sc1")
    A("s_mov_b64 exec, -1")

def get_tag(A, vE):
    A(f"v_readfirstlane_b32 s{sT}, v{vE}")
    A("s_nop 3")
    A(f"s_mul_i32 s{sT}, s{sT}, 0x9e3779b1")
    A(f"s_add_u32 s{sT}, s{sT}, 0x7f4a7c15")

SLOT = 28672; NSLOT = 3; AHEAD = 2
vL16 = 1
vE = 127

def p1_ids(A):
    A("s_and_b32 s17, s2, 7")
    A("s_lshr_b32 s18, s2, 3")
    A("s_and_b32 s12, s17, 3")
    A("s_lshl_b32 s12, s12, 2")
    A("s_and_b32 s19, s18, 3")
    A("s_add_u32 s12, s12, s19")
    A("s_lshr_b32 s13, s17, 2")
    A("s_lshl_b32 s13, s13, 3")
    A("s_lshr_b32 s19, s18, 2")
    A("s_add_u32 s13, s13, s19")

def p1_loader(A):
    vDX, vDX1, vDW = 2, 3, 5
    A("s_setprio 3")
    A("s_sub_u32 s15, s3, 4")
    A("v_lshrrev_b32 v9, 3, v0")
    A("v_lshrrev_b32 v10, 1, v9")
    A("v_xor_b32 v10, v10, v0")
    A("v_and_b32 v10, 7, v10")
    A("v_lshlrev_b32 v10, 4, v10")
    A(f"v_lshl_add_u32 v{vDX}, v9, 10, v10")
    A(f"v_xor_b32 v{vDX1}, 64, v{vDX}")
    A("s_lshl_b32 s17, s15, 6")
    A("s_movk_i32 s18, 3072")
    A("s_mov_b32 s19, 43691")
    for i in range(2):
        A(f"v_add_u32 v9, s17, v0")
        if i: A(f"v_add_u32 v9, 512, v9")
        A("v_mul_u32_u24 v10, s19, v9")
        A("v_lshrrev_b32 v10, 19, v10")
        A("v_mul_u32_u24 v11, 12, v10")
        A("v_sub_u32 v11, v9, v11")
        A("v_lshrrev_b32 v12, 2, v10")
        A("v_and_b32 v12, 2, v12")
        A("v_xor_b32 v11, v11, v12")
        A("v_lshrrev_b32 v12, 2, v11")
        A("v_and_b32 v11, 3, v11")
        A("v_lshlrev_b32 v11, 4, v11")
        A("v_lshl_add_u32 v11, v12, 10, v11")
        A(f"v_mad_u32_u24 v{vDW+i}, v10, s18, v11")
    A("s_lshl_b32 s20, s12, 17")
    A("s_lshl_b32 s17, s15, 14")
    A("s_add_u32 s20, s20, s17")
    A("s_lshl_b32 s21, s13, 6")
    A("s_lshl_b32 s22, s15, 11")
    A("s_lshl_b32 s23, s15, 10")
    A("s_add_u32 s23, s23, 16384")
    A("s_lshr_b32 s25, s2, 5")
    A("s_lshr_b32 s17, s2, 3")
    A("s_and_b32 s17, s17, 3")
    A("s_lshl_b32 s17, s17, 1")
    A("s_add_u32 s25, s25, s17")
    srd(A, 4, SP['x'], 2048*512*2)
    srd(A, 8, SP['wqkv'], 512*1536*2)
    def issue(c, nw):
        slot = (c % NSLOT) * SLOT
        A(f"s_add_u32 s26, s25, {c}")
        A("s_and_b32 s26, s26, 7")
        A(f"s_lshl_b32 s24, s26, 7")
        A(f"s_add_u32 s24, s24, s20")
        A(f"s_add_u32 m0, s22, {slot}")
        A(f"s_mul_i32 s27, s26, {64*3072}")
        A(f"buffer_load_dwordx4 v{vDX}, s[4:7], s24 offen lds")
        A(f"s_add_u32 m0, s22, {slot + 1024}")
        A(f"s_add_u32 s24, s24, 8192")
        A(f"buffer_load_dwordx4 v{vDX1}, s[4:7], s24 offen lds")
        A(f"s_add_u32 m0, s23, {slot}")
        A(f"s_add_u32 s27, s27, s21")
        A(f"buffer_load_dwordx4 v{vDW}, s[8:11], s27 offen lds")
        if nw == 2:
            A(f"s_add_u32 m0, s23, {slot + 8192}")
            A("s_nop 0")
            A(f"buffer_load_dwordx4 v{vDW+1}, s[8:11], s27 offen lds")
    def waits(c, per): return per * (min(7, c - 1 + AHEAD if c > 0 else AHEAD - 1) - c)
    def loop(nw):
        for c in range(AHEAD): issue(c, nw)
        for c in range(8):
            A(f"s_waitcnt vmcnt({waits(c, 2 + nw)})")
            A("s_barrier")
            if c + AHEAD < 8: issue(c + AHEAD, nw)
    A("s_cmp_ge_u32 s15, 4")
    A("s_cbranch_scc1 P1_LOADER1")
    loop(2)
    A("s_branch P1_LOADER_END")
    A.label("P1_LOADER1")
    loop(1)
    A.label("P1_LOADER_END")
    get_tag(A, vE)
    A("s_setprio 0")

def p1_compute(A):
    vFR, vACC, vXA, vWA = 8, 64, 112, 118
    A("v_and_b32 v4, 15, v0")
    A("v_lshrrev_b32 v5, 4, v0")
    A("v_lshrrev_b32 v6, 1, v4")
    A("v_xor_b32 v6, v6, v5")
    A("v_lshlrev_b32 v6, 4, v6")
    A("v_lshl_add_u32 v6, v4, 7, v6")
    A("s_lshr_b32 s17, s3, 1")
    A("s_lshl_b32 s17, s17, 13")
    A(f"v_add_u32 v{vXA}, s17, v6")
    A(f"v_xor_b32 v{vXA+1}, 64, v{vXA}")
    A(f"v_add_u32 v{vXA+2}, {2*SLOT}, v{vXA}")
    A(f"v_add_u32 v{vXA+3}, {2*SLOT}, v{vXA+1}")
    A("v_lshrrev_b32 v6, 2, v4")
    A("v_lshl_add_u32 v6, v5, 3, v6")
    A("v_mul_u32_u24 v6, 192, v6")
    A("v_and_b32 v7, 3, v4")
    A("v_lshl_add_u32 v6, v7, 3, v6")
    A("s_and_b32 s17, s3, 1")
    A("v_xor_b32 v7, s17, v5")
    A("v_and_b32 v7, 1, v7")
    A(f"v_lshl_add_u32 v{vWA}, v7, 5, v6")
    A(f"v_add_u32 v{vWA+1}, {2*SLOT}, v{vWA}")
    q = DSQ(A)
    def fr(buf): return vFR + 28 * buf
    def rd(step):
        c, ks2 = step // 2, step % 2
        slot = c % NSLOT
        st, so = slot // 2, (slot % 2) * SLOT
        b = fr(step % 2)
        for ti in range(4):
            A(f"ds_read_b128 {v(b+4*ti,4)}, v{vXA+2*st+ks2} offset:{so + ti*2048}"); q.issue(("x", step, ti))
        for gi in range(3):
            for hf in range(2):
                A(f"ds_read_b64_tr_b16 {v(b+16+4*gi+2*hf,2)}, v{vWA+st} offset:{so + 16384 + (32*ks2+4*hf)*192 + 64*gi}"); q.issue(("w", step, gi, hf))
    def mm(step):
        b = fr(step % 2)
        for gi in range(3):
            for ti in range(4):
                acc = vACC + (gi*4 + ti)*4
                X = v(b+4*ti, 4); W = v(b+16+4*gi, 4)
                cc = "0" if step == 0 else v(acc, 4)
                if ti == 0: q.wait(("w", step, gi, 1))
                if gi < 2: A(f"v_mfma_f32_16x16x32_bf16 {v(acc,4)}, {W}, {X}, {cc}")
                else:      A(f"v_mfma_f32_16x16x32_bf16 {v(acc,4)}, {X}, {W}, {cc}")
    for c in range(8):
        A("s_barrier")
        stamp(A, 10 + c)
        rd(2*c)
        if c > 0: mm(2*c - 1)
        rd(2*c + 1)
        mm(2*c)
        q.drain()
    mm(15)
    stamp(A, 1)
    A("s_and_b32 s18, s3, 1")
    A("s_lshl_b32 s19, s13, 1")
    A("s_add_u32 s18, s18, s19")
    A("s_lshl_b32 s16, s18, 7")
    A("s_lshl_b32 s18, s18, 16")
    A("s_lshr_b32 s19, s3, 1")
    A("s_lshl_b32 s24, s12, 1")
    A("s_add_u32 s24, s24, s19")
    A("s_lshl_b32 s25, s24, 2")
    A("s_add_u32 s16, s16, s25")
    A(f"s_add_u32 s16, s16, {WS_F1}")
    A("s_lshl_b32 s19, s24, 11")
    A("s_add_u32 s18, s18, s19")
    A(f"s_mov_b32 s17, 0x{f32bits(C_SCALE):08x}")
    T = vFR
    n = 0
    for gi, base in ((1, WS_K), (2, WS_V), (0, WS_Q)):
        if gi == 0:
            for ti in range(4):
                for r in range(4):
                    A(f"v_mul_f32 v{vACC+ti*4+r}, s17, v{vACC+ti*4+r}")
        for pair in range(2):
            a0 = vACC + (gi*4 + 2*pair)*4; a1 = a0 + 4
            t = T + 4 * n; n += 1
            A(f"v_cvt_pk_bf16_f32 v{t}, v{a0}, v{a0+1}")
            A(f"v_cvt_pk_bf16_f32 v{t+1}, v{a0+2}, v{a0+3}")
            A(f"v_cvt_pk_bf16_f32 v{t+2}, v{a1}, v{a1+1}")
            A(f"v_cvt_pk_bf16_f32 v{t+3}, v{a1+2}, v{a1+3}")
            A(f"s_add_u32 s24, s18, {base + pair*1024}")
            A("s_nop 0")
            op = "v_permlane32_swap_b32" if gi == 2 else "v_permlane16_swap_b32"
            A(f"{op} v{t}, v{t+2}")
            A(f"{op} v{t+1}, v{t+3}")
            A("s_nop 1")
            A(f"buffer_store_dwordx4 {v(t,4)}, v{vL16}, s[{sWS}:{sWS+3}], s24 offen sc1")
    stamp(A, 18)
    A("s_waitcnt vmcnt(0)")
    get_tag(A, vE)
    flag_store(A, 16, 2, 3)
    stamp(A, 2)

L_TA = 86016; L_TBO = 16896; L_TCH = 33792
L_T = 153600
L_WOT = 157696

def cmul(A, D, X, S, T):
    A(f"v_pk_mul_f32 {v(T,2)}, {v(X,2)}, {v(S,2)} op_sel:[0,0] op_sel_hi:[1,0]")
    A(f"v_pk_fma_f32 {v(D,2)}, {v(X,2)}, {v(S,2)}, {v(T,2)} op_sel:[1,1,0] op_sel_hi:[0,1,1] neg_lo:[0,1,0]")

def fl(p): return f"{float(p)!r}" if p in (1, 2, 4) else f"0x{f32bits(float(p)):08x}"
def anchor(A, D, p, vt2, vw, tmp, conj=False):
    A(f"v_mul_f32 v{tmp}, {fl(p)}, v{vt2}")
    A(f"v_mul_f32 v{tmp+1}, {fl(p)}, v{vw}")
    A(f"v_exp_f32 v{tmp}, v{tmp}")
    A(f"v_fract_f32 v{tmp+1}, v{tmp+1}")
    A(f"v_cos_f32 v{D}, v{tmp+1}")
    A(f"v_sin_f32 v{D+1}, v{tmp+1}")
    A("s_nop 0")
    A(f"v_mul_f32 v{D}, v{D}, v{tmp}")
    if conj: A(f"v_mul_f32_e64 v{D+1}, -v{D+1}, v{tmp}")
    else: A(f"v_mul_f32 v{D+1}, v{D+1}, v{tmp}")

def kgen(A):
    A("s_sub_u32 s15, s3, 12")
    A("s_and_b32 s14, s2, 7"); A("s_lshl_b32 s14, s14, 5"); A("s_lshr_b32 s16, s2, 3"); A("s_add_u32 s14, s14, s16")
    A("s_lshl_b32 s14, s14, 1")
    A("s_lshr_b32 s16, s15, 1")
    A("s_add_u32 s17, s14, s16")
    A("s_lshl_b32 s17, s17, 8")
    A("s_and_b32 s18, s15, 1")
    A("s_lshl_b32 s19, s18, 7")
    A("s_add_u32 s17, s17, s19")
    A("v_lshlrev_b32 v9, 1, v0")
    for reg, nm in ((10, 'lar'), (11, 'aim'), (12, 'cre'), (13, 'cim')):
        srd(A, 4, SP[nm], 512*128*2)
        A(f"buffer_load_ushort v{reg}, v9, s[4:7], s17 offen")
    A("s_lshl_b32 s20, s14, 1")
    A(f"s_add_u32 s22, s{SP['ldt']}, s20"); A(f"s_addc_u32 s23, s{SP['ldt']+1}, 0")
    A(f"s_add_u32 s24, s{SP['dsk']}, s20"); A(f"s_addc_u32 s25, s{SP['dsk']+1}, 0")
    A("s_load_dword s26, s[22:23], 0")
    A("s_load_dword s27, s[24:25], 0")
    A("s_getpc_b64 s[28:29]")
    A.label("KG_PC")
    A("s_add_u32 s28, s28, GTAB-KG_PC")
    A("s_addc_u32 s29, s29, 0")
    A("s_lshl_b32 s20, s15, 11")
    A("v_lshlrev_b32 v14, 5, v0")
    A("v_add_u32 v14, s20, v14")
    A("global_load_dwordx4 v[96:99], v14, s[28:29]")
    A("global_load_dwordx4 v[100:103], v14, s[28:29] offset:16")
    A("s_cmp_eq_u32 s15, 0")
    A("s_cbranch_scc0 KG_NOWO")
    srd(A, 4, SP['wo'], 512*512*2)
    A("s_and_b32 s20, s2, 7"); A("s_lshl_b32 s20, s20, 16")
    A("s_lshr_b32 s21, s2, 3"); A("s_lshl_b32 s21, s21, 5")
    A("s_add_u32 s20, s20, s21")
    A("v_lshlrev_b32 v15, 10, v0")
    A("buffer_load_dwordx4 v[104:107], v15, s[4:7], s20 offen")
    A("buffer_load_dwordx4 v[108:111], v15, s[4:7], s20 offen offset:16")
    A.label("KG_NOWO")
    A(f"s_mul_i32 s20, s16, {L_TCH}")
    A("s_lshl_b32 s21, s18, 8")
    A("s_add_u32 s20, s20, s21")
    A(f"s_add_u32 s20, s20, {L_TA}")
    A("v_lshlrev_b32 v15, 2, v0")
    A("v_add_u32 v15, s20, v15")
    A(f"v_add_u32 v8, {L_TBO}, v15")
    A("s_waitcnt lgkmcnt(0)")
    A("s_cmp_eq_u32 s16, 0")
    A("s_cselect_b32 s20, 16, 0")
    A("s_lshl_b32 s26, s26, s20"); A("s_and_b32 s26, s26, 0xffff0000")
    A("s_lshl_b32 s27, s27, s20"); A("s_and_b32 s27, s27, 0xffff0000")
    A("s_waitcnt vmcnt(0)")
    stamp(A, 20)
    get_tag(A, vE)
    vt2, vw, vY0, tmp = 16, 17, 18, 20
    A(f"s_mov_b32 s21, 0x{f32bits(LOG2E):08x}")
    A(f"v_mov_b32 v{tmp}, s26")
    A(f"v_lshlrev_b32 v10, 16, v10")
    A(f"v_mul_f32 v{tmp}, s21, v{tmp}")
    A(f"v_mul_f32 v10, s21, v10")
    A(f"v_exp_f32 v{tmp}, v{tmp}")
    A(f"v_exp_f32 v10, v10")
    A(f"v_lshlrev_b32 v11, 16, v11")
    A(f"v_cvt_pk_bf16_f32 v{tmp}, v{tmp}, v10")
    A(f"v_lshlrev_b32 v12, 16, v12")
    A(f"v_and_b32 v10, 0xffff0000, v{tmp}")
    A(f"v_lshlrev_b32 v{tmp}, 16, v{tmp}")
    A(f"v_lshlrev_b32 v13, 16, v13")
    A(f"v_mul_f32 v10, v10, v{tmp}")
    A(f"v_mul_f32 v11, v11, v{tmp}")
    A(f"v_mul_f32 v{vt2}, 0x{f32bits(-LOG2E):08x}, v10")
    A(f"v_mul_f32 v{vw}, 0x{f32bits(INV2PI):08x}, v11")
    A(f"v_add_f32 v{tmp}, v{tmp}, v{tmp}")
    A(f"v_mul_f32 v{vY0}, v12, v{tmp}")
    A(f"v_mul_f32_e64 v{vY0+1}, -v13, v{tmp}")
    A("s_cmp_eq_u32 s15, 0")
    A("s_cbranch_scc0 KG_NOWO2")
    A("v_lshlrev_b32 v21, 5, v0")
    A(f"v_add_u32 v21, {L_WOT}, v21")
    A("ds_write_b128 v21, v[104:107]")
    A("ds_write_b128 v21, v[108:111] offset:16")
    A("v_and_b32 v22, 15, v0")
    A("v_lshrrev_b32 v23, 4, v0")
    A("v_lshrrev_b32 v24, 2, v22")
    A("v_lshl_add_u32 v24, v23, 3, v24")
    A("v_lshlrev_b32 v24, 5, v24")
    A("v_and_b32 v22, 3, v22")
    A("v_lshl_add_u32 v24, v22, 3, v24")
    A(f"v_add_u32 v24, {L_WOT}, v24")
    A("s_waitcnt lgkmcnt(0)")
    for s_ in range(2):
        for hf in range(2):
            A(f"ds_read_b64_tr_b16 {v(104+4*s_+2*hf,2)}, v24 offset:{(32*s_+4*hf)*32}")
    A("s_lshr_b32 s20, s2, 3"); A("s_lshl_b32 s20, s20, 14")
    A("s_and_b32 s21, s2, 7"); A("s_lshl_b32 s21, s21, 11")
    A("s_add_u32 s20, s20, s21")
    A(f"s_add_u32 s20, s20, {WS_WOF}")
    A("s_waitcnt lgkmcnt(0)")
    A(f"buffer_store_dwordx4 v[104:107], v{vL16}, s[{sWS}:{sWS+3}], s20 offen sc1")
    A(f"buffer_store_dwordx4 v[108:111], v{vL16}, s[{sWS}:{sWS+3}], s20 offen offset:1024 sc1")
    A.label("KG_NOWO2")
    XE, XO, S, T, TMP = 40, 42, 44, 46, 48
    anchor(A, XO, 8, vt2, vw, TMP)
    A(f"v_mov_b32 v{XE}, 1.0"); A(f"v_mov_b32 v{XE+1}, 0")
    cmul(A, S, XO, XO, T)
    PK = 50
    for b in range(0, 32, 2):
        A(f"v_cvt_pk_bf16_f32 v{PK}, v{XE}, v{XE+1}")
        A(f"v_cvt_pk_bf16_f32 v{PK+1}, v{XO}, v{XO+1}")
        if b < 30:
            cmul(A, XE, XE, S, T)
            cmul(A, XO, XO, S, T+6)
        A(f"ds_write_b32 v8, v{PK} offset:{b*528}")
        A(f"ds_write_b32 v8, v{PK+1} offset:{(b+1)*528}")
        PK = 54 if PK == 50 else 50
    A("s_cmp_eq_u32 s15, 0")
    A("s_cbranch_scc0 KG_NOWO3")
    A("s_waitcnt vmcnt(0)")
    A("s_lshr_b32 s20, s2, 3"); A("s_lshl_b32 s20, s20, 7")
    A("s_and_b32 s21, s2, 7"); A("s_lshl_b32 s21, s21, 2")
    A("s_add_u32 s20, s20, s21")
    A(f"s_add_u32 s20, s20, {WS_F3}")
    flag_store(A, 20, 22, 23)
    A.label("KG_NOWO3")
    stamp(A, 21)
    A("s_barrier")
    F1, F256, F2, F4, Y, Z, T, TMP = 40, 42, 44, 46, 48, 56, 58, 60
    pk = [62, 63, 64, 65]; n = [0]
    def put(reg, row):
        p = pk[n[0] % 4]; n[0] += 1
        A(f"v_cvt_pk_bf16_f32 v{p}, v{reg}, v{reg+1}")
        A(f"ds_write_b32 v15, v{p} offset:{row*528}")
    anchor(A, F1, 1, vt2, vw, TMP, conj=True)
    anchor(A, F256, 256, vt2, vw, TMP, conj=True)
    cmul(A, F2, F1, F1, T)
    cmul(A, Z, vY0, F256, 66)
    cmul(A, F4, F2, F2, T)
    put(vY0, 0)
    cmul(A, Y, vY0, F1, T); put(Y, 1)
    put(Z, 8)
    for r in range(2, 8):
        cmul(A, Y, Y, F1, T); put(Y, r)
    A("s_barrier")
    cmul(A, Y, Z, F2, T); put(Y, 9)
    cmul(A, Y, Y, F2, T); put(Y, 10)
    cmul(A, Y, Y, F2, T); put(Y, 11)
    cmul(A, Z, Z, F256, T); put(Z, 12)
    cmul(A, Y, Z, F4, T); put(Y, 13)
    cmul(A, Z, Z, F256, T); put(Z, 14)
    cmul(A, Y, Z, F4, T); put(Y, 15)
    for r in range(16, 21):
        cmul(A, Z, Z, F256, T); put(Z, r)
    A("s_waitcnt lgkmcnt(0)")
    stamp(A, 22)
    A("s_barrier")
    A("v_and_b32 v9, 15, v0")
    A("v_lshrrev_b32 v10, 4, v0")
    A("v_mul_u32_u24 v11, 528, v9")
    A("v_lshl_add_u32 v11, v10, 4, v11")
    A(f"s_mul_i32 s20, s16, {L_TCH}")
    A(f"s_add_u32 s20, s20, {L_TA}")
    A(f"s_mul_i32 s21, s18, {16*528}")
    A("s_add_u32 s21, s21, s20")
    A("v_add_u32 v12, s21, v11")
    A(f"s_add_u32 s20, s20, {L_TBO}")
    A("v_add_u32 v13, s20, v11")
    q = DSQ(A)
    for s_ in range(8):
        A(f"ds_read_b128 {v(16+4*s_,4)}, v12 offset:{s_*64}"); q.issue(("a", s_))
    for ct in range(2):
        for s_ in range(8):
            if ct == 1 and s_ == 0:
                pass
            A(f"ds_read_b128 {v(48+4*s_,4)}, v13 offset:{ct*16*528 + s_*64}"); q.issue(("b", ct, s_))
            if len(q.q) >= 15: q.wait(q.q[0])
        for s_ in range(8):
            q.wait(("b", ct, s_))
            A(f"v_mfma_f32_16x16x32_bf16 {v(80+4*ct,4)}, {v(16+4*s_,4)}, {v(48+4*s_,4)}, {'0' if s_==0 else v(80+4*ct,4)}")
    A("s_lshl_b32 s20, s16, 11")
    A("s_lshl_b32 s21, s18, 10")
    A("s_add_u32 s20, s20, s21")
    A(f"s_add_u32 s20, s20, {L_T}")
    A("v_lshlrev_b32 v14, 8, v10")
    A("v_lshl_add_u32 v14, v9, 1, v14")
    A("v_add_u32 v14, s20, v14")
    A("s_cmp_eq_u32 s18, 0")
    A("s_cselect_b32 s27, s27, 0")
    A("v_cmp_eq_u32 vcc, 0, v0")
    A("v_mov_b32 v15, s27")
    A("s_nop 3")
    A("v_cndmask_b32 v15, 0, v15, vcc")
    A("v_add_f32 v80, v80, v15")
    for ct in range(2):
        b = 80 + 4*ct
        A(f"v_cvt_pk_bf16_f32 v{88+2*ct}, v{b}, v{b+1}")
        A(f"v_cvt_pk_bf16_f32 v{89+2*ct}, v{b+2}, v{b+3}")
        A(f"ds_write_b16 v14, v{88+2*ct} offset:{32*ct}")
        A(f"ds_write_b16_d16_hi v14, v{88+2*ct} offset:{32*ct+64}")
        A(f"ds_write_b16 v14, v{89+2*ct} offset:{32*ct+128}")
        A(f"ds_write_b16_d16_hi v14, v{89+2*ct} offset:{32*ct+192}")
    A("s_waitcnt lgkmcnt(0)")
    stamp(A, 23)
    A("s_barrier")
    for e in range(8): A(f"v_add_u32 v{96+e}, {L_T}, v{96+e}")
    for c in range(2):
        for e in range(8):
            op = "ds_read_u16_d16_hi" if e % 2 else "ds_read_u16"
            A(f"{op} v{(32 if e % 2 else 16)+4*c+e//2}, v{96+e} offset:{c*2048}")
    A("s_lshl_b32 s20, s2, 13")
    A("s_lshl_b32 s21, s15, 10")
    A("s_add_u32 s20, s20, s21")
    A(f"s_add_u32 s20, s20, {WS_KC}")
    A("s_add_u32 s21, s20, 4096")
    A("s_waitcnt lgkmcnt(8)")
    for j in range(4): A(f"v_or_b32 v{16+j}, v{16+j}, v{32+j}")
    A(f"buffer_store_dwordx4 v[16:19], v{vL16}, s[{sWS}:{sWS+3}], s20 offen")
    A("s_waitcnt lgkmcnt(0)")
    for j in range(4): A(f"v_or_b32 v{20+j}, v{20+j}, v{36+j}")
    A(f"buffer_store_dwordx4 v[20:23], v{vL16}, s[{sWS}:{sWS+3}], s21 offen")
    stamp(A, 24)
    for i in range(4, 8): A("s_barrier")

vKA, vVA, vQ, vKF, vVF, vS, vP, vO, vM, vT = 2, 3, 4, 8, 16, 32, 64, 72, 88, 89
vLD = 92
NT = 32
SCHED = "e0 e1 PV1 RV e2 e3 c0 e4 e5 c1 QK RK e6 e7 c2 e8 e9 c3 e10 e11 PV0 c4 e12 e13 c5 e14 e15 c6 c7"
PRIO = {0: 3, 8: 2, 16: 1, 24: 0}
L_RAW = 131072
L_SCR = 139776

def attention(A):
    A("s_and_b32 s12, s2, 7")
    A("s_lshl_b32 s12, s12, 2")
    A("s_lshr_b32 s13, s2, 3")
    A("s_and_b32 s17, s13, 3")
    A("s_add_u32 s12, s12, s17")
    A("s_lshr_b32 s13, s2, 5")
    A("s_mov_b32 s20, 0x0000ffff")
    A("s_mov_b32 s21, 0x0000ffff")
    A("s_and_b32 s15, s3, 7")
    A("s_lshr_b32 s16, s3, 3")
    A("s_lshl_b32 s17, s16, 15")
    A(f"v_add_u32 v{vKA}, s17, v{vL16}")
    A("v_lshrrev_b32 v8, 5, v0")
    A("v_lshlrev_b32 v8, 8, v8")
    A("v_and_b32 v9, 15, v0")
    A("v_lshlrev_b32 v9, 4, v9")
    A("s_add_u32 s17, s17, 65536")
    A(f"v_add3_u32 v{vVA}, v8, v9, s17")
    A("v_and_b32 v8, 31, v0")
    A("v_cmp_eq_u32 vcc, 16, v8")
    A("v_mov_b32 v9, 0x3f803f80")
    A("v_lshlrev_b32 v10, 2, v0")
    A("v_cndmask_b32 v9, 0, v9, vcc")
    for i in range(16): A(f"v_mov_b32 v{vVF+i}, v9")
    A(f"v_mov_b32 v{vM}, 0")
    A("s_lshl_b32 s17, s12, 16")
    A("s_lshl_b32 s18, s13, 3")
    A("s_add_u32 s18, s18, s15")
    A("s_lshl_b32 s19, s18, 7")
    A("s_lshl_b32 s22, s12, 2")
    A("s_add_u32 s19, s19, s22")
    A(f"s_add_u32 s19, s19, {WS_F2}")
    A("s_lshl_b32 s18, s18, 10")
    A("s_add_u32 s18, s18, s17")
    A("s_lshr_b32 s22, s3, 2")
    A("s_and_b32 s23, s3, 3")
    A("s_lshl_b32 s23, s23, 10")
    A("s_lshl_b32 s24, s22, 15")
    A("s_add_u32 s24, s24, s23")
    A(f"v_add_u32 v124, s24, v{vL16}")
    A("s_and_b32 s25, s22, 1")
    A("s_lshl_b32 s25, s25, 15")
    A("s_lshr_b32 s26, s22, 1")
    A("s_lshl_b32 s26, s26, 21")
    A("s_add_u32 s25, s25, s26")
    A("s_add_u32 s25, s25, s23")
    A("s_add_u32 s25, s25, s17")
    A(f"s_add_u32 s25, s25, {WS_K}")
    A("s_cmp_eq_u32 s3, 4")
    A("s_cbranch_scc0 AT_NOPOLL")
    A("s_lshl_b32 s27, s12, 7")
    A(f"s_add_u32 s27, s27, {WS_F1}")
    poll(A, "AT_POLL", 10, 27, "-1", 12)
    A.label("AT_NOPOLL")
    A("s_barrier")
    stamp(A, 3)
    A(f"buffer_load_dwordx4 {v(vQ,4)}, v{vL16}, s[{sWS}:{sWS+3}], s18 offen sc1")
    for r in range(8):
        A(f"s_add_u32 s26, s13, {r}")
        A("s_and_b32 s26, s26, 7")
        A("s_lshl_b32 s26, s26, 12")
        A("s_add_u32 s26, s26, s25")
        A(f"buffer_load_dwordx4 {v(vLD+4*r,4)}, v{vL16}, s[{sWS}:{sWS+3}], s26 offen sc1")
    def land(rounds, vm):
        A(f"s_waitcnt vmcnt({vm})")
        for r in rounds:
            A(f"ds_write_b128 v124, {v(vLD+4*r,4)} offset:{r*4096}")
        A("s_waitcnt lgkmcnt(0)")
        A("s_barrier")
    land([0], 7)
    stamp(A, 4)
    q = DSQ(A)
    KF = lambda t: vKF + 4 * (t % 2)
    VF = lambda t, j: vVF + 8 * (t % 2) + 4 * j
    S = lambda t: vS + 16 * (t % 2)
    def rdK(t):
        A(f"ds_read_b128 {v(KF(t),4)}, v{vKA} offset:{t*1024}"); q.issue(("K", t))
    def rdV(t):
        A("s_mov_b64 exec, s[20:21]")
        A(f"ds_read_b128 {v(VF(t,0),4)}, v{vVA} offset:{t*1024}"); q.issue(("V0", t))
        A(f"ds_read_b128 {v(VF(t,1),4)}, v{vVA} offset:{t*1024+512}"); q.issue(("V1", t))
        A("s_mov_b64 exec, -1")
    def qk(t):
        q.wait(("K", t))
        A(f"v_mfma_f32_32x32x16_bf16 {v(S(t),16)}, {v(KF(t),4)}, {v(vQ,4)}, 0")
    def e(t, i): A(f"v_exp_f32 v{S(t)+i}, v{S(t)+i}")
    def c(t, k): A(f"v_cvt_pk_bf16_f32 v{vP+k}, v{S(t)+2*k}, v{S(t)+2*k+1}")
    def pv(t, j):
        cc = "0" if (t == 0 and j == 0) else v(vO, 16)
        A(f"v_mfma_f32_32x32x16_bf16 {v(vO,16)}, {v(VF(t,j),4)}, {v(vP+4*j,4)}, {cc}")
    rdK(0); rdK(1); rdV(0)
    qk(0)
    A("s_nop 7"); A("s_nop 3")
    for t in range(NT):
        A.comment(f"--- tile {t}")
        if t in PRIO: A(f"s_setprio {PRIO[t]}")
        for tok in SCHED.split():
            if tok[0] == 'e': e(t, int(tok[1:]))
            elif tok[0] == 'c': c(t, int(tok[1:]))
            elif tok == 'PV1':
                if t > 0: pv(t - 1, 1)
            elif tok == 'QK':
                if t + 1 < NT: qk(t + 1)
            elif tok == 'PV0':
                q.wait(("V1", t)); pv(t, 0)
            elif tok == 'RK':
                if t == 2:
                    q.q = []; land([1, 2], 5)
                if t == 10:
                    q.q = []; land([3, 4, 5, 6, 7], 0)
                if t == 12:
                    A("s_and_b32 s26, s2, 7"); A("s_lshl_b32 s26, s26, 5"); A("s_lshr_b32 s27, s2, 3"); A("s_add_u32 s26, s26, s27")
                    A("s_lshl_b32 s26, s26, 2")
                    A("s_lshl_b32 s27, s3, 17")
                    A("s_add_u32 s26, s26, s27")
                    srd(A, 4, SP['u'], 2048*512*2)
                    A("v_lshlrev_b32 v90, 10, v0")
                    A("s_lshl_b32 s27, s3, 9")
                    A(f"s_add_u32 m0, s27, {L_RAW + 31*4}")
                    A("s_nop 0")
                    A("buffer_load_dword v90, s[4:7], s26 offen lds")
                    A(f"s_add_u32 m0, s27, {L_RAW + 31*4 + 256}")
                    A("s_add_u32 s26, s26, 65536")
                    A("buffer_load_dword v90, s[4:7], s26 offen lds")
                if t + 2 < NT: rdK(t + 2)
            elif tok == 'RV':
                if t + 1 < NT: rdV(t + 1)
            else: raise ValueError(tok)
    A("s_nop 1")
    pv(NT - 1, 1)
    A("s_nop 15")
    stamp(A, 5)
    A(f"v_mov_b32 v{vT}, v{vO+8}")
    A("s_nop 1")
    A(f"v_permlane32_swap_b32 v{vT}, v{vO+8}")
    A("s_nop 1")
    A(f"v_mov_b32 v{vO+8}, v{vT}")
    A("s_mov_b32 s28, 0x1f800000")
    A("s_mov_b32 s29, 0x5f800000")
    A(f"v_cmp_le_f32 vcc, s28, v{vO+8}")
    A(f"v_cmp_ge_f32 s[30:31], s29, v{vO+8}")
    A("s_nop 1")
    A("s_and_b64 vcc, vcc, s[30:31]")
    A("s_cmp_eq_u64 vcc, -1")
    A("s_cbranch_scc0 AT_FALLBACK")
    A.label("AT_COMBINE")
    A("s_mul_i32 s17, s15, 2560")
    A(f"s_add_u32 s17, s17, {L_SCR}")
    A(f"v_add_u32 v{vT}, s17, v{vL16}")
    A("v_lshlrev_b32 v12, 3, v0")
    A(f"v_add_u32 v12, s17, v12")
    A("s_cmp_eq_u32 s16, 0")
    A("s_cbranch_scc1 AT_LOW")
    A(f"ds_write_b128 v{vT}, {v(vO,4)}")
    A(f"ds_write_b128 v{vT}, {v(vO+4,4)} offset:1024")
    A(f"v_mov_b32 v{vO+9}, v{vM}")
    A(f"ds_write_b64 v12, {v(vO+8,2)} offset:2048")
    A("s_waitcnt vmcnt(0) lgkmcnt(0)")
    A("s_barrier")
    A("s_branch AT_DONE")
    A.label("AT_LOW")
    A("s_waitcnt vmcnt(0)")
    A("s_barrier")
    B = vS
    A(f"ds_read_b128 {v(B,4)}, v{vT}")
    A(f"ds_read_b128 {v(B+4,4)}, v{vT} offset:1024")
    A(f"ds_read_b64 {v(B+8,2)}, v12 offset:2048")
    A("s_waitcnt lgkmcnt(0)")
    t0, t1, t2 = vT + 1, vT + 2, vT + 3
    A(f"v_max_f32 v{t0}, v{vM}, v{B+9}")
    A(f"v_sub_f32 v{t1}, v{vM}, v{t0}")
    A(f"v_sub_f32 v{t2}, v{B+9}, v{t0}")
    A(f"v_exp_f32 v{t1}, v{t1}")
    A(f"v_exp_f32 v{t2}, v{t2}")
    A("s_nop 0")
    for i in range(9):
        A(f"v_mul_f32 v{vO+i}, v{vO+i}, v{t1}")
    for i in range(9):
        A(f"v_fmac_f32 v{vO+i}, v{B+i}, v{t2}")
    A(f"v_rcp_f32 v{t0}, v{vO+8}")
    A("s_nop 0")
    for i in range(8):
        A(f"v_mul_f32 v{vO+i}, v{vO+i}, v{t0}")
    for k in range(4):
        A(f"v_cvt_pk_bf16_f32 v{vP+k}, v{vO+2*k}, v{vO+2*k+1}")
    A("s_nop 1")
    A(f"v_permlane32_swap_b32 v{vP}, v{vP+2}")
    A(f"v_permlane32_swap_b32 v{vP+1}, v{vP+3}")
    A(f"s_add_u32 s18, s18, {WS_O}")
    A("s_nop 1")
    A(f"buffer_store_dwordx4 {v(vP,4)}, v{vL16}, s[{sWS}:{sWS+3}], s18 offen sc1")
    A("s_waitcnt vmcnt(0)")
    flag_store(A, 19, 12, 13)
    A.label("AT_DONE")
    stamp(A, 6)

def attention_fallback(A):
    A.label("AT_FALLBACK")
    A(f"v_mov_b32 v{vM}, 0xff800000")
    A(f"v_mov_b32 v{vT}, v{vKA}")
    A("s_mov_b32 s17, 0")
    A.label("AT_FB1")
    A(f"ds_read_b128 {v(vKF,4)}, v{vT}")
    A(f"v_add_u32 v{vT}, 1024, v{vT}")
    A("s_waitcnt lgkmcnt(0)")
    A(f"v_mfma_f32_32x32x16_bf16 {v(vS,16)}, {v(vKF,4)}, {v(vQ,4)}, 0")
    A("s_nop 15")
    for k in range(8):
        A(f"v_max3_f32 v{vM}, v{vS+2*k}, v{vS+2*k+1}, v{vM}")
    A("s_add_u32 s17, s17, 1")
    A("s_cmp_lt_u32 s17, 32")
    A("s_cbranch_scc1 AT_FB1")
    A(f"v_mov_b32 v{vT}, v{vM}")
    A(f"v_mov_b32 v{vT+1}, v{vM}")
    A("s_nop 1")
    A(f"v_permlane32_swap_b32 v{vT}, v{vT+1}")
    A("s_nop 1")
    A(f"v_max_f32 v{vM}, v{vT}, v{vT+1}")
    for i in range(16): A(f"v_mov_b32 v{vO+i}, 0")
    A(f"v_mov_b32 v{vT}, v{vKA}")
    A(f"v_mov_b32 v{vT+1}, v{vVA}")
    A("s_mov_b32 s17, 0")
    A.label("AT_FB2")
    A(f"ds_read_b128 {v(vKF,4)}, v{vT}")
    A("s_mov_b64 exec, s[20:21]")
    A(f"ds_read_b128 {v(vVF,4)}, v{vT+1}")
    A(f"ds_read_b128 {v(vVF+4,4)}, v{vT+1} offset:512")
    A("s_mov_b64 exec, -1")
    A(f"v_add_u32 v{vT}, 1024, v{vT}")
    A(f"v_add_u32 v{vT+1}, 1024, v{vT+1}")
    A("s_waitcnt lgkmcnt(0)")
    A(f"v_mfma_f32_32x32x16_bf16 {v(vS,16)}, {v(vKF,4)}, {v(vQ,4)}, 0")
    A("s_nop 15")
    for i in range(16): A(f"v_sub_f32 v{vS+i}, v{vS+i}, v{vM}")
    for i in range(16): A(f"v_exp_f32 v{vS+i}, v{vS+i}")
    A("s_nop 0")
    for k in range(8): A(f"v_cvt_pk_bf16_f32 v{vP+k}, v{vS+2*k}, v{vS+2*k+1}")
    A("s_nop 1")
    A(f"v_mfma_f32_32x32x16_bf16 {v(vO,16)}, {v(vVF,4)}, {v(vP,4)}, {v(vO,16)}")
    A(f"v_mfma_f32_32x32x16_bf16 {v(vO,16)}, {v(vVF+4,4)}, {v(vP+4,4)}, {v(vO,16)}")
    A("s_add_u32 s17, s17, 1")
    A("s_cmp_lt_u32 s17, 32")
    A("s_cbranch_scc1 AT_FB2")
    A("s_nop 15")
    A(f"v_mov_b32 v{vT}, v{vO+8}")
    A("s_nop 1")
    A(f"v_permlane32_swap_b32 v{vT}, v{vO+8}")
    A("s_nop 1")
    A(f"v_mov_b32 v{vO+8}, v{vT}")
    A("s_branch AT_COMBINE")

C_KREV = 0; KREV_SZ = 7680
C_UC = 15360; UC_RHO = 4160; UC_CH = 16640
C_PART = 48640
C_OT = 105984

def conv_part(A, p, vUA, vKB0, vKB1, ACC0, ACC1):
    ks = list({0: range(0, 24), 1: range(24, 48), 2: range(48, 80), 3: range(80, 128)}[p])
    q = DSQ(A)
    NB = 4
    FA, FB0, FB1 = 8, 24, 40
    def rd(i):
        k = ks[i]; b = i % NB
        A(f"ds_read_b64 {v(FA+4*b,2)}, v{vUA} offset:{32*k}"); q.issue(("a0", i))
        A(f"ds_read_b64 {v(FA+4*b+2,2)}, v{vUA} offset:{32*k+8}"); q.issue(("a1", i))
        off = (k//2)*80 + (k%2)*32
        A(f"ds_read_b128 {v(FB1+4*b,4)}, v{vKB1} offset:{off}"); q.issue(("b1", i))
        if k < 64:
            A(f"ds_read_b128 {v(FB0+4*b,4)}, v{vKB0} offset:{off}"); q.issue(("b0", i))
    n = len(ks)
    for i in range(min(NB-1, n)): rd(i)
    first0 = first1 = True
    for i in range(n):
        if i + NB - 1 < n: rd(i + NB - 1)
        k = ks[i]; b = i % NB
        q.wait(("b1", i))
        A(f"v_mfma_f32_32x32x16_bf16 {v(ACC1,16)}, {v(FA+4*b,4)}, {v(FB1+4*b,4)}, {'0' if first1 else v(ACC1,16)}"); first1 = False
        if k < 64:
            q.wait(("b0", i))
            A(f"v_mfma_f32_32x32x16_bf16 {v(ACC0,16)}, {v(FA+4*b,4)}, {v(FB0+4*b,4)}, {'0' if first0 else v(ACC0,16)}"); first0 = False

def tail(A):
    A("s_and_b32 s14, s2, 7"); A("s_lshl_b32 s14, s14, 5"); A("s_lshr_b32 s16, s2, 3"); A("s_add_u32 s14, s14, s16")
    A("s_lshl_b32 s14, s14, 1")
    A("s_cmp_ge_u32 s3, 8")
    A("s_cbranch_scc1 TL_HI")
    A("s_lshl_b32 s20, s2, 13")
    A("s_lshl_b32 s21, s3, 10")
    A("s_add_u32 s20, s20, s21")
    A(f"s_add_u32 s20, s20, {WS_KC}")
    A(f"buffer_load_dwordx4 v[16:19], v{vL16}, s[{sWS}:{sWS+3}], s20 offen")
    A("s_and_b32 s21, s3, 3")
    A("s_lshl_b32 s21, s21, 6")
    A("v_add_u32 v9, s21, v0")
    A("v_lshrrev_b32 v10, 2, v9")
    A("v_mul_u32_u24 v10, 80, v10")
    A("v_and_b32 v9, 3, v9")
    A("v_lshl_add_u32 v10, v9, 4, v10")
    A("s_lshr_b32 s22, s3, 2")
    A(f"s_mul_i32 s23, s22, {KREV_SZ}")
    A("v_add_u32 v10, s23, v10")
    A("v_mov_b32 v20, 0"); A("v_mov_b32 v21, 0"); A("v_mov_b32 v22, 0"); A("v_mov_b32 v23, 0")
    A("s_lshl_b32 s21, s21, 4")
    A(f"s_add_u32 s21, s21, {64*80}")
    A(f"v_add_u32 v11, s21, v{vL16}")
    A(f"v_cmp_gt_u32 vcc, {KREV_SZ}, v11")
    A("v_add_u32 v11, s23, v11")
    A("s_and_saveexec_b64 s[24:25], vcc")
    A("ds_write_b128 v11, v[20:23]")
    A("s_mov_b64 exec, s[24:25]")
    A("s_waitcnt vmcnt(0)")
    A("ds_write_b128 v10, v[16:19]")
    A("v_and_b32 v9, 31, v0")
    A("v_lshrrev_b32 v10, 5, v0")
    A("v_and_b32 v11, 3, v9")
    A(f"v_mul_u32_u24 v11, {UC_RHO}, v11")
    A("v_lshrrev_b32 v12, 2, v9")
    A("v_lshl_add_u32 v11, v12, 3, v11")
    A("v_lshl_add_u32 v11, v10, 4, v11")
    A(f"s_mul_i32 s24, s22, {UC_CH}")
    A(f"s_add_u32 s24, s24, {C_UC}")
    A("v_add_u32 v4, s24, v11")
    A("v_sub_u32 v11, 63, v9")
    A("v_mul_u32_u24 v11, 80, v11")
    A("v_lshl_add_u32 v11, v10, 4, v11")
    A("v_add_u32 v5, s23, v11")
    A("v_subrev_u32 v6, 2560, v5")
    A("s_and_b32 s24, s3, 3")
    A(f"s_mul_i32 s25, s22, 28672")
    A("s_lshl_b32 s26, s24, 12")
    A("s_add_u32 s25, s25, s26")
    A(f"s_add_u32 s25, s25, {C_PART}")
    A(f"v_add_u32 v7, s25, v{vL16}")
    A("s_waitcnt lgkmcnt(0)")
    stamp(A, 30)
    A("s_barrier")
    stamp(A, 31)
    ACC0, ACC1 = 64, 80
    for p in range(4):
        if p < 3:
            A(f"s_cmp_eq_u32 s24, {p}")
            A(f"s_cbranch_scc0 TL_CV{p+1}")
        conv_part(A, p, 4, 5, 6, ACC0, ACC1)
        A("s_nop 15")
        for qd in range(4):
            A(f"ds_write_b128 v7, {v(ACC1+4*qd,4)} offset:{qd*1024}")
        if p < 3:
            for qd in range(4):
                A(f"ds_write_b128 v7, {v(ACC0+4*qd,4)} offset:{16384 + qd*1024}")
            A("s_branch TL_CVE")
            A.label(f"TL_CV{p+1}")
    A.label("TL_CVE")
    A("s_waitcnt lgkmcnt(0)")
    stamp(A, 32)
    A("s_barrier")
    stamp(A, 33)
    A("s_lshr_b32 s22, s3, 2")
    A("s_and_b32 s23, s3, 3")
    A("s_lshl_b32 s24, s23, 10")
    A(f"s_add_u32 s24, s24, {C_PART}")
    A(f"v_add_u32 v4, s24, v{vL16}")
    A("s_cmp_eq_u32 s22, 0")
    A("s_cbranch_scc1 TL_F0")
    for c in range(2):
        for p in range(4):
            A(f"ds_read_b128 {v(16+16*c+4*p,4)}, v4 offset:{c*28672 + p*4096}")
    A("s_waitcnt lgkmcnt(0)")
    for c in range(2):
        for r in range(4):
            b = 16 + 16*c + r
            A(f"v_add_f32 v{b}, v{b}, v{b+4}"); A(f"v_add_f32 v{b+8}, v{b+8}, v{b+12}")
        for r in range(4):
            b = 16 + 16*c + r
            A(f"v_add_f32 v{b}, v{b}, v{b+8}")
    A("s_branch TL_F1")
    A.label("TL_F0")
    for c in range(2):
        for p in range(3):
            A(f"ds_read_b128 {v(16+16*c+4*p,4)}, v4 offset:{c*28672 + 16384 + p*4096}")
    A("s_waitcnt lgkmcnt(0)")
    for c in range(2):
        for r in range(4):
            b = 16 + 16*c + r
            A(f"v_add_f32 v{b}, v{b}, v{b+4}")
        for r in range(4):
            b = 16 + 16*c + r
            A(f"v_add_f32 v{b}, v{b}, v{b+8}")
    A.label("TL_F1")
    for r in range(4):
        A(f"v_cvt_pk_bf16_f32 v{48+r}, v{16+r}, v{32+r}")
    A("v_and_b32 v9, 31, v0")
    A("v_lshrrev_b32 v10, 5, v0")
    A("v_lshlrev_b32 v9, 16, v9")
    A("v_lshl_add_u32 v9, v10, 13, v9")
    A("s_lshl_b32 s24, s22, 21")
    A("s_lshl_b32 s25, s23, 14")
    A("s_add_u32 s24, s24, s25")
    A("s_lshl_b32 s25, s14, 1")
    A("s_add_u32 s24, s24, s25")
    A("s_add_u32 s25, s24, 4096")
    srd(A, 4, SP['out'], 2048*1024*2)
    A("buffer_store_dword v48, v9, s[4:7], s24 offen")
    A("buffer_store_dword v49, v9, s[4:7], s24 offen offset:2048")
    A("buffer_store_dword v50, v9, s[4:7], s25 offen")
    A("buffer_store_dword v51, v9, s[4:7], s25 offen offset:2048")
    stamp(A, 34)
    A("s_branch TL_END")

    A.label("TL_HI")
    A("s_and_b32 s12, s2, 7"); A("s_lshl_b32 s12, s12, 3"); A("s_lshr_b32 s13, s2, 5"); A("s_add_u32 s12, s12, s13")
    A("s_lshr_b32 s13, s2, 3"); A("s_and_b32 s13, s13, 3")
    A("s_sub_u32 s15, s3, 8")
    A("s_lshl_b32 s16, s13, 3"); A("s_add_u32 s16, s16, s15")
    A("v_lshlrev_b32 v10, 2, v0")
    A("s_lshl_b32 s17, s16, 7")
    A(f"s_add_u32 s17, s17, {WS_F3}")
    poll(A, "TL_P3", 10, 17, "0xff", 12)
    stamp(A, 40)
    A("s_lshl_b32 s17, s16, 14")
    A(f"s_add_u32 s17, s17, {WS_WOF}")
    for s_ in range(16):
        A(f"buffer_load_dwordx4 {v(60+4*s_,4)}, v{vL16}, s[{sWS}:{sWS+3}], s17 offen sc1")
        if s_ < 15: A("s_add_u32 s17, s17, 1024")
    A("s_cmp_ge_u32 s3, 13")
    A("s_cbranch_scc1 TL_NOCOPY")
    A("s_lshl_b32 s18, s15, 6")
    A("v_add_u32 v9, s18, v0")
    A("v_cmp_gt_u32 vcc, 260, v9")
    A("s_and_saveexec_b64 s[24:25], vcc")
    A("v_lshlrev_b32 v13, 5, v9")
    A(f"v_add_u32 v13, {L_RAW}, v13")
    A("ds_read_b128 v[16:19], v13")
    A("ds_read_b128 v[20:23], v13 offset:16")
    A("ds_read_b128 v[24:27], v13 offset:32")
    A("v_lshlrev_b32 v11, 4, v9")
    A(f"v_add_u32 v11, {C_UC}, v11")
    A("s_mov_b32 s26, 0x05040100")
    A("s_mov_b32 s27, 0x07060302")
    A("s_waitcnt lgkmcnt(0)")
    n = 0
    for c in range(2):
        for rho in range(4):
            t = 32 + 4 * (n % 4); n += 1
            for j in range(4):
                lo = 16 + rho + 2*j
                A(f"v_perm_b32 v{t+j}, v{lo+1}, v{lo}, s{26+c}")
            A(f"ds_write_b128 v11, {v(t,4)} offset:{c*UC_CH + rho*UC_RHO}")
    A("s_mov_b64 exec, s[24:25]")
    A.label("TL_NOCOPY")
    A("s_waitcnt lgkmcnt(0)")
    stamp(A, 41)
    A("s_barrier")
    stamp(A, 42)
    A("s_lshl_b32 s17, s12, 7")
    A(f"s_add_u32 s17, s17, {WS_F2}")
    poll(A, "TL_P2", 10, 17, "-1", 12)
    stamp(A, 43)
    A("s_lshl_b32 s17, s15, 18")
    A("s_lshl_b32 s18, s12, 10")
    A("s_add_u32 s17, s17, s18")
    A(f"s_add_u32 s17, s17, {WS_O}")
    for i in range(4):
        A(f"buffer_load_dwordx4 {v(16+4*i,4)}, v{vL16}, s[{sWS}:{sWS+3}], s17 offen sc1")
        if i < 3: A("s_add_u32 s17, s17, 65536")
    A("s_lshl_b32 s18, s15, 12")
    A(f"s_add_u32 s18, s18, {C_OT}")
    A(f"v_add_u32 v13, s18, v{vL16}")
    A("v_and_b32 v4, 15, v0")
    A("v_lshrrev_b32 v5, 4, v0")
    A("v_lshlrev_b32 v14, 9, v5")
    A("v_lshl_add_u32 v14, v4, 4, v14")
    A(f"v_add_u32 v14, {C_OT}, v14")
    A("s_lshl_b32 s18, s12, 16")
    A("s_lshl_b32 s19, s13, 8")
    A("s_add_u32 s18, s18, s19")
    A("s_lshl_b32 s19, s15, 5")
    A("s_add_u32 s18, s18, s19")
    A("s_add_u32 s18, s18, 1024")
    A("v_lshlrev_b32 v15, 11, v4")
    A("v_lshl_add_u32 v15, v5, 3, v15")
    A("s_waitcnt vmcnt(0)")
    for i in range(4):
        A(f"ds_write_b128 v13, {v(16+4*i,4)} offset:{i*1024}")
    A("s_waitcnt lgkmcnt(0)")
    stamp(A, 44)
    A("s_barrier")
    stamp(A, 45)
    q = DSQ(A)
    FO = 16
    def rd(s_):
        b = s_ % 3
        for th in range(2):
            A(f"ds_read_b128 {v(FO+12*th+4*b,4)}, v14 offset:{s_*2048 + th*256}"); q.issue(("o", s_, th))
    rd(0); rd(1)
    for s_ in range(16):
        if s_ + 2 < 16: rd(s_ + 2)
        b = s_ % 3
        for th in range(2):
            q.wait(("o", s_, th))
            cc = "0" if s_ == 0 else v(40+4*th, 4)
            A(f"v_mfma_f32_16x16x32_bf16 {v(40+4*th,4)}, {v(60+4*s_,4)}, {v(FO+12*th+4*b,4)}, {cc}")
    A("s_nop 7")
    stamp(A, 46)
    srd(A, 4, SP['out'], 2048*1024*2)
    for th in range(2):
        A(f"v_cvt_pk_bf16_f32 v{48+2*th}, v{40+4*th}, v{41+4*th}")
        A(f"v_cvt_pk_bf16_f32 v{49+2*th}, v{42+4*th}, v{43+4*th}")
    A(f"buffer_store_dwordx2 v[48:49], v15, s[4:7], s18 offen")
    A("s_add_u32 s18, s18, 32768")
    A(f"buffer_store_dwordx2 v[50:51], v15, s[4:7], s18 offen")
    A("s_cmp_eq_u32 s2, 0")
    A("s_cbranch_scc0 TL_END")
    A("s_cmp_eq_u32 s3, 8")
    A("s_cbranch_scc0 TL_END")
    A(f"s_mov_b32 s17, {WS_EP}")
    flag_store(A, 17, 12, 13)
    A.label("TL_END")

def gen():
    A = Asm()
    kernel_begin(A, NAME)
    if PROF:
        A("v_mov_b32 v125, 0")
        A("s_memrealtime s[38:39]")
    stamp(A, 0)
    A("s_cmp_ge_u32 s2, 256")
    A("s_cbranch_scc1 K_END")
    A("s_load_dwordx16 s[64:79], s[0:1], 0")
    A("s_load_dwordx8 s[80:87], s[0:1], 64")
    A("s_load_dwordx2 s[88:89], s[0:1], 96")
    A("v_lshrrev_b32 v8, 6, v0")
    A("v_and_b32 v0, 63, v0")
    A("v_readfirstlane_b32 s3, v8")
    A(f"v_lshlrev_b32 v{vL16}, 4, v0")
    p1_ids(A)
    A("v_mov_b32 v9, 0")
    A("s_waitcnt lgkmcnt(0)")
    if PROF: A("s_mov_b32 s91, s38")
    srd(A, sWS, SP['ws'], WS_TOTAL)
    A(f"s_mov_b32 s16, {WS_EP}")
    A(f"buffer_load_dword v{vE}, v9, s[{sWS}:{sWS+3}], s16 offen sc1")
    A("s_cmp_lt_u32 s3, 4")
    A("s_cbranch_scc1 R_COMPUTE")
    A("s_cmp_ge_u32 s3, 12")
    A("s_cbranch_scc1 R_KGEN")
    p1_loader(A)
    A("s_cmp_eq_u32 s3, 4")
    A("s_cbranch_scc0 R_JOIN")
    A("v_mov_b32 v4, 0")
    A("v_lshlrev_b32 v9, 2, v0")
    A("v_cmp_gt_u32 vcc, 31, v0")
    A("s_and_saveexec_b64 s[24:25], vcc")
    A(f"v_add_u32 v9, {L_RAW}, v9")
    A("ds_write_b32 v9, v4")
    A(f"ds_write_b32 v9, v4 offset:{2079*4}")
    A("s_mov_b64 exec, s[24:25]")
    A("s_branch R_JOIN")
    A.label("R_KGEN")
    kgen(A)
    A("s_branch R_JOIN")
    A.label("R_COMPUTE")
    p1_compute(A)
    A.label("R_JOIN")
    attention(A)
    tail(A)
    stamp(A, 50)
    A("s_waitcnt vmcnt(0)")
    stamp(A, 51)
    write_stamps(A)
    A.label("K_END")
    A("s_endpgm")
    attention_fallback(A)
    A(".p2align 6")
    A(".type GTAB,@object")
    A.label("GTAB")
    t = gather_table()
    for i in range(0, 2048, 16):
        A(".long " + ", ".join(str(int(x)) for x in t[i:i+16]))
    A(".size GTAB, 8192")
    hdr_src = open("concat_heads__ssm_conv_s4d__mha_block__prompt.s.ref").read().split("\n")
    hdr = [l for l in hdr_src if l.startswith(";") and "@launch" not in l and "Override launch" not in l and "grid=ceil" not in l]
    out = "\n".join(hdr) + "\n; @launch grid=(256,1,1) block=(1024,1,1) lds=163840\n"
    out += '.amdgcn_target "amdgcn-amd-amdhsa--gfx950"\n'
    out += A.text() + kernel_desc(NAME, 128, 100)
    return out

if __name__ == "__main__":
    open(sys.argv[1] if len(sys.argv) > 1 else "fused.s", "w").write(gen())
```

```python
import os, struct, sys
from asmlib import *
from ssm_common import gather_table

NAME = "concat_heads__ssm_conv_s4d__mha_block__prompt_kernel"
PROF = bool(os.environ.get("PROF"))

def f32bits(x): return struct.unpack("<I", struct.pack("<f", x))[0]
LOG2E = 1.4426950408889634
INV2PI = 0.15915494309189535
C_SCALE = 0.25 * LOG2E

WS_Q = 0x000000; WS_K = 0x200000; WS_V = 0x400000; WS_O = 0x600000
WS_UT = 0x800000
WS_WOF = 0xA00000
FS = 8
WS_F1 = 0xA80000
WS_F2 = 0xAC0000
WS_F3 = 0xB40000
WS_FU = 0xB50000
WS_EP = 0xB90000
WS_TOTAL = 0xBA0000
WS_PROF = 0x1000000
SP = dict(u=64, lar=66, aim=68, cre=70, cim=72, ldt=74, dsk=76, x=78, wqkv=80, wo=82, out=84, dbg=86, ws=88)
sWS = 44
WSRD = f"s[{sWS}:{sWS+3}]"
sT = 90
vL16 = 1
vE = 127

SLOT = 28672; NSLOT = 3; AHEAD = 2
L_TA = 86016; L_TBO = 11088; L_TCH = 27984
L_T = 141984
L_CNT = 147968
C_G = L_CNT; C_CV = L_CNT + 4; C_WO = L_CNT + 8; C_KR = L_CNT + 12
def C_RDY(c): return L_CNT + 16 + 4*c
def C_DONE(c): return L_CNT + 48 + 4*c
C_FU = L_CNT + 80; C_F1 = L_CNT + 84; C_F2 = L_CNT + 88; C_ISS = L_CNT + 92
L_KREV = 148480; KREV_SZ = 7680
L_UTL = L_KREV
L_WOT = 86016
L_UC = 57344; UC_RHO = 4160; UC_CH = 16640
L_PART = 90624
L_QS = 49152
L_SCR = 131072
L_OT = 0
L_PC = 32768

class DSQ:
    def __init__(self, A): self.A = A; self.q = []
    def issue(self, tag): self.q.append(tag)
    def wait(self, tag):
        if tag not in self.q: return
        i = len(self.q) - 1 - self.q[::-1].index(tag)
        n = len(self.q) - 1 - i
        assert n <= 15, n
        self.A(f"s_waitcnt lgkmcnt({n})")
        self.q = self.q[i+1:]
    def room(self):
        if len(self.q) >= 15: self.wait(self.q[0])
    def drain(self):
        self.A("s_waitcnt lgkmcnt(0)"); self.q = []

def stamp(A, k):
    if PROF:
        A("s_memtime s[48:49]")
        A("s_waitcnt lgkmcnt(0)")
        A(f"v_writelane_b32 v125, s48, {k}")

def write_stamps(A):
    if not PROF: return
    A("s_memrealtime s[40:41]")
    A("s_waitcnt lgkmcnt(0)")
    A(f"v_writelane_b32 v125, s40, 62")
    A(f"v_writelane_b32 v125, s91, 63")
    A(f"s_add_u32 s92, s{SP['ws']}, {WS_PROF}")
    A(f"s_addc_u32 s93, s{SP['ws']+1}, 0")
    A("s_mov_b32 s94, 0x200000")
    A("s_mov_b32 s95, 0x00020000")
    A("s_lshl_b32 s42, s2, 4"); A("s_add_u32 s42, s42, s3"); A("s_lshl_b32 s42, s42, 8")
    A("v_lshlrev_b32 v16, 2, v0")
    A("buffer_store_dword v125, v16, s[92:95], s42 offen")
    A("s_waitcnt vmcnt(0)")

def poll(A, label, vaddr, soff, mask_lo, vtmp, sleep=4):
    A(f"s_mov_b32 s30, {mask_lo}")
    A("s_mov_b32 s31, 0")
    A("s_mov_b64 exec, s[30:31]")
    A("s_mov_b32 s29, 0")
    A.label(label)
    A(f"buffer_load_dword v{vtmp}, v{vaddr}, {WSRD}, s{soff} offen sc1")
    A("s_add_u32 s29, s29, 1")
    A("s_waitcnt vmcnt(0)")
    A(f"v_cmp_ne_u32 vcc, s{sT}, v{vtmp}")
    A("s_cmp_gt_u32 s29, 0x40000")
    A(f"s_cbranch_scc1 {label}_x")
    A(f"s_cbranch_vccz {label}_x")
    A(f"s_sleep {sleep}")
    A(f"s_branch {label}")
    A.label(label + "_x")
    A("s_mov_b64 exec, -1")

def check_or_poll(A, label, vaddr, soff, mask_lo, vflag):
    A(f"s_mov_b32 s30, {mask_lo}")
    A("s_mov_b32 s31, 0")
    A(f"v_cmp_ne_u32 vcc, s{sT}, v{vflag}")
    A("s_nop 1")
    A("s_and_b64 vcc, vcc, s[30:31]")
    A(f"s_cbranch_vccz {label}_ok")
    poll(A, label, vaddr, soff, mask_lo, vflag)
    A.label(label + "_ok")

def flag_store(A, soff, vtmp, vzero):
    A(f"v_mov_b32 v{vtmp}, s{sT}")
    A(f"v_mov_b32 v{vzero}, 0")
    A("s_mov_b64 exec, 1")
    A(f"buffer_store_dword v{vtmp}, v{vzero}, {WSRD}, s{soff} offen sc1")
    A("s_mov_b64 exec, -1")

def get_tag(A):
    A(f"v_readfirstlane_b32 s{sT}, v{vE}")
    A("s_nop 3")
    A(f"s_mul_i32 s{sT}, s{sT}, 0x9e3779b1")
    A(f"s_add_u32 s{sT}, s{sT}, 0x7f4a7c15")

def gsync(A, cnt_addr, target, vt):
    L = A.newlabel("GS")
    A("s_waitcnt lgkmcnt(0)")
    A(f"v_mov_b32 v{vt}, {cnt_addr}")
    A(f"v_mov_b32 v{vt+1}, 1")
    A("s_mov_b64 exec, 1")
    A(f"ds_add_u32 v{vt}, v{vt+1}")
    A("s_mov_b64 exec, -1")
    A.label(L)
    A(f"ds_read_b32 v{vt+1}, v{vt}")
    A("s_waitcnt lgkmcnt(0)")
    A(f"v_readfirstlane_b32 s42, v{vt+1}")
    A("s_nop 0")
    A(f"s_cmp_ge_u32 s42, {target}")
    A(f"s_cbranch_scc1 {L}_x")
    A("s_sleep 1")
    A(f"s_branch {L}")
    A.label(L + "_x")

def lsig(A, addr, vt):
    A(f"v_mov_b32 v{vt}, {addr}")
    A(f"v_mov_b32 v{vt+1}, 1")
    A("s_mov_b64 exec, 1")
    A(f"ds_add_u32 v{vt}, v{vt+1}")
    A("s_mov_b64 exec, -1")

def lwait(A, addr, target, vt, sleep=0):
    L = A.newlabel("LW")
    A(f"v_mov_b32 v{vt}, {addr}")
    A.label(L)
    A(f"ds_read_b32 v{vt+1}, v{vt}")
    A("s_waitcnt lgkmcnt(0)")
    A(f"v_readfirstlane_b32 s42, v{vt+1}")
    A("s_nop 0")
    A(f"s_cmp_ge_u32 s42, {target}")
    if sleep:
        A(f"s_cbranch_scc1 {L}_x")
        A(f"s_sleep {sleep}")
        A(f"s_branch {L}")
        A.label(L + "_x")
    else:
        A(f"s_cbranch_scc0 {L}")

def merge(*chains):
    out = []; idx = [0] * len(chains)
    while any(idx[i] < len(chains[i]) for i in range(len(chains))):
        for i, ch in enumerate(chains):
            if idx[i] < len(ch):
                out.append(ch[idx[i]]); idx[i] += 1
    return out

class Rec:
    def __init__(self): self.L = []
    def __call__(self, s): self.L.append(s)

def chan_pair(A, dst, tmp):
    A(f"s_and_b32 s{dst}, s2, 7"); A(f"s_lshl_b32 s{dst}, s{dst}, 5"); A(f"s_lshr_b32 s{tmp}, s2, 3")
    A(f"s_add_u32 s{dst}, s{dst}, s{tmp}"); A(f"s_lshl_b32 s{dst}, s{dst}, 1")

def p1_ids(A):
    A("s_and_b32 s17, s2, 7")
    A("s_lshr_b32 s18, s2, 3")
    A("s_and_b32 s12, s17, 3")
    A("s_lshl_b32 s12, s12, 2")
    A("s_and_b32 s19, s18, 3")
    A("s_add_u32 s12, s12, s19")
    A("s_lshr_b32 s13, s17, 2")
    A("s_lshl_b32 s13, s13, 3")
    A("s_lshr_b32 s19, s18, 2")
    A("s_add_u32 s13, s13, s19")

def conv_part(A, p, vUA, vKB0, vKB1, ACC0, ACC1):
    ks = list({0: range(0, 24), 1: range(24, 48), 2: range(48, 80), 3: range(80, 128)}[p])
    q = DSQ(A)
    NB = 4
    FA, FB0, FB1 = 8, 24, 40
    def rd(i):
        k = ks[i]; b = i % NB
        A(f"ds_read_b64 {v(FA+4*b,2)}, v{vUA} offset:{32*k}"); q.issue(("a0", i))
        A(f"ds_read_b64 {v(FA+4*b+2,2)}, v{vUA} offset:{32*k+8}"); q.issue(("a1", i))
        off = (k//2)*80 + (k%2)*32
        A(f"ds_read_b128 {v(FB1+4*b,4)}, v{vKB1} offset:{off}"); q.issue(("b1", i))
        if k < 64:
            A(f"ds_read_b128 {v(FB0+4*b,4)}, v{vKB0} offset:{off}"); q.issue(("b0", i))
    n = len(ks)
    for i in range(min(NB-1, n)): rd(i)
    first0 = first1 = True
    for i in range(n):
        if i + NB - 1 < n: rd(i + NB - 1)
        k = ks[i]; b = i % NB
        q.wait(("b1", i))
        A(f"v_mfma_f32_32x32x16_bf16 {v(ACC1,16)}, {v(FA+4*b,4)}, {v(FB1+4*b,4)}, {'0' if first1 else v(ACC1,16)}"); first1 = False
        if k < 64:
            q.wait(("b0", i))
            A(f"v_mfma_f32_32x32x16_bf16 {v(ACC0,16)}, {v(FA+4*b,4)}, {v(FB0+4*b,4)}, {'0' if first0 else v(ACC0,16)}"); first0 = False

vY = [90, 91, 126, 127]

def p1_loader(A):
    vDX, vDX1, vDW = 2, 3, 5
    A("s_sub_u32 s15, s3, 4")
    A("s_and_b32 s16, s15, 3")
    A("v_lshrrev_b32 v9, 3, v0")
    A("v_lshrrev_b32 v10, 1, v9")
    A("v_xor_b32 v10, v10, v0")
    A("v_and_b32 v10, 7, v10")
    A("v_lshlrev_b32 v10, 4, v10")
    A(f"v_lshl_add_u32 v{vDX}, v9, 10, v10")
    A(f"v_xor_b32 v{vDX1}, 64, v{vDX}")
    A("s_lshl_b32 s20, s12, 17")
    A("s_lshl_b32 s17, s16, 15")
    A("s_add_u32 s20, s20, s17")
    A("s_lshl_b32 s21, s13, 6")
    A("s_lshl_b32 s22, s16, 12")
    A("s_mul_i32 s23, s16, 3072")
    A("s_add_u32 s23, s23, 16384")
    A("s_lshr_b32 s25, s2, 5")
    A("s_lshr_b32 s17, s2, 3")
    A("s_and_b32 s17, s17, 3")
    A("s_lshl_b32 s17, s17, 1")
    A("s_add_u32 s25, s25, s17")
    srd(A, 4, SP['x'], 2048*512*2)
    srd(A, 8, SP['wqkv'], 512*1536*2)
    def issue_x(c):
        slot = (c % NSLOT) * SLOT
        A(f"s_add_u32 s26, s25, {c}")
        A("s_and_b32 s26, s26, 7")
        A(f"s_lshl_b32 s24, s26, 7")
        A(f"s_add_u32 s24, s24, s20")
        A(f"s_mul_i32 s27, s26, {64*3072}")
        A(f"s_add_u32 s27, s27, s21")
        for i in range(4):
            A(f"s_add_u32 m0, s22, {slot + i*1024}")
            if i: A(f"s_add_u32 s24, s24, 8192")
            else: A("s_nop 0")
            A(f"buffer_load_dwordx4 v{vDX1 if i % 2 else vDX}, s[4:7], s24 offen lds")
    def issue_w(c):
        slot = (c % NSLOT) * SLOT
        for i in range(3):
            A(f"s_add_u32 m0, s23, {slot + i*1024}")
            A("s_nop 0")
            A(f"buffer_load_dwordx4 v{vDW+i}, s[8:11], s27 offen lds")
    def wsetup():
        A("s_mul_i32 s17, s16, 192")
        A("s_movk_i32 s18, 3072")
        A("s_mov_b32 s19, 43691")
        for i in range(3):
            A(f"v_add_u32 v9, s17, v0")
            if i: A(f"v_add_u32 v9, {64*i}, v9")
            A("v_mul_u32_u24 v10, s19, v9")
            A("v_lshrrev_b32 v10, 19, v10")
            A("v_mul_u32_u24 v11, 12, v10")
            A("v_sub_u32 v11, v9, v11")
            A("v_lshrrev_b32 v12, 2, v10")
            A("v_and_b32 v12, 2, v12")
            A("v_xor_b32 v11, v11, v12")
            A("v_lshrrev_b32 v12, 2, v11")
            A("v_and_b32 v11, 3, v11")
            A("v_lshlrev_b32 v11, 4, v11")
            A("v_lshl_add_u32 v11, v12, 10, v11")
            A(f"v_mad_u32_u24 v{vDW+i}, v10, s18, v11")
    def group(g):
        A(f"s_setprio {3 - g}")
        if g == 1: wsetup()
        for n, c in enumerate(range(g, 8, 2)):
            if c >= 3: lwait(A, C_DONE(c - 3), 4, 30, sleep=1)
            if c == 1: lwait(A, C_ISS, 4, 30, sleep=1)
            issue_x(c)
            if g == 0 and n == 0: wsetup()
            issue_w(c)
            if c == 0: lsig(A, C_ISS, 30)
            A("s_waitcnt vmcnt(0)")
            lsig(A, C_RDY(c), 30)
    A("s_cmp_ge_u32 s15, 4")
    A("s_cbranch_scc1 P1_LOADER1")
    group(0)
    A("s_branch P1_LOADER_END")
    A.label("P1_LOADER1")
    group(1)
    A.label("P1_LOADER_END")
    A("s_setprio 1")
    stamp(A, 28)
    if os.environ.get("X_P1ONLY"): A("s_branch K_FIN")
    chan_pair(A, 14, 16)
    A("s_lshr_b32 s28, s14, 4")
    A(f"s_lshl_b32 s28, s28, {5+FS}")
    A(f"s_add_u32 s28, s28, {WS_FU}")
    A(f"v_lshlrev_b32 v13, {FS}, v0")
    get_tag(A)
    A("s_cmp_eq_u32 s15, 0")
    A("s_cbranch_scc0 CV_NOPOLL")
    poll(A, "CV_PU", 13, 28, "-1", 14, sleep=6)
    lsig(A, C_FU, 30)
    A.label("CV_NOPOLL")
    lwait(A, C_FU, 1, 30, sleep=2)
    A("s_lshr_b32 s16, s15, 2")
    A("s_add_u32 s17, s14, s16")
    A("s_lshl_b32 s17, s17, 12")
    A(f"s_add_u32 s17, s17, {WS_UT}")
    A(f"s_add_u32 s4, s{SP['ws']}, s17"); A(f"s_addc_u32 s5, s{SP['ws']+1}, 0")
    A("s_mov_b32 s6, 4096"); A("s_mov_b32 s7, 0x00020000")
    A("s_and_b32 s18, s15, 3"); A("s_lshl_b32 s18, s18, 10")
    A(f"v_add_u32 v16, s18, v{vL16}")
    A("v_subrev_u32 v17, 16, v16")
    A("v_cmp_eq_u32 vcc, 0, v16")
    A("v_mov_b32 v18, 4096")
    A("s_nop 0")
    A("v_cndmask_b32 v17, v17, v18, vcc")
    A("buffer_load_dwordx4 v[20:23], v17, s[4:7], 0 offen sc1")
    A("buffer_load_dwordx4 v[24:27], v16, s[4:7], 0 offen sc1")
    stamp(A, 29)
    def copies(D, dest):
        T0, T1, T2 = 32, 36, 40
        for j in range(4): A(f"v_alignbit_b32 v{T0+j}, v{D+j+1}, v{D+j}, 16")
        for j in range(4): A(f"v_mov_b32 v{T1+j}, v{D+1+j}")
        for j in range(4): A(f"v_alignbit_b32 v{T2+j}, v{D+j+2}, v{D+j+1}, 16")
        A(f"ds_write_b128 v{dest}, {v(T0,4)}")
        A(f"ds_write_b128 v{dest}, {v(T1,4)} offset:{UC_RHO}")
        A(f"ds_write_b128 v{dest}, {v(T2,4)} offset:{2*UC_RHO}")
        A(f"ds_write_b128 v{dest}, {v(D+2,4)} offset:{3*UC_RHO}")
    A(f"s_mul_i32 s19, s16, {UC_CH}")
    A(f"s_add_u32 s19, s19, {L_UC + 48}")
    A("v_add_u32 v19, s19, v16")
    A("s_cmp_eq_u32 s18, 0")
    A("s_cbranch_scc0 CV_NOX")
    A("v_mov_b32 v28, 4096")
    A(f"v_mov_b32 v29, {255*16}")
    A("v_cmp_eq_u32 vcc, 3, v0")
    A("s_nop 1")
    A("v_cndmask_b32 v29, v28, v29, vcc")
    A("buffer_load_dwordx4 v[48:51], v29, s[4:7], 0 offen sc1")
    for j in range(4): A(f"v_mov_b32 v{52+j}, 0")
    A(f"v_mov_b32 v30, {259*16}")
    A(f"v_cndmask_b32 v30, v{vL16}, v30, vcc")
    A(f"s_sub_u32 s19, s19, 48")
    A("v_add_u32 v30, s19, v30")
    A.label("CV_NOX")
    lwait(A, C_DONE(5), 4, 44)
    lwait(A, C_KR, 4, 44)
    A("s_waitcnt vmcnt(0)")
    copies(20, 19)
    A("s_cmp_eq_u32 s18, 0")
    A("s_cbranch_scc0 CV_NOX2")
    A("s_mov_b64 exec, 15")
    copies(48, 30)
    A("s_mov_b64 exec, -1")
    A.label("CV_NOX2")
    A("v_and_b32 v9, 31, v0")
    A("v_lshrrev_b32 v10, 5, v0")
    A("v_and_b32 v11, 3, v9")
    A(f"v_mul_u32_u24 v11, {UC_RHO}, v11")
    A("v_lshrrev_b32 v12, 2, v9")
    A("v_lshl_add_u32 v11, v12, 3, v11")
    A("v_lshl_add_u32 v11, v10, 4, v11")
    A(f"s_mul_i32 s24, s16, {UC_CH}")
    A(f"s_add_u32 s24, s24, {L_UC}")
    A("v_add_u32 v4, s24, v11")
    A("v_sub_u32 v11, 63, v9")
    A("v_mul_u32_u24 v11, 80, v11")
    A("v_lshl_add_u32 v11, v10, 4, v11")
    A(f"s_mul_i32 s23, s16, {KREV_SZ}")
    A(f"s_add_u32 s23, s23, {L_KREV}")
    A("v_add_u32 v5, s23, v11")
    A("v_subrev_u32 v6, 2560, v5")
    A("s_and_b32 s24, s15, 3")
    A(f"s_mul_i32 s25, s16, 28672")
    A("s_lshl_b32 s26, s24, 12")
    A("s_add_u32 s25, s25, s26")
    A(f"s_add_u32 s25, s25, {L_PART}")
    A(f"v_add_u32 v7, s25, v{vL16}")
    gsync(A, C_CV, 8, 8)
    stamp(A, 30)
    ACC0, ACC1 = 56, 72
    for p in range(4):
        if p < 3:
            A(f"s_cmp_eq_u32 s24, {p}")
            A(f"s_cbranch_scc0 CV_P{p+1}")
        conv_part(A, p, 4, 5, 6, ACC0, ACC1)
        lwait(A, C_WO, 1, 8)
        A("s_nop 7")
        for qd in range(4):
            A(f"ds_write_b128 v7, {v(ACC1+4*qd,4)} offset:{qd*1024}")
        if p < 3:
            for qd in range(4):
                A(f"ds_write_b128 v7, {v(ACC0+4*qd,4)} offset:{16384 + qd*1024}")
            A("s_branch CV_PE")
            A.label(f"CV_P{p+1}")
    A.label("CV_PE")
    stamp(A, 31)
    gsync(A, C_CV, 16, 8)
    stamp(A, 32)
    A("s_lshl_b32 s26, s24, 10")
    A(f"s_add_u32 s26, s26, {L_PART}")
    A(f"v_add_u32 v4, s26, v{vL16}")
    A("s_cmp_eq_u32 s16, 0")
    A("s_cbranch_scc1 CV_F0")
    for c in range(2):
        for p in range(4):
            A(f"ds_read_b128 {v(16+16*c+4*p,4)}, v4 offset:{c*28672 + p*4096}")
    A("s_waitcnt lgkmcnt(0)")
    for c in range(2):
        for r in range(4):
            b = 16 + 16*c + r
            A(f"v_add_f32 v{b}, v{b}, v{b+4}"); A(f"v_add_f32 v{b+8}, v{b+8}, v{b+12}")
        for r in range(4):
            b = 16 + 16*c + r
            A(f"v_add_f32 v{b}, v{b}, v{b+8}")
    A("s_branch CV_F1")
    A.label("CV_F0")
    for c in range(2):
        for p in range(3):
            A(f"ds_read_b128 {v(16+16*c+4*p,4)}, v4 offset:{c*28672 + 16384 + p*4096}")
    A("s_waitcnt lgkmcnt(0)")
    for c in range(2):
        for r in range(4):
            b = 16 + 16*c + r
            A(f"v_add_f32 v{b}, v{b}, v{b+4}")
        for r in range(4):
            b = 16 + 16*c + r
            A(f"v_add_f32 v{b}, v{b}, v{b+8}")
    A.label("CV_F1")
    for r in range(4):
        A(f"v_cvt_pk_bf16_f32 v{vY[r]}, v{16+r}, v{32+r}")
    A("s_lshl_b32 s36, s16, 21")
    A("s_lshl_b32 s25, s24, 14")
    A("s_add_u32 s36, s36, s25")
    A("s_lshl_b32 s25, s14, 1")
    A("s_add_u32 s36, s36, s25")
    A("s_setprio 0")
    stamp(A, 33)

def p1_compute(A):
    vFR, vACC, vXA, vWA = 8, 64, 112, 118
    A("v_and_b32 v4, 15, v0")
    A("v_lshrrev_b32 v5, 4, v0")
    A("v_lshrrev_b32 v6, 1, v4")
    A("v_xor_b32 v6, v6, v5")
    A("v_lshlrev_b32 v6, 4, v6")
    A("v_lshl_add_u32 v6, v4, 7, v6")
    A("s_lshr_b32 s17, s3, 1")
    A("s_lshl_b32 s17, s17, 13")
    A(f"v_add_u32 v{vXA}, s17, v6")
    A(f"v_xor_b32 v{vXA+1}, 64, v{vXA}")
    A(f"v_add_u32 v{vXA+2}, {2*SLOT}, v{vXA}")
    A(f"v_add_u32 v{vXA+3}, {2*SLOT}, v{vXA+1}")
    A("v_lshrrev_b32 v6, 2, v4")
    A("v_lshl_add_u32 v6, v5, 3, v6")
    A("v_mul_u32_u24 v6, 192, v6")
    A("v_and_b32 v7, 3, v4")
    A("v_lshl_add_u32 v6, v7, 3, v6")
    A("s_and_b32 s17, s3, 1")
    A("v_xor_b32 v7, s17, v5")
    A("v_and_b32 v7, 1, v7")
    A(f"v_lshl_add_u32 v{vWA}, v7, 5, v6")
    A(f"v_add_u32 v{vWA+1}, {2*SLOT}, v{vWA}")
    A("s_and_b32 s18, s3, 1")
    A("s_lshl_b32 s19, s13, 1")
    A("s_add_u32 s18, s18, s19")
    A(f"s_lshl_b32 s16, s18, {5+FS}")
    A("s_lshl_b32 s18, s18, 16")
    A("s_lshr_b32 s19, s3, 1")
    A("s_lshl_b32 s24, s12, 1")
    A("s_add_u32 s24, s24, s19")
    A(f"s_lshl_b32 s25, s24, {FS}")
    A("s_add_u32 s16, s16, s25")
    A(f"s_add_u32 s16, s16, {WS_F1}")
    A("s_lshl_b32 s19, s24, 11")
    A("s_add_u32 s18, s18, s19")
    A(f"s_mov_b32 s17, 0x{f32bits(C_SCALE):08x}")
    A("s_setprio 2")
    q = DSQ(A)
    def fr(buf): return vFR + 28 * buf
    def rd(step):
        c, ks2 = step // 2, step % 2
        slot = c % NSLOT
        st, so = slot // 2, (slot % 2) * SLOT
        b = fr(step % 2)
        for ti in range(4):
            A(f"ds_read_b128 {v(b+4*ti,4)}, v{vXA+2*st+ks2} offset:{so + ti*2048}"); q.issue(("x", step, ti))
        for gi in range(3):
            for hf in range(2):
                A(f"ds_read_b64_tr_b16 {v(b+16+4*gi+2*hf,2)}, v{vWA+st} offset:{so + 16384 + (32*ks2+4*hf)*192 + 64*gi}"); q.issue(("w", step, gi, hf))
    def mm(step):
        b = fr(step % 2)
        for gi in range(3):
            for ti in range(4):
                acc = vACC + (gi*4 + ti)*4
                X = v(b+4*ti, 4); W = v(b+16+4*gi, 4)
                cc = "0" if step == 0 else v(acc, 4)
                if ti == 0: q.wait(("w", step, gi, 1))
                if gi < 2: A(f"v_mfma_f32_16x16x32_bf16 {v(acc,4)}, {W}, {X}, {cc}")
                else:      A(f"v_mfma_f32_16x16x32_bf16 {v(acc,4)}, {X}, {W}, {cc}")
    lwait(A, C_RDY(0), 4, 2, sleep=2)
    stamp(A, 10)
    rd(0)
    for c in range(8):
        rd(2*c + 1)
        if c < 7:
            A(f"v_mov_b32 v2, {C_RDY(c + 1)}")
            A("ds_read_b32 v3, v2"); q.issue(("cnt", c))
        mm(2*c)
        q.drain()
        lsig(A, C_DONE(c), 4)
        if c < 7:
            L = A.newlabel("PC")
            A("v_readfirstlane_b32 s42, v3")
            A("s_nop 0")
            A("s_cmp_ge_u32 s42, 4")
            A(f"s_cbranch_scc1 {L}")
            lwait(A, C_RDY(c + 1), 4, 2, sleep=1)
            A.label(L)
            if c == 6: stamp(A, 17)
            rd(2*c + 2)
            mm(2*c + 1)
    mm(15)
    stamp(A, 1)
    T = vFR
    n = 0
    for gi, base in ((1, WS_K), (2, WS_V), (0, WS_Q)):
        if gi == 0:
            for ti in range(4):
                for r in range(4):
                    A(f"v_mul_f32 v{vACC+ti*4+r}, s17, v{vACC+ti*4+r}")
        for pair in range(2):
            a0 = vACC + (gi*4 + 2*pair)*4; a1 = a0 + 4
            t = T + 4 * n; n += 1
            A(f"v_cvt_pk_bf16_f32 v{t}, v{a0}, v{a0+1}")
            A(f"v_cvt_pk_bf16_f32 v{t+1}, v{a0+2}, v{a0+3}")
            A(f"v_cvt_pk_bf16_f32 v{t+2}, v{a1}, v{a1+1}")
            A(f"v_cvt_pk_bf16_f32 v{t+3}, v{a1+2}, v{a1+3}")
            A(f"s_add_u32 s24, s18, {base + pair*1024}")
            A("s_nop 0")
            op = "v_permlane32_swap_b32" if gi == 2 else "v_permlane16_swap_b32"
            A(f"{op} v{t}, v{t+2}")
            A(f"{op} v{t+1}, v{t+3}")
            A("s_nop 1")
            A(f"buffer_store_dwordx4 {v(t,4)}, v{vL16}, {WSRD}, s24 offen sc1")
    stamp(A, 18)
    A("s_waitcnt vmcnt(0)")
    get_tag(A)
    flag_store(A, 16, 2, 3)
    A("s_setprio 0")
    stamp(A, 2)
    if os.environ.get("X_P1ONLY"): A("s_branch K_FIN")

def cmul(A, D, X, S, T):
    A(f"v_pk_mul_f32 {v(T,2)}, {v(X,2)}, {v(S,2)} op_sel:[0,0] op_sel_hi:[1,0]")
    A(f"v_pk_fma_f32 {v(D,2)}, {v(X,2)}, {v(S,2)}, {v(T,2)} op_sel:[1,1,0] op_sel_hi:[0,1,1] neg_lo:[0,1,0]")

def fl(p): return f"{float(p)!r}" if p in (1, 2, 4) else f"0x{f32bits(float(p)):08x}"
def anchor(A, D, p, vt2, vw, tmp, conj=False):
    A(f"v_mul_f32 v{tmp}, {fl(p)}, v{vt2}")
    A(f"v_mul_f32 v{tmp+1}, {fl(p)}, v{vw}")
    A(f"v_exp_f32 v{tmp}, v{tmp}")
    A(f"v_fract_f32 v{tmp+1}, v{tmp+1}")
    A(f"v_cos_f32 v{D}, v{tmp+1}")
    A(f"v_sin_f32 v{D+1}, v{tmp+1}")
    A("s_nop 0")
    A(f"v_mul_f32 v{D}, v{D}, v{tmp}")
    if conj: A(f"v_mul_f32_e64 v{D+1}, -v{D+1}, v{tmp}")
    else: A(f"v_mul_f32 v{D+1}, v{D+1}, v{tmp}")

def kgen(A):
    A("s_setprio 3")
    A("s_sub_u32 s15, s3, 12")
    chan_pair(A, 14, 16)
    A("s_lshr_b32 s16, s15, 1")
    A("s_add_u32 s17, s14, s16")
    A("s_lshl_b32 s17, s17, 8")
    A("s_and_b32 s18, s15, 1")
    A("s_lshl_b32 s19, s18, 7")
    A("s_add_u32 s17, s17, s19")
    A("v_lshlrev_b32 v9, 1, v0")
    for reg, nm in ((10, 'lar'), (11, 'aim'), (12, 'cre'), (13, 'cim')):
        srd(A, 4, SP[nm], 512*128*2)
        A(f"buffer_load_ushort v{reg}, v9, s[4:7], s17 offen")
    A("s_lshl_b32 s20, s14, 1")
    A(f"s_add_u32 s22, s{SP['ldt']}, s20"); A(f"s_addc_u32 s23, s{SP['ldt']+1}, 0")
    A(f"s_add_u32 s24, s{SP['dsk']}, s20"); A(f"s_addc_u32 s25, s{SP['dsk']+1}, 0")
    A("s_load_dword s26, s[22:23], 0")
    A("s_load_dword s27, s[24:25], 0")
    A(f"s_mul_i32 s20, s16, {L_TCH}")
    A("s_lshl_b32 s21, s18, 8")
    A("s_add_u32 s20, s20, s21")
    A(f"s_add_u32 s20, s20, {L_TA}")
    A("v_lshlrev_b32 v15, 2, v0")
    A("v_add_u32 v15, s20, v15")
    A(f"v_add_u32 v8, {L_TBO}, v15")
    A("v_lshrrev_b32 v14, 3, v0")
    A("v_lshlrev_b32 v14, 10, v14")
    A("v_and_b32 v21, 7, v0")
    A("v_lshl_add_u32 v14, v21, 4, v14")
    A("s_lshr_b32 s28, s2, 3"); A("s_lshl_b32 s28, s28, 16")
    A("s_lshl_b32 s29, s15, 14")
    A("s_add_u32 s28, s28, s29")
    A("s_and_b32 s29, s2, 7"); A("s_lshl_b32 s29, s29, 7")
    A("s_add_u32 s28, s28, s29")
    A("s_waitcnt lgkmcnt(0)")
    A("s_cmp_eq_u32 s16, 0")
    A("s_cselect_b32 s20, 16, 0")
    A("s_lshl_b32 s26, s26, s20"); A("s_and_b32 s26, s26, 0xffff0000")
    A("s_lshl_b32 s27, s27, s20"); A("s_and_b32 s27, s27, 0xffff0000")
    stamp(A, 20)
    if os.environ.get("X_NOG"): A("s_branch K_FIN")
    srd(A, 4, SP['u'], 2048*512*2)
    A("s_lshl_b32 s20, s15, 11")
    A(f"s_add_u32 m0, s20, {L_UTL}")
    A("s_nop 0")
    A("buffer_load_dwordx4 v14, s[4:7], s28 offen lds")
    A(f"s_add_u32 m0, s20, {L_UTL + 1024}")
    A("s_add_u32 s28, s28, 8192")
    A("buffer_load_dwordx4 v14, s[4:7], s28 offen lds")
    A("s_waitcnt vmcnt(2)")
    A(f"s_setprio {os.environ.get('GPRIO', 3)}")
    get_tag(A)
    vt2, vw, vY0, tmp = 16, 17, 18, 20
    A(f"s_mov_b32 s21, 0x{f32bits(LOG2E):08x}")
    A(f"v_mov_b32 v{tmp}, s26")
    A(f"v_lshlrev_b32 v10, 16, v10")
    A(f"v_mul_f32 v{tmp}, s21, v{tmp}")
    A(f"v_mul_f32 v10, s21, v10")
    A(f"v_exp_f32 v{tmp}, v{tmp}")
    A(f"v_exp_f32 v10, v10")
    A(f"v_lshlrev_b32 v11, 16, v11")
    A(f"v_cvt_pk_bf16_f32 v{tmp}, v{tmp}, v10")
    A(f"v_lshlrev_b32 v12, 16, v12")
    A(f"v_and_b32 v10, 0xffff0000, v{tmp}")
    A(f"v_lshlrev_b32 v{tmp}, 16, v{tmp}")
    A(f"v_lshlrev_b32 v13, 16, v13")
    A(f"v_mul_f32 v10, v10, v{tmp}")
    A(f"v_mul_f32 v11, v11, v{tmp}")
    A(f"v_mul_f32 v{vt2}, 0x{f32bits(-LOG2E):08x}, v10")
    A(f"v_mul_f32 v{vw}, 0x{f32bits(INV2PI):08x}, v11")
    A(f"v_add_f32 v{tmp}, v{tmp}, v{tmp}")
    A(f"v_mul_f32 v{vY0}, v12, v{tmp}")
    A(f"v_mul_f32_e64 v{vY0+1}, -v13, v{tmp}")
    XE, XO, S16 = 40, 42, 44
    F1, F256, F2, F4, Y, Z = 24, 26, 28, 30, 32, 34
    r1, r2, r3 = Rec(), Rec(), Rec()
    anchor(r1, XO, 8, vt2, vw, 46)
    anchor(r2, F1, 1, vt2, vw, 48, conj=True)
    anchor(r3, F256, 256, vt2, vw, 50, conj=True)
    for ins in merge(r1.L, r2.L, r3.L): A(ins)
    A(f"v_mov_b32 v{XE}, 1.0"); A(f"v_mov_b32 v{XE+1}, 0")
    cmul(A, S16, XO, XO, 46)
    cmul(A, F2, F1, F1, 48)
    cmul(A, Z, vY0, F256, 50)
    cmul(A, F4, F2, F2, 48)
    A("s_waitcnt vmcnt(0)")
    gsync(A, C_G, 4, 72)
    A("v_and_b32 v72, 15, v0")
    A("v_lshrrev_b32 v73, 4, v0")
    A("v_lshrrev_b32 v74, 2, v72")
    A("v_lshl_add_u32 v74, v73, 3, v74")
    A("v_lshlrev_b32 v74, 7, v74")
    A("v_and_b32 v75, 3, v72")
    A("v_lshl_add_u32 v74, v75, 3, v74")
    A("s_lshl_b32 s20, s15, 5")
    A(f"s_add_u32 s20, s20, {L_UTL}")
    A("v_add_u32 v74, s20, v74")
    for p in range(2):
        for hf in range(2):
            A(f"ds_read_b64_tr_b16 {v(76+4*p+2*hf,2)}, v74 offset:{(32*p+4*hf)*128}")
    A("v_lshlrev_b32 v75, 12, v72")
    A("v_lshl_add_u32 v75, v73, 4, v75")
    A("s_and_b32 s20, s2, 7"); A("s_lshl_b32 s20, s20, 2"); A("s_add_u32 s20, s20, s15")
    A(f"s_lshl_b32 s21, s20, {5+FS}")
    A("s_lshl_b32 s20, s20, 16")
    A("s_lshr_b32 s22, s2, 3")
    A("s_lshl_b32 s23, s22, 7")
    A("s_add_u32 s20, s20, s23")
    A(f"s_add_u32 s20, s20, {WS_UT}")
    A(f"s_lshl_b32 s23, s22, {FS}")
    A("s_add_u32 s21, s21, s23")
    A(f"s_add_u32 s21, s21, {WS_FU}")
    A("s_waitcnt lgkmcnt(0)")
    A(f"buffer_store_dwordx4 v[76:79], v75, {WSRD}, s20 offen sc1")
    A(f"buffer_store_dwordx4 v[80:83], v75, {WSRD}, s20 offen offset:64 sc1")
    stamp(A, 24)
    X2, X3, S32 = 68, 70, 84
    A(f"v_mov_b32 v{X2}, v{S16}"); A(f"v_mov_b32 v{X2+1}, v{S16+1}")
    cmul(A, X3, XO, S16, 46)
    cmul(A, S32, S16, S16, 48)
    bch = [Rec(), Rec(), Rec(), Rec()]
    ay, az = Rec(), Rec()
    for j, (X, T_, P_) in enumerate(((XE, 56, 52), (XO, 58, 54), (X2, 86, 88), (X3, 90, 92))):
        for b in range(j, 32, 4):
            p_ = P_ + (b // 4) % 2
            bch[j](f"v_cvt_pk_bf16_f32 v{p_}, v{X}, v{X+1}")
            if b + 4 < 32: cmul(bch[j], X, X, S32, T_)
            bch[j](f"ds_write_b32 v8, v{p_} offset:{b*528}")
    ny = [0]; nz = [0]
    def puty(reg, row):
        p = 60 + ny[0] % 2; ny[0] += 1
        ay(f"v_cvt_pk_bf16_f32 v{p}, v{reg}, v{reg+1}")
        ay(f"ds_write_b32 v15, v{p} offset:{row*528}")
    def putz(reg, row):
        p = 62 + nz[0] % 2; nz[0] += 1
        az(f"v_cvt_pk_bf16_f32 v{p}, v{reg}, v{reg+1}")
        az(f"ds_write_b32 v15, v{p} offset:{row*528}")
    puty(vY0, 0)
    cmul(ay, Y, vY0, F1, 64); puty(Y, 1)
    for r in range(2, 8):
        cmul(ay, Y, Y, F1, 64); puty(Y, r)
    W = 36
    putz(Z, 8)
    cmul(az, W, Z, F2, 66); putz(W, 9)
    cmul(az, W, W, F2, 66); putz(W, 10)
    cmul(az, W, W, F2, 66); putz(W, 11)
    cmul(az, Z, Z, F256, 66); putz(Z, 12)
    cmul(az, W, Z, F4, 66); putz(W, 13)
    cmul(az, Z, Z, F256, 66); putz(Z, 14)
    cmul(az, W, Z, F4, 66); putz(W, 15)
    for r in range(16, 21):
        cmul(az, Z, Z, F256, 66); putz(Z, r)
    allc = merge(bch[0].L, az.L, bch[1].L, ay.L, bch[2].L, bch[3].L)
    n1 = len(allc) * int(os.environ.get("KG1", 40)) // 100
    for ins in allc[:n1]: A(ins)
    A("s_waitcnt vmcnt(0)")
    flag_store(A, 21, 72, 73)
    stamp(A, 21)
    A("s_getpc_b64 s[28:29]")
    A.label("KG_PC")
    A("s_add_u32 s28, s28, GTAB-KG_PC")
    A("s_addc_u32 s29, s29, 0")
    A("s_lshl_b32 s20, s15, 11")
    A("v_lshlrev_b32 v14, 5, v0")
    A("v_add_u32 v14, s20, v14")
    A("global_load_dwordx4 v[96:99], v14, s[28:29]")
    A("global_load_dwordx4 v[100:103], v14, s[28:29] offset:16")
    for ins in allc[n1:]: A(ins)
    gsync(A, C_G, 8, 72)
    stamp(A, 22)
    A("v_and_b32 v9, 15, v0")
    A("v_lshrrev_b32 v10, 4, v0")
    A("v_mul_u32_u24 v11, 528, v9")
    A("v_lshl_add_u32 v11, v10, 4, v11")
    A(f"s_mul_i32 s20, s16, {L_TCH}")
    A(f"s_add_u32 s20, s20, {L_TA}")
    A(f"s_mul_i32 s22, s18, {16*528}")
    A("s_add_u32 s22, s22, s20")
    A("v_add_u32 v12, s22, v11")
    A(f"s_add_u32 s20, s20, {L_TBO}")
    A("v_add_u32 v13, s20, v11")
    q = DSQ(A)
    FA_, FB_ = 16, [48, 104 - 24]
    B1 = [80, 84, 88, 92, 104, 108, 112, 116]
    for s_ in range(8):
        q.room(); A(f"ds_read_b128 {v(16+4*s_,4)}, v12 offset:{s_*64}"); q.issue(("a", s_))
        q.room(); A(f"ds_read_b128 {v(48+4*s_,4)}, v13 offset:{s_*64}"); q.issue(("b0", s_))
        q.room(); A(f"ds_read_b128 {v(B1[s_],4)}, v13 offset:{16*528 + s_*64}"); q.issue(("b1", s_))
    for s_ in range(8):
        q.wait(("b0", s_))
        A(f"v_mfma_f32_16x16x32_bf16 v[120:123], {v(16+4*s_,4)}, {v(48+4*s_,4)}, {'0' if s_==0 else 'v[120:123]'}")
        q.wait(("b1", s_))
        A(f"v_mfma_f32_16x16x32_bf16 v[4:7], {v(16+4*s_,4)}, {v(B1[s_],4)}, {'0' if s_==0 else 'v[4:7]'}")
    A("s_lshl_b32 s20, s16, 11")
    A("s_lshl_b32 s22, s18, 10")
    A("s_add_u32 s20, s20, s22")
    A(f"s_add_u32 s20, s20, {L_T}")
    A("v_lshlrev_b32 v14, 8, v10")
    A("v_lshl_add_u32 v14, v9, 1, v14")
    A("v_add_u32 v14, s20, v14")
    A("s_cmp_eq_u32 s18, 0")
    A("s_cselect_b32 s27, s27, 0")
    A("v_cmp_eq_u32 vcc, 0, v0")
    A("v_mov_b32 v15, s27")
    A("s_nop 3")
    A("v_cndmask_b32 v15, 0, v15, vcc")
    A("v_add_f32 v120, v120, v15")
    for ct, b in enumerate((120, 4)):
        A(f"v_cvt_pk_bf16_f32 v{16+2*ct}, v{b}, v{b+1}")
        A(f"v_cvt_pk_bf16_f32 v{17+2*ct}, v{b+2}, v{b+3}")
        A(f"ds_write_b16 v14, v{16+2*ct} offset:{32*ct}")
        A(f"ds_write_b16_d16_hi v14, v{16+2*ct} offset:{32*ct+64}")
        A(f"ds_write_b16 v14, v{17+2*ct} offset:{32*ct+128}")
        A(f"ds_write_b16_d16_hi v14, v{17+2*ct} offset:{32*ct+192}")
    gsync(A, C_G, 12, 72)
    stamp(A, 23)
    A("s_cmp_eq_u32 s15, 0")
    A("s_cbranch_scc0 KG_NOWO")
    srd(A, 4, SP['wo'], 512*512*2)
    A("s_and_b32 s20, s2, 7"); A("s_lshl_b32 s20, s20, 16")
    A("s_lshr_b32 s22, s2, 3"); A("s_lshl_b32 s22, s22, 5")
    A("s_add_u32 s20, s20, s22")
    A("v_lshlrev_b32 v15, 10, v0")
    A("buffer_load_dwordx4 v[104:107], v15, s[4:7], s20 offen")
    A("buffer_load_dwordx4 v[108:111], v15, s[4:7], s20 offen offset:16")
    A.label("KG_NOWO")
    A("s_cmp_eq_u32 s15, 0")
    A("s_cbranch_scc1 KG_W2")
    A("s_waitcnt vmcnt(0)")
    A.label("KG_W2")
    A("s_waitcnt vmcnt(2)")
    for e in range(8): A(f"v_add_u32 v{96+e}, {L_T}, v{96+e}")
    for c in range(2):
        for e in range(8):
            op = "ds_read_u16_d16_hi" if e % 2 else "ds_read_u16"
            A(f"{op} v{(32 if e % 2 else 16)+4*c+e//2}, v{96+e} offset:{c*2048}")
    A("s_lshl_b32 s20, s15, 6")
    A("v_add_u32 v9, s20, v0")
    A("v_lshrrev_b32 v10, 2, v9")
    A("v_mul_u32_u24 v10, 80, v10")
    A("v_and_b32 v9, 3, v9")
    A("v_lshl_add_u32 v10, v9, 4, v10")
    A(f"v_add_u32 v10, {L_KREV}, v10")
    for j in range(4): A(f"v_mov_b32 v{40+j}, 0")
    A(f"s_mul_i32 s20, s16, {KREV_SZ}")
    A(f"s_mul_i32 s22, s18, 1280")
    A("s_add_u32 s20, s20, s22")
    A(f"s_add_u32 s20, s20, {L_KREV + 64*80}")
    A(f"v_add_u32 v11, s20, v{vL16}")
    A("ds_write_b128 v11, v[40:43]")
    A("s_mov_b64 exec, 0xffff")
    A("ds_write_b128 v11, v[40:43] offset:1024")
    A("s_mov_b64 exec, -1")
    A("s_waitcnt lgkmcnt(10)")
    for j in range(4): A(f"v_or_b32 v{16+j}, v{16+j}, v{32+j}")
    A("s_waitcnt lgkmcnt(2)")
    for j in range(4): A(f"v_or_b32 v{20+j}, v{20+j}, v{36+j}")
    A("ds_write_b128 v10, v[16:19]")
    A(f"ds_write_b128 v10, v[20:23] offset:{KREV_SZ}")
    A("s_waitcnt lgkmcnt(0)")
    lsig(A, C_KR, 72)
    stamp(A, 25)
    A("s_setprio 0")
    A("s_cmp_eq_u32 s15, 0")
    A("s_cbranch_scc0 KG_NOWO3")
    lwait(A, C_KR, 4, 72)
    A("v_lshlrev_b32 v21, 5, v0")
    A(f"v_add_u32 v21, {L_T}, v21")
    A("v_and_b32 v22, 15, v0")
    A("v_lshrrev_b32 v23, 4, v0")
    A("v_lshrrev_b32 v24, 2, v22")
    A("v_lshl_add_u32 v24, v23, 3, v24")
    A("v_lshlrev_b32 v24, 5, v24")
    A("v_and_b32 v22, 3, v22")
    A("v_lshl_add_u32 v24, v22, 3, v24")
    A(f"v_add_u32 v24, {L_T}, v24")
    A("s_waitcnt vmcnt(0)")
    A("ds_write_b128 v21, v[104:107]")
    A("ds_write_b128 v21, v[108:111] offset:16")
    A("s_waitcnt lgkmcnt(0)")
    for s_ in range(2):
        for hf in range(2):
            A(f"ds_read_b64_tr_b16 {v(104+4*s_+2*hf,2)}, v24 offset:{(32*s_+4*hf)*32}")
    A("s_lshr_b32 s20, s2, 3"); A(f"s_lshl_b32 s22, s20, {3+FS}"); A("s_lshl_b32 s20, s20, 14")
    A("s_and_b32 s21, s2, 7"); A(f"s_lshl_b32 s23, s21, {FS}"); A("s_lshl_b32 s21, s21, 11")
    A("s_add_u32 s20, s20, s21")
    A(f"s_add_u32 s20, s20, {WS_WOF}")
    A("s_add_u32 s22, s22, s23")
    A(f"s_add_u32 s22, s22, {WS_F3}")
    A("s_waitcnt lgkmcnt(0)")
    lsig(A, C_WO, 72)
    A(f"buffer_store_dwordx4 v[104:107], v{vL16}, {WSRD}, s20 offen sc1")
    A(f"buffer_store_dwordx4 v[108:111], v{vL16}, {WSRD}, s20 offen offset:1024 sc1")
    A("s_waitcnt vmcnt(0)")
    flag_store(A, 22, 14, 15)
    A.label("KG_NOWO3")
    if os.environ.get("X_P1ONLY"): A("s_branch K_FIN")

vKA, vVA, vQ, vKF, vVF, vS, vP, vO, vM, vT = 2, 3, 4, 8, 16, 32, 64, 72, 88, 89
vLD = 92
vLW = 124
NT = 32
SCHED = "e0 e1 PV1 RV e2 e3 c0 e4 e5 c1 QK RK e6 e7 c2 e8 e9 c3 e10 e11 PV0 c4 e12 e13 c5 e14 e15 c6 c7"
PRIO = {0: 3, 8: 2, 16: 1, 24: 0}

def attn_ids(A):
    A("s_and_b32 s12, s2, 7")
    A("s_lshl_b32 s12, s12, 2")
    A("s_lshr_b32 s13, s2, 3")
    A("s_and_b32 s17, s13, 3")
    A("s_add_u32 s12, s12, s17")
    A("s_lshr_b32 s13, s2, 5")
    A("s_lshl_b32 s17, s12, 16")

def ld_group(A):
    attn_ids(A)
    A("s_cmp_lt_u32 s3, 4")
    A("s_cselect_b32 s15, 0, 8")
    A("s_sub_u32 s15, s3, s15")
    A(f"v_lshlrev_b32 v10, {FS}, v0")
    A(f"s_lshl_b32 s27, s12, {5+FS}")
    A(f"s_add_u32 s27, s27, {WS_F1}")
    A("s_lshr_b32 s22, s15, 1")
    A("s_and_b32 s23, s15, 1"); A("s_lshl_b32 s23, s23, 1")
    A("s_and_b32 s25, s22, 1"); A("s_lshl_b32 s25, s25, 15")
    A("s_lshr_b32 s26, s22, 1"); A("s_lshl_b32 s26, s26, 21")
    A("s_add_u32 s25, s25, s26")
    A("s_lshl_b32 s26, s23, 10")
    A("s_add_u32 s25, s25, s26")
    A("s_add_u32 s25, s25, s17")
    A(f"s_add_u32 s25, s25, {WS_K}")
    A("s_lshl_b32 s24, s23, 12")
    A("s_lshl_b32 s26, s22, 10")
    A("s_add_u32 s24, s24, s26")
    A(f"v_add_u32 v11, s24, v{vL16}")
    A("s_lshl_b32 s18, s13, 3"); A("s_add_u32 s18, s18, s15"); A("s_lshl_b32 s18, s18, 10"); A("s_add_u32 s18, s18, s17")
    A("s_lshl_b32 s19, s15, 10"); A(f"s_add_u32 s19, s19, {L_QS}")
    A(f"v_add_u32 v12, s19, v{vL16}")
    A("s_cmp_eq_u32 s3, 13")
    A("s_cbranch_scc0 LD_NOPOLL")
    poll(A, "LD_POLL", 10, 27, "-1", 13, sleep=4)
    lsig(A, C_F1, 44)
    A.label("LD_NOPOLL")
    lwait(A, C_F1, 1, 44, sleep=1)
    stamp(A, 3)
    n = 0
    for r in range(3):
        A(f"s_add_u32 s26, s13, {r}")
        A("s_and_b32 s26, s26, 7")
        A("s_lshl_b32 s26, s26, 12")
        A("s_add_u32 s26, s26, s25")
        A(f"buffer_load_dwordx4 {v(16+8*r,4)}, v{vL16}, {WSRD}, s26 offen sc1")
        A(f"buffer_load_dwordx4 {v(20+8*r,4)}, v{vL16}, {WSRD}, s26 offen offset:1024 sc1")
        if r == 0:
            A(f"buffer_load_dwordx4 v[40:43], v{vL16}, {WSRD}, s18 offen sc1")
    lwait(A, C_DONE(7), 4, 44)
    A("s_waitcnt vmcnt(4)")
    A("ds_write_b128 v11, v[16:19]")
    A("ds_write_b128 v11, v[20:23] offset:4096")
    A("ds_write_b128 v12, v[40:43]")
    A("s_waitcnt vmcnt(2)")
    A("ds_write_b128 v11, v[24:27] offset:16384")
    A("ds_write_b128 v11, v[28:31] offset:20480")
    A("s_waitcnt vmcnt(0)")
    A("ds_write_b128 v11, v[32:35] offset:32768")
    A("ds_write_b128 v11, v[36:39] offset:36864")

def attention(A):
    attn_ids(A)
    A("s_mov_b32 s20, 0x0000ffff")
    A("s_mov_b32 s21, 0x0000ffff")
    A("s_and_b32 s15, s3, 7")
    A("s_lshr_b32 s16, s3, 3")
    A("s_lshl_b32 s19, s16, 10")
    A(f"v_add_u32 v{vKA}, s19, v{vL16}")
    A("v_lshrrev_b32 v8, 5, v0")
    A("v_lshlrev_b32 v8, 8, v8")
    A("v_and_b32 v9, 15, v0")
    A("v_lshlrev_b32 v9, 4, v9")
    A("s_add_u32 s19, s19, 2048")
    A(f"v_add3_u32 v{vVA}, v8, v9, s19")
    A("v_and_b32 v8, 31, v0")
    A("v_cmp_eq_u32 vcc, 16, v8")
    A("v_mov_b32 v9, 0x3f803f80")
    A("s_lshl_b32 s22, s15, 10"); A(f"s_add_u32 s22, s22, {L_QS}")
    A("v_cndmask_b32 v9, 0, v9, vcc")
    A(f"v_add_u32 v10, s22, v{vL16}")
    for i in range(16): A(f"v_mov_b32 v{vVF+i}, v9")
    A(f"v_mov_b32 v{vM}, 0")
    A("s_lshl_b32 s18, s13, 3")
    A("s_add_u32 s18, s18, s15")
    A(f"s_lshl_b32 s19, s18, {5+FS}")
    A(f"s_lshl_b32 s22, s12, {FS}")
    A("s_add_u32 s19, s19, s22")
    A(f"s_add_u32 s19, s19, {WS_F2}")
    A("s_lshl_b32 s18, s18, 10")
    A("s_add_u32 s18, s18, s17")
    A("s_lshr_b32 s22, s3, 2")
    A("s_and_b32 s23, s3, 3")
    A("s_lshl_b32 s24, s23, 12")
    A("s_lshl_b32 s26, s22, 10")
    A("s_add_u32 s24, s24, s26")
    A(f"v_add_u32 v{vLW}, s24, v{vL16}")
    A("s_and_b32 s25, s22, 1"); A("s_lshl_b32 s25, s25, 15")
    A("s_lshr_b32 s26, s22, 1"); A("s_lshl_b32 s26, s26, 21")
    A("s_add_u32 s25, s25, s26")
    A("s_lshl_b32 s23, s23, 10")
    A("s_add_u32 s25, s25, s23")
    A("s_add_u32 s25, s25, s17")
    A(f"s_add_u32 s25, s25, {WS_K}")
    A("s_lshr_b32 s37, s2, 3"); A("s_and_b32 s37, s37, 3"); A("s_lshl_b32 s37, s37, 3"); A("s_add_u32 s37, s37, s15")
    A("s_setprio 3")
    A("s_waitcnt lgkmcnt(0)")
    A("s_barrier")
    stamp(A, 4)
    A(f"ds_read_b128 {v(vQ,4)}, v10")
    q = DSQ(A)
    KF = lambda t: vKF + 4 * (t % 2)
    VF = lambda t, j: vVF + 8 * (t % 2) + 4 * j
    S = lambda t: vS + 16 * (t % 2)
    def rdK(t):
        A(f"ds_read_b128 {v(KF(t),4)}, v{vKA} offset:{(t%16)*4096}"); q.issue(("K", t))
    def rdV(t):
        A("s_mov_b64 exec, s[20:21]")
        A(f"ds_read_b128 {v(VF(t,0),4)}, v{vVA} offset:{(t%16)*4096}"); q.issue(("V0", t))
        A(f"ds_read_b128 {v(VF(t,1),4)}, v{vVA} offset:{(t%16)*4096+512}"); q.issue(("V1", t))
        A("s_mov_b64 exec, -1")
    def qk(t):
        q.wait(("K", t))
        A(f"v_mfma_f32_32x32x16_bf16 {v(S(t),16)}, {v(KF(t),4)}, {v(vQ,4)}, 0")
    def e(t, i): A(f"v_exp_f32 v{S(t)+i}, v{S(t)+i}")
    def c(t, k): A(f"v_cvt_pk_bf16_f32 v{vP+k}, v{S(t)+2*k}, v{S(t)+2*k+1}")
    def pv(t, j):
        cc = "0" if (t == 0 and j == 0) else v(vO, 16)
        A(f"v_mfma_f32_32x32x16_bf16 {v(vO,16)}, {v(VF(t,j),4)}, {v(vP+4*j,4)}, {cc}")
    rdK(0); rdK(1); rdV(0)
    qk(0)
    A("s_nop 7"); A("s_nop 3")
    for t in range(NT):
        A.comment(f"--- tile {t}")
        if t in PRIO: A(f"s_setprio {PRIO[t]}")
        for tok in SCHED.split():
            if tok[0] == 'e': e(t, int(tok[1:]))
            elif tok[0] == 'c': c(t, int(tok[1:]))
            elif tok == 'PV1':
                if t > 0: pv(t - 1, 1)
            elif tok == 'QK':
                if t + 1 < NT: qk(t + 1)
            elif tok == 'PV0':
                q.wait(("V1", t)); pv(t, 0)
            elif tok == 'RK':
                if t < 5:
                    r = 3 + t
                    A(f"s_add_u32 s26, s13, {r}")
                    A("s_and_b32 s26, s26, 7")
                    A("s_lshl_b32 s26, s26, 12")
                    A("s_add_u32 s26, s26, s25")
                    A(f"buffer_load_dwordx4 {v(vLD+4*t,4)}, v{vL16}, {WSRD}, s26 offen sc1")
                if t == 9:
                    A("s_waitcnt vmcnt(0)")
                    for i in range(5):
                        off = (3 + i) * 16384
                        if off + 0 < 65536: A(f"ds_write_b128 v{vLW}, {v(vLD+4*i,4)} offset:{off}")
                    A(f"v_add_u32 v{vLW}, 65536, v{vLW}")
                    for i in range(5):
                        off = (3 + i) * 16384
                        if off >= 65536: A(f"ds_write_b128 v{vLW}, {v(vLD+4*i,4)} offset:{off - 65536}")
                    A("s_waitcnt lgkmcnt(0)"); q.q = []
                    A("s_barrier")
                    A(f"v_lshlrev_b32 v{vT}, {FS}, v0")
                    A(f"s_lshl_b32 s26, s37, {3+FS}")
                    A(f"s_add_u32 s26, s26, {WS_F3}")
                    A("s_mov_b64 exec, 0xff")
                    A(f"buffer_load_dword v{vLW}, v{vT}, {WSRD}, s26 offen sc1")
                    A("s_mov_b64 exec, -1")
                if t == 11:
                    A("s_waitcnt vmcnt(0)")
                    check_or_poll(A, "AT_P3", vT, 26, "0xff", vLW)
                    A("s_lshl_b32 s27, s37, 14")
                    A("s_lshl_b32 s26, s16, 13")
                    A("s_add_u32 s27, s27, s26")
                    A(f"s_add_u32 s27, s27, {WS_WOF}")
                if 11 <= t < 19:
                    A(f"buffer_load_dwordx4 {v(vLD+4*(t-11),4)}, v{vL16}, {WSRD}, s27 offen sc1")
                    if t < 18: A("s_add_u32 s27, s27, 1024")
                if t == 20:
                    A("s_sub_u32 s26, s3, 4")
                    A("s_cmp_lt_u32 s26, 8")
                    A("s_cbranch_scc0 AT_NY0")
                    A(f"v_and_b32 v{vT}, 31, v0")
                    A(f"v_lshrrev_b32 v{vLW}, 5, v0")
                    A(f"v_lshlrev_b32 v{vT}, 16, v{vT}")
                    A(f"v_lshl_add_u32 v{vT}, v{vLW}, 13, v{vT}")
                    A.label("AT_NY0")
                    srd(A, 4, SP['out'], 2048*1024*2)
                if 21 <= t < 25:
                    r = t - 21
                    A("s_sub_u32 s26, s3, 4")
                    A("s_cmp_lt_u32 s26, 8")
                    A(f"s_cbranch_scc0 AT_NY{r+1}")
                    if r == 2: A("s_add_u32 s36, s36, 4096")
                    A(f"buffer_store_dword v{vY[r]}, v{vT}, s[4:7], s36 offen" + (" offset:2048" if r % 2 else ""))
                    A.label(f"AT_NY{r+1}")
                if t == 14:
                    A(f"v_add_u32 v{vKA}, 65536, v{vKA}")
                if t + 2 < NT: rdK(t + 2)
            elif tok == 'RV':
                if t == 15:
                    A(f"v_add_u32 v{vVA}, 65536, v{vVA}")
                if t + 1 < NT: rdV(t + 1)
            else: raise ValueError(tok)
    A("s_nop 1")
    pv(NT - 1, 1)
    A("s_nop 15")
    stamp(A, 5)
    A(f"v_mov_b32 v{vT}, v{vO+8}")
    A("s_nop 1")
    A(f"v_permlane32_swap_b32 v{vT}, v{vO+8}")
    A("s_nop 1")
    A(f"v_mov_b32 v{vO+8}, v{vT}")
    A("s_mov_b32 s28, 0x1f800000")
    A("s_mov_b32 s29, 0x5f800000")
    A(f"v_cmp_le_f32 vcc, s28, v{vO+8}")
    A(f"v_cmp_ge_f32 s[30:31], s29, v{vO+8}")
    A("s_nop 1")
    A("s_and_b64 vcc, vcc, s[30:31]")
    A("s_cmp_eq_u64 vcc, -1")
    A("s_cbranch_scc0 AT_FALLBACK")
    A.label("AT_COMBINE")
    A("s_lshl_b32 s17, s15, 11")
    A(f"s_add_u32 s17, s17, {L_SCR}")
    A(f"v_add_u32 v{vT}, s17, v{vL16}")
    A("v_lshlrev_b32 v12, 3, v0")
    A("s_lshl_b32 s17, s15, 9")
    A(f"s_add_u32 s17, s17, {L_KREV}")
    A(f"v_add_u32 v12, s17, v12")
    A("s_cmp_eq_u32 s16, 0")
    A("s_cbranch_scc1 AT_LOW")
    A(f"ds_write_b128 v{vT}, {v(vO,4)}")
    A(f"ds_write_b128 v{vT}, {v(vO+4,4)} offset:1024")
    A(f"v_mov_b32 v{vO+9}, v{vM}")
    A(f"ds_write_b64 v12, {v(vO+8,2)}")
    A("s_waitcnt lgkmcnt(0)")
    A("s_barrier")
    A("s_branch AT_DONE")
    A.label("AT_LOW")
    A("s_barrier")
    B = vS
    A(f"ds_read_b128 {v(B,4)}, v{vT}")
    A(f"ds_read_b128 {v(B+4,4)}, v{vT} offset:1024")
    A(f"ds_read_b64 {v(B+8,2)}, v12")
    A("s_waitcnt lgkmcnt(0)")
    t0, t1, t2 = 8, 9, 10
    A(f"v_max_f32 v{t0}, v{vM}, v{B+9}")
    A(f"v_sub_f32 v{t1}, v{vM}, v{t0}")
    A(f"v_sub_f32 v{t2}, v{B+9}, v{t0}")
    A(f"v_exp_f32 v{t1}, v{t1}")
    A(f"v_exp_f32 v{t2}, v{t2}")
    A("s_nop 0")
    for i in range(9):
        A(f"v_mul_f32 v{vO+i}, v{vO+i}, v{t1}")
    for i in range(9):
        A(f"v_fmac_f32 v{vO+i}, v{B+i}, v{t2}")
    A(f"v_rcp_f32 v{t0}, v{vO+8}")
    A("s_nop 0")
    for i in range(8):
        A(f"v_mul_f32 v{vO+i}, v{vO+i}, v{t0}")
    for k in range(4):
        A(f"v_cvt_pk_bf16_f32 v{vP+k}, v{vO+2*k}, v{vO+2*k+1}")
    A("s_nop 1")
    A(f"v_permlane32_swap_b32 v{vP}, v{vP+2}")
    A(f"v_permlane32_swap_b32 v{vP+1}, v{vP+3}")
    A(f"s_add_u32 s18, s18, {WS_O}")
    A("s_nop 1")
    A(f"buffer_store_dwordx4 {v(vP,4)}, v{vL16}, {WSRD}, s18 offen sc1")
    A("s_waitcnt vmcnt(0)")
    flag_store(A, 19, 12, 13)
    A.label("AT_DONE")
    stamp(A, 6)

def attention_fallback(A):
    A.label("AT_FALLBACK")
    A(f"v_mov_b32 v{vM}, 0xff800000")
    A(f"v_subrev_u32 v{vT}, 65536, v{vKA}")
    A("s_mov_b32 s17, 0")
    A.label("AT_FB1")
    A(f"ds_read_b128 {v(vKF,4)}, v{vT}")
    A(f"v_add_u32 v{vT}, 4096, v{vT}")
    A("s_waitcnt lgkmcnt(0)")
    A(f"v_mfma_f32_32x32x16_bf16 {v(vS,16)}, {v(vKF,4)}, {v(vQ,4)}, 0")
    A("s_nop 15")
    for k in range(8):
        A(f"v_max3_f32 v{vM}, v{vS+2*k}, v{vS+2*k+1}, v{vM}")
    A("s_add_u32 s17, s17, 1")
    A("s_cmp_lt_u32 s17, 32")
    A("s_cbranch_scc1 AT_FB1")
    A(f"v_mov_b32 v{vT}, v{vM}")
    A(f"v_mov_b32 v12, v{vM}")
    A("s_nop 1")
    A(f"v_permlane32_swap_b32 v{vT}, v12")
    A("s_nop 1")
    A(f"v_max_f32 v{vM}, v{vT}, v12")
    for i in range(16): A(f"v_mov_b32 v{vO+i}, 0")
    A(f"v_subrev_u32 v{vT}, 65536, v{vKA}")
    A(f"v_subrev_u32 v12, 65536, v{vVA}")
    A("s_mov_b32 s17, 0")
    A.label("AT_FB2")
    A(f"ds_read_b128 {v(vKF,4)}, v{vT}")
    A("s_mov_b64 exec, s[20:21]")
    A(f"ds_read_b128 {v(vVF,4)}, v12")
    A(f"ds_read_b128 {v(vVF+4,4)}, v12 offset:512")
    A("s_mov_b64 exec, -1")
    A(f"v_add_u32 v{vT}, 4096, v{vT}")
    A(f"v_add_u32 v12, 4096, v12")
    A("s_waitcnt lgkmcnt(0)")
    A(f"v_mfma_f32_32x32x16_bf16 {v(vS,16)}, {v(vKF,4)}, {v(vQ,4)}, 0")
    A("s_nop 15")
    for i in range(16): A(f"v_sub_f32 v{vS+i}, v{vS+i}, v{vM}")
    for i in range(16): A(f"v_exp_f32 v{vS+i}, v{vS+i}")
    A("s_nop 0")
    for k in range(8): A(f"v_cvt_pk_bf16_f32 v{vP+k}, v{vS+2*k}, v{vS+2*k+1}")
    A("s_nop 1")
    A(f"v_mfma_f32_32x32x16_bf16 {v(vO,16)}, {v(vVF,4)}, {v(vP,4)}, {v(vO,16)}")
    A(f"v_mfma_f32_32x32x16_bf16 {v(vO,16)}, {v(vVF+4,4)}, {v(vP+4,4)}, {v(vO,16)}")
    A("s_add_u32 s17, s17, 1")
    A("s_cmp_lt_u32 s17, 32")
    A("s_cbranch_scc1 AT_FB2")
    A("s_nop 15")
    A(f"v_mov_b32 v{vT}, v{vO+8}")
    A("s_nop 1")
    A(f"v_permlane32_swap_b32 v{vT}, v{vO+8}")
    A("s_nop 1")
    A(f"v_mov_b32 v{vO+8}, v{vT}")
    A("s_branch AT_COMBINE")

def tail(A):
    A("s_and_b32 s12, s2, 7"); A("s_lshl_b32 s12, s12, 3"); A("s_lshr_b32 s13, s2, 5"); A("s_add_u32 s12, s12, s13")
    A("s_lshr_b32 s13, s2, 3"); A("s_and_b32 s13, s13, 3")
    A("v_and_b32 v4, 15, v0")
    A("v_lshrrev_b32 v5, 4, v0")
    A("v_lshlrev_b32 v14, 9, v5")
    A("v_lshl_add_u32 v14, v4, 4, v14")
    A("s_lshl_b32 s17, s16, 14")
    A(f"s_add_u32 s17, s17, {L_OT}")
    A(f"v_add_u32 v14, s17, v14")
    A("s_cmp_eq_u32 s16, 0")
    A("s_cbranch_scc1 TL_WAIT")
    A(f"v_lshlrev_b32 v10, {FS}, v0")
    A(f"s_lshl_b32 s17, s12, {5+FS}")
    A(f"s_add_u32 s17, s17, {WS_F2}")
    A("s_cmp_eq_u32 s3, 8")
    A("s_cbranch_scc0 TL_NOPOLL")
    poll(A, "TL_P2", 10, 17, "-1", 12, sleep=2)
    lsig(A, C_F2, 12)
    A.label("TL_NOPOLL")
    lwait(A, C_F2, 1, 12, sleep=1)
    stamp(A, 43)
    A("s_lshl_b32 s17, s15, 18")
    A("s_lshl_b32 s18, s12, 10")
    A("s_add_u32 s17, s17, s18")
    A(f"s_add_u32 s17, s17, {WS_O}")
    for i in range(4):
        A(f"buffer_load_dwordx4 {v(16+4*i,4)}, v{vL16}, {WSRD}, s17 offen sc1")
        if i < 3: A("s_add_u32 s17, s17, 65536")
    A("s_lshl_b32 s18, s15, 12")
    A(f"s_add_u32 s18, s18, {L_OT}")
    A(f"v_add_u32 v13, s18, v{vL16}")
    for i in range(4):
        A(f"s_waitcnt vmcnt({3-i})")
        A(f"ds_write_b128 v13, {v(16+4*i,4)} offset:{i*1024}")
    A.label("TL_WAIT")
    A("s_waitcnt vmcnt(0) lgkmcnt(0)")
    stamp(A, 44)
    A("s_barrier")
    stamp(A, 45)
    q = DSQ(A)
    FO = 16
    def rd(s_):
        b = s_ % 3
        for th in range(2):
            A(f"ds_read_b128 {v(FO+12*th+4*b,4)}, v14 offset:{s_*2048 + th*256}"); q.issue(("o", s_, th))
    rd(0); rd(1)
    for s_ in range(8):
        if s_ + 2 < 8: rd(s_ + 2)
        b = s_ % 3
        for th in range(2):
            q.wait(("o", s_, th))
            cc = "0" if s_ == 0 else v(40+4*th, 4)
            A(f"v_mfma_f32_16x16x32_bf16 {v(40+4*th,4)}, {v(vLD+4*s_,4)}, {v(FO+12*th+4*b,4)}, {cc}")
    A("s_lshl_b32 s17, s15, 11")
    A(f"s_add_u32 s17, s17, {L_PC}")
    A(f"v_add_u32 v13, s17, v{vL16}")
    A("v_lshlrev_b32 v15, 11, v4")
    A("v_lshl_add_u32 v15, v5, 3, v15")
    A("s_lshl_b32 s18, s12, 16")
    A("s_lshl_b32 s19, s13, 8")
    A("s_add_u32 s18, s18, s19")
    A("s_lshl_b32 s19, s15, 5")
    A("s_add_u32 s18, s18, s19")
    A("s_add_u32 s18, s18, 1024")
    A("s_nop 3")
    A("s_cmp_eq_u32 s16, 0")
    A("s_cbranch_scc1 TL_LO")
    A("ds_write_b128 v13, v[40:43]")
    A("ds_write_b128 v13, v[44:47] offset:1024")
    A("s_waitcnt lgkmcnt(0)")
    A("s_barrier")
    A("s_cmp_eq_u32 s2, 0")
    A("s_cbranch_scc0 TL_END")
    A("s_cmp_eq_u32 s3, 8")
    A("s_cbranch_scc0 TL_END")
    A(f"s_mov_b32 s17, {WS_EP}")
    flag_store(A, 17, 12, 13)
    A("s_branch TL_END")
    A.label("TL_LO")
    A("s_barrier")
    A("ds_read_b128 v[16:19], v13")
    A("ds_read_b128 v[20:23], v13 offset:1024")
    srd(A, 4, SP['out'], 2048*1024*2)
    A("s_waitcnt lgkmcnt(0)")
    for i in range(8):
        A(f"v_add_f32 v{40+i}, v{40+i}, v{16+i}")
    for th in range(2):
        A(f"v_cvt_pk_bf16_f32 v{48+2*th}, v{40+4*th}, v{41+4*th}")
        A(f"v_cvt_pk_bf16_f32 v{49+2*th}, v{42+4*th}, v{43+4*th}")
    A(f"buffer_store_dwordx2 v[48:49], v15, s[4:7], s18 offen")
    A("s_add_u32 s18, s18, 32768")
    A(f"buffer_store_dwordx2 v[50:51], v15, s[4:7], s18 offen")
    A.label("TL_END")

def gen():
    A = Asm()
    kernel_begin(A, NAME)
    if PROF:
        A("v_mov_b32 v125, 0")
        A("s_memrealtime s[38:39]")
    stamp(A, 0)
    A("s_cmp_ge_u32 s2, 256")
    A("s_cbranch_scc1 K_END")
    A("s_load_dwordx16 s[64:79], s[0:1], 0")
    A("s_load_dwordx8 s[80:87], s[0:1], 64")
    A("s_load_dwordx2 s[88:89], s[0:1], 96")
    A("v_lshrrev_b32 v8, 6, v0")
    A("v_and_b32 v0, 63, v0")
    A("v_readfirstlane_b32 s3, v8")
    A(f"v_lshlrev_b32 v{vL16}, 4, v0")
    p1_ids(A)
    A("s_cmp_eq_u32 s3, 12")
    A("s_cbranch_scc0 E_NZ")
    A("v_lshlrev_b32 v20, 2, v0")
    A(f"v_add_u32 v20, {L_CNT}, v20")
    A("v_mov_b32 v24, 0")
    A("ds_write_b32 v20, v24")
    A.label("E_NZ")
    A("v_mov_b32 v9, 0")
    A("s_waitcnt lgkmcnt(0)")
    A("s_barrier")
    if PROF: A("s_mov_b32 s91, s38")
    srd(A, sWS, SP['ws'], WS_TOTAL)
    A(f"s_mov_b32 s16, {WS_EP}")
    A(f"buffer_load_dword v{vE}, v9, {WSRD}, s16 offen sc1")
    A("s_cmp_lt_u32 s3, 4")
    A("s_cbranch_scc1 R_COMPUTE")
    A("s_cmp_ge_u32 s3, 12")
    A("s_cbranch_scc1 R_KGEN")
    p1_loader(A)
    A("s_branch R_JOIN")
    A.label("R_KGEN")
    kgen(A)
    A("s_branch R_LD")
    A.label("R_COMPUTE")
    p1_compute(A)
    A.label("R_LD")
    ld_group(A)
    A.label("R_JOIN")
    attention(A)
    tail(A)
    A.label("K_FIN")
    stamp(A, 50)
    A("s_waitcnt vmcnt(0)")
    stamp(A, 51)
    write_stamps(A)
    A.label("K_END")
    A("s_endpgm")
    attention_fallback(A)
    A(".p2align 6")
    A(".type GTAB,@object")
    A.label("GTAB")
    t = gather_table()
    for i in range(0, 2048, 16):
        A(".long " + ", ".join(str(int(x)) for x in t[i:i+16]))
    A(".size GTAB, 8192")
    hdr_src = open("concat_heads__ssm_conv_s4d__mha_block__prompt.s.ref").read().split("\n")
    hdr = [l for l in hdr_src if l.startswith(";") and "@launch" not in l and "Override launch" not in l and "grid=ceil" not in l]
    out = "\n".join(hdr) + "\n; @launch grid=(256,1,1) block=(1024,1,1) lds=163840\n"
    out += '.amdgcn_target "amdgcn-amd-amdhsa--gfx950"\n'
    out += A.text() + kernel_desc(NAME, 128, 100)
    return out

if __name__ == "__main__":
    open(sys.argv[1] if len(sys.argv) > 1 else "fused.s", "w").write(gen())
```

```python
import os, struct, sys
from asmlib import *
from ssm_common import gather_table

NAME = "concat_heads__ssm_conv_s4d__mha_block__prompt_kernel"
PROF = bool(os.environ.get("PROF"))

def f32bits(x): return struct.unpack("<I", struct.pack("<f", x))[0]
LOG2E = 1.4426950408889634
INV2PI = 0.15915494309189535
C_SCALE = 0.25 * LOG2E

WS_Q = 0x000000; WS_K = 0x200000; WS_V = 0x400000; WS_O = 0x600000
WS_UT = 0x800000
WS_WOF = 0xA00000
FS = 8
WS_F1 = 0xA80000
WS_F2 = 0xAC0000
WS_F3 = 0xB40000
WS_FU = 0xB50000
WS_EP = 0xB90000
WS_TOTAL = 0xBA0000
WS_PROF = 0x1000000
SP = dict(u=64, lar=66, aim=68, cre=70, cim=72, ldt=74, dsk=76, x=78, wqkv=80, wo=82, out=84, dbg=86, ws=88)
sWS = 44
WSRD = f"s[{sWS}:{sWS+3}]"
sT = 90
vL16 = 1
vE = 127

SLOT = 28672; NSLOT = 3; AHEAD = 2
L_TA = 86016; L_TBO = 11088; L_TCH = 27984
L_T = 141984
L_CNT = 147968
C_G = L_CNT; C_CV = L_CNT + 4; C_WO = L_CNT + 8; C_KR = L_CNT + 12
def C_RDY(c): return L_CNT + 16 + 4*c
def C_DONE(c): return L_CNT + 48 + 4*c
C_FU = L_CNT + 80; C_F1 = L_CNT + 84; C_F2 = L_CNT + 88; C_ISS = L_CNT + 92; C_T = L_CNT + 96; C_GU = L_CNT + 100; C_GT = L_CNT + 104; C_OWN = L_CNT + 108; C_OWN2 = L_CNT + 112
L_KREV = 148480; KREV_SZ = 7680
L_UTL = L_KREV
L_WOT = 86016
L_UC = 57344; UC_RHO = 4160; UC_CH = 16640
L_PART = 90624
L_QS = 49152
L_SCR = 131072
L_OT = 0
L_PC = 32768

class DSQ:
    def __init__(self, A): self.A = A; self.q = []
    def issue(self, tag): self.q.append(tag)
    def wait(self, tag):
        if tag not in self.q: return
        i = len(self.q) - 1 - self.q[::-1].index(tag)
        n = len(self.q) - 1 - i
        assert n <= 15, n
        self.A(f"s_waitcnt lgkmcnt({n})")
        self.q = self.q[i+1:]
    def room(self):
        if len(self.q) >= 15: self.wait(self.q[0])
    def drain(self):
        self.A("s_waitcnt lgkmcnt(0)"); self.q = []

def stamp(A, k):
    if PROF:
        A("s_memtime s[48:49]")
        A("s_waitcnt lgkmcnt(0)")
        A(f"v_writelane_b32 v125, s48, {k}")

def write_stamps(A):
    if not PROF: return
    A("s_memrealtime s[40:41]")
    A("s_waitcnt lgkmcnt(0)")
    A(f"v_writelane_b32 v125, s40, 62")
    A(f"v_writelane_b32 v125, s91, 63")
    A(f"s_add_u32 s92, s{SP['ws']}, {WS_PROF}")
    A(f"s_addc_u32 s93, s{SP['ws']+1}, 0")
    A("s_mov_b32 s94, 0x200000")
    A("s_mov_b32 s95, 0x00020000")
    A("s_lshl_b32 s42, s2, 4"); A("s_add_u32 s42, s42, s3"); A("s_lshl_b32 s42, s42, 8")
    A("v_lshlrev_b32 v16, 2, v0")
    A("buffer_store_dword v125, v16, s[92:95], s42 offen")
    A("s_waitcnt vmcnt(0)")

def poll(A, label, vaddr, soff, mask_lo, vtmp, sleep=4):
    A(f"s_mov_b32 s30, {mask_lo}")
    A("s_mov_b32 s31, 0")
    A("s_mov_b64 exec, s[30:31]")
    A("s_mov_b32 s29, 0")
    A.label(label)
    A(f"buffer_load_dword v{vtmp}, v{vaddr}, {WSRD}, s{soff} offen sc1")
    A("s_add_u32 s29, s29, 1")
    A("s_waitcnt vmcnt(0)")
    A(f"v_cmp_ne_u32 vcc, s{sT}, v{vtmp}")
    A("s_cmp_gt_u32 s29, 0x10000")
    A(f"s_cbranch_scc1 {label}_x")
    A(f"s_cbranch_vccz {label}_x")
    A(f"s_sleep {sleep}")
    A(f"s_branch {label}")
    A.label(label + "_x")
    A("s_mov_b64 exec, -1")

def check_or_poll(A, label, vaddr, soff, mask_lo, vflag):
    A(f"s_mov_b32 s30, {mask_lo}")
    A("s_mov_b32 s31, 0")
    A(f"v_cmp_ne_u32 vcc, s{sT}, v{vflag}")
    A("s_nop 1")
    A("s_and_b64 vcc, vcc, s[30:31]")
    A(f"s_cbranch_vccz {label}_ok")
    poll(A, label, vaddr, soff, mask_lo, vflag)
    A.label(label + "_ok")

def flag_store(A, soff, vtmp, vzero):
    A(f"v_mov_b32 v{vtmp}, s{sT}")
    A(f"v_mov_b32 v{vzero}, 0")
    A("s_mov_b64 exec, 1")
    A(f"buffer_store_dword v{vtmp}, v{vzero}, {WSRD}, s{soff} offen sc1")
    A("s_mov_b64 exec, -1")

def get_tag(A, vt=126):
    L = A.newlabel("GT")
    A(f"v_mov_b32 v{vt}, {C_T}")
    A("s_mov_b32 s43, 0")
    A.label(L)
    A(f"ds_read_b32 v{vE}, v{vt}")
    A("s_add_u32 s43, s43, 1")
    A("s_waitcnt lgkmcnt(0)")
    A(f"v_readfirstlane_b32 s{sT}, v{vE}")
    A("s_cmp_gt_u32 s43, 0x80000")
    A(f"s_cbranch_scc1 {L}_x")
    A(f"s_cmp_eq_u32 s{sT}, 0")
    A(f"s_cbranch_scc1 {L}")
    A.label(L + "_x")

def make_tag(A):
    A(f"v_readfirstlane_b32 s{sT}, v{vE}")
    A("s_nop 3")
    A(f"s_mul_i32 s{sT}, s{sT}, 0x9e3779b1")
    A(f"s_add_u32 s{sT}, s{sT}, 0x7f4a7c15")
    A(f"s_or_b32 s{sT}, s{sT}, 1")
    A(f"v_mov_b32 v{vE}, s{sT}")
    A(f"v_mov_b32 v126, {C_T}")
    A(f"ds_write_b32 v126, v{vE}")

def gsync(A, cnt_addr, target, vt):
    A("s_waitcnt lgkmcnt(0)")
    lsig(A, cnt_addr, vt)
    lwait(A, cnt_addr, target, vt, sleep=1)

def lsig(A, addr, vt):
    A(f"v_mov_b32 v{vt}, {addr}")
    A(f"v_mov_b32 v{vt+1}, 1")
    A("s_mov_b64 exec, 1")
    A(f"ds_add_u32 v{vt}, v{vt+1}")
    A("s_mov_b64 exec, -1")

def lwait(A, addr, target, vt, sleep=0):
    L = A.newlabel("LW")
    A(f"v_mov_b32 v{vt}, {addr}")
    A("s_mov_b32 s43, 0")
    A.label(L)
    A(f"ds_read_b32 v{vt+1}, v{vt}")
    A("s_add_u32 s43, s43, 1")
    A("s_waitcnt lgkmcnt(0)")
    A(f"v_readfirstlane_b32 s42, v{vt+1}")
    A("s_cmp_gt_u32 s43, 0x80000")
    A(f"s_cbranch_scc1 {L}_x")
    A(f"s_cmp_ge_u32 s42, {target}")
    if sleep:
        A(f"s_cbranch_scc1 {L}_x")
        A(f"s_sleep {sleep}")
        A(f"s_branch {L}")
    else:
        A(f"s_cbranch_scc0 {L}")
    A.label(L + "_x")

def merge(*chains):
    out = []; idx = [0] * len(chains)
    while any(idx[i] < len(chains[i]) for i in range(len(chains))):
        for i, ch in enumerate(chains):
            if idx[i] < len(ch):
                out.append(ch[idx[i]]); idx[i] += 1
    return out

class Rec:
    def __init__(self): self.L = []
    def __call__(self, s): self.L.append(s)

def chan_pair(A, dst, tmp):
    A(f"s_and_b32 s{dst}, s2, 7"); A(f"s_lshl_b32 s{dst}, s{dst}, 5"); A(f"s_lshr_b32 s{tmp}, s2, 3")
    A(f"s_add_u32 s{dst}, s{dst}, s{tmp}"); A(f"s_lshl_b32 s{dst}, s{dst}, 1")

def ka_wait(A):
    A("s_waitcnt lgkmcnt(0)")
    if PROF: A("s_mov_b32 s91, s38")
    srd(A, sWS, SP['ws'], WS_TOTAL)

def p1_ids(A):
    A("s_and_b32 s17, s2, 7")
    A("s_lshr_b32 s18, s2, 3")
    A("s_and_b32 s12, s17, 3")
    A("s_lshl_b32 s12, s12, 2")
    A("s_and_b32 s19, s18, 3")
    A("s_add_u32 s12, s12, s19")
    A("s_lshr_b32 s13, s17, 2")
    A("s_lshl_b32 s13, s13, 3")
    A("s_lshr_b32 s19, s18, 2")
    A("s_add_u32 s13, s13, s19")

def conv_part(A, p, vUA, vKB0, vKB1, ACC0, ACC1):
    ks = list({0: range(0, 24), 1: range(24, 48), 2: range(48, 80), 3: range(80, 128)}[p])
    q = DSQ(A)
    NB = 4
    FA, FB0, FB1 = 8, 24, 40
    def rd(i):
        k = ks[i]; b = i % NB
        A(f"ds_read_b64 {v(FA+4*b,2)}, v{vUA} offset:{32*k}"); q.issue(("a0", i))
        A(f"ds_read_b64 {v(FA+4*b+2,2)}, v{vUA} offset:{32*k+8}"); q.issue(("a1", i))
        off = (k//2)*80 + (k%2)*32
        A(f"ds_read_b128 {v(FB1+4*b,4)}, v{vKB1} offset:{off}"); q.issue(("b1", i))
        if k < 64:
            A(f"ds_read_b128 {v(FB0+4*b,4)}, v{vKB0} offset:{off}"); q.issue(("b0", i))
    n = len(ks)
    for i in range(min(NB-1, n)): rd(i)
    first0 = first1 = True
    for i in range(n):
        if i + NB - 1 < n: rd(i + NB - 1)
        k = ks[i]; b = i % NB
        q.wait(("b1", i))
        A(f"v_mfma_f32_32x32x16_bf16 {v(ACC1,16)}, {v(FA+4*b,4)}, {v(FB1+4*b,4)}, {'0' if first1 else v(ACC1,16)}"); first1 = False
        if k < 64:
            q.wait(("b0", i))
            A(f"v_mfma_f32_32x32x16_bf16 {v(ACC0,16)}, {v(FA+4*b,4)}, {v(FB0+4*b,4)}, {'0' if first0 else v(ACC0,16)}"); first0 = False

vY = [90, 91, 126, 127]

def p1_loader(A):
    vDX, vDX1, vDW = 2, 3, 5
    A("s_sub_u32 s15, s3, 4")
    A("s_and_b32 s16, s15, 3")
    A("v_lshrrev_b32 v9, 3, v0")
    A("v_lshrrev_b32 v10, 1, v9")
    A("v_xor_b32 v10, v10, v0")
    A("v_and_b32 v10, 7, v10")
    A("v_lshlrev_b32 v10, 4, v10")
    A(f"v_lshl_add_u32 v{vDX}, v9, 10, v10")
    A(f"v_xor_b32 v{vDX1}, 64, v{vDX}")
    A("s_lshl_b32 s20, s12, 17")
    A("s_lshl_b32 s17, s16, 15")
    A("s_add_u32 s20, s20, s17")
    A("s_lshl_b32 s21, s13, 6")
    A("s_lshl_b32 s22, s16, 12")
    A("s_mul_i32 s23, s16, 3072")
    A("s_add_u32 s23, s23, 16384")
    A("s_lshr_b32 s25, s2, 5")
    A("s_lshr_b32 s17, s2, 3")
    A("s_and_b32 s17, s17, 3")
    A("s_lshl_b32 s17, s17, 1")
    A("s_add_u32 s25, s25, s17")
    A("s_waitcnt lgkmcnt(0)")
    srd(A, 4, SP['x'], 2048*512*2)
    srd(A, 8, SP['wqkv'], 512*1536*2)
    def issue_x(c):
        slot = (c % NSLOT) * SLOT
        A(f"s_add_u32 s26, s25, {c}")
        A("s_and_b32 s26, s26, 7")
        A(f"s_lshl_b32 s24, s26, 7")
        A(f"s_add_u32 s24, s24, s20")
        A(f"s_mul_i32 s27, s26, {64*3072}")
        A(f"s_add_u32 s27, s27, s21")
        for i in range(4):
            A(f"s_add_u32 m0, s22, {slot + i*1024}")
            if i: A(f"s_add_u32 s24, s24, 8192")
            else: A("s_nop 0")
            A(f"buffer_load_dwordx4 v{vDX1 if i % 2 else vDX}, s[4:7], s24 offen lds")
    def issue_w(c):
        slot = (c % NSLOT) * SLOT
        for i in range(3):
            A(f"s_add_u32 m0, s23, {slot + i*1024}")
            A("s_nop 0")
            A(f"buffer_load_dwordx4 v{vDW+i}, s[8:11], s27 offen lds")
    def wsetup():
        A("s_mul_i32 s17, s16, 192")
        A("s_movk_i32 s18, 3072")
        A("s_mov_b32 s19, 43691")
        for i in range(3):
            A(f"v_add_u32 v9, s17, v0")
            if i: A(f"v_add_u32 v9, {64*i}, v9")
            A("v_mul_u32_u24 v10, s19, v9")
            A("v_lshrrev_b32 v10, 19, v10")
            A("v_mul_u32_u24 v11, 12, v10")
            A("v_sub_u32 v11, v9, v11")
            A("v_lshrrev_b32 v12, 2, v10")
            A("v_and_b32 v12, 2, v12")
            A("v_xor_b32 v11, v11, v12")
            A("v_lshrrev_b32 v12, 2, v11")
            A("v_and_b32 v11, 3, v11")
            A("v_lshlrev_b32 v11, 4, v11")
            A("v_lshl_add_u32 v11, v12, 10, v11")
            A(f"v_mad_u32_u24 v{vDW+i}, v10, s18, v11")
    def ut_pre():
        ka_wait(A)
        chan_pair(A, 14, 17)
        A("s_lshr_b32 s28, s14, 4")
        A(f"s_lshl_b32 s28, s28, {5+FS}")
        A(f"s_add_u32 s28, s28, {WS_FU}")
        A(f"v_lshlrev_b32 v13, {FS}, v0")
        A("s_lshr_b32 s19, s15, 2")
        A("s_add_u32 s17, s14, s19")
        A("s_lshl_b32 s17, s17, 12")
        A(f"s_add_u32 s17, s17, {WS_UT}")
        A(f"s_add_u32 s32, s{SP['ws']}, s17"); A(f"s_addc_u32 s33, s{SP['ws']+1}, 0")
        A("s_mov_b32 s34, 4096"); A("s_mov_b32 s35, 0x00020000")
        A("s_and_b32 s18, s15, 3"); A("s_lshl_b32 s18, s18, 10")
        A(f"v_add_u32 v16, s18, v{vL16}")
        A("v_subrev_u32 v17, 16, v16")
        A("v_cmp_eq_u32 vcc, 0, v16")
        A("v_mov_b32 v18, 4096")
        A("s_nop 0")
        A("v_cndmask_b32 v17, v17, v18, vcc")
        get_tag(A)
    def ut_try():
        L = A.newlabel("CVT")
        A("s_cmp_eq_u32 s15, 0")
        A(f"s_cbranch_scc0 {L}")
        A("s_mov_b32 s30, -1"); A("s_mov_b32 s31, 0")
        A("s_mov_b64 exec, s[30:31]")
        A(f"buffer_load_dword v14, v13, {WSRD}, s28 offen sc1")
        A("s_waitcnt vmcnt(0)")
        A(f"v_cmp_ne_u32 vcc, s{sT}, v14")
        A("s_mov_b64 exec, -1")
        A(f"s_cbranch_vccnz {L}")
        lsig(A, C_FU, 30)
        A.label(L)
    def ut_loads():
        A("buffer_load_dwordx4 v[20:23], v17, s[32:35], 0 offen sc1")
        A("buffer_load_dwordx4 v[24:27], v16, s[32:35], 0 offen sc1")
    def ut_check():
        L = A.newlabel("CVC")
        A(f"v_mov_b32 v30, {C_FU}")
        A("ds_read_b32 v31, v30")
        A("s_waitcnt lgkmcnt(0)")
        A("v_readfirstlane_b32 s40, v31")
        A("s_nop 0")
        A("s_cmp_eq_u32 s40, 0")
        A(f"s_cbranch_scc1 {L}")
        ut_loads()
        A.label(L)
    def group(g):
        A(f"s_setprio {2 - g}")
        if g == 1: wsetup()
        for n, c in enumerate(range(g, 8, 2)):
            if n == 2: ut_pre(); ut_try()
            if n == 3: ut_check()
            if c >= 3: lwait(A, C_DONE(c - 3), 4, 30, sleep=1)
            if c == 1:
                A("s_barrier")
                lwait(A, C_ISS, 4, 30, sleep=1)
            issue_x(c)
            if g == 0 and n == 0: wsetup()
            if os.environ.get("X_LST"): stamp(A, 40 + 3*n)
            issue_w(c)
            if c == 0:
                A("s_barrier")
                lsig(A, C_ISS, 30)
            if os.environ.get("X_LST"): stamp(A, 41 + 3*n)
            A("s_waitcnt vmcnt(0)")
            if os.environ.get("X_LST"): stamp(A, 42 + 3*n)
            lsig(A, C_RDY(c), 30)
    A("s_cmp_ge_u32 s15, 4")
    A("s_cbranch_scc1 P1_LOADER1")
    group(0)
    A("s_branch P1_LOADER_END")
    A.label("P1_LOADER1")
    group(1)
    A.label("P1_LOADER_END")
    A("s_setprio 1")
    stamp(A, 28)
    if os.environ.get("X_P1ONLY"): A("s_branch K_FIN")
    A("s_cmp_lg_u32 s40, 0")
    A("s_cbranch_scc1 CV_HAVE")
    A("s_cmp_eq_u32 s15, 0")
    A("s_cbranch_scc0 CV_NOPOLL")
    poll(A, "CV_PU", 13, 28, "-1", 14, sleep=6)
    lsig(A, C_FU, 30)
    A.label("CV_NOPOLL")
    lwait(A, C_FU, 1, 30, sleep=2)
    ut_loads()
    A.label("CV_HAVE")
    A("s_lshr_b32 s16, s15, 2")
    stamp(A, 29)
    def copies(D, dest):
        T0, T1, T2 = 32, 36, 40
        for j in range(4): A(f"v_alignbit_b32 v{T0+j}, v{D+j+1}, v{D+j}, 16")
        for j in range(4): A(f"v_mov_b32 v{T1+j}, v{D+1+j}")
        for j in range(4): A(f"v_alignbit_b32 v{T2+j}, v{D+j+2}, v{D+j+1}, 16")
        A(f"ds_write_b128 v{dest}, {v(T0,4)}")
        A(f"ds_write_b128 v{dest}, {v(T1,4)} offset:{UC_RHO}")
        A(f"ds_write_b128 v{dest}, {v(T2,4)} offset:{2*UC_RHO}")
        A(f"ds_write_b128 v{dest}, {v(D+2,4)} offset:{3*UC_RHO}")
    A(f"s_mul_i32 s19, s16, {UC_CH}")
    A(f"s_add_u32 s19, s19, {L_UC + 48}")
    A("v_add_u32 v19, s19, v16")
    A("s_cmp_eq_u32 s18, 0")
    A("s_cbranch_scc0 CV_NOX")
    A("v_mov_b32 v28, 4096")
    A(f"v_mov_b32 v29, {255*16}")
    A("v_cmp_eq_u32 vcc, 3, v0")
    A("s_nop 1")
    A("v_cndmask_b32 v29, v28, v29, vcc")
    A("buffer_load_dwordx4 v[48:51], v29, s[32:35], 0 offen sc1")
    for j in range(4): A(f"v_mov_b32 v{52+j}, 0")
    A(f"v_mov_b32 v30, {259*16}")
    A(f"v_cndmask_b32 v30, v{vL16}, v30, vcc")
    A(f"s_sub_u32 s19, s19, 48")
    A("v_add_u32 v30, s19, v30")
    A.label("CV_NOX")
    lwait(A, C_DONE(5), 4, 44)
    lwait(A, C_KR, 4, 44)
    A("s_waitcnt vmcnt(0)")
    copies(20, 19)
    A("s_cmp_eq_u32 s18, 0")
    A("s_cbranch_scc0 CV_NOX2")
    A("s_mov_b64 exec, 15")
    copies(48, 30)
    A("s_mov_b64 exec, -1")
    A.label("CV_NOX2")
    A("v_and_b32 v9, 31, v0")
    A("v_lshrrev_b32 v10, 5, v0")
    A("v_and_b32 v11, 3, v9")
    A(f"v_mul_u32_u24 v11, {UC_RHO}, v11")
    A("v_lshrrev_b32 v12, 2, v9")
    A("v_lshl_add_u32 v11, v12, 3, v11")
    A("v_lshl_add_u32 v11, v10, 4, v11")
    A(f"s_mul_i32 s24, s16, {UC_CH}")
    A(f"s_add_u32 s24, s24, {L_UC}")
    A("v_add_u32 v4, s24, v11")
    A("v_sub_u32 v11, 63, v9")
    A("v_mul_u32_u24 v11, 80, v11")
    A("v_lshl_add_u32 v11, v10, 4, v11")
    A(f"s_mul_i32 s23, s16, {KREV_SZ}")
    A(f"s_add_u32 s23, s23, {L_KREV}")
    A("v_add_u32 v5, s23, v11")
    A("v_subrev_u32 v6, 2560, v5")
    A("s_and_b32 s24, s15, 3")
    A(f"s_mul_i32 s25, s16, 28672")
    A("s_lshl_b32 s26, s24, 12")
    A("s_add_u32 s25, s25, s26")
    A(f"s_add_u32 s25, s25, {L_PART}")
    A(f"v_add_u32 v7, s25, v{vL16}")
    gsync(A, C_CV, 8, 8)
    stamp(A, 30)
    ACC0, ACC1 = 56, 72
    for p in range(4):
        if p < 3:
            A(f"s_cmp_eq_u32 s24, {p}")
            A(f"s_cbranch_scc0 CV_P{p+1}")
        conv_part(A, p, 4, 5, 6, ACC0, ACC1)
        lwait(A, C_WO, 1, 8)
        A("s_nop 7")
        for qd in range(4):
            A(f"ds_write_b128 v7, {v(ACC1+4*qd,4)} offset:{qd*1024}")
        if p < 3:
            for qd in range(4):
                A(f"ds_write_b128 v7, {v(ACC0+4*qd,4)} offset:{16384 + qd*1024}")
            A("s_branch CV_PE")
            A.label(f"CV_P{p+1}")
    A.label("CV_PE")
    stamp(A, 31)
    gsync(A, C_CV, 16, 8)
    stamp(A, 32)
    A("s_lshl_b32 s26, s24, 10")
    A(f"s_add_u32 s26, s26, {L_PART}")
    A(f"v_add_u32 v4, s26, v{vL16}")
    A("s_cmp_eq_u32 s16, 0")
    A("s_cbranch_scc1 CV_F0")
    for c in range(2):
        for p in range(4):
            A(f"ds_read_b128 {v(16+16*c+4*p,4)}, v4 offset:{c*28672 + p*4096}")
    A("s_waitcnt lgkmcnt(0)")
    for c in range(2):
        for r in range(4):
            b = 16 + 16*c + r
            A(f"v_add_f32 v{b}, v{b}, v{b+4}"); A(f"v_add_f32 v{b+8}, v{b+8}, v{b+12}")
        for r in range(4):
            b = 16 + 16*c + r
            A(f"v_add_f32 v{b}, v{b}, v{b+8}")
    A("s_branch CV_F1")
    A.label("CV_F0")
    for c in range(2):
        for p in range(3):
            A(f"ds_read_b128 {v(16+16*c+4*p,4)}, v4 offset:{c*28672 + 16384 + p*4096}")
    A("s_waitcnt lgkmcnt(0)")
    for c in range(2):
        for r in range(4):
            b = 16 + 16*c + r
            A(f"v_add_f32 v{b}, v{b}, v{b+4}")
        for r in range(4):
            b = 16 + 16*c + r
            A(f"v_add_f32 v{b}, v{b}, v{b+8}")
    A.label("CV_F1")
    for r in range(4):
        A(f"v_cvt_pk_bf16_f32 v{vY[r]}, v{16+r}, v{32+r}")
    A("s_lshl_b32 s36, s16, 21")
    A("s_lshl_b32 s25, s24, 14")
    A("s_add_u32 s36, s36, s25")
    A("s_lshl_b32 s25, s14, 1")
    A("s_add_u32 s36, s36, s25")
    A("s_setprio 0")
    stamp(A, 33)

def p1_compute(A):
    vFR, vACC, vXA, vWA = 8, 64, 112, 118
    A("v_and_b32 v4, 15, v0")
    A("v_lshrrev_b32 v5, 4, v0")
    A("v_lshrrev_b32 v6, 1, v4")
    A("v_xor_b32 v6, v6, v5")
    A("v_lshlrev_b32 v6, 4, v6")
    A("v_lshl_add_u32 v6, v4, 7, v6")
    A("s_lshr_b32 s17, s3, 1")
    A("s_lshl_b32 s17, s17, 13")
    A(f"v_add_u32 v{vXA}, s17, v6")
    A(f"v_xor_b32 v{vXA+1}, 64, v{vXA}")
    A(f"v_add_u32 v{vXA+2}, {2*SLOT}, v{vXA}")
    A(f"v_add_u32 v{vXA+3}, {2*SLOT}, v{vXA+1}")
    A("v_lshrrev_b32 v6, 2, v4")
    A("v_lshl_add_u32 v6, v5, 3, v6")
    A("v_mul_u32_u24 v6, 192, v6")
    A("v_and_b32 v7, 3, v4")
    A("v_lshl_add_u32 v6, v7, 3, v6")
    A("s_and_b32 s17, s3, 1")
    A("v_xor_b32 v7, s17, v5")
    A("v_and_b32 v7, 1, v7")
    A(f"v_lshl_add_u32 v{vWA}, v7, 5, v6")
    A(f"v_add_u32 v{vWA+1}, {2*SLOT}, v{vWA}")
    A("s_and_b32 s18, s3, 1")
    A("s_lshl_b32 s19, s13, 1")
    A("s_add_u32 s18, s18, s19")
    A(f"s_lshl_b32 s16, s18, {5+FS}")
    A("s_lshl_b32 s18, s18, 16")
    A("s_lshr_b32 s19, s3, 1")
    A("s_lshl_b32 s24, s12, 1")
    A("s_add_u32 s24, s24, s19")
    A(f"s_lshl_b32 s25, s24, {FS}")
    A("s_add_u32 s16, s16, s25")
    A(f"s_add_u32 s16, s16, {WS_F1}")
    A("s_lshl_b32 s19, s24, 11")
    A("s_add_u32 s18, s18, s19")
    A(f"s_mov_b32 s17, 0x{f32bits(C_SCALE):08x}")
    A("s_setprio 3")
    q = DSQ(A)
    def fr(buf): return vFR + 28 * buf
    def rd_list(step):
        c, ks2 = step // 2, step % 2
        slot = c % NSLOT
        st, so = slot // 2, (slot % 2) * SLOT
        b = fr(step % 2)
        L = []
        for hf in range(2):
            L.append((f"ds_read_b64_tr_b16 {v(b+16+2*hf,2)}, v{vWA+st} offset:{so + 16384 + (32*ks2+4*hf)*192}", ("w", step, 0, hf)))
        for ti in range(4):
            L.append((f"ds_read_b128 {v(b+4*ti,4)}, v{vXA+2*st+ks2} offset:{so + ti*2048}", ("x", step, ti)))
        for gi in range(1, 3):
            for hf in range(2):
                L.append((f"ds_read_b64_tr_b16 {v(b+16+4*gi+2*hf,2)}, v{vWA+st} offset:{so + 16384 + (32*ks2+4*hf)*192 + 64*gi}", ("w", step, gi, hf)))
        return L
    def rd(step):
        for ins, tag in rd_list(step):
            A(ins); q.issue(tag)
    def mm(step, nxt=None):
        b = fr(step % 2)
        R = rd_list(nxt) if nxt is not None else []
        n = 0
        for gi in range(3):
            for ti in range(4):
                acc = vACC + (gi*4 + ti)*4
                X = v(b+4*ti, 4); W = v(b+16+4*gi, 4)
                cc = "0" if step == 0 else v(acc, 4)
                if gi == 0: q.wait(("x", step, ti))
                if ti == 0: q.wait(("w", step, gi, 1))
                if gi < 2: A(f"v_mfma_f32_16x16x32_bf16 {v(acc,4)}, {W}, {X}, {cc}")
                else:      A(f"v_mfma_f32_16x16x32_bf16 {v(acc,4)}, {X}, {W}, {cc}")
                if n < len(R):
                    A(R[n][0]); q.issue(R[n][1])
                n += 1
    ka_wait(A)
    kg_issue(A, 3, ('lar', 'aim'), 20)
    A(f"s_mul_i32 s21, s22, {L_TCH}")
    A("s_lshl_b32 s23, s24, 8")
    A("s_add_u32 s21, s21, s23")
    A(f"s_add_u32 s21, s21, {L_TA + L_TBO}")
    A("v_lshlrev_b32 v8, 2, v0")
    A("v_add_u32 v8, s21, v8")
    A("s_waitcnt lgkmcnt(0)")
    A("s_cmp_eq_u32 s22, 0")
    A("s_cselect_b32 s21, 16, 0")
    A("s_lshl_b32 s26, s26, s21"); A("s_and_b32 s26, s26, 0xffff0000")
    A("s_barrier")
    A("s_waitcnt vmcnt(0)")
    kg_setup(A, 26, 21, False)
    kg_bside(A, 8)
    A("s_waitcnt lgkmcnt(0)")
    lsig(A, C_G, 2)
    stamp(A, 9)
    lwait(A, C_RDY(0), 4, 2, sleep=2)
    stamp(A, 10)
    rd(0)
    for c in range(8):
        if c < 7:
            A(f"v_mov_b32 v2, {C_RDY(c + 1)}")
            A("ds_read_b32 v3, v2"); q.issue(("cnt", c))
        mm(2*c, 2*c + 1)
        q.drain()
        lsig(A, C_DONE(c), 4)
        if c < 7:
            L = A.newlabel("PC")
            A("v_readfirstlane_b32 s42, v3")
            A("s_nop 0")
            A("s_cmp_ge_u32 s42, 4")
            A(f"s_cbranch_scc1 {L}")
            lwait(A, C_RDY(c + 1), 4, 2, sleep=1)
            A.label(L)
            if c == 6: stamp(A, 17)
            mm(2*c + 1, 2*c + 2)
    mm(15)
    stamp(A, 1)
    T = vFR
    n = 0
    for gi, base in ((1, WS_K), (2, WS_V), (0, WS_Q)):
        if gi == 0:
            for ti in range(4):
                for r in range(4):
                    A(f"v_mul_f32 v{vACC+ti*4+r}, s17, v{vACC+ti*4+r}")
        for pair in range(2):
            a0 = vACC + (gi*4 + 2*pair)*4; a1 = a0 + 4
            t = T + 4 * n; n += 1
            A(f"v_cvt_pk_bf16_f32 v{t}, v{a0}, v{a0+1}")
            A(f"v_cvt_pk_bf16_f32 v{t+1}, v{a0+2}, v{a0+3}")
            A(f"v_cvt_pk_bf16_f32 v{t+2}, v{a1}, v{a1+1}")
            A(f"v_cvt_pk_bf16_f32 v{t+3}, v{a1+2}, v{a1+3}")
            A(f"s_add_u32 s24, s18, {base + pair*1024}")
            A("s_nop 0")
            op = "v_permlane32_swap_b32" if gi == 2 else "v_permlane16_swap_b32"
            A(f"{op} v{t}, v{t+2}")
            A(f"{op} v{t+1}, v{t+3}")
            A("s_nop 1")
            A(f"buffer_store_dwordx4 {v(t,4)}, v{vL16}, {WSRD}, s24 offen sc1")
    stamp(A, 18)
    A("s_waitcnt vmcnt(0)")
    get_tag(A)
    flag_store(A, 16, 2, 3)
    lsig(A, C_OWN, 2)
    A("s_setprio 0")
    stamp(A, 2)
    if os.environ.get("X_P1ONLY"): A("s_branch K_FIN")

def cmul(A, D, X, S, T):
    A(f"v_pk_mul_f32 {v(T,2)}, {v(X,2)}, {v(S,2)} op_sel:[0,0] op_sel_hi:[1,0]")
    A(f"v_pk_fma_f32 {v(D,2)}, {v(X,2)}, {v(S,2)}, {v(T,2)} op_sel:[1,1,0] op_sel_hi:[0,1,1] neg_lo:[0,1,0]")

def fl(p): return f"{float(p)!r}" if p in (1, 2, 4) else f"0x{f32bits(float(p)):08x}"
def anchor(A, D, p, vt2, vw, tmp, conj=False):
    A(f"v_mul_f32 v{tmp}, {fl(p)}, v{vt2}")
    A(f"v_mul_f32 v{tmp+1}, {fl(p)}, v{vw}")
    A(f"v_exp_f32 v{tmp}, v{tmp}")
    A(f"v_fract_f32 v{tmp+1}, v{tmp+1}")
    A(f"v_cos_f32 v{D}, v{tmp+1}")
    A(f"v_sin_f32 v{D+1}, v{tmp+1}")
    A("s_nop 0")
    A(f"v_mul_f32 v{D}, v{D}, v{tmp}")
    if conj: A(f"v_mul_f32_e64 v{D+1}, -v{D+1}, v{tmp}")
    else: A(f"v_mul_f32 v{D+1}, v{D+1}, v{tmp}")

def kg_issue(A, kw_sreg, names, s0):
    chan_pair(A, s0, s0+1)
    A(f"s_lshr_b32 s{s0+2}, s{kw_sreg}, 1")
    A(f"s_add_u32 s{s0+3}, s{s0}, s{s0+2}")
    A(f"s_lshl_b32 s{s0+3}, s{s0+3}, 8")
    A(f"s_and_b32 s{s0+4}, s{kw_sreg}, 1")
    A(f"s_lshl_b32 s{s0+5}, s{s0+4}, 7")
    A(f"s_add_u32 s{s0+3}, s{s0+3}, s{s0+5}")
    A("v_lshlrev_b32 v9, 1, v0")
    for i, nm in enumerate(names):
        srd(A, 4, SP[nm], 512*128*2)
        A(f"buffer_load_ushort v{10+i}, v9, s[4:7], s{s0+3} offen")
    A(f"s_lshl_b32 s{s0+1}, s{s0}, 1")
    A(f"s_add_u32 s{s0+8}, s{SP['ldt']}, s{s0+1}"); A(f"s_addc_u32 s{s0+9}, s{SP['ldt']+1}, 0")
    A(f"s_load_dword s{s0+6}, s[{s0+8}:{s0+9}], 0")
    if len(names) > 2:
        A(f"s_add_u32 s{s0+10}, s{SP['dsk']}, s{s0+1}"); A(f"s_addc_u32 s{s0+11}, s{SP['dsk']+1}, 0")
        A(f"s_load_dword s{s0+7}, s[{s0+10}:{s0+11}], 0")

def kg_setup(A, s_ldt, s_tmp, full):
    vt2, vw, vY0, tmp = 16, 17, 18, 20
    A(f"s_mov_b32 s{s_tmp}, 0x{f32bits(LOG2E):08x}")
    A(f"v_mov_b32 v{tmp}, s{s_ldt}")
    A(f"v_lshlrev_b32 v10, 16, v10")
    A(f"v_mul_f32 v{tmp}, s{s_tmp}, v{tmp}")
    A(f"v_mul_f32 v10, s{s_tmp}, v10")
    A(f"v_exp_f32 v{tmp}, v{tmp}")
    A(f"v_exp_f32 v10, v10")
    A(f"v_lshlrev_b32 v11, 16, v11")
    A(f"v_cvt_pk_bf16_f32 v{tmp}, v{tmp}, v10")
    if full: A(f"v_lshlrev_b32 v12, 16, v12")
    A(f"v_and_b32 v10, 0xffff0000, v{tmp}")
    A(f"v_lshlrev_b32 v{tmp}, 16, v{tmp}")
    if full: A(f"v_lshlrev_b32 v13, 16, v13")
    A(f"v_mul_f32 v10, v10, v{tmp}")
    A(f"v_mul_f32 v11, v11, v{tmp}")
    A(f"v_mul_f32 v{vt2}, 0x{f32bits(-LOG2E):08x}, v10")
    A(f"v_mul_f32 v{vw}, 0x{f32bits(INV2PI):08x}, v11")
    if full:
        A(f"v_add_f32 v{tmp}, v{tmp}, v{tmp}")
        A(f"v_mul_f32 v{vY0}, v12, v{tmp}")
        A(f"v_mul_f32_e64 v{vY0+1}, -v13, v{tmp}")

def kg_bside(A, vaddr):
    vt2, vw = 16, 17
    X = [24, 26, 28, 30]; S16, S32 = 32, 34
    anchor(A, X[1], 8, vt2, vw, 36)
    A(f"v_mov_b32 v{X[0]}, 1.0"); A(f"v_mov_b32 v{X[0]+1}, 0")
    cmul(A, X[2], X[1], X[1], 36)
    cmul(A, X[3], X[1], X[2], 38)
    cmul(A, S32, X[2], X[2], 40)
    ch = [Rec() for _ in range(4)]
    for j in range(4):
        for b in range(j, 32, 4):
            p_ = 50 + 2*j + (b // 4) % 2
            ch[j](f"v_cvt_pk_bf16_f32 v{p_}, v{X[j]}, v{X[j]+1}")
            if b + 4 < 32: cmul(ch[j], X[j], X[j], S32, 42 + 2*j)
            ch[j](f"ds_write_b32 v{vaddr}, v{p_} offset:{b*528}")
    for ins in merge(*[c.L for c in ch]): A(ins)

def kgen(A):
    A("s_setprio 3")
    ka_wait(A)
    A("s_sub_u32 s15, s3, 12")
    A("s_cmp_eq_u32 s15, 0")
    A("s_cbranch_scc0 KG_NE")
    A(f"s_mov_b32 s16, {WS_EP}")
    A("v_mov_b32 v9, 0")
    A("s_mov_b64 exec, 1")
    A(f"buffer_load_dword v{vE}, v9, {WSRD}, s16 offen sc1")
    A("s_mov_b64 exec, -1")
    A.label("KG_NE")
    kg_issue(A, 15, ('lar', 'aim', 'cre', 'cim'), 20)
    A("s_mov_b32 s14, s20"); A("s_mov_b32 s16, s22"); A("s_mov_b32 s18, s24")
    A(f"s_mul_i32 s20, s16, {L_TCH}")
    A("s_lshl_b32 s21, s18, 8")
    A("s_add_u32 s20, s20, s21")
    A(f"s_add_u32 s20, s20, {L_TA}")
    A("v_lshlrev_b32 v15, 2, v0")
    A("v_add_u32 v15, s20, v15")
    A("v_lshrrev_b32 v14, 3, v0")
    A("v_lshlrev_b32 v14, 10, v14")
    A("v_and_b32 v21, 7, v0")
    A("v_lshl_add_u32 v14, v21, 4, v14")
    A("s_lshr_b32 s19, s2, 3"); A("s_lshl_b32 s19, s19, 16")
    A("s_lshl_b32 s17, s15, 14")
    A("s_add_u32 s19, s19, s17")
    A("s_and_b32 s17, s2, 7"); A("s_lshl_b32 s17, s17, 7")
    A("s_add_u32 s19, s19, s17")
    A("s_waitcnt lgkmcnt(0)")
    A("s_cmp_eq_u32 s16, 0")
    A("s_cselect_b32 s20, 16, 0")
    A("s_lshl_b32 s26, s26, s20"); A("s_and_b32 s26, s26, 0xffff0000")
    A("s_lshl_b32 s27, s27, s20"); A("s_and_b32 s27, s27, 0xffff0000")
    A("s_barrier")
    A("s_waitcnt vmcnt(0)")
    stamp(A, 20)
    A("s_cmp_eq_u32 s15, 0")
    A("s_cbranch_scc0 KG_NT")
    make_tag(A)
    A.label("KG_NT")
    srd(A, 4, SP['u'], 2048*512*2)
    A("s_lshl_b32 s20, s15, 11")
    A(f"s_add_u32 m0, s20, {L_UTL}")
    A("s_nop 0")
    A("buffer_load_dwordx4 v14, s[4:7], s19 offen lds")
    A(f"s_add_u32 m0, s20, {L_UTL + 1024}")
    A("s_add_u32 s19, s19, 8192")
    A("buffer_load_dwordx4 v14, s[4:7], s19 offen lds")
    A("s_getpc_b64 s[28:29]")
    A.label("KG_PC")
    A("s_add_u32 s28, s28, GTAB-KG_PC")
    A("s_addc_u32 s29, s29, 0")
    A("v_lshlrev_b32 v14, 5, v0")
    A("v_add_u32 v14, s20, v14")
    A("global_load_dwordx4 v[96:99], v14, s[28:29]")
    A("global_load_dwordx4 v[100:103], v14, s[28:29] offset:16")
    kg_setup(A, 26, 21, True)
    vt2, vw, vY0 = 16, 17, 18
    F1, F256, F2, F4, Y, Z, W = 24, 26, 28, 30, 32, 34, 36
    r2, r3 = Rec(), Rec()
    anchor(r2, F1, 1, vt2, vw, 48, conj=True)
    anchor(r3, F256, 256, vt2, vw, 50, conj=True)
    for ins in merge(r2.L, r3.L): A(ins)
    cmul(A, F2, F1, F1, 48)
    cmul(A, Z, vY0, F256, 50)
    cmul(A, F4, F2, F2, 48)
    ay, az, aw = Rec(), Rec(), Rec()
    cnt = {}
    def put(ch, base, reg, row):
        n_ = cnt.get(base, 0); cnt[base] = n_ + 1
        p = base + n_ % 2
        ch(f"v_cvt_pk_bf16_f32 v{p}, v{reg}, v{reg+1}")
        ch(f"ds_write_b32 v15, v{p} offset:{row*528}")
    put(ay, 60, vY0, 0)
    cmul(ay, Y, vY0, F1, 64); put(ay, 60, Y, 1)
    for r in range(2, 8):
        cmul(ay, Y, Y, F1, 64); put(ay, 60, Y, r)
    A(f"v_mov_b32 v{W}, v{Z}"); A(f"v_mov_b32 v{W+1}, v{Z+1}")
    put(aw, 68, W, 8)
    for r in (9, 10, 11):
        cmul(aw, W, W, F2, 70); put(aw, 68, W, r)
    V = 38
    cmul(az, Z, Z, F256, 66); put(az, 62, Z, 12)
    cmul(az, V, Z, F4, 72); put(az, 62, V, 13)
    cmul(az, Z, Z, F256, 66); put(az, 62, Z, 14)
    cmul(az, V, Z, F4, 72); put(az, 62, V, 15)
    for r in range(16, 21):
        cmul(az, Z, Z, F256, 66); put(az, 62, Z, r)
    for ins in merge(az.L, ay.L, aw.L): A(ins)
    A("s_waitcnt lgkmcnt(0)")
    lsig(A, C_G, 72)
    stamp(A, 21)
    A("s_waitcnt vmcnt(2)")
    gsync(A, C_GU, 4, 72)
    A("v_and_b32 v72, 15, v0")
    A("v_lshrrev_b32 v73, 4, v0")
    A("v_lshrrev_b32 v74, 2, v72")
    A("v_lshl_add_u32 v74, v73, 3, v74")
    A("v_lshlrev_b32 v74, 7, v74")
    A("v_and_b32 v75, 3, v72")
    A("v_lshl_add_u32 v74, v75, 3, v74")
    A("s_lshl_b32 s20, s15, 5")
    A(f"s_add_u32 s20, s20, {L_UTL}")
    A("v_add_u32 v74, s20, v74")
    for p in range(2):
        for hf in range(2):
            A(f"ds_read_b64_tr_b16 {v(76+4*p+2*hf,2)}, v74 offset:{(32*p+4*hf)*128}")
    A("v_lshlrev_b32 v75, 12, v72")
    A("v_lshl_add_u32 v75, v73, 4, v75")
    A("s_and_b32 s20, s2, 7"); A("s_lshl_b32 s20, s20, 2"); A("s_add_u32 s20, s20, s15")
    A(f"s_lshl_b32 s21, s20, {5+FS}")
    A("s_lshl_b32 s20, s20, 16")
    A("s_lshr_b32 s22, s2, 3")
    A("s_lshl_b32 s23, s22, 7")
    A("s_add_u32 s20, s20, s23")
    A(f"s_add_u32 s20, s20, {WS_UT}")
    A(f"s_lshl_b32 s23, s22, {FS}")
    A("s_add_u32 s21, s21, s23")
    A(f"s_add_u32 s21, s21, {WS_FU}")
    A("s_waitcnt lgkmcnt(0)")
    A(f"buffer_store_dwordx4 v[76:79], v75, {WSRD}, s20 offen sc1")
    A(f"buffer_store_dwordx4 v[80:83], v75, {WSRD}, s20 offen offset:64 sc1")
    A(f"s_setprio {os.environ.get('GPRIO', 1)}")
    get_tag(A)
    stamp(A, 24)
    lwait(A, C_G, 8, 72, sleep=1)
    stamp(A, 22)
    A("v_and_b32 v9, 15, v0")
    A("v_lshrrev_b32 v10, 4, v0")
    A("v_mul_u32_u24 v11, 528, v9")
    A("v_lshl_add_u32 v11, v10, 4, v11")
    A(f"s_mul_i32 s20, s16, {L_TCH}")
    A(f"s_add_u32 s20, s20, {L_TA}")
    A(f"s_mul_i32 s22, s18, {16*528}")
    A("s_add_u32 s22, s22, s20")
    A("v_add_u32 v12, s22, v11")
    A(f"s_add_u32 s20, s20, {L_TBO}")
    A("v_add_u32 v13, s20, v11")
    q = DSQ(A)
    FA_, FB_ = 16, [48, 104 - 24]
    B1 = [80, 84, 88, 92, 104, 108, 112, 116]
    for s_ in range(8):
        q.room(); A(f"ds_read_b128 {v(16+4*s_,4)}, v12 offset:{s_*64}"); q.issue(("a", s_))
        q.room(); A(f"ds_read_b128 {v(48+4*s_,4)}, v13 offset:{s_*64}"); q.issue(("b0", s_))
        q.room(); A(f"ds_read_b128 {v(B1[s_],4)}, v13 offset:{16*528 + s_*64}"); q.issue(("b1", s_))
    for s_ in range(8):
        q.wait(("b0", s_))
        A(f"v_mfma_f32_16x16x32_bf16 v[120:123], {v(16+4*s_,4)}, {v(48+4*s_,4)}, {'0' if s_==0 else 'v[120:123]'}")
        q.wait(("b1", s_))
        A(f"v_mfma_f32_16x16x32_bf16 v[4:7], {v(16+4*s_,4)}, {v(B1[s_],4)}, {'0' if s_==0 else 'v[4:7]'}")
    A("s_lshl_b32 s20, s16, 11")
    A("s_lshl_b32 s22, s18, 10")
    A("s_add_u32 s20, s20, s22")
    A(f"s_add_u32 s20, s20, {L_T}")
    A("v_lshlrev_b32 v14, 8, v10")
    A("v_lshl_add_u32 v14, v9, 1, v14")
    A("v_add_u32 v14, s20, v14")
    A("s_cmp_eq_u32 s18, 0")
    A("s_cselect_b32 s27, s27, 0")
    A("v_cmp_eq_u32 vcc, 0, v0")
    A("v_mov_b32 v15, s27")
    A("s_nop 3")
    A("v_cndmask_b32 v15, 0, v15, vcc")
    A("v_add_f32 v120, v120, v15")
    for ct, b in enumerate((120, 4)):
        A(f"v_cvt_pk_bf16_f32 v{16+2*ct}, v{b}, v{b+1}")
        A(f"v_cvt_pk_bf16_f32 v{17+2*ct}, v{b+2}, v{b+3}")
        A(f"ds_write_b16 v14, v{16+2*ct} offset:{32*ct}")
        A(f"ds_write_b16_d16_hi v14, v{16+2*ct} offset:{32*ct+64}")
        A(f"ds_write_b16 v14, v{17+2*ct} offset:{32*ct+128}")
        A(f"ds_write_b16_d16_hi v14, v{17+2*ct} offset:{32*ct+192}")
    A("s_waitcnt vmcnt(0)")
    A("s_setprio 3")
    flag_store(A, 21, 14, 15)
    A(f"s_setprio {os.environ.get('GPRIO', 1)}")
    gsync(A, C_GT, 4, 72)
    stamp(A, 23)
    A("s_cmp_eq_u32 s15, 0")
    A("s_cbranch_scc0 KG_NOWO")
    srd(A, 4, SP['wo'], 512*512*2)
    A("s_and_b32 s20, s2, 7"); A("s_lshl_b32 s20, s20, 16")
    A("s_lshr_b32 s22, s2, 3"); A("s_lshl_b32 s22, s22, 5")
    A("s_add_u32 s20, s20, s22")
    A("v_lshlrev_b32 v15, 10, v0")
    A("buffer_load_dwordx4 v[104:107], v15, s[4:7], s20 offen")
    A("buffer_load_dwordx4 v[108:111], v15, s[4:7], s20 offen offset:16")
    A.label("KG_NOWO")
    for e in range(8): A(f"v_add_u32 v{96+e}, {L_T}, v{96+e}")
    for c in range(2):
        for e in range(8):
            op = "ds_read_u16_d16_hi" if e % 2 else "ds_read_u16"
            A(f"{op} v{(32 if e % 2 else 16)+4*c+e//2}, v{96+e} offset:{c*2048}")
    A("s_lshl_b32 s20, s15, 6")
    A("v_add_u32 v9, s20, v0")
    A("v_lshrrev_b32 v10, 2, v9")
    A("v_mul_u32_u24 v10, 80, v10")
    A("v_and_b32 v9, 3, v9")
    A("v_lshl_add_u32 v10, v9, 4, v10")
    A(f"v_add_u32 v10, {L_KREV}, v10")
    for j in range(4): A(f"v_mov_b32 v{40+j}, 0")
    A(f"s_mul_i32 s20, s16, {KREV_SZ}")
    A(f"s_mul_i32 s22, s18, 1280")
    A("s_add_u32 s20, s20, s22")
    A(f"s_add_u32 s20, s20, {L_KREV + 64*80}")
    A(f"v_add_u32 v11, s20, v{vL16}")
    A("ds_write_b128 v11, v[40:43]")
    A("s_mov_b64 exec, 0xffff")
    A("ds_write_b128 v11, v[40:43] offset:1024")
    A("s_mov_b64 exec, -1")
    A("s_waitcnt lgkmcnt(10)")
    for j in range(4): A(f"v_or_b32 v{16+j}, v{16+j}, v{32+j}")
    A("s_waitcnt lgkmcnt(2)")
    for j in range(4): A(f"v_or_b32 v{20+j}, v{20+j}, v{36+j}")
    A("ds_write_b128 v10, v[16:19]")
    A(f"ds_write_b128 v10, v[20:23] offset:{KREV_SZ}")
    A("s_waitcnt lgkmcnt(0)")
    lsig(A, C_KR, 72)
    stamp(A, 25)
    A("s_setprio 0")
    A("s_cmp_eq_u32 s15, 0")
    A("s_cbranch_scc0 KG_NOWO3")
    lwait(A, C_KR, 4, 72)
    A("v_lshlrev_b32 v21, 5, v0")
    A(f"v_add_u32 v21, {L_T}, v21")
    A("v_and_b32 v22, 15, v0")
    A("v_lshrrev_b32 v23, 4, v0")
    A("v_lshrrev_b32 v24, 2, v22")
    A("v_lshl_add_u32 v24, v23, 3, v24")
    A("v_lshlrev_b32 v24, 5, v24")
    A("v_and_b32 v22, 3, v22")
    A("v_lshl_add_u32 v24, v22, 3, v24")
    A(f"v_add_u32 v24, {L_T}, v24")
    A("s_waitcnt vmcnt(0)")
    A("ds_write_b128 v21, v[104:107]")
    A("ds_write_b128 v21, v[108:111] offset:16")
    A("s_waitcnt lgkmcnt(0)")
    for s_ in range(2):
        for hf in range(2):
            A(f"ds_read_b64_tr_b16 {v(104+4*s_+2*hf,2)}, v24 offset:{(32*s_+4*hf)*32}")
    A("s_lshr_b32 s20, s2, 3"); A(f"s_lshl_b32 s22, s20, {3+FS}"); A("s_lshl_b32 s20, s20, 14")
    A("s_and_b32 s21, s2, 7"); A(f"s_lshl_b32 s23, s21, {FS}"); A("s_lshl_b32 s21, s21, 11")
    A("s_add_u32 s20, s20, s21")
    A(f"s_add_u32 s20, s20, {WS_WOF}")
    A("s_add_u32 s22, s22, s23")
    A(f"s_add_u32 s22, s22, {WS_F3}")
    A("s_waitcnt lgkmcnt(0)")
    lsig(A, C_WO, 72)
    A(f"buffer_store_dwordx4 v[104:107], v{vL16}, {WSRD}, s20 offen sc1")
    A(f"buffer_store_dwordx4 v[108:111], v{vL16}, {WSRD}, s20 offen offset:1024 sc1")
    A("s_waitcnt vmcnt(0)")
    flag_store(A, 22, 14, 15)
    A.label("KG_NOWO3")
    if os.environ.get("X_P1ONLY"): A("s_branch K_FIN")

vKA, vVA, vQ, vKF, vVF, vS, vP, vO, vM, vT = 2, 3, 4, 8, 16, 32, 64, 72, 88, 89
vLD = 92
vLW = 124
vLW2 = 89
NT = 32
SCHED = "e0 e1 PV1 RV e2 e3 c0 e4 e5 c1 QK RK e6 e7 c2 e8 e9 c3 e10 e11 PV0 c4 e12 e13 c5 e14 e15 c6 c7"
PRIO = {0: 3, 8: 2, 16: 1, 24: 0}

def attn_ids(A):
    A("s_and_b32 s12, s2, 7")
    A("s_lshl_b32 s12, s12, 2")
    A("s_lshr_b32 s13, s2, 3")
    A("s_and_b32 s17, s13, 3")
    A("s_add_u32 s12, s12, s17")
    A("s_lshr_b32 s13, s2, 5")
    A("s_lshl_b32 s17, s12, 16")

def ld_group(A):
    attn_ids(A)
    A("s_cmp_lt_u32 s3, 4")
    A("s_cselect_b32 s15, 0, 8")
    A("s_sub_u32 s15, s3, s15")
    A(f"v_lshlrev_b32 v10, {FS}, v0")
    A(f"s_lshl_b32 s27, s12, {5+FS}")
    A(f"s_add_u32 s27, s27, {WS_F1}")
    A("s_lshr_b32 s22, s15, 1")
    A("s_and_b32 s23, s15, 1"); A("s_lshl_b32 s23, s23, 1")
    A("s_and_b32 s25, s22, 1"); A("s_lshl_b32 s25, s25, 15")
    A("s_lshr_b32 s26, s22, 1"); A("s_lshl_b32 s26, s26, 21")
    A("s_add_u32 s25, s25, s26")
    A("s_lshl_b32 s26, s23, 10")
    A("s_add_u32 s25, s25, s26")
    A("s_add_u32 s25, s25, s17")
    A(f"s_add_u32 s25, s25, {WS_K}")
    A("s_lshl_b32 s24, s23, 12")
    A("s_lshl_b32 s26, s22, 10")
    A("s_add_u32 s24, s24, s26")
    A(f"v_add_u32 v11, s24, v{vL16}")
    A("s_lshl_b32 s18, s13, 3"); A("s_add_u32 s18, s18, s15"); A("s_lshl_b32 s18, s18, 10"); A("s_add_u32 s18, s18, s17")
    A("s_lshl_b32 s19, s15, 10"); A(f"s_add_u32 s19, s19, {L_QS}")
    A(f"v_add_u32 v12, s19, v{vL16}")
    A("s_cmp_eq_u32 s3, 13")
    A("s_cbranch_scc0 LD_NOPOLL")
    lwait(A, C_OWN, 4, 44, sleep=2)
    poll(A, "LD_POLL", 10, 27, "-1", 13, sleep=2)
    lsig(A, C_F1, 44)
    A.label("LD_NOPOLL")
    lwait(A, C_F1, 1, 44, sleep=1)
    stamp(A, 3)
    def rload(r, d0):
        A(f"s_add_u32 s26, s13, {r}")
        A("s_and_b32 s26, s26, 7")
        A("s_lshl_b32 s26, s26, 12")
        A("s_add_u32 s26, s26, s25")
        A(f"buffer_load_dwordx4 {v(d0,4)}, v{vL16}, {WSRD}, s26 offen sc1")
        A(f"buffer_load_dwordx4 {v(d0+4,4)}, v{vL16}, {WSRD}, s26 offen offset:1024 sc1")
    rload(0, 16)
    A(f"buffer_load_dwordx4 v[40:43], v{vL16}, {WSRD}, s18 offen sc1")
    rload(1, vLD)
    rload(2, vLD + 8)
    A(f"v_mov_b32 v{vLW2}, v11")
    lwait(A, C_DONE(7), 4, 44)
    A("s_waitcnt vmcnt(4)")
    A("ds_write_b128 v11, v[16:19]")
    A("ds_write_b128 v11, v[20:23] offset:4096")
    A("ds_write_b128 v12, v[40:43]")

def attention(A):
    attn_ids(A)
    A("s_mov_b32 s20, 0x0000ffff")
    A("s_mov_b32 s21, 0x0000ffff")
    A("s_and_b32 s15, s3, 7")
    A("s_lshr_b32 s16, s3, 3")
    A("s_lshl_b32 s19, s16, 10")
    A(f"v_add_u32 v{vKA}, s19, v{vL16}")
    A("v_lshrrev_b32 v8, 5, v0")
    A("v_lshlrev_b32 v8, 8, v8")
    A("v_and_b32 v9, 15, v0")
    A("v_lshlrev_b32 v9, 4, v9")
    A("s_add_u32 s19, s19, 2048")
    A(f"v_add3_u32 v{vVA}, v8, v9, s19")
    A("v_and_b32 v8, 31, v0")
    A("v_cmp_eq_u32 vcc, 16, v8")
    A("v_mov_b32 v9, 0x3f803f80")
    A("s_lshl_b32 s22, s15, 10"); A(f"s_add_u32 s22, s22, {L_QS}")
    A("v_cndmask_b32 v9, 0, v9, vcc")
    A(f"v_add_u32 v10, s22, v{vL16}")
    for i in range(16): A(f"v_mov_b32 v{vVF+i}, v9")
    A(f"v_mov_b32 v{vM}, 0")
    A("s_lshl_b32 s18, s13, 3")
    A("s_add_u32 s18, s18, s15")
    A(f"s_lshl_b32 s19, s18, {5+FS}")
    A(f"s_lshl_b32 s22, s12, {FS}")
    A("s_add_u32 s19, s19, s22")
    A(f"s_add_u32 s19, s19, {WS_F2}")
    A("s_lshl_b32 s18, s18, 10")
    A("s_add_u32 s18, s18, s17")
    A("s_lshr_b32 s22, s3, 2")
    A("s_and_b32 s23, s3, 3")
    A("s_lshl_b32 s24, s23, 12")
    A("s_lshl_b32 s26, s22, 10")
    A("s_add_u32 s24, s24, s26")
    A(f"v_add_u32 v{vLW}, s24, v{vL16}")
    A("s_and_b32 s25, s22, 1"); A("s_lshl_b32 s25, s25, 15")
    A("s_lshr_b32 s26, s22, 1"); A("s_lshl_b32 s26, s26, 21")
    A("s_add_u32 s25, s25, s26")
    A("s_lshl_b32 s23, s23, 10")
    A("s_add_u32 s25, s25, s23")
    A("s_add_u32 s25, s25, s17")
    A(f"s_add_u32 s25, s25, {WS_K}")
    A("s_lshr_b32 s37, s2, 3"); A("s_and_b32 s37, s37, 3"); A("s_lshl_b32 s37, s37, 3"); A("s_add_u32 s37, s37, s15")
    A("s_setprio 3")
    A("s_waitcnt lgkmcnt(0)")
    A("s_barrier")
    stamp(A, 4)
    A(f"ds_read_b128 {v(vQ,4)}, v10")
    q = DSQ(A)
    KF = lambda t: vKF + 4 * (t % 2)
    VF = lambda t, j: vVF + 8 * (t % 2) + 4 * j
    S = lambda t: vS + 16 * (t % 2)
    def rdK(t):
        A(f"ds_read_b128 {v(KF(t),4)}, v{vKA} offset:{(t%16)*4096}"); q.issue(("K", t))
    def rdV(t):
        A("s_mov_b64 exec, s[20:21]")
        A(f"ds_read_b128 {v(VF(t,0),4)}, v{vVA} offset:{(t%16)*4096}"); q.issue(("V0", t))
        A(f"ds_read_b128 {v(VF(t,1),4)}, v{vVA} offset:{(t%16)*4096+512}"); q.issue(("V1", t))
        A("s_mov_b64 exec, -1")
    def qk(t):
        q.wait(("K", t))
        A(f"v_mfma_f32_32x32x16_bf16 {v(S(t),16)}, {v(KF(t),4)}, {v(vQ,4)}, 0")
    def e(t, i): A(f"v_exp_f32 v{S(t)+i}, v{S(t)+i}")
    def c(t, k): A(f"v_cvt_pk_bf16_f32 v{vP+k}, v{S(t)+2*k}, v{S(t)+2*k+1}")
    def pv(t, j):
        cc = "0" if (t == 0 and j == 0) else v(vO, 16)
        A(f"v_mfma_f32_32x32x16_bf16 {v(vO,16)}, {v(VF(t,j),4)}, {v(vP+4*j,4)}, {cc}")
    rdK(0); rdK(1); rdV(0)
    qk(0)
    A("s_nop 7"); A("s_nop 3")
    for t in range(NT):
        A.comment(f"--- tile {t}")
        if t in PRIO: A(f"s_setprio {PRIO[t]}")
        for tok in SCHED.split():
            if tok[0] == 'e': e(t, int(tok[1:]))
            elif tok[0] == 'c': c(t, int(tok[1:]))
            elif tok == 'PV1':
                if t > 0: pv(t - 1, 1)
            elif tok == 'QK':
                if t + 1 < NT: qk(t + 1)
            elif tok == 'PV0':
                q.wait(("V1", t)); pv(t, 0)
            elif tok == 'RK':
                slot_of = {3: 4, 4: 5, 5: 6, 6: 7, 7: 0}
                if t == 2:
                    A("s_sub_u32 s26, s3, 4")
                    A("s_cmp_lt_u32 s26, 8")
                    A("s_cbranch_scc1 AT_NL")
                    A("s_waitcnt vmcnt(2)")
                    A(f"ds_write_b128 v{vLW2}, {v(vLD,4)} offset:16384")
                    A(f"ds_write_b128 v{vLW2}, {v(vLD+4,4)} offset:20480")
                    A(f"ds_write_b128 v{vLW2}, {v(vLD+8,4)} offset:32768")
                    A(f"ds_write_b128 v{vLW2}, {v(vLD+12,4)} offset:36864")
                    A.label("AT_NL")
                    A("s_waitcnt lgkmcnt(0)"); q.q = []
                    A("s_barrier")
                if t < 5:
                    r = 3 + t
                    A(f"s_add_u32 s26, s13, {r}")
                    A("s_and_b32 s26, s26, 7")
                    A("s_lshl_b32 s26, s26, 12")
                    A("s_add_u32 s26, s26, s25")
                    A(f"buffer_load_dwordx4 {v(vLD+4*slot_of[r],4)}, v{vL16}, {WSRD}, s26 offen sc1")
                if t == 9:
                    A("s_waitcnt vmcnt(0)")
                    A(f"ds_write_b128 v{vLW}, {v(vLD+4*slot_of[3],4)} offset:49152")
                    A(f"v_add_u32 v{vLW}, 65536, v{vLW}")
                    for r in range(4, 8):
                        A(f"ds_write_b128 v{vLW}, {v(vLD+4*slot_of[r],4)} offset:{r*16384 - 65536}")
                    A("s_waitcnt lgkmcnt(0)"); q.q = []
                    A("s_barrier")
                    A(f"v_lshlrev_b32 v{vT}, {FS}, v0")
                    A(f"s_lshl_b32 s26, s37, {3+FS}")
                    A(f"s_add_u32 s26, s26, {WS_F3}")
                    A("s_mov_b64 exec, 0xff")
                    A(f"buffer_load_dword v{vLW}, v{vT}, {WSRD}, s26 offen sc1")
                    A("s_mov_b64 exec, -1")
                if t == 11:
                    A("s_waitcnt vmcnt(0)")
                    check_or_poll(A, "AT_P3", vT, 26, "0xff", vLW)
                    A("s_lshl_b32 s27, s37, 14")
                    A("s_lshl_b32 s26, s16, 13")
                    A("s_add_u32 s27, s27, s26")
                    A(f"s_add_u32 s27, s27, {WS_WOF}")
                if 11 <= t < 19:
                    A(f"buffer_load_dwordx4 {v(vLD+4*(t-11),4)}, v{vL16}, {WSRD}, s27 offen sc1")
                    if t < 18: A("s_add_u32 s27, s27, 1024")
                if t == 20:
                    A("s_sub_u32 s26, s3, 4")
                    A("s_cmp_lt_u32 s26, 8")
                    A("s_cbranch_scc0 AT_NY0")
                    A(f"v_and_b32 v{vT}, 31, v0")
                    A(f"v_lshrrev_b32 v{vLW}, 5, v0")
                    A(f"v_lshlrev_b32 v{vT}, 16, v{vT}")
                    A(f"v_lshl_add_u32 v{vT}, v{vLW}, 13, v{vT}")
                    A.label("AT_NY0")
                    srd(A, 4, SP['out'], 2048*1024*2)
                if 21 <= t < 25:
                    r = t - 21
                    A("s_sub_u32 s26, s3, 4")
                    A("s_cmp_lt_u32 s26, 8")
                    A(f"s_cbranch_scc0 AT_NY{r+1}")
                    if r == 2: A("s_add_u32 s36, s36, 4096")
                    A(f"buffer_store_dword v{vY[r]}, v{vT}, s[4:7], s36 offen" + (" offset:2048" if r % 2 else ""))
                    A.label(f"AT_NY{r+1}")
                if t == 14:
                    A(f"v_add_u32 v{vKA}, 65536, v{vKA}")
                if t + 2 < NT: rdK(t + 2)
            elif tok == 'RV':
                if t == 15:
                    A(f"v_add_u32 v{vVA}, 65536, v{vVA}")
                if t + 1 < NT: rdV(t + 1)
            else: raise ValueError(tok)
    A("s_nop 1")
    pv(NT - 1, 1)
    A("s_nop 15")
    stamp(A, 5)
    A(f"v_mov_b32 v{vT}, v{vO+8}")
    A("s_nop 1")
    A(f"v_permlane32_swap_b32 v{vT}, v{vO+8}")
    A("s_nop 1")
    A(f"v_mov_b32 v{vO+8}, v{vT}")
    A("s_mov_b32 s28, 0x1f800000")
    A("s_mov_b32 s29, 0x5f800000")
    A(f"v_cmp_le_f32 vcc, s28, v{vO+8}")
    A(f"v_cmp_ge_f32 s[30:31], s29, v{vO+8}")
    A("s_nop 1")
    A("s_and_b64 vcc, vcc, s[30:31]")
    A("s_cmp_eq_u64 vcc, -1")
    A("s_cbranch_scc0 AT_FALLBACK")
    A.label("AT_COMBINE")
    A("s_lshl_b32 s17, s15, 11")
    A(f"s_add_u32 s17, s17, {L_SCR}")
    A(f"v_add_u32 v{vT}, s17, v{vL16}")
    A("v_lshlrev_b32 v12, 3, v0")
    A("s_lshl_b32 s17, s15, 9")
    A(f"s_add_u32 s17, s17, {L_KREV}")
    A(f"v_add_u32 v12, s17, v12")
    A("s_cmp_eq_u32 s16, 0")
    A("s_cbranch_scc1 AT_LOW")
    A(f"ds_write_b128 v{vT}, {v(vO,4)}")
    A(f"ds_write_b128 v{vT}, {v(vO+4,4)} offset:1024")
    A(f"v_mov_b32 v{vO+9}, v{vM}")
    A(f"ds_write_b64 v12, {v(vO+8,2)}")
    A("s_waitcnt lgkmcnt(0)")
    A("s_barrier")
    A("s_branch AT_DONE")
    A.label("AT_LOW")
    A("s_barrier")
    B = vS
    A(f"ds_read_b128 {v(B,4)}, v{vT}")
    A(f"ds_read_b128 {v(B+4,4)}, v{vT} offset:1024")
    A(f"ds_read_b64 {v(B+8,2)}, v12")
    A("s_waitcnt lgkmcnt(0)")
    t0, t1, t2 = 8, 9, 10
    A(f"v_max_f32 v{t0}, v{vM}, v{B+9}")
    A(f"v_sub_f32 v{t1}, v{vM}, v{t0}")
    A(f"v_sub_f32 v{t2}, v{B+9}, v{t0}")
    A(f"v_exp_f32 v{t1}, v{t1}")
    A(f"v_exp_f32 v{t2}, v{t2}")
    A("s_nop 0")
    for i in range(9):
        A(f"v_mul_f32 v{vO+i}, v{vO+i}, v{t1}")
    for i in range(9):
        A(f"v_fmac_f32 v{vO+i}, v{B+i}, v{t2}")
    A(f"v_rcp_f32 v{t0}, v{vO+8}")
    A("s_nop 0")
    for i in range(8):
        A(f"v_mul_f32 v{vO+i}, v{vO+i}, v{t0}")
    for k in range(4):
        A(f"v_cvt_pk_bf16_f32 v{vP+k}, v{vO+2*k}, v{vO+2*k+1}")
    A("s_nop 1")
    A(f"v_permlane32_swap_b32 v{vP}, v{vP+2}")
    A(f"v_permlane32_swap_b32 v{vP+1}, v{vP+3}")
    A(f"s_add_u32 s18, s18, {WS_O}")
    A("s_nop 1")
    A(f"buffer_store_dwordx4 {v(vP,4)}, v{vL16}, {WSRD}, s18 offen sc1")
    A("s_waitcnt vmcnt(0)")
    flag_store(A, 19, 12, 13)
    lsig(A, C_OWN2, 12)
    A.label("AT_DONE")
    stamp(A, 6)

def attention_fallback(A):
    A.label("AT_FALLBACK")
    A(f"v_mov_b32 v{vM}, 0xff800000")
    A(f"v_subrev_u32 v{vT}, 65536, v{vKA}")
    A("s_mov_b32 s17, 0")
    A.label("AT_FB1")
    A(f"ds_read_b128 {v(vKF,4)}, v{vT}")
    A(f"v_add_u32 v{vT}, 4096, v{vT}")
    A("s_waitcnt lgkmcnt(0)")
    A(f"v_mfma_f32_32x32x16_bf16 {v(vS,16)}, {v(vKF,4)}, {v(vQ,4)}, 0")
    A("s_nop 15")
    for k in range(8):
        A(f"v_max3_f32 v{vM}, v{vS+2*k}, v{vS+2*k+1}, v{vM}")
    A("s_add_u32 s17, s17, 1")
    A("s_cmp_lt_u32 s17, 32")
    A("s_cbranch_scc1 AT_FB1")
    A(f"v_mov_b32 v{vT}, v{vM}")
    A(f"v_mov_b32 v12, v{vM}")
    A("s_nop 1")
    A(f"v_permlane32_swap_b32 v{vT}, v12")
    A("s_nop 1")
    A(f"v_max_f32 v{vM}, v{vT}, v12")
    for i in range(16): A(f"v_mov_b32 v{vO+i}, 0")
    A(f"v_subrev_u32 v{vT}, 65536, v{vKA}")
    A(f"v_subrev_u32 v12, 65536, v{vVA}")
    A("s_mov_b32 s17, 0")
    A.label("AT_FB2")
    A(f"ds_read_b128 {v(vKF,4)}, v{vT}")
    A("s_mov_b64 exec, s[20:21]")
    A(f"ds_read_b128 {v(vVF,4)}, v12")
    A(f"ds_read_b128 {v(vVF+4,4)}, v12 offset:512")
    A("s_mov_b64 exec, -1")
    A(f"v_add_u32 v{vT}, 4096, v{vT}")
    A(f"v_add_u32 v12, 4096, v12")
    A("s_waitcnt lgkmcnt(0)")
    A(f"v_mfma_f32_32x32x16_bf16 {v(vS,16)}, {v(vKF,4)}, {v(vQ,4)}, 0")
    A("s_nop 15")
    for i in range(16): A(f"v_sub_f32 v{vS+i}, v{vS+i}, v{vM}")
    for i in range(16): A(f"v_exp_f32 v{vS+i}, v{vS+i}")
    A("s_nop 0")
    for k in range(8): A(f"v_cvt_pk_bf16_f32 v{vP+k}, v{vS+2*k}, v{vS+2*k+1}")
    A("s_nop 1")
    A(f"v_mfma_f32_32x32x16_bf16 {v(vO,16)}, {v(vVF,4)}, {v(vP,4)}, {v(vO,16)}")
    A(f"v_mfma_f32_32x32x16_bf16 {v(vO,16)}, {v(vVF+4,4)}, {v(vP+4,4)}, {v(vO,16)}")
    A("s_add_u32 s17, s17, 1")
    A("s_cmp_lt_u32 s17, 32")
    A("s_cbranch_scc1 AT_FB2")
    A("s_nop 15")
    A(f"v_mov_b32 v{vT}, v{vO+8}")
    A("s_nop 1")
    A(f"v_permlane32_swap_b32 v{vT}, v{vO+8}")
    A("s_nop 1")
    A(f"v_mov_b32 v{vO+8}, v{vT}")
    A("s_branch AT_COMBINE")

def tail(A):
    A("s_and_b32 s12, s2, 7"); A("s_lshl_b32 s12, s12, 3"); A("s_lshr_b32 s13, s2, 5"); A("s_add_u32 s12, s12, s13")
    A("s_lshr_b32 s13, s2, 3"); A("s_and_b32 s13, s13, 3")
    A("v_and_b32 v4, 15, v0")
    A("v_lshrrev_b32 v5, 4, v0")
    A("v_lshlrev_b32 v14, 9, v5")
    A("v_lshl_add_u32 v14, v4, 4, v14")
    A("s_lshl_b32 s17, s16, 14")
    A(f"s_add_u32 s17, s17, {L_OT}")
    A(f"v_add_u32 v14, s17, v14")
    A("s_cmp_eq_u32 s16, 0")
    A("s_cbranch_scc1 TL_WAIT")
    A(f"v_lshlrev_b32 v10, {FS}, v0")
    A(f"s_lshl_b32 s17, s12, {5+FS}")
    A(f"s_add_u32 s17, s17, {WS_F2}")
    A("s_cmp_eq_u32 s3, 8")
    A("s_cbranch_scc0 TL_NOPOLL")
    lwait(A, C_OWN2, 8, 12, sleep=1)
    poll(A, "TL_P2", 10, 17, "-1", 12, sleep=1)
    lsig(A, C_F2, 12)
    A.label("TL_NOPOLL")
    lwait(A, C_F2, 1, 12, sleep=1)
    stamp(A, 43)
    A("s_lshl_b32 s17, s15, 18")
    A("s_lshl_b32 s18, s12, 10")
    A("s_add_u32 s17, s17, s18")
    A(f"s_add_u32 s17, s17, {WS_O}")
    for i in range(4):
        A(f"buffer_load_dwordx4 {v(16+4*i,4)}, v{vL16}, {WSRD}, s17 offen sc1")
        if i < 3: A("s_add_u32 s17, s17, 65536")
    A("s_lshl_b32 s18, s15, 12")
    A(f"s_add_u32 s18, s18, {L_OT}")
    A(f"v_add_u32 v13, s18, v{vL16}")
    for i in range(4):
        A(f"s_waitcnt vmcnt({3-i})")
        A(f"ds_write_b128 v13, {v(16+4*i,4)} offset:{i*1024}")
    A.label("TL_WAIT")
    A("s_waitcnt vmcnt(0) lgkmcnt(0)")
    stamp(A, 44)
    A("s_barrier")
    stamp(A, 45)
    q = DSQ(A)
    FO = 16
    def rd(s_):
        b = s_ % 3
        for th in range(2):
            A(f"ds_read_b128 {v(FO+12*th+4*b,4)}, v14 offset:{s_*2048 + th*256}"); q.issue(("o", s_, th))
    rd(0); rd(1)
    for s_ in range(8):
        if s_ + 2 < 8: rd(s_ + 2)
        b = s_ % 3
        for th in range(2):
            q.wait(("o", s_, th))
            cc = "0" if s_ == 0 else v(40+4*th, 4)
            A(f"v_mfma_f32_16x16x32_bf16 {v(40+4*th,4)}, {v(vLD+4*s_,4)}, {v(FO+12*th+4*b,4)}, {cc}")
    A("s_lshl_b32 s17, s15, 11")
    A(f"s_add_u32 s17, s17, {L_PC}")
    A(f"v_add_u32 v13, s17, v{vL16}")
    A("v_lshlrev_b32 v15, 11, v4")
    A("v_lshl_add_u32 v15, v5, 3, v15")
    A("s_lshl_b32 s18, s12, 16")
    A("s_lshl_b32 s19, s13, 8")
    A("s_add_u32 s18, s18, s19")
    A("s_lshl_b32 s19, s15, 5")
    A("s_add_u32 s18, s18, s19")
    A("s_add_u32 s18, s18, 1024")
    A("s_nop 3")
    A("s_cmp_eq_u32 s16, 0")
    A("s_cbranch_scc1 TL_LO")
    A("ds_write_b128 v13, v[40:43]")
    A("ds_write_b128 v13, v[44:47] offset:1024")
    A("s_waitcnt lgkmcnt(0)")
    A("s_barrier")
    A("s_cmp_eq_u32 s2, 0")
    A("s_cbranch_scc0 TL_END")
    A("s_cmp_eq_u32 s3, 8")
    A("s_cbranch_scc0 TL_END")
    A(f"s_mov_b32 s17, {WS_EP}")
    flag_store(A, 17, 12, 13)
    A("s_branch TL_END")
    A.label("TL_LO")
    A("s_barrier")
    A("ds_read_b128 v[16:19], v13")
    A("ds_read_b128 v[20:23], v13 offset:1024")
    srd(A, 4, SP['out'], 2048*1024*2)
    A("s_waitcnt lgkmcnt(0)")
    for i in range(8):
        A(f"v_add_f32 v{40+i}, v{40+i}, v{16+i}")
    for th in range(2):
        A(f"v_cvt_pk_bf16_f32 v{48+2*th}, v{40+4*th}, v{41+4*th}")
        A(f"v_cvt_pk_bf16_f32 v{49+2*th}, v{42+4*th}, v{43+4*th}")
    A(f"buffer_store_dwordx2 v[48:49], v15, s[4:7], s18 offen")
    A("s_add_u32 s18, s18, 32768")
    A(f"buffer_store_dwordx2 v[50:51], v15, s[4:7], s18 offen")
    A.label("TL_END")

def gen():
    A = Asm()
    kernel_begin(A, NAME)
    if PROF:
        A("v_mov_b32 v125, 0")
        A("s_memrealtime s[38:39]")
    stamp(A, 0)
    A("s_cmp_ge_u32 s2, 256")
    A("s_cbranch_scc1 K_END")
    A("s_load_dwordx16 s[64:79], s[0:1], 0")
    A("s_load_dwordx8 s[80:87], s[0:1], 64")
    A("s_load_dwordx2 s[88:89], s[0:1], 96")
    A("v_lshrrev_b32 v8, 6, v0")
    A("v_and_b32 v0, 63, v0")
    A("v_readfirstlane_b32 s3, v8")
    A(f"v_lshlrev_b32 v{vL16}, 4, v0")
    p1_ids(A)
    A("s_cmp_eq_u32 s3, 12")
    A("s_cbranch_scc0 E_NZ")
    A("v_lshlrev_b32 v20, 2, v0")
    A(f"v_add_u32 v20, {L_CNT}, v20")
    A("v_mov_b32 v24, 0")
    A("ds_write_b32 v20, v24")
    A.label("E_NZ")
    A("s_cmp_lt_u32 s3, 4")
    A("s_cbranch_scc1 R_COMPUTE")
    A("s_cmp_ge_u32 s3, 12")
    A("s_cbranch_scc1 R_KGEN")
    p1_loader(A)
    A("s_branch R_JOIN")
    A.label("R_KGEN")
    kgen(A)
    A("s_branch R_LD")
    A.label("R_COMPUTE")
    p1_compute(A)
    A.label("R_LD")
    ld_group(A)
    A.label("R_JOIN")
    attention(A)
    tail(A)
    A.label("K_FIN")
    stamp(A, 50)
    A("s_waitcnt vmcnt(0)")
    stamp(A, 51)
    write_stamps(A)
    A.label("K_END")
    A("s_endpgm")
    attention_fallback(A)
    A(".p2align 6")
    A(".type GTAB,@object")
    A.label("GTAB")
    t = gather_table()
    for i in range(0, 2048, 16):
        A(".long " + ", ".join(str(int(x)) for x in t[i:i+16]))
    A(".size GTAB, 8192")
    hdr_src = open("concat_heads__ssm_conv_s4d__mha_block__prompt.s.ref").read().split("\n")
    hdr = [l for l in hdr_src if l.startswith(";") and "@launch" not in l and "Override launch" not in l and "grid=ceil" not in l]
    out = "\n".join(hdr) + "\n; @launch grid=(256,1,1) block=(1024,1,1) lds=163840\n"
    out += '.amdgcn_target "amdgcn-amd-amdhsa--gfx950"\n'
    out += A.text() + kernel_desc(NAME, 128, 100)
    return out

if __name__ == "__main__":
    open(sys.argv[1] if len(sys.argv) > 1 else "fused.s", "w").write(gen())
```

```python
import os, struct, sys
from asmlib import *
from ssm_common import gather_table

NAME = "concat_heads__ssm_conv_s4d__mha_block__prompt_kernel"
PROF = bool(os.environ.get("PROF"))

def f32bits(x): return struct.unpack("<I", struct.pack("<f", x))[0]
LOG2E = 1.4426950408889634
INV2PI = 0.15915494309189535
C_SCALE = 0.25 * LOG2E

WS_Q = 0x000000; WS_K = 0x200000; WS_V = 0x400000; WS_O = 0x600000
WS_UT = 0x800000
WS_WOF = 0xA00000
WS_F1 = 0xA80000
WS_F2 = 0xA82000
WS_F3 = 0xA84000
WS_FU = 0xA86000
WS_EP = 0xA88000
WS_TOTAL = 0xA90000
WS_PROF = 0x1000000
SP = dict(u=64, lar=66, aim=68, cre=70, cim=72, ldt=74, dsk=76, x=78, wqkv=80, wo=82, out=84, dbg=86, ws=88)
sWS = 44
WSRD = f"s[{sWS}:{sWS+3}]"
sT = 90
vL16 = 1
vE = 127

SLOT = 28672; NSLOT = 3; AHEAD = 2
L_TA = 86016; L_TBO = 11088; L_TCH = 27984
L_T = 141984
L_CNT = 147968
L_KREV = 148480; KREV_SZ = 7680
L_UTL = L_KREV
L_WOT = 86016
L_UC = 57344; UC_RHO = 4160; UC_CH = 16640
L_PART = 90624
L_QS = 49152
L_SCR = 131072
L_OT = 0
L_PC = 32768

class DSQ:
    def __init__(self, A): self.A = A; self.q = []
    def issue(self, tag): self.q.append(tag)
    def wait(self, tag):
        if tag not in self.q: return
        i = len(self.q) - 1 - self.q[::-1].index(tag)
        n = len(self.q) - 1 - i
        assert n <= 15, n
        self.A(f"s_waitcnt lgkmcnt({n})")
        self.q = self.q[i+1:]
    def room(self):
        if len(self.q) >= 15: self.wait(self.q[0])
    def drain(self):
        self.A("s_waitcnt lgkmcnt(0)"); self.q = []

def stamp(A, k):
    if PROF:
        A("s_memtime s[48:49]")
        A("s_waitcnt lgkmcnt(0)")
        A(f"v_writelane_b32 v125, s48, {k}")

def write_stamps(A):
    if not PROF: return
    A("s_memrealtime s[40:41]")
    A("s_waitcnt lgkmcnt(0)")
    A(f"v_writelane_b32 v125, s40, 62")
    A(f"v_writelane_b32 v125, s91, 63")
    A(f"s_add_u32 s92, s{SP['ws']}, {WS_PROF}")
    A(f"s_addc_u32 s93, s{SP['ws']+1}, 0")
    A("s_mov_b32 s94, 0x200000")
    A("s_mov_b32 s95, 0x00020000")
    A("s_lshl_b32 s42, s2, 4"); A("s_add_u32 s42, s42, s3"); A("s_lshl_b32 s42, s42, 8")
    A("v_lshlrev_b32 v16, 2, v0")
    A("buffer_store_dword v125, v16, s[92:95], s42 offen")
    A("s_waitcnt vmcnt(0)")

def poll(A, label, vaddr, soff, mask_lo, vtmp, sleep=True):
    A(f"s_mov_b32 s30, {mask_lo}")
    A("s_mov_b32 s31, 0")
    A("s_mov_b64 exec, s[30:31]")
    A("s_mov_b32 s29, 0")
    A.label(label)
    A(f"buffer_load_dword v{vtmp}, v{vaddr}, {WSRD}, s{soff} offen sc1")
    A("s_add_u32 s29, s29, 1")
    A("s_waitcnt vmcnt(0)")
    A(f"v_cmp_ne_u32 vcc, s{sT}, v{vtmp}")
    A("s_cmp_gt_u32 s29, 0x40000")
    A(f"s_cbranch_scc1 {label}_x")
    A(f"s_cbranch_vccnz {label}")
    A.label(label + "_x")
    A("s_mov_b64 exec, -1")

def check_or_poll(A, label, vaddr, soff, mask_lo, vflag):
    A(f"s_mov_b32 s30, {mask_lo}")
    A("s_mov_b32 s31, 0")
    A(f"v_cmp_ne_u32 vcc, s{sT}, v{vflag}")
    A("s_nop 1")
    A("s_and_b64 vcc, vcc, s[30:31]")
    A(f"s_cbranch_vccz {label}_ok")
    poll(A, label, vaddr, soff, mask_lo, vflag)
    A.label(label + "_ok")

def flag_store(A, soff, vtmp, vzero):
    A(f"v_mov_b32 v{vtmp}, s{sT}")
    A(f"v_mov_b32 v{vzero}, 0")
    A("s_mov_b64 exec, 1")
    A(f"buffer_store_dword v{vtmp}, v{vzero}, {WSRD}, s{soff} offen sc1")
    A("s_mov_b64 exec, -1")

def get_tag(A):
    A(f"v_readfirstlane_b32 s{sT}, v{vE}")
    A("s_nop 3")
    A(f"s_mul_i32 s{sT}, s{sT}, 0x9e3779b1")
    A(f"s_add_u32 s{sT}, s{sT}, 0x7f4a7c15")

def gsync(A, cnt_addr, target, vt):
    L = A.newlabel("GS")
    A("s_waitcnt lgkmcnt(0)")
    A(f"v_mov_b32 v{vt}, {cnt_addr}")
    A(f"v_mov_b32 v{vt+1}, 1")
    A("s_mov_b64 exec, 1")
    A(f"ds_add_u32 v{vt}, v{vt+1}")
    A("s_mov_b64 exec, -1")
    A.label(L)
    A(f"ds_read_b32 v{vt+1}, v{vt}")
    A("s_waitcnt lgkmcnt(0)")
    A(f"v_readfirstlane_b32 s42, v{vt+1}")
    A("s_nop 0")
    A(f"s_cmp_ge_u32 s42, {target}")
    A(f"s_cbranch_scc0 {L}")

def merge(*chains):
    out = []; idx = [0] * len(chains)
    while any(idx[i] < len(chains[i]) for i in range(len(chains))):
        for i, ch in enumerate(chains):
            if idx[i] < len(ch):
                out.append(ch[idx[i]]); idx[i] += 1
    return out

class Rec:
    def __init__(self): self.L = []
    def __call__(self, s): self.L.append(s)

def chan_pair(A, dst, tmp):
    A(f"s_and_b32 s{dst}, s2, 7"); A(f"s_lshl_b32 s{dst}, s{dst}, 5"); A(f"s_lshr_b32 s{tmp}, s2, 3")
    A(f"s_add_u32 s{dst}, s{dst}, s{tmp}"); A(f"s_lshl_b32 s{dst}, s{dst}, 1")

def p1_ids(A):
    A("s_and_b32 s17, s2, 7")
    A("s_lshr_b32 s18, s2, 3")
    A("s_and_b32 s12, s17, 3")
    A("s_lshl_b32 s12, s12, 2")
    A("s_and_b32 s19, s18, 3")
    A("s_add_u32 s12, s12, s19")
    A("s_lshr_b32 s13, s17, 2")
    A("s_lshl_b32 s13, s13, 3")
    A("s_lshr_b32 s19, s18, 2")
    A("s_add_u32 s13, s13, s19")

def conv_part(A, p, vUA, vKB0, vKB1, ACC0, ACC1):
    ks = list({0: range(0, 24), 1: range(24, 48), 2: range(48, 80), 3: range(80, 128)}[p])
    q = DSQ(A)
    NB = 4
    FA, FB0, FB1 = 8, 24, 40
    def rd(i):
        k = ks[i]; b = i % NB
        A(f"ds_read_b64 {v(FA+4*b,2)}, v{vUA} offset:{32*k}"); q.issue(("a0", i))
        A(f"ds_read_b64 {v(FA+4*b+2,2)}, v{vUA} offset:{32*k+8}"); q.issue(("a1", i))
        off = (k//2)*80 + (k%2)*32
        A(f"ds_read_b128 {v(FB1+4*b,4)}, v{vKB1} offset:{off}"); q.issue(("b1", i))
        if k < 64:
            A(f"ds_read_b128 {v(FB0+4*b,4)}, v{vKB0} offset:{off}"); q.issue(("b0", i))
    n = len(ks)
    for i in range(min(NB-1, n)): rd(i)
    first0 = first1 = True
    for i in range(n):
        if i + NB - 1 < n: rd(i + NB - 1)
        k = ks[i]; b = i % NB
        q.wait(("b1", i))
        A(f"v_mfma_f32_32x32x16_bf16 {v(ACC1,16)}, {v(FA+4*b,4)}, {v(FB1+4*b,4)}, {'0' if first1 else v(ACC1,16)}"); first1 = False
        if k < 64:
            q.wait(("b0", i))
            A(f"v_mfma_f32_32x32x16_bf16 {v(ACC0,16)}, {v(FA+4*b,4)}, {v(FB0+4*b,4)}, {'0' if first0 else v(ACC0,16)}"); first0 = False

vY = [90, 91, 126, 127]

def p1_loader(A):
    vDX, vDX1, vDW = 2, 3, 5
    A("s_setprio 3")
    A("s_sub_u32 s15, s3, 4")
    A("v_lshrrev_b32 v9, 3, v0")
    A("v_lshrrev_b32 v10, 1, v9")
    A("v_xor_b32 v10, v10, v0")
    A("v_and_b32 v10, 7, v10")
    A("v_lshlrev_b32 v10, 4, v10")
    A(f"v_lshl_add_u32 v{vDX}, v9, 10, v10")
    A(f"v_xor_b32 v{vDX1}, 64, v{vDX}")
    A("s_lshl_b32 s20, s12, 17")
    A("s_lshl_b32 s17, s15, 14")
    A("s_add_u32 s20, s20, s17")
    A("s_lshl_b32 s21, s13, 6")
    A("s_lshl_b32 s22, s15, 11")
    A("s_lshl_b32 s23, s15, 10")
    A("s_add_u32 s23, s23, 16384")
    A("s_lshr_b32 s25, s2, 5")
    A("s_lshr_b32 s17, s2, 3")
    A("s_and_b32 s17, s17, 3")
    A("s_lshl_b32 s17, s17, 1")
    A("s_add_u32 s25, s25, s17")
    srd(A, 4, SP['x'], 2048*512*2)
    srd(A, 8, SP['wqkv'], 512*1536*2)
    def issue_x(c):
        slot = (c % NSLOT) * SLOT
        A(f"s_add_u32 s26, s25, {c}")
        A("s_and_b32 s26, s26, 7")
        A(f"s_lshl_b32 s24, s26, 7")
        A(f"s_add_u32 s24, s24, s20")
        A(f"s_add_u32 m0, s22, {slot}")
        A(f"s_mul_i32 s27, s26, {64*3072}")
        A(f"buffer_load_dwordx4 v{vDX}, s[4:7], s24 offen lds")
        A(f"s_add_u32 m0, s22, {slot + 1024}")
        A(f"s_add_u32 s24, s24, 8192")
        A(f"buffer_load_dwordx4 v{vDX1}, s[4:7], s24 offen lds")
    def issue_w(c, nw):
        slot = (c % NSLOT) * SLOT
        A(f"s_add_u32 m0, s23, {slot}")
        A(f"s_add_u32 s27, s27, s21")
        A(f"buffer_load_dwordx4 v{vDW}, s[8:11], s27 offen lds")
        if nw == 2:
            A(f"s_add_u32 m0, s23, {slot + 8192}")
            A("s_nop 0")
            A(f"buffer_load_dwordx4 v{vDW+1}, s[8:11], s27 offen lds")
    issue_x(0)
    A("s_lshl_b32 s17, s15, 6")
    A("s_movk_i32 s18, 3072")
    A("s_mov_b32 s19, 43691")
    for i in range(2):
        A(f"v_add_u32 v9, s17, v0")
        if i: A(f"v_add_u32 v9, 512, v9")
        A("v_mul_u32_u24 v10, s19, v9")
        A("v_lshrrev_b32 v10, 19, v10")
        A("v_mul_u32_u24 v11, 12, v10")
        A("v_sub_u32 v11, v9, v11")
        A("v_lshrrev_b32 v12, 2, v10")
        A("v_and_b32 v12, 2, v12")
        A("v_xor_b32 v11, v11, v12")
        A("v_lshrrev_b32 v12, 2, v11")
        A("v_and_b32 v11, 3, v11")
        A("v_lshlrev_b32 v11, 4, v11")
        A("v_lshl_add_u32 v11, v12, 10, v11")
        A(f"v_mad_u32_u24 v{vDW+i}, v10, s18, v11")
    chan_pair(A, 14, 16)
    A("s_lshr_b32 s28, s14, 4")
    A("s_lshl_b32 s28, s28, 7")
    A(f"s_add_u32 s28, s28, {WS_FU}")
    A("v_lshlrev_b32 v13, 2, v0")
    def waits(c, per): return per * (min(7, c - 1 + AHEAD if c > 0 else AHEAD - 1) - c)
    def loop(nw, tag):
        per = 2 + nw
        issue_w(0, nw)
        issue_x(1); issue_w(1, nw)
        for c in range(8):
            if c == 6:
                A(f"s_waitcnt vmcnt({per + 1})")
            elif c == 7:
                A(f"s_waitcnt vmcnt(2)")
            else:
                A(f"s_waitcnt vmcnt({waits(c, per)})")
            A("s_barrier")
            if c + AHEAD < 8:
                issue_x(c + AHEAD); issue_w(c + AHEAD, nw)
            if c == 5:
                A(f"buffer_load_dword v14, v13, {WSRD}, s28 offen sc1")
            if c == 6:
                A("s_waitcnt vmcnt(0)")
                get_tag(A)
                check_or_poll(A, f"CV_PU{tag}", 13, 28, "-1", 14)
                A("s_lshr_b32 s16, s15, 2")
                A("s_add_u32 s17, s14, s16")
                A("s_lshl_b32 s17, s17, 12")
                A(f"s_add_u32 s17, s17, {WS_UT}")
                A(f"s_add_u32 s4, s{SP['ws']}, s17"); A(f"s_addc_u32 s5, s{SP['ws']+1}, 0")
                A("s_mov_b32 s6, 4096"); A("s_mov_b32 s7, 0x00020000")
                A("s_and_b32 s18, s15, 3"); A("s_lshl_b32 s18, s18, 10")
                A(f"v_add_u32 v16, s18, v{vL16}")
                A("v_subrev_u32 v17, 16, v16")
                A("v_cmp_eq_u32 vcc, 0, v16")
                A("v_mov_b32 v18, 4096")
                A("s_nop 0")
                A("v_cndmask_b32 v17, v17, v18, vcc")
                A("buffer_load_dwordx4 v[20:23], v17, s[4:7], 0 offen sc1")
                A("buffer_load_dwordx4 v[24:27], v16, s[4:7], 0 offen sc1")
    A("s_cmp_ge_u32 s15, 4")
    A("s_cbranch_scc1 P1_LOADER1")
    loop(2, "a")
    A("s_branch P1_LOADER_END")
    A.label("P1_LOADER1")
    loop(1, "b")
    A.label("P1_LOADER_END")
    A("s_setprio 1")
    stamp(A, 29)
    def copies(D, dest):
        T0, T1, T2 = 32, 36, 40
        for j in range(4): A(f"v_alignbit_b32 v{T0+j}, v{D+j+1}, v{D+j}, 16")
        for j in range(4): A(f"v_mov_b32 v{T1+j}, v{D+1+j}")
        for j in range(4): A(f"v_alignbit_b32 v{T2+j}, v{D+j+2}, v{D+j+1}, 16")
        A(f"ds_write_b128 v{dest}, {v(T0,4)}")
        A(f"ds_write_b128 v{dest}, {v(T1,4)} offset:{UC_RHO}")
        A(f"ds_write_b128 v{dest}, {v(T2,4)} offset:{2*UC_RHO}")
        A(f"ds_write_b128 v{dest}, {v(D+2,4)} offset:{3*UC_RHO}")
    A(f"s_mul_i32 s19, s16, {UC_CH}")
    A(f"s_add_u32 s19, s19, {L_UC + 48}")
    A("v_add_u32 v19, s19, v16")
    A("s_cmp_eq_u32 s18, 0")
    A("s_cbranch_scc0 CV_NOX")
    A("v_mov_b32 v28, 4096")
    A(f"v_mov_b32 v29, {255*16}")
    A("v_cmp_eq_u32 vcc, 3, v0")
    A("s_nop 1")
    A("v_cndmask_b32 v29, v28, v29, vcc")
    A("buffer_load_dwordx4 v[48:51], v29, s[4:7], 0 offen sc1")
    for j in range(4): A(f"v_mov_b32 v{52+j}, 0")
    A(f"v_mov_b32 v30, {259*16}")
    A(f"v_cndmask_b32 v30, v{vL16}, v30, vcc")
    A(f"s_sub_u32 s19, s19, 48")
    A("v_add_u32 v30, s19, v30")
    A.label("CV_NOX")
    A("s_waitcnt vmcnt(0)")
    copies(20, 19)
    A("s_cmp_eq_u32 s18, 0")
    A("s_cbranch_scc0 CV_NOX2")
    A("s_mov_b64 exec, 15")
    copies(48, 30)
    A("s_mov_b64 exec, -1")
    A.label("CV_NOX2")
    A("v_and_b32 v9, 31, v0")
    A("v_lshrrev_b32 v10, 5, v0")
    A("v_and_b32 v11, 3, v9")
    A(f"v_mul_u32_u24 v11, {UC_RHO}, v11")
    A("v_lshrrev_b32 v12, 2, v9")
    A("v_lshl_add_u32 v11, v12, 3, v11")
    A("v_lshl_add_u32 v11, v10, 4, v11")
    A(f"s_mul_i32 s24, s16, {UC_CH}")
    A(f"s_add_u32 s24, s24, {L_UC}")
    A("v_add_u32 v4, s24, v11")
    A("v_sub_u32 v11, 63, v9")
    A("v_mul_u32_u24 v11, 80, v11")
    A("v_lshl_add_u32 v11, v10, 4, v11")
    A(f"s_mul_i32 s23, s16, {KREV_SZ}")
    A(f"s_add_u32 s23, s23, {L_KREV}")
    A("v_add_u32 v5, s23, v11")
    A("v_subrev_u32 v6, 2560, v5")
    A("s_and_b32 s24, s15, 3")
    A(f"s_mul_i32 s25, s16, 28672")
    A("s_lshl_b32 s26, s24, 12")
    A("s_add_u32 s25, s25, s26")
    A(f"s_add_u32 s25, s25, {L_PART}")
    A(f"v_add_u32 v7, s25, v{vL16}")
    gsync(A, L_CNT + 4, 8, 8)
    stamp(A, 30)
    ACC0, ACC1 = 56, 72
    for p in range(4):
        if p < 3:
            A(f"s_cmp_eq_u32 s24, {p}")
            A(f"s_cbranch_scc0 CV_P{p+1}")
        conv_part(A, p, 4, 5, 6, ACC0, ACC1)
        A("s_nop 15")
        for qd in range(4):
            A(f"ds_write_b128 v7, {v(ACC1+4*qd,4)} offset:{qd*1024}")
        if p < 3:
            for qd in range(4):
                A(f"ds_write_b128 v7, {v(ACC0+4*qd,4)} offset:{16384 + qd*1024}")
            A("s_branch CV_PE")
            A.label(f"CV_P{p+1}")
    A.label("CV_PE")
    stamp(A, 31)
    gsync(A, L_CNT + 4, 16, 8)
    stamp(A, 32)
    A("s_lshl_b32 s26, s24, 10")
    A(f"s_add_u32 s26, s26, {L_PART}")
    A(f"v_add_u32 v4, s26, v{vL16}")
    A("s_cmp_eq_u32 s16, 0")
    A("s_cbranch_scc1 CV_F0")
    for c in range(2):
        for p in range(4):
            A(f"ds_read_b128 {v(16+16*c+4*p,4)}, v4 offset:{c*28672 + p*4096}")
    A("s_waitcnt lgkmcnt(0)")
    for c in range(2):
        for r in range(4):
            b = 16 + 16*c + r
            A(f"v_add_f32 v{b}, v{b}, v{b+4}"); A(f"v_add_f32 v{b+8}, v{b+8}, v{b+12}")
        for r in range(4):
            b = 16 + 16*c + r
            A(f"v_add_f32 v{b}, v{b}, v{b+8}")
    A("s_branch CV_F1")
    A.label("CV_F0")
    for c in range(2):
        for p in range(3):
            A(f"ds_read_b128 {v(16+16*c+4*p,4)}, v4 offset:{c*28672 + 16384 + p*4096}")
    A("s_waitcnt lgkmcnt(0)")
    for c in range(2):
        for r in range(4):
            b = 16 + 16*c + r
            A(f"v_add_f32 v{b}, v{b}, v{b+4}")
        for r in range(4):
            b = 16 + 16*c + r
            A(f"v_add_f32 v{b}, v{b}, v{b+8}")
    A.label("CV_F1")
    for r in range(4):
        A(f"v_cvt_pk_bf16_f32 v{vY[r]}, v{16+r}, v{32+r}")
    A("s_lshl_b32 s36, s16, 21")
    A("s_lshl_b32 s25, s24, 14")
    A("s_add_u32 s36, s36, s25")
    A("s_lshl_b32 s25, s14, 1")
    A("s_add_u32 s36, s36, s25")
    A("s_setprio 0")
    stamp(A, 33)

def p1_compute(A):
    vFR, vACC, vXA, vWA = 8, 64, 112, 118
    A("v_and_b32 v4, 15, v0")
    A("v_lshrrev_b32 v5, 4, v0")
    A("v_lshrrev_b32 v6, 1, v4")
    A("v_xor_b32 v6, v6, v5")
    A("v_lshlrev_b32 v6, 4, v6")
    A("v_lshl_add_u32 v6, v4, 7, v6")
    A("s_lshr_b32 s17, s3, 1")
    A("s_lshl_b32 s17, s17, 13")
    A(f"v_add_u32 v{vXA}, s17, v6")
    A(f"v_xor_b32 v{vXA+1}, 64, v{vXA}")
    A(f"v_add_u32 v{vXA+2}, {2*SLOT}, v{vXA}")
    A(f"v_add_u32 v{vXA+3}, {2*SLOT}, v{vXA+1}")
    A("v_lshrrev_b32 v6, 2, v4")
    A("v_lshl_add_u32 v6, v5, 3, v6")
    A("v_mul_u32_u24 v6, 192, v6")
    A("v_and_b32 v7, 3, v4")
    A("v_lshl_add_u32 v6, v7, 3, v6")
    A("s_and_b32 s17, s3, 1")
    A("v_xor_b32 v7, s17, v5")
    A("v_and_b32 v7, 1, v7")
    A(f"v_lshl_add_u32 v{vWA}, v7, 5, v6")
    A(f"v_add_u32 v{vWA+1}, {2*SLOT}, v{vWA}")
    A("s_and_b32 s18, s3, 1")
    A("s_lshl_b32 s19, s13, 1")
    A("s_add_u32 s18, s18, s19")
    A("s_lshl_b32 s16, s18, 7")
    A("s_lshl_b32 s18, s18, 16")
    A("s_lshr_b32 s19, s3, 1")
    A("s_lshl_b32 s24, s12, 1")
    A("s_add_u32 s24, s24, s19")
    A("s_lshl_b32 s25, s24, 2")
    A("s_add_u32 s16, s16, s25")
    A(f"s_add_u32 s16, s16, {WS_F1}")
    A("s_lshl_b32 s19, s24, 11")
    A("s_add_u32 s18, s18, s19")
    A(f"s_mov_b32 s17, 0x{f32bits(C_SCALE):08x}")
    A("s_setprio 2")
    q = DSQ(A)
    def fr(buf): return vFR + 28 * buf
    def rd(step):
        c, ks2 = step // 2, step % 2
        slot = c % NSLOT
        st, so = slot // 2, (slot % 2) * SLOT
        b = fr(step % 2)
        for ti in range(4):
            A(f"ds_read_b128 {v(b+4*ti,4)}, v{vXA+2*st+ks2} offset:{so + ti*2048}"); q.issue(("x", step, ti))
        for gi in range(3):
            for hf in range(2):
                A(f"ds_read_b64_tr_b16 {v(b+16+4*gi+2*hf,2)}, v{vWA+st} offset:{so + 16384 + (32*ks2+4*hf)*192 + 64*gi}"); q.issue(("w", step, gi, hf))
    def mm(step):
        b = fr(step % 2)
        for gi in range(3):
            for ti in range(4):
                acc = vACC + (gi*4 + ti)*4
                X = v(b+4*ti, 4); W = v(b+16+4*gi, 4)
                cc = "0" if step == 0 else v(acc, 4)
                if ti == 0: q.wait(("w", step, gi, 1))
                if gi < 2: A(f"v_mfma_f32_16x16x32_bf16 {v(acc,4)}, {W}, {X}, {cc}")
                else:      A(f"v_mfma_f32_16x16x32_bf16 {v(acc,4)}, {X}, {W}, {cc}")
    for c in range(8):
        A("s_barrier")
        stamp(A, 10 + c)
        rd(2*c)
        if c > 0: mm(2*c - 1)
        rd(2*c + 1)
        mm(2*c)
        q.drain()
    A(f"v_mov_b32 v2, {L_CNT + 8}"); A("v_mov_b32 v3, 1")
    A("s_mov_b64 exec, 1")
    A("ds_add_u32 v2, v3")
    A("s_mov_b64 exec, -1")
    mm(15)
    stamp(A, 1)
    T = vFR
    n = 0
    for gi, base in ((1, WS_K), (2, WS_V), (0, WS_Q)):
        if gi == 0:
            for ti in range(4):
                for r in range(4):
                    A(f"v_mul_f32 v{vACC+ti*4+r}, s17, v{vACC+ti*4+r}")
        for pair in range(2):
            a0 = vACC + (gi*4 + 2*pair)*4; a1 = a0 + 4
            t = T + 4 * n; n += 1
            A(f"v_cvt_pk_bf16_f32 v{t}, v{a0}, v{a0+1}")
            A(f"v_cvt_pk_bf16_f32 v{t+1}, v{a0+2}, v{a0+3}")
            A(f"v_cvt_pk_bf16_f32 v{t+2}, v{a1}, v{a1+1}")
            A(f"v_cvt_pk_bf16_f32 v{t+3}, v{a1+2}, v{a1+3}")
            A(f"s_add_u32 s24, s18, {base + pair*1024}")
            A("s_nop 0")
            op = "v_permlane32_swap_b32" if gi == 2 else "v_permlane16_swap_b32"
            A(f"{op} v{t}, v{t+2}")
            A(f"{op} v{t+1}, v{t+3}")
            A("s_nop 1")
            A(f"buffer_store_dwordx4 {v(t,4)}, v{vL16}, {WSRD}, s24 offen sc1")
    stamp(A, 18)
    A("s_waitcnt vmcnt(0)")
    get_tag(A)
    flag_store(A, 16, 2, 3)
    A("s_setprio 0")
    stamp(A, 2)

def cmul(A, D, X, S, T):
    A(f"v_pk_mul_f32 {v(T,2)}, {v(X,2)}, {v(S,2)} op_sel:[0,0] op_sel_hi:[1,0]")
    A(f"v_pk_fma_f32 {v(D,2)}, {v(X,2)}, {v(S,2)}, {v(T,2)} op_sel:[1,1,0] op_sel_hi:[0,1,1] neg_lo:[0,1,0]")

def fl(p): return f"{float(p)!r}" if p in (1, 2, 4) else f"0x{f32bits(float(p)):08x}"
def anchor(A, D, p, vt2, vw, tmp, conj=False):
    A(f"v_mul_f32 v{tmp}, {fl(p)}, v{vt2}")
    A(f"v_mul_f32 v{tmp+1}, {fl(p)}, v{vw}")
    A(f"v_exp_f32 v{tmp}, v{tmp}")
    A(f"v_fract_f32 v{tmp+1}, v{tmp+1}")
    A(f"v_cos_f32 v{D}, v{tmp+1}")
    A(f"v_sin_f32 v{D+1}, v{tmp+1}")
    A("s_nop 0")
    A(f"v_mul_f32 v{D}, v{D}, v{tmp}")
    if conj: A(f"v_mul_f32_e64 v{D+1}, -v{D+1}, v{tmp}")
    else: A(f"v_mul_f32 v{D+1}, v{D+1}, v{tmp}")

def kgen(A):
    A("s_sub_u32 s15, s3, 12")
    chan_pair(A, 14, 16)
    A("s_lshr_b32 s16, s15, 1")
    A("s_add_u32 s17, s14, s16")
    A("s_lshl_b32 s17, s17, 8")
    A("s_and_b32 s18, s15, 1")
    A("s_lshl_b32 s19, s18, 7")
    A("s_add_u32 s17, s17, s19")
    A("v_lshlrev_b32 v9, 1, v0")
    for reg, nm in ((10, 'lar'), (11, 'aim'), (12, 'cre'), (13, 'cim')):
        srd(A, 4, SP[nm], 512*128*2)
        A(f"buffer_load_ushort v{reg}, v9, s[4:7], s17 offen")
    A("s_lshl_b32 s20, s14, 1")
    A(f"s_add_u32 s22, s{SP['ldt']}, s20"); A(f"s_addc_u32 s23, s{SP['ldt']+1}, 0")
    A(f"s_add_u32 s24, s{SP['dsk']}, s20"); A(f"s_addc_u32 s25, s{SP['dsk']+1}, 0")
    A("s_load_dword s26, s[22:23], 0")
    A("s_load_dword s27, s[24:25], 0")
    A("s_cmp_eq_u32 s15, 0")
    A("s_cbranch_scc0 KG_NZ")
    A(f"v_mov_b32 v20, {L_CNT}")
    for j in range(4): A(f"v_mov_b32 v{24+j}, 0")
    A("ds_write_b128 v20, v[24:27]")
    A.label("KG_NZ")
    A(f"s_mul_i32 s20, s16, {L_TCH}")
    A("s_lshl_b32 s21, s18, 8")
    A("s_add_u32 s20, s20, s21")
    A(f"s_add_u32 s20, s20, {L_TA}")
    A("v_lshlrev_b32 v15, 2, v0")
    A("v_add_u32 v15, s20, v15")
    A(f"v_add_u32 v8, {L_TBO}, v15")
    A("v_lshrrev_b32 v14, 3, v0")
    A("v_lshlrev_b32 v14, 10, v14")
    A("v_and_b32 v21, 7, v0")
    A("v_lshl_add_u32 v14, v21, 4, v14")
    A("s_lshr_b32 s28, s2, 3"); A("s_lshl_b32 s28, s28, 16")
    A("s_lshl_b32 s29, s15, 14")
    A("s_add_u32 s28, s28, s29")
    A("s_and_b32 s29, s2, 7"); A("s_lshl_b32 s29, s29, 7")
    A("s_add_u32 s28, s28, s29")
    A("s_waitcnt lgkmcnt(0)")
    A("s_cmp_eq_u32 s16, 0")
    A("s_cselect_b32 s20, 16, 0")
    A("s_lshl_b32 s26, s26, s20"); A("s_and_b32 s26, s26, 0xffff0000")
    A("s_lshl_b32 s27, s27, s20"); A("s_and_b32 s27, s27, 0xffff0000")
    A("s_barrier")
    stamp(A, 20)
    srd(A, 4, SP['u'], 2048*512*2)
    A("s_lshl_b32 s20, s15, 11")
    A(f"s_add_u32 m0, s20, {L_UTL}")
    A("s_nop 0")
    A("buffer_load_dwordx4 v14, s[4:7], s28 offen lds")
    A(f"s_add_u32 m0, s20, {L_UTL + 1024}")
    A("s_add_u32 s28, s28, 8192")
    A("buffer_load_dwordx4 v14, s[4:7], s28 offen lds")
    A("s_getpc_b64 s[28:29]")
    A.label("KG_PC")
    A("s_add_u32 s28, s28, GTAB-KG_PC")
    A("s_addc_u32 s29, s29, 0")
    A("s_lshl_b32 s20, s15, 11")
    A("v_lshlrev_b32 v14, 5, v0")
    A("v_add_u32 v14, s20, v14")
    A("global_load_dwordx4 v[96:99], v14, s[28:29]")
    A("global_load_dwordx4 v[100:103], v14, s[28:29] offset:16")
    A("s_waitcnt vmcnt(4)")
    get_tag(A)
    vt2, vw, vY0, tmp = 16, 17, 18, 20
    A(f"s_mov_b32 s21, 0x{f32bits(LOG2E):08x}")
    A(f"v_mov_b32 v{tmp}, s26")
    A(f"v_lshlrev_b32 v10, 16, v10")
    A(f"v_mul_f32 v{tmp}, s21, v{tmp}")
    A(f"v_mul_f32 v10, s21, v10")
    A(f"v_exp_f32 v{tmp}, v{tmp}")
    A(f"v_exp_f32 v10, v10")
    A(f"v_lshlrev_b32 v11, 16, v11")
    A(f"v_cvt_pk_bf16_f32 v{tmp}, v{tmp}, v10")
    A(f"v_lshlrev_b32 v12, 16, v12")
    A(f"v_and_b32 v10, 0xffff0000, v{tmp}")
    A(f"v_lshlrev_b32 v{tmp}, 16, v{tmp}")
    A(f"v_lshlrev_b32 v13, 16, v13")
    A(f"v_mul_f32 v10, v10, v{tmp}")
    A(f"v_mul_f32 v11, v11, v{tmp}")
    A(f"v_mul_f32 v{vt2}, 0x{f32bits(-LOG2E):08x}, v10")
    A(f"v_mul_f32 v{vw}, 0x{f32bits(INV2PI):08x}, v11")
    A(f"v_add_f32 v{tmp}, v{tmp}, v{tmp}")
    A(f"v_mul_f32 v{vY0}, v12, v{tmp}")
    A(f"v_mul_f32_e64 v{vY0+1}, -v13, v{tmp}")
    XE, XO, S16 = 40, 42, 44
    F1, F256, F2, F4, Y, Z = 24, 26, 28, 30, 32, 34
    r1, r2, r3 = Rec(), Rec(), Rec()
    anchor(r1, XO, 8, vt2, vw, 46)
    anchor(r2, F1, 1, vt2, vw, 48, conj=True)
    anchor(r3, F256, 256, vt2, vw, 50, conj=True)
    for ins in merge(r1.L, r2.L, r3.L): A(ins)
    A(f"v_mov_b32 v{XE}, 1.0"); A(f"v_mov_b32 v{XE+1}, 0")
    cmul(A, S16, XO, XO, 46)
    cmul(A, F2, F1, F1, 48)
    cmul(A, Z, vY0, F256, 50)
    cmul(A, F4, F2, F2, 48)
    be, bo, ay, az = Rec(), Rec(), Rec(), Rec()
    for b in range(0, 32, 2):
        pe = 52 + (b // 2) % 2; po = 54 + (b // 2) % 2
        be(f"v_cvt_pk_bf16_f32 v{pe}, v{XE}, v{XE+1}")
        if b < 30: cmul(be, XE, XE, S16, 56)
        be(f"ds_write_b32 v8, v{pe} offset:{b*528}")
        bo(f"v_cvt_pk_bf16_f32 v{po}, v{XO}, v{XO+1}")
        if b < 30: cmul(bo, XO, XO, S16, 58)
        bo(f"ds_write_b32 v8, v{po} offset:{(b+1)*528}")
    ny = [0]; nz = [0]
    def puty(reg, row):
        p = 60 + ny[0] % 2; ny[0] += 1
        ay(f"v_cvt_pk_bf16_f32 v{p}, v{reg}, v{reg+1}")
        ay(f"ds_write_b32 v15, v{p} offset:{row*528}")
    def putz(reg, row):
        p = 62 + nz[0] % 2; nz[0] += 1
        az(f"v_cvt_pk_bf16_f32 v{p}, v{reg}, v{reg+1}")
        az(f"ds_write_b32 v15, v{p} offset:{row*528}")
    puty(vY0, 0)
    cmul(ay, Y, vY0, F1, 64); puty(Y, 1)
    for r in range(2, 8):
        cmul(ay, Y, Y, F1, 64); puty(Y, r)
    W = 36
    putz(Z, 8)
    cmul(az, W, Z, F2, 66); putz(W, 9)
    cmul(az, W, W, F2, 66); putz(W, 10)
    cmul(az, W, W, F2, 66); putz(W, 11)
    cmul(az, Z, Z, F256, 66); putz(Z, 12)
    cmul(az, W, Z, F4, 66); putz(W, 13)
    cmul(az, Z, Z, F256, 66); putz(Z, 14)
    cmul(az, W, Z, F4, 66); putz(W, 15)
    for r in range(16, 21):
        cmul(az, Z, Z, F256, 66); putz(Z, r)
    allc = merge(be.L, bo.L, az.L, ay.L)
    n1 = len(allc) * int(os.environ.get("KG1", 25)) // 100
    n2 = len(allc) * int(os.environ.get("KG2", 70)) // 100
    for ins in allc[:n1]: A(ins)
    A("s_barrier")
    stamp(A, 21)
    for ins in allc[n1:n2]: A(ins)
    A("s_barrier")
    stamp(A, 22)
    A("s_waitcnt vmcnt(2)")
    gsync(A, L_CNT, 4, 72)
    A("v_and_b32 v72, 15, v0")
    A("v_lshrrev_b32 v73, 4, v0")
    A("v_lshrrev_b32 v74, 2, v72")
    A("v_lshl_add_u32 v74, v73, 3, v74")
    A("v_lshlrev_b32 v74, 7, v74")
    A("v_and_b32 v75, 3, v72")
    A("v_lshl_add_u32 v74, v75, 3, v74")
    A("s_lshl_b32 s20, s15, 5")
    A(f"s_add_u32 s20, s20, {L_UTL}")
    A("v_add_u32 v74, s20, v74")
    for p in range(2):
        for hf in range(2):
            A(f"ds_read_b64_tr_b16 {v(76+4*p+2*hf,2)}, v74 offset:{(32*p+4*hf)*128}")
    A("v_lshlrev_b32 v75, 12, v72")
    A("v_lshl_add_u32 v75, v73, 4, v75")
    A("s_and_b32 s20, s2, 7"); A("s_lshl_b32 s20, s20, 2"); A("s_add_u32 s20, s20, s15")
    A("s_lshl_b32 s21, s20, 7")
    A("s_lshl_b32 s20, s20, 16")
    A("s_lshr_b32 s22, s2, 3")
    A("s_lshl_b32 s23, s22, 7")
    A("s_add_u32 s20, s20, s23")
    A(f"s_add_u32 s20, s20, {WS_UT}")
    A("s_lshl_b32 s23, s22, 2")
    A("s_add_u32 s21, s21, s23")
    A(f"s_add_u32 s21, s21, {WS_FU}")
    A("s_waitcnt lgkmcnt(0)")
    A(f"buffer_store_dwordx4 v[76:79], v75, {WSRD}, s20 offen sc1")
    A(f"buffer_store_dwordx4 v[80:83], v75, {WSRD}, s20 offen offset:64 sc1")
    for ins in allc[n2:]: A(ins)
    A("s_waitcnt lgkmcnt(0)")
    A("s_barrier")
    stamp(A, 23)
    A("v_and_b32 v9, 15, v0")
    A("v_lshrrev_b32 v10, 4, v0")
    A("v_mul_u32_u24 v11, 528, v9")
    A("v_lshl_add_u32 v11, v10, 4, v11")
    A(f"s_mul_i32 s20, s16, {L_TCH}")
    A(f"s_add_u32 s20, s20, {L_TA}")
    A(f"s_mul_i32 s22, s18, {16*528}")
    A("s_add_u32 s22, s22, s20")
    A("v_add_u32 v12, s22, v11")
    A(f"s_add_u32 s20, s20, {L_TBO}")
    A("v_add_u32 v13, s20, v11")
    q = DSQ(A)
    FA_, FB_ = 16, [48, 104 - 24]
    B1 = [80, 84, 88, 92, 104, 108, 112, 116]
    for s_ in range(8):
        q.room(); A(f"ds_read_b128 {v(16+4*s_,4)}, v12 offset:{s_*64}"); q.issue(("a", s_))
        q.room(); A(f"ds_read_b128 {v(48+4*s_,4)}, v13 offset:{s_*64}"); q.issue(("b0", s_))
        q.room(); A(f"ds_read_b128 {v(B1[s_],4)}, v13 offset:{16*528 + s_*64}"); q.issue(("b1", s_))
    A("s_waitcnt vmcnt(0)")
    flag_store(A, 21, 14, 15)
    for s_ in range(8):
        q.wait(("b0", s_))
        A(f"v_mfma_f32_16x16x32_bf16 v[120:123], {v(16+4*s_,4)}, {v(48+4*s_,4)}, {'0' if s_==0 else 'v[120:123]'}")
        q.wait(("b1", s_))
        A(f"v_mfma_f32_16x16x32_bf16 v[4:7], {v(16+4*s_,4)}, {v(B1[s_],4)}, {'0' if s_==0 else 'v[4:7]'}")
    A("s_lshl_b32 s20, s16, 11")
    A("s_lshl_b32 s22, s18, 10")
    A("s_add_u32 s20, s20, s22")
    A(f"s_add_u32 s20, s20, {L_T}")
    A("v_lshlrev_b32 v14, 8, v10")
    A("v_lshl_add_u32 v14, v9, 1, v14")
    A("v_add_u32 v14, s20, v14")
    A("s_cmp_eq_u32 s18, 0")
    A("s_cselect_b32 s27, s27, 0")
    A("v_cmp_eq_u32 vcc, 0, v0")
    A("v_mov_b32 v15, s27")
    A("s_nop 3")
    A("v_cndmask_b32 v15, 0, v15, vcc")
    A("v_add_f32 v120, v120, v15")
    for ct, b in enumerate((120, 4)):
        A(f"v_cvt_pk_bf16_f32 v{16+2*ct}, v{b}, v{b+1}")
        A(f"v_cvt_pk_bf16_f32 v{17+2*ct}, v{b+2}, v{b+3}")
        A(f"ds_write_b16 v14, v{16+2*ct} offset:{32*ct}")
        A(f"ds_write_b16_d16_hi v14, v{16+2*ct} offset:{32*ct+64}")
        A(f"ds_write_b16 v14, v{17+2*ct} offset:{32*ct+128}")
        A(f"ds_write_b16_d16_hi v14, v{17+2*ct} offset:{32*ct+192}")
    A("s_waitcnt lgkmcnt(0)")
    A("s_barrier")
    stamp(A, 24)
    A("s_cmp_eq_u32 s15, 0")
    A("s_cbranch_scc0 KG_NOWO")
    srd(A, 4, SP['wo'], 512*512*2)
    A("s_and_b32 s20, s2, 7"); A("s_lshl_b32 s20, s20, 16")
    A("s_lshr_b32 s22, s2, 3"); A("s_lshl_b32 s22, s22, 5")
    A("s_add_u32 s20, s20, s22")
    A("v_lshlrev_b32 v15, 10, v0")
    A("buffer_load_dwordx4 v[104:107], v15, s[4:7], s20 offen")
    A("buffer_load_dwordx4 v[108:111], v15, s[4:7], s20 offen offset:16")
    A.label("KG_NOWO")
    for e in range(8): A(f"v_add_u32 v{96+e}, {L_T}, v{96+e}")
    for c in range(2):
        for e in range(8):
            op = "ds_read_u16_d16_hi" if e % 2 else "ds_read_u16"
            A(f"{op} v{(32 if e % 2 else 16)+4*c+e//2}, v{96+e} offset:{c*2048}")
    A("s_lshl_b32 s20, s15, 6")
    A("v_add_u32 v9, s20, v0")
    A("v_lshrrev_b32 v10, 2, v9")
    A("v_mul_u32_u24 v10, 80, v10")
    A("v_and_b32 v9, 3, v9")
    A("v_lshl_add_u32 v10, v9, 4, v10")
    A(f"v_add_u32 v10, {L_KREV}, v10")
    for j in range(4): A(f"v_mov_b32 v{40+j}, 0")
    A(f"s_mul_i32 s20, s16, {KREV_SZ}")
    A(f"s_mul_i32 s22, s18, 1280")
    A("s_add_u32 s20, s20, s22")
    A(f"s_add_u32 s20, s20, {L_KREV + 64*80}")
    A(f"v_add_u32 v11, s20, v{vL16}")
    A("ds_write_b128 v11, v[40:43]")
    A("s_mov_b64 exec, 0xffff")
    A("ds_write_b128 v11, v[40:43] offset:1024")
    A("s_mov_b64 exec, -1")
    A("s_waitcnt lgkmcnt(10)")
    for j in range(4): A(f"v_or_b32 v{16+j}, v{16+j}, v{32+j}")
    A("s_waitcnt lgkmcnt(2)")
    for j in range(4): A(f"v_or_b32 v{20+j}, v{20+j}, v{36+j}")
    A("ds_write_b128 v10, v[16:19]")
    A(f"ds_write_b128 v10, v[20:23] offset:{KREV_SZ}")
    A("s_waitcnt lgkmcnt(0)")
    A("s_barrier")
    stamp(A, 25)
    A("s_barrier")
    A("s_cmp_eq_u32 s15, 0")
    A("s_cbranch_scc0 KG_NOWO2")
    A("v_lshlrev_b32 v21, 5, v0")
    A(f"v_add_u32 v21, {L_T}, v21")
    A("v_and_b32 v22, 15, v0")
    A("v_lshrrev_b32 v23, 4, v0")
    A("v_lshrrev_b32 v24, 2, v22")
    A("v_lshl_add_u32 v24, v23, 3, v24")
    A("v_lshlrev_b32 v24, 5, v24")
    A("v_and_b32 v22, 3, v22")
    A("v_lshl_add_u32 v24, v22, 3, v24")
    A(f"v_add_u32 v24, {L_T}, v24")
    A("s_waitcnt vmcnt(0)")
    A("ds_write_b128 v21, v[104:107]")
    A("ds_write_b128 v21, v[108:111] offset:16")
    A("s_waitcnt lgkmcnt(0)")
    for s_ in range(2):
        for hf in range(2):
            A(f"ds_read_b64_tr_b16 {v(104+4*s_+2*hf,2)}, v24 offset:{(32*s_+4*hf)*32}")
    A("s_lshr_b32 s20, s2, 3"); A("s_lshl_b32 s22, s20, 7"); A("s_lshl_b32 s20, s20, 14")
    A("s_and_b32 s21, s2, 7"); A("s_lshl_b32 s23, s21, 2"); A("s_lshl_b32 s21, s21, 11")
    A("s_add_u32 s20, s20, s21")
    A(f"s_add_u32 s20, s20, {WS_WOF}")
    A("s_add_u32 s22, s22, s23")
    A(f"s_add_u32 s22, s22, {WS_F3}")
    A("s_waitcnt lgkmcnt(0)")
    A(f"buffer_store_dwordx4 v[104:107], v{vL16}, {WSRD}, s20 offen sc1")
    A(f"buffer_store_dwordx4 v[108:111], v{vL16}, {WSRD}, s20 offen offset:1024 sc1")
    A.label("KG_NOWO2")
    A("s_barrier")
    A("s_cmp_eq_u32 s15, 0")
    A("s_cbranch_scc0 KG_NOWO3")
    A("s_waitcnt vmcnt(0)")
    flag_store(A, 22, 14, 15)
    A.label("KG_NOWO3")

vKA, vVA, vQ, vKF, vVF, vS, vP, vO, vM, vT = 2, 3, 4, 8, 16, 32, 64, 72, 88, 89
vLD = 92
vLW = 124
NT = 32
SCHED = "e0 e1 PV1 RV e2 e3 c0 e4 e5 c1 QK RK e6 e7 c2 e8 e9 c3 e10 e11 PV0 c4 e12 e13 c5 e14 e15 c6 c7"
PRIO = {0: 3, 8: 2, 16: 1, 24: 0}

def attn_ids(A):
    A("s_and_b32 s12, s2, 7")
    A("s_lshl_b32 s12, s12, 2")
    A("s_lshr_b32 s13, s2, 3")
    A("s_and_b32 s17, s13, 3")
    A("s_add_u32 s12, s12, s17")
    A("s_lshr_b32 s13, s2, 5")
    A("s_lshl_b32 s17, s12, 16")

def ld_group(A):
    attn_ids(A)
    A("s_cmp_lt_u32 s3, 4")
    A("s_cselect_b32 s15, 0, 8")
    A("s_sub_u32 s15, s3, s15")
    A("v_lshlrev_b32 v10, 2, v0")
    A("s_lshl_b32 s27, s12, 7")
    A(f"s_add_u32 s27, s27, {WS_F1}")
    A("s_lshr_b32 s22, s15, 1")
    A("s_and_b32 s23, s15, 1"); A("s_lshl_b32 s23, s23, 1")
    A("s_and_b32 s25, s22, 1"); A("s_lshl_b32 s25, s25, 15")
    A("s_lshr_b32 s26, s22, 1"); A("s_lshl_b32 s26, s26, 21")
    A("s_add_u32 s25, s25, s26")
    A("s_lshl_b32 s26, s23, 10")
    A("s_add_u32 s25, s25, s26")
    A("s_add_u32 s25, s25, s17")
    A(f"s_add_u32 s25, s25, {WS_K}")
    A("s_lshl_b32 s24, s23, 12")
    A("s_lshl_b32 s26, s22, 10")
    A("s_add_u32 s24, s24, s26")
    A(f"v_add_u32 v11, s24, v{vL16}")
    A("s_lshl_b32 s18, s13, 3"); A("s_add_u32 s18, s18, s15"); A("s_lshl_b32 s18, s18, 10"); A("s_add_u32 s18, s18, s17")
    A("s_lshl_b32 s19, s15, 10"); A(f"s_add_u32 s19, s19, {L_QS}")
    A(f"v_add_u32 v12, s19, v{vL16}")
    poll(A, "LD_POLL", 10, 27, "-1", 13)
    stamp(A, 3)
    n = 0
    for r in range(3):
        A(f"s_add_u32 s26, s13, {r}")
        A("s_and_b32 s26, s26, 7")
        A("s_lshl_b32 s26, s26, 12")
        A("s_add_u32 s26, s26, s25")
        A(f"buffer_load_dwordx4 {v(16+8*r,4)}, v{vL16}, {WSRD}, s26 offen sc1")
        A(f"buffer_load_dwordx4 {v(20+8*r,4)}, v{vL16}, {WSRD}, s26 offen offset:1024 sc1")
        if r == 0:
            A(f"buffer_load_dwordx4 v[40:43], v{vL16}, {WSRD}, s18 offen sc1")
    A(f"v_mov_b32 v44, {L_CNT + 8}")
    A.label("LD_GS")
    A("ds_read_b32 v45, v44")
    A("s_waitcnt lgkmcnt(0)")
    A("v_readfirstlane_b32 s42, v45")
    A("s_nop 0")
    A("s_cmp_ge_u32 s42, 4")
    A("s_cbranch_scc0 LD_GS")
    A("s_waitcnt vmcnt(4)")
    A("ds_write_b128 v11, v[16:19]")
    A("ds_write_b128 v11, v[20:23] offset:4096")
    A("ds_write_b128 v12, v[40:43]")
    A("s_waitcnt vmcnt(2)")
    A("ds_write_b128 v11, v[24:27] offset:16384")
    A("ds_write_b128 v11, v[28:31] offset:20480")
    A("s_waitcnt vmcnt(0)")
    A("ds_write_b128 v11, v[32:35] offset:32768")
    A("ds_write_b128 v11, v[36:39] offset:36864")

def attention(A):
    attn_ids(A)
    A("s_mov_b32 s20, 0x0000ffff")
    A("s_mov_b32 s21, 0x0000ffff")
    A("s_and_b32 s15, s3, 7")
    A("s_lshr_b32 s16, s3, 3")
    A("s_lshl_b32 s19, s16, 10")
    A(f"v_add_u32 v{vKA}, s19, v{vL16}")
    A("v_lshrrev_b32 v8, 5, v0")
    A("v_lshlrev_b32 v8, 8, v8")
    A("v_and_b32 v9, 15, v0")
    A("v_lshlrev_b32 v9, 4, v9")
    A("s_add_u32 s19, s19, 2048")
    A(f"v_add3_u32 v{vVA}, v8, v9, s19")
    A("v_and_b32 v8, 31, v0")
    A("v_cmp_eq_u32 vcc, 16, v8")
    A("v_mov_b32 v9, 0x3f803f80")
    A("s_lshl_b32 s22, s15, 10"); A(f"s_add_u32 s22, s22, {L_QS}")
    A("v_cndmask_b32 v9, 0, v9, vcc")
    A(f"v_add_u32 v10, s22, v{vL16}")
    for i in range(16): A(f"v_mov_b32 v{vVF+i}, v9")
    A(f"v_mov_b32 v{vM}, 0")
    A("s_lshl_b32 s18, s13, 3")
    A("s_add_u32 s18, s18, s15")
    A("s_lshl_b32 s19, s18, 7")
    A("s_lshl_b32 s22, s12, 2")
    A("s_add_u32 s19, s19, s22")
    A(f"s_add_u32 s19, s19, {WS_F2}")
    A("s_lshl_b32 s18, s18, 10")
    A("s_add_u32 s18, s18, s17")
    A("s_lshr_b32 s22, s3, 2")
    A("s_and_b32 s23, s3, 3")
    A("s_lshl_b32 s24, s23, 12")
    A("s_lshl_b32 s26, s22, 10")
    A("s_add_u32 s24, s24, s26")
    A(f"v_add_u32 v{vLW}, s24, v{vL16}")
    A("s_and_b32 s25, s22, 1"); A("s_lshl_b32 s25, s25, 15")
    A("s_lshr_b32 s26, s22, 1"); A("s_lshl_b32 s26, s26, 21")
    A("s_add_u32 s25, s25, s26")
    A("s_lshl_b32 s23, s23, 10")
    A("s_add_u32 s25, s25, s23")
    A("s_add_u32 s25, s25, s17")
    A(f"s_add_u32 s25, s25, {WS_K}")
    A("s_lshr_b32 s37, s2, 3"); A("s_and_b32 s37, s37, 3"); A("s_lshl_b32 s37, s37, 3"); A("s_add_u32 s37, s37, s15")
    A("s_setprio 3")
    A("s_waitcnt lgkmcnt(0)")
    A("s_barrier")
    stamp(A, 4)
    A(f"ds_read_b128 {v(vQ,4)}, v10")
    q = DSQ(A)
    KF = lambda t: vKF + 4 * (t % 2)
    VF = lambda t, j: vVF + 8 * (t % 2) + 4 * j
    S = lambda t: vS + 16 * (t % 2)
    def rdK(t):
        A(f"ds_read_b128 {v(KF(t),4)}, v{vKA} offset:{(t%16)*4096}"); q.issue(("K", t))
    def rdV(t):
        A("s_mov_b64 exec, s[20:21]")
        A(f"ds_read_b128 {v(VF(t,0),4)}, v{vVA} offset:{(t%16)*4096}"); q.issue(("V0", t))
        A(f"ds_read_b128 {v(VF(t,1),4)}, v{vVA} offset:{(t%16)*4096+512}"); q.issue(("V1", t))
        A("s_mov_b64 exec, -1")
    def qk(t):
        q.wait(("K", t))
        A(f"v_mfma_f32_32x32x16_bf16 {v(S(t),16)}, {v(KF(t),4)}, {v(vQ,4)}, 0")
    def e(t, i): A(f"v_exp_f32 v{S(t)+i}, v{S(t)+i}")
    def c(t, k): A(f"v_cvt_pk_bf16_f32 v{vP+k}, v{S(t)+2*k}, v{S(t)+2*k+1}")
    def pv(t, j):
        cc = "0" if (t == 0 and j == 0) else v(vO, 16)
        A(f"v_mfma_f32_32x32x16_bf16 {v(vO,16)}, {v(VF(t,j),4)}, {v(vP+4*j,4)}, {cc}")
    rdK(0); rdK(1); rdV(0)
    qk(0)
    A("s_nop 7"); A("s_nop 3")
    for t in range(NT):
        A.comment(f"--- tile {t}")
        if t in PRIO: A(f"s_setprio {PRIO[t]}")
        for tok in SCHED.split():
            if tok[0] == 'e': e(t, int(tok[1:]))
            elif tok[0] == 'c': c(t, int(tok[1:]))
            elif tok == 'PV1':
                if t > 0: pv(t - 1, 1)
            elif tok == 'QK':
                if t + 1 < NT: qk(t + 1)
            elif tok == 'PV0':
                q.wait(("V1", t)); pv(t, 0)
            elif tok == 'RK':
                if t < 5:
                    r = 3 + t
                    A(f"s_add_u32 s26, s13, {r}")
                    A("s_and_b32 s26, s26, 7")
                    A("s_lshl_b32 s26, s26, 12")
                    A("s_add_u32 s26, s26, s25")
                    A(f"buffer_load_dwordx4 {v(vLD+4*t,4)}, v{vL16}, {WSRD}, s26 offen sc1")
                if t == 9:
                    A("s_waitcnt vmcnt(0)")
                    for i in range(5):
                        off = (3 + i) * 16384
                        if off + 0 < 65536: A(f"ds_write_b128 v{vLW}, {v(vLD+4*i,4)} offset:{off}")
                    A(f"v_add_u32 v{vLW}, 65536, v{vLW}")
                    for i in range(5):
                        off = (3 + i) * 16384
                        if off >= 65536: A(f"ds_write_b128 v{vLW}, {v(vLD+4*i,4)} offset:{off - 65536}")
                    A("s_waitcnt lgkmcnt(0)"); q.q = []
                    A("s_barrier")
                    A(f"v_lshlrev_b32 v{vT}, 2, v0")
                    A("s_lshl_b32 s26, s37, 7")
                    A(f"s_add_u32 s26, s26, {WS_F3}")
                    A(f"buffer_load_dword v{vLW}, v{vT}, {WSRD}, s26 offen sc1")
                if t == 11:
                    A("s_waitcnt vmcnt(0)")
                    check_or_poll(A, "AT_P3", vT, 26, "0xff", vLW)
                    A("s_lshl_b32 s27, s37, 14")
                    A("s_lshl_b32 s26, s16, 13")
                    A("s_add_u32 s27, s27, s26")
                    A(f"s_add_u32 s27, s27, {WS_WOF}")
                if 11 <= t < 19:
                    A(f"buffer_load_dwordx4 {v(vLD+4*(t-11),4)}, v{vL16}, {WSRD}, s27 offen sc1")
                    if t < 18: A("s_add_u32 s27, s27, 1024")
                if t == 20:
                    A("s_sub_u32 s26, s3, 4")
                    A("s_cmp_lt_u32 s26, 8")
                    A("s_cbranch_scc0 AT_NY0")
                    A(f"v_and_b32 v{vT}, 31, v0")
                    A(f"v_lshrrev_b32 v{vLW}, 5, v0")
                    A(f"v_lshlrev_b32 v{vT}, 16, v{vT}")
                    A(f"v_lshl_add_u32 v{vT}, v{vLW}, 13, v{vT}")
                    A.label("AT_NY0")
                    srd(A, 4, SP['out'], 2048*1024*2)
                if 21 <= t < 25:
                    r = t - 21
                    A("s_sub_u32 s26, s3, 4")
                    A("s_cmp_lt_u32 s26, 8")
                    A(f"s_cbranch_scc0 AT_NY{r+1}")
                    if r == 2: A("s_add_u32 s36, s36, 4096")
                    A(f"buffer_store_dword v{vY[r]}, v{vT}, s[4:7], s36 offen" + (" offset:2048" if r % 2 else ""))
                    A.label(f"AT_NY{r+1}")
                if t == 14:
                    A(f"v_add_u32 v{vKA}, 65536, v{vKA}")
                if t + 2 < NT: rdK(t + 2)
            elif tok == 'RV':
                if t == 15:
                    A(f"v_add_u32 v{vVA}, 65536, v{vVA}")
                if t + 1 < NT: rdV(t + 1)
            else: raise ValueError(tok)
    A("s_nop 1")
    pv(NT - 1, 1)
    A("s_nop 15")
    stamp(A, 5)
    A(f"v_mov_b32 v{vT}, v{vO+8}")
    A("s_nop 1")
    A(f"v_permlane32_swap_b32 v{vT}, v{vO+8}")
    A("s_nop 1")
    A(f"v_mov_b32 v{vO+8}, v{vT}")
    A("s_mov_b32 s28, 0x1f800000")
    A("s_mov_b32 s29, 0x5f800000")
    A(f"v_cmp_le_f32 vcc, s28, v{vO+8}")
    A(f"v_cmp_ge_f32 s[30:31], s29, v{vO+8}")
    A("s_nop 1")
    A("s_and_b64 vcc, vcc, s[30:31]")
    A("s_cmp_eq_u64 vcc, -1")
    A("s_cbranch_scc0 AT_FALLBACK")
    A.label("AT_COMBINE")
    A("s_mul_i32 s17, s15, 2560")
    A(f"s_add_u32 s17, s17, {L_SCR}")
    A(f"v_add_u32 v{vT}, s17, v{vL16}")
    A("v_lshlrev_b32 v12, 3, v0")
    A(f"v_add_u32 v12, s17, v12")
    A("s_cmp_eq_u32 s16, 0")
    A("s_cbranch_scc1 AT_LOW")
    A(f"ds_write_b128 v{vT}, {v(vO,4)}")
    A(f"ds_write_b128 v{vT}, {v(vO+4,4)} offset:1024")
    A(f"v_mov_b32 v{vO+9}, v{vM}")
    A(f"ds_write_b64 v12, {v(vO+8,2)} offset:2048")
    A("s_waitcnt lgkmcnt(0)")
    A("s_barrier")
    A("s_branch AT_DONE")
    A.label("AT_LOW")
    A("s_barrier")
    B = vS
    A(f"ds_read_b128 {v(B,4)}, v{vT}")
    A(f"ds_read_b128 {v(B+4,4)}, v{vT} offset:1024")
    A(f"ds_read_b64 {v(B+8,2)}, v12 offset:2048")
    A("s_waitcnt lgkmcnt(0)")
    t0, t1, t2 = 8, 9, 10
    A(f"v_max_f32 v{t0}, v{vM}, v{B+9}")
    A(f"v_sub_f32 v{t1}, v{vM}, v{t0}")
    A(f"v_sub_f32 v{t2}, v{B+9}, v{t0}")
    A(f"v_exp_f32 v{t1}, v{t1}")
    A(f"v_exp_f32 v{t2}, v{t2}")
    A("s_nop 0")
    for i in range(9):
        A(f"v_mul_f32 v{vO+i}, v{vO+i}, v{t1}")
    for i in range(9):
        A(f"v_fmac_f32 v{vO+i}, v{B+i}, v{t2}")
    A(f"v_rcp_f32 v{t0}, v{vO+8}")
    A("s_nop 0")
    for i in range(8):
        A(f"v_mul_f32 v{vO+i}, v{vO+i}, v{t0}")
    for k in range(4):
        A(f"v_cvt_pk_bf16_f32 v{vP+k}, v{vO+2*k}, v{vO+2*k+1}")
    A("s_nop 1")
    A(f"v_permlane32_swap_b32 v{vP}, v{vP+2}")
    A(f"v_permlane32_swap_b32 v{vP+1}, v{vP+3}")
    A(f"s_add_u32 s18, s18, {WS_O}")
    A("s_nop 1")
    A(f"buffer_store_dwordx4 {v(vP,4)}, v{vL16}, {WSRD}, s18 offen sc1")
    A("s_waitcnt vmcnt(0)")
    flag_store(A, 19, 12, 13)
    A.label("AT_DONE")
    stamp(A, 6)

def attention_fallback(A):
    A.label("AT_FALLBACK")
    A(f"v_mov_b32 v{vM}, 0xff800000")
    A(f"v_subrev_u32 v{vT}, 65536, v{vKA}")
    A("s_mov_b32 s17, 0")
    A.label("AT_FB1")
    A(f"ds_read_b128 {v(vKF,4)}, v{vT}")
    A(f"v_add_u32 v{vT}, 4096, v{vT}")
    A("s_waitcnt lgkmcnt(0)")
    A(f"v_mfma_f32_32x32x16_bf16 {v(vS,16)}, {v(vKF,4)}, {v(vQ,4)}, 0")
    A("s_nop 15")
    for k in range(8):
        A(f"v_max3_f32 v{vM}, v{vS+2*k}, v{vS+2*k+1}, v{vM}")
    A("s_add_u32 s17, s17, 1")
    A("s_cmp_lt_u32 s17, 32")
    A("s_cbranch_scc1 AT_FB1")
    A(f"v_mov_b32 v{vT}, v{vM}")
    A(f"v_mov_b32 v12, v{vM}")
    A("s_nop 1")
    A(f"v_permlane32_swap_b32 v{vT}, v12")
    A("s_nop 1")
    A(f"v_max_f32 v{vM}, v{vT}, v12")
    for i in range(16): A(f"v_mov_b32 v{vO+i}, 0")
    A(f"v_subrev_u32 v{vT}, 65536, v{vKA}")
    A(f"v_subrev_u32 v12, 65536, v{vVA}")
    A("s_mov_b32 s17, 0")
    A.label("AT_FB2")
    A(f"ds_read_b128 {v(vKF,4)}, v{vT}")
    A("s_mov_b64 exec, s[20:21]")
    A(f"ds_read_b128 {v(vVF,4)}, v12")
    A(f"ds_read_b128 {v(vVF+4,4)}, v12 offset:512")
    A("s_mov_b64 exec, -1")
    A(f"v_add_u32 v{vT}, 4096, v{vT}")
    A(f"v_add_u32 v12, 4096, v12")
    A("s_waitcnt lgkmcnt(0)")
    A(f"v_mfma_f32_32x32x16_bf16 {v(vS,16)}, {v(vKF,4)}, {v(vQ,4)}, 0")
    A("s_nop 15")
    for i in range(16): A(f"v_sub_f32 v{vS+i}, v{vS+i}, v{vM}")
    for i in range(16): A(f"v_exp_f32 v{vS+i}, v{vS+i}")
    A("s_nop 0")
    for k in range(8): A(f"v_cvt_pk_bf16_f32 v{vP+k}, v{vS+2*k}, v{vS+2*k+1}")
    A("s_nop 1")
    A(f"v_mfma_f32_32x32x16_bf16 {v(vO,16)}, {v(vVF,4)}, {v(vP,4)}, {v(vO,16)}")
    A(f"v_mfma_f32_32x32x16_bf16 {v(vO,16)}, {v(vVF+4,4)}, {v(vP+4,4)}, {v(vO,16)}")
    A("s_add_u32 s17, s17, 1")
    A("s_cmp_lt_u32 s17, 32")
    A("s_cbranch_scc1 AT_FB2")
    A("s_nop 15")
    A(f"v_mov_b32 v{vT}, v{vO+8}")
    A("s_nop 1")
    A(f"v_permlane32_swap_b32 v{vT}, v{vO+8}")
    A("s_nop 1")
    A(f"v_mov_b32 v{vO+8}, v{vT}")
    A("s_branch AT_COMBINE")

def tail(A):
    A("s_and_b32 s12, s2, 7"); A("s_lshl_b32 s12, s12, 3"); A("s_lshr_b32 s13, s2, 5"); A("s_add_u32 s12, s12, s13")
    A("s_lshr_b32 s13, s2, 3"); A("s_and_b32 s13, s13, 3")
    A("v_and_b32 v4, 15, v0")
    A("v_lshrrev_b32 v5, 4, v0")
    A("v_lshlrev_b32 v14, 9, v5")
    A("v_lshl_add_u32 v14, v4, 4, v14")
    A("s_lshl_b32 s17, s16, 14")
    A(f"s_add_u32 s17, s17, {L_OT}")
    A(f"v_add_u32 v14, s17, v14")
    A("s_cmp_eq_u32 s16, 0")
    A("s_cbranch_scc1 TL_WAIT")
    A("v_lshlrev_b32 v10, 2, v0")
    A("s_lshl_b32 s17, s12, 7")
    A(f"s_add_u32 s17, s17, {WS_F2}")
    poll(A, "TL_P2", 10, 17, "-1", 12)
    stamp(A, 43)
    A("s_lshl_b32 s17, s15, 18")
    A("s_lshl_b32 s18, s12, 10")
    A("s_add_u32 s17, s17, s18")
    A(f"s_add_u32 s17, s17, {WS_O}")
    for i in range(4):
        A(f"buffer_load_dwordx4 {v(16+4*i,4)}, v{vL16}, {WSRD}, s17 offen sc1")
        if i < 3: A("s_add_u32 s17, s17, 65536")
    A("s_lshl_b32 s18, s15, 12")
    A(f"s_add_u32 s18, s18, {L_OT}")
    A(f"v_add_u32 v13, s18, v{vL16}")
    for i in range(4):
        A(f"s_waitcnt vmcnt({3-i})")
        A(f"ds_write_b128 v13, {v(16+4*i,4)} offset:{i*1024}")
    A.label("TL_WAIT")
    A("s_waitcnt vmcnt(0) lgkmcnt(0)")
    stamp(A, 44)
    A("s_barrier")
    stamp(A, 45)
    q = DSQ(A)
    FO = 16
    def rd(s_):
        b = s_ % 3
        for th in range(2):
            A(f"ds_read_b128 {v(FO+12*th+4*b,4)}, v14 offset:{s_*2048 + th*256}"); q.issue(("o", s_, th))
    rd(0); rd(1)
    for s_ in range(8):
        if s_ + 2 < 8: rd(s_ + 2)
        b = s_ % 3
        for th in range(2):
            q.wait(("o", s_, th))
            cc = "0" if s_ == 0 else v(40+4*th, 4)
            A(f"v_mfma_f32_16x16x32_bf16 {v(40+4*th,4)}, {v(vLD+4*s_,4)}, {v(FO+12*th+4*b,4)}, {cc}")
    A("s_lshl_b32 s17, s15, 11")
    A(f"s_add_u32 s17, s17, {L_PC}")
    A(f"v_add_u32 v13, s17, v{vL16}")
    A("v_lshlrev_b32 v15, 11, v4")
    A("v_lshl_add_u32 v15, v5, 3, v15")
    A("s_lshl_b32 s18, s12, 16")
    A("s_lshl_b32 s19, s13, 8")
    A("s_add_u32 s18, s18, s19")
    A("s_lshl_b32 s19, s15, 5")
    A("s_add_u32 s18, s18, s19")
    A("s_add_u32 s18, s18, 1024")
    A("s_nop 3")
    A("s_cmp_eq_u32 s16, 0")
    A("s_cbranch_scc1 TL_LO")
    A("ds_write_b128 v13, v[40:43]")
    A("ds_write_b128 v13, v[44:47] offset:1024")
    A("s_waitcnt lgkmcnt(0)")
    A("s_barrier")
    A("s_cmp_eq_u32 s2, 0")
    A("s_cbranch_scc0 TL_END")
    A("s_cmp_eq_u32 s3, 8")
    A("s_cbranch_scc0 TL_END")
    A(f"s_mov_b32 s17, {WS_EP}")
    flag_store(A, 17, 12, 13)
    A("s_branch TL_END")
    A.label("TL_LO")
    A("s_barrier")
    A("ds_read_b128 v[16:19], v13")
    A("ds_read_b128 v[20:23], v13 offset:1024")
    srd(A, 4, SP['out'], 2048*1024*2)
    A("s_waitcnt lgkmcnt(0)")
    for i in range(8):
        A(f"v_add_f32 v{40+i}, v{40+i}, v{16+i}")
    for th in range(2):
        A(f"v_cvt_pk_bf16_f32 v{48+2*th}, v{40+4*th}, v{41+4*th}")
        A(f"v_cvt_pk_bf16_f32 v{49+2*th}, v{42+4*th}, v{43+4*th}")
    A(f"buffer_store_dwordx2 v[48:49], v15, s[4:7], s18 offen")
    A("s_add_u32 s18, s18, 32768")
    A(f"buffer_store_dwordx2 v[50:51], v15, s[4:7], s18 offen")
    A.label("TL_END")

def gen():
    A = Asm()
    kernel_begin(A, NAME)
    if PROF:
        A("v_mov_b32 v125, 0")
        A("s_memrealtime s[38:39]")
    stamp(A, 0)
    A("s_cmp_ge_u32 s2, 256")
    A("s_cbranch_scc1 K_END")
    A("s_load_dwordx16 s[64:79], s[0:1], 0")
    A("s_load_dwordx8 s[80:87], s[0:1], 64")
    A("s_load_dwordx2 s[88:89], s[0:1], 96")
    A("v_lshrrev_b32 v8, 6, v0")
    A("v_and_b32 v0, 63, v0")
    A("v_readfirstlane_b32 s3, v8")
    A(f"v_lshlrev_b32 v{vL16}, 4, v0")
    p1_ids(A)
    A("v_mov_b32 v9, 0")
    A("s_waitcnt lgkmcnt(0)")
    if PROF: A("s_mov_b32 s91, s38")
    srd(A, sWS, SP['ws'], WS_TOTAL)
    A(f"s_mov_b32 s16, {WS_EP}")
    A(f"buffer_load_dword v{vE}, v9, {WSRD}, s16 offen sc1")
    A("s_cmp_lt_u32 s3, 4")
    A("s_cbranch_scc1 R_COMPUTE")
    A("s_cmp_ge_u32 s3, 12")
    A("s_cbranch_scc1 R_KGEN")
    p1_loader(A)
    A("s_branch R_JOIN")
    A.label("R_KGEN")
    kgen(A)
    A("s_branch R_LD")
    A.label("R_COMPUTE")
    p1_compute(A)
    A.label("R_LD")
    ld_group(A)
    A.label("R_JOIN")
    attention(A)
    tail(A)
    stamp(A, 50)
    A("s_waitcnt vmcnt(0)")
    stamp(A, 51)
    write_stamps(A)
    A.label("K_END")
    A("s_endpgm")
    attention_fallback(A)
    A(".p2align 6")
    A(".type GTAB,@object")
    A.label("GTAB")
    t = gather_table()
    for i in range(0, 2048, 16):
        A(".long " + ", ".join(str(int(x)) for x in t[i:i+16]))
    A(".size GTAB, 8192")
    hdr_src = open("concat_heads__ssm_conv_s4d__mha_block__prompt.s.ref").read().split("\n")
    hdr = [l for l in hdr_src if l.startswith(";") and "@launch" not in l and "Override launch" not in l and "grid=ceil" not in l]
    out = "\n".join(hdr) + "\n; @launch grid=(256,1,1) block=(1024,1,1) lds=163840\n"
    out += '.amdgcn_target "amdgcn-amd-amdhsa--gfx950"\n'
    out += A.text() + kernel_desc(NAME, 128, 100)
    return out

if __name__ == "__main__":
    open(sys.argv[1] if len(sys.argv) > 1 else "fused.s", "w").write(gen())
```

```python
import os, struct, sys
from asmlib import *
from ssm_common import gather_table

NAME = "concat_heads__ssm_conv_s4d__mha_block__prompt_kernel"
PROF = bool(os.environ.get("PROF"))
DBG = bool(os.environ.get("DBG"))
DBGMAP = {0: 0, 10: 1, 1: 2, 2: 3, 4: 4, 5: 5, 6: 6, 45: 7}

def f32bits(x): return struct.unpack("<I", struct.pack("<f", x))[0]
LOG2E = 1.4426950408889634
INV2PI = 0.15915494309189535
C_SCALE = 0.25 * LOG2E

WS_Q = 0x000000; WS_K = 0x200000; WS_V = 0x400000; WS_O = 0x600000
WS_UT = 0x800000
WS_WOF = 0xA00000
FS = 8
WS_F1 = 0xA80000
WS_F2 = 0xAC0000
WS_F3 = 0xB40000
WS_FU = 0xB50000
WS_EP = 0xB90000
WS_TOTAL = 0xBA0000
WS_PROF = 0x1000000
SP = dict(u=64, lar=66, aim=68, cre=70, cim=72, ldt=74, dsk=76, x=78, wqkv=80, wo=82, out=84, dbg=86, ws=88)
sWS = 44
WSRD = f"s[{sWS}:{sWS+3}]"
sT = 90
vL16 = 1
vE = 127

SLOT = 28672; NSLOT = 3; AHEAD = 2
L_TA = 86016; L_TBO = 11088; L_TCH = 27984
L_T = 143360
L_CNT = 147968
C_G = L_CNT; C_CV = L_CNT + 4; C_WO = L_CNT + 8; C_KR = L_CNT + 12
def C_RDY(c): return L_CNT + 16 + 4*c
def C_DONE(c): return L_CNT + 48 + 4*c
C_FU = L_CNT + 80; C_F1 = L_CNT + 84; C_F2 = L_CNT + 88; C_ISS = L_CNT + 92; C_T = L_CNT + 96; C_GU = L_CNT + 100; C_GT = L_CNT + 104; C_OWN = L_CNT + 108; C_OWN2 = L_CNT + 112; C_PAR = L_CNT + 116; C_GT2 = L_CNT + 120
L_PAR = L_T
L_KREV = 148480; KREV_SZ = 7680
L_UTL = L_KREV
L_WOT = 86016
L_UC = 57344; UC_RHO = 4160; UC_CH = 16640
L_PART = 90624
L_QS = 49152
L_SCR = 131072
L_OT = 0
L_PC = 32768

class DSQ:
    def __init__(self, A): self.A = A; self.q = []
    def issue(self, tag): self.q.append(tag)
    def wait(self, tag):
        if tag not in self.q: return
        i = len(self.q) - 1 - self.q[::-1].index(tag)
        n = len(self.q) - 1 - i
        assert n <= 15, n
        self.A(f"s_waitcnt lgkmcnt({n})")
        self.q = self.q[i+1:]
    def room(self):
        if len(self.q) >= 15: self.wait(self.q[0])
    def drain(self):
        self.A("s_waitcnt lgkmcnt(0)"); self.q = []

def stamp(A, k):
    if DBG and k in DBGMAP:
        j = DBGMAP[k]
        A("s_memtime s[48:49]")
        A("s_memrealtime s[50:51]")
        A("s_waitcnt lgkmcnt(0)")
        A(f"v_writelane_b32 v125, s48, {2*j}")
        A(f"v_writelane_b32 v125, s50, {2*j+1}")
    if PROF:
        A("s_memtime s[48:49]")
        A("s_waitcnt lgkmcnt(0)")
        A(f"v_writelane_b32 v125, s48, {k}")

def write_stamps(A):
    if not PROF: return
    A("s_memrealtime s[40:41]")
    A("s_waitcnt lgkmcnt(0)")
    A(f"v_writelane_b32 v125, s40, 62")
    A(f"v_writelane_b32 v125, s91, 63")
    A(f"s_add_u32 s92, s{SP['ws']}, {WS_PROF}")
    A(f"s_addc_u32 s93, s{SP['ws']+1}, 0")
    A("s_mov_b32 s94, 0x200000")
    A("s_mov_b32 s95, 0x00020000")
    A("s_lshl_b32 s42, s2, 4"); A("s_add_u32 s42, s42, s3"); A("s_lshl_b32 s42, s42, 8")
    A("v_lshlrev_b32 v16, 2, v0")
    A("buffer_store_dword v125, v16, s[92:95], s42 offen")
    A("s_waitcnt vmcnt(0)")

def poll(A, label, vaddr, soff, mask_lo, vtmp, sleep=4):
    A(f"s_mov_b32 s30, {mask_lo}")
    A("s_mov_b32 s31, 0")
    A("s_mov_b64 exec, s[30:31]")
    A("s_mov_b32 s29, 0")
    A.label(label)
    A(f"buffer_load_dword v{vtmp}, v{vaddr}, {WSRD}, s{soff} offen sc1")
    A("s_add_u32 s29, s29, 1")
    A("s_waitcnt vmcnt(0)")
    A(f"v_cmp_ne_u32 vcc, s{sT}, v{vtmp}")
    A("s_cmp_gt_u32 s29, 0x10000")
    A(f"s_cbranch_scc1 {label}_x")
    A(f"s_cbranch_vccz {label}_x")
    A(f"s_sleep {sleep}")
    A(f"s_branch {label}")
    A.label(label + "_x")
    A("s_mov_b64 exec, -1")

def check_or_poll(A, label, vaddr, soff, mask_lo, vflag):
    A(f"s_mov_b32 s30, {mask_lo}")
    A("s_mov_b32 s31, 0")
    A(f"v_cmp_ne_u32 vcc, s{sT}, v{vflag}")
    A("s_nop 1")
    A("s_and_b64 vcc, vcc, s[30:31]")
    A(f"s_cbranch_vccz {label}_ok")
    poll(A, label, vaddr, soff, mask_lo, vflag)
    A.label(label + "_ok")

def flag_store(A, soff, vtmp, vzero):
    A(f"v_mov_b32 v{vtmp}, s{sT}")
    A(f"v_mov_b32 v{vzero}, 0")
    A("s_mov_b64 exec, 1")
    A(f"buffer_store_dword v{vtmp}, v{vzero}, {WSRD}, s{soff} offen sc1")
    A("s_mov_b64 exec, -1")

def get_tag(A, vt=126):
    L = A.newlabel("GT")
    A(f"v_mov_b32 v{vt}, {C_T}")
    A("s_mov_b32 s43, 0")
    A.label(L)
    A(f"ds_read_b32 v{vE}, v{vt}")
    A("s_add_u32 s43, s43, 1")
    A("s_waitcnt lgkmcnt(0)")
    A(f"v_readfirstlane_b32 s{sT}, v{vE}")
    A("s_cmp_gt_u32 s43, 0x80000")
    A(f"s_cbranch_scc1 {L}_x")
    A(f"s_cmp_eq_u32 s{sT}, 0")
    A(f"s_cbranch_scc1 {L}")
    A.label(L + "_x")

def make_tag(A):
    A(f"v_readfirstlane_b32 s{sT}, v{vE}")
    A("s_nop 3")
    A(f"s_mul_i32 s{sT}, s{sT}, 0x9e3779b1")
    A(f"s_add_u32 s{sT}, s{sT}, 0x7f4a7c15")
    A(f"s_or_b32 s{sT}, s{sT}, 1")
    A(f"v_mov_b32 v{vE}, s{sT}")
    A(f"v_mov_b32 v126, {C_T}")
    A(f"ds_write_b32 v126, v{vE}")

def gsync(A, cnt_addr, target, vt):
    A("s_waitcnt lgkmcnt(0)")
    lsig(A, cnt_addr, vt)
    lwait(A, cnt_addr, target, vt, sleep=1)

def lsig(A, addr, vt):
    A(f"v_mov_b32 v{vt}, {addr}")
    A(f"v_mov_b32 v{vt+1}, 1")
    A("s_mov_b64 exec, 1")
    A(f"ds_add_u32 v{vt}, v{vt+1}")
    A("s_mov_b64 exec, -1")

def lwait(A, addr, target, vt, sleep=0):
    L = A.newlabel("LW")
    A(f"v_mov_b32 v{vt}, {addr}")
    A("s_mov_b32 s43, 0")
    A.label(L)
    A(f"ds_read_b32 v{vt+1}, v{vt}")
    A("s_add_u32 s43, s43, 1")
    A("s_waitcnt lgkmcnt(0)")
    A(f"v_readfirstlane_b32 s42, v{vt+1}")
    A("s_cmp_gt_u32 s43, 0x80000")
    A(f"s_cbranch_scc1 {L}_x")
    A(f"s_cmp_ge_u32 s42, {target}")
    if sleep:
        A(f"s_cbranch_scc1 {L}_x")
        A(f"s_sleep {sleep}")
        A(f"s_branch {L}")
    else:
        A(f"s_cbranch_scc0 {L}")
    A.label(L + "_x")

def merge(*chains):
    out = []; idx = [0] * len(chains)
    while any(idx[i] < len(chains[i]) for i in range(len(chains))):
        for i, ch in enumerate(chains):
            if idx[i] < len(ch):
                out.append(ch[idx[i]]); idx[i] += 1
    return out

class Rec:
    def __init__(self): self.L = []
    def __call__(self, s): self.L.append(s)

def chan_pair(A, dst, tmp):
    A(f"s_and_b32 s{dst}, s2, 7"); A(f"s_lshl_b32 s{dst}, s{dst}, 5"); A(f"s_lshr_b32 s{tmp}, s2, 3")
    A(f"s_add_u32 s{dst}, s{dst}, s{tmp}"); A(f"s_lshl_b32 s{dst}, s{dst}, 1")

def ka_wait(A):
    A("s_waitcnt lgkmcnt(0)")
    if PROF: A("s_mov_b32 s91, s38")
    srd(A, sWS, SP['ws'], WS_TOTAL)

def p1_ids(A):
    A("s_and_b32 s17, s2, 7")
    A("s_lshr_b32 s18, s2, 3")
    A("s_and_b32 s12, s17, 3")
    A("s_lshl_b32 s12, s12, 2")
    A("s_and_b32 s19, s18, 3")
    A("s_add_u32 s12, s12, s19")
    A("s_lshr_b32 s13, s17, 2")
    A("s_lshl_b32 s13, s13, 3")
    A("s_lshr_b32 s19, s18, 2")
    A("s_add_u32 s13, s13, s19")

def conv_part(A, p, vUA, vKB0, vKB1, ACC0, ACC1):
    ks = list({0: range(0, 24), 1: range(24, 48), 2: range(48, 80), 3: range(80, 128)}[p])
    q = DSQ(A)
    NB = 4
    FA, FB0, FB1 = 8, 24, 40
    def rd(i):
        k = ks[i]; b = i % NB
        A(f"ds_read_b64 {v(FA+4*b,2)}, v{vUA} offset:{32*k}"); q.issue(("a0", i))
        A(f"ds_read_b64 {v(FA+4*b+2,2)}, v{vUA} offset:{32*k+8}"); q.issue(("a1", i))
        off = (k//2)*80 + (k%2)*32
        A(f"ds_read_b128 {v(FB1+4*b,4)}, v{vKB1} offset:{off}"); q.issue(("b1", i))
        if k < 64:
            A(f"ds_read_b128 {v(FB0+4*b,4)}, v{vKB0} offset:{off}"); q.issue(("b0", i))
    n = len(ks)
    for i in range(min(NB-1, n)): rd(i)
    first0 = first1 = True
    for i in range(n):
        if i + NB - 1 < n: rd(i + NB - 1)
        k = ks[i]; b = i % NB
        q.wait(("b1", i))
        A(f"v_mfma_f32_32x32x16_bf16 {v(ACC1,16)}, {v(FA+4*b,4)}, {v(FB1+4*b,4)}, {'0' if first1 else v(ACC1,16)}"); first1 = False
        if k < 64:
            q.wait(("b0", i))
            A(f"v_mfma_f32_32x32x16_bf16 {v(ACC0,16)}, {v(FA+4*b,4)}, {v(FB0+4*b,4)}, {'0' if first0 else v(ACC0,16)}"); first0 = False

vY = [90, 91, 126, 127]

def p1_loader(A):
    vDX, vDX1, vDW = 2, 3, 5
    A("s_sub_u32 s15, s3, 4")
    A("s_setprio 3")
    A("v_lshrrev_b32 v9, 3, v0")
    A("v_lshrrev_b32 v10, 1, v9")
    A("v_xor_b32 v10, v10, v0")
    A("v_and_b32 v10, 7, v10")
    A("v_lshlrev_b32 v10, 4, v10")
    A(f"v_lshl_add_u32 v{vDX}, v9, 10, v10")
    A(f"v_xor_b32 v{vDX1}, 64, v{vDX}")
    A("s_lshl_b32 s20, s12, 17")
    A("s_lshl_b32 s17, s15, 14")
    A("s_add_u32 s20, s20, s17")
    A("s_lshl_b32 s21, s13, 6")
    A("s_lshl_b32 s22, s15, 11")
    A("s_lshl_b32 s23, s15, 10")
    A("s_add_u32 s23, s23, 16384")
    A("s_lshr_b32 s25, s2, 5")
    A("s_lshr_b32 s17, s2, 3")
    A("s_and_b32 s17, s17, 3")
    A("s_lshl_b32 s17, s17, 1")
    A("s_add_u32 s25, s25, s17")
    A("s_waitcnt lgkmcnt(0)")
    srd(A, 4, SP['x'], 2048*512*2)
    srd(A, 8, SP['wqkv'], 512*1536*2)
    def issue_x(c):
        slot = (c % NSLOT) * SLOT
        A(f"s_add_u32 s26, s25, {c}")
        A("s_and_b32 s26, s26, 7")
        A(f"s_lshl_b32 s24, s26, 7")
        A(f"s_add_u32 s24, s24, s20")
        A(f"s_add_u32 m0, s22, {slot}")
        A(f"s_mul_i32 s27, s26, {64*3072}")
        A(f"buffer_load_dwordx4 v{vDX}, s[4:7], s24 offen lds")
        A(f"s_add_u32 m0, s22, {slot + 1024}")
        A(f"s_add_u32 s24, s24, 8192")
        A(f"buffer_load_dwordx4 v{vDX1}, s[4:7], s24 offen lds")
    def issue_w(c, nw):
        slot = (c % NSLOT) * SLOT
        A(f"s_add_u32 m0, s23, {slot}")
        A(f"s_add_u32 s27, s27, s21")
        A(f"buffer_load_dwordx4 v{vDW}, s[8:11], s27 offen lds")
        if nw == 2:
            A(f"s_add_u32 m0, s23, {slot + 8192}")
            A("s_nop 0")
            A(f"buffer_load_dwordx4 v{vDW+1}, s[8:11], s27 offen lds")
    def wsetup():
        A("s_lshl_b32 s17, s15, 6")
        A("s_movk_i32 s18, 3072")
        A("s_mov_b32 s19, 43691")
        for i in range(2):
            A(f"v_add_u32 v9, s17, v0")
            if i: A(f"v_add_u32 v9, 512, v9")
            A("v_mul_u32_u24 v10, s19, v9")
            A("v_lshrrev_b32 v10, 19, v10")
            A("v_mul_u32_u24 v11, 12, v10")
            A("v_sub_u32 v11, v9, v11")
            A("v_lshrrev_b32 v12, 2, v10")
            A("v_and_b32 v12, 2, v12")
            A("v_xor_b32 v11, v11, v12")
            A("v_lshrrev_b32 v12, 2, v11")
            A("v_and_b32 v11, 3, v11")
            A("v_lshlrev_b32 v11, 4, v11")
            A("v_lshl_add_u32 v11, v12, 10, v11")
            A(f"v_mad_u32_u24 v{vDW+i}, v10, s18, v11")
    def gtab():
        A("s_getpc_b64 s[32:33]")
        L = A.newlabel("CPC"); A.label(L)
        A(f"s_add_u32 s32, s32, GTAB-{L}")
        A("s_addc_u32 s33, s33, 0")
        A("s_and_b32 s17, s15, 3"); A("s_lshl_b32 s17, s17, 11")
        A("v_lshlrev_b32 v14, 5, v0")
        A("v_add_u32 v14, s17, v14")
        A("global_load_dwordx4 v[96:99], v14, s[32:33]")
        A("global_load_dwordx4 v[100:103], v14, s[32:33] offset:16")
    def extras(nw):
        A("v_lshrrev_b32 v14, 3, v0")
        A("v_lshlrev_b32 v14, 10, v14")
        A("v_and_b32 v13, 7, v0")
        A("v_lshl_add_u32 v14, v13, 4, v14")
        A("s_lshr_b32 s19, s2, 3"); A("s_lshl_b32 s19, s19, 16")
        A("s_lshl_b32 s17, s15, 13")
        A("s_add_u32 s19, s19, s17")
        A("s_and_b32 s17, s2, 7"); A("s_lshl_b32 s17, s17, 7")
        A("s_add_u32 s19, s19, s17")
        srd(A, 32, SP['u'], 2048*512*2)
        A("s_lshl_b32 s18, s15, 10")
        A(f"s_add_u32 m0, s18, {L_UTL}")
        A("s_mov_b32 s30, -1"); A("s_mov_b32 s31, 0")
        A("buffer_load_dwordx4 v14, s[32:35], s19 offen lds")
        if nw == 2:
            chan_pair(A, 14, 17)
            A("s_lshl_b32 s17, s14, 8")
            A(f"s_mov_b32 s32, s{SP['lar']}"); A(f"s_mov_b32 s33, s{SP['lar']+1}")
            for mm_, nm in ((1, 'aim'), (2, 'cre'), (3, 'cim')):
                A(f"s_cmp_eq_u32 s15, {mm_}")
                A(f"s_cselect_b32 s32, s{SP[nm]}, s32"); A(f"s_cselect_b32 s33, s{SP[nm]+1}, s33")
            A(f"s_mov_b32 s34, {512*128*2}")
            A("s_lshl_b32 s18, s15, 9")
            A(f"s_add_u32 m0, s18, {L_PAR}")
            A("s_mov_b64 exec, s[30:31]")
            A(f"buffer_load_dwordx4 v{vL16}, s[32:35], s17 offen lds")
            A("s_mov_b64 exec, -1")
        else:
            srd(A, 32, SP['wo'], 512*512*2)
            A("v_lshrrev_b32 v14, 1, v0")
            A("v_lshlrev_b32 v14, 10, v14")
            A("v_and_b32 v13, 1, v0")
            A("v_lshl_add_u32 v14, v13, 4, v14")
            A("s_and_b32 s17, s2, 7"); A("s_lshl_b32 s17, s17, 16")
            A("s_and_b32 s18, s15, 3"); A("s_lshl_b32 s19, s18, 14")
            A("s_add_u32 s17, s17, s19")
            A("s_lshr_b32 s19, s2, 3"); A("s_lshl_b32 s19, s19, 5")
            A("s_add_u32 s17, s17, s19")
            A("s_lshl_b32 s18, s18, 9")
            A(f"s_add_u32 m0, s18, {L_WOT}")
            A("s_mov_b64 exec, s[30:31]")
            A("buffer_load_dwordx4 v14, s[32:35], s17 offen lds")
            A("s_mov_b64 exec, -1")
    def loop(nw):
        per = 2 + nw
        issue_w(0, nw)
        issue_x(1); issue_w(1, nw)
        for c in range(8):
            last = min(7, c + 1)
            A(f"s_waitcnt vmcnt({per * (last - c) + (2 if c == 1 else 0)})")
            A("s_barrier")
            if c + AHEAD < 8:
                issue_x(c + AHEAD); issue_w(c + AHEAD, nw)
            if c == 0: extras(nw)
    issue_x(0)
    wsetup()
    A("s_cmp_ge_u32 s15, 4")
    A("s_cbranch_scc1 P1_LOADER1")
    loop(2)
    A("s_branch P1_LOADER_END")
    A.label("P1_LOADER1")
    loop(1)
    A.label("P1_LOADER_END")
    ka_wait(A)
    A("s_setprio 1")
    stamp(A, 28)
    if os.environ.get("X_P1ONLY"): A("s_branch K_FIN")
    gtab()
    chan_pair(A, 14, 17)
    A("s_lshr_b32 s16, s15, 2")
    A("s_lshr_b32 s18, s15, 1"); A("s_and_b32 s18, s18, 1")
    A("s_lshl_b32 s17, s14, 1")
    A(f"s_add_u32 s22, s{SP['ldt']}, s17"); A(f"s_addc_u32 s23, s{SP['ldt']+1}, 0")
    A(f"s_add_u32 s24, s{SP['dsk']}, s17"); A(f"s_addc_u32 s25, s{SP['dsk']+1}, 0")
    A("s_load_dword s26, s[22:23], 0")
    A("s_load_dword s27, s[24:25], 0")
    A(f"s_mul_i32 s20, s16, {L_TCH}")
    A("s_lshl_b32 s21, s18, 8")
    A("s_add_u32 s20, s20, s21")
    A(f"s_add_u32 s20, s20, {L_TA}")
    A("v_lshlrev_b32 v15, 2, v0")
    A("v_add_u32 v15, s20, v15")
    A(f"v_add_u32 v8, {L_TBO}, v15")
    get_tag(A)
    kg_read(A, 16, 18, 4, 21)
    A("s_cmp_eq_u32 s16, 0")
    A("s_cselect_b32 s20, 16, 0")
    A("s_lshl_b32 s26, s26, s20"); A("s_and_b32 s26, s26, 0xffff0000")
    A("s_lshl_b32 s27, s27, s20"); A("s_and_b32 s27, s27, 0xffff0000")
    kg_setup(A, 26, 21, True)
    stamp(A, 20)
    A("s_bitcmp1_b32 s15, 0")
    A("s_cbranch_scc1 CV_ASIDE")
    kg_bside(A, 8)
    A("s_branch CV_S1E")
    A.label("CV_ASIDE")
    kg_aside(A, 15)
    A.label("CV_S1E")
    stamp(A, 21)
    gsync(A, C_CV, 8, 72)
    stamp(A, 22)
    A("v_and_b32 v9, 15, v0")
    A("v_lshrrev_b32 v10, 4, v0")
    A("v_mul_u32_u24 v11, 528, v9")
    A("v_lshl_add_u32 v11, v10, 4, v11")
    A(f"s_mul_i32 s20, s16, {L_TCH}")
    A(f"s_add_u32 s20, s20, {L_TA}")
    A(f"s_mul_i32 s22, s18, {16*528}")
    A("s_add_u32 s22, s22, s20")
    A("v_add_u32 v12, s22, v11")
    A("s_and_b32 s23, s15, 1")
    A(f"s_mul_i32 s22, s23, {16*528}")
    A("s_add_u32 s22, s22, s20")
    A(f"s_add_u32 s22, s22, {L_TBO}")
    A("v_add_u32 v13, s22, v11")
    q = DSQ(A)
    for s_ in range(8):
        q.room(); A(f"ds_read_b128 {v(16+4*s_,4)}, v12 offset:{s_*64}"); q.issue(("a", s_))
        q.room(); A(f"ds_read_b128 {v(48+4*s_,4)}, v13 offset:{s_*64}"); q.issue(("b", s_))
    for s_ in range(8):
        q.wait(("b", s_))
        A(f"v_mfma_f32_16x16x32_bf16 v[80:83], {v(16+4*s_,4)}, {v(48+4*s_,4)}, {'0' if s_==0 else 'v[80:83]'}")
    A("s_lshl_b32 s20, s16, 11")
    A("s_lshl_b32 s22, s18, 10")
    A("s_add_u32 s20, s20, s22")
    A("s_lshl_b32 s22, s23, 5")
    A("s_add_u32 s20, s20, s22")
    A(f"s_add_u32 s20, s20, {L_T}")
    A("v_lshlrev_b32 v14, 8, v10")
    A("v_lshl_add_u32 v14, v9, 1, v14")
    A("v_add_u32 v14, s20, v14")
    A("s_and_b32 s22, s15, 3")
    A("s_cmp_eq_u32 s22, 0")
    A("s_cselect_b32 s27, s27, 0")
    A("v_cmp_eq_u32 vcc, 0, v0")
    A("v_mov_b32 v15, s27")
    A("v_cmp_eq_u32 vcc, 0, v0")
    A("s_nop 1")
    A("v_cndmask_b32 v15, 0, v15, vcc")
    A("v_add_f32 v80, v80, v15")
    A("v_cvt_pk_bf16_f32 v84, v80, v81")
    A("v_cvt_pk_bf16_f32 v85, v82, v83")
    A("ds_write_b16 v14, v84")
    A("ds_write_b16_d16_hi v14, v84 offset:64")
    A("ds_write_b16 v14, v85 offset:128")
    A("ds_write_b16_d16_hi v14, v85 offset:192")
    lwait(A, C_FU, 1, 72, sleep=1)
    A("s_add_u32 s17, s14, s16")
    A("s_lshl_b32 s17, s17, 12")
    A(f"s_add_u32 s17, s17, {WS_UT}")
    A(f"s_add_u32 s32, s{SP['ws']}, s17"); A(f"s_addc_u32 s33, s{SP['ws']+1}, 0")
    A("s_mov_b32 s34, 4096"); A("s_mov_b32 s35, 0x00020000")
    A("s_and_b32 s19, s15, 3"); A("s_lshl_b32 s19, s19, 10")
    A(f"v_add_u32 v116, s19, v{vL16}")
    A("v_subrev_u32 v117, 16, v116")
    A("v_cmp_eq_u32 vcc, 0, v116")
    A("v_mov_b32 v118, 4096")
    A("s_nop 0")
    A("v_cndmask_b32 v117, v117, v118, vcc")
    A("buffer_load_dwordx4 v[108:111], v117, s[32:35], 0 offen sc1")
    A("buffer_load_dwordx4 v[112:115], v116, s[32:35], 0 offen sc1")
    A("v_mov_b32 v119, 4096")
    A(f"v_mov_b32 v120, {255*16}")
    A("v_cmp_eq_u32 vcc, 3, v0")
    A("s_nop 1")
    A("v_cndmask_b32 v119, v119, v120, vcc")
    A("s_cmp_eq_u32 s19, 0")
    A("s_cbranch_scc0 CV_NX0")
    A("buffer_load_dwordx4 v[120:123], v119, s[32:35], 0 offen sc1")
    A.label("CV_NX0")
    gsync(A, C_CV, 16, 72)
    stamp(A, 23)
    A("s_lshl_b32 s20, s16, 11")
    A(f"s_add_u32 s20, s20, {L_T}")
    A("s_waitcnt vmcnt(3)")
    A("s_cmp_eq_u32 s19, 0")
    A("s_cbranch_scc1 CV_W3")
    A("s_waitcnt vmcnt(2)")
    A.label("CV_W3")
    for e in range(8): A(f"v_add_u32 v{96+e}, s20, v{96+e}")
    for e in range(8):
        op = "ds_read_u16_d16_hi" if e % 2 else "ds_read_u16"
        A(f"{op} v{(32 if e % 2 else 16)+e//2}, v{96+e}")
    A("s_and_b32 s22, s15, 3")
    A("s_lshl_b32 s20, s22, 6")
    A("v_add_u32 v9, s20, v0")
    A("v_lshrrev_b32 v10, 2, v9")
    A("v_mul_u32_u24 v10, 80, v10")
    A("v_and_b32 v9, 3, v9")
    A("v_lshl_add_u32 v10, v9, 4, v10")
    A(f"s_mul_i32 s23, s16, {KREV_SZ}")
    A(f"s_add_u32 s23, s23, {L_KREV}")
    A("v_add_u32 v10, s23, v10")
    for j in range(4): A(f"v_mov_b32 v{40+j}, 0")
    A("s_lshl_b32 s20, s22, 10")
    A(f"s_add_u32 s20, s20, {64*80}")
    A(f"v_add_u32 v11, s20, v{vL16}")
    A(f"v_cmp_gt_u32 vcc, {KREV_SZ}, v11")
    A("v_add_u32 v11, s23, v11")
    A("s_waitcnt lgkmcnt(0)")
    A(f"v_cmp_gt_u32 vcc, {KREV_SZ}, v11") if False else None
    A(f"s_add_u32 s20, s23, {KREV_SZ}")
    A("v_cmp_gt_u32 vcc, s20, v11")
    A("s_and_saveexec_b64 s[24:25], vcc")
    A("ds_write_b128 v11, v[40:43]")
    A("s_mov_b64 exec, s[24:25]")
    for j in range(4): A(f"v_or_b32 v{16+j}, v{16+j}, v{32+j}")
    A("ds_write_b128 v10, v[16:19]")
    def copies(D, dest):
        T0, T1, T2 = 44, 48, 52
        for j in range(4): A(f"v_alignbit_b32 v{T0+j}, v{D+j+1}, v{D+j}, 16")
        for j in range(4): A(f"v_mov_b32 v{T1+j}, v{D+1+j}")
        for j in range(4): A(f"v_alignbit_b32 v{T2+j}, v{D+j+2}, v{D+j+1}, 16")
        A(f"ds_write_b128 v{dest}, {v(T0,4)}")
        A(f"ds_write_b128 v{dest}, {v(T1,4)} offset:{UC_RHO}")
        A(f"ds_write_b128 v{dest}, {v(T2,4)} offset:{2*UC_RHO}")
        A(f"ds_write_b128 v{dest}, {v(D+2,4)} offset:{3*UC_RHO}")
    A(f"s_mul_i32 s21, s16, {UC_CH}")
    A(f"s_add_u32 s21, s21, {L_UC + 48}")
    A("v_add_u32 v19, s21, v116")
    A("v_and_b32 v9, 31, v0")
    A("v_lshrrev_b32 v10, 5, v0")
    A("v_and_b32 v11, 3, v9")
    A(f"v_mul_u32_u24 v11, {UC_RHO}, v11")
    A("v_lshrrev_b32 v12, 2, v9")
    A("v_lshl_add_u32 v11, v12, 3, v11")
    A("v_lshl_add_u32 v11, v10, 4, v11")
    A(f"s_mul_i32 s24, s16, {UC_CH}")
    A(f"s_add_u32 s24, s24, {L_UC}")
    A("v_add_u32 v4, s24, v11")
    A("v_sub_u32 v11, 63, v9")
    A("v_mul_u32_u24 v11, 80, v11")
    A("v_lshl_add_u32 v11, v10, 4, v11")
    A("v_add_u32 v5, s23, v11")
    A("v_subrev_u32 v6, 2560, v5")
    A("s_and_b32 s24, s15, 3")
    A(f"s_mul_i32 s25, s16, 28672")
    A("s_lshl_b32 s26, s24, 12")
    A("s_add_u32 s25, s25, s26")
    A(f"s_add_u32 s25, s25, {L_PART}")
    A(f"v_add_u32 v7, s25, v{vL16}")
    A("s_waitcnt vmcnt(0)")
    copies(108, 19)
    A("s_cmp_eq_u32 s19, 0")
    A("s_cbranch_scc0 CV_NOX2")
    for j in range(4): A(f"v_mov_b32 v{56+j}, v{120+j}")
    for j in range(4): A(f"v_mov_b32 v{60+j}, 0")
    A(f"v_mov_b32 v30, {259*16}")
    A("v_cmp_eq_u32 vcc, 3, v0")
    A("s_sub_u32 s21, s21, 48")
    A(f"v_cndmask_b32 v30, v{vL16}, v30, vcc")
    A("v_add_u32 v30, s21, v30")
    A("s_mov_b64 exec, 15")
    copies(56, 30)
    A("s_mov_b64 exec, -1")
    A.label("CV_NOX2")
    gsync(A, C_CV, 24, 8)
    stamp(A, 30)
    ACC0, ACC1 = 56, 72
    for p in range(4):
        if p < 3:
            A(f"s_cmp_eq_u32 s24, {p}")
            A(f"s_cbranch_scc0 CV_P{p+1}")
        conv_part(A, p, 4, 5, 6, ACC0, ACC1)
        A("s_nop 15")
        for qd in range(4):
            A(f"ds_write_b128 v7, {v(ACC1+4*qd,4)} offset:{qd*1024}")
        if p < 3:
            for qd in range(4):
                A(f"ds_write_b128 v7, {v(ACC0+4*qd,4)} offset:{16384 + qd*1024}")
            A("s_branch CV_PE")
            A.label(f"CV_P{p+1}")
    A.label("CV_PE")
    stamp(A, 31)
    gsync(A, C_CV, 32, 8)
    stamp(A, 32)
    A("s_lshl_b32 s26, s24, 10")
    A(f"s_add_u32 s26, s26, {L_PART}")
    A(f"v_add_u32 v4, s26, v{vL16}")
    A("s_cmp_eq_u32 s16, 0")
    A("s_cbranch_scc1 CV_F0")
    for c in range(2):
        for p in range(4):
            A(f"ds_read_b128 {v(16+16*c+4*p,4)}, v4 offset:{c*28672 + p*4096}")
    A("s_waitcnt lgkmcnt(0)")
    for c in range(2):
        for r in range(4):
            b_ = 16 + 16*c + r
            A(f"v_add_f32 v{b_}, v{b_}, v{b_+4}"); A(f"v_add_f32 v{b_+8}, v{b_+8}, v{b_+12}")
        for r in range(4):
            b_ = 16 + 16*c + r
            A(f"v_add_f32 v{b_}, v{b_}, v{b_+8}")
    A("s_branch CV_F1")
    A.label("CV_F0")
    for c in range(2):
        for p in range(3):
            A(f"ds_read_b128 {v(16+16*c+4*p,4)}, v4 offset:{c*28672 + 16384 + p*4096}")
    A("s_waitcnt lgkmcnt(0)")
    for c in range(2):
        for r in range(4):
            b_ = 16 + 16*c + r
            A(f"v_add_f32 v{b_}, v{b_}, v{b_+4}")
        for r in range(4):
            b_ = 16 + 16*c + r
            A(f"v_add_f32 v{b_}, v{b_}, v{b_+8}")
    A.label("CV_F1")
    for r in range(4):
        A(f"v_cvt_pk_bf16_f32 v{vY[r]}, v{16+r}, v{32+r}")
    A("s_lshl_b32 s36, s16, 21")
    A("s_lshl_b32 s25, s24, 14")
    A("s_add_u32 s36, s36, s25")
    A("s_lshl_b32 s25, s14, 1")
    A("s_add_u32 s36, s36, s25")
    A("s_setprio 0")
    stamp(A, 33)

def p1_compute(A):
    vFR, vACC, vXA, vWA = 8, 64, 112, 118
    A("v_and_b32 v4, 15, v0")
    A("v_lshrrev_b32 v5, 4, v0")
    A("v_lshrrev_b32 v6, 1, v4")
    A("v_xor_b32 v6, v6, v5")
    A("v_lshlrev_b32 v6, 4, v6")
    A("v_lshl_add_u32 v6, v4, 7, v6")
    A("s_lshr_b32 s17, s3, 1")
    A("s_lshl_b32 s17, s17, 13")
    A(f"v_add_u32 v{vXA}, s17, v6")
    A(f"v_xor_b32 v{vXA+1}, 64, v{vXA}")
    for st in (1, 2):
        A(f"v_add_u32 v{vXA+2*st}, {st*2*SLOT}, v{vXA}")
        A(f"v_add_u32 v{vXA+2*st+1}, {st*2*SLOT}, v{vXA+1}")
    A("v_lshrrev_b32 v6, 2, v4")
    A("v_lshl_add_u32 v6, v5, 3, v6")
    A("v_mul_u32_u24 v6, 192, v6")
    A("v_and_b32 v7, 3, v4")
    A("v_lshl_add_u32 v6, v7, 3, v6")
    A("s_and_b32 s17, s3, 1")
    A("v_xor_b32 v7, s17, v5")
    A("v_and_b32 v7, 1, v7")
    A(f"v_lshl_add_u32 v{vWA}, v7, 5, v6")
    A(f"v_add_u32 v{vWA+1}, {2*SLOT}, v{vWA}")
    A(f"v_add_u32 v{vWA+2}, {4*SLOT}, v{vWA}")
    A("s_and_b32 s18, s3, 1")
    A("s_lshl_b32 s19, s13, 1")
    A("s_add_u32 s18, s18, s19")
    A(f"s_lshl_b32 s16, s18, {5+FS}")
    A("s_lshl_b32 s18, s18, 16")
    A("s_lshr_b32 s19, s3, 1")
    A("s_lshl_b32 s24, s12, 1")
    A("s_add_u32 s24, s24, s19")
    A(f"s_lshl_b32 s25, s24, {FS}")
    A("s_add_u32 s16, s16, s25")
    A(f"s_add_u32 s16, s16, {WS_F1}")
    A("s_lshl_b32 s19, s24, 11")
    A("s_add_u32 s18, s18, s19")
    A(f"s_mov_b32 s17, 0x{f32bits(C_SCALE):08x}")
    A("s_setprio 3")
    q = DSQ(A)
    def fr(buf): return vFR + 28 * buf
    def rd_list(step):
        c, ks2 = step // 2, step % 2
        slot = c % NSLOT
        st, so = slot // 2, (slot % 2) * SLOT
        b = fr(step % 2)
        L = []
        for hf in range(2):
            L.append((f"ds_read_b64_tr_b16 {v(b+16+2*hf,2)}, v{vWA+st} offset:{so + 16384 + (32*ks2+4*hf)*192}", ("w", step, 0, hf)))
        for ti in range(4):
            L.append((f"ds_read_b128 {v(b+4*ti,4)}, v{vXA+2*st+ks2} offset:{so + ti*2048}", ("x", step, ti)))
        for gi in range(1, 3):
            for hf in range(2):
                L.append((f"ds_read_b64_tr_b16 {v(b+16+4*gi+2*hf,2)}, v{vWA+st} offset:{so + 16384 + (32*ks2+4*hf)*192 + 64*gi}", ("w", step, gi, hf)))
        return L
    def rd(step):
        for ins, tag in rd_list(step):
            A(ins); q.issue(tag)
    def mm(step, nxt=None):
        b = fr(step % 2)
        R = rd_list(nxt) if nxt is not None else []
        if os.environ.get("X_BURST"):
            for ins, tag in R:
                A(ins); q.issue(tag)
            R = []
        n = 0
        for gi in range(3):
            for ti in range(4):
                acc = vACC + (gi*4 + ti)*4
                X = v(b+4*ti, 4); W = v(b+16+4*gi, 4)
                cc = "0" if step == 0 else v(acc, 4)
                if gi == 0: q.wait(("x", step, ti))
                if ti == 0: q.wait(("w", step, gi, 1))
                if gi < 2: A(f"v_mfma_f32_16x16x32_bf16 {v(acc,4)}, {W}, {X}, {cc}")
                else:      A(f"v_mfma_f32_16x16x32_bf16 {v(acc,4)}, {X}, {W}, {cc}")
                if n < len(R):
                    A(R[n][0]); q.issue(R[n][1])
                n += 1
    ka_wait(A)
    for c in range(8):
        A("s_barrier")
        if c in (0, 7): stamp(A, 10 if c == 0 else 17)
        if c == 0: rd(0)
        else: mm(2*c - 1, 2*c)
        mm(2*c, 2*c + 1)
        q.drain()
    lsig(A, C_DONE(7), 4)
    mm(15)
    stamp(A, 1)
    T = vFR
    n = 0
    for gi, base in ((1, WS_K), (2, WS_V), (0, WS_Q)):
        if gi == 0:
            for ti in range(4):
                for r in range(4):
                    A(f"v_mul_f32 v{vACC+ti*4+r}, s17, v{vACC+ti*4+r}")
        for pair in range(2):
            a0 = vACC + (gi*4 + 2*pair)*4; a1 = a0 + 4
            t = T + 4 * n; n += 1
            A(f"v_cvt_pk_bf16_f32 v{t}, v{a0}, v{a0+1}")
            A(f"v_cvt_pk_bf16_f32 v{t+1}, v{a0+2}, v{a0+3}")
            A(f"v_cvt_pk_bf16_f32 v{t+2}, v{a1}, v{a1+1}")
            A(f"v_cvt_pk_bf16_f32 v{t+3}, v{a1+2}, v{a1+3}")
            A(f"s_add_u32 s24, s18, {base + pair*1024}")
            A("s_nop 0")
            op = "v_permlane32_swap_b32" if gi == 2 else "v_permlane16_swap_b32"
            A(f"{op} v{t}, v{t+2}")
            A(f"{op} v{t+1}, v{t+3}")
            A("s_nop 1")
            A(f"buffer_store_dwordx4 {v(t,4)}, v{vL16}, {WSRD}, s24 offen sc1")
    stamp(A, 18)
    A("s_waitcnt vmcnt(0)")
    get_tag(A)
    flag_store(A, 16, 2, 3)
    lsig(A, C_OWN, 2)
    A("s_setprio 0")
    stamp(A, 2)
    if os.environ.get("X_P1ONLY"): A("s_branch K_FIN")

def cmul(A, D, X, S, T):
    A(f"v_pk_mul_f32 {v(T,2)}, {v(X,2)}, {v(S,2)} op_sel:[0,0] op_sel_hi:[1,0]")
    A(f"v_pk_fma_f32 {v(D,2)}, {v(X,2)}, {v(S,2)}, {v(T,2)} op_sel:[1,1,0] op_sel_hi:[0,1,1] neg_lo:[0,1,0]")

def fl(p): return f"{float(p)!r}" if p in (1, 2, 4) else f"0x{f32bits(float(p)):08x}"
def anchor(A, D, p, vt2, vw, tmp, conj=False):
    A(f"v_mul_f32 v{tmp}, {fl(p)}, v{vt2}")
    A(f"v_mul_f32 v{tmp+1}, {fl(p)}, v{vw}")
    A(f"v_exp_f32 v{tmp}, v{tmp}")
    A(f"v_fract_f32 v{tmp+1}, v{tmp+1}")
    A(f"v_cos_f32 v{D}, v{tmp+1}")
    A(f"v_sin_f32 v{D+1}, v{tmp+1}")
    A("s_nop 0")
    A(f"v_mul_f32 v{D}, v{D}, v{tmp}")
    if conj: A(f"v_mul_f32_e64 v{D+1}, -v{D+1}, v{tmp}")
    else: A(f"v_mul_f32 v{D+1}, v{D+1}, v{tmp}")

def kg_scalars(A, kw_sreg, s0, dsk):
    chan_pair(A, s0, s0+1)
    A(f"s_lshr_b32 s{s0+2}, s{kw_sreg}, 1")
    A(f"s_and_b32 s{s0+4}, s{kw_sreg}, 1")
    A(f"s_lshl_b32 s{s0+1}, s{s0}, 1")
    A(f"s_add_u32 s{s0+8}, s{SP['ldt']}, s{s0+1}"); A(f"s_addc_u32 s{s0+9}, s{SP['ldt']+1}, 0")
    A(f"s_load_dword s{s0+6}, s[{s0+8}:{s0+9}], 0")
    if dsk:
        A(f"s_add_u32 s{s0+10}, s{SP['dsk']}, s{s0+1}"); A(f"s_addc_u32 s{s0+11}, s{SP['dsk']+1}, 0")
        A(f"s_load_dword s{s0+7}, s[{s0+10}:{s0+11}], 0")

def kg_read(A, s_c, s_mh, narr, s_tmp):
    A(f"s_lshl_b32 s{s_tmp}, s{s_c}, 8")
    A(f"v_lshlrev_b32 v9, 1, v0")
    A(f"v_add_u32 v9, s{s_tmp}, v9")
    A(f"s_lshl_b32 s{s_tmp}, s{s_mh}, 7")
    A(f"s_add_u32 s{s_tmp}, s{s_tmp}, {L_PAR}")
    A(f"v_add_u32 v9, s{s_tmp}, v9")
    for i in range(narr):
        A(f"ds_read_u16 v{10+i}, v9 offset:{512*i}")
    A("s_waitcnt lgkmcnt(0)")

def kg_setup(A, s_ldt, s_tmp, full):
    vt2, vw, vY0, tmp = 16, 17, 18, 20
    A(f"s_mov_b32 s{s_tmp}, 0x{f32bits(LOG2E):08x}")
    A(f"v_mov_b32 v{tmp}, s{s_ldt}")
    A(f"v_lshlrev_b32 v10, 16, v10")
    A(f"v_mul_f32 v{tmp}, s{s_tmp}, v{tmp}")
    A(f"v_mul_f32 v10, s{s_tmp}, v10")
    A(f"v_exp_f32 v{tmp}, v{tmp}")
    A(f"v_exp_f32 v10, v10")
    A(f"v_lshlrev_b32 v11, 16, v11")
    A(f"v_cvt_pk_bf16_f32 v{tmp}, v{tmp}, v10")
    if full: A(f"v_lshlrev_b32 v12, 16, v12")
    A(f"v_and_b32 v10, 0xffff0000, v{tmp}")
    A(f"v_lshlrev_b32 v{tmp}, 16, v{tmp}")
    if full: A(f"v_lshlrev_b32 v13, 16, v13")
    A(f"v_mul_f32 v10, v10, v{tmp}")
    A(f"v_mul_f32 v11, v11, v{tmp}")
    A(f"v_mul_f32 v{vt2}, 0x{f32bits(-LOG2E):08x}, v10")
    A(f"v_mul_f32 v{vw}, 0x{f32bits(INV2PI):08x}, v11")
    if full:
        A(f"v_add_f32 v{tmp}, v{tmp}, v{tmp}")
        A(f"v_mul_f32 v{vY0}, v12, v{tmp}")
        A(f"v_mul_f32_e64 v{vY0+1}, -v13, v{tmp}")

def kg_bside(A, vaddr):
    vt2, vw = 16, 17
    X = [24, 26, 28, 30]; S16, S32 = 32, 34
    anchor(A, X[1], 8, vt2, vw, 36)
    A(f"v_mov_b32 v{X[0]}, 1.0"); A(f"v_mov_b32 v{X[0]+1}, 0")
    cmul(A, X[2], X[1], X[1], 36)
    cmul(A, X[3], X[1], X[2], 38)
    cmul(A, S32, X[2], X[2], 40)
    ch = [Rec() for _ in range(4)]
    for j in range(4):
        for b in range(j, 32, 4):
            p_ = 50 + 2*j + (b // 4) % 2
            ch[j](f"v_cvt_pk_bf16_f32 v{p_}, v{X[j]}, v{X[j]+1}")
            if b + 4 < 32: cmul(ch[j], X[j], X[j], S32, 42 + 2*j)
            ch[j](f"ds_write_b32 v{vaddr}, v{p_} offset:{b*528}")
    for ins in merge(*[c.L for c in ch]): A(ins)

def kg_aside(A, vaddr):
    vt2, vw, vY0 = 16, 17, 18
    F1, F256, F2, F4, Y, Z, W = 24, 26, 28, 30, 32, 34, 36
    r2, r3 = Rec(), Rec()
    anchor(r2, F1, 1, vt2, vw, 48, conj=True)
    anchor(r3, F256, 256, vt2, vw, 50, conj=True)
    for ins in merge(r2.L, r3.L): A(ins)
    cmul(A, F2, F1, F1, 48)
    cmul(A, Z, vY0, F256, 50)
    cmul(A, F4, F2, F2, 48)
    ay, az, aw = Rec(), Rec(), Rec()
    cnt = {}
    def put(ch, base, reg, row):
        n_ = cnt.get(base, 0); cnt[base] = n_ + 1
        p = base + n_ % 2
        ch(f"v_cvt_pk_bf16_f32 v{p}, v{reg}, v{reg+1}")
        ch(f"ds_write_b32 v{vaddr}, v{p} offset:{row*528}")
    put(ay, 60, vY0, 0)
    cmul(ay, Y, vY0, F1, 64); put(ay, 60, Y, 1)
    for r in range(2, 8):
        cmul(ay, Y, Y, F1, 64); put(ay, 60, Y, r)
    A(f"v_mov_b32 v{W}, v{Z}"); A(f"v_mov_b32 v{W+1}, v{Z+1}")
    put(aw, 68, W, 8)
    for r in (9, 10, 11):
        cmul(aw, W, W, F2, 70); put(aw, 68, W, r)
    V = 38
    cmul(az, Z, Z, F256, 66); put(az, 62, Z, 12)
    cmul(az, V, Z, F4, 72); put(az, 62, V, 13)
    cmul(az, Z, Z, F256, 66); put(az, 62, Z, 14)
    cmul(az, V, Z, F4, 72); put(az, 62, V, 15)
    for r in range(16, 21):
        cmul(az, Z, Z, F256, 66); put(az, 62, Z, r)
    for ins in merge(az.L, ay.L, aw.L): A(ins)

L_WOT = L_T + 2048
def kgen(A):
    A("s_sub_u32 s15, s3, 12")
    A("s_cmp_eq_u32 s15, 0")
    A("s_cbranch_scc0 KG_NE")
    A(f"s_mov_b32 s16, {WS_EP}")
    A("v_mov_b32 v9, 0")
    A("s_mov_b64 exec, 1")
    A(f"buffer_load_dword v{vE}, v9, {WSRD}, s16 offen sc1")
    A("s_mov_b64 exec, -1")
    A.label("KG_NE")
    A("v_and_b32 v72, 15, v0")
    A("v_lshrrev_b32 v73, 4, v0")
    A("v_lshrrev_b32 v74, 2, v72")
    A("v_lshl_add_u32 v74, v73, 3, v74")
    A("v_lshlrev_b32 v71, 5, v74")
    A("v_lshlrev_b32 v74, 7, v74")
    A("v_and_b32 v75, 3, v72")
    A("v_lshl_add_u32 v74, v75, 3, v74")
    A("v_lshl_add_u32 v71, v75, 3, v71")
    A(f"v_add_u32 v71, {L_WOT}, v71")
    A("s_lshl_b32 s20, s15, 5")
    A(f"s_add_u32 s20, s20, {L_UTL}")
    A("v_add_u32 v74, s20, v74")
    A("v_lshlrev_b32 v75, 12, v72")
    A("v_lshl_add_u32 v75, v73, 4, v75")
    A("s_and_b32 s20, s2, 7"); A("s_lshl_b32 s20, s20, 2"); A("s_add_u32 s20, s20, s15")
    A(f"s_lshl_b32 s21, s20, {5+FS}")
    A("s_lshl_b32 s20, s20, 16")
    A("s_lshr_b32 s22, s2, 3")
    A("s_lshl_b32 s23, s22, 7")
    A("s_add_u32 s20, s20, s23")
    A(f"s_add_u32 s20, s20, {WS_UT}")
    A(f"s_lshl_b32 s23, s22, {FS}")
    A("s_add_u32 s21, s21, s23")
    A(f"s_add_u32 s21, s21, {WS_FU}")
    A("s_lshr_b32 s24, s2, 3"); A(f"s_lshl_b32 s22, s24, {3+FS}"); A("s_lshl_b32 s24, s24, 14")
    A("s_and_b32 s17, s2, 7"); A(f"s_lshl_b32 s23, s17, {FS}"); A("s_lshl_b32 s17, s17, 11")
    A("s_add_u32 s24, s24, s17")
    A(f"s_add_u32 s24, s24, {WS_WOF}")
    A("s_add_u32 s22, s22, s23")
    A(f"s_add_u32 s22, s22, {WS_F3}")
    A("s_barrier")
    A("s_cmp_eq_u32 s15, 0")
    A("s_cbranch_scc0 KG_NT")
    A("s_waitcnt vmcnt(0)")
    make_tag(A)
    A.label("KG_NT")
    A("s_barrier")
    A("s_barrier")
    stamp(A, 24)
    for p in range(2):
        for hf in range(2):
            A(f"ds_read_b64_tr_b16 {v(76+4*p+2*hf,2)}, v74 offset:{(32*p+4*hf)*128}")
    A("s_cmp_eq_u32 s15, 0")
    A("s_cbranch_scc0 KG_NW")
    for s_ in range(2):
        for hf in range(2):
            A(f"ds_read_b64_tr_b16 {v(104+4*s_+2*hf,2)}, v71 offset:{(32*s_+4*hf)*32}")
    A.label("KG_NW")
    A("s_waitcnt lgkmcnt(0)")
    A("s_setprio 3")
    A(f"buffer_store_dwordx4 v[76:79], v75, {WSRD}, s20 offen sc1")
    A(f"buffer_store_dwordx4 v[80:83], v75, {WSRD}, s20 offen offset:64 sc1")
    A("s_cmp_eq_u32 s15, 0")
    A("s_cbranch_scc0 KG_NW2")
    A(f"buffer_store_dwordx4 v[104:107], v{vL16}, {WSRD}, s24 offen sc1")
    A(f"buffer_store_dwordx4 v[108:111], v{vL16}, {WSRD}, s24 offen offset:1024 sc1")
    A.label("KG_NW2")
    A("s_setprio 0")
    stamp(A, 25)
    A("s_barrier")
    A("s_barrier")
    A("s_barrier")
    A("s_barrier")
    A("s_barrier")
    get_tag(A)
    A("s_waitcnt vmcnt(0)")
    flag_store(A, 21, 14, 15)
    A("s_cmp_eq_u32 s15, 0")
    A("s_cbranch_scc0 KG_END")
    flag_store(A, 22, 14, 15)
    A.label("KG_END")
    A("s_cmp_eq_u32 s15, 3")
    A("s_cbranch_scc0 KG_END2")
    chan_pair(A, 14, 17)
    A("s_lshr_b32 s28, s14, 4")
    A(f"s_lshl_b32 s28, s28, {5+FS}")
    A(f"s_add_u32 s28, s28, {WS_FU}")
    A(f"v_lshlrev_b32 v104, {FS}, v0")
    poll(A, "KG_PU", 104, 28, "-1", 105, sleep=3)
    lsig(A, C_FU, 70)
    A.label("KG_END2")
    stamp(A, 26)
    if os.environ.get("X_P1ONLY"): A("s_branch K_FIN")

vKA, vVA, vQ, vKF, vVF, vS, vP, vO, vM, vT = 2, 3, 4, 8, 16, 32, 64, 72, 88, 89
vLD = 92
vLW = 124
vLW2 = 89
NT = 32
SCHED = "e0 e1 PV1 RV e2 e3 c0 e4 e5 c1 QK RK e6 e7 c2 e8 e9 c3 e10 e11 PV0 c4 e12 e13 c5 e14 e15 c6 c7"
PRIO = {0: 3, 8: 2, 16: 1, 24: 0}

def attn_ids(A):
    A("s_and_b32 s12, s2, 7")
    A("s_lshl_b32 s12, s12, 2")
    A("s_lshr_b32 s13, s2, 3")
    A("s_and_b32 s17, s13, 3")
    A("s_add_u32 s12, s12, s17")
    A("s_lshr_b32 s13, s2, 5")
    A("s_lshl_b32 s17, s12, 16")

def ld_group(A):
    attn_ids(A)
    A("s_cmp_lt_u32 s3, 4")
    A("s_cselect_b32 s15, 0, 8")
    A("s_sub_u32 s15, s3, s15")
    A(f"v_lshlrev_b32 v10, {FS}, v0")
    A(f"s_lshl_b32 s27, s12, {5+FS}")
    A(f"s_add_u32 s27, s27, {WS_F1}")
    A("s_lshr_b32 s22, s15, 1")
    A("s_and_b32 s23, s15, 1"); A("s_lshl_b32 s23, s23, 1")
    A("s_and_b32 s25, s22, 1"); A("s_lshl_b32 s25, s25, 15")
    A("s_lshr_b32 s26, s22, 1"); A("s_lshl_b32 s26, s26, 21")
    A("s_add_u32 s25, s25, s26")
    A("s_lshl_b32 s26, s23, 10")
    A("s_add_u32 s25, s25, s26")
    A("s_add_u32 s25, s25, s17")
    A(f"s_add_u32 s25, s25, {WS_K}")
    A("s_lshl_b32 s24, s23, 12")
    A("s_lshl_b32 s26, s22, 10")
    A("s_add_u32 s24, s24, s26")
    A(f"v_add_u32 v11, s24, v{vL16}")
    A("s_lshl_b32 s18, s13, 3"); A("s_add_u32 s18, s18, s15"); A("s_lshl_b32 s18, s18, 10"); A("s_add_u32 s18, s18, s17")
    A("s_lshl_b32 s19, s15, 10"); A(f"s_add_u32 s19, s19, {L_QS}")
    A(f"v_add_u32 v12, s19, v{vL16}")
    A("s_cmp_eq_u32 s3, 13")
    A("s_cbranch_scc0 LD_NOPOLL")
    lwait(A, C_OWN, 4, 44, sleep=2)
    poll(A, "LD_POLL", 10, 27, "-1", 13, sleep=2)
    lsig(A, C_F1, 44)
    A.label("LD_NOPOLL")
    lwait(A, C_F1, 1, 44, sleep=1)
    stamp(A, 3)
    def rload(r, d0):
        A(f"s_add_u32 s26, s13, {r}")
        A("s_and_b32 s26, s26, 7")
        A("s_lshl_b32 s26, s26, 12")
        A("s_add_u32 s26, s26, s25")
        A(f"buffer_load_dwordx4 {v(d0,4)}, v{vL16}, {WSRD}, s26 offen sc1")
        A(f"buffer_load_dwordx4 {v(d0+4,4)}, v{vL16}, {WSRD}, s26 offen offset:1024 sc1")
    rload(0, 16)
    A(f"buffer_load_dwordx4 v[40:43], v{vL16}, {WSRD}, s18 offen sc1")
    rload(1, vLD)
    rload(2, vLD + 8)
    A(f"v_mov_b32 v{vLW2}, v11")
    lwait(A, C_DONE(7), 4, 44)
    A("s_waitcnt vmcnt(4)")
    A("ds_write_b128 v11, v[16:19]")
    A("ds_write_b128 v11, v[20:23] offset:4096")
    A("ds_write_b128 v12, v[40:43]")

def attention(A):
    attn_ids(A)
    A("s_mov_b32 s20, 0x0000ffff")
    A("s_mov_b32 s21, 0x0000ffff")
    A("s_and_b32 s15, s3, 7")
    A("s_lshr_b32 s16, s3, 3")
    A("s_lshl_b32 s19, s16, 10")
    A(f"v_add_u32 v{vKA}, s19, v{vL16}")
    A("v_lshrrev_b32 v8, 5, v0")
    A("v_lshlrev_b32 v8, 8, v8")
    A("v_and_b32 v9, 15, v0")
    A("v_lshlrev_b32 v9, 4, v9")
    A("s_add_u32 s19, s19, 2048")
    A(f"v_add3_u32 v{vVA}, v8, v9, s19")
    A("v_and_b32 v8, 31, v0")
    A("v_cmp_eq_u32 vcc, 16, v8")
    A("v_mov_b32 v9, 0x3f803f80")
    A("s_lshl_b32 s22, s15, 10"); A(f"s_add_u32 s22, s22, {L_QS}")
    A("v_cndmask_b32 v9, 0, v9, vcc")
    A(f"v_add_u32 v10, s22, v{vL16}")
    for i in range(16): A(f"v_mov_b32 v{vVF+i}, v9")
    A(f"v_mov_b32 v{vM}, 0")
    A("s_lshl_b32 s18, s13, 3")
    A("s_add_u32 s18, s18, s15")
    A(f"s_lshl_b32 s19, s18, {5+FS}")
    A(f"s_lshl_b32 s22, s12, {FS}")
    A("s_add_u32 s19, s19, s22")
    A(f"s_add_u32 s19, s19, {WS_F2}")
    A("s_lshl_b32 s18, s18, 10")
    A("s_add_u32 s18, s18, s17")
    A("s_lshr_b32 s22, s3, 2")
    A("s_and_b32 s23, s3, 3")
    A("s_lshl_b32 s24, s23, 12")
    A("s_lshl_b32 s26, s22, 10")
    A("s_add_u32 s24, s24, s26")
    A(f"v_add_u32 v{vLW}, s24, v{vL16}")
    A("s_and_b32 s25, s22, 1"); A("s_lshl_b32 s25, s25, 15")
    A("s_lshr_b32 s26, s22, 1"); A("s_lshl_b32 s26, s26, 21")
    A("s_add_u32 s25, s25, s26")
    A("s_lshl_b32 s23, s23, 10")
    A("s_add_u32 s25, s25, s23")
    A("s_add_u32 s25, s25, s17")
    A(f"s_add_u32 s25, s25, {WS_K}")
    A("s_lshr_b32 s37, s2, 3"); A("s_and_b32 s37, s37, 3"); A("s_lshl_b32 s37, s37, 3"); A("s_add_u32 s37, s37, s15")
    A("s_setprio 3")
    A("s_waitcnt lgkmcnt(0)")
    A("s_barrier")
    stamp(A, 4)
    A(f"ds_read_b128 {v(vQ,4)}, v10")
    q = DSQ(A)
    KF = lambda t: vKF + 4 * (t % 2)
    VF = lambda t, j: vVF + 8 * (t % 2) + 4 * j
    S = lambda t: vS + 16 * (t % 2)
    def rdK(t):
        A(f"ds_read_b128 {v(KF(t),4)}, v{vKA} offset:{(t%16)*4096}"); q.issue(("K", t))
    def rdV(t):
        A("s_mov_b64 exec, s[20:21]")
        A(f"ds_read_b128 {v(VF(t,0),4)}, v{vVA} offset:{(t%16)*4096}"); q.issue(("V0", t))
        A(f"ds_read_b128 {v(VF(t,1),4)}, v{vVA} offset:{(t%16)*4096+512}"); q.issue(("V1", t))
        A("s_mov_b64 exec, -1")
    def qk(t):
        q.wait(("K", t))
        A(f"v_mfma_f32_32x32x16_bf16 {v(S(t),16)}, {v(KF(t),4)}, {v(vQ,4)}, 0")
    def e(t, i): A(f"v_exp_f32 v{S(t)+i}, v{S(t)+i}")
    def c(t, k): A(f"v_cvt_pk_bf16_f32 v{vP+k}, v{S(t)+2*k}, v{S(t)+2*k+1}")
    def pv(t, j):
        cc = "0" if (t == 0 and j == 0) else v(vO, 16)
        A(f"v_mfma_f32_32x32x16_bf16 {v(vO,16)}, {v(VF(t,j),4)}, {v(vP+4*j,4)}, {cc}")
    rdK(0); rdK(1); rdV(0)
    qk(0)
    A("s_nop 7"); A("s_nop 3")
    for t in range(NT):
        A.comment(f"--- tile {t}")
        if t in PRIO: A(f"s_setprio {PRIO[t]}")
        for tok in SCHED.split():
            if tok[0] == 'e': e(t, int(tok[1:]))
            elif tok[0] == 'c': c(t, int(tok[1:]))
            elif tok == 'PV1':
                if t > 0: pv(t - 1, 1)
            elif tok == 'QK':
                if t + 1 < NT: qk(t + 1)
            elif tok == 'PV0':
                q.wait(("V1", t)); pv(t, 0)
            elif tok == 'RK':
                slot_of = {3: 4, 4: 5, 5: 6, 6: 7, 7: 0}
                if t == 2:
                    A("s_sub_u32 s26, s3, 4")
                    A("s_cmp_lt_u32 s26, 8")
                    A("s_cbranch_scc1 AT_NL")
                    A("s_waitcnt vmcnt(2)")
                    A(f"ds_write_b128 v{vLW2}, {v(vLD,4)} offset:16384")
                    A(f"ds_write_b128 v{vLW2}, {v(vLD+4,4)} offset:20480")
                    A(f"ds_write_b128 v{vLW2}, {v(vLD+8,4)} offset:32768")
                    A(f"ds_write_b128 v{vLW2}, {v(vLD+12,4)} offset:36864")
                    A.label("AT_NL")
                    A("s_waitcnt lgkmcnt(0)"); q.q = []
                    A("s_barrier")
                if t < 5:
                    r = 3 + t
                    A(f"s_add_u32 s26, s13, {r}")
                    A("s_and_b32 s26, s26, 7")
                    A("s_lshl_b32 s26, s26, 12")
                    A("s_add_u32 s26, s26, s25")
                    A(f"buffer_load_dwordx4 {v(vLD+4*slot_of[r],4)}, v{vL16}, {WSRD}, s26 offen sc1")
                if t == 9:
                    A("s_waitcnt vmcnt(0)")
                    A(f"ds_write_b128 v{vLW}, {v(vLD+4*slot_of[3],4)} offset:49152")
                    A(f"v_add_u32 v{vLW}, 65536, v{vLW}")
                    for r in range(4, 8):
                        A(f"ds_write_b128 v{vLW}, {v(vLD+4*slot_of[r],4)} offset:{r*16384 - 65536}")
                    A("s_waitcnt lgkmcnt(0)"); q.q = []
                    A("s_barrier")
                    A(f"v_lshlrev_b32 v{vT}, {FS}, v0")
                    A(f"s_lshl_b32 s26, s37, {3+FS}")
                    A(f"s_add_u32 s26, s26, {WS_F3}")
                    A("s_mov_b64 exec, 0xff")
                    A(f"buffer_load_dword v{vLW}, v{vT}, {WSRD}, s26 offen sc1")
                    A("s_mov_b64 exec, -1")
                if t == 11:
                    A("s_waitcnt vmcnt(0)")
                    check_or_poll(A, "AT_P3", vT, 26, "0xff", vLW)
                    A("s_lshl_b32 s27, s37, 14")
                    A("s_lshl_b32 s26, s16, 13")
                    A("s_add_u32 s27, s27, s26")
                    A(f"s_add_u32 s27, s27, {WS_WOF}")
                if 11 <= t < 19:
                    A(f"buffer_load_dwordx4 {v(vLD+4*(t-11),4)}, v{vL16}, {WSRD}, s27 offen sc1")
                    if t < 18: A("s_add_u32 s27, s27, 1024")
                if t == 20:
                    A("s_sub_u32 s26, s3, 4")
                    A("s_cmp_lt_u32 s26, 8")
                    A("s_cbranch_scc0 AT_NY0")
                    A(f"v_and_b32 v{vT}, 31, v0")
                    A(f"v_lshrrev_b32 v{vLW}, 5, v0")
                    A(f"v_lshlrev_b32 v{vT}, 16, v{vT}")
                    A(f"v_lshl_add_u32 v{vT}, v{vLW}, 13, v{vT}")
                    A.label("AT_NY0")
                    srd(A, 4, SP['out'], 2048*1024*2)
                if 21 <= t < 25:
                    r = t - 21
                    A("s_sub_u32 s26, s3, 4")
                    A("s_cmp_lt_u32 s26, 8")
                    A(f"s_cbranch_scc0 AT_NY{r+1}")
                    if r == 2: A("s_add_u32 s36, s36, 4096")
                    A(f"buffer_store_dword v{vY[r]}, v{vT}, s[4:7], s36 offen" + (" offset:2048" if r % 2 else ""))
                    A.label(f"AT_NY{r+1}")
                if t == 14:
                    A(f"v_add_u32 v{vKA}, 65536, v{vKA}")
                if t + 2 < NT: rdK(t + 2)
            elif tok == 'RV':
                if t == 15:
                    A(f"v_add_u32 v{vVA}, 65536, v{vVA}")
                if t + 1 < NT: rdV(t + 1)
            else: raise ValueError(tok)
    A("s_nop 1")
    pv(NT - 1, 1)
    A("s_nop 15")
    stamp(A, 5)
    A(f"v_mov_b32 v{vT}, v{vO+8}")
    A("s_nop 1")
    A(f"v_permlane32_swap_b32 v{vT}, v{vO+8}")
    A("s_nop 1")
    A(f"v_mov_b32 v{vO+8}, v{vT}")
    A("s_mov_b32 s28, 0x1f800000")
    A("s_mov_b32 s29, 0x5f800000")
    A(f"v_cmp_le_f32 vcc, s28, v{vO+8}")
    A(f"v_cmp_ge_f32 s[30:31], s29, v{vO+8}")
    A("s_nop 1")
    A("s_and_b64 vcc, vcc, s[30:31]")
    A("s_cmp_eq_u64 vcc, -1")
    A("s_cbranch_scc0 AT_FALLBACK")
    A.label("AT_COMBINE")
    A("s_lshl_b32 s17, s15, 11")
    A(f"s_add_u32 s17, s17, {L_SCR}")
    A(f"v_add_u32 v{vT}, s17, v{vL16}")
    A("v_lshlrev_b32 v12, 3, v0")
    A("s_lshl_b32 s17, s15, 9")
    A(f"s_add_u32 s17, s17, {L_KREV}")
    A(f"v_add_u32 v12, s17, v12")
    A("s_cmp_eq_u32 s16, 0")
    A("s_cbranch_scc1 AT_LOW")
    A(f"ds_write_b128 v{vT}, {v(vO,4)}")
    A(f"ds_write_b128 v{vT}, {v(vO+4,4)} offset:1024")
    A(f"v_mov_b32 v{vO+9}, v{vM}")
    A(f"ds_write_b64 v12, {v(vO+8,2)}")
    A("s_waitcnt lgkmcnt(0)")
    A("s_barrier")
    A("s_branch AT_DONE")
    A.label("AT_LOW")
    A("s_barrier")
    B = vS
    A(f"ds_read_b128 {v(B,4)}, v{vT}")
    A(f"ds_read_b128 {v(B+4,4)}, v{vT} offset:1024")
    A(f"ds_read_b64 {v(B+8,2)}, v12")
    A("s_waitcnt lgkmcnt(0)")
    t0, t1, t2 = 8, 9, 10
    A(f"v_max_f32 v{t0}, v{vM}, v{B+9}")
    A(f"v_sub_f32 v{t1}, v{vM}, v{t0}")
    A(f"v_sub_f32 v{t2}, v{B+9}, v{t0}")
    A(f"v_exp_f32 v{t1}, v{t1}")
    A(f"v_exp_f32 v{t2}, v{t2}")
    A("s_nop 0")
    for i in range(9):
        A(f"v_mul_f32 v{vO+i}, v{vO+i}, v{t1}")
    for i in range(9):
        A(f"v_fmac_f32 v{vO+i}, v{B+i}, v{t2}")
    A(f"v_rcp_f32 v{t0}, v{vO+8}")
    A("s_nop 0")
    for i in range(8):
        A(f"v_mul_f32 v{vO+i}, v{vO+i}, v{t0}")
    for k in range(4):
        A(f"v_cvt_pk_bf16_f32 v{vP+k}, v{vO+2*k}, v{vO+2*k+1}")
    A("s_nop 1")
    A(f"v_permlane32_swap_b32 v{vP}, v{vP+2}")
    A(f"v_permlane32_swap_b32 v{vP+1}, v{vP+3}")
    A(f"s_add_u32 s18, s18, {WS_O}")
    A("s_nop 1")
    A(f"buffer_store_dwordx4 {v(vP,4)}, v{vL16}, {WSRD}, s18 offen sc1")
    A("s_waitcnt vmcnt(0)")
    flag_store(A, 19, 12, 13)
    lsig(A, C_OWN2, 12)
    A.label("AT_DONE")
    stamp(A, 6)

def attention_fallback(A):
    A.label("AT_FALLBACK")
    A(f"v_mov_b32 v{vM}, 0xff800000")
    A(f"v_subrev_u32 v{vT}, 65536, v{vKA}")
    A("s_mov_b32 s17, 0")
    A.label("AT_FB1")
    A(f"ds_read_b128 {v(vKF,4)}, v{vT}")
    A(f"v_add_u32 v{vT}, 4096, v{vT}")
    A("s_waitcnt lgkmcnt(0)")
    A(f"v_mfma_f32_32x32x16_bf16 {v(vS,16)}, {v(vKF,4)}, {v(vQ,4)}, 0")
    A("s_nop 15")
    for k in range(8):
        A(f"v_max3_f32 v{vM}, v{vS+2*k}, v{vS+2*k+1}, v{vM}")
    A("s_add_u32 s17, s17, 1")
    A("s_cmp_lt_u32 s17, 32")
    A("s_cbranch_scc1 AT_FB1")
    A(f"v_mov_b32 v{vT}, v{vM}")
    A(f"v_mov_b32 v12, v{vM}")
    A("s_nop 1")
    A(f"v_permlane32_swap_b32 v{vT}, v12")
    A("s_nop 1")
    A(f"v_max_f32 v{vM}, v{vT}, v12")
    for i in range(16): A(f"v_mov_b32 v{vO+i}, 0")
    A(f"v_subrev_u32 v{vT}, 65536, v{vKA}")
    A(f"v_subrev_u32 v12, 65536, v{vVA}")
    A("s_mov_b32 s17, 0")
    A.label("AT_FB2")
    A(f"ds_read_b128 {v(vKF,4)}, v{vT}")
    A("s_mov_b64 exec, s[20:21]")
    A(f"ds_read_b128 {v(vVF,4)}, v12")
    A(f"ds_read_b128 {v(vVF+4,4)}, v12 offset:512")
    A("s_mov_b64 exec, -1")
    A(f"v_add_u32 v{vT}, 4096, v{vT}")
    A(f"v_add_u32 v12, 4096, v12")
    A("s_waitcnt lgkmcnt(0)")
    A(f"v_mfma_f32_32x32x16_bf16 {v(vS,16)}, {v(vKF,4)}, {v(vQ,4)}, 0")
    A("s_nop 15")
    for i in range(16): A(f"v_sub_f32 v{vS+i}, v{vS+i}, v{vM}")
    for i in range(16): A(f"v_exp_f32 v{vS+i}, v{vS+i}")
    A("s_nop 0")
    for k in range(8): A(f"v_cvt_pk_bf16_f32 v{vP+k}, v{vS+2*k}, v{vS+2*k+1}")
    A("s_nop 1")
    A(f"v_mfma_f32_32x32x16_bf16 {v(vO,16)}, {v(vVF,4)}, {v(vP,4)}, {v(vO,16)}")
    A(f"v_mfma_f32_32x32x16_bf16 {v(vO,16)}, {v(vVF+4,4)}, {v(vP+4,4)}, {v(vO,16)}")
    A("s_add_u32 s17, s17, 1")
    A("s_cmp_lt_u32 s17, 32")
    A("s_cbranch_scc1 AT_FB2")
    A("s_nop 15")
    A(f"v_mov_b32 v{vT}, v{vO+8}")
    A("s_nop 1")
    A(f"v_permlane32_swap_b32 v{vT}, v{vO+8}")
    A("s_nop 1")
    A(f"v_mov_b32 v{vO+8}, v{vT}")
    A("s_branch AT_COMBINE")

def tail(A):
    A("s_and_b32 s12, s2, 7"); A("s_lshl_b32 s12, s12, 3"); A("s_lshr_b32 s13, s2, 5"); A("s_add_u32 s12, s12, s13")
    A("s_lshr_b32 s13, s2, 3"); A("s_and_b32 s13, s13, 3")
    A("v_and_b32 v4, 15, v0")
    A("v_lshrrev_b32 v5, 4, v0")
    A("v_lshlrev_b32 v14, 9, v5")
    A("v_lshl_add_u32 v14, v4, 4, v14")
    A("s_lshl_b32 s17, s16, 14")
    A(f"s_add_u32 s17, s17, {L_OT}")
    A(f"v_add_u32 v14, s17, v14")
    A("s_cmp_eq_u32 s16, 0")
    A("s_cbranch_scc1 TL_WAIT")
    A(f"v_lshlrev_b32 v10, {FS}, v0")
    A(f"s_lshl_b32 s17, s12, {5+FS}")
    A(f"s_add_u32 s17, s17, {WS_F2}")
    A("s_cmp_eq_u32 s3, 8")
    A("s_cbranch_scc0 TL_NOPOLL")
    lwait(A, C_OWN2, 8, 12, sleep=1)
    poll(A, "TL_P2", 10, 17, "-1", 12, sleep=1)
    lsig(A, C_F2, 12)
    A.label("TL_NOPOLL")
    lwait(A, C_F2, 1, 12, sleep=1)
    stamp(A, 43)
    A("s_lshl_b32 s17, s15, 18")
    A("s_lshl_b32 s18, s12, 10")
    A("s_add_u32 s17, s17, s18")
    A(f"s_add_u32 s17, s17, {WS_O}")
    for i in range(4):
        A(f"buffer_load_dwordx4 {v(16+4*i,4)}, v{vL16}, {WSRD}, s17 offen sc1")
        if i < 3: A("s_add_u32 s17, s17, 65536")
    A("s_lshl_b32 s18, s15, 12")
    A(f"s_add_u32 s18, s18, {L_OT}")
    A(f"v_add_u32 v13, s18, v{vL16}")
    for i in range(4):
        A(f"s_waitcnt vmcnt({3-i})")
        A(f"ds_write_b128 v13, {v(16+4*i,4)} offset:{i*1024}")
    A.label("TL_WAIT")
    A("s_waitcnt vmcnt(0) lgkmcnt(0)")
    stamp(A, 44)
    A("s_barrier")
    stamp(A, 45)
    q = DSQ(A)
    FO = 16
    def rd(s_):
        b = s_ % 3
        for th in range(2):
            A(f"ds_read_b128 {v(FO+12*th+4*b,4)}, v14 offset:{s_*2048 + th*256}"); q.issue(("o", s_, th))
    rd(0); rd(1)
    for s_ in range(8):
        if s_ + 2 < 8: rd(s_ + 2)
        b = s_ % 3
        for th in range(2):
            q.wait(("o", s_, th))
            cc = "0" if s_ == 0 else v(40+4*th, 4)
            A(f"v_mfma_f32_16x16x32_bf16 {v(40+4*th,4)}, {v(vLD+4*s_,4)}, {v(FO+12*th+4*b,4)}, {cc}")
    A("s_lshl_b32 s17, s15, 11")
    A(f"s_add_u32 s17, s17, {L_PC}")
    A(f"v_add_u32 v13, s17, v{vL16}")
    A("v_lshlrev_b32 v15, 11, v4")
    A("v_lshl_add_u32 v15, v5, 3, v15")
    A("s_lshl_b32 s18, s12, 16")
    A("s_lshl_b32 s19, s13, 8")
    A("s_add_u32 s18, s18, s19")
    A("s_lshl_b32 s19, s15, 5")
    A("s_add_u32 s18, s18, s19")
    A("s_add_u32 s18, s18, 1024")
    A("s_nop 3")
    A("s_cmp_eq_u32 s16, 0")
    A("s_cbranch_scc1 TL_LO")
    A("ds_write_b128 v13, v[40:43]")
    A("ds_write_b128 v13, v[44:47] offset:1024")
    A("s_waitcnt lgkmcnt(0)")
    A("s_barrier")
    A("s_cmp_eq_u32 s2, 0")
    A("s_cbranch_scc0 TL_END")
    A("s_cmp_eq_u32 s3, 8")
    A("s_cbranch_scc0 TL_END")
    A(f"s_mov_b32 s17, {WS_EP}")
    flag_store(A, 17, 12, 13)
    A("s_branch TL_END")
    A.label("TL_LO")
    A("s_barrier")
    A("ds_read_b128 v[16:19], v13")
    A("ds_read_b128 v[20:23], v13 offset:1024")
    srd(A, 4, SP['out'], 2048*1024*2)
    A("s_waitcnt lgkmcnt(0)")
    for i in range(8):
        A(f"v_add_f32 v{40+i}, v{40+i}, v{16+i}")
    for th in range(2):
        A(f"v_cvt_pk_bf16_f32 v{48+2*th}, v{40+4*th}, v{41+4*th}")
        A(f"v_cvt_pk_bf16_f32 v{49+2*th}, v{42+4*th}, v{43+4*th}")
    A(f"buffer_store_dwordx2 v[48:49], v15, s[4:7], s18 offen")
    A("s_add_u32 s18, s18, 32768")
    A(f"buffer_store_dwordx2 v[50:51], v15, s[4:7], s18 offen")
    A.label("TL_END")

def gen():
    A = Asm()
    kernel_begin(A, NAME)
    A.label("K_START")
    if not os.environ.get("NOPF"):
        A("s_getpc_b64 s[4:5]")
        A.label("PF_PC")
        A("v_lshlrev_b32 v2, 7, v0")
        A("v_cmp_gt_u32 vcc, GTAB_END-PF_PC-128, v2")
        A("s_and_saveexec_b64 s[6:7], vcc")
        A("s_cbranch_execz PF_DONE")
        A(f"global_load_dword v{vE}, v2, s[4:5]")
        A.label("PF_DONE")
        A("s_mov_b64 exec, s[6:7]")
    if DBG: A("v_mov_b32 v125, 0")
    if PROF:
        A("v_mov_b32 v125, 0")
        A("s_memrealtime s[38:39]")
    stamp(A, 0)
    A("s_cmp_ge_u32 s2, 256")
    A("s_cbranch_scc1 K_END")
    A("s_load_dwordx16 s[64:79], s[0:1], 0")
    A("s_load_dwordx8 s[80:87], s[0:1], 64")
    A("s_load_dwordx2 s[88:89], s[0:1], 96")
    A("v_lshrrev_b32 v8, 6, v0")
    A("v_and_b32 v0, 63, v0")
    A("v_readfirstlane_b32 s3, v8")
    A(f"v_lshlrev_b32 v{vL16}, 4, v0")
    p1_ids(A)
    A("s_cmp_eq_u32 s3, 12")
    A("s_cbranch_scc0 E_NZ")
    A("v_lshlrev_b32 v20, 2, v0")
    A(f"v_add_u32 v20, {L_CNT}, v20")
    A("v_mov_b32 v24, 0")
    A("ds_write_b32 v20, v24")
    A.label("E_NZ")
    ka_wait(A)
    A("s_barrier")
    A("s_cmp_lt_u32 s3, 4")
    A("s_cbranch_scc1 R_COMPUTE")
    A("s_cmp_ge_u32 s3, 12")
    A("s_cbranch_scc1 R_KGEN")
    p1_loader(A)
    A("s_branch R_JOIN")
    A.label("R_KGEN")
    kgen(A)
    A("s_branch R_LD")
    A.label("R_COMPUTE")
    p1_compute(A)
    A.label("R_LD")
    ld_group(A)
    A.label("R_JOIN")
    attention(A)
    tail(A)
    A.label("K_FIN")
    stamp(A, 50)
    A("s_waitcnt vmcnt(0)")
    stamp(A, 51)
    write_stamps(A)
    if DBG:
        A("s_cmp_eq_u32 s2, 8"); A("s_cbranch_scc0 K_END")
        A("s_cmp_eq_u32 s3, 0"); A("s_cbranch_scc0 K_END")
        A("s_memtime s[48:49]"); A("s_memrealtime s[50:51]"); A("s_waitcnt lgkmcnt(0)")
        A("v_readlane_b32 s52, v125, 0"); A("v_readlane_b32 s53, v125, 1")
        A("s_nop 3")
        A("v_writelane_b32 v125, s48, 0"); A("v_writelane_b32 v125, s50, 1")
        A("v_and_b32 v16, 1, v0")
        A("v_cmp_eq_u32 vcc, 0, v16")
        A("v_mov_b32 v17, s53"); A("v_mov_b32 v18, s52")
        A("s_nop 1")
        A("v_cndmask_b32 v17, v17, v18, vcc")
        A("v_sub_u32 v17, v125, v17")
        srd(A, 4, SP['dbg'], 256)
        A("v_lshlrev_b32 v16, 2, v0")
        A("s_mov_b64 exec, 0xffff")
        A("buffer_store_dword v17, v16, s[4:7], 0 offen")
        A("s_waitcnt vmcnt(0)")
    A.label("K_END")
    A("s_endpgm")
    attention_fallback(A)
    A(".p2align 6")
    A(".type GTAB,@object")
    A.label("GTAB")
    t = gather_table()
    for i in range(0, 2048, 16):
        A(".long " + ", ".join(str(int(x)) for x in t[i:i+16]))
    A(".size GTAB, 8192")
    A.label("GTAB_END")
    hdr_src = open("concat_heads__ssm_conv_s4d__mha_block__prompt.s.ref").read().split("\n")
    hdr = [l for l in hdr_src if l.startswith(";") and "@launch" not in l and "Override launch" not in l and "grid=ceil" not in l]
    out = "\n".join(hdr) + "\n; @launch grid=(256,1,1) block=(1024,1,1) lds=163840\n"
    out += '.amdgcn_target "amdgcn-amd-amdhsa--gfx950"\n'
    out += A.text() + kernel_desc(NAME, 128, 100)
    return out

if __name__ == "__main__":
    open(sys.argv[1] if len(sys.argv) > 1 else "fused.s", "w").write(gen())
```

```python
import os, struct, sys
from asmlib import *
from ssm_common import gather_table

NAME = "concat_heads__ssm_conv_s4d__mha_block__prompt_kernel"
PROF = bool(os.environ.get("PROF"))
DBG = bool(os.environ.get("DBG"))
DBGMAP = {0: 0, 10: 1, 1: 2, 2: 3, 4: 4, 5: 5, 6: 6, 45: 7}

def f32bits(x): return struct.unpack("<I", struct.pack("<f", x))[0]
LOG2E = 1.4426950408889634
INV2PI = 0.15915494309189535
C_SCALE = 0.25 * LOG2E

WS_Q = 0x000000; WS_K = 0x200000; WS_V = 0x400000; WS_O = 0x600000
WS_UT = 0x800000
WS_WOF = 0xA00000
FS = 8
WS_F1 = 0xA80000
WS_F2 = 0xAC0000
WS_F3 = 0xB40000
WS_FU = 0xB50000
WS_EP = 0xB90000
WS_TOTAL = 0xBA0000
WS_PROF = 0x1000000
SP = dict(u=64, lar=66, aim=68, cre=70, cim=72, ldt=74, dsk=76, x=78, wqkv=80, wo=82, out=84, dbg=86, ws=88)
sWS = 44
WSRD = f"s[{sWS}:{sWS+3}]"
sT = 90
vL16 = 1
vE = 127

SLOT = 28672; NSLOT = 3; AHEAD = 2
L_TA = 86016; L_TBO = 11088; L_TCH = 27984
L_T = 143360
L_CNT = 147968
C_G = L_CNT; C_CV = L_CNT + 4; C_WO = L_CNT + 8; C_KR = L_CNT + 12
def C_RDY(c): return L_CNT + 16 + 4*c
def C_DONE(c): return L_CNT + 48 + 4*c
C_FU = L_CNT + 80; C_F1 = L_CNT + 84; C_F2 = L_CNT + 88; C_ISS = L_CNT + 92; C_T = L_CNT + 96; C_GU = L_CNT + 100; C_GT = L_CNT + 104; C_OWN = L_CNT + 108; C_OWN2 = L_CNT + 112; C_PAR = L_CNT + 116; C_GT2 = L_CNT + 120
L_PAR = L_T
L_KREV = 148480; KREV_SZ = 7680
L_UTL = L_KREV
L_WOT = 86016
L_UC = 57344; UC_RHO = 4160; UC_CH = 16640
L_PART = 90624
L_QS = 49152
L_SCR = 131072
L_OT = 0
L_PC = 32768

class DSQ:
    def __init__(self, A): self.A = A; self.q = []
    def issue(self, tag): self.q.append(tag)
    def wait(self, tag):
        if tag not in self.q: return
        i = len(self.q) - 1 - self.q[::-1].index(tag)
        n = len(self.q) - 1 - i
        assert n <= 15, n
        self.A(f"s_waitcnt lgkmcnt({n})")
        self.q = self.q[i+1:]
    def room(self):
        if len(self.q) >= 15: self.wait(self.q[0])
    def drain(self):
        self.A("s_waitcnt lgkmcnt(0)"); self.q = []

def stamp(A, k):
    if DBG and k in DBGMAP:
        j = DBGMAP[k]
        A("s_memtime s[48:49]")
        A("s_memrealtime s[50:51]")
        A("s_waitcnt lgkmcnt(0)")
        A(f"v_writelane_b32 v125, s48, {2*j}")
        A(f"v_writelane_b32 v125, s50, {2*j+1}")
    if PROF:
        A("s_memtime s[48:49]")
        A("s_waitcnt lgkmcnt(0)")
        A(f"v_writelane_b32 v125, s48, {k}")

def write_stamps(A):
    if not PROF: return
    A("s_memrealtime s[40:41]")
    A("s_waitcnt lgkmcnt(0)")
    A(f"v_writelane_b32 v125, s40, 62")
    A(f"v_writelane_b32 v125, s91, 63")
    A(f"s_add_u32 s92, s{SP['ws']}, {WS_PROF}")
    A(f"s_addc_u32 s93, s{SP['ws']+1}, 0")
    A("s_mov_b32 s94, 0x200000")
    A("s_mov_b32 s95, 0x00020000")
    A("s_lshl_b32 s42, s2, 4"); A("s_add_u32 s42, s42, s3"); A("s_lshl_b32 s42, s42, 8")
    A("v_lshlrev_b32 v16, 2, v0")
    A("buffer_store_dword v125, v16, s[92:95], s42 offen")
    A("s_waitcnt vmcnt(0)")

def poll(A, label, vaddr, soff, mask_lo, vtmp, sleep=4):
    A(f"s_mov_b32 s30, {mask_lo}")
    A("s_mov_b32 s31, 0")
    A("s_mov_b64 exec, s[30:31]")
    A("s_mov_b32 s29, 0")
    A.label(label)
    A(f"buffer_load_dword v{vtmp}, v{vaddr}, {WSRD}, s{soff} offen sc1")
    A("s_add_u32 s29, s29, 1")
    A("s_waitcnt vmcnt(0)")
    A(f"v_cmp_ne_u32 vcc, s{sT}, v{vtmp}")
    A("s_cmp_gt_u32 s29, 0x10000")
    A(f"s_cbranch_scc1 {label}_x")
    A(f"s_cbranch_vccz {label}_x")
    A(f"s_sleep {sleep}")
    A(f"s_branch {label}")
    A.label(label + "_x")
    A("s_mov_b64 exec, -1")

def check_or_poll(A, label, vaddr, soff, mask_lo, vflag):
    A(f"s_mov_b32 s30, {mask_lo}")
    A("s_mov_b32 s31, 0")
    A(f"v_cmp_ne_u32 vcc, s{sT}, v{vflag}")
    A("s_nop 1")
    A("s_and_b64 vcc, vcc, s[30:31]")
    A(f"s_cbranch_vccz {label}_ok")
    poll(A, label, vaddr, soff, mask_lo, vflag)
    A.label(label + "_ok")

def flag_store(A, soff, vtmp, vzero):
    A(f"v_mov_b32 v{vtmp}, s{sT}")
    A(f"v_mov_b32 v{vzero}, 0")
    A("s_mov_b64 exec, 1")
    A(f"buffer_store_dword v{vtmp}, v{vzero}, {WSRD}, s{soff} offen sc1")
    A("s_mov_b64 exec, -1")

def get_tag(A, vt=126, vd=None):
    L = A.newlabel("GT")
    A(f"v_mov_b32 v{vt}, {C_T}")
    A("s_mov_b32 s43, 0")
    A.label(L)
    A(f"ds_read_b32 v{vE}, v{vt}")
    A("s_add_u32 s43, s43, 1")
    A("s_waitcnt lgkmcnt(0)")
    A(f"v_readfirstlane_b32 s{sT}, v{vE}")
    A("s_cmp_gt_u32 s43, 0x80000")
    A(f"s_cbranch_scc1 {L}_x")
    A(f"s_cmp_eq_u32 s{sT}, 0")
    A(f"s_cbranch_scc1 {L}")
    A.label(L + "_x")

def make_tag(A):
    A(f"v_readfirstlane_b32 s{sT}, v{vE}")
    A("s_nop 3")
    A(f"s_mul_i32 s{sT}, s{sT}, 0x9e3779b1")
    A(f"s_add_u32 s{sT}, s{sT}, 0x7f4a7c15")
    A(f"s_or_b32 s{sT}, s{sT}, 1")
    A(f"v_mov_b32 v{vE}, s{sT}")
    A(f"v_mov_b32 v126, {C_T}")
    A(f"ds_write_b32 v126, v{vE}")

def gsync(A, cnt_addr, target, vt):
    A("s_waitcnt lgkmcnt(0)")
    lsig(A, cnt_addr, vt)
    lwait(A, cnt_addr, target, vt, sleep=1)

def lsig(A, addr, vt):
    A(f"v_mov_b32 v{vt}, {addr}")
    A(f"v_mov_b32 v{vt+1}, 1")
    A("s_mov_b64 exec, 1")
    A(f"ds_add_u32 v{vt}, v{vt+1}")
    A("s_mov_b64 exec, -1")

def lwait(A, addr, target, vt, sleep=0):
    L = A.newlabel("LW")
    A(f"v_mov_b32 v{vt}, {addr}")
    A("s_mov_b32 s43, 0")
    A.label(L)
    A(f"ds_read_b32 v{vt+1}, v{vt}")
    A("s_add_u32 s43, s43, 1")
    A("s_waitcnt lgkmcnt(0)")
    A(f"v_readfirstlane_b32 s42, v{vt+1}")
    A("s_cmp_gt_u32 s43, 0x80000")
    A(f"s_cbranch_scc1 {L}_x")
    A(f"s_cmp_ge_u32 s42, {target}")
    if sleep:
        A(f"s_cbranch_scc1 {L}_x")
        A(f"s_sleep {sleep}")
        A(f"s_branch {L}")
    else:
        A(f"s_cbranch_scc0 {L}")
    A.label(L + "_x")

def merge(*chains):
    out = []; idx = [0] * len(chains)
    while any(idx[i] < len(chains[i]) for i in range(len(chains))):
        for i, ch in enumerate(chains):
            if idx[i] < len(ch):
                out.append(ch[idx[i]]); idx[i] += 1
    return out

class Rec:
    def __init__(self): self.L = []
    def __call__(self, s): self.L.append(s)

def chan_pair(A, dst, tmp):
    A(f"s_and_b32 s{dst}, s2, 7"); A(f"s_lshl_b32 s{dst}, s{dst}, 5"); A(f"s_lshr_b32 s{tmp}, s2, 3")
    A(f"s_add_u32 s{dst}, s{dst}, s{tmp}"); A(f"s_lshl_b32 s{dst}, s{dst}, 1")

def ka_wait(A):
    A("s_waitcnt lgkmcnt(0)")
    if PROF: A("s_mov_b32 s91, s38")
    srd(A, sWS, SP['ws'], WS_TOTAL)

def p1_ids(A):
    A("s_and_b32 s17, s2, 7")
    A("s_lshr_b32 s18, s2, 3")
    A("s_and_b32 s12, s17, 3")
    A("s_lshl_b32 s12, s12, 2")
    A("s_and_b32 s19, s18, 3")
    A("s_add_u32 s12, s12, s19")
    A("s_lshr_b32 s13, s17, 2")
    A("s_lshl_b32 s13, s13, 3")
    A("s_lshr_b32 s19, s18, 2")
    A("s_add_u32 s13, s13, s19")

def conv_part(A, p, vUA, vKB0, vKB1, ACC0, ACC1):
    ks = list({0: range(0, 24), 1: range(24, 48), 2: range(48, 80), 3: range(80, 128)}[p])
    q = DSQ(A)
    NB = 4
    FA, FB0, FB1 = 8, 24, 40
    def rd(i):
        k = ks[i]; b = i % NB
        A(f"ds_read_b64 {v(FA+4*b,2)}, v{vUA} offset:{32*k}"); q.issue(("a0", i))
        A(f"ds_read_b64 {v(FA+4*b+2,2)}, v{vUA} offset:{32*k+8}"); q.issue(("a1", i))
        off = (k//2)*80 + (k%2)*32
        A(f"ds_read_b128 {v(FB1+4*b,4)}, v{vKB1} offset:{off}"); q.issue(("b1", i))
        if k < 64:
            A(f"ds_read_b128 {v(FB0+4*b,4)}, v{vKB0} offset:{off}"); q.issue(("b0", i))
    n = len(ks)
    for i in range(min(NB-1, n)): rd(i)
    first0 = first1 = True
    for i in range(n):
        if i + NB - 1 < n: rd(i + NB - 1)
        k = ks[i]; b = i % NB
        q.wait(("b1", i))
        A(f"v_mfma_f32_32x32x16_bf16 {v(ACC1,16)}, {v(FA+4*b,4)}, {v(FB1+4*b,4)}, {'0' if first1 else v(ACC1,16)}"); first1 = False
        if k < 64:
            q.wait(("b0", i))
            A(f"v_mfma_f32_32x32x16_bf16 {v(ACC0,16)}, {v(FA+4*b,4)}, {v(FB0+4*b,4)}, {'0' if first0 else v(ACC0,16)}"); first0 = False

vY = [90, 91, 126, 127]

def p1_loader(A):
    vDX, vDX1, vDW = 2, 3, 5
    A("s_sub_u32 s15, s3, 4")
    A("s_setprio 3")
    A("v_lshrrev_b32 v9, 3, v0")
    A("v_lshrrev_b32 v10, 1, v9")
    A("v_xor_b32 v10, v10, v0")
    A("v_and_b32 v10, 7, v10")
    A("v_lshlrev_b32 v10, 4, v10")
    A(f"v_lshl_add_u32 v{vDX}, v9, 10, v10")
    A(f"v_xor_b32 v{vDX1}, 64, v{vDX}")
    A("s_lshl_b32 s20, s12, 17")
    A("s_lshl_b32 s17, s15, 14")
    A("s_add_u32 s20, s20, s17")
    A("s_lshl_b32 s21, s13, 6")
    A("s_lshl_b32 s22, s15, 11")
    A("s_lshl_b32 s23, s15, 10")
    A("s_add_u32 s23, s23, 16384")
    A("s_lshr_b32 s25, s2, 5")
    A("s_lshr_b32 s17, s2, 3")
    A("s_and_b32 s17, s17, 3")
    A("s_lshl_b32 s17, s17, 1")
    A("s_add_u32 s25, s25, s17")
    A("s_waitcnt lgkmcnt(0)")
    srd(A, 4, SP['x'], 2048*512*2)
    srd(A, 8, SP['wqkv'], 512*1536*2)
    def issue_x(c):
        slot = (c % NSLOT) * SLOT
        A(f"s_add_u32 s26, s25, {c}")
        A("s_and_b32 s26, s26, 7")
        A(f"s_lshl_b32 s24, s26, 7")
        A(f"s_add_u32 s24, s24, s20")
        A(f"s_add_u32 m0, s22, {slot}")
        A(f"s_mul_i32 s27, s26, {64*3072}")
        A(f"buffer_load_dwordx4 v{vDX}, s[4:7], s24 offen lds")
        A(f"s_add_u32 m0, s22, {slot + 1024}")
        A(f"s_add_u32 s24, s24, 8192")
        A(f"buffer_load_dwordx4 v{vDX1}, s[4:7], s24 offen lds")
    def issue_w(c, nw):
        slot = (c % NSLOT) * SLOT
        A(f"s_add_u32 m0, s23, {slot}")
        A(f"s_add_u32 s27, s27, s21")
        A(f"buffer_load_dwordx4 v{vDW}, s[8:11], s27 offen lds")
        if nw == 2:
            A(f"s_add_u32 m0, s23, {slot + 8192}")
            A("s_nop 0")
            A(f"buffer_load_dwordx4 v{vDW+1}, s[8:11], s27 offen lds")
    def wsetup():
        A("s_lshl_b32 s17, s15, 6")
        A("s_movk_i32 s18, 3072")
        A("s_mov_b32 s19, 43691")
        for i in range(2):
            A(f"v_add_u32 v9, s17, v0")
            if i: A(f"v_add_u32 v9, 512, v9")
            A("v_mul_u32_u24 v10, s19, v9")
            A("v_lshrrev_b32 v10, 19, v10")
            A("v_mul_u32_u24 v11, 12, v10")
            A("v_sub_u32 v11, v9, v11")
            A("v_lshrrev_b32 v12, 2, v10")
            A("v_and_b32 v12, 2, v12")
            A("v_xor_b32 v11, v11, v12")
            A("v_lshrrev_b32 v12, 2, v11")
            A("v_and_b32 v11, 3, v11")
            A("v_lshlrev_b32 v11, 4, v11")
            A("v_lshl_add_u32 v11, v12, 10, v11")
            A(f"v_mad_u32_u24 v{vDW+i}, v10, s18, v11")
    def gtab():
        A("s_getpc_b64 s[32:33]")
        L = A.newlabel("CPC"); A.label(L)
        A(f"s_add_u32 s32, s32, GTAB-{L}")
        A("s_addc_u32 s33, s33, 0")
        A("s_and_b32 s17, s15, 3"); A("s_lshl_b32 s17, s17, 11")
        A("v_lshlrev_b32 v14, 5, v0")
        A("v_add_u32 v14, s17, v14")
        A("global_load_dwordx4 v[96:99], v14, s[32:33]")
        A("global_load_dwordx4 v[100:103], v14, s[32:33] offset:16")
    def ut_loads():
        A("buffer_load_dwordx4 v[108:111], v117, s[32:35], 0 offen sc1")
        A("buffer_load_dwordx4 v[112:115], v116, s[32:35], 0 offen sc1")
        A("buffer_load_dwordx4 v[120:123], v119, s[32:35], 0 offen sc1")
    def ut_prep():
        chan_pair(A, 14, 17)
        A("s_lshr_b32 s16, s15, 2")
        A("s_add_u32 s17, s14, s16")
        A("s_lshl_b32 s17, s17, 12")
        A(f"s_add_u32 s17, s17, {WS_UT}")
        ka_wait(A)
        A(f"s_add_u32 s32, s{SP['ws']}, s17"); A(f"s_addc_u32 s33, s{SP['ws']+1}, 0")
        A("s_mov_b32 s34, 4096"); A("s_mov_b32 s35, 0x00020000")
        A("s_and_b32 s19, s15, 3"); A("s_lshl_b32 s19, s19, 10")
        A(f"v_add_u32 v116, s19, v{vL16}")
        A("v_subrev_u32 v117, 16, v116")
        A("v_cmp_eq_u32 vcc, 0, v116")
        A("v_mov_b32 v118, 4096")
        A("s_nop 0")
        A("v_cndmask_b32 v117, v117, v118, vcc")
        A("v_mov_b32 v119, 4096")
        A(f"v_mov_b32 v120, {255*16}")
        A("v_cmp_eq_u32 vcc, 3, v0")
        A("s_nop 1")
        A("v_cndmask_b32 v119, v119, v120, vcc")
    def loop(nw):
        per = 2 + nw
        issue_w(0, nw)
        issue_x(1); issue_w(1, nw)
        for c in range(8):
            last = min(7, c + 1)
            if c != 7: A(f"s_waitcnt vmcnt({per * (last - c)})")
            A("s_barrier")
            if c + AHEAD < 8:
                issue_x(c + AHEAD); issue_w(c + AHEAD, nw)
            if c == 5: ut_prep()
            if c == 6:
                L = A.newlabel("CVC")
                A(f"v_mov_b32 v30, {C_FU}")
                A("ds_read_b32 v31, v30")
                A("s_waitcnt lgkmcnt(0)")
                A("v_readfirstlane_b32 s40, v31")
                A("s_nop 0")
                A("s_cmp_eq_u32 s40, 0")
                A(f"s_cbranch_scc1 {L}")
                ut_loads()
                A("s_waitcnt vmcnt(3)")
                A(f"s_branch {L}b")
                A.label(L)
                A("s_waitcnt vmcnt(0)")
                A.label(L + "b")
    issue_x(0)
    wsetup()
    A("s_cmp_ge_u32 s15, 4")
    A("s_cbranch_scc1 P1_LOADER1")
    loop(2)
    A("s_branch P1_LOADER_END")
    A.label("P1_LOADER1")
    loop(1)
    A.label("P1_LOADER_END")
    A("s_setprio 1")
    stamp(A, 28)
    if os.environ.get("X_P1ONLY"): A("s_branch K_FIN")
    A("s_cmp_lg_u32 s40, 0")
    A("s_cbranch_scc1 CV_HAVE")
    lwait(A, C_FU, 1, 72, sleep=1)
    ut_loads()
    A.label("CV_HAVE")
    get_tag(A, vt=30)
    def copies(D, dest):
        T0, T1, T2 = 44, 48, 52
        for j in range(4): A(f"v_alignbit_b32 v{T0+j}, v{D+j+1}, v{D+j}, 16")
        for j in range(4): A(f"v_mov_b32 v{T1+j}, v{D+1+j}")
        for j in range(4): A(f"v_alignbit_b32 v{T2+j}, v{D+j+2}, v{D+j+1}, 16")
        A(f"ds_write_b128 v{dest}, {v(T0,4)}")
        A(f"ds_write_b128 v{dest}, {v(T1,4)} offset:{UC_RHO}")
        A(f"ds_write_b128 v{dest}, {v(T2,4)} offset:{2*UC_RHO}")
        A(f"ds_write_b128 v{dest}, {v(D+2,4)} offset:{3*UC_RHO}")
    A("s_lshr_b32 s16, s15, 2")
    A(f"s_mul_i32 s21, s16, {UC_CH}")
    A(f"s_add_u32 s21, s21, {L_UC + 48}")
    A("v_add_u32 v19, s21, v116")
    A(f"s_mul_i32 s23, s16, {KREV_SZ}")
    A(f"s_add_u32 s23, s23, {L_KREV}")
    A("v_and_b32 v9, 31, v0")
    A("v_lshrrev_b32 v10, 5, v0")
    A("v_and_b32 v11, 3, v9")
    A(f"v_mul_u32_u24 v11, {UC_RHO}, v11")
    A("v_lshrrev_b32 v12, 2, v9")
    A("v_lshl_add_u32 v11, v12, 3, v11")
    A("v_lshl_add_u32 v11, v10, 4, v11")
    A(f"s_mul_i32 s24, s16, {UC_CH}")
    A(f"s_add_u32 s24, s24, {L_UC}")
    A("v_add_u32 v4, s24, v11")
    A("v_sub_u32 v11, 63, v9")
    A("v_mul_u32_u24 v11, 80, v11")
    A("v_lshl_add_u32 v11, v10, 4, v11")
    A("v_add_u32 v5, s23, v11")
    A("v_subrev_u32 v6, 2560, v5")
    A("s_and_b32 s24, s15, 3")
    A(f"s_mul_i32 s25, s16, 28672")
    A("s_lshl_b32 s26, s24, 12")
    A("s_add_u32 s25, s25, s26")
    A(f"s_add_u32 s25, s25, {L_PART}")
    A(f"v_add_u32 v7, s25, v{vL16}")
    A("s_waitcnt vmcnt(0)")
    copies(108, 19)
    A("s_cmp_eq_u32 s19, 0")
    A("s_cbranch_scc0 CV_NOX2")
    for j in range(4): A(f"v_mov_b32 v{56+j}, v{120+j}")
    for j in range(4): A(f"v_mov_b32 v{60+j}, 0")
    A(f"v_mov_b32 v30, {259*16}")
    A("v_cmp_eq_u32 vcc, 3, v0")
    A("s_sub_u32 s21, s21, 48")
    A(f"v_cndmask_b32 v30, v{vL16}, v30, vcc")
    A("v_add_u32 v30, s21, v30")
    A("s_mov_b64 exec, 15")
    copies(56, 30)
    A("s_mov_b64 exec, -1")
    A.label("CV_NOX2")
    gsync(A, C_CV, 8, 8)
    stamp(A, 30)
    ACC0, ACC1 = 56, 72
    for p in range(4):
        if p < 3:
            A(f"s_cmp_eq_u32 s24, {p}")
            A(f"s_cbranch_scc0 CV_P{p+1}")
        conv_part(A, p, 4, 5, 6, ACC0, ACC1)
        A("s_nop 15")
        for qd in range(4):
            A(f"ds_write_b128 v7, {v(ACC1+4*qd,4)} offset:{qd*1024}")
        if p < 3:
            for qd in range(4):
                A(f"ds_write_b128 v7, {v(ACC0+4*qd,4)} offset:{16384 + qd*1024}")
            A("s_branch CV_PE")
            A.label(f"CV_P{p+1}")
    A.label("CV_PE")
    stamp(A, 31)
    gsync(A, C_CV, 16, 8)
    stamp(A, 32)
    A("s_lshl_b32 s26, s24, 10")
    A(f"s_add_u32 s26, s26, {L_PART}")
    A(f"v_add_u32 v4, s26, v{vL16}")
    A("s_cmp_eq_u32 s16, 0")
    A("s_cbranch_scc1 CV_F0")
    for c in range(2):
        for p in range(4):
            A(f"ds_read_b128 {v(16+16*c+4*p,4)}, v4 offset:{c*28672 + p*4096}")
    A("s_waitcnt lgkmcnt(0)")
    for c in range(2):
        for r in range(4):
            b_ = 16 + 16*c + r
            A(f"v_add_f32 v{b_}, v{b_}, v{b_+4}"); A(f"v_add_f32 v{b_+8}, v{b_+8}, v{b_+12}")
        for r in range(4):
            b_ = 16 + 16*c + r
            A(f"v_add_f32 v{b_}, v{b_}, v{b_+8}")
    A("s_branch CV_F1")
    A.label("CV_F0")
    for c in range(2):
        for p in range(3):
            A(f"ds_read_b128 {v(16+16*c+4*p,4)}, v4 offset:{c*28672 + 16384 + p*4096}")
    A("s_waitcnt lgkmcnt(0)")
    for c in range(2):
        for r in range(4):
            b_ = 16 + 16*c + r
            A(f"v_add_f32 v{b_}, v{b_}, v{b_+4}")
        for r in range(4):
            b_ = 16 + 16*c + r
            A(f"v_add_f32 v{b_}, v{b_}, v{b_+8}")
    A.label("CV_F1")
    for r in range(4):
        A(f"v_cvt_pk_bf16_f32 v{vY[r]}, v{16+r}, v{32+r}")
    A("s_lshl_b32 s36, s16, 21")
    A("s_lshl_b32 s25, s24, 14")
    A("s_add_u32 s36, s36, s25")
    A("s_lshl_b32 s25, s14, 1")
    A("s_add_u32 s36, s36, s25")
    A("s_setprio 0")
    stamp(A, 33)

def p1_compute(A):
    vFR, vACC, vXA, vWA = 8, 64, 112, 118
    A("v_and_b32 v4, 15, v0")
    A("v_lshrrev_b32 v5, 4, v0")
    A("v_lshrrev_b32 v6, 1, v4")
    A("v_xor_b32 v6, v6, v5")
    A("v_lshlrev_b32 v6, 4, v6")
    A("v_lshl_add_u32 v6, v4, 7, v6")
    A("s_lshr_b32 s17, s3, 1")
    A("s_lshl_b32 s17, s17, 13")
    A(f"v_add_u32 v{vXA}, s17, v6")
    A(f"v_xor_b32 v{vXA+1}, 64, v{vXA}")
    for st in (1, 2):
        A(f"v_add_u32 v{vXA+2*st}, {st*2*SLOT}, v{vXA}")
        A(f"v_add_u32 v{vXA+2*st+1}, {st*2*SLOT}, v{vXA+1}")
    A("v_lshrrev_b32 v6, 2, v4")
    A("v_lshl_add_u32 v6, v5, 3, v6")
    A("v_mul_u32_u24 v6, 192, v6")
    A("v_and_b32 v7, 3, v4")
    A("v_lshl_add_u32 v6, v7, 3, v6")
    A("s_and_b32 s17, s3, 1")
    A("v_xor_b32 v7, s17, v5")
    A("v_and_b32 v7, 1, v7")
    A(f"v_lshl_add_u32 v{vWA}, v7, 5, v6")
    A(f"v_add_u32 v{vWA+1}, {2*SLOT}, v{vWA}")
    A(f"v_add_u32 v{vWA+2}, {4*SLOT}, v{vWA}")
    A("s_and_b32 s18, s3, 1")
    A("s_lshl_b32 s19, s13, 1")
    A("s_add_u32 s18, s18, s19")
    A(f"s_lshl_b32 s16, s18, {5+FS}")
    A("s_lshl_b32 s18, s18, 16")
    A("s_lshr_b32 s19, s3, 1")
    A("s_lshl_b32 s24, s12, 1")
    A("s_add_u32 s24, s24, s19")
    A(f"s_lshl_b32 s25, s24, {FS}")
    A("s_add_u32 s16, s16, s25")
    A(f"s_add_u32 s16, s16, {WS_F1}")
    A("s_lshl_b32 s19, s24, 11")
    A("s_add_u32 s18, s18, s19")
    A(f"s_mov_b32 s17, 0x{f32bits(C_SCALE):08x}")
    A("s_setprio 3")
    q = DSQ(A)
    def fr(buf): return vFR + 28 * buf
    def rd_list(step):
        c, ks2 = step // 2, step % 2
        slot = c % NSLOT
        st, so = slot // 2, (slot % 2) * SLOT
        b = fr(step % 2)
        L = []
        for hf in range(2):
            L.append((f"ds_read_b64_tr_b16 {v(b+16+2*hf,2)}, v{vWA+st} offset:{so + 16384 + (32*ks2+4*hf)*192}", ("w", step, 0, hf)))
        for ti in range(4):
            L.append((f"ds_read_b128 {v(b+4*ti,4)}, v{vXA+2*st+ks2} offset:{so + ti*2048}", ("x", step, ti)))
        for gi in range(1, 3):
            for hf in range(2):
                L.append((f"ds_read_b64_tr_b16 {v(b+16+4*gi+2*hf,2)}, v{vWA+st} offset:{so + 16384 + (32*ks2+4*hf)*192 + 64*gi}", ("w", step, gi, hf)))
        return L
    def rd(step):
        for ins, tag in rd_list(step):
            A(ins); q.issue(tag)
    def mm(step, nxt=None):
        b = fr(step % 2)
        R = rd_list(nxt) if nxt is not None else []
        if os.environ.get("X_BURST"):
            for ins, tag in R:
                A(ins); q.issue(tag)
            R = []
        n = 0
        for gi in range(3):
            for ti in range(4):
                acc = vACC + (gi*4 + ti)*4
                X = v(b+4*ti, 4); W = v(b+16+4*gi, 4)
                cc = "0" if step == 0 else v(acc, 4)
                if gi == 0: q.wait(("x", step, ti))
                if ti == 0: q.wait(("w", step, gi, 1))
                if gi < 2: A(f"v_mfma_f32_16x16x32_bf16 {v(acc,4)}, {W}, {X}, {cc}")
                else:      A(f"v_mfma_f32_16x16x32_bf16 {v(acc,4)}, {X}, {W}, {cc}")
                if n < len(R):
                    A(R[n][0]); q.issue(R[n][1])
                n += 1
    kg_scalars(A, 3, 20, False)
    A(f"s_mul_i32 s21, s22, {L_TCH}")
    A("s_lshl_b32 s23, s24, 8")
    A("s_add_u32 s21, s21, s23")
    A(f"s_add_u32 s21, s21, {L_TA + L_TBO}")
    A("v_lshlrev_b32 v8, 2, v0")
    A("v_add_u32 v8, s21, v8")
    lwait(A, C_PAR, 4, 22, sleep=1)
    kg_read(A, 22, 24, 2, 21)
    A("s_cmp_eq_u32 s22, 0")
    A("s_cselect_b32 s21, 16, 0")
    A("s_lshl_b32 s26, s26, s21"); A("s_and_b32 s26, s26, 0xffff0000")
    kg_setup(A, 26, 21, False)
    kg_bside(A, 8)
    A("s_waitcnt lgkmcnt(0)")
    lsig(A, C_G, 2)
    stamp(A, 9)
    A("v_and_b32 v80, 15, v0")
    A("v_lshrrev_b32 v81, 4, v0")
    A("v_lshrrev_b32 v82, 2, v80")
    A("v_lshl_add_u32 v82, v81, 3, v82")
    A("v_lshlrev_b32 v84, 5, v82")
    A("v_lshlrev_b32 v82, 7, v82")
    A("v_and_b32 v83, 3, v80")
    A("v_lshl_add_u32 v82, v83, 3, v82")
    A("v_lshl_add_u32 v84, v83, 3, v84")
    A(f"v_add_u32 v84, {L_WOT}, v84")
    A("s_lshl_b32 s20, s3, 5")
    A(f"s_add_u32 s20, s20, {L_UTL}")
    A("v_add_u32 v82, s20, v82")
    A("v_lshlrev_b32 v83, 12, v80")
    A("v_lshl_add_u32 v83, v81, 4, v83")
    A("s_and_b32 s20, s2, 7"); A("s_lshl_b32 s20, s20, 2"); A("s_add_u32 s20, s20, s3")
    A(f"s_lshl_b32 s21, s20, {5+FS}")
    A("s_lshl_b32 s20, s20, 16")
    A("s_lshr_b32 s22, s2, 3")
    A("s_lshl_b32 s23, s22, 7")
    A("s_add_u32 s20, s20, s23")
    A(f"s_add_u32 s20, s20, {WS_UT}")
    A(f"s_lshl_b32 s23, s22, {FS}")
    A("s_add_u32 s21, s21, s23")
    A(f"s_add_u32 s21, s21, {WS_FU}")
    A("s_lshr_b32 s24, s2, 3"); A(f"s_lshl_b32 s22, s24, {3+FS}"); A("s_lshl_b32 s24, s24, 14")
    A("s_and_b32 s19, s2, 7"); A(f"s_lshl_b32 s23, s19, {FS}"); A("s_lshl_b32 s19, s19, 11")
    A("s_add_u32 s24, s24, s19")
    A(f"s_add_u32 s24, s24, {WS_WOF}")
    A("s_add_u32 s22, s22, s23")
    A(f"s_add_u32 s22, s22, {WS_F3}")
    lwait(A, C_GU, 4, 86, sleep=1)
    for p in range(2):
        for hf in range(2):
            A(f"ds_read_b64_tr_b16 {v(64+4*p+2*hf,2)}, v82 offset:{(32*p+4*hf)*128}")
    for s_ in range(2):
        for hf in range(2):
            A(f"ds_read_b64_tr_b16 {v(72+4*s_+2*hf,2)}, v84 offset:{(32*s_+4*hf)*32}")
    A("s_waitcnt lgkmcnt(0)")
    lsig(A, C_GT, 86)
    stamp(A, 25)
    A(f"buffer_store_dwordx4 v[64:67], v83, {WSRD}, s20 offen sc1")
    A(f"buffer_store_dwordx4 v[68:71], v83, {WSRD}, s20 offen offset:64 sc1")
    A("s_cmp_eq_u32 s3, 0")
    A("s_cbranch_scc0 PC_NW")
    A(f"buffer_store_dwordx4 v[72:75], v{vL16}, {WSRD}, s24 offen sc1")
    A(f"buffer_store_dwordx4 v[76:79], v{vL16}, {WSRD}, s24 offen offset:1024 sc1")
    A.label("PC_NW")
    get_tag(A)
    stamp(A, 19)
    for c in range(8):
        A("s_barrier")
        if c in (0, 7): stamp(A, 10 if c == 0 else 17)
        if c == int(os.environ.get("CFL", 0)):
            A("s_waitcnt vmcnt(0)")
            flag_store(A, 21, 2, 3)
            A("s_cmp_eq_u32 s3, 0")
            A("s_cbranch_scc0 PC_NF")
            flag_store(A, 22, 2, 3)
            A.label("PC_NF")
        if c == 0: rd(0)
        else: mm(2*c - 1, 2*c)
        mm(2*c, 2*c + 1)
        q.drain()
    lsig(A, C_DONE(7), 4)
    mm(15)
    stamp(A, 1)
    T = vFR
    n = 0
    for gi, base in ((1, WS_K), (2, WS_V), (0, WS_Q)):
        if gi == 0:
            for ti in range(4):
                for r in range(4):
                    A(f"v_mul_f32 v{vACC+ti*4+r}, s17, v{vACC+ti*4+r}")
        for pair in range(2):
            a0 = vACC + (gi*4 + 2*pair)*4; a1 = a0 + 4
            t = T + 4 * n; n += 1
            A(f"v_cvt_pk_bf16_f32 v{t}, v{a0}, v{a0+1}")
            A(f"v_cvt_pk_bf16_f32 v{t+1}, v{a0+2}, v{a0+3}")
            A(f"v_cvt_pk_bf16_f32 v{t+2}, v{a1}, v{a1+1}")
            A(f"v_cvt_pk_bf16_f32 v{t+3}, v{a1+2}, v{a1+3}")
            A(f"s_add_u32 s24, s18, {base + pair*1024}")
            A("s_nop 0")
            op = "v_permlane32_swap_b32" if gi == 2 else "v_permlane16_swap_b32"
            A(f"{op} v{t}, v{t+2}")
            A(f"{op} v{t+1}, v{t+3}")
            A("s_nop 1")
            A(f"buffer_store_dwordx4 {v(t,4)}, v{vL16}, {WSRD}, s24 offen sc1")
    stamp(A, 18)
    A("s_waitcnt vmcnt(0)")
    get_tag(A)
    flag_store(A, 16, 2, 3)
    lsig(A, C_OWN, 2)
    A("s_setprio 0")
    stamp(A, 2)
    if os.environ.get("X_P1ONLY"): A("s_branch K_FIN")

def cmul(A, D, X, S, T):
    A(f"v_pk_mul_f32 {v(T,2)}, {v(X,2)}, {v(S,2)} op_sel:[0,0] op_sel_hi:[1,0]")
    A(f"v_pk_fma_f32 {v(D,2)}, {v(X,2)}, {v(S,2)}, {v(T,2)} op_sel:[1,1,0] op_sel_hi:[0,1,1] neg_lo:[0,1,0]")

def fl(p): return f"{float(p)!r}" if p in (1, 2, 4) else f"0x{f32bits(float(p)):08x}"
def anchor(A, D, p, vt2, vw, tmp, conj=False):
    A(f"v_mul_f32 v{tmp}, {fl(p)}, v{vt2}")
    A(f"v_mul_f32 v{tmp+1}, {fl(p)}, v{vw}")
    A(f"v_exp_f32 v{tmp}, v{tmp}")
    A(f"v_fract_f32 v{tmp+1}, v{tmp+1}")
    A(f"v_cos_f32 v{D}, v{tmp+1}")
    A(f"v_sin_f32 v{D+1}, v{tmp+1}")
    A("s_nop 0")
    A(f"v_mul_f32 v{D}, v{D}, v{tmp}")
    if conj: A(f"v_mul_f32_e64 v{D+1}, -v{D+1}, v{tmp}")
    else: A(f"v_mul_f32 v{D+1}, v{D+1}, v{tmp}")

def kg_scalars(A, kw_sreg, s0, dsk):
    chan_pair(A, s0, s0+1)
    A(f"s_lshr_b32 s{s0+2}, s{kw_sreg}, 1")
    A(f"s_and_b32 s{s0+4}, s{kw_sreg}, 1")
    A(f"s_lshl_b32 s{s0+1}, s{s0}, 1")
    A(f"s_add_u32 s{s0+8}, s{SP['ldt']}, s{s0+1}"); A(f"s_addc_u32 s{s0+9}, s{SP['ldt']+1}, 0")
    A(f"s_load_dword s{s0+6}, s[{s0+8}:{s0+9}], 0")
    if dsk:
        A(f"s_add_u32 s{s0+10}, s{SP['dsk']}, s{s0+1}"); A(f"s_addc_u32 s{s0+11}, s{SP['dsk']+1}, 0")
        A(f"s_load_dword s{s0+7}, s[{s0+10}:{s0+11}], 0")

def kg_read(A, s_c, s_mh, narr, s_tmp):
    A(f"s_lshl_b32 s{s_tmp}, s{s_c}, 8")
    A(f"v_lshlrev_b32 v9, 1, v0")
    A(f"v_add_u32 v9, s{s_tmp}, v9")
    A(f"s_lshl_b32 s{s_tmp}, s{s_mh}, 7")
    A(f"s_add_u32 s{s_tmp}, s{s_tmp}, {L_PAR}")
    A(f"v_add_u32 v9, s{s_tmp}, v9")
    for i in range(narr):
        A(f"ds_read_u16 v{10+i}, v9 offset:{512*i}")
    A("s_waitcnt lgkmcnt(0)")

def kg_setup(A, s_ldt, s_tmp, full):
    vt2, vw, vY0, tmp = 16, 17, 18, 20
    A(f"s_mov_b32 s{s_tmp}, 0x{f32bits(LOG2E):08x}")
    A(f"v_mov_b32 v{tmp}, s{s_ldt}")
    A(f"v_lshlrev_b32 v10, 16, v10")
    A(f"v_mul_f32 v{tmp}, s{s_tmp}, v{tmp}")
    A(f"v_mul_f32 v10, s{s_tmp}, v10")
    A(f"v_exp_f32 v{tmp}, v{tmp}")
    A(f"v_exp_f32 v10, v10")
    A(f"v_lshlrev_b32 v11, 16, v11")
    A(f"v_cvt_pk_bf16_f32 v{tmp}, v{tmp}, v10")
    if full: A(f"v_lshlrev_b32 v12, 16, v12")
    A(f"v_and_b32 v10, 0xffff0000, v{tmp}")
    A(f"v_lshlrev_b32 v{tmp}, 16, v{tmp}")
    if full: A(f"v_lshlrev_b32 v13, 16, v13")
    A(f"v_mul_f32 v10, v10, v{tmp}")
    A(f"v_mul_f32 v11, v11, v{tmp}")
    A(f"v_mul_f32 v{vt2}, 0x{f32bits(-LOG2E):08x}, v10")
    A(f"v_mul_f32 v{vw}, 0x{f32bits(INV2PI):08x}, v11")
    if full:
        A(f"v_add_f32 v{tmp}, v{tmp}, v{tmp}")
        A(f"v_mul_f32 v{vY0}, v12, v{tmp}")
        A(f"v_mul_f32_e64 v{vY0+1}, -v13, v{tmp}")

def kg_bside(A, vaddr):
    vt2, vw = 16, 17
    X = [24, 26, 28, 30]; S16, S32 = 32, 34
    anchor(A, X[1], 8, vt2, vw, 36)
    A(f"v_mov_b32 v{X[0]}, 1.0"); A(f"v_mov_b32 v{X[0]+1}, 0")
    cmul(A, X[2], X[1], X[1], 36)
    cmul(A, X[3], X[1], X[2], 38)
    cmul(A, S32, X[2], X[2], 40)
    ch = [Rec() for _ in range(4)]
    for j in range(4):
        for b in range(j, 32, 4):
            p_ = 50 + 2*j + (b // 4) % 2
            ch[j](f"v_cvt_pk_bf16_f32 v{p_}, v{X[j]}, v{X[j]+1}")
            if b + 4 < 32: cmul(ch[j], X[j], X[j], S32, 42 + 2*j)
            ch[j](f"ds_write_b32 v{vaddr}, v{p_} offset:{b*528}")
    for ins in merge(*[c.L for c in ch]): A(ins)

def kg_aside(A, vaddr):
    vt2, vw, vY0 = 16, 17, 18
    F1, F256, F2, F4, Y, Z, W = 24, 26, 28, 30, 32, 34, 36
    r2, r3 = Rec(), Rec()
    anchor(r2, F1, 1, vt2, vw, 48, conj=True)
    anchor(r3, F256, 256, vt2, vw, 50, conj=True)
    for ins in merge(r2.L, r3.L): A(ins)
    cmul(A, F2, F1, F1, 48)
    cmul(A, Z, vY0, F256, 50)
    cmul(A, F4, F2, F2, 48)
    ay, az, aw = Rec(), Rec(), Rec()
    cnt = {}
    def put(ch, base, reg, row):
        n_ = cnt.get(base, 0); cnt[base] = n_ + 1
        p = base + n_ % 2
        ch(f"v_cvt_pk_bf16_f32 v{p}, v{reg}, v{reg+1}")
        ch(f"ds_write_b32 v{vaddr}, v{p} offset:{row*528}")
    put(ay, 60, vY0, 0)
    cmul(ay, Y, vY0, F1, 64); put(ay, 60, Y, 1)
    for r in range(2, 8):
        cmul(ay, Y, Y, F1, 64); put(ay, 60, Y, r)
    A(f"v_mov_b32 v{W}, v{Z}"); A(f"v_mov_b32 v{W+1}, v{Z+1}")
    put(aw, 68, W, 8)
    for r in (9, 10, 11):
        cmul(aw, W, W, F2, 70); put(aw, 68, W, r)
    V = 38
    cmul(az, Z, Z, F256, 66); put(az, 62, Z, 12)
    cmul(az, V, Z, F4, 72); put(az, 62, V, 13)
    cmul(az, Z, Z, F256, 66); put(az, 62, Z, 14)
    cmul(az, V, Z, F4, 72); put(az, 62, V, 15)
    for r in range(16, 21):
        cmul(az, Z, Z, F256, 66); put(az, 62, Z, r)
    for ins in merge(az.L, ay.L, aw.L): A(ins)

L_WOT = L_T + 2048
def kgen_pre(A):
    A("s_sub_u32 s15, s3, 12")
    A("s_setprio 3")
    chan_pair(A, 14, 17)
    A("s_lshl_b32 s17, s14, 8")
    A("s_lshl_b32 s18, s15, 9")
    A("s_mov_b32 s40, -1"); A("s_mov_b32 s41, 0")
    A("v_lshrrev_b32 v14, 3, v0")
    A("v_lshlrev_b32 v14, 10, v14")
    A("v_and_b32 v13, 7, v0")
    A("v_lshl_add_u32 v14, v13, 4, v14")
    A("s_lshr_b32 s19, s2, 3"); A("s_lshl_b32 s19, s19, 16")
    A("s_lshl_b32 s16, s15, 14")
    A("s_add_u32 s19, s19, s16")
    A("s_and_b32 s16, s2, 7"); A("s_lshl_b32 s16, s16, 7")
    A("s_add_u32 s19, s19, s16")
    A("v_lshrrev_b32 v12, 1, v0")
    A("v_lshlrev_b32 v12, 10, v12")
    A("v_and_b32 v13, 1, v0")
    A("v_lshl_add_u32 v12, v13, 4, v12")
    ka_wait(A)
    A(f"s_mov_b32 s32, s{SP['lar']}"); A(f"s_mov_b32 s33, s{SP['lar']+1}")
    for mm_, nm in ((1, 'aim'), (2, 'cre'), (3, 'cim')):
        A(f"s_cmp_eq_u32 s15, {mm_}")
        A(f"s_cselect_b32 s32, s{SP[nm]}, s32"); A(f"s_cselect_b32 s33, s{SP[nm]+1}, s33")
    A(f"s_mov_b32 s34, {512*128*2}"); A("s_mov_b32 s35, 0x00020000")
    A(f"s_add_u32 m0, s18, {L_PAR}")
    A("s_mov_b64 exec, s[40:41]")
    A(f"buffer_load_dwordx4 v{vL16}, s[32:35], s17 offen lds")
    A("s_mov_b64 exec, -1")
    kg_scalars(A, 15, 20, True)
    A("s_getpc_b64 s[32:33]")
    A.label("KG_PC")
    A("s_add_u32 s32, s32, GTAB-KG_PC")
    A("s_addc_u32 s33, s33, 0")
    A("s_lshl_b32 s17, s15, 11")
    A("v_lshlrev_b32 v11, 5, v0")
    A("v_add_u32 v11, s17, v11")
    A("global_load_dwordx4 v[96:99], v11, s[32:33]")
    A("global_load_dwordx4 v[100:103], v11, s[32:33] offset:16")
    srd(A, 32, SP['u'], 2048*512*2)
    A(f"s_add_u32 m0, s17, {L_UTL}")
    A("s_nop 0")
    A("buffer_load_dwordx4 v14, s[32:35], s19 offen lds")
    A(f"s_add_u32 m0, s17, {L_UTL + 1024}")
    A("s_add_u32 s19, s19, 8192")
    A("buffer_load_dwordx4 v14, s[32:35], s19 offen lds")
    srd(A, 32, SP['wo'], 512*512*2)
    A("s_and_b32 s17, s2, 7"); A("s_lshl_b32 s17, s17, 16")
    A("s_lshl_b32 s19, s15, 14")
    A("s_add_u32 s17, s17, s19")
    A("s_lshr_b32 s19, s2, 3"); A("s_lshl_b32 s19, s19, 5")
    A("s_add_u32 s17, s17, s19")
    A(f"s_add_u32 m0, s18, {L_WOT}")
    A("s_mov_b64 exec, s[40:41]")
    A("buffer_load_dwordx4 v12, s[32:35], s17 offen lds")
    A("s_mov_b64 exec, -1")
    A("s_cmp_eq_u32 s15, 0")
    A("s_cbranch_scc0 KG_NE")
    A(f"s_mov_b32 s16, {WS_EP}")
    A("v_mov_b32 v9, 0")
    A("s_mov_b64 exec, 1")
    A(f"buffer_load_dword v{vE}, v9, {WSRD}, s16 offen sc1")
    A("s_mov_b64 exec, -1")
    A.label("KG_NE")

def kgen(A):
    A("s_mov_b32 s16, s22"); A("s_mov_b32 s18, s24"); A("s_mov_b32 s14, s20")
    A(f"s_mul_i32 s25, s16, {L_TCH}")
    A("s_lshl_b32 s23, s18, 8")
    A("s_add_u32 s25, s25, s23")
    A(f"s_add_u32 s25, s25, {L_TA}")
    A("v_lshlrev_b32 v15, 2, v0")
    A("v_add_u32 v15, s25, v15")
    A("s_cmp_eq_u32 s15, 0")
    A("s_cbranch_scc1 KG_WP")
    A("s_waitcnt vmcnt(5)")
    A.label("KG_WP")
    A("s_waitcnt vmcnt(6)")
    gsync(A, C_PAR, 4, 66)
    stamp(A, 24)
    kg_read(A, 16, 18, 4, 23)
    A("s_cmp_eq_u32 s16, 0")
    A("s_cselect_b32 s23, 16, 0")
    A("s_lshl_b32 s26, s26, s23"); A("s_and_b32 s26, s26, 0xffff0000")
    A("s_lshl_b32 s27, s27, s23"); A("s_and_b32 s27, s27, 0xffff0000")
    kg_setup(A, 26, 23, True)
    kg_aside(A, 15)
    A("s_waitcnt lgkmcnt(0)")
    lsig(A, C_G, 66)
    stamp(A, 21)
    A("s_waitcnt vmcnt(0)")
    A("s_cmp_eq_u32 s15, 0")
    A("s_cbranch_scc0 KG_NT")
    make_tag(A)
    A.label("KG_NT")
    A("s_waitcnt lgkmcnt(0)")
    lsig(A, C_GU, 86)
    lwait(A, C_G, 8, 86, sleep=1)
    stamp(A, 22)
    A("v_and_b32 v9, 15, v0")
    A("v_lshrrev_b32 v10, 4, v0")
    A("v_mul_u32_u24 v11, 528, v9")
    A("v_lshl_add_u32 v11, v10, 4, v11")
    A(f"s_mul_i32 s25, s16, {L_TCH}")
    A(f"s_add_u32 s25, s25, {L_TA}")
    A(f"s_mul_i32 s23, s18, {16*528}")
    A("s_add_u32 s23, s23, s25")
    A("v_add_u32 v12, s23, v11")
    A(f"s_add_u32 s25, s25, {L_TBO}")
    A("v_add_u32 v13, s25, v11")
    q = DSQ(A)
    def rd(s_):
        b = s_ % 4
        A(f"ds_read_b128 {v(16+4*b,4)}, v12 offset:{s_*64}"); q.issue(("a", s_))
        A(f"ds_read_b128 {v(32+4*b,4)}, v13 offset:{s_*64}"); q.issue(("b0", s_))
        A(f"ds_read_b128 {v(48+4*b,4)}, v13 offset:{16*528 + s_*64}"); q.issue(("b1", s_))
    for s_ in range(3): rd(s_)
    for s_ in range(8):
        if s_ + 3 < 8: rd(s_ + 3)
        b = s_ % 4
        q.wait(("b0", s_))
        A(f"v_mfma_f32_16x16x32_bf16 v[120:123], {v(16+4*b,4)}, {v(32+4*b,4)}, {'0' if s_==0 else 'v[120:123]'}")
        q.wait(("b1", s_))
        A(f"v_mfma_f32_16x16x32_bf16 v[4:7], {v(16+4*b,4)}, {v(48+4*b,4)}, {'0' if s_==0 else 'v[4:7]'}")
    A("s_lshl_b32 s25, s16, 11")
    A("s_lshl_b32 s23, s18, 10")
    A("s_add_u32 s25, s25, s23")
    A(f"s_add_u32 s25, s25, {L_T}")
    A("v_lshlrev_b32 v14, 8, v10")
    A("v_lshl_add_u32 v14, v9, 1, v14")
    A("v_add_u32 v14, s25, v14")
    A("s_cmp_eq_u32 s18, 0")
    A("s_cselect_b32 s27, s27, 0")
    A("v_mov_b32 v15, s27")
    lwait(A, C_GT, 4, 2)
    A("v_cmp_eq_u32 vcc, 0, v0")
    A("s_nop 1")
    A("v_cndmask_b32 v15, 0, v15, vcc")
    A("v_add_f32 v120, v120, v15")
    for ct, b_ in enumerate((120, 4)):
        A(f"v_cvt_pk_bf16_f32 v{16+2*ct}, v{b_}, v{b_+1}")
        A(f"v_cvt_pk_bf16_f32 v{17+2*ct}, v{b_+2}, v{b_+3}")
        A(f"ds_write_b16 v14, v{16+2*ct} offset:{32*ct}")
        A(f"ds_write_b16_d16_hi v14, v{16+2*ct} offset:{32*ct+64}")
        A(f"ds_write_b16 v14, v{17+2*ct} offset:{32*ct+128}")
        A(f"ds_write_b16_d16_hi v14, v{17+2*ct} offset:{32*ct+192}")
    gsync(A, C_GT2, 4, 2)
    stamp(A, 23)
    for e in range(8): A(f"v_add_u32 v{96+e}, {L_T}, v{96+e}")
    for c in range(2):
        for e in range(8):
            op = "ds_read_u16_d16_hi" if e % 2 else "ds_read_u16"
            A(f"{op} v{(32 if e % 2 else 16)+4*c+e//2}, v{96+e} offset:{c*2048}")
    A("s_lshl_b32 s25, s15, 6")
    A("v_add_u32 v9, s25, v0")
    A("v_lshrrev_b32 v10, 2, v9")
    A("v_mul_u32_u24 v10, 80, v10")
    A("v_and_b32 v9, 3, v9")
    A("v_lshl_add_u32 v10, v9, 4, v10")
    A(f"v_add_u32 v10, {L_KREV}, v10")
    for j in range(4): A(f"v_mov_b32 v{40+j}, 0")
    A(f"s_mul_i32 s25, s16, {KREV_SZ}")
    A(f"s_mul_i32 s23, s18, 1280")
    A("s_add_u32 s25, s25, s23")
    A(f"s_add_u32 s25, s25, {L_KREV + 64*80}")
    A(f"v_add_u32 v11, s25, v{vL16}")
    A("ds_write_b128 v11, v[40:43]")
    A("s_mov_b64 exec, 0xffff")
    A("ds_write_b128 v11, v[40:43] offset:1024")
    A("s_mov_b64 exec, -1")
    A("s_waitcnt lgkmcnt(10)")
    for j in range(4): A(f"v_or_b32 v{16+j}, v{16+j}, v{32+j}")
    A("s_waitcnt lgkmcnt(2)")
    for j in range(4): A(f"v_or_b32 v{20+j}, v{20+j}, v{36+j}")
    A("ds_write_b128 v10, v[16:19]")
    A(f"ds_write_b128 v10, v[20:23] offset:{KREV_SZ}")
    A("s_waitcnt lgkmcnt(0)")
    stamp(A, 27)
    FLAT = int(os.environ.get("FLAT", 3))
    for i in range(8):
        A("s_barrier")
        if i == FLAT:
            get_tag(A)
            chan_pair(A, 14, 17)
            A("s_lshr_b32 s28, s14, 4")
            A(f"s_lshl_b32 s28, s28, {5+FS}")
            A(f"s_add_u32 s28, s28, {WS_FU}")
            A(f"v_lshlrev_b32 v104, {FS}, v0")
            A("s_mov_b32 s40, 0")
        if i == FLAT + 2:
            A("s_cmp_eq_u32 s15, 3")
            A("s_cbranch_scc0 KG_L2")
            A("s_waitcnt vmcnt(0)")
            A("s_mov_b32 s30, -1"); A("s_mov_b32 s31, 0")
            A(f"v_cmp_ne_u32 vcc, s{sT}, v105")
            A("s_nop 1")
            A("s_and_b64 vcc, vcc, s[30:31]")
            A("s_cbranch_vccnz KG_L2")
            lsig(A, C_FU, 66)
            A("s_mov_b32 s40, 1")
            A.label("KG_L2")
        if i == FLAT + 1:
            A("s_cmp_eq_u32 s15, 3")
            A("s_cbranch_scc0 KG_L1")
            A("s_mov_b32 s30, -1"); A("s_mov_b32 s31, 0")
            A("s_mov_b64 exec, s[30:31]")
            A(f"buffer_load_dword v105, v104, {WSRD}, s28 offen sc1")
            A("s_mov_b64 exec, -1")
            A.label("KG_L1")
    A("s_cmp_eq_u32 s15, 3")
    A("s_cbranch_scc0 KG_END2")
    A("s_cmp_lg_u32 s40, 0")
    A("s_cbranch_scc1 KG_END2")
    poll(A, "KG_PU", 104, 28, "-1", 105, sleep=2)
    lsig(A, C_FU, 66)
    A.label("KG_END2")
    if os.environ.get("X_P1ONLY"): A("s_branch K_FIN")

vKA, vVA, vQ, vKF, vVF, vS, vP, vO, vM, vT = 2, 3, 4, 8, 16, 32, 64, 72, 88, 89
vLD = 92
vLW = 124
vLW2 = 89
NT = 32
SCHED = "e0 e1 PV1 RV e2 e3 c0 e4 e5 c1 QK RK e6 e7 c2 e8 e9 c3 e10 e11 PV0 c4 e12 e13 c5 e14 e15 c6 c7"
PRIO = {0: 3, 8: 2, 16: 1, 24: 0}

def attn_ids(A):
    A("s_and_b32 s12, s2, 7")
    A("s_lshl_b32 s12, s12, 2")
    A("s_lshr_b32 s13, s2, 3")
    A("s_and_b32 s17, s13, 3")
    A("s_add_u32 s12, s12, s17")
    A("s_lshr_b32 s13, s2, 5")
    A("s_lshl_b32 s17, s12, 16")

def ld_group(A):
    attn_ids(A)
    A("s_cmp_lt_u32 s3, 4")
    A("s_cselect_b32 s15, 0, 8")
    A("s_sub_u32 s15, s3, s15")
    A(f"v_lshlrev_b32 v10, {FS}, v0")
    A(f"s_lshl_b32 s27, s12, {5+FS}")
    A(f"s_add_u32 s27, s27, {WS_F1}")
    A("s_lshr_b32 s22, s15, 1")
    A("s_and_b32 s23, s15, 1"); A("s_lshl_b32 s23, s23, 1")
    A("s_and_b32 s25, s22, 1"); A("s_lshl_b32 s25, s25, 15")
    A("s_lshr_b32 s26, s22, 1"); A("s_lshl_b32 s26, s26, 21")
    A("s_add_u32 s25, s25, s26")
    A("s_lshl_b32 s26, s23, 10")
    A("s_add_u32 s25, s25, s26")
    A("s_add_u32 s25, s25, s17")
    A(f"s_add_u32 s25, s25, {WS_K}")
    A("s_lshl_b32 s24, s23, 12")
    A("s_lshl_b32 s26, s22, 10")
    A("s_add_u32 s24, s24, s26")
    A(f"v_add_u32 v11, s24, v{vL16}")
    A("s_lshl_b32 s18, s13, 3"); A("s_add_u32 s18, s18, s15"); A("s_lshl_b32 s18, s18, 10"); A("s_add_u32 s18, s18, s17")
    A("s_lshl_b32 s19, s15, 10"); A(f"s_add_u32 s19, s19, {L_QS}")
    A(f"v_add_u32 v12, s19, v{vL16}")
    A("s_cmp_eq_u32 s3, 13")
    A("s_cbranch_scc0 LD_NOPOLL")
    lwait(A, C_OWN, 4, 44, sleep=2)
    poll(A, "LD_POLL", 10, 27, "-1", 13, sleep=2)
    lsig(A, C_F1, 44)
    A.label("LD_NOPOLL")
    lwait(A, C_F1, 1, 44, sleep=1)
    stamp(A, 3)
    def rload(r, d0):
        A(f"s_add_u32 s26, s13, {r}")
        A("s_and_b32 s26, s26, 7")
        A("s_lshl_b32 s26, s26, 12")
        A("s_add_u32 s26, s26, s25")
        A(f"buffer_load_dwordx4 {v(d0,4)}, v{vL16}, {WSRD}, s26 offen sc1")
        A(f"buffer_load_dwordx4 {v(d0+4,4)}, v{vL16}, {WSRD}, s26 offen offset:1024 sc1")
    rload(0, 16)
    A(f"buffer_load_dwordx4 v[40:43], v{vL16}, {WSRD}, s18 offen sc1")
    rload(1, vLD)
    rload(2, vLD + 8)
    A(f"v_mov_b32 v{vLW2}, v11")
    lwait(A, C_DONE(7), 4, 44)
    A("s_waitcnt vmcnt(4)")
    A("ds_write_b128 v11, v[16:19]")
    A("ds_write_b128 v11, v[20:23] offset:4096")
    A("ds_write_b128 v12, v[40:43]")

def attention(A):
    attn_ids(A)
    A("s_mov_b32 s20, 0x0000ffff")
    A("s_mov_b32 s21, 0x0000ffff")
    A("s_and_b32 s15, s3, 7")
    A("s_lshr_b32 s16, s3, 3")
    A("s_lshl_b32 s19, s16, 10")
    A(f"v_add_u32 v{vKA}, s19, v{vL16}")
    A("v_lshrrev_b32 v8, 5, v0")
    A("v_lshlrev_b32 v8, 8, v8")
    A("v_and_b32 v9, 15, v0")
    A("v_lshlrev_b32 v9, 4, v9")
    A("s_add_u32 s19, s19, 2048")
    A(f"v_add3_u32 v{vVA}, v8, v9, s19")
    A("v_and_b32 v8, 31, v0")
    A("v_cmp_eq_u32 vcc, 16, v8")
    A("v_mov_b32 v9, 0x3f803f80")
    A("s_lshl_b32 s22, s15, 10"); A(f"s_add_u32 s22, s22, {L_QS}")
    A("v_cndmask_b32 v9, 0, v9, vcc")
    A(f"v_add_u32 v10, s22, v{vL16}")
    for i in range(16): A(f"v_mov_b32 v{vVF+i}, v9")
    A(f"v_mov_b32 v{vM}, 0")
    A("s_lshl_b32 s18, s13, 3")
    A("s_add_u32 s18, s18, s15")
    A(f"s_lshl_b32 s19, s18, {5+FS}")
    A(f"s_lshl_b32 s22, s12, {FS}")
    A("s_add_u32 s19, s19, s22")
    A(f"s_add_u32 s19, s19, {WS_F2}")
    A("s_lshl_b32 s18, s18, 10")
    A("s_add_u32 s18, s18, s17")
    A("s_lshr_b32 s22, s3, 2")
    A("s_and_b32 s23, s3, 3")
    A("s_lshl_b32 s24, s23, 12")
    A("s_lshl_b32 s26, s22, 10")
    A("s_add_u32 s24, s24, s26")
    A(f"v_add_u32 v{vLW}, s24, v{vL16}")
    A("s_and_b32 s25, s22, 1"); A("s_lshl_b32 s25, s25, 15")
    A("s_lshr_b32 s26, s22, 1"); A("s_lshl_b32 s26, s26, 21")
    A("s_add_u32 s25, s25, s26")
    A("s_lshl_b32 s23, s23, 10")
    A("s_add_u32 s25, s25, s23")
    A("s_add_u32 s25, s25, s17")
    A(f"s_add_u32 s25, s25, {WS_K}")
    A("s_lshr_b32 s37, s2, 3"); A("s_and_b32 s37, s37, 3"); A("s_lshl_b32 s37, s37, 3"); A("s_add_u32 s37, s37, s15")
    A("s_setprio 3")
    A("s_waitcnt lgkmcnt(0)")
    A("s_barrier")
    stamp(A, 4)
    A(f"ds_read_b128 {v(vQ,4)}, v10")
    q = DSQ(A)
    KF = lambda t: vKF + 4 * (t % 2)
    VF = lambda t, j: vVF + 8 * (t % 2) + 4 * j
    S = lambda t: vS + 16 * (t % 2)
    def rdK(t):
        A(f"ds_read_b128 {v(KF(t),4)}, v{vKA} offset:{(t%16)*4096}"); q.issue(("K", t))
    def rdV(t):
        A("s_mov_b64 exec, s[20:21]")
        A(f"ds_read_b128 {v(VF(t,0),4)}, v{vVA} offset:{(t%16)*4096}"); q.issue(("V0", t))
        A(f"ds_read_b128 {v(VF(t,1),4)}, v{vVA} offset:{(t%16)*4096+512}"); q.issue(("V1", t))
        A("s_mov_b64 exec, -1")
    def qk(t):
        q.wait(("K", t))
        A(f"v_mfma_f32_32x32x16_bf16 {v(S(t),16)}, {v(KF(t),4)}, {v(vQ,4)}, 0")
    def e(t, i): A(f"v_exp_f32 v{S(t)+i}, v{S(t)+i}")
    def c(t, k): A(f"v_cvt_pk_bf16_f32 v{vP+k}, v{S(t)+2*k}, v{S(t)+2*k+1}")
    def pv(t, j):
        cc = "0" if (t == 0 and j == 0) else v(vO, 16)
        A(f"v_mfma_f32_32x32x16_bf16 {v(vO,16)}, {v(VF(t,j),4)}, {v(vP+4*j,4)}, {cc}")
    rdK(0); rdK(1); rdV(0)
    qk(0)
    A("s_nop 7"); A("s_nop 3")
    for t in range(NT):
        A.comment(f"--- tile {t}")
        if t in PRIO: A(f"s_setprio {PRIO[t]}")
        for tok in SCHED.split():
            if tok[0] == 'e': e(t, int(tok[1:]))
            elif tok[0] == 'c': c(t, int(tok[1:]))
            elif tok == 'PV1':
                if t > 0: pv(t - 1, 1)
            elif tok == 'QK':
                if t + 1 < NT: qk(t + 1)
            elif tok == 'PV0':
                q.wait(("V1", t)); pv(t, 0)
            elif tok == 'RK':
                slot_of = {3: 4, 4: 5, 5: 6, 6: 7, 7: 0}
                if t == 2:
                    A("s_sub_u32 s26, s3, 4")
                    A("s_cmp_lt_u32 s26, 8")
                    A("s_cbranch_scc1 AT_NL")
                    A("s_waitcnt vmcnt(2)")
                    A(f"ds_write_b128 v{vLW2}, {v(vLD,4)} offset:16384")
                    A(f"ds_write_b128 v{vLW2}, {v(vLD+4,4)} offset:20480")
                    A(f"ds_write_b128 v{vLW2}, {v(vLD+8,4)} offset:32768")
                    A(f"ds_write_b128 v{vLW2}, {v(vLD+12,4)} offset:36864")
                    A.label("AT_NL")
                    A("s_waitcnt lgkmcnt(0)"); q.q = []
                    A("s_barrier")
                if t < 5:
                    r = 3 + t
                    A(f"s_add_u32 s26, s13, {r}")
                    A("s_and_b32 s26, s26, 7")
                    A("s_lshl_b32 s26, s26, 12")
                    A("s_add_u32 s26, s26, s25")
                    A(f"buffer_load_dwordx4 {v(vLD+4*slot_of[r],4)}, v{vL16}, {WSRD}, s26 offen sc1")
                if t == 9:
                    A("s_waitcnt vmcnt(0)")
                    A(f"ds_write_b128 v{vLW}, {v(vLD+4*slot_of[3],4)} offset:49152")
                    A(f"v_add_u32 v{vLW}, 65536, v{vLW}")
                    for r in range(4, 8):
                        A(f"ds_write_b128 v{vLW}, {v(vLD+4*slot_of[r],4)} offset:{r*16384 - 65536}")
                    A("s_waitcnt lgkmcnt(0)"); q.q = []
                    A("s_barrier")
                    A(f"v_lshlrev_b32 v{vT}, {FS}, v0")
                    A(f"s_lshl_b32 s26, s37, {3+FS}")
                    A(f"s_add_u32 s26, s26, {WS_F3}")
                    A("s_mov_b64 exec, 0xff")
                    A(f"buffer_load_dword v{vLW}, v{vT}, {WSRD}, s26 offen sc1")
                    A("s_mov_b64 exec, -1")
                if t == 11:
                    A("s_waitcnt vmcnt(0)")
                    check_or_poll(A, "AT_P3", vT, 26, "0xff", vLW)
                    A("s_lshl_b32 s27, s37, 14")
                    A("s_lshl_b32 s26, s16, 13")
                    A("s_add_u32 s27, s27, s26")
                    A(f"s_add_u32 s27, s27, {WS_WOF}")
                if 11 <= t < 19:
                    A(f"buffer_load_dwordx4 {v(vLD+4*(t-11),4)}, v{vL16}, {WSRD}, s27 offen sc1")
                    if t < 18: A("s_add_u32 s27, s27, 1024")
                if t == 20:
                    A("s_sub_u32 s26, s3, 4")
                    A("s_cmp_lt_u32 s26, 8")
                    A("s_cbranch_scc0 AT_NY0")
                    A(f"v_and_b32 v{vT}, 31, v0")
                    A(f"v_lshrrev_b32 v{vLW}, 5, v0")
                    A(f"v_lshlrev_b32 v{vT}, 16, v{vT}")
                    A(f"v_lshl_add_u32 v{vT}, v{vLW}, 13, v{vT}")
                    A.label("AT_NY0")
                    srd(A, 4, SP['out'], 2048*1024*2)
                if 21 <= t < 25:
                    r = t - 21
                    A("s_sub_u32 s26, s3, 4")
                    A("s_cmp_lt_u32 s26, 8")
                    A(f"s_cbranch_scc0 AT_NY{r+1}")
                    if r == 2: A("s_add_u32 s36, s36, 4096")
                    A(f"buffer_store_dword v{vY[r]}, v{vT}, s[4:7], s36 offen" + (" offset:2048" if r % 2 else ""))
                    A.label(f"AT_NY{r+1}")
                if t == 14:
                    A(f"v_add_u32 v{vKA}, 65536, v{vKA}")
                if t + 2 < NT: rdK(t + 2)
            elif tok == 'RV':
                if t == 15:
                    A(f"v_add_u32 v{vVA}, 65536, v{vVA}")
                if t + 1 < NT: rdV(t + 1)
            else: raise ValueError(tok)
    A("s_nop 1")
    pv(NT - 1, 1)
    A("s_nop 15")
    stamp(A, 5)
    A(f"v_mov_b32 v{vT}, v{vO+8}")
    A("s_nop 1")
    A(f"v_permlane32_swap_b32 v{vT}, v{vO+8}")
    A("s_nop 1")
    A(f"v_mov_b32 v{vO+8}, v{vT}")
    A("s_mov_b32 s28, 0x1f800000")
    A("s_mov_b32 s29, 0x5f800000")
    A(f"v_cmp_le_f32 vcc, s28, v{vO+8}")
    A(f"v_cmp_ge_f32 s[30:31], s29, v{vO+8}")
    A("s_nop 1")
    A("s_and_b64 vcc, vcc, s[30:31]")
    A("s_cmp_eq_u64 vcc, -1")
    A("s_cbranch_scc0 AT_FALLBACK")
    A.label("AT_COMBINE")
    A("s_lshl_b32 s17, s15, 11")
    A(f"s_add_u32 s17, s17, {L_SCR}")
    A(f"v_add_u32 v{vT}, s17, v{vL16}")
    A("v_lshlrev_b32 v12, 3, v0")
    A("s_lshl_b32 s17, s15, 9")
    A(f"s_add_u32 s17, s17, {L_KREV}")
    A(f"v_add_u32 v12, s17, v12")
    A("s_cmp_eq_u32 s16, 0")
    A("s_cbranch_scc1 AT_LOW")
    A(f"ds_write_b128 v{vT}, {v(vO,4)}")
    A(f"ds_write_b128 v{vT}, {v(vO+4,4)} offset:1024")
    A(f"v_mov_b32 v{vO+9}, v{vM}")
    A(f"ds_write_b64 v12, {v(vO+8,2)}")
    A("s_waitcnt lgkmcnt(0)")
    A("s_barrier")
    A("s_branch AT_DONE")
    A.label("AT_LOW")
    A("s_barrier")
    B = vS
    A(f"ds_read_b128 {v(B,4)}, v{vT}")
    A(f"ds_read_b128 {v(B+4,4)}, v{vT} offset:1024")
    A(f"ds_read_b64 {v(B+8,2)}, v12")
    A("s_waitcnt lgkmcnt(0)")
    t0, t1, t2 = 8, 9, 10
    A(f"v_max_f32 v{t0}, v{vM}, v{B+9}")
    A(f"v_sub_f32 v{t1}, v{vM}, v{t0}")
    A(f"v_sub_f32 v{t2}, v{B+9}, v{t0}")
    A(f"v_exp_f32 v{t1}, v{t1}")
    A(f"v_exp_f32 v{t2}, v{t2}")
    A("s_nop 0")
    for i in range(9):
        A(f"v_mul_f32 v{vO+i}, v{vO+i}, v{t1}")
    for i in range(9):
        A(f"v_fmac_f32 v{vO+i}, v{B+i}, v{t2}")
    A(f"v_rcp_f32 v{t0}, v{vO+8}")
    A("s_nop 0")
    for i in range(8):
        A(f"v_mul_f32 v{vO+i}, v{vO+i}, v{t0}")
    for k in range(4):
        A(f"v_cvt_pk_bf16_f32 v{vP+k}, v{vO+2*k}, v{vO+2*k+1}")
    A("s_nop 1")
    A(f"v_permlane32_swap_b32 v{vP}, v{vP+2}")
    A(f"v_permlane32_swap_b32 v{vP+1}, v{vP+3}")
    A(f"s_add_u32 s18, s18, {WS_O}")
    A("s_nop 1")
    A(f"buffer_store_dwordx4 {v(vP,4)}, v{vL16}, {WSRD}, s18 offen sc1")
    A("s_waitcnt vmcnt(0)")
    flag_store(A, 19, 12, 13)
    lsig(A, C_OWN2, 12)
    A.label("AT_DONE")
    stamp(A, 6)

def attention_fallback(A):
    A.label("AT_FALLBACK")
    A(f"v_mov_b32 v{vM}, 0xff800000")
    A(f"v_subrev_u32 v{vT}, 65536, v{vKA}")
    A("s_mov_b32 s17, 0")
    A.label("AT_FB1")
    A(f"ds_read_b128 {v(vKF,4)}, v{vT}")
    A(f"v_add_u32 v{vT}, 4096, v{vT}")
    A("s_waitcnt lgkmcnt(0)")
    A(f"v_mfma_f32_32x32x16_bf16 {v(vS,16)}, {v(vKF,4)}, {v(vQ,4)}, 0")
    A("s_nop 15")
    for k in range(8):
        A(f"v_max3_f32 v{vM}, v{vS+2*k}, v{vS+2*k+1}, v{vM}")
    A("s_add_u32 s17, s17, 1")
    A("s_cmp_lt_u32 s17, 32")
    A("s_cbranch_scc1 AT_FB1")
    A(f"v_mov_b32 v{vT}, v{vM}")
    A(f"v_mov_b32 v12, v{vM}")
    A("s_nop 1")
    A(f"v_permlane32_swap_b32 v{vT}, v12")
    A("s_nop 1")
    A(f"v_max_f32 v{vM}, v{vT}, v12")
    for i in range(16): A(f"v_mov_b32 v{vO+i}, 0")
    A(f"v_subrev_u32 v{vT}, 65536, v{vKA}")
    A(f"v_subrev_u32 v12, 65536, v{vVA}")
    A("s_mov_b32 s17, 0")
    A.label("AT_FB2")
    A(f"ds_read_b128 {v(vKF,4)}, v{vT}")
    A("s_mov_b64 exec, s[20:21]")
    A(f"ds_read_b128 {v(vVF,4)}, v12")
    A(f"ds_read_b128 {v(vVF+4,4)}, v12 offset:512")
    A("s_mov_b64 exec, -1")
    A(f"v_add_u32 v{vT}, 4096, v{vT}")
    A(f"v_add_u32 v12, 4096, v12")
    A("s_waitcnt lgkmcnt(0)")
    A(f"v_mfma_f32_32x32x16_bf16 {v(vS,16)}, {v(vKF,4)}, {v(vQ,4)}, 0")
    A("s_nop 15")
    for i in range(16): A(f"v_sub_f32 v{vS+i}, v{vS+i}, v{vM}")
    for i in range(16): A(f"v_exp_f32 v{vS+i}, v{vS+i}")
    A("s_nop 0")
    for k in range(8): A(f"v_cvt_pk_bf16_f32 v{vP+k}, v{vS+2*k}, v{vS+2*k+1}")
    A("s_nop 1")
    A(f"v_mfma_f32_32x32x16_bf16 {v(vO,16)}, {v(vVF,4)}, {v(vP,4)}, {v(vO,16)}")
    A(f"v_mfma_f32_32x32x16_bf16 {v(vO,16)}, {v(vVF+4,4)}, {v(vP+4,4)}, {v(vO,16)}")
    A("s_add_u32 s17, s17, 1")
    A("s_cmp_lt_u32 s17, 32")
    A("s_cbranch_scc1 AT_FB2")
    A("s_nop 15")
    A(f"v_mov_b32 v{vT}, v{vO+8}")
    A("s_nop 1")
    A(f"v_permlane32_swap_b32 v{vT}, v{vO+8}")
    A("s_nop 1")
    A(f"v_mov_b32 v{vO+8}, v{vT}")
    A("s_branch AT_COMBINE")

def tail(A):
    A("s_and_b32 s12, s2, 7"); A("s_lshl_b32 s12, s12, 3"); A("s_lshr_b32 s13, s2, 5"); A("s_add_u32 s12, s12, s13")
    A("s_lshr_b32 s13, s2, 3"); A("s_and_b32 s13, s13, 3")
    A("v_and_b32 v4, 15, v0")
    A("v_lshrrev_b32 v5, 4, v0")
    A("v_lshlrev_b32 v14, 9, v5")
    A("v_lshl_add_u32 v14, v4, 4, v14")
    A("s_lshl_b32 s17, s16, 14")
    A(f"s_add_u32 s17, s17, {L_OT}")
    A(f"v_add_u32 v14, s17, v14")
    A("s_cmp_eq_u32 s16, 0")
    A("s_cbranch_scc1 TL_WAIT")
    A(f"v_lshlrev_b32 v10, {FS}, v0")
    A(f"s_lshl_b32 s17, s12, {5+FS}")
    A(f"s_add_u32 s17, s17, {WS_F2}")
    A("s_cmp_eq_u32 s3, 8")
    A("s_cbranch_scc0 TL_NOPOLL")
    lwait(A, C_OWN2, 8, 12, sleep=1)
    poll(A, "TL_P2", 10, 17, "-1", 12, sleep=1)
    lsig(A, C_F2, 12)
    A.label("TL_NOPOLL")
    lwait(A, C_F2, 1, 12, sleep=1)
    stamp(A, 43)
    A("s_lshl_b32 s17, s15, 18")
    A("s_lshl_b32 s18, s12, 10")
    A("s_add_u32 s17, s17, s18")
    A(f"s_add_u32 s17, s17, {WS_O}")
    for i in range(4):
        A(f"buffer_load_dwordx4 {v(16+4*i,4)}, v{vL16}, {WSRD}, s17 offen sc1")
        if i < 3: A("s_add_u32 s17, s17, 65536")
    A("s_lshl_b32 s18, s15, 12")
    A(f"s_add_u32 s18, s18, {L_OT}")
    A(f"v_add_u32 v13, s18, v{vL16}")
    for i in range(4):
        A(f"s_waitcnt vmcnt({3-i})")
        A(f"ds_write_b128 v13, {v(16+4*i,4)} offset:{i*1024}")
    A.label("TL_WAIT")
    A("s_waitcnt vmcnt(0) lgkmcnt(0)")
    stamp(A, 44)
    A("s_barrier")
    stamp(A, 45)
    q = DSQ(A)
    FO = 16
    def rd(s_):
        b = s_ % 3
        for th in range(2):
            A(f"ds_read_b128 {v(FO+12*th+4*b,4)}, v14 offset:{s_*2048 + th*256}"); q.issue(("o", s_, th))
    rd(0); rd(1)
    for s_ in range(8):
        if s_ + 2 < 8: rd(s_ + 2)
        b = s_ % 3
        for th in range(2):
            q.wait(("o", s_, th))
            cc = "0" if s_ == 0 else v(40+4*th, 4)
            A(f"v_mfma_f32_16x16x32_bf16 {v(40+4*th,4)}, {v(vLD+4*s_,4)}, {v(FO+12*th+4*b,4)}, {cc}")
    A("s_lshl_b32 s17, s15, 11")
    A(f"s_add_u32 s17, s17, {L_PC}")
    A(f"v_add_u32 v13, s17, v{vL16}")
    A("v_lshlrev_b32 v15, 11, v4")
    A("v_lshl_add_u32 v15, v5, 3, v15")
    A("s_lshl_b32 s18, s12, 16")
    A("s_lshl_b32 s19, s13, 8")
    A("s_add_u32 s18, s18, s19")
    A("s_lshl_b32 s19, s15, 5")
    A("s_add_u32 s18, s18, s19")
    A("s_add_u32 s18, s18, 1024")
    A("s_nop 3")
    A("s_cmp_eq_u32 s16, 0")
    A("s_cbranch_scc1 TL_LO")
    A("ds_write_b128 v13, v[40:43]")
    A("ds_write_b128 v13, v[44:47] offset:1024")
    A("s_waitcnt lgkmcnt(0)")
    A("s_barrier")
    A("s_cmp_eq_u32 s2, 0")
    A("s_cbranch_scc0 TL_END")
    A("s_cmp_eq_u32 s3, 8")
    A("s_cbranch_scc0 TL_END")
    A(f"s_mov_b32 s17, {WS_EP}")
    flag_store(A, 17, 12, 13)
    A("s_branch TL_END")
    A.label("TL_LO")
    A("s_barrier")
    A("ds_read_b128 v[16:19], v13")
    A("ds_read_b128 v[20:23], v13 offset:1024")
    srd(A, 4, SP['out'], 2048*1024*2)
    A("s_waitcnt lgkmcnt(0)")
    for i in range(8):
        A(f"v_add_f32 v{40+i}, v{40+i}, v{16+i}")
    for th in range(2):
        A(f"v_cvt_pk_bf16_f32 v{48+2*th}, v{40+4*th}, v{41+4*th}")
        A(f"v_cvt_pk_bf16_f32 v{49+2*th}, v{42+4*th}, v{43+4*th}")
    A(f"buffer_store_dwordx2 v[48:49], v15, s[4:7], s18 offen")
    A("s_add_u32 s18, s18, 32768")
    A(f"buffer_store_dwordx2 v[50:51], v15, s[4:7], s18 offen")
    A.label("TL_END")

def gen():
    A = Asm()
    kernel_begin(A, NAME)
    A.label("K_START")
    if not os.environ.get("NOPF"):
        A("s_getpc_b64 s[4:5]")
        A.label("PF_PC")
        A("v_lshlrev_b32 v2, 7, v0")
        A("v_cmp_gt_u32 vcc, GTAB_END-PF_PC-128, v2")
        A("s_and_saveexec_b64 s[6:7], vcc")
        A("s_cbranch_execz PF_DONE")
        A(f"global_load_dword v{vE}, v2, s[4:5]")
        A.label("PF_DONE")
        A("s_mov_b64 exec, s[6:7]")
    if DBG: A("v_mov_b32 v125, 0")
    if PROF:
        A("v_mov_b32 v125, 0")
        A("s_memrealtime s[38:39]")
    stamp(A, 0)
    A("s_cmp_ge_u32 s2, 256")
    A("s_cbranch_scc1 K_END")
    A("s_load_dwordx16 s[64:79], s[0:1], 0")
    A("s_load_dwordx8 s[80:87], s[0:1], 64")
    A("s_load_dwordx2 s[88:89], s[0:1], 96")
    A("v_lshrrev_b32 v8, 6, v0")
    A("v_and_b32 v0, 63, v0")
    A("v_readfirstlane_b32 s3, v8")
    A(f"v_lshlrev_b32 v{vL16}, 4, v0")
    p1_ids(A)
    A("s_cmp_eq_u32 s3, 12")
    A("s_cbranch_scc0 E_NZ")
    A("v_lshlrev_b32 v20, 2, v0")
    A(f"v_add_u32 v20, {L_CNT}, v20")
    A("v_mov_b32 v24, 0")
    A("ds_write_b32 v20, v24")
    A.label("E_NZ")
    A("s_cmp_ge_u32 s3, 12")
    A("s_cbranch_scc0 E_NG")
    kgen_pre(A)
    A.label("E_NG")
    ka_wait(A)
    A("s_barrier")
    A("s_cmp_lt_u32 s3, 4")
    A("s_cbranch_scc1 R_COMPUTE")
    A("s_cmp_ge_u32 s3, 12")
    A("s_cbranch_scc1 R_KGEN")
    p1_loader(A)
    A("s_branch R_JOIN")
    A.label("R_KGEN")
    kgen(A)
    A("s_branch R_LD")
    A.label("R_COMPUTE")
    p1_compute(A)
    A.label("R_LD")
    ld_group(A)
    A.label("R_JOIN")
    attention(A)
    tail(A)
    A.label("K_FIN")
    stamp(A, 50)
    A("s_waitcnt vmcnt(0)")
    stamp(A, 51)
    write_stamps(A)
    if DBG:
        A("s_cmp_eq_u32 s2, 8"); A("s_cbranch_scc0 K_END")
        A("s_cmp_eq_u32 s3, 0"); A("s_cbranch_scc0 K_END")
        A("s_memtime s[48:49]"); A("s_memrealtime s[50:51]"); A("s_waitcnt lgkmcnt(0)")
        A("v_readlane_b32 s52, v125, 0"); A("v_readlane_b32 s53, v125, 1")
        A("s_nop 3")
        A("v_writelane_b32 v125, s48, 0"); A("v_writelane_b32 v125, s50, 1")
        A("v_and_b32 v16, 1, v0")
        A("v_cmp_eq_u32 vcc, 0, v16")
        A("v_mov_b32 v17, s53"); A("v_mov_b32 v18, s52")
        A("s_nop 1")
        A("v_cndmask_b32 v17, v17, v18, vcc")
        A("v_sub_u32 v17, v125, v17")
        srd(A, 4, SP['dbg'], 256)
        A("v_lshlrev_b32 v16, 2, v0")
        A("s_mov_b64 exec, 0xffff")
        A("buffer_store_dword v17, v16, s[4:7], 0 offen")
        A("s_waitcnt vmcnt(0)")
    A.label("K_END")
    A("s_endpgm")
    attention_fallback(A)
    A(".p2align 6")
    A(".type GTAB,@object")
    A.label("GTAB")
    t = gather_table()
    for i in range(0, 2048, 16):
        A(".long " + ", ".join(str(int(x)) for x in t[i:i+16]))
    A(".size GTAB, 8192")
    A.label("GTAB_END")
    hdr_src = open("concat_heads__ssm_conv_s4d__mha_block__prompt.s.ref").read().split("\n")
    hdr = [l for l in hdr_src if l.startswith(";") and "@launch" not in l and "Override launch" not in l and "grid=ceil" not in l]
    out = "\n".join(hdr) + "\n; @launch grid=(256,1,1) block=(1024,1,1) lds=163840\n"
    out += '.amdgcn_target "amdgcn-amd-amdhsa--gfx950"\n'
    out += A.text() + kernel_desc(NAME, 128, 100)
    return out

if __name__ == "__main__":
    open(sys.argv[1] if len(sys.argv) > 1 else "fused.s", "w").write(gen())
```

```python
import os, struct, sys
from asmlib import *
from ssm_common import gather_table

NAME = "concat_heads__ssm_conv_s4d__mha_block__prompt_kernel"
PROF = bool(os.environ.get("PROF"))
DBG = bool(os.environ.get("DBG"))
DBGMAP = {0: 0, 10: 1, 1: 2, 2: 3, 4: 4, 5: 5, 6: 6, 45: 7}

def f32bits(x): return struct.unpack("<I", struct.pack("<f", x))[0]
LOG2E = 1.4426950408889634
INV2PI = 0.15915494309189535
C_SCALE = 0.25 * LOG2E

WS_Q = 0x000000; WS_K = 0x200000; WS_V = 0x400000; WS_O = 0x600000
WS_UT = 0x800000
WS_WOF = 0xA00000
FS = 8
WS_F1 = 0xA80000
WS_F2 = 0xAC0000
WS_F3 = 0xB40000
WS_FU = 0xB50000
WS_EP = 0xB90000
WS_TOTAL = 0xBA0000
WS_PROF = 0x1000000
SP = dict(u=64, lar=66, aim=68, cre=70, cim=72, ldt=74, dsk=76, x=78, wqkv=80, wo=82, out=84, dbg=86, ws=88)
sWS = 44
WSRD = f"s[{sWS}:{sWS+3}]"
sT = 90
vL16 = 1
vE = 127

SLOT = 28672; NSLOT = 3; AHEAD = 2
L_TA = 86016; L_TBO = 11088; L_TCH = 27984
L_T = 143360
L_CNT = 147968
C_G = L_CNT; C_CV = L_CNT + 4; C_WO = L_CNT + 8; C_KR = L_CNT + 12
def C_RDY(c): return L_CNT + 16 + 4*c
def C_DONE(c): return L_CNT + 48 + 4*c
C_FU = L_CNT + 80; C_F1 = L_CNT + 84; C_F2 = L_CNT + 88; C_ISS = L_CNT + 92; C_T = L_CNT + 96; C_GU = L_CNT + 100; C_GT = L_CNT + 104; C_OWN = L_CNT + 108; C_OWN2 = L_CNT + 112; C_PAR = L_CNT + 116; C_GT2 = L_CNT + 120
L_PAR = 57344
L_KREV = 148480; KREV_SZ = 7680
L_UTL = 57344 + 4096
L_WOT = 86016
L_UC = 57344; UC_RHO = 4160; UC_CH = 16640
L_PART = 90624
L_QS = 49152
L_SCR = 131072
L_OT = 0
L_PC = 32768

class DSQ:
    def __init__(self, A): self.A = A; self.q = []
    def issue(self, tag): self.q.append(tag)
    def wait(self, tag):
        if tag not in self.q: return
        i = len(self.q) - 1 - self.q[::-1].index(tag)
        n = len(self.q) - 1 - i
        assert n <= 15, n
        self.A(f"s_waitcnt lgkmcnt({n})")
        self.q = self.q[i+1:]
    def room(self):
        if len(self.q) >= 15: self.wait(self.q[0])
    def drain(self):
        self.A("s_waitcnt lgkmcnt(0)"); self.q = []

def stamp(A, k):
    if DBG and k in DBGMAP:
        j = DBGMAP[k]
        A("s_memtime s[48:49]")
        A("s_memrealtime s[50:51]")
        A("s_waitcnt lgkmcnt(0)")
        A(f"v_writelane_b32 v125, s48, {2*j}")
        A(f"v_writelane_b32 v125, s50, {2*j+1}")
    if PROF:
        A("s_memtime s[48:49]")
        A("s_waitcnt lgkmcnt(0)")
        A(f"v_writelane_b32 v125, s48, {k}")

def write_stamps(A):
    if not PROF: return
    A("s_memrealtime s[40:41]")
    A("s_waitcnt lgkmcnt(0)")
    A(f"v_writelane_b32 v125, s40, 62")
    A(f"v_writelane_b32 v125, s91, 63")
    A(f"s_add_u32 s92, s{SP['ws']}, {WS_PROF}")
    A(f"s_addc_u32 s93, s{SP['ws']+1}, 0")
    A("s_mov_b32 s94, 0x200000")
    A("s_mov_b32 s95, 0x00020000")
    A("s_lshl_b32 s42, s2, 4"); A("s_add_u32 s42, s42, s3"); A("s_lshl_b32 s42, s42, 8")
    A("v_lshlrev_b32 v16, 2, v0")
    A("buffer_store_dword v125, v16, s[92:95], s42 offen")
    A("s_waitcnt vmcnt(0)")

def poll(A, label, vaddr, soff, mask_lo, vtmp, sleep=4):
    A(f"s_mov_b32 s30, {mask_lo}")
    A("s_mov_b32 s31, 0")
    A("s_mov_b64 exec, s[30:31]")
    A("s_mov_b32 s29, 0")
    A.label(label)
    A(f"buffer_load_dword v{vtmp}, v{vaddr}, {WSRD}, s{soff} offen sc1")
    A("s_add_u32 s29, s29, 1")
    A("s_waitcnt vmcnt(0)")
    A(f"v_cmp_ne_u32 vcc, s{sT}, v{vtmp}")
    A("s_cmp_gt_u32 s29, 0x10000")
    A(f"s_cbranch_scc1 {label}_x")
    A(f"s_cbranch_vccz {label}_x")
    A(f"s_sleep {sleep}")
    A(f"s_branch {label}")
    A.label(label + "_x")
    A("s_mov_b64 exec, -1")

def check_or_poll(A, label, vaddr, soff, mask_lo, vflag):
    A(f"s_mov_b32 s30, {mask_lo}")
    A("s_mov_b32 s31, 0")
    A(f"v_cmp_ne_u32 vcc, s{sT}, v{vflag}")
    A("s_nop 1")
    A("s_and_b64 vcc, vcc, s[30:31]")
    A(f"s_cbranch_vccz {label}_ok")
    poll(A, label, vaddr, soff, mask_lo, vflag)
    A.label(label + "_ok")

def flag_store(A, soff, vtmp, vzero):
    A(f"v_mov_b32 v{vtmp}, s{sT}")
    A(f"v_mov_b32 v{vzero}, 0")
    A("s_mov_b64 exec, 1")
    A(f"buffer_store_dword v{vtmp}, v{vzero}, {WSRD}, s{soff} offen sc1")
    A("s_mov_b64 exec, -1")

def get_tag(A, vt=126, vd=None):
    L = A.newlabel("GT")
    A(f"v_mov_b32 v{vt}, {C_T}")
    A("s_mov_b32 s43, 0")
    A.label(L)
    A(f"ds_read_b32 v{vE}, v{vt}")
    A("s_add_u32 s43, s43, 1")
    A("s_waitcnt lgkmcnt(0)")
    A(f"v_readfirstlane_b32 s{sT}, v{vE}")
    A("s_cmp_gt_u32 s43, 0x80000")
    A(f"s_cbranch_scc1 {L}_x")
    A(f"s_cmp_eq_u32 s{sT}, 0")
    A(f"s_cbranch_scc1 {L}")
    A.label(L + "_x")

def make_tag(A):
    A(f"v_readfirstlane_b32 s{sT}, v{vE}")
    A("s_nop 3")
    A(f"s_mul_i32 s{sT}, s{sT}, 0x9e3779b1")
    A(f"s_add_u32 s{sT}, s{sT}, 0x7f4a7c15")
    A(f"s_or_b32 s{sT}, s{sT}, 1")
    A(f"v_mov_b32 v{vE}, s{sT}")
    A(f"v_mov_b32 v126, {C_T}")
    A(f"ds_write_b32 v126, v{vE}")

def gsync(A, cnt_addr, target, vt):
    A("s_waitcnt lgkmcnt(0)")
    lsig(A, cnt_addr, vt)
    lwait(A, cnt_addr, target, vt, sleep=1)

def lsig(A, addr, vt):
    A(f"v_mov_b32 v{vt}, {addr}")
    A(f"v_mov_b32 v{vt+1}, 1")
    A("s_mov_b64 exec, 1")
    A(f"ds_add_u32 v{vt}, v{vt+1}")
    A("s_mov_b64 exec, -1")

def lwait(A, addr, target, vt, sleep=0):
    L = A.newlabel("LW")
    A(f"v_mov_b32 v{vt}, {addr}")
    A("s_mov_b32 s43, 0")
    A.label(L)
    A(f"ds_read_b32 v{vt+1}, v{vt}")
    A("s_add_u32 s43, s43, 1")
    A("s_waitcnt lgkmcnt(0)")
    A(f"v_readfirstlane_b32 s42, v{vt+1}")
    A("s_cmp_gt_u32 s43, 0x80000")
    A(f"s_cbranch_scc1 {L}_x")
    A(f"s_cmp_ge_u32 s42, {target}")
    if sleep:
        A(f"s_cbranch_scc1 {L}_x")
        A(f"s_sleep {sleep}")
        A(f"s_branch {L}")
    else:
        A(f"s_cbranch_scc0 {L}")
    A.label(L + "_x")

def merge(*chains):
    out = []; idx = [0] * len(chains)
    while any(idx[i] < len(chains[i]) for i in range(len(chains))):
        for i, ch in enumerate(chains):
            if idx[i] < len(ch):
                out.append(ch[idx[i]]); idx[i] += 1
    return out

class Rec:
    def __init__(self): self.L = []
    def __call__(self, s): self.L.append(s)

def chan_pair(A, dst, tmp):
    A(f"s_and_b32 s{dst}, s2, 7"); A(f"s_lshl_b32 s{dst}, s{dst}, 5"); A(f"s_lshr_b32 s{tmp}, s2, 3")
    A(f"s_add_u32 s{dst}, s{dst}, s{tmp}"); A(f"s_lshl_b32 s{dst}, s{dst}, 1")

def ka_wait(A):
    A("s_waitcnt lgkmcnt(0)")
    if PROF: A("s_mov_b32 s91, s38")
    srd(A, sWS, SP['ws'], WS_TOTAL)

def p1_ids(A):
    A("s_and_b32 s17, s2, 7")
    A("s_lshr_b32 s18, s2, 3")
    A("s_and_b32 s12, s17, 3")
    A("s_lshl_b32 s12, s12, 2")
    A("s_and_b32 s19, s18, 3")
    A("s_add_u32 s12, s12, s19")
    A("s_lshr_b32 s13, s17, 2")
    A("s_lshl_b32 s13, s13, 3")
    A("s_lshr_b32 s19, s18, 2")
    A("s_add_u32 s13, s13, s19")

def conv_part(A, p, vUA, vKB0, vKB1, ACC0, ACC1):
    ks = list({0: range(0, 24), 1: range(24, 48), 2: range(48, 80), 3: range(80, 128)}[p])
    q = DSQ(A)
    NB = 4
    FA, FB0, FB1 = 8, 24, 40
    def rd(i):
        k = ks[i]; b = i % NB
        A(f"ds_read_b64 {v(FA+4*b,2)}, v{vUA} offset:{32*k}"); q.issue(("a0", i))
        A(f"ds_read_b64 {v(FA+4*b+2,2)}, v{vUA} offset:{32*k+8}"); q.issue(("a1", i))
        off = (k//2)*80 + (k%2)*32
        A(f"ds_read_b128 {v(FB1+4*b,4)}, v{vKB1} offset:{off}"); q.issue(("b1", i))
        if k < 64:
            A(f"ds_read_b128 {v(FB0+4*b,4)}, v{vKB0} offset:{off}"); q.issue(("b0", i))
    n = len(ks)
    for i in range(min(NB-1, n)): rd(i)
    first0 = first1 = True
    for i in range(n):
        if i + NB - 1 < n: rd(i + NB - 1)
        k = ks[i]; b = i % NB
        q.wait(("b1", i))
        A(f"v_mfma_f32_32x32x16_bf16 {v(ACC1,16)}, {v(FA+4*b,4)}, {v(FB1+4*b,4)}, {'0' if first1 else v(ACC1,16)}"); first1 = False
        if k < 64:
            q.wait(("b0", i))
            A(f"v_mfma_f32_32x32x16_bf16 {v(ACC0,16)}, {v(FA+4*b,4)}, {v(FB0+4*b,4)}, {'0' if first0 else v(ACC0,16)}"); first0 = False

vY = [90, 91, 126, 127]

def p1_loader(A):
    vDX, vDX1, vDW = 2, 3, 5
    A("s_sub_u32 s15, s3, 4")
    A("s_setprio 3")
    A("v_lshrrev_b32 v9, 3, v0")
    A("v_lshrrev_b32 v10, 1, v9")
    A("v_xor_b32 v10, v10, v0")
    A("v_and_b32 v10, 7, v10")
    A("v_lshlrev_b32 v10, 4, v10")
    A(f"v_lshl_add_u32 v{vDX}, v9, 10, v10")
    A(f"v_xor_b32 v{vDX1}, 64, v{vDX}")
    A("s_lshl_b32 s20, s12, 17")
    A("s_lshl_b32 s17, s15, 14")
    A("s_add_u32 s20, s20, s17")
    A("s_lshl_b32 s21, s13, 6")
    A("s_lshl_b32 s22, s15, 11")
    A("s_lshl_b32 s23, s15, 10")
    A("s_add_u32 s23, s23, 16384")
    A("s_lshr_b32 s25, s2, 5")
    A("s_lshr_b32 s17, s2, 3")
    A("s_and_b32 s17, s17, 3")
    A("s_lshl_b32 s17, s17, 1")
    A("s_add_u32 s25, s25, s17")
    A("s_waitcnt lgkmcnt(0)")
    srd(A, 4, SP['x'], 2048*512*2)
    srd(A, 8, SP['wqkv'], 512*1536*2)
    def issue_x(c):
        slot = (c % NSLOT) * SLOT
        A(f"s_add_u32 s26, s25, {c}")
        A("s_and_b32 s26, s26, 7")
        A(f"s_lshl_b32 s24, s26, 7")
        A(f"s_add_u32 s24, s24, s20")
        A(f"s_add_u32 m0, s22, {slot}")
        A(f"s_mul_i32 s27, s26, {64*3072}")
        A(f"buffer_load_dwordx4 v{vDX}, s[4:7], s24 offen lds")
        A(f"s_add_u32 m0, s22, {slot + 1024}")
        A(f"s_add_u32 s24, s24, 8192")
        A(f"buffer_load_dwordx4 v{vDX1}, s[4:7], s24 offen lds")
    def issue_w(c, nw):
        slot = (c % NSLOT) * SLOT
        A(f"s_add_u32 m0, s23, {slot}")
        A(f"s_add_u32 s27, s27, s21")
        A(f"buffer_load_dwordx4 v{vDW}, s[8:11], s27 offen lds")
        if nw == 2:
            A(f"s_add_u32 m0, s23, {slot + 8192}")
            A("s_nop 0")
            A(f"buffer_load_dwordx4 v{vDW+1}, s[8:11], s27 offen lds")
    def wsetup():
        A("s_lshl_b32 s17, s15, 6")
        A("s_movk_i32 s18, 3072")
        A("s_mov_b32 s19, 43691")
        for i in range(2):
            A(f"v_add_u32 v9, s17, v0")
            if i: A(f"v_add_u32 v9, 512, v9")
            A("v_mul_u32_u24 v10, s19, v9")
            A("v_lshrrev_b32 v10, 19, v10")
            A("v_mul_u32_u24 v11, 12, v10")
            A("v_sub_u32 v11, v9, v11")
            A("v_lshrrev_b32 v12, 2, v10")
            A("v_and_b32 v12, 2, v12")
            A("v_xor_b32 v11, v11, v12")
            A("v_lshrrev_b32 v12, 2, v11")
            A("v_and_b32 v11, 3, v11")
            A("v_lshlrev_b32 v11, 4, v11")
            A("v_lshl_add_u32 v11, v12, 10, v11")
            A(f"v_mad_u32_u24 v{vDW+i}, v10, s18, v11")
    def gtab():
        A("s_getpc_b64 s[32:33]")
        L = A.newlabel("CPC"); A.label(L)
        A(f"s_add_u32 s32, s32, GTAB-{L}")
        A("s_addc_u32 s33, s33, 0")
        A("s_and_b32 s17, s15, 3"); A("s_lshl_b32 s17, s17, 11")
        A("v_lshlrev_b32 v14, 5, v0")
        A("v_add_u32 v14, s17, v14")
        A("global_load_dwordx4 v[96:99], v14, s[32:33]")
        A("global_load_dwordx4 v[100:103], v14, s[32:33] offset:16")
    def ut_loads():
        A("buffer_load_dwordx4 v[108:111], v117, s[32:35], 0 offen sc1")
        A("buffer_load_dwordx4 v[112:115], v116, s[32:35], 0 offen sc1")
        A("buffer_load_dwordx4 v[120:123], v119, s[32:35], 0 offen sc1")
    def ut_prep():
        chan_pair(A, 14, 17)
        A("s_lshr_b32 s16, s15, 2")
        A("s_add_u32 s17, s14, s16")
        A("s_lshl_b32 s17, s17, 12")
        A(f"s_add_u32 s17, s17, {WS_UT}")
        ka_wait(A)
        A(f"s_add_u32 s32, s{SP['ws']}, s17"); A(f"s_addc_u32 s33, s{SP['ws']+1}, 0")
        A("s_mov_b32 s34, 4096"); A("s_mov_b32 s35, 0x00020000")
        A("s_and_b32 s19, s15, 3"); A("s_lshl_b32 s19, s19, 10")
        A(f"v_add_u32 v116, s19, v{vL16}")
        A("v_subrev_u32 v117, 16, v116")
        A("v_cmp_eq_u32 vcc, 0, v116")
        A("v_mov_b32 v118, 4096")
        A("s_nop 0")
        A("v_cndmask_b32 v117, v117, v118, vcc")
        A("v_mov_b32 v119, 4096")
        A(f"v_mov_b32 v120, {255*16}")
        A("v_cmp_eq_u32 vcc, 3, v0")
        A("s_nop 1")
        A("v_cndmask_b32 v119, v119, v120, vcc")
    def loop(nw):
        per = 2 + nw
        issue_w(0, nw)
        issue_x(1); issue_w(1, nw)
        for c in range(8):
            last = min(7, c + 1)
            if c != 7: A(f"s_waitcnt vmcnt({per * (last - c)})")
            A("s_barrier")
            if c + AHEAD < 8:
                issue_x(c + AHEAD); issue_w(c + AHEAD, nw)
            if c == 5: ut_prep()
            if c == 6:
                L = A.newlabel("CVC")
                A(f"v_mov_b32 v30, {C_FU}")
                A("ds_read_b32 v31, v30")
                A("s_waitcnt lgkmcnt(0)")
                A("v_readfirstlane_b32 s40, v31")
                A("s_nop 0")
                A("s_cmp_eq_u32 s40, 0")
                A(f"s_cbranch_scc1 {L}")
                ut_loads()
                A("s_waitcnt vmcnt(3)")
                A(f"s_branch {L}b")
                A.label(L)
                A("s_waitcnt vmcnt(0)")
                A.label(L + "b")
    issue_x(0)
    wsetup()
    A("s_cmp_ge_u32 s15, 4")
    A("s_cbranch_scc1 P1_LOADER1")
    loop(2)
    A("s_branch P1_LOADER_END")
    A.label("P1_LOADER1")
    loop(1)
    A.label("P1_LOADER_END")
    A("s_setprio 1")
    stamp(A, 28)
    if os.environ.get("X_P1ONLY"): A("s_branch K_FIN")
    A("s_cmp_lg_u32 s40, 0")
    A("s_cbranch_scc1 CV_HAVE")
    lwait(A, C_FU, 1, 72, sleep=1)
    ut_loads()
    A.label("CV_HAVE")
    get_tag(A, vt=30)
    def copies(D, dest):
        T0, T1, T2 = 44, 48, 52
        for j in range(4): A(f"v_alignbit_b32 v{T0+j}, v{D+j+1}, v{D+j}, 16")
        for j in range(4): A(f"v_mov_b32 v{T1+j}, v{D+1+j}")
        for j in range(4): A(f"v_alignbit_b32 v{T2+j}, v{D+j+2}, v{D+j+1}, 16")
        A(f"ds_write_b128 v{dest}, {v(T0,4)}")
        A(f"ds_write_b128 v{dest}, {v(T1,4)} offset:{UC_RHO}")
        A(f"ds_write_b128 v{dest}, {v(T2,4)} offset:{2*UC_RHO}")
        A(f"ds_write_b128 v{dest}, {v(D+2,4)} offset:{3*UC_RHO}")
    A("s_lshr_b32 s16, s15, 2")
    A(f"s_mul_i32 s21, s16, {UC_CH}")
    A(f"s_add_u32 s21, s21, {L_UC + 48}")
    A("v_add_u32 v19, s21, v116")
    A(f"s_mul_i32 s23, s16, {KREV_SZ}")
    A(f"s_add_u32 s23, s23, {L_KREV}")
    A("v_and_b32 v9, 31, v0")
    A("v_lshrrev_b32 v10, 5, v0")
    A("v_and_b32 v11, 3, v9")
    A(f"v_mul_u32_u24 v11, {UC_RHO}, v11")
    A("v_lshrrev_b32 v12, 2, v9")
    A("v_lshl_add_u32 v11, v12, 3, v11")
    A("v_lshl_add_u32 v11, v10, 4, v11")
    A(f"s_mul_i32 s24, s16, {UC_CH}")
    A(f"s_add_u32 s24, s24, {L_UC}")
    A("v_add_u32 v4, s24, v11")
    A("v_sub_u32 v11, 63, v9")
    A("v_mul_u32_u24 v11, 80, v11")
    A("v_lshl_add_u32 v11, v10, 4, v11")
    A("v_add_u32 v5, s23, v11")
    A("v_subrev_u32 v6, 2560, v5")
    A("s_and_b32 s24, s15, 3")
    A(f"s_mul_i32 s25, s16, 28672")
    A("s_lshl_b32 s26, s24, 12")
    A("s_add_u32 s25, s25, s26")
    A(f"s_add_u32 s25, s25, {L_PART}")
    A(f"v_add_u32 v7, s25, v{vL16}")
    A("s_waitcnt vmcnt(0)")
    copies(108, 19)
    A("s_cmp_eq_u32 s19, 0")
    A("s_cbranch_scc0 CV_NOX2")
    for j in range(4): A(f"v_mov_b32 v{56+j}, v{120+j}")
    for j in range(4): A(f"v_mov_b32 v{60+j}, 0")
    A(f"v_mov_b32 v30, {259*16}")
    A("v_cmp_eq_u32 vcc, 3, v0")
    A("s_sub_u32 s21, s21, 48")
    A(f"v_cndmask_b32 v30, v{vL16}, v30, vcc")
    A("v_add_u32 v30, s21, v30")
    A("s_mov_b64 exec, 15")
    copies(56, 30)
    A("s_mov_b64 exec, -1")
    A.label("CV_NOX2")
    gsync(A, C_CV, 8, 8)
    stamp(A, 30)
    ACC0, ACC1 = 56, 72
    for p in range(4):
        if p < 3:
            A(f"s_cmp_eq_u32 s24, {p}")
            A(f"s_cbranch_scc0 CV_P{p+1}")
        conv_part(A, p, 4, 5, 6, ACC0, ACC1)
        A("s_nop 15")
        for qd in range(4):
            A(f"ds_write_b128 v7, {v(ACC1+4*qd,4)} offset:{qd*1024}")
        if p < 3:
            for qd in range(4):
                A(f"ds_write_b128 v7, {v(ACC0+4*qd,4)} offset:{16384 + qd*1024}")
            A("s_branch CV_PE")
            A.label(f"CV_P{p+1}")
    A.label("CV_PE")
    stamp(A, 31)
    gsync(A, C_CV, 16, 8)
    stamp(A, 32)
    A("s_lshl_b32 s26, s24, 10")
    A(f"s_add_u32 s26, s26, {L_PART}")
    A(f"v_add_u32 v4, s26, v{vL16}")
    A("s_cmp_eq_u32 s16, 0")
    A("s_cbranch_scc1 CV_F0")
    for c in range(2):
        for p in range(4):
            A(f"ds_read_b128 {v(16+16*c+4*p,4)}, v4 offset:{c*28672 + p*4096}")
    A("s_waitcnt lgkmcnt(0)")
    for c in range(2):
        for r in range(4):
            b_ = 16 + 16*c + r
            A(f"v_add_f32 v{b_}, v{b_}, v{b_+4}"); A(f"v_add_f32 v{b_+8}, v{b_+8}, v{b_+12}")
        for r in range(4):
            b_ = 16 + 16*c + r
            A(f"v_add_f32 v{b_}, v{b_}, v{b_+8}")
    A("s_branch CV_F1")
    A.label("CV_F0")
    for c in range(2):
        for p in range(3):
            A(f"ds_read_b128 {v(16+16*c+4*p,4)}, v4 offset:{c*28672 + 16384 + p*4096}")
    A("s_waitcnt lgkmcnt(0)")
    for c in range(2):
        for r in range(4):
            b_ = 16 + 16*c + r
            A(f"v_add_f32 v{b_}, v{b_}, v{b_+4}")
        for r in range(4):
            b_ = 16 + 16*c + r
            A(f"v_add_f32 v{b_}, v{b_}, v{b_+8}")
    A.label("CV_F1")
    for r in range(4):
        A(f"v_cvt_pk_bf16_f32 v{vY[r]}, v{16+r}, v{32+r}")
    A("s_lshl_b32 s36, s16, 21")
    A("s_lshl_b32 s25, s24, 14")
    A("s_add_u32 s36, s36, s25")
    A("s_lshl_b32 s25, s14, 1")
    A("s_add_u32 s36, s36, s25")
    A("s_setprio 0")
    stamp(A, 33)

def p1_compute(A):
    vFR, vACC, vXA, vWA = 8, 64, 112, 118
    A("v_and_b32 v4, 15, v0")
    A("v_lshrrev_b32 v5, 4, v0")
    A("v_lshrrev_b32 v6, 1, v4")
    A("v_xor_b32 v6, v6, v5")
    A("v_lshlrev_b32 v6, 4, v6")
    A("v_lshl_add_u32 v6, v4, 7, v6")
    A("s_lshr_b32 s17, s3, 1")
    A("s_lshl_b32 s17, s17, 13")
    A(f"v_add_u32 v{vXA}, s17, v6")
    A(f"v_xor_b32 v{vXA+1}, 64, v{vXA}")
    for st in (1, 2):
        A(f"v_add_u32 v{vXA+2*st}, {st*2*SLOT}, v{vXA}")
        A(f"v_add_u32 v{vXA+2*st+1}, {st*2*SLOT}, v{vXA+1}")
    A("v_lshrrev_b32 v6, 2, v4")
    A("v_lshl_add_u32 v6, v5, 3, v6")
    A("v_mul_u32_u24 v6, 192, v6")
    A("v_and_b32 v7, 3, v4")
    A("v_lshl_add_u32 v6, v7, 3, v6")
    A("s_and_b32 s17, s3, 1")
    A("v_xor_b32 v7, s17, v5")
    A("v_and_b32 v7, 1, v7")
    A(f"v_lshl_add_u32 v{vWA}, v7, 5, v6")
    A(f"v_add_u32 v{vWA+1}, {2*SLOT}, v{vWA}")
    A(f"v_add_u32 v{vWA+2}, {4*SLOT}, v{vWA}")
    A("s_and_b32 s18, s3, 1")
    A("s_lshl_b32 s19, s13, 1")
    A("s_add_u32 s18, s18, s19")
    A(f"s_lshl_b32 s16, s18, {5+FS}")
    A("s_lshl_b32 s18, s18, 16")
    A("s_lshr_b32 s19, s3, 1")
    A("s_lshl_b32 s24, s12, 1")
    A("s_add_u32 s24, s24, s19")
    A(f"s_lshl_b32 s25, s24, {FS}")
    A("s_add_u32 s16, s16, s25")
    A(f"s_add_u32 s16, s16, {WS_F1}")
    A("s_lshl_b32 s19, s24, 11")
    A("s_add_u32 s18, s18, s19")
    A(f"s_mov_b32 s17, 0x{f32bits(C_SCALE):08x}")
    A("s_setprio 3")
    q = DSQ(A)
    def fr(buf): return vFR + 28 * buf
    def rd_list(step):
        c, ks2 = step // 2, step % 2
        slot = c % NSLOT
        st, so = slot // 2, (slot % 2) * SLOT
        b = fr(step % 2)
        L = []
        for hf in range(2):
            L.append((f"ds_read_b64_tr_b16 {v(b+16+2*hf,2)}, v{vWA+st} offset:{so + 16384 + (32*ks2+4*hf)*192}", ("w", step, 0, hf)))
        for ti in range(4):
            L.append((f"ds_read_b128 {v(b+4*ti,4)}, v{vXA+2*st+ks2} offset:{so + ti*2048}", ("x", step, ti)))
        for gi in range(1, 3):
            for hf in range(2):
                L.append((f"ds_read_b64_tr_b16 {v(b+16+4*gi+2*hf,2)}, v{vWA+st} offset:{so + 16384 + (32*ks2+4*hf)*192 + 64*gi}", ("w", step, gi, hf)))
        return L
    def rd(step):
        for ins, tag in rd_list(step):
            A(ins); q.issue(tag)
    def mm(step, nxt=None):
        b = fr(step % 2)
        R = rd_list(nxt) if nxt is not None else []
        if os.environ.get("X_BURST"):
            for ins, tag in R:
                A(ins); q.issue(tag)
            R = []
        n = 0
        for gi in range(3):
            for ti in range(4):
                acc = vACC + (gi*4 + ti)*4
                X = v(b+4*ti, 4); W = v(b+16+4*gi, 4)
                cc = "0" if step == 0 else v(acc, 4)
                if gi == 0: q.wait(("x", step, ti))
                if ti == 0: q.wait(("w", step, gi, 1))
                if gi < 2: A(f"v_mfma_f32_16x16x32_bf16 {v(acc,4)}, {W}, {X}, {cc}")
                else:      A(f"v_mfma_f32_16x16x32_bf16 {v(acc,4)}, {X}, {W}, {cc}")
                if n < len(R):
                    A(R[n][0]); q.issue(R[n][1])
                n += 1
    kg_scalars(A, 3, 20, False)
    A(f"s_mul_i32 s21, s22, {L_TCH}")
    A("s_lshl_b32 s23, s24, 8")
    A("s_add_u32 s21, s21, s23")
    A(f"s_add_u32 s21, s21, {L_TA + L_TBO}")
    A("v_lshlrev_b32 v8, 2, v0")
    A("v_add_u32 v8, s21, v8")
    lwait(A, C_PAR, 4, 22, sleep=1)
    kg_read(A, 22, 24, 2, 21)
    A("s_cmp_eq_u32 s22, 0")
    A("s_cselect_b32 s21, 16, 0")
    A("s_lshl_b32 s26, s26, s21"); A("s_and_b32 s26, s26, 0xffff0000")
    kg_setup(A, 26, 21, False)
    kg_bside(A, 8)
    A("s_waitcnt lgkmcnt(0)")
    lsig(A, C_G, 2)
    stamp(A, 9)
    A("v_and_b32 v80, 15, v0")
    A("v_lshrrev_b32 v81, 4, v0")
    A("v_lshrrev_b32 v82, 2, v80")
    A("v_lshl_add_u32 v82, v81, 3, v82")
    A("v_lshlrev_b32 v84, 5, v82")
    A("v_lshlrev_b32 v82, 7, v82")
    A("v_and_b32 v83, 3, v80")
    A("v_lshl_add_u32 v82, v83, 3, v82")
    A("v_lshl_add_u32 v84, v83, 3, v84")
    A(f"v_add_u32 v84, {L_WOT}, v84")
    A("s_lshl_b32 s20, s3, 5")
    A(f"s_add_u32 s20, s20, {L_UTL}")
    A("v_add_u32 v82, s20, v82")
    A("v_lshlrev_b32 v83, 12, v80")
    A("v_lshl_add_u32 v83, v81, 4, v83")
    A("s_and_b32 s20, s2, 7"); A("s_lshl_b32 s20, s20, 2"); A("s_add_u32 s20, s20, s3")
    A(f"s_lshl_b32 s21, s20, {5+FS}")
    A("s_lshl_b32 s20, s20, 16")
    A("s_lshr_b32 s22, s2, 3")
    A("s_lshl_b32 s23, s22, 7")
    A("s_add_u32 s20, s20, s23")
    A(f"s_add_u32 s20, s20, {WS_UT}")
    A(f"s_lshl_b32 s23, s22, {FS}")
    A("s_add_u32 s21, s21, s23")
    A(f"s_add_u32 s21, s21, {WS_FU}")
    A("s_lshr_b32 s24, s2, 3"); A(f"s_lshl_b32 s22, s24, {3+FS}"); A("s_lshl_b32 s24, s24, 14")
    A("s_and_b32 s19, s2, 7"); A(f"s_lshl_b32 s23, s19, {FS}"); A("s_lshl_b32 s19, s19, 11")
    A("s_add_u32 s24, s24, s19")
    A(f"s_add_u32 s24, s24, {WS_WOF}")
    A("s_add_u32 s22, s22, s23")
    A(f"s_add_u32 s22, s22, {WS_F3}")
    lwait(A, C_GU, 4, 86, sleep=1)
    for p in range(2):
        for hf in range(2):
            A(f"ds_read_b64_tr_b16 {v(64+4*p+2*hf,2)}, v82 offset:{(32*p+4*hf)*128}")
    for s_ in range(2):
        for hf in range(2):
            A(f"ds_read_b64_tr_b16 {v(72+4*s_+2*hf,2)}, v84 offset:{(32*s_+4*hf)*32}")
    A("s_waitcnt lgkmcnt(0)")
    stamp(A, 25)
    A(f"buffer_store_dwordx4 v[64:67], v83, {WSRD}, s20 offen sc1")
    A(f"buffer_store_dwordx4 v[68:71], v83, {WSRD}, s20 offen offset:64 sc1")
    A("s_cmp_eq_u32 s3, 0")
    A("s_cbranch_scc0 PC_NW")
    A(f"buffer_store_dwordx4 v[72:75], v{vL16}, {WSRD}, s24 offen sc1")
    A(f"buffer_store_dwordx4 v[76:79], v{vL16}, {WSRD}, s24 offen offset:1024 sc1")
    A.label("PC_NW")
    get_tag(A)
    stamp(A, 19)
    for c in range(8):
        A("s_barrier")
        if c in (0, 7): stamp(A, 10 if c == 0 else 17)
        if c == int(os.environ.get("CFL", 1)):
            A("s_waitcnt vmcnt(0)")
            flag_store(A, 21, 2, 3)
            A("s_cmp_eq_u32 s3, 0")
            A("s_cbranch_scc0 PC_NF")
            flag_store(A, 22, 2, 3)
            A.label("PC_NF")
        if c == 0: rd(0)
        else: mm(2*c - 1, 2*c)
        mm(2*c, 2*c + 1)
        q.drain()
    lsig(A, C_DONE(7), 4)
    mm(15)
    stamp(A, 1)
    T = vFR
    n = 0
    for gi, base in ((1, WS_K), (2, WS_V), (0, WS_Q)):
        if gi == 0:
            for ti in range(4):
                for r in range(4):
                    A(f"v_mul_f32 v{vACC+ti*4+r}, s17, v{vACC+ti*4+r}")
        for pair in range(2):
            a0 = vACC + (gi*4 + 2*pair)*4; a1 = a0 + 4
            t = T + 4 * n; n += 1
            A(f"v_cvt_pk_bf16_f32 v{t}, v{a0}, v{a0+1}")
            A(f"v_cvt_pk_bf16_f32 v{t+1}, v{a0+2}, v{a0+3}")
            A(f"v_cvt_pk_bf16_f32 v{t+2}, v{a1}, v{a1+1}")
            A(f"v_cvt_pk_bf16_f32 v{t+3}, v{a1+2}, v{a1+3}")
            A(f"s_add_u32 s24, s18, {base + pair*1024}")
            A("s_nop 0")
            op = "v_permlane32_swap_b32" if gi == 2 else "v_permlane16_swap_b32"
            A(f"{op} v{t}, v{t+2}")
            A(f"{op} v{t+1}, v{t+3}")
            A("s_nop 1")
            A(f"buffer_store_dwordx4 {v(t,4)}, v{vL16}, {WSRD}, s24 offen sc1")
    stamp(A, 18)
    A("s_waitcnt vmcnt(0)")
    get_tag(A)
    flag_store(A, 16, 2, 3)
    lsig(A, C_OWN, 2)
    A("s_setprio 0")
    stamp(A, 2)
    if os.environ.get("X_P1ONLY"): A("s_branch K_FIN")

def cmul(A, D, X, S, T):
    A(f"v_pk_mul_f32 {v(T,2)}, {v(X,2)}, {v(S,2)} op_sel:[0,0] op_sel_hi:[1,0]")
    A(f"v_pk_fma_f32 {v(D,2)}, {v(X,2)}, {v(S,2)}, {v(T,2)} op_sel:[1,1,0] op_sel_hi:[0,1,1] neg_lo:[0,1,0]")

def fl(p): return f"{float(p)!r}" if p in (1, 2, 4) else f"0x{f32bits(float(p)):08x}"
def anchor(A, D, p, vt2, vw, tmp, conj=False):
    A(f"v_mul_f32 v{tmp}, {fl(p)}, v{vt2}")
    A(f"v_mul_f32 v{tmp+1}, {fl(p)}, v{vw}")
    A(f"v_exp_f32 v{tmp}, v{tmp}")
    A(f"v_fract_f32 v{tmp+1}, v{tmp+1}")
    A(f"v_cos_f32 v{D}, v{tmp+1}")
    A(f"v_sin_f32 v{D+1}, v{tmp+1}")
    A("s_nop 0")
    A(f"v_mul_f32 v{D}, v{D}, v{tmp}")
    if conj: A(f"v_mul_f32_e64 v{D+1}, -v{D+1}, v{tmp}")
    else: A(f"v_mul_f32 v{D+1}, v{D+1}, v{tmp}")

def kg_scalars(A, kw_sreg, s0, dsk):
    chan_pair(A, s0, s0+1)
    A(f"s_lshr_b32 s{s0+2}, s{kw_sreg}, 1")
    A(f"s_and_b32 s{s0+4}, s{kw_sreg}, 1")
    A(f"s_lshl_b32 s{s0+1}, s{s0}, 1")
    A(f"s_add_u32 s{s0+8}, s{SP['ldt']}, s{s0+1}"); A(f"s_addc_u32 s{s0+9}, s{SP['ldt']+1}, 0")
    A(f"s_load_dword s{s0+6}, s[{s0+8}:{s0+9}], 0")
    if dsk:
        A(f"s_add_u32 s{s0+10}, s{SP['dsk']}, s{s0+1}"); A(f"s_addc_u32 s{s0+11}, s{SP['dsk']+1}, 0")
        A(f"s_load_dword s{s0+7}, s[{s0+10}:{s0+11}], 0")

def kg_read(A, s_c, s_mh, narr, s_tmp):
    A(f"s_lshl_b32 s{s_tmp}, s{s_c}, 8")
    A(f"v_lshlrev_b32 v9, 1, v0")
    A(f"v_add_u32 v9, s{s_tmp}, v9")
    A(f"s_lshl_b32 s{s_tmp}, s{s_mh}, 7")
    A(f"s_add_u32 s{s_tmp}, s{s_tmp}, {L_PAR}")
    A(f"v_add_u32 v9, s{s_tmp}, v9")
    for i in range(narr):
        A(f"ds_read_u16 v{10+i}, v9 offset:{512*i}")
    A("s_waitcnt lgkmcnt(0)")

def kg_setup(A, s_ldt, s_tmp, full):
    vt2, vw, vY0, tmp = 16, 17, 18, 20
    A(f"s_mov_b32 s{s_tmp}, 0x{f32bits(LOG2E):08x}")
    A(f"v_mov_b32 v{tmp}, s{s_ldt}")
    A(f"v_lshlrev_b32 v10, 16, v10")
    A(f"v_mul_f32 v{tmp}, s{s_tmp}, v{tmp}")
    A(f"v_mul_f32 v10, s{s_tmp}, v10")
    A(f"v_exp_f32 v{tmp}, v{tmp}")
    A(f"v_exp_f32 v10, v10")
    A(f"v_lshlrev_b32 v11, 16, v11")
    A(f"v_cvt_pk_bf16_f32 v{tmp}, v{tmp}, v10")
    if full: A(f"v_lshlrev_b32 v12, 16, v12")
    A(f"v_and_b32 v10, 0xffff0000, v{tmp}")
    A(f"v_lshlrev_b32 v{tmp}, 16, v{tmp}")
    if full: A(f"v_lshlrev_b32 v13, 16, v13")
    A(f"v_mul_f32 v10, v10, v{tmp}")
    A(f"v_mul_f32 v11, v11, v{tmp}")
    A(f"v_mul_f32 v{vt2}, 0x{f32bits(-LOG2E):08x}, v10")
    A(f"v_mul_f32 v{vw}, 0x{f32bits(INV2PI):08x}, v11")
    if full:
        A(f"v_add_f32 v{tmp}, v{tmp}, v{tmp}")
        A(f"v_mul_f32 v{vY0}, v12, v{tmp}")
        A(f"v_mul_f32_e64 v{vY0+1}, -v13, v{tmp}")

def kg_bside(A, vaddr):
    vt2, vw = 16, 17
    X = [24, 26, 28, 30]; S16, S32 = 32, 34
    anchor(A, X[1], 8, vt2, vw, 36)
    A(f"v_mov_b32 v{X[0]}, 1.0"); A(f"v_mov_b32 v{X[0]+1}, 0")
    cmul(A, X[2], X[1], X[1], 36)
    cmul(A, X[3], X[1], X[2], 38)
    cmul(A, S32, X[2], X[2], 40)
    ch = [Rec() for _ in range(4)]
    for j in range(4):
        for b in range(j, 32, 4):
            p_ = 50 + 2*j + (b // 4) % 2
            ch[j](f"v_cvt_pk_bf16_f32 v{p_}, v{X[j]}, v{X[j]+1}")
            if b + 4 < 32: cmul(ch[j], X[j], X[j], S32, 42 + 2*j)
            ch[j](f"ds_write_b32 v{vaddr}, v{p_} offset:{b*528}")
    for ins in merge(*[c.L for c in ch]): A(ins)

def kg_aside(A, vaddr):
    vt2, vw, vY0 = 16, 17, 18
    F1, F256, F2, F4, Y, Z, W = 24, 26, 28, 30, 32, 34, 36
    r2, r3 = Rec(), Rec()
    anchor(r2, F1, 1, vt2, vw, 48, conj=True)
    anchor(r3, F256, 256, vt2, vw, 50, conj=True)
    for ins in merge(r2.L, r3.L): A(ins)
    cmul(A, F2, F1, F1, 48)
    cmul(A, Z, vY0, F256, 50)
    cmul(A, F4, F2, F2, 48)
    ay, az, aw = Rec(), Rec(), Rec()
    cnt = {}
    def put(ch, base, reg, row):
        n_ = cnt.get(base, 0); cnt[base] = n_ + 1
        p = base + n_ % 2
        ch(f"v_cvt_pk_bf16_f32 v{p}, v{reg}, v{reg+1}")
        ch(f"ds_write_b32 v{vaddr}, v{p} offset:{row*528}")
    put(ay, 60, vY0, 0)
    cmul(ay, Y, vY0, F1, 64); put(ay, 60, Y, 1)
    for r in range(2, 8):
        cmul(ay, Y, Y, F1, 64); put(ay, 60, Y, r)
    A(f"v_mov_b32 v{W}, v{Z}"); A(f"v_mov_b32 v{W+1}, v{Z+1}")
    put(aw, 68, W, 8)
    for r in (9, 10, 11):
        cmul(aw, W, W, F2, 70); put(aw, 68, W, r)
    V = 38
    cmul(az, Z, Z, F256, 66); put(az, 62, Z, 12)
    cmul(az, V, Z, F4, 72); put(az, 62, V, 13)
    cmul(az, Z, Z, F256, 66); put(az, 62, Z, 14)
    cmul(az, V, Z, F4, 72); put(az, 62, V, 15)
    for r in range(16, 21):
        cmul(az, Z, Z, F256, 66); put(az, 62, Z, r)
    for ins in merge(az.L, ay.L, aw.L): A(ins)

L_WOT = 57344 + 2048
def kgen_pre(A):
    A("s_sub_u32 s15, s3, 12")
    A("s_setprio 3")
    chan_pair(A, 14, 17)
    A("s_lshl_b32 s17, s14, 8")
    A("s_lshl_b32 s18, s15, 9")
    A("s_mov_b32 s40, -1"); A("s_mov_b32 s41, 0")
    A("v_lshrrev_b32 v14, 3, v0")
    A("v_lshlrev_b32 v14, 10, v14")
    A("v_and_b32 v13, 7, v0")
    A("v_lshl_add_u32 v14, v13, 4, v14")
    A("s_lshr_b32 s19, s2, 3"); A("s_lshl_b32 s19, s19, 16")
    A("s_lshl_b32 s16, s15, 14")
    A("s_add_u32 s19, s19, s16")
    A("s_and_b32 s16, s2, 7"); A("s_lshl_b32 s16, s16, 7")
    A("s_add_u32 s19, s19, s16")
    A("v_lshrrev_b32 v12, 1, v0")
    A("v_lshlrev_b32 v12, 10, v12")
    A("v_and_b32 v13, 1, v0")
    A("v_lshl_add_u32 v12, v13, 4, v12")
    ka_wait(A)
    A(f"s_mov_b32 s32, s{SP['lar']}"); A(f"s_mov_b32 s33, s{SP['lar']+1}")
    for mm_, nm in ((1, 'aim'), (2, 'cre'), (3, 'cim')):
        A(f"s_cmp_eq_u32 s15, {mm_}")
        A(f"s_cselect_b32 s32, s{SP[nm]}, s32"); A(f"s_cselect_b32 s33, s{SP[nm]+1}, s33")
    A(f"s_mov_b32 s34, {512*128*2}"); A("s_mov_b32 s35, 0x00020000")
    A(f"s_add_u32 m0, s18, {L_PAR}")
    A("s_mov_b64 exec, s[40:41]")
    A(f"buffer_load_dwordx4 v{vL16}, s[32:35], s17 offen lds")
    A("s_mov_b64 exec, -1")
    kg_scalars(A, 15, 20, True)
    A("s_getpc_b64 s[32:33]")
    A.label("KG_PC")
    A("s_add_u32 s32, s32, GTAB-KG_PC")
    A("s_addc_u32 s33, s33, 0")
    A("s_lshl_b32 s17, s15, 11")
    A("v_lshlrev_b32 v11, 5, v0")
    A("v_add_u32 v11, s17, v11")
    A("global_load_dwordx4 v[96:99], v11, s[32:33]")
    A("global_load_dwordx4 v[100:103], v11, s[32:33] offset:16")
    srd(A, 32, SP['u'], 2048*512*2)
    A(f"s_add_u32 m0, s17, {L_UTL}")
    A("s_nop 0")
    A("buffer_load_dwordx4 v14, s[32:35], s19 offen lds")
    A(f"s_add_u32 m0, s17, {L_UTL + 1024}")
    A("s_add_u32 s19, s19, 8192")
    A("buffer_load_dwordx4 v14, s[32:35], s19 offen lds")
    srd(A, 32, SP['wo'], 512*512*2)
    A("s_and_b32 s17, s2, 7"); A("s_lshl_b32 s17, s17, 16")
    A("s_lshl_b32 s19, s15, 14")
    A("s_add_u32 s17, s17, s19")
    A("s_lshr_b32 s19, s2, 3"); A("s_lshl_b32 s19, s19, 5")
    A("s_add_u32 s17, s17, s19")
    A(f"s_add_u32 m0, s18, {L_WOT}")
    A("s_mov_b64 exec, s[40:41]")
    A("buffer_load_dwordx4 v12, s[32:35], s17 offen lds")
    A("s_mov_b64 exec, -1")
    A("s_cmp_eq_u32 s15, 0")
    A("s_cbranch_scc0 KG_NE")
    A(f"s_mov_b32 s16, {WS_EP}")
    A("v_mov_b32 v9, 0")
    A("s_mov_b64 exec, 1")
    A(f"buffer_load_dword v{vE}, v9, {WSRD}, s16 offen sc1")
    A("s_mov_b64 exec, -1")
    A.label("KG_NE")

def kgen(A):
    A("s_mov_b32 s16, s22"); A("s_mov_b32 s18, s24"); A("s_mov_b32 s14, s20")
    A(f"s_mul_i32 s25, s16, {L_TCH}")
    A("s_lshl_b32 s23, s18, 8")
    A("s_add_u32 s25, s25, s23")
    A(f"s_add_u32 s25, s25, {L_TA}")
    A("v_lshlrev_b32 v15, 2, v0")
    A("v_add_u32 v15, s25, v15")
    A("s_cmp_eq_u32 s15, 0")
    A("s_cbranch_scc1 KG_WP")
    A("s_waitcnt vmcnt(5)")
    A.label("KG_WP")
    A("s_waitcnt vmcnt(6)")
    gsync(A, C_PAR, 4, 66)
    stamp(A, 24)
    kg_read(A, 16, 18, 4, 23)
    A("s_cmp_eq_u32 s16, 0")
    A("s_cselect_b32 s23, 16, 0")
    A("s_lshl_b32 s26, s26, s23"); A("s_and_b32 s26, s26, 0xffff0000")
    A("s_lshl_b32 s27, s27, s23"); A("s_and_b32 s27, s27, 0xffff0000")
    kg_setup(A, 26, 23, True)
    kg_aside(A, 15)
    A("s_waitcnt lgkmcnt(0)")
    lsig(A, C_G, 66)
    stamp(A, 21)
    A("s_waitcnt vmcnt(0)")
    A("s_cmp_eq_u32 s15, 0")
    A("s_cbranch_scc0 KG_NT")
    make_tag(A)
    A.label("KG_NT")
    A("s_waitcnt lgkmcnt(0)")
    lsig(A, C_GU, 86)
    A("v_and_b32 v9, 15, v0")
    A("v_lshrrev_b32 v10, 4, v0")
    A("v_mul_u32_u24 v11, 528, v9")
    A("v_lshl_add_u32 v11, v10, 4, v11")
    A(f"s_mul_i32 s25, s16, {L_TCH}")
    A(f"s_add_u32 s25, s25, {L_TA}")
    A(f"s_mul_i32 s23, s18, {16*528}")
    A("s_add_u32 s23, s23, s25")
    A("v_add_u32 v12, s23, v11")
    A(f"s_add_u32 s25, s25, {L_TBO}")
    A("v_add_u32 v13, s25, v11")
    A("s_lshl_b32 s25, s16, 11")
    A("s_lshl_b32 s23, s18, 10")
    A("s_add_u32 s25, s25, s23")
    A(f"s_add_u32 s25, s25, {L_T}")
    A("v_lshlrev_b32 v14, 8, v10")
    A("v_lshl_add_u32 v14, v9, 1, v14")
    A("v_add_u32 v14, s25, v14")
    A("s_cmp_eq_u32 s18, 0")
    A("s_cselect_b32 s27, s27, 0")
    A("v_mov_b32 v15, s27")
    lwait(A, C_G, 8, 86, sleep=1)
    stamp(A, 22)
    q = DSQ(A)
    def rd(s_):
        b = s_ % 4
        A(f"ds_read_b128 {v(16+4*b,4)}, v12 offset:{s_*64}"); q.issue(("a", s_))
        A(f"ds_read_b128 {v(32+4*b,4)}, v13 offset:{s_*64}"); q.issue(("b0", s_))
        A(f"ds_read_b128 {v(48+4*b,4)}, v13 offset:{16*528 + s_*64}"); q.issue(("b1", s_))
    for s_ in range(3): rd(s_)
    for s_ in range(8):
        if s_ + 3 < 8: rd(s_ + 3)
        b = s_ % 4
        q.wait(("b0", s_))
        A(f"v_mfma_f32_16x16x32_bf16 v[120:123], {v(16+4*b,4)}, {v(32+4*b,4)}, {'0' if s_==0 else 'v[120:123]'}")
        q.wait(("b1", s_))
        A(f"v_mfma_f32_16x16x32_bf16 v[4:7], {v(16+4*b,4)}, {v(48+4*b,4)}, {'0' if s_==0 else 'v[4:7]'}")
    A("s_nop 7")
    A("v_cmp_eq_u32 vcc, 0, v0")
    A("s_nop 1")
    A("v_cndmask_b32 v15, 0, v15, vcc")
    A("v_add_f32 v120, v120, v15")
    for ct, b_ in enumerate((120, 4)):
        A(f"v_cvt_pk_bf16_f32 v{16+2*ct}, v{b_}, v{b_+1}")
        A(f"v_cvt_pk_bf16_f32 v{17+2*ct}, v{b_+2}, v{b_+3}")
        A(f"ds_write_b16 v14, v{16+2*ct} offset:{32*ct}")
        A(f"ds_write_b16_d16_hi v14, v{16+2*ct} offset:{32*ct+64}")
        A(f"ds_write_b16 v14, v{17+2*ct} offset:{32*ct+128}")
        A(f"ds_write_b16_d16_hi v14, v{17+2*ct} offset:{32*ct+192}")
    gsync(A, C_GT2, 4, 2)
    stamp(A, 23)
    for e in range(8): A(f"v_add_u32 v{96+e}, {L_T}, v{96+e}")
    for c in range(2):
        for e in range(8):
            op = "ds_read_u16_d16_hi" if e % 2 else "ds_read_u16"
            A(f"{op} v{(32 if e % 2 else 16)+4*c+e//2}, v{96+e} offset:{c*2048}")
    A("s_lshl_b32 s25, s15, 6")
    A("v_add_u32 v9, s25, v0")
    A("v_lshrrev_b32 v10, 2, v9")
    A("v_mul_u32_u24 v10, 80, v10")
    A("v_and_b32 v9, 3, v9")
    A("v_lshl_add_u32 v10, v9, 4, v10")
    A(f"v_add_u32 v10, {L_KREV}, v10")
    for j in range(4): A(f"v_mov_b32 v{40+j}, 0")
    A(f"s_mul_i32 s25, s16, {KREV_SZ}")
    A(f"s_mul_i32 s23, s18, 1280")
    A("s_add_u32 s25, s25, s23")
    A(f"s_add_u32 s25, s25, {L_KREV + 64*80}")
    A(f"v_add_u32 v11, s25, v{vL16}")
    A("ds_write_b128 v11, v[40:43]")
    A("s_mov_b64 exec, 0xffff")
    A("ds_write_b128 v11, v[40:43] offset:1024")
    A("s_mov_b64 exec, -1")
    A("s_waitcnt lgkmcnt(10)")
    for j in range(4): A(f"v_or_b32 v{16+j}, v{16+j}, v{32+j}")
    A("s_waitcnt lgkmcnt(2)")
    for j in range(4): A(f"v_or_b32 v{20+j}, v{20+j}, v{36+j}")
    A("ds_write_b128 v10, v[16:19]")
    A(f"ds_write_b128 v10, v[20:23] offset:{KREV_SZ}")
    A("s_waitcnt lgkmcnt(0)")
    stamp(A, 27)
    FLAT = int(os.environ.get("FLAT", 3))
    for i in range(8):
        A("s_barrier")
        if i == FLAT:
            get_tag(A)
            chan_pair(A, 14, 17)
            A("s_lshr_b32 s28, s14, 4")
            A(f"s_lshl_b32 s28, s28, {5+FS}")
            A(f"s_add_u32 s28, s28, {WS_FU}")
            A(f"v_lshlrev_b32 v104, {FS}, v0")
            A("s_mov_b32 s40, 0")
        if i == FLAT + 2:
            A("s_cmp_eq_u32 s15, 3")
            A("s_cbranch_scc0 KG_L2")
            A("s_waitcnt vmcnt(0)")
            A("s_mov_b32 s30, -1"); A("s_mov_b32 s31, 0")
            A(f"v_cmp_ne_u32 vcc, s{sT}, v105")
            A("s_nop 1")
            A("s_and_b64 vcc, vcc, s[30:31]")
            A("s_cbranch_vccnz KG_L2")
            lsig(A, C_FU, 66)
            A("s_mov_b32 s40, 1")
            A.label("KG_L2")
        if i == FLAT + 1:
            A("s_cmp_eq_u32 s15, 3")
            A("s_cbranch_scc0 KG_L1")
            A("s_mov_b32 s30, -1"); A("s_mov_b32 s31, 0")
            A("s_mov_b64 exec, s[30:31]")
            A(f"buffer_load_dword v105, v104, {WSRD}, s28 offen sc1")
            A("s_mov_b64 exec, -1")
            A.label("KG_L1")
    A("s_cmp_eq_u32 s15, 3")
    A("s_cbranch_scc0 KG_END2")
    A("s_cmp_lg_u32 s40, 0")
    A("s_cbranch_scc1 KG_END2")
    poll(A, "KG_PU", 104, 28, "-1", 105, sleep=2)
    lsig(A, C_FU, 66)
    A.label("KG_END2")
    if os.environ.get("X_P1ONLY"): A("s_branch K_FIN")

vKA, vVA, vQ, vKF, vVF, vS, vP, vO, vM, vT = 2, 3, 4, 8, 16, 32, 64, 72, 88, 89
vLD = 92
vLW = 124
vLW2 = 89
NT = 32
SCHED = "e0 e1 PV1 RV e2 e3 c0 e4 e5 c1 QK RK e6 e7 c2 e8 e9 c3 e10 e11 PV0 c4 e12 e13 c5 e14 e15 c6 c7"
PRIO = {0: 3, 8: 2, 16: 1, 24: 0}

def attn_ids(A):
    A("s_and_b32 s12, s2, 7")
    A("s_lshl_b32 s12, s12, 2")
    A("s_lshr_b32 s13, s2, 3")
    A("s_and_b32 s17, s13, 3")
    A("s_add_u32 s12, s12, s17")
    A("s_lshr_b32 s13, s2, 5")
    A("s_lshl_b32 s17, s12, 16")

def ld_group(A):
    attn_setup(A)
    A("s_cmp_lt_u32 s3, 4")
    A("s_cselect_b32 s28, 0, 8")
    A("s_sub_u32 s28, s3, s28")
    A(f"v_lshlrev_b32 v8, {FS}, v0")
    A(f"s_lshl_b32 s27, s12, {5+FS}")
    A(f"s_add_u32 s27, s27, {WS_F1}")
    A("s_lshr_b32 s22, s28, 1")
    A("s_and_b32 s23, s28, 1"); A("s_lshl_b32 s23, s23, 1")
    A("s_and_b32 s4, s22, 1"); A("s_lshl_b32 s4, s4, 15")
    A("s_lshr_b32 s26, s22, 1"); A("s_lshl_b32 s26, s26, 21")
    A("s_add_u32 s4, s4, s26")
    A("s_lshl_b32 s26, s23, 10")
    A("s_add_u32 s4, s4, s26")
    A("s_add_u32 s4, s4, s17")
    A(f"s_add_u32 s4, s4, {WS_K}")
    A("s_lshl_b32 s24, s23, 12")
    A("s_lshl_b32 s26, s22, 10")
    A("s_add_u32 s24, s24, s26")
    A(f"v_add_u32 v{vLW2}, s24, v{vL16}")
    A("s_lshl_b32 s5, s13, 3"); A("s_add_u32 s5, s5, s28"); A("s_lshl_b32 s5, s5, 10"); A("s_add_u32 s5, s5, s17")
    A("s_lshl_b32 s6, s28, 10"); A(f"s_add_u32 s6, s6, {L_QS}")
    A(f"v_add_u32 v12, s6, v{vL16}")
    A("s_cmp_eq_u32 s3, 13")
    A("s_cbranch_scc0 LD_NOPOLL")
    lwait(A, C_OWN, 4, 44, sleep=2)
    poll(A, "LD_POLL", 8, 27, "-1", 13, sleep=2)
    lsig(A, C_F1, 44)
    A.label("LD_NOPOLL")
    lwait(A, C_F1, 1, 44, sleep=1)
    stamp(A, 3)
    def rload(r, d0):
        A(f"s_add_u32 s26, s13, {r}")
        A("s_and_b32 s26, s26, 7")
        A("s_lshl_b32 s26, s26, 12")
        A("s_add_u32 s26, s26, s4")
        A(f"buffer_load_dwordx4 {v(d0,4)}, v{vL16}, {WSRD}, s26 offen sc1")
        A(f"buffer_load_dwordx4 {v(d0+4,4)}, v{vL16}, {WSRD}, s26 offen offset:1024 sc1")
    rload(0, 32)
    A(f"buffer_load_dwordx4 v[40:43], v{vL16}, {WSRD}, s5 offen sc1")
    rload(1, vLD)
    rload(2, vLD + 8)
    lwait(A, C_DONE(7), 4, 44)
    A("s_waitcnt vmcnt(4)")
    A(f"ds_write_b128 v{vLW2}, v[32:35]")
    A(f"ds_write_b128 v{vLW2}, v[36:39] offset:4096")
    A("ds_write_b128 v12, v[40:43]")

def attn_setup(A):
    attn_ids(A)
    A("s_mov_b32 s20, 0x0000ffff")
    A("s_mov_b32 s21, 0x0000ffff")
    A("s_and_b32 s15, s3, 7")
    A("s_lshr_b32 s16, s3, 3")
    A("s_lshl_b32 s19, s16, 10")
    A(f"v_add_u32 v{vKA}, s19, v{vL16}")
    A("v_lshrrev_b32 v8, 5, v0")
    A("v_lshlrev_b32 v8, 8, v8")
    A("v_and_b32 v9, 15, v0")
    A("v_lshlrev_b32 v9, 4, v9")
    A("s_add_u32 s19, s19, 2048")
    A(f"v_add3_u32 v{vVA}, v8, v9, s19")
    A("v_and_b32 v8, 31, v0")
    A("v_cmp_eq_u32 vcc, 16, v8")
    A("v_mov_b32 v9, 0x3f803f80")
    A("s_lshl_b32 s22, s15, 10"); A(f"s_add_u32 s22, s22, {L_QS}")
    A("v_cndmask_b32 v9, 0, v9, vcc")
    A(f"v_add_u32 v{vQ}, s22, v{vL16}")
    for i in range(16): A(f"v_mov_b32 v{vVF+i}, v9")
    A(f"v_mov_b32 v{vM}, 0")
    A("s_lshl_b32 s18, s13, 3")
    A("s_add_u32 s18, s18, s15")
    A(f"s_lshl_b32 s19, s18, {5+FS}")
    A(f"s_lshl_b32 s22, s12, {FS}")
    A("s_add_u32 s19, s19, s22")
    A(f"s_add_u32 s19, s19, {WS_F2}")
    A("s_lshl_b32 s18, s18, 10")
    A("s_add_u32 s18, s18, s17")
    A("s_lshr_b32 s22, s3, 2")
    A("s_and_b32 s23, s3, 3")
    A("s_lshl_b32 s24, s23, 12")
    A("s_lshl_b32 s26, s22, 10")
    A("s_add_u32 s24, s24, s26")
    A(f"v_add_u32 v{vLW}, s24, v{vL16}")
    A("s_and_b32 s25, s22, 1"); A("s_lshl_b32 s25, s25, 15")
    A("s_lshr_b32 s26, s22, 1"); A("s_lshl_b32 s26, s26, 21")
    A("s_add_u32 s25, s25, s26")
    A("s_lshl_b32 s23, s23, 10")
    A("s_add_u32 s25, s25, s23")
    A("s_add_u32 s25, s25, s17")
    A(f"s_add_u32 s25, s25, {WS_K}")
    A("s_lshr_b32 s37, s2, 3"); A("s_and_b32 s37, s37, 3"); A("s_lshl_b32 s37, s37, 3"); A("s_add_u32 s37, s37, s15")

def attention(A):
    A("s_setprio 3")
    A("s_waitcnt lgkmcnt(0)")
    A("s_barrier")
    stamp(A, 4)
    A(f"ds_read_b128 {v(vQ,4)}, v{vQ}")
    q = DSQ(A)
    KF = lambda t: vKF + 4 * (t % 2)
    VF = lambda t, j: vVF + 8 * (t % 2) + 4 * j
    S = lambda t: vS + 16 * (t % 2)
    def rdK(t):
        A(f"ds_read_b128 {v(KF(t),4)}, v{vKA} offset:{(t%16)*4096}"); q.issue(("K", t))
    def rdV(t):
        A("s_mov_b64 exec, s[20:21]")
        A(f"ds_read_b128 {v(VF(t,0),4)}, v{vVA} offset:{(t%16)*4096}"); q.issue(("V0", t))
        A(f"ds_read_b128 {v(VF(t,1),4)}, v{vVA} offset:{(t%16)*4096+512}"); q.issue(("V1", t))
        A("s_mov_b64 exec, -1")
    def qk(t):
        q.wait(("K", t))
        A(f"v_mfma_f32_32x32x16_bf16 {v(S(t),16)}, {v(KF(t),4)}, {v(vQ,4)}, 0")
    def e(t, i): A(f"v_exp_f32 v{S(t)+i}, v{S(t)+i}")
    def c(t, k): A(f"v_cvt_pk_bf16_f32 v{vP+k}, v{S(t)+2*k}, v{S(t)+2*k+1}")
    def pv(t, j):
        cc = "0" if (t == 0 and j == 0) else v(vO, 16)
        A(f"v_mfma_f32_32x32x16_bf16 {v(vO,16)}, {v(VF(t,j),4)}, {v(vP+4*j,4)}, {cc}")
    rdK(0); rdK(1); rdV(0)
    qk(0)
    A("s_nop 7"); A("s_nop 3")
    for t in range(NT):
        A.comment(f"--- tile {t}")
        if t in PRIO: A(f"s_setprio {PRIO[t]}")
        for tok in SCHED.split():
            if tok[0] == 'e': e(t, int(tok[1:]))
            elif tok[0] == 'c': c(t, int(tok[1:]))
            elif tok == 'PV1':
                if t > 0: pv(t - 1, 1)
            elif tok == 'QK':
                if t + 1 < NT: qk(t + 1)
            elif tok == 'PV0':
                q.wait(("V1", t)); pv(t, 0)
            elif tok == 'RK':
                slot_of = {3: 4, 4: 5, 5: 6, 6: 7, 7: 0}
                if t == 2:
                    A("s_sub_u32 s26, s3, 4")
                    A("s_cmp_lt_u32 s26, 8")
                    A("s_cbranch_scc1 AT_NL")
                    A("s_waitcnt vmcnt(2)")
                    A(f"ds_write_b128 v{vLW2}, {v(vLD,4)} offset:16384")
                    A(f"ds_write_b128 v{vLW2}, {v(vLD+4,4)} offset:20480")
                    A(f"ds_write_b128 v{vLW2}, {v(vLD+8,4)} offset:32768")
                    A(f"ds_write_b128 v{vLW2}, {v(vLD+12,4)} offset:36864")
                    A.label("AT_NL")
                    A("s_waitcnt lgkmcnt(0)"); q.q = []
                    A("s_barrier")
                if t < 5:
                    r = 3 + t
                    A(f"s_add_u32 s26, s13, {r}")
                    A("s_and_b32 s26, s26, 7")
                    A("s_lshl_b32 s26, s26, 12")
                    A("s_add_u32 s26, s26, s25")
                    A(f"buffer_load_dwordx4 {v(vLD+4*slot_of[r],4)}, v{vL16}, {WSRD}, s26 offen sc1")
                if t == 9:
                    A("s_waitcnt vmcnt(0)")
                    A(f"ds_write_b128 v{vLW}, {v(vLD+4*slot_of[3],4)} offset:49152")
                    A(f"v_add_u32 v{vLW}, 65536, v{vLW}")
                    for r in range(4, 8):
                        A(f"ds_write_b128 v{vLW}, {v(vLD+4*slot_of[r],4)} offset:{r*16384 - 65536}")
                    A("s_waitcnt lgkmcnt(0)"); q.q = []
                    A("s_barrier")
                    A(f"v_lshlrev_b32 v{vT}, {FS}, v0")
                    A(f"s_lshl_b32 s26, s37, {3+FS}")
                    A(f"s_add_u32 s26, s26, {WS_F3}")
                    A("s_mov_b64 exec, 0xff")
                    A(f"buffer_load_dword v{vLW}, v{vT}, {WSRD}, s26 offen sc1")
                    A("s_mov_b64 exec, -1")
                if t == 11:
                    A("s_waitcnt vmcnt(0)")
                    check_or_poll(A, "AT_P3", vT, 26, "0xff", vLW)
                    A("s_lshl_b32 s27, s37, 14")
                    A("s_lshl_b32 s26, s16, 13")
                    A("s_add_u32 s27, s27, s26")
                    A(f"s_add_u32 s27, s27, {WS_WOF}")
                if 11 <= t < 19:
                    A(f"buffer_load_dwordx4 {v(vLD+4*(t-11),4)}, v{vL16}, {WSRD}, s27 offen sc1")
                    A("s_add_u32 s27, s27, 1024")
                if t == 20:
                    A("s_sub_u32 s26, s3, 4")
                    A("s_cmp_lt_u32 s26, 8")
                    A("s_cbranch_scc0 AT_NY0")
                    A(f"v_and_b32 v{vT}, 31, v0")
                    A(f"v_lshrrev_b32 v{vLW}, 5, v0")
                    A(f"v_lshlrev_b32 v{vT}, 16, v{vT}")
                    A(f"v_lshl_add_u32 v{vT}, v{vLW}, 13, v{vT}")
                    A.label("AT_NY0")
                    srd(A, 4, SP['out'], 2048*1024*2)
                if 21 <= t < 25:
                    r = t - 21
                    A("s_sub_u32 s26, s3, 4")
                    A("s_cmp_lt_u32 s26, 8")
                    A(f"s_cbranch_scc0 AT_NY{r+1}")
                    if r == 2: A("s_add_u32 s36, s36, 4096")
                    A(f"buffer_store_dword v{vY[r]}, v{vT}, s[4:7], s36 offen" + (" offset:2048" if r % 2 else ""))
                    A.label(f"AT_NY{r+1}")
                if t == 14:
                    A(f"v_add_u32 v{vKA}, 65536, v{vKA}")
                if t + 2 < NT: rdK(t + 2)
            elif tok == 'RV':
                if t == 15:
                    A(f"v_add_u32 v{vVA}, 65536, v{vVA}")
                if t + 1 < NT: rdV(t + 1)
            else: raise ValueError(tok)
    A("s_nop 1")
    pv(NT - 1, 1)
    A("s_nop 15")
    stamp(A, 5)
    A(f"v_mov_b32 v{vT}, v{vO+8}")
    A("s_nop 1")
    A(f"v_permlane32_swap_b32 v{vT}, v{vO+8}")
    A("s_nop 1")
    A(f"v_mov_b32 v{vO+8}, v{vT}")
    A("s_mov_b32 s28, 0x1f800000")
    A("s_mov_b32 s29, 0x5f800000")
    A(f"v_cmp_le_f32 vcc, s28, v{vO+8}")
    A(f"v_cmp_ge_f32 s[30:31], s29, v{vO+8}")
    A("s_nop 1")
    A("s_and_b64 vcc, vcc, s[30:31]")
    A("s_cmp_eq_u64 vcc, -1")
    A("s_cbranch_scc0 AT_FALLBACK")
    A.label("AT_COMBINE")
    A("s_lshl_b32 s17, s15, 11")
    A(f"s_add_u32 s17, s17, {L_SCR}")
    A(f"v_add_u32 v{vT}, s17, v{vL16}")
    A("v_lshlrev_b32 v12, 3, v0")
    A("s_lshl_b32 s17, s15, 9")
    A(f"s_add_u32 s17, s17, {L_KREV}")
    A(f"v_add_u32 v12, s17, v12")
    A("s_cmp_eq_u32 s16, 0")
    A("s_cbranch_scc1 AT_LOW")
    A(f"ds_write_b128 v{vT}, {v(vO,4)}")
    A(f"ds_write_b128 v{vT}, {v(vO+4,4)} offset:1024")
    A(f"v_mov_b32 v{vO+9}, v{vM}")
    A(f"ds_write_b64 v12, {v(vO+8,2)}")
    A("s_waitcnt lgkmcnt(0)")
    A("s_barrier")
    A("s_branch AT_DONE")
    A.label("AT_LOW")
    A("s_barrier")
    B = vS
    A(f"ds_read_b128 {v(B,4)}, v{vT}")
    A(f"ds_read_b128 {v(B+4,4)}, v{vT} offset:1024")
    A(f"ds_read_b64 {v(B+8,2)}, v12")
    A("s_waitcnt lgkmcnt(0)")
    t0, t1, t2 = 8, 9, 10
    A(f"v_max_f32 v{t0}, v{vM}, v{B+9}")
    A(f"v_sub_f32 v{t1}, v{vM}, v{t0}")
    A(f"v_sub_f32 v{t2}, v{B+9}, v{t0}")
    A(f"v_exp_f32 v{t1}, v{t1}")
    A(f"v_exp_f32 v{t2}, v{t2}")
    A("s_nop 0")
    for i in range(9):
        A(f"v_mul_f32 v{vO+i}, v{vO+i}, v{t1}")
    for i in range(9):
        A(f"v_fmac_f32 v{vO+i}, v{B+i}, v{t2}")
    A(f"v_rcp_f32 v{t0}, v{vO+8}")
    A("s_nop 0")
    for i in range(8):
        A(f"v_mul_f32 v{vO+i}, v{vO+i}, v{t0}")
    for k in range(4):
        A(f"v_cvt_pk_bf16_f32 v{vP+k}, v{vO+2*k}, v{vO+2*k+1}")
    A("s_nop 1")
    A(f"v_permlane32_swap_b32 v{vP}, v{vP+2}")
    A(f"v_permlane32_swap_b32 v{vP+1}, v{vP+3}")
    A(f"s_add_u32 s18, s18, {WS_O}")
    A("s_nop 1")
    A(f"buffer_store_dwordx4 {v(vP,4)}, v{vL16}, {WSRD}, s18 offen sc1")
    A("s_waitcnt vmcnt(0)")
    flag_store(A, 19, 12, 13)
    lsig(A, C_OWN2, 12)
    A.label("AT_DONE")
    stamp(A, 6)

def attention_fallback(A):
    A.label("AT_FALLBACK")
    A(f"v_mov_b32 v{vM}, 0xff800000")
    A(f"v_subrev_u32 v{vT}, 65536, v{vKA}")
    A("s_mov_b32 s17, 0")
    A.label("AT_FB1")
    A(f"ds_read_b128 {v(vKF,4)}, v{vT}")
    A(f"v_add_u32 v{vT}, 4096, v{vT}")
    A("s_waitcnt lgkmcnt(0)")
    A(f"v_mfma_f32_32x32x16_bf16 {v(vS,16)}, {v(vKF,4)}, {v(vQ,4)}, 0")
    A("s_nop 15")
    for k in range(8):
        A(f"v_max3_f32 v{vM}, v{vS+2*k}, v{vS+2*k+1}, v{vM}")
    A("s_add_u32 s17, s17, 1")
    A("s_cmp_lt_u32 s17, 32")
    A("s_cbranch_scc1 AT_FB1")
    A(f"v_mov_b32 v{vT}, v{vM}")
    A(f"v_mov_b32 v12, v{vM}")
    A("s_nop 1")
    A(f"v_permlane32_swap_b32 v{vT}, v12")
    A("s_nop 1")
    A(f"v_max_f32 v{vM}, v{vT}, v12")
    for i in range(16): A(f"v_mov_b32 v{vO+i}, 0")
    A(f"v_subrev_u32 v{vT}, 65536, v{vKA}")
    A(f"v_subrev_u32 v12, 65536, v{vVA}")
    A("s_mov_b32 s17, 0")
    A.label("AT_FB2")
    A(f"ds_read_b128 {v(vKF,4)}, v{vT}")
    A("s_mov_b64 exec, s[20:21]")
    A(f"ds_read_b128 {v(vVF,4)}, v12")
    A(f"ds_read_b128 {v(vVF+4,4)}, v12 offset:512")
    A("s_mov_b64 exec, -1")
    A(f"v_add_u32 v{vT}, 4096, v{vT}")
    A(f"v_add_u32 v12, 4096, v12")
    A("s_waitcnt lgkmcnt(0)")
    A(f"v_mfma_f32_32x32x16_bf16 {v(vS,16)}, {v(vKF,4)}, {v(vQ,4)}, 0")
    A("s_nop 15")
    for i in range(16): A(f"v_sub_f32 v{vS+i}, v{vS+i}, v{vM}")
    for i in range(16): A(f"v_exp_f32 v{vS+i}, v{vS+i}")
    A("s_nop 0")
    for k in range(8): A(f"v_cvt_pk_bf16_f32 v{vP+k}, v{vS+2*k}, v{vS+2*k+1}")
    A("s_nop 1")
    A(f"v_mfma_f32_32x32x16_bf16 {v(vO,16)}, {v(vVF,4)}, {v(vP,4)}, {v(vO,16)}")
    A(f"v_mfma_f32_32x32x16_bf16 {v(vO,16)}, {v(vVF+4,4)}, {v(vP+4,4)}, {v(vO,16)}")
    A("s_add_u32 s17, s17, 1")
    A("s_cmp_lt_u32 s17, 32")
    A("s_cbranch_scc1 AT_FB2")
    A("s_nop 15")
    A(f"v_mov_b32 v{vT}, v{vO+8}")
    A("s_nop 1")
    A(f"v_permlane32_swap_b32 v{vT}, v{vO+8}")
    A("s_nop 1")
    A(f"v_mov_b32 v{vO+8}, v{vT}")
    A("s_branch AT_COMBINE")

def tail(A):
    A("s_and_b32 s12, s2, 7"); A("s_lshl_b32 s12, s12, 3"); A("s_lshr_b32 s13, s2, 5"); A("s_add_u32 s12, s12, s13")
    A("s_lshr_b32 s13, s2, 3"); A("s_and_b32 s13, s13, 3")
    A(f"v_lshlrev_b32 v10, {FS}, v0")
    A(f"s_lshl_b32 s17, s12, {5+FS}")
    A(f"s_add_u32 s17, s17, {WS_F2}")
    A("s_cmp_eq_u32 s3, 8")
    A("s_cbranch_scc0 TL_NOPOLL")
    lwait(A, C_OWN2, 8, 12, sleep=1)
    poll(A, "TL_P2", 10, 17, "-1", 12, sleep=1)
    lsig(A, C_F2, 12)
    A.label("TL_NOPOLL")
    A("v_and_b32 v4, 15, v0")
    A("v_lshrrev_b32 v5, 4, v0")
    A("v_lshlrev_b32 v14, 9, v5")
    A("v_lshl_add_u32 v14, v4, 4, v14")
    A("s_lshl_b32 s17, s16, 14")
    A(f"s_add_u32 s17, s17, {L_OT}")
    A(f"v_add_u32 v14, s17, v14")
    A("v_lshlrev_b32 v15, 11, v4")
    A("v_lshl_add_u32 v15, v5, 3, v15")
    A("s_lshl_b32 s20, s12, 16")
    A("s_lshl_b32 s19, s16, 15")
    A("s_add_u32 s20, s20, s19")
    A("s_lshl_b32 s19, s13, 8")
    A("s_add_u32 s20, s20, s19")
    A("s_lshl_b32 s19, s15, 5")
    A("s_add_u32 s20, s20, s19")
    A("s_add_u32 s20, s20, 1024")
    srd(A, 4, SP['out'], 2048*1024*2)
    A("s_lshl_b32 s17, s3, 10")
    A(f"s_add_u32 s17, s17, {L_PC}")
    A(f"v_add_u32 v6, s17, v{vL16}")
    A("s_xor_b32 s17, s17, 8192")
    A(f"v_add_u32 v7, s17, v{vL16}")
    A("s_lshl_b32 s17, s3, 17")
    A("s_lshl_b32 s18, s12, 10")
    A("s_add_u32 s17, s17, s18")
    A(f"s_add_u32 s17, s17, {WS_O}")
    A("s_lshl_b32 s18, s3, 11")
    A(f"s_add_u32 s18, s18, {L_OT}")
    A(f"v_add_u32 v13, s18, v{vL16}")
    lwait(A, C_F2, 1, 8, sleep=1)
    stamp(A, 43)
    A(f"buffer_load_dwordx4 v[16:19], v{vL16}, {WSRD}, s17 offen sc1")
    A("s_add_u32 s17, s17, 65536")
    A(f"buffer_load_dwordx4 v[20:23], v{vL16}, {WSRD}, s17 offen sc1")
    A("s_waitcnt vmcnt(1)")
    A("ds_write_b128 v13, v[16:19]")
    A("s_waitcnt vmcnt(0)")
    A("ds_write_b128 v13, v[20:23] offset:1024")
    A("s_waitcnt lgkmcnt(0)")
    stamp(A, 44)
    A("s_barrier")
    stamp(A, 45)
    q = DSQ(A)
    FO = 16
    def rd(s_):
        b = s_ % 3
        for th in range(2):
            A(f"ds_read_b128 {v(FO+12*th+4*b,4)}, v14 offset:{s_*2048 + th*256}"); q.issue(("o", s_, th))
    rd(0); rd(1)
    for s_ in range(8):
        if s_ + 2 < 8: rd(s_ + 2)
        b = s_ % 3
        for th in range(2):
            q.wait(("o", s_, th))
            cc = "0" if s_ == 0 else v(40+4*th, 4)
            A(f"v_mfma_f32_16x16x32_bf16 {v(40+4*th,4)}, {v(vLD+4*s_,4)}, {v(FO+12*th+4*b,4)}, {cc}")
    A("s_cmp_eq_u32 s2, 0")
    A("s_cbranch_scc0 TL_NE")
    A("s_cmp_eq_u32 s3, 8")
    A("s_cbranch_scc0 TL_NE")
    A(f"s_mov_b32 s17, {WS_EP}")
    flag_store(A, 17, 12, 13)
    A.label("TL_NE")
    A("s_nop 7")
    A("s_cmp_eq_u32 s16, 0")
    A("s_cbranch_scc1 TL_LO")
    A("ds_write_b128 v6, v[40:43]")
    for i in range(4): A(f"v_mov_b32 v{40+i}, v{44+i}")
    A("s_branch TL_X")
    A.label("TL_LO")
    A("ds_write_b128 v6, v[44:47]")
    A.label("TL_X")
    A("s_waitcnt lgkmcnt(0)")
    A("s_barrier")
    A("ds_read_b128 v[16:19], v7")
    A("s_waitcnt lgkmcnt(0)")
    for i in range(4):
        A(f"v_add_f32 v{40+i}, v{40+i}, v{16+i}")
    A("v_cvt_pk_bf16_f32 v48, v40, v41")
    A("v_cvt_pk_bf16_f32 v49, v42, v43")
    A("buffer_store_dwordx2 v[48:49], v15, s[4:7], s20 offen")

def gen():
    A = Asm()
    kernel_begin(A, NAME)
    A.label("K_START")
    if not os.environ.get("NOPF"):
        A("s_getpc_b64 s[4:5]")
        A.label("PF_PC")
        A("v_lshlrev_b32 v2, 7, v0")
        A("v_cmp_gt_u32 vcc, GTAB_END-PF_PC-128, v2")
        A("s_and_saveexec_b64 s[6:7], vcc")
        A("s_cbranch_execz PF_DONE")
        A(f"global_load_dword v{vE}, v2, s[4:5]")
        A.label("PF_DONE")
        A("s_mov_b64 exec, s[6:7]")
    if DBG: A("v_mov_b32 v125, 0")
    if PROF:
        A("v_mov_b32 v125, 0")
        A("s_memrealtime s[38:39]")
    stamp(A, 0)
    A("s_cmp_ge_u32 s2, 256")
    A("s_cbranch_scc1 K_END")
    A("s_load_dwordx16 s[64:79], s[0:1], 0")
    A("s_load_dwordx8 s[80:87], s[0:1], 64")
    A("s_load_dwordx2 s[88:89], s[0:1], 96")
    A("v_lshrrev_b32 v8, 6, v0")
    A("v_and_b32 v0, 63, v0")
    A("v_readfirstlane_b32 s3, v8")
    A(f"v_lshlrev_b32 v{vL16}, 4, v0")
    p1_ids(A)
    A("s_cmp_eq_u32 s3, 12")
    A("s_cbranch_scc0 E_NZ")
    A("v_lshlrev_b32 v20, 2, v0")
    A(f"v_add_u32 v20, {L_CNT}, v20")
    A("v_mov_b32 v24, 0")
    A("ds_write_b32 v20, v24")
    A.label("E_NZ")
    A("s_cmp_ge_u32 s3, 12")
    A("s_cbranch_scc0 E_NG")
    kgen_pre(A)
    A.label("E_NG")
    ka_wait(A)
    A("s_barrier")
    A("s_cmp_lt_u32 s3, 4")
    A("s_cbranch_scc1 R_COMPUTE")
    A("s_cmp_ge_u32 s3, 12")
    A("s_cbranch_scc1 R_KGEN")
    p1_loader(A)
    attn_setup(A)
    A("s_branch R_JOIN")
    A.label("R_KGEN")
    kgen(A)
    A("s_branch R_LD")
    A.label("R_COMPUTE")
    p1_compute(A)
    A.label("R_LD")
    ld_group(A)
    A.label("R_JOIN")
    attention(A)
    tail(A)
    A.label("K_FIN")
    stamp(A, 50)
    if PROF or DBG or os.environ.get("ENDWAIT"): A("s_waitcnt vmcnt(0)")
    stamp(A, 51)
    write_stamps(A)
    if DBG:
        A("s_cmp_eq_u32 s2, 8"); A("s_cbranch_scc0 K_END")
        A("s_cmp_eq_u32 s3, 0"); A("s_cbranch_scc0 K_END")
        A("s_memtime s[48:49]"); A("s_memrealtime s[50:51]"); A("s_waitcnt lgkmcnt(0)")
        A("v_readlane_b32 s52, v125, 0"); A("v_readlane_b32 s53, v125, 1")
        A("s_nop 3")
        A("v_writelane_b32 v125, s48, 0"); A("v_writelane_b32 v125, s50, 1")
        A("v_and_b32 v16, 1, v0")
        A("v_cmp_eq_u32 vcc, 0, v16")
        A("v_mov_b32 v17, s53"); A("v_mov_b32 v18, s52")
        A("s_nop 1")
        A("v_cndmask_b32 v17, v17, v18, vcc")
        A("v_sub_u32 v17, v125, v17")
        srd(A, 4, SP['dbg'], 256)
        A("v_lshlrev_b32 v16, 2, v0")
        A("s_mov_b64 exec, 0xffff")
        A("buffer_store_dword v17, v16, s[4:7], 0 offen")
        A("s_waitcnt vmcnt(0)")
    A.label("K_END")
    A("s_endpgm")
    attention_fallback(A)
    A(".p2align 6")
    A(".type GTAB,@object")
    A.label("GTAB")
    t = gather_table()
    for i in range(0, 2048, 16):
        A(".long " + ", ".join(str(int(x)) for x in t[i:i+16]))
    A(".size GTAB, 8192")
    A.label("GTAB_END")
    hdr_src = open("concat_heads__ssm_conv_s4d__mha_block__prompt.s.ref").read().split("\n")
    hdr = [l for l in hdr_src if l.startswith(";") and "@launch" not in l and "Override launch" not in l and "grid=ceil" not in l]
    out = "\n".join(hdr) + "\n; @launch grid=(256,1,1) block=(1024,1,1) lds=163840\n"
    out += '.amdgcn_target "amdgcn-amd-amdhsa--gfx950"\n'
    out += A.text() + kernel_desc(NAME, 128, 100)
    return out

if __name__ == "__main__":
    open(sys.argv[1] if len(sys.argv) > 1 else "fused.s", "w").write(gen())
```

```python
import os, struct, sys
from asmlib import *
from ssm_common import gather_table

NAME = "concat_heads__ssm_conv_s4d__mha_block__prompt_kernel"
PROF = bool(os.environ.get("PROF"))
DBG = bool(os.environ.get("DBG"))
DBGMAP = {0: 0, 10: 1, 1: 2, 2: 3, 4: 4, 5: 5, 6: 6, 45: 7}

def f32bits(x): return struct.unpack("<I", struct.pack("<f", x))[0]
LOG2E = 1.4426950408889634
INV2PI = 0.15915494309189535
C_SCALE = 0.25 * LOG2E

WS_Q = 0x000000; WS_K = 0x200000; WS_V = 0x400000; WS_O = 0x600000
WS_UT = 0x800000
WS_WOF = 0xA00000
FS = 8
WS_F1 = 0xA80000
WS_F2 = 0xAC0000
WS_F3 = 0xB40000
WS_FU = 0xB50000
WS_EP = 0xB90000
WS_TOTAL = 0xBA0000
WS_PROF = 0x1000000
SP = dict(u=64, lar=66, aim=68, cre=70, cim=72, ldt=74, dsk=76, x=78, wqkv=80, wo=82, out=84, dbg=86, ws=88)
sWS = 44
WSRD = f"s[{sWS}:{sWS+3}]"
sT = 90
vL16 = 1
vE = 127

SLOT = 28672; NSLOT = 3; AHEAD = 2
L_TA = 86016; L_TBO = 11088; L_TCH = 27984
L_T = 143360
L_CNT = 147968
C_G = L_CNT; C_CV = L_CNT + 4; C_WO = L_CNT + 8; C_KR = L_CNT + 12
def C_RDY(c): return L_CNT + 16 + 4*c
def C_DONE(c): return L_CNT + 48 + 4*c
C_FU = L_CNT + 80; C_F1 = L_CNT + 84; C_F2 = L_CNT + 88; C_ISS = L_CNT + 92; C_T = L_CNT + 96; C_GU = L_CNT + 100; C_GT = L_CNT + 104; C_OWN = L_CNT + 108; C_OWN2 = L_CNT + 112; C_PAR = L_CNT + 116; C_GT2 = L_CNT + 120; C_LAND = L_CNT + 128
L_PAR = 57344
L_KREV = 148480; KREV_SZ = 7680
L_UTL = 57344 + 4096
L_WOT = 86016
L_UC = 57344; UC_RHO = 4160; UC_CH = 16640
L_PART = 90624
L_QS = 49152
L_SCR = 131072
L_OT = 0
L_PC = 32768

class DSQ:
    def __init__(self, A): self.A = A; self.q = []
    def issue(self, tag): self.q.append(tag)
    def wait(self, tag):
        if tag not in self.q: return
        i = len(self.q) - 1 - self.q[::-1].index(tag)
        n = len(self.q) - 1 - i
        assert n <= 15, n
        self.A(f"s_waitcnt lgkmcnt({n})")
        self.q = self.q[i+1:]
    def room(self):
        if len(self.q) >= 15: self.wait(self.q[0])
    def drain(self):
        self.A("s_waitcnt lgkmcnt(0)"); self.q = []

def stamp(A, k):
    if DBG and k in DBGMAP:
        j = DBGMAP[k]
        A("s_memtime s[48:49]")
        A("s_memrealtime s[50:51]")
        A("s_waitcnt lgkmcnt(0)")
        A(f"v_writelane_b32 v125, s48, {2*j}")
        A(f"v_writelane_b32 v125, s50, {2*j+1}")
    if PROF:
        A("s_memtime s[48:49]")
        A("s_waitcnt lgkmcnt(0)")
        A(f"v_writelane_b32 v125, s48, {k}")

def write_stamps(A):
    if not PROF: return
    A("s_memrealtime s[40:41]")
    A("s_waitcnt lgkmcnt(0)")
    A(f"v_writelane_b32 v125, s40, 62")
    A(f"v_writelane_b32 v125, s91, 63")
    A(f"s_add_u32 s92, s{SP['ws']}, {WS_PROF}")
    A(f"s_addc_u32 s93, s{SP['ws']+1}, 0")
    A("s_mov_b32 s94, 0x200000")
    A("s_mov_b32 s95, 0x00020000")
    A("s_lshl_b32 s42, s2, 4"); A("s_add_u32 s42, s42, s3"); A("s_lshl_b32 s42, s42, 8")
    A("v_lshlrev_b32 v16, 2, v0")
    A("buffer_store_dword v125, v16, s[92:95], s42 offen")
    A("s_waitcnt vmcnt(0)")

def poll(A, label, vaddr, soff, mask_lo, vtmp, sleep=4):
    A(f"s_mov_b32 s30, {mask_lo}")
    A("s_mov_b32 s31, 0")
    A("s_mov_b64 exec, s[30:31]")
    A("s_mov_b32 s29, 0")
    A.label(label)
    A(f"buffer_load_dword v{vtmp}, v{vaddr}, {WSRD}, s{soff} offen sc1")
    A("s_add_u32 s29, s29, 1")
    A("s_waitcnt vmcnt(0)")
    A(f"v_cmp_ne_u32 vcc, s{sT}, v{vtmp}")
    A("s_cmp_gt_u32 s29, 0x10000")
    A(f"s_cbranch_scc1 {label}_x")
    A(f"s_cbranch_vccz {label}_x")
    A(f"s_sleep {sleep}")
    A(f"s_branch {label}")
    A.label(label + "_x")
    A("s_mov_b64 exec, -1")

def check_or_poll(A, label, vaddr, soff, mask_lo, vflag):
    A(f"s_mov_b32 s30, {mask_lo}")
    A("s_mov_b32 s31, 0")
    A(f"v_cmp_ne_u32 vcc, s{sT}, v{vflag}")
    A("s_nop 1")
    A("s_and_b64 vcc, vcc, s[30:31]")
    A(f"s_cbranch_vccz {label}_ok")
    poll(A, label, vaddr, soff, mask_lo, vflag)
    A.label(label + "_ok")

def flag_store(A, soff, vtmp, vzero):
    A(f"v_mov_b32 v{vtmp}, s{sT}")
    A(f"v_mov_b32 v{vzero}, 0")
    A("s_mov_b64 exec, 1")
    A(f"buffer_store_dword v{vtmp}, v{vzero}, {WSRD}, s{soff} offen sc1")
    A("s_mov_b64 exec, -1")

def get_tag(A, vt=126, vd=None):
    L = A.newlabel("GT")
    A(f"v_mov_b32 v{vt}, {C_T}")
    A("s_mov_b32 s43, 0")
    A.label(L)
    A(f"ds_read_b32 v{vE}, v{vt}")
    A("s_add_u32 s43, s43, 1")
    A("s_waitcnt lgkmcnt(0)")
    A(f"v_readfirstlane_b32 s{sT}, v{vE}")
    A("s_cmp_gt_u32 s43, 0x80000")
    A(f"s_cbranch_scc1 {L}_x")
    A(f"s_cmp_eq_u32 s{sT}, 0")
    A(f"s_cbranch_scc1 {L}")
    A.label(L + "_x")

def make_tag(A):
    A(f"v_readfirstlane_b32 s{sT}, v{vE}")
    A("s_nop 3")
    A(f"s_mul_i32 s{sT}, s{sT}, 0x9e3779b1")
    A(f"s_add_u32 s{sT}, s{sT}, 0x7f4a7c15")
    A(f"s_or_b32 s{sT}, s{sT}, 1")
    A(f"v_mov_b32 v{vE}, s{sT}")
    A(f"v_mov_b32 v126, {C_T}")
    A(f"ds_write_b32 v126, v{vE}")

def gsync(A, cnt_addr, target, vt):
    A("s_waitcnt lgkmcnt(0)")
    lsig(A, cnt_addr, vt)
    lwait(A, cnt_addr, target, vt, sleep=1)

def lsig(A, addr, vt):
    A(f"v_mov_b32 v{vt}, {addr}")
    A(f"v_mov_b32 v{vt+1}, 1")
    A("s_mov_b64 exec, 1")
    A(f"ds_add_u32 v{vt}, v{vt+1}")
    A("s_mov_b64 exec, -1")

def lwait(A, addr, target, vt, sleep=0):
    L = A.newlabel("LW")
    A(f"v_mov_b32 v{vt}, {addr}")
    A("s_mov_b32 s43, 0")
    A.label(L)
    A(f"ds_read_b32 v{vt+1}, v{vt}")
    A("s_add_u32 s43, s43, 1")
    A("s_waitcnt lgkmcnt(0)")
    A(f"v_readfirstlane_b32 s42, v{vt+1}")
    A("s_cmp_gt_u32 s43, 0x80000")
    A(f"s_cbranch_scc1 {L}_x")
    A(f"s_cmp_ge_u32 s42, {target}")
    if sleep:
        A(f"s_cbranch_scc1 {L}_x")
        A(f"s_sleep {sleep}")
        A(f"s_branch {L}")
    else:
        A(f"s_cbranch_scc0 {L}")
    A.label(L + "_x")

def merge(*chains):
    out = []; idx = [0] * len(chains)
    while any(idx[i] < len(chains[i]) for i in range(len(chains))):
        for i, ch in enumerate(chains):
            if idx[i] < len(ch):
                out.append(ch[idx[i]]); idx[i] += 1
    return out

class Rec:
    def __init__(self): self.L = []
    def __call__(self, s): self.L.append(s)

def chan_pair(A, dst, tmp):
    A(f"s_and_b32 s{dst}, s2, 7"); A(f"s_lshl_b32 s{dst}, s{dst}, 5"); A(f"s_lshr_b32 s{tmp}, s2, 3")
    A(f"s_add_u32 s{dst}, s{dst}, s{tmp}"); A(f"s_lshl_b32 s{dst}, s{dst}, 1")

def ka_wait(A):
    A("s_waitcnt lgkmcnt(0)")
    if PROF: A("s_mov_b32 s91, s38")
    srd(A, sWS, SP['ws'], WS_TOTAL)

def p1_ids(A):
    A("s_and_b32 s17, s2, 7")
    A("s_lshr_b32 s18, s2, 3")
    A("s_and_b32 s12, s17, 3")
    A("s_lshl_b32 s12, s12, 2")
    A("s_and_b32 s19, s18, 3")
    A("s_add_u32 s12, s12, s19")
    A("s_lshr_b32 s13, s17, 2")
    A("s_lshl_b32 s13, s13, 3")
    A("s_lshr_b32 s19, s18, 2")
    A("s_add_u32 s13, s13, s19")

def conv_part(A, p, vUA, vKB0, vKB1, ACC0, ACC1):
    ks = list({0: range(0, 24), 1: range(24, 48), 2: range(48, 80), 3: range(80, 128)}[p])
    q = DSQ(A)
    NB = 4
    FA, FB0, FB1 = 8, 24, 40
    def rd(i):
        k = ks[i]; b = i % NB
        A(f"ds_read_b64 {v(FA+4*b,2)}, v{vUA} offset:{32*k}"); q.issue(("a0", i))
        A(f"ds_read_b64 {v(FA+4*b+2,2)}, v{vUA} offset:{32*k+8}"); q.issue(("a1", i))
        off = (k//2)*80 + (k%2)*32
        A(f"ds_read_b128 {v(FB1+4*b,4)}, v{vKB1} offset:{off}"); q.issue(("b1", i))
        if k < 64:
            A(f"ds_read_b128 {v(FB0+4*b,4)}, v{vKB0} offset:{off}"); q.issue(("b0", i))
    n = len(ks)
    for i in range(min(NB-1, n)): rd(i)
    first0 = first1 = True
    for i in range(n):
        if i + NB - 1 < n: rd(i + NB - 1)
        k = ks[i]; b = i % NB
        q.wait(("b1", i))
        A(f"v_mfma_f32_32x32x16_bf16 {v(ACC1,16)}, {v(FA+4*b,4)}, {v(FB1+4*b,4)}, {'0' if first1 else v(ACC1,16)}"); first1 = False
        if k < 64:
            q.wait(("b0", i))
            A(f"v_mfma_f32_32x32x16_bf16 {v(ACC0,16)}, {v(FA+4*b,4)}, {v(FB0+4*b,4)}, {'0' if first0 else v(ACC0,16)}"); first0 = False

vY = [90, 91, 126, 127]

def p1_loader(A):
    vDX, vDX1, vDW = 2, 3, 5
    A("s_sub_u32 s15, s3, 4")
    A("s_setprio 3")
    A("v_lshrrev_b32 v9, 3, v0")
    A("v_lshrrev_b32 v10, 1, v9")
    A("v_xor_b32 v10, v10, v0")
    A("v_and_b32 v10, 7, v10")
    A("v_lshlrev_b32 v10, 4, v10")
    A(f"v_lshl_add_u32 v{vDX}, v9, 10, v10")
    A(f"v_xor_b32 v{vDX1}, 64, v{vDX}")
    A("s_lshl_b32 s20, s12, 17")
    A("s_lshl_b32 s17, s15, 14")
    A("s_add_u32 s20, s20, s17")
    A("s_lshl_b32 s21, s13, 6")
    A("s_lshl_b32 s22, s15, 11")
    A("s_lshl_b32 s23, s15, 10")
    A("s_add_u32 s23, s23, 16384")
    A("s_lshr_b32 s25, s2, 5")
    A("s_lshr_b32 s17, s2, 3")
    A("s_and_b32 s17, s17, 3")
    A("s_lshl_b32 s17, s17, 1")
    A("s_add_u32 s25, s25, s17")
    A("s_waitcnt lgkmcnt(0)")
    srd(A, 4, SP['x'], 2048*512*2)
    srd(A, 8, SP['wqkv'], 512*1536*2)
    def issue_x(c):
        slot = (c % NSLOT) * SLOT
        A(f"s_add_u32 s26, s25, {c}")
        A("s_and_b32 s26, s26, 7")
        A(f"s_lshl_b32 s24, s26, 7")
        A(f"s_add_u32 s24, s24, s20")
        A(f"s_add_u32 m0, s22, {slot}")
        A(f"s_mul_i32 s27, s26, {64*3072}")
        A(f"buffer_load_dwordx4 v{vDX}, s[4:7], s24 offen lds")
        A(f"s_add_u32 m0, s22, {slot + 1024}")
        A(f"s_add_u32 s24, s24, 8192")
        A(f"buffer_load_dwordx4 v{vDX1}, s[4:7], s24 offen lds")
    def issue_w(c, nw):
        slot = (c % NSLOT) * SLOT
        A(f"s_add_u32 m0, s23, {slot}")
        A(f"s_add_u32 s27, s27, s21")
        A(f"buffer_load_dwordx4 v{vDW}, s[8:11], s27 offen lds")
        if nw == 2:
            A(f"s_add_u32 m0, s23, {slot + 8192}")
            A("s_nop 0")
            A(f"buffer_load_dwordx4 v{vDW+1}, s[8:11], s27 offen lds")
    def wsetup():
        A("s_lshl_b32 s17, s15, 6")
        A("s_movk_i32 s18, 3072")
        A("s_mov_b32 s19, 43691")
        for i in range(2):
            A(f"v_add_u32 v9, s17, v0")
            if i: A(f"v_add_u32 v9, 512, v9")
            A("v_mul_u32_u24 v10, s19, v9")
            A("v_lshrrev_b32 v10, 19, v10")
            A("v_mul_u32_u24 v11, 12, v10")
            A("v_sub_u32 v11, v9, v11")
            A("v_lshrrev_b32 v12, 2, v10")
            A("v_and_b32 v12, 2, v12")
            A("v_xor_b32 v11, v11, v12")
            A("v_lshrrev_b32 v12, 2, v11")
            A("v_and_b32 v11, 3, v11")
            A("v_lshlrev_b32 v11, 4, v11")
            A("v_lshl_add_u32 v11, v12, 10, v11")
            A(f"v_mad_u32_u24 v{vDW+i}, v10, s18, v11")
    def gtab():
        A("s_getpc_b64 s[32:33]")
        L = A.newlabel("CPC"); A.label(L)
        A(f"s_add_u32 s32, s32, GTAB-{L}")
        A("s_addc_u32 s33, s33, 0")
        A("s_and_b32 s17, s15, 3"); A("s_lshl_b32 s17, s17, 11")
        A("v_lshlrev_b32 v14, 5, v0")
        A("v_add_u32 v14, s17, v14")
        A("global_load_dwordx4 v[96:99], v14, s[32:33]")
        A("global_load_dwordx4 v[100:103], v14, s[32:33] offset:16")
    def ut_loads():
        A("buffer_load_dwordx4 v[108:111], v117, s[32:35], 0 offen sc1")
        A("buffer_load_dwordx4 v[112:115], v116, s[32:35], 0 offen sc1")
        A("buffer_load_dwordx4 v[120:123], v119, s[32:35], 0 offen sc1")
    def ut_prep():
        chan_pair(A, 14, 17)
        A("s_lshr_b32 s16, s15, 2")
        A("s_add_u32 s17, s14, s16")
        A("s_lshl_b32 s17, s17, 12")
        A(f"s_add_u32 s17, s17, {WS_UT}")
        ka_wait(A)
        A(f"s_add_u32 s32, s{SP['ws']}, s17"); A(f"s_addc_u32 s33, s{SP['ws']+1}, 0")
        A("s_mov_b32 s34, 4096"); A("s_mov_b32 s35, 0x00020000")
        A("s_and_b32 s19, s15, 3"); A("s_lshl_b32 s19, s19, 10")
        A(f"v_add_u32 v116, s19, v{vL16}")
        A("v_subrev_u32 v117, 16, v116")
        A("v_cmp_eq_u32 vcc, 0, v116")
        A("v_mov_b32 v118, 4096")
        A("s_nop 0")
        A("v_cndmask_b32 v117, v117, v118, vcc")
        A("v_mov_b32 v119, 4096")
        A(f"v_mov_b32 v120, {255*16}")
        A("v_cmp_eq_u32 vcc, 3, v0")
        A("s_nop 1")
        A("v_cndmask_b32 v119, v119, v120, vcc")
    def loop(nw):
        per = 2 + nw
        issue_w(0, nw)
        issue_x(1); issue_w(1, nw)
        for c in range(8):
            last = min(7, c + 1)
            if c != 7: A(f"s_waitcnt vmcnt({per * (last - c)})")
            A("s_barrier")
            if c + AHEAD < 8:
                issue_x(c + AHEAD); issue_w(c + AHEAD, nw)
            if c == 5: ut_prep()
            if c == 6:
                L = A.newlabel("CVC")
                A(f"v_mov_b32 v30, {C_FU}")
                A("ds_read_b32 v31, v30")
                A("s_waitcnt lgkmcnt(0)")
                A("v_readfirstlane_b32 s40, v31")
                A("s_nop 0")
                A("s_cmp_eq_u32 s40, 0")
                A(f"s_cbranch_scc1 {L}")
                ut_loads()
                A("s_waitcnt vmcnt(3)")
                A(f"s_branch {L}b")
                A.label(L)
                A("s_waitcnt vmcnt(0)")
                A.label(L + "b")
    issue_x(0)
    wsetup()
    A("s_cmp_ge_u32 s15, 4")
    A("s_cbranch_scc1 P1_LOADER1")
    loop(2)
    A("s_branch P1_LOADER_END")
    A.label("P1_LOADER1")
    loop(1)
    A.label("P1_LOADER_END")
    A("s_setprio 1")
    stamp(A, 28)
    if os.environ.get("X_P1ONLY"): A("s_branch K_FIN")
    A("s_cmp_lg_u32 s40, 0")
    A("s_cbranch_scc1 CV_HAVE")
    lwait(A, C_FU, 1, 72, sleep=1)
    ut_loads()
    A.label("CV_HAVE")
    get_tag(A, vt=30)
    def copies(D, dest):
        T0, T1, T2 = 44, 48, 52
        for j in range(4): A(f"v_alignbit_b32 v{T0+j}, v{D+j+1}, v{D+j}, 16")
        for j in range(4): A(f"v_mov_b32 v{T1+j}, v{D+1+j}")
        for j in range(4): A(f"v_alignbit_b32 v{T2+j}, v{D+j+2}, v{D+j+1}, 16")
        A(f"ds_write_b128 v{dest}, {v(T0,4)}")
        A(f"ds_write_b128 v{dest}, {v(T1,4)} offset:{UC_RHO}")
        A(f"ds_write_b128 v{dest}, {v(T2,4)} offset:{2*UC_RHO}")
        A(f"ds_write_b128 v{dest}, {v(D+2,4)} offset:{3*UC_RHO}")
    A("s_lshr_b32 s16, s15, 2")
    A(f"s_mul_i32 s21, s16, {UC_CH}")
    A(f"s_add_u32 s21, s21, {L_UC + 48}")
    A("v_add_u32 v19, s21, v116")
    A(f"s_mul_i32 s23, s16, {KREV_SZ}")
    A(f"s_add_u32 s23, s23, {L_KREV}")
    A("v_and_b32 v9, 31, v0")
    A("v_lshrrev_b32 v10, 5, v0")
    A("v_and_b32 v11, 3, v9")
    A(f"v_mul_u32_u24 v11, {UC_RHO}, v11")
    A("v_lshrrev_b32 v12, 2, v9")
    A("v_lshl_add_u32 v11, v12, 3, v11")
    A("v_lshl_add_u32 v11, v10, 4, v11")
    A(f"s_mul_i32 s24, s16, {UC_CH}")
    A(f"s_add_u32 s24, s24, {L_UC}")
    A("v_add_u32 v4, s24, v11")
    A("v_sub_u32 v11, 63, v9")
    A("v_mul_u32_u24 v11, 80, v11")
    A("v_lshl_add_u32 v11, v10, 4, v11")
    A("v_add_u32 v5, s23, v11")
    A("v_subrev_u32 v6, 2560, v5")
    A("s_and_b32 s24, s15, 3")
    A(f"s_mul_i32 s25, s16, 28672")
    A("s_lshl_b32 s26, s24, 12")
    A("s_add_u32 s25, s25, s26")
    A(f"s_add_u32 s25, s25, {L_PART}")
    A(f"v_add_u32 v7, s25, v{vL16}")
    A("s_waitcnt vmcnt(0)")
    copies(108, 19)
    A("s_cmp_eq_u32 s19, 0")
    A("s_cbranch_scc0 CV_NOX2")
    for j in range(4): A(f"v_mov_b32 v{56+j}, v{120+j}")
    for j in range(4): A(f"v_mov_b32 v{60+j}, 0")
    A(f"v_mov_b32 v30, {259*16}")
    A("v_cmp_eq_u32 vcc, 3, v0")
    A("s_sub_u32 s21, s21, 48")
    A(f"v_cndmask_b32 v30, v{vL16}, v30, vcc")
    A("v_add_u32 v30, s21, v30")
    A("s_mov_b64 exec, 15")
    copies(56, 30)
    A("s_mov_b64 exec, -1")
    A.label("CV_NOX2")
    gsync(A, C_CV, 8, 8)
    stamp(A, 30)
    ACC0, ACC1 = 56, 72
    for p in range(4):
        if p < 3:
            A(f"s_cmp_eq_u32 s24, {p}")
            A(f"s_cbranch_scc0 CV_P{p+1}")
        conv_part(A, p, 4, 5, 6, ACC0, ACC1)
        A("s_nop 15")
        for qd in range(4):
            A(f"ds_write_b128 v7, {v(ACC1+4*qd,4)} offset:{qd*1024}")
        if p < 3:
            for qd in range(4):
                A(f"ds_write_b128 v7, {v(ACC0+4*qd,4)} offset:{16384 + qd*1024}")
            A("s_branch CV_PE")
            A.label(f"CV_P{p+1}")
    A.label("CV_PE")
    stamp(A, 31)
    gsync(A, C_CV, 16, 8)
    stamp(A, 32)
    A("s_lshl_b32 s26, s24, 10")
    A(f"s_add_u32 s26, s26, {L_PART}")
    A(f"v_add_u32 v4, s26, v{vL16}")
    A("s_cmp_eq_u32 s16, 0")
    A("s_cbranch_scc1 CV_F0")
    for c in range(2):
        for p in range(4):
            A(f"ds_read_b128 {v(16+16*c+4*p,4)}, v4 offset:{c*28672 + p*4096}")
    A("s_waitcnt lgkmcnt(0)")
    for c in range(2):
        for r in range(4):
            b_ = 16 + 16*c + r
            A(f"v_add_f32 v{b_}, v{b_}, v{b_+4}"); A(f"v_add_f32 v{b_+8}, v{b_+8}, v{b_+12}")
        for r in range(4):
            b_ = 16 + 16*c + r
            A(f"v_add_f32 v{b_}, v{b_}, v{b_+8}")
    A("s_branch CV_F1")
    A.label("CV_F0")
    for c in range(2):
        for p in range(3):
            A(f"ds_read_b128 {v(16+16*c+4*p,4)}, v4 offset:{c*28672 + 16384 + p*4096}")
    A("s_waitcnt lgkmcnt(0)")
    for c in range(2):
        for r in range(4):
            b_ = 16 + 16*c + r
            A(f"v_add_f32 v{b_}, v{b_}, v{b_+4}")
        for r in range(4):
            b_ = 16 + 16*c + r
            A(f"v_add_f32 v{b_}, v{b_}, v{b_+8}")
    A.label("CV_F1")
    for r in range(4):
        A(f"v_cvt_pk_bf16_f32 v{vY[r]}, v{16+r}, v{32+r}")
    A("s_lshl_b32 s36, s16, 21")
    A("s_lshl_b32 s25, s24, 14")
    A("s_add_u32 s36, s36, s25")
    A("s_lshl_b32 s25, s14, 1")
    A("s_add_u32 s36, s36, s25")
    A("s_setprio 0")
    stamp(A, 33)

def p1_compute(A):
    vFR, vACC, vXA, vWA = 8, 64, 112, 118
    A("v_and_b32 v4, 15, v0")
    A("v_lshrrev_b32 v5, 4, v0")
    A("v_lshrrev_b32 v6, 1, v4")
    A("v_xor_b32 v6, v6, v5")
    A("v_lshlrev_b32 v6, 4, v6")
    A("v_lshl_add_u32 v6, v4, 7, v6")
    A("s_lshr_b32 s17, s3, 1")
    A("s_lshl_b32 s17, s17, 13")
    A(f"v_add_u32 v{vXA}, s17, v6")
    A(f"v_xor_b32 v{vXA+1}, 64, v{vXA}")
    for st in (1, 2):
        A(f"v_add_u32 v{vXA+2*st}, {st*2*SLOT}, v{vXA}")
        A(f"v_add_u32 v{vXA+2*st+1}, {st*2*SLOT}, v{vXA+1}")
    A("v_lshrrev_b32 v6, 2, v4")
    A("v_lshl_add_u32 v6, v5, 3, v6")
    A("v_mul_u32_u24 v6, 192, v6")
    A("v_and_b32 v7, 3, v4")
    A("v_lshl_add_u32 v6, v7, 3, v6")
    A("s_and_b32 s17, s3, 1")
    A("v_xor_b32 v7, s17, v5")
    A("v_and_b32 v7, 1, v7")
    A(f"v_lshl_add_u32 v{vWA}, v7, 5, v6")
    A(f"v_add_u32 v{vWA+1}, {2*SLOT}, v{vWA}")
    A(f"v_add_u32 v{vWA+2}, {4*SLOT}, v{vWA}")
    A("s_and_b32 s18, s3, 1")
    A("s_lshl_b32 s19, s13, 1")
    A("s_add_u32 s18, s18, s19")
    A(f"s_lshl_b32 s16, s18, {5+FS}")
    A("s_lshl_b32 s18, s18, 16")
    A("s_lshr_b32 s19, s3, 1")
    A("s_lshl_b32 s24, s12, 1")
    A("s_add_u32 s24, s24, s19")
    A(f"s_lshl_b32 s25, s24, {FS}")
    A("s_add_u32 s16, s16, s25")
    A(f"s_add_u32 s16, s16, {WS_F1}")
    A("s_lshl_b32 s19, s24, 11")
    A("s_add_u32 s18, s18, s19")
    A(f"s_mov_b32 s17, 0x{f32bits(C_SCALE):08x}")
    A("s_setprio 3")
    q = DSQ(A)
    def fr(buf): return vFR + 28 * buf
    def rd_list(step):
        c, ks2 = step // 2, step % 2
        slot = c % NSLOT
        st, so = slot // 2, (slot % 2) * SLOT
        b = fr(step % 2)
        L = []
        for hf in range(2):
            L.append((f"ds_read_b64_tr_b16 {v(b+16+2*hf,2)}, v{vWA+st} offset:{so + 16384 + (32*ks2+4*hf)*192}", ("w", step, 0, hf)))
        for ti in range(4):
            L.append((f"ds_read_b128 {v(b+4*ti,4)}, v{vXA+2*st+ks2} offset:{so + ti*2048}", ("x", step, ti)))
        for gi in range(1, 3):
            for hf in range(2):
                L.append((f"ds_read_b64_tr_b16 {v(b+16+4*gi+2*hf,2)}, v{vWA+st} offset:{so + 16384 + (32*ks2+4*hf)*192 + 64*gi}", ("w", step, gi, hf)))
        return L
    def rd(step):
        for ins, tag in rd_list(step):
            A(ins); q.issue(tag)
    def mm(step, nxt=None):
        b = fr(step % 2)
        R = rd_list(nxt) if nxt is not None else []
        if os.environ.get("X_BURST"):
            for ins, tag in R:
                A(ins); q.issue(tag)
            R = []
        n = 0
        for gi in range(3):
            for ti in range(4):
                acc = vACC + (gi*4 + ti)*4
                X = v(b+4*ti, 4); W = v(b+16+4*gi, 4)
                cc = "0" if step == 0 else v(acc, 4)
                if gi == 0: q.wait(("x", step, ti))
                if ti == 0: q.wait(("w", step, gi, 1))
                if gi < 2: A(f"v_mfma_f32_16x16x32_bf16 {v(acc,4)}, {W}, {X}, {cc}")
                else:      A(f"v_mfma_f32_16x16x32_bf16 {v(acc,4)}, {X}, {W}, {cc}")
                if n < len(R):
                    A(R[n][0]); q.issue(R[n][1])
                n += 1
    kg_scalars(A, 3, 20, False)
    A(f"s_mul_i32 s21, s22, {L_TCH}")
    A("s_lshl_b32 s23, s24, 8")
    A("s_add_u32 s21, s21, s23")
    A(f"s_add_u32 s21, s21, {L_TA + L_TBO}")
    A("v_lshlrev_b32 v8, 2, v0")
    A("v_add_u32 v8, s21, v8")
    lwait(A, C_PAR, 4, 22, sleep=1)
    kg_read(A, 22, 24, 2, 21)
    A("s_cmp_eq_u32 s22, 0")
    A("s_cselect_b32 s21, 16, 0")
    A("s_lshl_b32 s26, s26, s21"); A("s_and_b32 s26, s26, 0xffff0000")
    kg_setup(A, 26, 21, False)
    kg_bside(A, 8)
    A("s_waitcnt lgkmcnt(0)")
    lsig(A, C_G, 2)
    stamp(A, 9)
    A("v_and_b32 v80, 15, v0")
    A("v_lshrrev_b32 v81, 4, v0")
    A("v_lshrrev_b32 v82, 2, v80")
    A("v_lshl_add_u32 v82, v81, 3, v82")
    A("v_lshlrev_b32 v84, 5, v82")
    A("v_lshlrev_b32 v82, 7, v82")
    A("v_and_b32 v83, 3, v80")
    A("v_lshl_add_u32 v82, v83, 3, v82")
    A("v_lshl_add_u32 v84, v83, 3, v84")
    A(f"v_add_u32 v84, {L_WOT}, v84")
    A("s_lshl_b32 s20, s3, 5")
    A(f"s_add_u32 s20, s20, {L_UTL}")
    A("v_add_u32 v82, s20, v82")
    A("v_lshlrev_b32 v83, 12, v80")
    A("v_lshl_add_u32 v83, v81, 4, v83")
    A("s_and_b32 s20, s2, 7"); A("s_lshl_b32 s20, s20, 2"); A("s_add_u32 s20, s20, s3")
    A(f"s_lshl_b32 s21, s20, {5+FS}")
    A("s_lshl_b32 s20, s20, 16")
    A("s_lshr_b32 s22, s2, 3")
    A("s_lshl_b32 s23, s22, 7")
    A("s_add_u32 s20, s20, s23")
    A(f"s_add_u32 s20, s20, {WS_UT}")
    A(f"s_lshl_b32 s23, s22, {FS}")
    A("s_add_u32 s21, s21, s23")
    A(f"s_add_u32 s21, s21, {WS_FU}")
    A("s_lshr_b32 s24, s2, 3"); A(f"s_lshl_b32 s22, s24, {3+FS}"); A("s_lshl_b32 s24, s24, 14")
    A("s_and_b32 s19, s2, 7"); A(f"s_lshl_b32 s23, s19, {FS}"); A("s_lshl_b32 s19, s19, 11")
    A("s_add_u32 s24, s24, s19")
    A(f"s_add_u32 s24, s24, {WS_WOF}")
    A("s_add_u32 s22, s22, s23")
    A(f"s_add_u32 s22, s22, {WS_F3}")
    lwait(A, C_GU, 4, 86, sleep=1)
    for p in range(2):
        for hf in range(2):
            A(f"ds_read_b64_tr_b16 {v(64+4*p+2*hf,2)}, v82 offset:{(32*p+4*hf)*128}")
    for s_ in range(2):
        for hf in range(2):
            A(f"ds_read_b64_tr_b16 {v(72+4*s_+2*hf,2)}, v84 offset:{(32*s_+4*hf)*32}")
    A("s_waitcnt lgkmcnt(0)")
    stamp(A, 25)
    A(f"buffer_store_dwordx4 v[64:67], v83, {WSRD}, s20 offen sc1")
    A(f"buffer_store_dwordx4 v[68:71], v83, {WSRD}, s20 offen offset:64 sc1")
    A("s_cmp_eq_u32 s3, 0")
    A("s_cbranch_scc0 PC_NW")
    A(f"buffer_store_dwordx4 v[72:75], v{vL16}, {WSRD}, s24 offen sc1")
    A(f"buffer_store_dwordx4 v[76:79], v{vL16}, {WSRD}, s24 offen offset:1024 sc1")
    A.label("PC_NW")
    get_tag(A)
    stamp(A, 19)
    for c in range(8):
        A("s_barrier")
        if c in (0, 7): stamp(A, 10 if c == 0 else 17)
        if c == int(os.environ.get("CFL", 1)):
            A("s_waitcnt vmcnt(0)")
            flag_store(A, 21, 2, 3)
            A("s_cmp_eq_u32 s3, 0")
            A("s_cbranch_scc0 PC_NF")
            flag_store(A, 22, 2, 3)
            A.label("PC_NF")
        if c == 0: rd(0)
        else: mm(2*c - 1, 2*c)
        mm(2*c, 2*c + 1)
        q.drain()
    lsig(A, C_DONE(7), 4)
    mm(15)
    stamp(A, 1)
    T = vFR
    n = 0
    for gi, base in ((1, WS_K), (2, WS_V), (0, WS_Q)):
        if gi == 0:
            for ti in range(4):
                for r in range(4):
                    A(f"v_mul_f32 v{vACC+ti*4+r}, s17, v{vACC+ti*4+r}")
        for pair in range(2):
            a0 = vACC + (gi*4 + 2*pair)*4; a1 = a0 + 4
            t = T + 4 * n; n += 1
            A(f"v_cvt_pk_bf16_f32 v{t}, v{a0}, v{a0+1}")
            A(f"v_cvt_pk_bf16_f32 v{t+1}, v{a0+2}, v{a0+3}")
            A(f"v_cvt_pk_bf16_f32 v{t+2}, v{a1}, v{a1+1}")
            A(f"v_cvt_pk_bf16_f32 v{t+3}, v{a1+2}, v{a1+3}")
            A(f"s_add_u32 s24, s18, {base + pair*1024}")
            A("s_nop 0")
            op = "v_permlane32_swap_b32" if gi == 2 else "v_permlane16_swap_b32"
            A(f"{op} v{t}, v{t+2}")
            A(f"{op} v{t+1}, v{t+3}")
            A("s_nop 1")
            A(f"buffer_store_dwordx4 {v(t,4)}, v{vL16}, {WSRD}, s24 offen sc1")
    stamp(A, 18)
    A("s_waitcnt vmcnt(0)")
    get_tag(A)
    flag_store(A, 16, 2, 3)
    lsig(A, C_OWN, 2)
    A("s_setprio 0")
    stamp(A, 2)
    if os.environ.get("X_P1ONLY"): A("s_branch K_FIN")

def cmul(A, D, X, S, T):
    A(f"v_pk_mul_f32 {v(T,2)}, {v(X,2)}, {v(S,2)} op_sel:[0,0] op_sel_hi:[1,0]")
    A(f"v_pk_fma_f32 {v(D,2)}, {v(X,2)}, {v(S,2)}, {v(T,2)} op_sel:[1,1,0] op_sel_hi:[0,1,1] neg_lo:[0,1,0]")

def fl(p): return f"{float(p)!r}" if p in (1, 2, 4) else f"0x{f32bits(float(p)):08x}"
def anchor(A, D, p, vt2, vw, tmp, conj=False):
    A(f"v_mul_f32 v{tmp}, {fl(p)}, v{vt2}")
    A(f"v_mul_f32 v{tmp+1}, {fl(p)}, v{vw}")
    A(f"v_exp_f32 v{tmp}, v{tmp}")
    A(f"v_fract_f32 v{tmp+1}, v{tmp+1}")
    A(f"v_cos_f32 v{D}, v{tmp+1}")
    A(f"v_sin_f32 v{D+1}, v{tmp+1}")
    A("s_nop 0")
    A(f"v_mul_f32 v{D}, v{D}, v{tmp}")
    if conj: A(f"v_mul_f32_e64 v{D+1}, -v{D+1}, v{tmp}")
    else: A(f"v_mul_f32 v{D+1}, v{D+1}, v{tmp}")

def kg_scalars(A, kw_sreg, s0, dsk):
    chan_pair(A, s0, s0+1)
    A(f"s_lshr_b32 s{s0+2}, s{kw_sreg}, 1")
    A(f"s_and_b32 s{s0+4}, s{kw_sreg}, 1")
    A(f"s_lshl_b32 s{s0+1}, s{s0}, 1")
    A(f"s_add_u32 s{s0+8}, s{SP['ldt']}, s{s0+1}"); A(f"s_addc_u32 s{s0+9}, s{SP['ldt']+1}, 0")
    A(f"s_load_dword s{s0+6}, s[{s0+8}:{s0+9}], 0")
    if dsk:
        A(f"s_add_u32 s{s0+10}, s{SP['dsk']}, s{s0+1}"); A(f"s_addc_u32 s{s0+11}, s{SP['dsk']+1}, 0")
        A(f"s_load_dword s{s0+7}, s[{s0+10}:{s0+11}], 0")

def kg_read(A, s_c, s_mh, narr, s_tmp):
    A(f"s_lshl_b32 s{s_tmp}, s{s_c}, 8")
    A(f"v_lshlrev_b32 v9, 1, v0")
    A(f"v_add_u32 v9, s{s_tmp}, v9")
    A(f"s_lshl_b32 s{s_tmp}, s{s_mh}, 7")
    A(f"s_add_u32 s{s_tmp}, s{s_tmp}, {L_PAR}")
    A(f"v_add_u32 v9, s{s_tmp}, v9")
    for i in range(narr):
        A(f"ds_read_u16 v{10+i}, v9 offset:{512*i}")
    A("s_waitcnt lgkmcnt(0)")

def kg_setup(A, s_ldt, s_tmp, full):
    vt2, vw, vY0, tmp = 16, 17, 18, 20
    A(f"s_mov_b32 s{s_tmp}, 0x{f32bits(LOG2E):08x}")
    A(f"v_mov_b32 v{tmp}, s{s_ldt}")
    A(f"v_lshlrev_b32 v10, 16, v10")
    A(f"v_mul_f32 v{tmp}, s{s_tmp}, v{tmp}")
    A(f"v_mul_f32 v10, s{s_tmp}, v10")
    A(f"v_exp_f32 v{tmp}, v{tmp}")
    A(f"v_exp_f32 v10, v10")
    A(f"v_lshlrev_b32 v11, 16, v11")
    A(f"v_cvt_pk_bf16_f32 v{tmp}, v{tmp}, v10")
    if full: A(f"v_lshlrev_b32 v12, 16, v12")
    A(f"v_and_b32 v10, 0xffff0000, v{tmp}")
    A(f"v_lshlrev_b32 v{tmp}, 16, v{tmp}")
    if full: A(f"v_lshlrev_b32 v13, 16, v13")
    A(f"v_mul_f32 v10, v10, v{tmp}")
    A(f"v_mul_f32 v11, v11, v{tmp}")
    A(f"v_mul_f32 v{vt2}, 0x{f32bits(-LOG2E):08x}, v10")
    A(f"v_mul_f32 v{vw}, 0x{f32bits(INV2PI):08x}, v11")
    if full:
        A(f"v_add_f32 v{tmp}, v{tmp}, v{tmp}")
        A(f"v_mul_f32 v{vY0}, v12, v{tmp}")
        A(f"v_mul_f32_e64 v{vY0+1}, -v13, v{tmp}")

def kg_bside(A, vaddr):
    vt2, vw = 16, 17
    X = [24, 26, 28, 30]; S16, S32 = 32, 34
    anchor(A, X[1], 8, vt2, vw, 36)
    A(f"v_mov_b32 v{X[0]}, 1.0"); A(f"v_mov_b32 v{X[0]+1}, 0")
    cmul(A, X[2], X[1], X[1], 36)
    cmul(A, X[3], X[1], X[2], 38)
    cmul(A, S32, X[2], X[2], 40)
    ch = [Rec() for _ in range(4)]
    for j in range(4):
        for b in range(j, 32, 4):
            p_ = 50 + 2*j + (b // 4) % 2
            ch[j](f"v_cvt_pk_bf16_f32 v{p_}, v{X[j]}, v{X[j]+1}")
            if b + 4 < 32: cmul(ch[j], X[j], X[j], S32, 42 + 2*j)
            ch[j](f"ds_write_b32 v{vaddr}, v{p_} offset:{b*528}")
    for ins in merge(*[c.L for c in ch]): A(ins)

def kg_aside(A, vaddr):
    vt2, vw, vY0 = 16, 17, 18
    F1, F256, F2, F4, Y, Z, W = 24, 26, 28, 30, 32, 34, 36
    r2, r3 = Rec(), Rec()
    anchor(r2, F1, 1, vt2, vw, 48, conj=True)
    anchor(r3, F256, 256, vt2, vw, 50, conj=True)
    for ins in merge(r2.L, r3.L): A(ins)
    cmul(A, F2, F1, F1, 48)
    cmul(A, Z, vY0, F256, 50)
    cmul(A, F4, F2, F2, 48)
    ay, az, aw = Rec(), Rec(), Rec()
    cnt = {}
    def put(ch, base, reg, row):
        n_ = cnt.get(base, 0); cnt[base] = n_ + 1
        p = base + n_ % 2
        ch(f"v_cvt_pk_bf16_f32 v{p}, v{reg}, v{reg+1}")
        ch(f"ds_write_b32 v{vaddr}, v{p} offset:{row*528}")
    put(ay, 60, vY0, 0)
    cmul(ay, Y, vY0, F1, 64); put(ay, 60, Y, 1)
    for r in range(2, 8):
        cmul(ay, Y, Y, F1, 64); put(ay, 60, Y, r)
    A(f"v_mov_b32 v{W}, v{Z}"); A(f"v_mov_b32 v{W+1}, v{Z+1}")
    put(aw, 68, W, 8)
    for r in (9, 10, 11):
        cmul(aw, W, W, F2, 70); put(aw, 68, W, r)
    V = 38
    cmul(az, Z, Z, F256, 66); put(az, 62, Z, 12)
    cmul(az, V, Z, F4, 72); put(az, 62, V, 13)
    cmul(az, Z, Z, F256, 66); put(az, 62, Z, 14)
    cmul(az, V, Z, F4, 72); put(az, 62, V, 15)
    for r in range(16, 21):
        cmul(az, Z, Z, F256, 66); put(az, 62, Z, r)
    for ins in merge(az.L, ay.L, aw.L): A(ins)

L_WOT = 57344 + 2048
def kgen_pre(A):
    A("s_sub_u32 s15, s3, 12")
    A("s_setprio 3")
    chan_pair(A, 14, 17)
    A("s_lshl_b32 s17, s14, 8")
    A("s_lshl_b32 s18, s15, 9")
    A("s_mov_b32 s40, -1"); A("s_mov_b32 s41, 0")
    A("v_lshrrev_b32 v14, 3, v0")
    A("v_lshlrev_b32 v14, 10, v14")
    A("v_and_b32 v13, 7, v0")
    A("v_lshl_add_u32 v14, v13, 4, v14")
    A("s_lshr_b32 s19, s2, 3"); A("s_lshl_b32 s19, s19, 16")
    A("s_lshl_b32 s16, s15, 14")
    A("s_add_u32 s19, s19, s16")
    A("s_and_b32 s16, s2, 7"); A("s_lshl_b32 s16, s16, 7")
    A("s_add_u32 s19, s19, s16")
    A("v_lshrrev_b32 v12, 1, v0")
    A("v_lshlrev_b32 v12, 10, v12")
    A("v_and_b32 v13, 1, v0")
    A("v_lshl_add_u32 v12, v13, 4, v12")
    ka_wait(A)
    A(f"s_mov_b32 s32, s{SP['lar']}"); A(f"s_mov_b32 s33, s{SP['lar']+1}")
    for mm_, nm in ((1, 'aim'), (2, 'cre'), (3, 'cim')):
        A(f"s_cmp_eq_u32 s15, {mm_}")
        A(f"s_cselect_b32 s32, s{SP[nm]}, s32"); A(f"s_cselect_b32 s33, s{SP[nm]+1}, s33")
    A(f"s_mov_b32 s34, {512*128*2}"); A("s_mov_b32 s35, 0x00020000")
    A(f"s_add_u32 m0, s18, {L_PAR}")
    A("s_mov_b64 exec, s[40:41]")
    A(f"buffer_load_dwordx4 v{vL16}, s[32:35], s17 offen lds")
    A("s_mov_b64 exec, -1")
    kg_scalars(A, 15, 20, True)
    A("s_getpc_b64 s[32:33]")
    A.label("KG_PC")
    A("s_add_u32 s32, s32, GTAB-KG_PC")
    A("s_addc_u32 s33, s33, 0")
    A("s_lshl_b32 s17, s15, 11")
    A("v_lshlrev_b32 v11, 5, v0")
    A("v_add_u32 v11, s17, v11")
    A("global_load_dwordx4 v[96:99], v11, s[32:33]")
    A("global_load_dwordx4 v[100:103], v11, s[32:33] offset:16")
    srd(A, 32, SP['u'], 2048*512*2)
    A(f"s_add_u32 m0, s17, {L_UTL}")
    A("s_nop 0")
    A("buffer_load_dwordx4 v14, s[32:35], s19 offen lds")
    A(f"s_add_u32 m0, s17, {L_UTL + 1024}")
    A("s_add_u32 s19, s19, 8192")
    A("buffer_load_dwordx4 v14, s[32:35], s19 offen lds")
    srd(A, 32, SP['wo'], 512*512*2)
    A("s_and_b32 s17, s2, 7"); A("s_lshl_b32 s17, s17, 16")
    A("s_lshl_b32 s19, s15, 14")
    A("s_add_u32 s17, s17, s19")
    A("s_lshr_b32 s19, s2, 3"); A("s_lshl_b32 s19, s19, 5")
    A("s_add_u32 s17, s17, s19")
    A(f"s_add_u32 m0, s18, {L_WOT}")
    A("s_mov_b64 exec, s[40:41]")
    A("buffer_load_dwordx4 v12, s[32:35], s17 offen lds")
    A("s_mov_b64 exec, -1")
    A("s_cmp_eq_u32 s15, 0")
    A("s_cbranch_scc0 KG_NE")
    A(f"s_mov_b32 s16, {WS_EP}")
    A("v_mov_b32 v9, 0")
    A("s_mov_b64 exec, 1")
    A(f"buffer_load_dword v{vE}, v9, {WSRD}, s16 offen sc1")
    A("s_mov_b64 exec, -1")
    A.label("KG_NE")

def kgen(A):
    A("s_mov_b32 s16, s22"); A("s_mov_b32 s18, s24"); A("s_mov_b32 s14, s20")
    A(f"s_mul_i32 s25, s16, {L_TCH}")
    A("s_lshl_b32 s23, s18, 8")
    A("s_add_u32 s25, s25, s23")
    A(f"s_add_u32 s25, s25, {L_TA}")
    A("v_lshlrev_b32 v15, 2, v0")
    A("v_add_u32 v15, s25, v15")
    A("s_cmp_eq_u32 s15, 0")
    A("s_cbranch_scc1 KG_WP")
    A("s_waitcnt vmcnt(5)")
    A.label("KG_WP")
    A("s_waitcnt vmcnt(6)")
    gsync(A, C_PAR, 4, 66)
    stamp(A, 24)
    kg_read(A, 16, 18, 4, 23)
    A("s_cmp_eq_u32 s16, 0")
    A("s_cselect_b32 s23, 16, 0")
    A("s_lshl_b32 s26, s26, s23"); A("s_and_b32 s26, s26, 0xffff0000")
    A("s_lshl_b32 s27, s27, s23"); A("s_and_b32 s27, s27, 0xffff0000")
    kg_setup(A, 26, 23, True)
    kg_aside(A, 15)
    A("s_waitcnt lgkmcnt(0)")
    lsig(A, C_G, 66)
    stamp(A, 21)
    A("s_waitcnt vmcnt(0)")
    A("s_cmp_eq_u32 s15, 0")
    A("s_cbranch_scc0 KG_NT")
    make_tag(A)
    A.label("KG_NT")
    A("s_waitcnt lgkmcnt(0)")
    lsig(A, C_GU, 86)
    A("v_and_b32 v9, 15, v0")
    A("v_lshrrev_b32 v10, 4, v0")
    A("v_mul_u32_u24 v11, 528, v9")
    A("v_lshl_add_u32 v11, v10, 4, v11")
    A(f"s_mul_i32 s25, s16, {L_TCH}")
    A(f"s_add_u32 s25, s25, {L_TA}")
    A(f"s_mul_i32 s23, s18, {16*528}")
    A("s_add_u32 s23, s23, s25")
    A("v_add_u32 v12, s23, v11")
    A(f"s_add_u32 s25, s25, {L_TBO}")
    A("v_add_u32 v13, s25, v11")
    A("s_lshl_b32 s25, s16, 11")
    A("s_lshl_b32 s23, s18, 10")
    A("s_add_u32 s25, s25, s23")
    A(f"s_add_u32 s25, s25, {L_T}")
    A("v_lshlrev_b32 v14, 8, v10")
    A("v_lshl_add_u32 v14, v9, 1, v14")
    A("v_add_u32 v14, s25, v14")
    A("s_cmp_eq_u32 s18, 0")
    A("s_cselect_b32 s27, s27, 0")
    A("v_mov_b32 v15, s27")
    lwait(A, C_G, 8, 86, sleep=1)
    stamp(A, 22)
    q = DSQ(A)
    def rd(s_):
        b = s_ % 4
        A(f"ds_read_b128 {v(16+4*b,4)}, v12 offset:{s_*64}"); q.issue(("a", s_))
        A(f"ds_read_b128 {v(32+4*b,4)}, v13 offset:{s_*64}"); q.issue(("b0", s_))
        A(f"ds_read_b128 {v(48+4*b,4)}, v13 offset:{16*528 + s_*64}"); q.issue(("b1", s_))
    for s_ in range(3): rd(s_)
    for s_ in range(8):
        if s_ + 3 < 8: rd(s_ + 3)
        b = s_ % 4
        q.wait(("b0", s_))
        A(f"v_mfma_f32_16x16x32_bf16 v[120:123], {v(16+4*b,4)}, {v(32+4*b,4)}, {'0' if s_==0 else 'v[120:123]'}")
        q.wait(("b1", s_))
        A(f"v_mfma_f32_16x16x32_bf16 v[4:7], {v(16+4*b,4)}, {v(48+4*b,4)}, {'0' if s_==0 else 'v[4:7]'}")
    A("s_nop 7")
    A("v_cmp_eq_u32 vcc, 0, v0")
    A("s_nop 1")
    A("v_cndmask_b32 v15, 0, v15, vcc")
    A("v_add_f32 v120, v120, v15")
    for ct, b_ in enumerate((120, 4)):
        A(f"v_cvt_pk_bf16_f32 v{16+2*ct}, v{b_}, v{b_+1}")
        A(f"v_cvt_pk_bf16_f32 v{17+2*ct}, v{b_+2}, v{b_+3}")
        A(f"ds_write_b16 v14, v{16+2*ct} offset:{32*ct}")
        A(f"ds_write_b16_d16_hi v14, v{16+2*ct} offset:{32*ct+64}")
        A(f"ds_write_b16 v14, v{17+2*ct} offset:{32*ct+128}")
        A(f"ds_write_b16_d16_hi v14, v{17+2*ct} offset:{32*ct+192}")
    gsync(A, C_GT2, 4, 2)
    stamp(A, 23)
    for e in range(8): A(f"v_add_u32 v{96+e}, {L_T}, v{96+e}")
    for c in range(2):
        for e in range(8):
            op = "ds_read_u16_d16_hi" if e % 2 else "ds_read_u16"
            A(f"{op} v{(32 if e % 2 else 16)+4*c+e//2}, v{96+e} offset:{c*2048}")
    A("s_lshl_b32 s25, s15, 6")
    A("v_add_u32 v9, s25, v0")
    A("v_lshrrev_b32 v10, 2, v9")
    A("v_mul_u32_u24 v10, 80, v10")
    A("v_and_b32 v9, 3, v9")
    A("v_lshl_add_u32 v10, v9, 4, v10")
    A(f"v_add_u32 v10, {L_KREV}, v10")
    for j in range(4): A(f"v_mov_b32 v{40+j}, 0")
    A(f"s_mul_i32 s25, s16, {KREV_SZ}")
    A(f"s_mul_i32 s23, s18, 1280")
    A("s_add_u32 s25, s25, s23")
    A(f"s_add_u32 s25, s25, {L_KREV + 64*80}")
    A(f"v_add_u32 v11, s25, v{vL16}")
    A("ds_write_b128 v11, v[40:43]")
    A("s_mov_b64 exec, 0xffff")
    A("ds_write_b128 v11, v[40:43] offset:1024")
    A("s_mov_b64 exec, -1")
    A("s_waitcnt lgkmcnt(10)")
    for j in range(4): A(f"v_or_b32 v{16+j}, v{16+j}, v{32+j}")
    A("s_waitcnt lgkmcnt(2)")
    for j in range(4): A(f"v_or_b32 v{20+j}, v{20+j}, v{36+j}")
    A("ds_write_b128 v10, v[16:19]")
    A(f"ds_write_b128 v10, v[20:23] offset:{KREV_SZ}")
    A("s_waitcnt lgkmcnt(0)")
    stamp(A, 27)
    FLAT = int(os.environ.get("FLAT", 3))
    for i in range(8):
        A("s_barrier")
        if i == FLAT:
            get_tag(A)
            chan_pair(A, 14, 17)
            A("s_lshr_b32 s28, s14, 4")
            A(f"s_lshl_b32 s28, s28, {5+FS}")
            A(f"s_add_u32 s28, s28, {WS_FU}")
            A(f"v_lshlrev_b32 v104, {FS}, v0")
            A("s_mov_b32 s40, 0")
        if i == FLAT + 2:
            A("s_cmp_eq_u32 s15, 3")
            A("s_cbranch_scc0 KG_L2")
            A("s_waitcnt vmcnt(0)")
            A("s_mov_b32 s30, -1"); A("s_mov_b32 s31, 0")
            A(f"v_cmp_ne_u32 vcc, s{sT}, v105")
            A("s_nop 1")
            A("s_and_b64 vcc, vcc, s[30:31]")
            A("s_cbranch_vccnz KG_L2")
            lsig(A, C_FU, 66)
            A("s_mov_b32 s40, 1")
            A.label("KG_L2")
        if i == FLAT + 1:
            A("s_cmp_eq_u32 s15, 3")
            A("s_cbranch_scc0 KG_L1")
            A("s_mov_b32 s30, -1"); A("s_mov_b32 s31, 0")
            A("s_mov_b64 exec, s[30:31]")
            A(f"buffer_load_dword v105, v104, {WSRD}, s28 offen sc1")
            A("s_mov_b64 exec, -1")
            A.label("KG_L1")
    A("s_cmp_eq_u32 s15, 3")
    A("s_cbranch_scc0 KG_END2")
    A("s_cmp_lg_u32 s40, 0")
    A("s_cbranch_scc1 KG_END2")
    poll(A, "KG_PU", 104, 28, "-1", 105, sleep=2)
    lsig(A, C_FU, 66)
    A.label("KG_END2")
    if os.environ.get("X_P1ONLY"): A("s_branch K_FIN")

vKA, vVA, vQ, vKF, vVF, vS, vP, vO, vM, vT = 2, 3, 4, 8, 16, 32, 64, 72, 88, 89
vLD = 92
vLW = 124
vLW2 = 89
NT = 32
SCHED = "e0 e1 PV1 RV e2 e3 c0 e4 e5 c1 QK RK e6 e7 c2 e8 e9 c3 e10 e11 PV0 c4 e12 e13 c5 e14 e15 c6 c7"
PRIO = {0: 3, 8: 2, 16: 1, 24: 0}

def attn_ids(A):
    A("s_and_b32 s12, s2, 7")
    A("s_lshl_b32 s12, s12, 2")
    A("s_lshr_b32 s13, s2, 3")
    A("s_and_b32 s17, s13, 3")
    A("s_add_u32 s12, s12, s17")
    A("s_lshr_b32 s13, s2, 5")
    A("s_lshl_b32 s17, s12, 16")

def ld_group(A):
    attn_setup(A)
    A("s_cmp_lt_u32 s3, 4")
    A("s_cselect_b32 s28, 0, 8")
    A("s_sub_u32 s28, s3, s28")
    A(f"v_lshlrev_b32 v8, {FS}, v0")
    A(f"s_lshl_b32 s27, s12, {5+FS}")
    A(f"s_add_u32 s27, s27, {WS_F1}")
    A("s_lshr_b32 s22, s28, 1")
    A("s_and_b32 s23, s28, 1"); A("s_lshl_b32 s23, s23, 1")
    A("s_and_b32 s4, s22, 1"); A("s_lshl_b32 s4, s4, 15")
    A("s_lshr_b32 s26, s22, 1"); A("s_lshl_b32 s26, s26, 21")
    A("s_add_u32 s4, s4, s26")
    A("s_lshl_b32 s26, s23, 10")
    A("s_add_u32 s4, s4, s26")
    A("s_add_u32 s4, s4, s17")
    A(f"s_add_u32 s4, s4, {WS_K}")
    A("s_lshl_b32 s24, s23, 12")
    A("s_lshl_b32 s26, s22, 10")
    A("s_add_u32 s24, s24, s26")
    A(f"v_add_u32 v{vLW2}, s24, v{vL16}")
    A("s_lshl_b32 s5, s13, 3"); A("s_add_u32 s5, s5, s28"); A("s_lshl_b32 s5, s5, 10"); A("s_add_u32 s5, s5, s17")
    A("s_lshl_b32 s6, s28, 10"); A(f"s_add_u32 s6, s6, {L_QS}")
    A(f"v_add_u32 v12, s6, v{vL16}")
    A("s_cmp_eq_u32 s3, 13")
    A("s_cbranch_scc0 LD_NOPOLL")
    lwait(A, C_OWN, 4, 44, sleep=2)
    poll(A, "LD_POLL", 8, 27, "-1", 13, sleep=2)
    lsig(A, C_F1, 44)
    A.label("LD_NOPOLL")
    lwait(A, C_F1, 1, 44, sleep=1)
    stamp(A, 3)
    def rload(r, d0):
        A(f"s_add_u32 s26, s13, {r}")
        A("s_and_b32 s26, s26, 7")
        A("s_lshl_b32 s26, s26, 12")
        A("s_add_u32 s26, s26, s4")
        A(f"buffer_load_dwordx4 {v(d0,4)}, v{vL16}, {WSRD}, s26 offen sc1")
        A(f"buffer_load_dwordx4 {v(d0+4,4)}, v{vL16}, {WSRD}, s26 offen offset:1024 sc1")
    rload(0, 32)
    A(f"buffer_load_dwordx4 v[40:43], v{vL16}, {WSRD}, s5 offen sc1")
    rload(1, vLD)
    rload(2, vLD + 8)
    lwait(A, C_DONE(7), 4, 44)
    A("s_waitcnt vmcnt(4)")
    A(f"ds_write_b128 v{vLW2}, v[32:35]")
    A(f"ds_write_b128 v{vLW2}, v[36:39] offset:4096")
    A("ds_write_b128 v12, v[40:43]")
    A("s_waitcnt vmcnt(2)")
    A(f"ds_write_b128 v{vLW2}, {v(vLD,4)} offset:16384")
    A(f"ds_write_b128 v{vLW2}, {v(vLD+4,4)} offset:20480")
    A("s_waitcnt vmcnt(0)")
    A(f"ds_write_b128 v{vLW2}, {v(vLD+8,4)} offset:32768")
    A(f"ds_write_b128 v{vLW2}, {v(vLD+12,4)} offset:36864")

def attn_setup(A):
    attn_ids(A)
    A("s_mov_b32 s20, 0x0000ffff")
    A("s_mov_b32 s21, 0x0000ffff")
    A("s_and_b32 s15, s3, 7")
    A("s_lshr_b32 s16, s3, 3")
    A("s_lshl_b32 s19, s16, 10")
    A(f"v_add_u32 v{vKA}, s19, v{vL16}")
    A("v_lshrrev_b32 v8, 5, v0")
    A("v_lshlrev_b32 v8, 8, v8")
    A("v_and_b32 v9, 15, v0")
    A("v_lshlrev_b32 v9, 4, v9")
    A("s_add_u32 s19, s19, 2048")
    A(f"v_add3_u32 v{vVA}, v8, v9, s19")
    A("v_and_b32 v8, 31, v0")
    A("v_cmp_eq_u32 vcc, 16, v8")
    A("v_mov_b32 v9, 0x3f803f80")
    A("s_lshl_b32 s22, s15, 10"); A(f"s_add_u32 s22, s22, {L_QS}")
    A("v_cndmask_b32 v9, 0, v9, vcc")
    A(f"v_add_u32 v{vQ}, s22, v{vL16}")
    for i in range(16): A(f"v_mov_b32 v{vVF+i}, v9")
    A(f"v_mov_b32 v{vM}, 0")
    A("s_lshl_b32 s18, s13, 3")
    A("s_add_u32 s18, s18, s15")
    A(f"s_lshl_b32 s19, s18, {5+FS}")
    A(f"s_lshl_b32 s22, s12, {FS}")
    A("s_add_u32 s19, s19, s22")
    A(f"s_add_u32 s19, s19, {WS_F2}")
    A("s_lshl_b32 s18, s18, 10")
    A("s_add_u32 s18, s18, s17")
    A("s_lshr_b32 s22, s3, 2")
    A("s_and_b32 s23, s3, 3")
    A("s_lshl_b32 s24, s23, 12")
    A("s_lshl_b32 s26, s22, 10")
    A("s_add_u32 s24, s24, s26")
    A(f"v_add_u32 v{vLW}, s24, v{vL16}")
    A("s_and_b32 s25, s22, 1"); A("s_lshl_b32 s25, s25, 15")
    A("s_lshr_b32 s26, s22, 1"); A("s_lshl_b32 s26, s26, 21")
    A("s_add_u32 s25, s25, s26")
    A("s_lshl_b32 s23, s23, 10")
    A("s_add_u32 s25, s25, s23")
    A("s_add_u32 s25, s25, s17")
    A(f"s_add_u32 s25, s25, {WS_K}")
    A("s_lshr_b32 s37, s2, 3"); A("s_and_b32 s37, s37, 3"); A("s_lshl_b32 s37, s37, 3"); A("s_add_u32 s37, s37, s15")

def attention(A):
    A("s_setprio 3")
    A("s_waitcnt lgkmcnt(0)")
    A("s_barrier")
    stamp(A, 4)
    A(f"ds_read_b128 {v(vQ,4)}, v{vQ}")
    q = DSQ(A)
    KF = lambda t: vKF + 4 * (t % 2)
    VF = lambda t, j: vVF + 8 * (t % 2) + 4 * j
    S = lambda t: vS + 16 * (t % 2)
    def rdK(t):
        A(f"ds_read_b128 {v(KF(t),4)}, v{vKA} offset:{(t%16)*4096}"); q.issue(("K", t))
    def rdV(t):
        A("s_mov_b64 exec, s[20:21]")
        A(f"ds_read_b128 {v(VF(t,0),4)}, v{vVA} offset:{(t%16)*4096}"); q.issue(("V0", t))
        A(f"ds_read_b128 {v(VF(t,1),4)}, v{vVA} offset:{(t%16)*4096+512}"); q.issue(("V1", t))
        A("s_mov_b64 exec, -1")
    def qk(t):
        q.wait(("K", t))
        A(f"v_mfma_f32_32x32x16_bf16 {v(S(t),16)}, {v(KF(t),4)}, {v(vQ,4)}, 0")
    def e(t, i): A(f"v_exp_f32 v{S(t)+i}, v{S(t)+i}")
    def c(t, k): A(f"v_cvt_pk_bf16_f32 v{vP+k}, v{S(t)+2*k}, v{S(t)+2*k+1}")
    def pv(t, j):
        cc = "0" if (t == 0 and j == 0) else v(vO, 16)
        A(f"v_mfma_f32_32x32x16_bf16 {v(vO,16)}, {v(VF(t,j),4)}, {v(vP+4*j,4)}, {cc}")
    rdK(0); rdK(1); rdV(0)
    qk(0)
    A("s_nop 7"); A("s_nop 3")
    for t in range(NT):
        A.comment(f"--- tile {t}")
        if t in PRIO: A(f"s_setprio {PRIO[t]}")
        for tok in SCHED.split():
            if tok[0] == 'e': e(t, int(tok[1:]))
            elif tok[0] == 'c': c(t, int(tok[1:]))
            elif tok == 'PV1':
                if t > 0: pv(t - 1, 1)
            elif tok == 'QK':
                if t + 1 < NT: qk(t + 1)
            elif tok == 'PV0':
                q.wait(("V1", t)); pv(t, 0)
            elif tok == 'RK':
                slot_of = {3: 4, 4: 5, 5: 6, 6: 7, 7: 0}
                XN = os.environ.get("X_NOLAND")
                if XN:
                    if t + 2 < NT: rdK(t + 2)
                    if t == 14: A(f"v_add_u32 v{vKA}, 65536, v{vKA}") if False else None
                    continue
                if t < 5:
                    r = 3 + t
                    A(f"s_add_u32 s26, s13, {r}")
                    A("s_and_b32 s26, s26, 7")
                    A("s_lshl_b32 s26, s26, 12")
                    A("s_add_u32 s26, s26, s25")
                    A(f"buffer_load_dwordx4 {v(vLD+4*slot_of[r],4)}, v{vL16}, {WSRD}, s26 offen sc1")
                if t == 6:
                    A("s_waitcnt vmcnt(0)")
                    A(f"ds_write_b128 v{vLW}, {v(vLD+4*slot_of[3],4)} offset:49152")
                    A(f"v_add_u32 v{vLW}, 65536, v{vLW}")
                    for r in range(4, 8):
                        A(f"ds_write_b128 v{vLW}, {v(vLD+4*slot_of[r],4)} offset:{r*16384 - 65536}")
                    A("s_waitcnt lgkmcnt(0)"); q.q = []
                    lsig(A, C_LAND, vT + 0) if False else None
                    A(f"v_mov_b32 v{vT}, {C_LAND}")
                    A(f"v_mov_b32 v{vLW}, 1")
                    A("s_mov_b64 exec, 1")
                    A(f"ds_add_u32 v{vT}, v{vLW}")
                    A("s_mov_b64 exec, -1")
                if t == 9:
                    A(f"ds_read_b32 v{vLW}, v{vT}"); q.issue(("land", 0))
                if t == 10:
                    q.wait(("land", 0))
                    A(f"v_readfirstlane_b32 s42, v{vLW}")
                    A("s_nop 0")
                    A("s_cmp_ge_u32 s42, 16")
                    A("s_cbranch_scc1 AT_LANDED")
                    lwait(A, C_LAND, 16, 126 if False else 12, sleep=1) if False else None
                    A.label("AT_LSPIN")
                    A(f"ds_read_b32 v{vLW}, v{vT}")
                    A("s_waitcnt lgkmcnt(0)")
                    A(f"v_readfirstlane_b32 s42, v{vLW}")
                    A("s_sleep 1")
                    A("s_cmp_ge_u32 s42, 16")
                    A("s_cbranch_scc0 AT_LSPIN")
                    A.label("AT_LANDED")
                    A(f"v_lshlrev_b32 v{vT}, {FS}, v0")
                    A(f"s_lshl_b32 s26, s37, {3+FS}")
                    A(f"s_add_u32 s26, s26, {WS_F3}")
                    A("s_mov_b64 exec, 0xff")
                    A(f"buffer_load_dword v{vLW}, v{vT}, {WSRD}, s26 offen sc1")
                    A("s_mov_b64 exec, -1")
                if t == 12:
                    A("s_waitcnt vmcnt(0)")
                    check_or_poll(A, "AT_P3", vT, 26, "0xff", vLW)
                    A("s_lshl_b32 s27, s37, 14")
                    A("s_lshl_b32 s26, s16, 13")
                    A("s_add_u32 s27, s27, s26")
                    A(f"s_add_u32 s27, s27, {WS_WOF}")
                if 12 <= t < 20:
                    A(f"buffer_load_dwordx4 {v(vLD+4*(t-12),4)}, v{vL16}, {WSRD}, s27 offen sc1")
                    A("s_add_u32 s27, s27, 1024")
                if t == 20:
                    A("s_sub_u32 s26, s3, 4")
                    A("s_cmp_lt_u32 s26, 8")
                    A("s_cbranch_scc0 AT_NY0")
                    A(f"v_and_b32 v{vT}, 31, v0")
                    A(f"v_lshrrev_b32 v{vLW}, 5, v0")
                    A(f"v_lshlrev_b32 v{vT}, 16, v{vT}")
                    A(f"v_lshl_add_u32 v{vT}, v{vLW}, 13, v{vT}")
                    A.label("AT_NY0")
                    srd(A, 4, SP['out'], 2048*1024*2)
                if 21 <= t < 25:
                    r = t - 21
                    A("s_sub_u32 s26, s3, 4")
                    A("s_cmp_lt_u32 s26, 8")
                    A(f"s_cbranch_scc0 AT_NY{r+1}")
                    if r == 2: A("s_add_u32 s36, s36, 4096")
                    A(f"buffer_store_dword v{vY[r]}, v{vT}, s[4:7], s36 offen" + (" offset:2048" if r % 2 else ""))
                    A.label(f"AT_NY{r+1}")
                if t == 14:
                    A(f"v_add_u32 v{vKA}, 65536, v{vKA}")
                if t + 2 < NT: rdK(t + 2)
            elif tok == 'RV':
                if t == 15:
                    A(f"v_add_u32 v{vVA}, 65536, v{vVA}")
                if t + 1 < NT: rdV(t + 1)
            else: raise ValueError(tok)
    A("s_nop 1")
    pv(NT - 1, 1)
    A("s_nop 15")
    stamp(A, 5)
    A(f"v_mov_b32 v{vT}, v{vO+8}")
    A("s_nop 1")
    A(f"v_permlane32_swap_b32 v{vT}, v{vO+8}")
    A("s_nop 1")
    A(f"v_mov_b32 v{vO+8}, v{vT}")
    A("s_mov_b32 s28, 0x1f800000")
    A("s_mov_b32 s29, 0x5f800000")
    A(f"v_cmp_le_f32 vcc, s28, v{vO+8}")
    A(f"v_cmp_ge_f32 s[30:31], s29, v{vO+8}")
    A("s_nop 1")
    A("s_and_b64 vcc, vcc, s[30:31]")
    A("s_cmp_eq_u64 vcc, -1")
    A("s_cbranch_scc0 AT_FALLBACK")
    A.label("AT_COMBINE")
    A("s_lshl_b32 s17, s15, 11")
    A(f"s_add_u32 s17, s17, {L_SCR}")
    A(f"v_add_u32 v{vT}, s17, v{vL16}")
    A("v_lshlrev_b32 v12, 3, v0")
    A("s_lshl_b32 s17, s15, 9")
    A(f"s_add_u32 s17, s17, {L_KREV}")
    A(f"v_add_u32 v12, s17, v12")
    A("s_cmp_eq_u32 s16, 0")
    A("s_cbranch_scc1 AT_LOW")
    A(f"ds_write_b128 v{vT}, {v(vO,4)}")
    A(f"ds_write_b128 v{vT}, {v(vO+4,4)} offset:1024")
    A(f"v_mov_b32 v{vO+9}, v{vM}")
    A(f"ds_write_b64 v12, {v(vO+8,2)}")
    A("s_waitcnt lgkmcnt(0)")
    A("s_barrier")
    A("s_branch AT_DONE")
    A.label("AT_LOW")
    A("s_barrier")
    B = vS
    A(f"ds_read_b128 {v(B,4)}, v{vT}")
    A(f"ds_read_b128 {v(B+4,4)}, v{vT} offset:1024")
    A(f"ds_read_b64 {v(B+8,2)}, v12")
    A("s_waitcnt lgkmcnt(0)")
    t0, t1, t2 = 8, 9, 10
    A(f"v_max_f32 v{t0}, v{vM}, v{B+9}")
    A(f"v_sub_f32 v{t1}, v{vM}, v{t0}")
    A(f"v_sub_f32 v{t2}, v{B+9}, v{t0}")
    A(f"v_exp_f32 v{t1}, v{t1}")
    A(f"v_exp_f32 v{t2}, v{t2}")
    A("s_nop 0")
    for i in range(9):
        A(f"v_mul_f32 v{vO+i}, v{vO+i}, v{t1}")
    for i in range(9):
        A(f"v_fmac_f32 v{vO+i}, v{B+i}, v{t2}")
    A(f"v_rcp_f32 v{t0}, v{vO+8}")
    A("s_nop 0")
    for i in range(8):
        A(f"v_mul_f32 v{vO+i}, v{vO+i}, v{t0}")
    for k in range(4):
        A(f"v_cvt_pk_bf16_f32 v{vP+k}, v{vO+2*k}, v{vO+2*k+1}")
    A("s_nop 1")
    A(f"v_permlane32_swap_b32 v{vP}, v{vP+2}")
    A(f"v_permlane32_swap_b32 v{vP+1}, v{vP+3}")
    A(f"s_add_u32 s18, s18, {WS_O}")
    A("s_nop 1")
    A(f"buffer_store_dwordx4 {v(vP,4)}, v{vL16}, {WSRD}, s18 offen sc1")
    A("s_waitcnt vmcnt(0)")
    flag_store(A, 19, 12, 13)
    lsig(A, C_OWN2, 12)
    A.label("AT_DONE")
    stamp(A, 6)

def attention_fallback(A):
    A.label("AT_FALLBACK")
    A(f"v_mov_b32 v{vM}, 0xff800000")
    A(f"v_subrev_u32 v{vT}, 65536, v{vKA}")
    A("s_mov_b32 s17, 0")
    A.label("AT_FB1")
    A(f"ds_read_b128 {v(vKF,4)}, v{vT}")
    A(f"v_add_u32 v{vT}, 4096, v{vT}")
    A("s_waitcnt lgkmcnt(0)")
    A(f"v_mfma_f32_32x32x16_bf16 {v(vS,16)}, {v(vKF,4)}, {v(vQ,4)}, 0")
    A("s_nop 15")
    for k in range(8):
        A(f"v_max3_f32 v{vM}, v{vS+2*k}, v{vS+2*k+1}, v{vM}")
    A("s_add_u32 s17, s17, 1")
    A("s_cmp_lt_u32 s17, 32")
    A("s_cbranch_scc1 AT_FB1")
    A(f"v_mov_b32 v{vT}, v{vM}")
    A(f"v_mov_b32 v12, v{vM}")
    A("s_nop 1")
    A(f"v_permlane32_swap_b32 v{vT}, v12")
    A("s_nop 1")
    A(f"v_max_f32 v{vM}, v{vT}, v12")
    for i in range(16): A(f"v_mov_b32 v{vO+i}, 0")
    A(f"v_subrev_u32 v{vT}, 65536, v{vKA}")
    A(f"v_subrev_u32 v12, 65536, v{vVA}")
    A("s_mov_b32 s17, 0")
    A.label("AT_FB2")
    A(f"ds_read_b128 {v(vKF,4)}, v{vT}")
    A("s_mov_b64 exec, s[20:21]")
    A(f"ds_read_b128 {v(vVF,4)}, v12")
    A(f"ds_read_b128 {v(vVF+4,4)}, v12 offset:512")
    A("s_mov_b64 exec, -1")
    A(f"v_add_u32 v{vT}, 4096, v{vT}")
    A(f"v_add_u32 v12, 4096, v12")
    A("s_waitcnt lgkmcnt(0)")
    A(f"v_mfma_f32_32x32x16_bf16 {v(vS,16)}, {v(vKF,4)}, {v(vQ,4)}, 0")
    A("s_nop 15")
    for i in range(16): A(f"v_sub_f32 v{vS+i}, v{vS+i}, v{vM}")
    for i in range(16): A(f"v_exp_f32 v{vS+i}, v{vS+i}")
    A("s_nop 0")
    for k in range(8): A(f"v_cvt_pk_bf16_f32 v{vP+k}, v{vS+2*k}, v{vS+2*k+1}")
    A("s_nop 1")
    A(f"v_mfma_f32_32x32x16_bf16 {v(vO,16)}, {v(vVF,4)}, {v(vP,4)}, {v(vO,16)}")
    A(f"v_mfma_f32_32x32x16_bf16 {v(vO,16)}, {v(vVF+4,4)}, {v(vP+4,4)}, {v(vO,16)}")
    A("s_add_u32 s17, s17, 1")
    A("s_cmp_lt_u32 s17, 32")
    A("s_cbranch_scc1 AT_FB2")
    A("s_nop 15")
    A(f"v_mov_b32 v{vT}, v{vO+8}")
    A("s_nop 1")
    A(f"v_permlane32_swap_b32 v{vT}, v{vO+8}")
    A("s_nop 1")
    A(f"v_mov_b32 v{vO+8}, v{vT}")
    A("s_branch AT_COMBINE")

def tail(A):
    A("s_and_b32 s12, s2, 7"); A("s_lshl_b32 s12, s12, 3"); A("s_lshr_b32 s13, s2, 5"); A("s_add_u32 s12, s12, s13")
    A("s_lshr_b32 s13, s2, 3"); A("s_and_b32 s13, s13, 3")
    A(f"v_lshlrev_b32 v10, {FS}, v0")
    A(f"s_lshl_b32 s17, s12, {5+FS}")
    A(f"s_add_u32 s17, s17, {WS_F2}")
    A("s_cmp_eq_u32 s3, 8")
    A("s_cbranch_scc0 TL_NOPOLL")
    lwait(A, C_OWN2, 8, 12, sleep=1)
    poll(A, "TL_P2", 10, 17, "-1", 12, sleep=1)
    lsig(A, C_F2, 12)
    A.label("TL_NOPOLL")
    A("v_and_b32 v4, 15, v0")
    A("v_lshrrev_b32 v5, 4, v0")
    A("v_lshlrev_b32 v14, 9, v5")
    A("v_lshl_add_u32 v14, v4, 4, v14")
    A("s_lshl_b32 s17, s16, 14")
    A(f"s_add_u32 s17, s17, {L_OT}")
    A(f"v_add_u32 v14, s17, v14")
    A("v_lshlrev_b32 v15, 11, v4")
    A("v_lshl_add_u32 v15, v5, 3, v15")
    A("s_lshl_b32 s20, s12, 16")
    A("s_lshl_b32 s19, s16, 15")
    A("s_add_u32 s20, s20, s19")
    A("s_lshl_b32 s19, s13, 8")
    A("s_add_u32 s20, s20, s19")
    A("s_lshl_b32 s19, s15, 5")
    A("s_add_u32 s20, s20, s19")
    A("s_add_u32 s20, s20, 1024")
    srd(A, 4, SP['out'], 2048*1024*2)
    A("s_lshl_b32 s17, s3, 10")
    A(f"s_add_u32 s17, s17, {L_PC}")
    A(f"v_add_u32 v6, s17, v{vL16}")
    A("s_xor_b32 s17, s17, 8192")
    A(f"v_add_u32 v7, s17, v{vL16}")
    A("s_lshl_b32 s17, s3, 17")
    A("s_lshl_b32 s18, s12, 10")
    A("s_add_u32 s17, s17, s18")
    A(f"s_add_u32 s17, s17, {WS_O}")
    A("s_lshl_b32 s18, s3, 11")
    A(f"s_add_u32 s18, s18, {L_OT}")
    A(f"v_add_u32 v13, s18, v{vL16}")
    lwait(A, C_F2, 1, 8, sleep=1)
    stamp(A, 43)
    A(f"buffer_load_dwordx4 v[16:19], v{vL16}, {WSRD}, s17 offen sc1")
    A("s_add_u32 s17, s17, 65536")
    A(f"buffer_load_dwordx4 v[20:23], v{vL16}, {WSRD}, s17 offen sc1")
    A("s_waitcnt vmcnt(1)")
    A("ds_write_b128 v13, v[16:19]")
    A("s_waitcnt vmcnt(0)")
    A("ds_write_b128 v13, v[20:23] offset:1024")
    A("s_waitcnt lgkmcnt(0)")
    stamp(A, 44)
    A("s_barrier")
    stamp(A, 45)
    q = DSQ(A)
    FO = 16
    def rd(s_):
        b = s_ % 3
        for th in range(2):
            A(f"ds_read_b128 {v(FO+12*th+4*b,4)}, v14 offset:{s_*2048 + th*256}"); q.issue(("o", s_, th))
    rd(0); rd(1)
    for s_ in range(8):
        if s_ + 2 < 8: rd(s_ + 2)
        b = s_ % 3
        for th in range(2):
            q.wait(("o", s_, th))
            cc = "0" if s_ == 0 else v(40+4*th, 4)
            A(f"v_mfma_f32_16x16x32_bf16 {v(40+4*th,4)}, {v(vLD+4*s_,4)}, {v(FO+12*th+4*b,4)}, {cc}")
    A("s_cmp_eq_u32 s2, 0")
    A("s_cbranch_scc0 TL_NE")
    A("s_cmp_eq_u32 s3, 8")
    A("s_cbranch_scc0 TL_NE")
    A(f"s_mov_b32 s17, {WS_EP}")
    flag_store(A, 17, 12, 13)
    A.label("TL_NE")
    A("s_nop 7")
    A("s_cmp_eq_u32 s16, 0")
    A("s_cbranch_scc1 TL_LO")
    A("ds_write_b128 v6, v[40:43]")
    for i in range(4): A(f"v_mov_b32 v{40+i}, v{44+i}")
    A("s_branch TL_X")
    A.label("TL_LO")
    A("ds_write_b128 v6, v[44:47]")
    A.label("TL_X")
    A("s_waitcnt lgkmcnt(0)")
    A("s_barrier")
    A("ds_read_b128 v[16:19], v7")
    A("s_waitcnt lgkmcnt(0)")
    for i in range(4):
        A(f"v_add_f32 v{40+i}, v{40+i}, v{16+i}")
    A("v_cvt_pk_bf16_f32 v48, v40, v41")
    A("v_cvt_pk_bf16_f32 v49, v42, v43")
    A("buffer_store_dwordx2 v[48:49], v15, s[4:7], s20 offen")

def gen():
    A = Asm()
    kernel_begin(A, NAME)
    A.label("K_START")
    if not os.environ.get("NOPF"):
        A("s_getpc_b64 s[4:5]")
        A.label("PF_PC")
        A("v_lshlrev_b32 v2, 7, v0")
        A("v_cmp_gt_u32 vcc, GTAB_END-PF_PC-128, v2")
        A("s_and_saveexec_b64 s[6:7], vcc")
        A("s_cbranch_execz PF_DONE")
        A(f"global_load_dword v{vE}, v2, s[4:5]")
        A.label("PF_DONE")
        A("s_mov_b64 exec, s[6:7]")
    if DBG: A("v_mov_b32 v125, 0")
    if PROF:
        A("v_mov_b32 v125, 0")
        A("s_memrealtime s[38:39]")
    stamp(A, 0)
    A("s_cmp_ge_u32 s2, 256")
    A("s_cbranch_scc1 K_END")
    A("s_load_dwordx16 s[64:79], s[0:1], 0")
    A("s_load_dwordx8 s[80:87], s[0:1], 64")
    A("s_load_dwordx2 s[88:89], s[0:1], 96")
    A("v_lshrrev_b32 v8, 6, v0")
    A("v_and_b32 v0, 63, v0")
    A("v_readfirstlane_b32 s3, v8")
    A(f"v_lshlrev_b32 v{vL16}, 4, v0")
    p1_ids(A)
    A("s_cmp_eq_u32 s3, 12")
    A("s_cbranch_scc0 E_NZ")
    A("v_lshlrev_b32 v20, 2, v0")
    A(f"v_add_u32 v20, {L_CNT}, v20")
    A("v_mov_b32 v24, 0")
    A("ds_write_b32 v20, v24")
    A.label("E_NZ")
    A("s_cmp_ge_u32 s3, 12")
    A("s_cbranch_scc0 E_NG")
    kgen_pre(A)
    A.label("E_NG")
    ka_wait(A)
    A("s_barrier")
    A("s_cmp_lt_u32 s3, 4")
    A("s_cbranch_scc1 R_COMPUTE")
    A("s_cmp_ge_u32 s3, 12")
    A("s_cbranch_scc1 R_KGEN")
    p1_loader(A)
    attn_setup(A)
    A("s_branch R_JOIN")
    A.label("R_KGEN")
    kgen(A)
    A("s_branch R_LD")
    A.label("R_COMPUTE")
    p1_compute(A)
    A.label("R_LD")
    ld_group(A)
    A.label("R_JOIN")
    attention(A)
    tail(A)
    A.label("K_FIN")
    stamp(A, 50)
    A("s_waitcnt vmcnt(0)")
    stamp(A, 51)
    write_stamps(A)
    if DBG:
        A("s_cmp_eq_u32 s2, 8"); A("s_cbranch_scc0 K_END")
        A("s_cmp_eq_u32 s3, 0"); A("s_cbranch_scc0 K_END")
        A("s_memtime s[48:49]"); A("s_memrealtime s[50:51]"); A("s_waitcnt lgkmcnt(0)")
        A("v_readlane_b32 s52, v125, 0"); A("v_readlane_b32 s53, v125, 1")
        A("s_nop 3")
        A("v_writelane_b32 v125, s48, 0"); A("v_writelane_b32 v125, s50, 1")
        A("v_and_b32 v16, 1, v0")
        A("v_cmp_eq_u32 vcc, 0, v16")
        A("v_mov_b32 v17, s53"); A("v_mov_b32 v18, s52")
        A("s_nop 1")
        A("v_cndmask_b32 v17, v17, v18, vcc")
        A("v_sub_u32 v17, v125, v17")
        srd(A, 4, SP['dbg'], 256)
        A("v_lshlrev_b32 v16, 2, v0")
        A("s_mov_b64 exec, 0xffff")
        A("buffer_store_dword v17, v16, s[4:7], 0 offen")
        A("s_waitcnt vmcnt(0)")
    A.label("K_END")
    A("s_endpgm")
    attention_fallback(A)
    A(".p2align 6")
    A(".type GTAB,@object")
    A.label("GTAB")
    t = gather_table()
    for i in range(0, 2048, 16):
        A(".long " + ", ".join(str(int(x)) for x in t[i:i+16]))
    A(".size GTAB, 8192")
    A.label("GTAB_END")
    hdr_src = open("concat_heads__ssm_conv_s4d__mha_block__prompt.s.ref").read().split("\n")
    hdr = [l for l in hdr_src if l.startswith(";") and "@launch" not in l and "Override launch" not in l and "grid=ceil" not in l]
    out = "\n".join(hdr) + "\n; @launch grid=(256,1,1) block=(1024,1,1) lds=163840\n"
    out += '.amdgcn_target "amdgcn-amd-amdhsa--gfx950"\n'
    out += A.text() + kernel_desc(NAME, 128, 100)
    return out

if __name__ == "__main__":
    open(sys.argv[1] if len(sys.argv) > 1 else "fused.s", "w").write(gen())
```

```python
import os, struct, sys
from asmlib import *
from ssm_common import gather_table

NAME = "concat_heads__ssm_conv_s4d__mha_block__prompt_kernel"
PROF = bool(os.environ.get("PROF"))
DBG = bool(os.environ.get("DBG"))
DBGMAP = {0: 0, 10: 1, 1: 2, 2: 3, 4: 4, 5: 5, 6: 6, 45: 7}

def f32bits(x): return struct.unpack("<I", struct.pack("<f", x))[0]
LOG2E = 1.4426950408889634
INV2PI = 0.15915494309189535
C_SCALE = 0.25 * LOG2E

WS_Q = 0x000000; WS_K = 0x200000; WS_V = 0x400000; WS_O = 0x600000
WS_UT = 0x800000
WS_WOF = 0xA00000
FS = 8
WS_F1 = 0xA80000
WS_F2 = 0xAC0000
WS_F3 = 0xB40000
WS_FU = 0xB50000
WS_EP = 0xB90000
WS_TOTAL = 0xBA0000
WS_PROF = 0x1000000
SP = dict(u=64, lar=66, aim=68, cre=70, cim=72, ldt=74, dsk=76, x=78, wqkv=80, wo=82, out=84, dbg=86, ws=88)
sWS = 44
WSRD = f"s[{sWS}:{sWS+3}]"
sT = 90
vL16 = 1
vE = 127

SLOT = 28672; NSLOT = 3; AHEAD = 2
L_TA = 86016; L_TBO = 11088; L_TCH = 27984
L_T = 143360
L_CNT = 147968
C_G = L_CNT; C_CV = L_CNT + 4; C_WO = L_CNT + 8; C_KR = L_CNT + 12
def C_RDY(c): return L_CNT + 16 + 4*c
def C_DONE(c): return L_CNT + 48 + 4*c
C_FU = L_CNT + 80; C_F1 = L_CNT + 84; C_F2 = L_CNT + 88; C_ISS = L_CNT + 92; C_T = L_CNT + 96; C_GU = L_CNT + 100; C_GT = L_CNT + 104; C_OWN = L_CNT + 108; C_OWN2 = L_CNT + 112; C_PAR = L_CNT + 116; C_GT2 = L_CNT + 120; C_LAND = L_CNT + 128
L_PAR = 57344
L_KREV = 148480; KREV_SZ = 7680
L_UTL = 57344 + 4096
L_WOT = 86016
L_UC = 57344; UC_RHO = 4160; UC_CH = 16640
L_PART = 90624
L_QS = 49152
L_SCR = 131072
L_OT = 0
L_PC = 32768

class DSQ:
    def __init__(self, A): self.A = A; self.q = []
    def issue(self, tag): self.q.append(tag)
    def wait(self, tag):
        if tag not in self.q: return
        i = len(self.q) - 1 - self.q[::-1].index(tag)
        n = len(self.q) - 1 - i
        assert n <= 15, n
        self.A(f"s_waitcnt lgkmcnt({n})")
        self.q = self.q[i+1:]
    def room(self):
        if len(self.q) >= 15: self.wait(self.q[0])
    def drain(self):
        self.A("s_waitcnt lgkmcnt(0)"); self.q = []

def stamp(A, k):
    if DBG and k in DBGMAP:
        j = DBGMAP[k]
        A("s_memtime s[48:49]")
        A("s_memrealtime s[50:51]")
        A("s_waitcnt lgkmcnt(0)")
        A(f"v_writelane_b32 v125, s48, {2*j}")
        A(f"v_writelane_b32 v125, s50, {2*j+1}")
    if PROF:
        A("s_memtime s[48:49]")
        A("s_waitcnt lgkmcnt(0)")
        A(f"v_writelane_b32 v125, s48, {k}")

def write_stamps(A):
    if not PROF: return
    A("s_memrealtime s[40:41]")
    A("s_waitcnt lgkmcnt(0)")
    A(f"v_writelane_b32 v125, s40, 62")
    A(f"v_writelane_b32 v125, s91, 63")
    A(f"s_add_u32 s92, s{SP['ws']}, {WS_PROF}")
    A(f"s_addc_u32 s93, s{SP['ws']+1}, 0")
    A("s_mov_b32 s94, 0x200000")
    A("s_mov_b32 s95, 0x00020000")
    A("s_lshl_b32 s42, s2, 4"); A("s_add_u32 s42, s42, s3"); A("s_lshl_b32 s42, s42, 8")
    A("v_lshlrev_b32 v16, 2, v0")
    A("buffer_store_dword v125, v16, s[92:95], s42 offen")
    A("s_waitcnt vmcnt(0)")

def poll(A, label, vaddr, soff, mask_lo, vtmp, sleep=4):
    A(f"s_mov_b32 s30, {mask_lo}")
    A("s_mov_b32 s31, 0")
    A("s_mov_b64 exec, s[30:31]")
    A("s_mov_b32 s29, 0")
    A.label(label)
    A(f"buffer_load_dword v{vtmp}, v{vaddr}, {WSRD}, s{soff} offen sc1")
    A("s_add_u32 s29, s29, 1")
    A("s_waitcnt vmcnt(0)")
    A(f"v_cmp_ne_u32 vcc, s{sT}, v{vtmp}")
    A("s_cmp_gt_u32 s29, 0x10000")
    A(f"s_cbranch_scc1 {label}_x")
    A(f"s_cbranch_vccz {label}_x")
    A(f"s_sleep {sleep}")
    A(f"s_branch {label}")
    A.label(label + "_x")
    A("s_mov_b64 exec, -1")

def check_or_poll(A, label, vaddr, soff, mask_lo, vflag):
    A(f"s_mov_b32 s30, {mask_lo}")
    A("s_mov_b32 s31, 0")
    A(f"v_cmp_ne_u32 vcc, s{sT}, v{vflag}")
    A("s_nop 1")
    A("s_and_b64 vcc, vcc, s[30:31]")
    A(f"s_cbranch_vccz {label}_ok")
    poll(A, label, vaddr, soff, mask_lo, vflag)
    A.label(label + "_ok")

def flag_store(A, soff, vtmp, vzero):
    A(f"v_mov_b32 v{vtmp}, s{sT}")
    A(f"v_mov_b32 v{vzero}, 0")
    A("s_mov_b64 exec, 1")
    A(f"buffer_store_dword v{vtmp}, v{vzero}, {WSRD}, s{soff} offen sc1")
    A("s_mov_b64 exec, -1")

def get_tag(A, vt=126, vd=None):
    L = A.newlabel("GT")
    A(f"v_mov_b32 v{vt}, {C_T}")
    A("s_mov_b32 s43, 0")
    A.label(L)
    A(f"ds_read_b32 v{vE}, v{vt}")
    A("s_add_u32 s43, s43, 1")
    A("s_waitcnt lgkmcnt(0)")
    A(f"v_readfirstlane_b32 s{sT}, v{vE}")
    A("s_cmp_gt_u32 s43, 0x80000")
    A(f"s_cbranch_scc1 {L}_x")
    A(f"s_cmp_eq_u32 s{sT}, 0")
    A(f"s_cbranch_scc1 {L}")
    A.label(L + "_x")

def make_tag(A):
    A(f"v_readfirstlane_b32 s{sT}, v{vE}")
    A("s_nop 3")
    A(f"s_mul_i32 s{sT}, s{sT}, 0x9e3779b1")
    A(f"s_add_u32 s{sT}, s{sT}, 0x7f4a7c15")
    A(f"s_or_b32 s{sT}, s{sT}, 1")
    A(f"v_mov_b32 v{vE}, s{sT}")
    A(f"v_mov_b32 v126, {C_T}")
    A(f"ds_write_b32 v126, v{vE}")

def gsync(A, cnt_addr, target, vt):
    A("s_waitcnt lgkmcnt(0)")
    lsig(A, cnt_addr, vt)
    lwait(A, cnt_addr, target, vt, sleep=1)

def lsig(A, addr, vt):
    A(f"v_mov_b32 v{vt}, {addr}")
    A(f"v_mov_b32 v{vt+1}, 1")
    A("s_mov_b64 exec, 1")
    A(f"ds_add_u32 v{vt}, v{vt+1}")
    A("s_mov_b64 exec, -1")

def lwait(A, addr, target, vt, sleep=0):
    L = A.newlabel("LW")
    A(f"v_mov_b32 v{vt}, {addr}")
    A("s_mov_b32 s43, 0")
    A.label(L)
    A(f"ds_read_b32 v{vt+1}, v{vt}")
    A("s_add_u32 s43, s43, 1")
    A("s_waitcnt lgkmcnt(0)")
    A(f"v_readfirstlane_b32 s42, v{vt+1}")
    A("s_cmp_gt_u32 s43, 0x80000")
    A(f"s_cbranch_scc1 {L}_x")
    A(f"s_cmp_ge_u32 s42, {target}")
    if sleep:
        A(f"s_cbranch_scc1 {L}_x")
        A(f"s_sleep {sleep}")
        A(f"s_branch {L}")
    else:
        A(f"s_cbranch_scc0 {L}")
    A.label(L + "_x")

def merge(*chains):
    out = []; idx = [0] * len(chains)
    while any(idx[i] < len(chains[i]) for i in range(len(chains))):
        for i, ch in enumerate(chains):
            if idx[i] < len(ch):
                out.append(ch[idx[i]]); idx[i] += 1
    return out

class Rec:
    def __init__(self): self.L = []
    def __call__(self, s): self.L.append(s)

def chan_pair(A, dst, tmp):
    A(f"s_and_b32 s{dst}, s2, 7"); A(f"s_lshl_b32 s{dst}, s{dst}, 5"); A(f"s_lshr_b32 s{tmp}, s2, 3")
    A(f"s_add_u32 s{dst}, s{dst}, s{tmp}"); A(f"s_lshl_b32 s{dst}, s{dst}, 1")

def ka_wait(A):
    A("s_waitcnt lgkmcnt(0)")
    if PROF: A("s_mov_b32 s91, s38")
    srd(A, sWS, SP['ws'], WS_TOTAL)

def p1_ids(A):
    A("s_and_b32 s17, s2, 7")
    A("s_lshr_b32 s18, s2, 3")
    A("s_and_b32 s12, s17, 3")
    A("s_lshl_b32 s12, s12, 2")
    A("s_and_b32 s19, s18, 3")
    A("s_add_u32 s12, s12, s19")
    A("s_lshr_b32 s13, s17, 2")
    A("s_lshl_b32 s13, s13, 3")
    A("s_lshr_b32 s19, s18, 2")
    A("s_add_u32 s13, s13, s19")

def conv_part(A, p, vUA, vKB0, vKB1, ACC0, ACC1):
    ks = list({0: range(0, 24), 1: range(24, 48), 2: range(48, 80), 3: range(80, 128)}[p])
    q = DSQ(A)
    NB = 4
    FA, FB0, FB1 = 8, 24, 40
    def rd(i):
        k = ks[i]; b = i % NB
        A(f"ds_read_b64 {v(FA+4*b,2)}, v{vUA} offset:{32*k}"); q.issue(("a0", i))
        A(f"ds_read_b64 {v(FA+4*b+2,2)}, v{vUA} offset:{32*k+8}"); q.issue(("a1", i))
        off = (k//2)*80 + (k%2)*32
        A(f"ds_read_b128 {v(FB1+4*b,4)}, v{vKB1} offset:{off}"); q.issue(("b1", i))
        if k < 64:
            A(f"ds_read_b128 {v(FB0+4*b,4)}, v{vKB0} offset:{off}"); q.issue(("b0", i))
    n = len(ks)
    for i in range(min(NB-1, n)): rd(i)
    first0 = first1 = True
    for i in range(n):
        if i + NB - 1 < n: rd(i + NB - 1)
        k = ks[i]; b = i % NB
        q.wait(("b1", i))
        A(f"v_mfma_f32_32x32x16_bf16 {v(ACC1,16)}, {v(FA+4*b,4)}, {v(FB1+4*b,4)}, {'0' if first1 else v(ACC1,16)}"); first1 = False
        if k < 64:
            q.wait(("b0", i))
            A(f"v_mfma_f32_32x32x16_bf16 {v(ACC0,16)}, {v(FA+4*b,4)}, {v(FB0+4*b,4)}, {'0' if first0 else v(ACC0,16)}"); first0 = False

vY = [90, 91, 126, 127]

def p1_loader(A):
    vDX, vDX1, vDW = 2, 3, 5
    A("s_sub_u32 s15, s3, 4")
    A("s_setprio 3")
    A("v_lshrrev_b32 v9, 3, v0")
    A("v_lshrrev_b32 v10, 1, v9")
    A("v_xor_b32 v10, v10, v0")
    A("v_and_b32 v10, 7, v10")
    A("v_lshlrev_b32 v10, 4, v10")
    A(f"v_lshl_add_u32 v{vDX}, v9, 10, v10")
    A(f"v_xor_b32 v{vDX1}, 64, v{vDX}")
    A("s_lshl_b32 s20, s12, 17")
    A("s_lshl_b32 s17, s15, 14")
    A("s_add_u32 s20, s20, s17")
    A("s_lshl_b32 s21, s13, 6")
    A("s_lshl_b32 s22, s15, 11")
    A("s_lshl_b32 s23, s15, 10")
    A("s_add_u32 s23, s23, 16384")
    A("s_lshr_b32 s25, s2, 5")
    A("s_lshr_b32 s17, s2, 3")
    A("s_and_b32 s17, s17, 3")
    A("s_lshl_b32 s17, s17, 1")
    A("s_add_u32 s25, s25, s17")
    A("s_waitcnt lgkmcnt(0)")
    srd(A, 4, SP['x'], 2048*512*2)
    srd(A, 8, SP['wqkv'], 512*1536*2)
    def issue_x(c):
        slot = (c % NSLOT) * SLOT
        A(f"s_add_u32 s26, s25, {c}")
        A("s_and_b32 s26, s26, 7")
        A(f"s_lshl_b32 s24, s26, 7")
        A(f"s_add_u32 s24, s24, s20")
        A(f"s_add_u32 m0, s22, {slot}")
        A(f"s_mul_i32 s27, s26, {64*3072}")
        A(f"buffer_load_dwordx4 v{vDX}, s[4:7], s24 offen lds")
        A(f"s_add_u32 m0, s22, {slot + 1024}")
        A(f"s_add_u32 s24, s24, 8192")
        A(f"buffer_load_dwordx4 v{vDX1}, s[4:7], s24 offen lds")
    def issue_w(c, nw):
        slot = (c % NSLOT) * SLOT
        A(f"s_add_u32 m0, s23, {slot}")
        A(f"s_add_u32 s27, s27, s21")
        A(f"buffer_load_dwordx4 v{vDW}, s[8:11], s27 offen lds")
        if nw == 2:
            A(f"s_add_u32 m0, s23, {slot + 8192}")
            A("s_nop 0")
            A(f"buffer_load_dwordx4 v{vDW+1}, s[8:11], s27 offen lds")
    def wsetup():
        A("s_lshl_b32 s17, s15, 6")
        A("s_movk_i32 s18, 3072")
        A("s_mov_b32 s19, 43691")
        for i in range(2):
            A(f"v_add_u32 v9, s17, v0")
            if i: A(f"v_add_u32 v9, 512, v9")
            A("v_mul_u32_u24 v10, s19, v9")
            A("v_lshrrev_b32 v10, 19, v10")
            A("v_mul_u32_u24 v11, 12, v10")
            A("v_sub_u32 v11, v9, v11")
            A("v_lshrrev_b32 v12, 2, v10")
            A("v_and_b32 v12, 2, v12")
            A("v_xor_b32 v11, v11, v12")
            A("v_lshrrev_b32 v12, 2, v11")
            A("v_and_b32 v11, 3, v11")
            A("v_lshlrev_b32 v11, 4, v11")
            A("v_lshl_add_u32 v11, v12, 10, v11")
            A(f"v_mad_u32_u24 v{vDW+i}, v10, s18, v11")
    def gtab():
        A("s_getpc_b64 s[32:33]")
        L = A.newlabel("CPC"); A.label(L)
        A(f"s_add_u32 s32, s32, GTAB-{L}")
        A("s_addc_u32 s33, s33, 0")
        A("s_and_b32 s17, s15, 3"); A("s_lshl_b32 s17, s17, 11")
        A("v_lshlrev_b32 v14, 5, v0")
        A("v_add_u32 v14, s17, v14")
        A("global_load_dwordx4 v[96:99], v14, s[32:33]")
        A("global_load_dwordx4 v[100:103], v14, s[32:33] offset:16")
    def ut_loads():
        A("buffer_load_dwordx4 v[108:111], v117, s[32:35], 0 offen sc1")
        A("buffer_load_dwordx4 v[112:115], v116, s[32:35], 0 offen sc1")
        A("buffer_load_dwordx4 v[120:123], v119, s[32:35], 0 offen sc1")
    def ut_prep():
        chan_pair(A, 14, 17)
        A("s_lshr_b32 s16, s15, 2")
        A("s_add_u32 s17, s14, s16")
        A("s_lshl_b32 s17, s17, 12")
        A(f"s_add_u32 s17, s17, {WS_UT}")
        ka_wait(A)
        A(f"s_add_u32 s32, s{SP['ws']}, s17"); A(f"s_addc_u32 s33, s{SP['ws']+1}, 0")
        A("s_mov_b32 s34, 4096"); A("s_mov_b32 s35, 0x00020000")
        A("s_and_b32 s19, s15, 3"); A("s_lshl_b32 s19, s19, 10")
        A(f"v_add_u32 v116, s19, v{vL16}")
        A("v_subrev_u32 v117, 16, v116")
        A("v_cmp_eq_u32 vcc, 0, v116")
        A("v_mov_b32 v118, 4096")
        A("s_nop 0")
        A("v_cndmask_b32 v117, v117, v118, vcc")
        A("v_mov_b32 v119, 4096")
        A(f"v_mov_b32 v120, {255*16}")
        A("v_cmp_eq_u32 vcc, 3, v0")
        A("s_nop 1")
        A("v_cndmask_b32 v119, v119, v120, vcc")
    def loop(nw):
        per = 2 + nw
        issue_w(0, nw)
        issue_x(1); issue_w(1, nw)
        for c in range(8):
            last = min(7, c + 1)
            if c != 7: A(f"s_waitcnt vmcnt({per * (last - c)})")
            A("s_barrier")
            if c + AHEAD < 8:
                issue_x(c + AHEAD); issue_w(c + AHEAD, nw)
            if c == 5: ut_prep()
            if c == 6:
                L = A.newlabel("CVC")
                A(f"v_mov_b32 v30, {C_FU}")
                A("ds_read_b32 v31, v30")
                A("s_waitcnt lgkmcnt(0)")
                A("v_readfirstlane_b32 s40, v31")
                A("s_nop 0")
                A("s_cmp_eq_u32 s40, 0")
                A(f"s_cbranch_scc1 {L}")
                ut_loads()
                A("s_waitcnt vmcnt(3)")
                A(f"s_branch {L}b")
                A.label(L)
                A("s_waitcnt vmcnt(0)")
                A.label(L + "b")
    issue_x(0)
    wsetup()
    A("s_cmp_ge_u32 s15, 4")
    A("s_cbranch_scc1 P1_LOADER1")
    loop(2)
    A("s_branch P1_LOADER_END")
    A.label("P1_LOADER1")
    loop(1)
    A.label("P1_LOADER_END")
    A("s_setprio 1")
    stamp(A, 28)
    if os.environ.get("X_P1ONLY"): A("s_branch K_FIN")
    A("s_cmp_lg_u32 s40, 0")
    A("s_cbranch_scc1 CV_HAVE")
    lwait(A, C_FU, 1, 72, sleep=1)
    ut_loads()
    A.label("CV_HAVE")
    get_tag(A, vt=30)
    def copies(D, dest):
        T0, T1, T2 = 44, 48, 52
        for j in range(4): A(f"v_alignbit_b32 v{T0+j}, v{D+j+1}, v{D+j}, 16")
        for j in range(4): A(f"v_mov_b32 v{T1+j}, v{D+1+j}")
        for j in range(4): A(f"v_alignbit_b32 v{T2+j}, v{D+j+2}, v{D+j+1}, 16")
        A(f"ds_write_b128 v{dest}, {v(T0,4)}")
        A(f"ds_write_b128 v{dest}, {v(T1,4)} offset:{UC_RHO}")
        A(f"ds_write_b128 v{dest}, {v(T2,4)} offset:{2*UC_RHO}")
        A(f"ds_write_b128 v{dest}, {v(D+2,4)} offset:{3*UC_RHO}")
    A("s_lshr_b32 s16, s15, 2")
    A(f"s_mul_i32 s21, s16, {UC_CH}")
    A(f"s_add_u32 s21, s21, {L_UC + 48}")
    A("v_add_u32 v19, s21, v116")
    A(f"s_mul_i32 s23, s16, {KREV_SZ}")
    A(f"s_add_u32 s23, s23, {L_KREV}")
    A("v_and_b32 v9, 31, v0")
    A("v_lshrrev_b32 v10, 5, v0")
    A("v_and_b32 v11, 3, v9")
    A(f"v_mul_u32_u24 v11, {UC_RHO}, v11")
    A("v_lshrrev_b32 v12, 2, v9")
    A("v_lshl_add_u32 v11, v12, 3, v11")
    A("v_lshl_add_u32 v11, v10, 4, v11")
    A(f"s_mul_i32 s24, s16, {UC_CH}")
    A(f"s_add_u32 s24, s24, {L_UC}")
    A("v_add_u32 v4, s24, v11")
    A("v_sub_u32 v11, 63, v9")
    A("v_mul_u32_u24 v11, 80, v11")
    A("v_lshl_add_u32 v11, v10, 4, v11")
    A("v_add_u32 v5, s23, v11")
    A("v_subrev_u32 v6, 2560, v5")
    A("s_and_b32 s24, s15, 3")
    A(f"s_mul_i32 s25, s16, 28672")
    A("s_lshl_b32 s26, s24, 12")
    A("s_add_u32 s25, s25, s26")
    A(f"s_add_u32 s25, s25, {L_PART}")
    A(f"v_add_u32 v7, s25, v{vL16}")
    A("s_waitcnt vmcnt(0)")
    copies(108, 19)
    A("s_cmp_eq_u32 s19, 0")
    A("s_cbranch_scc0 CV_NOX2")
    for j in range(4): A(f"v_mov_b32 v{56+j}, v{120+j}")
    for j in range(4): A(f"v_mov_b32 v{60+j}, 0")
    A(f"v_mov_b32 v30, {259*16}")
    A("v_cmp_eq_u32 vcc, 3, v0")
    A("s_sub_u32 s21, s21, 48")
    A(f"v_cndmask_b32 v30, v{vL16}, v30, vcc")
    A("v_add_u32 v30, s21, v30")
    A("s_mov_b64 exec, 15")
    copies(56, 30)
    A("s_mov_b64 exec, -1")
    A.label("CV_NOX2")
    gsync(A, C_CV, 8, 8)
    stamp(A, 30)
    ACC0, ACC1 = 56, 72
    for p in range(4):
        if p < 3:
            A(f"s_cmp_eq_u32 s24, {p}")
            A(f"s_cbranch_scc0 CV_P{p+1}")
        conv_part(A, p, 4, 5, 6, ACC0, ACC1)
        A("s_nop 15")
        for qd in range(4):
            A(f"ds_write_b128 v7, {v(ACC1+4*qd,4)} offset:{qd*1024}")
        if p < 3:
            for qd in range(4):
                A(f"ds_write_b128 v7, {v(ACC0+4*qd,4)} offset:{16384 + qd*1024}")
            A("s_branch CV_PE")
            A.label(f"CV_P{p+1}")
    A.label("CV_PE")
    stamp(A, 31)
    gsync(A, C_CV, 16, 8)
    stamp(A, 32)
    A("s_lshl_b32 s26, s24, 10")
    A(f"s_add_u32 s26, s26, {L_PART}")
    A(f"v_add_u32 v4, s26, v{vL16}")
    A("s_cmp_eq_u32 s16, 0")
    A("s_cbranch_scc1 CV_F0")
    for c in range(2):
        for p in range(4):
            A(f"ds_read_b128 {v(16+16*c+4*p,4)}, v4 offset:{c*28672 + p*4096}")
    A("s_waitcnt lgkmcnt(0)")
    for c in range(2):
        for r in range(4):
            b_ = 16 + 16*c + r
            A(f"v_add_f32 v{b_}, v{b_}, v{b_+4}"); A(f"v_add_f32 v{b_+8}, v{b_+8}, v{b_+12}")
        for r in range(4):
            b_ = 16 + 16*c + r
            A(f"v_add_f32 v{b_}, v{b_}, v{b_+8}")
    A("s_branch CV_F1")
    A.label("CV_F0")
    for c in range(2):
        for p in range(3):
            A(f"ds_read_b128 {v(16+16*c+4*p,4)}, v4 offset:{c*28672 + 16384 + p*4096}")
    A("s_waitcnt lgkmcnt(0)")
    for c in range(2):
        for r in range(4):
            b_ = 16 + 16*c + r
            A(f"v_add_f32 v{b_}, v{b_}, v{b_+4}")
        for r in range(4):
            b_ = 16 + 16*c + r
            A(f"v_add_f32 v{b_}, v{b_}, v{b_+8}")
    A.label("CV_F1")
    for r in range(4):
        A(f"v_cvt_pk_bf16_f32 v{vY[r]}, v{16+r}, v{32+r}")
    A("s_lshl_b32 s36, s16, 21")
    A("s_lshl_b32 s25, s24, 14")
    A("s_add_u32 s36, s36, s25")
    A("s_lshl_b32 s25, s14, 1")
    A("s_add_u32 s36, s36, s25")
    A("s_setprio 0")
    stamp(A, 33)

def p1_compute(A):
    vFR, vACC, vXA, vWA = 8, 64, 112, 118
    A("v_and_b32 v4, 15, v0")
    A("v_lshrrev_b32 v5, 4, v0")
    A("v_lshrrev_b32 v6, 1, v4")
    A("v_xor_b32 v6, v6, v5")
    A("v_lshlrev_b32 v6, 4, v6")
    A("v_lshl_add_u32 v6, v4, 7, v6")
    A("s_lshr_b32 s17, s3, 1")
    A("s_lshl_b32 s17, s17, 13")
    A(f"v_add_u32 v{vXA}, s17, v6")
    A(f"v_xor_b32 v{vXA+1}, 64, v{vXA}")
    for st in (1, 2):
        A(f"v_add_u32 v{vXA+2*st}, {st*2*SLOT}, v{vXA}")
        A(f"v_add_u32 v{vXA+2*st+1}, {st*2*SLOT}, v{vXA+1}")
    A("v_lshrrev_b32 v6, 2, v4")
    A("v_lshl_add_u32 v6, v5, 3, v6")
    A("v_mul_u32_u24 v6, 192, v6")
    A("v_and_b32 v7, 3, v4")
    A("v_lshl_add_u32 v6, v7, 3, v6")
    A("s_and_b32 s17, s3, 1")
    A("v_xor_b32 v7, s17, v5")
    A("v_and_b32 v7, 1, v7")
    A(f"v_lshl_add_u32 v{vWA}, v7, 5, v6")
    A(f"v_add_u32 v{vWA+1}, {2*SLOT}, v{vWA}")
    A(f"v_add_u32 v{vWA+2}, {4*SLOT}, v{vWA}")
    A("s_and_b32 s18, s3, 1")
    A("s_lshl_b32 s19, s13, 1")
    A("s_add_u32 s18, s18, s19")
    A(f"s_lshl_b32 s16, s18, {5+FS}")
    A("s_lshl_b32 s18, s18, 16")
    A("s_lshr_b32 s19, s3, 1")
    A("s_lshl_b32 s24, s12, 1")
    A("s_add_u32 s24, s24, s19")
    A(f"s_lshl_b32 s25, s24, {FS}")
    A("s_add_u32 s16, s16, s25")
    A(f"s_add_u32 s16, s16, {WS_F1}")
    A("s_lshl_b32 s19, s24, 11")
    A("s_add_u32 s18, s18, s19")
    A(f"s_mov_b32 s17, 0x{f32bits(C_SCALE):08x}")
    A("s_setprio 3")
    q = DSQ(A)
    def fr(buf): return vFR + 28 * buf
    def rd_list(step):
        c, ks2 = step // 2, step % 2
        slot = c % NSLOT
        st, so = slot // 2, (slot % 2) * SLOT
        b = fr(step % 2)
        L = []
        for hf in range(2):
            L.append((f"ds_read_b64_tr_b16 {v(b+16+2*hf,2)}, v{vWA+st} offset:{so + 16384 + (32*ks2+4*hf)*192}", ("w", step, 0, hf)))
        for ti in range(4):
            L.append((f"ds_read_b128 {v(b+4*ti,4)}, v{vXA+2*st+ks2} offset:{so + ti*2048}", ("x", step, ti)))
        for gi in range(1, 3):
            for hf in range(2):
                L.append((f"ds_read_b64_tr_b16 {v(b+16+4*gi+2*hf,2)}, v{vWA+st} offset:{so + 16384 + (32*ks2+4*hf)*192 + 64*gi}", ("w", step, gi, hf)))
        return L
    def rd(step):
        for ins, tag in rd_list(step):
            A(ins); q.issue(tag)
    def mm(step, nxt=None):
        b = fr(step % 2)
        R = rd_list(nxt) if nxt is not None else []
        if os.environ.get("X_BURST"):
            for ins, tag in R:
                A(ins); q.issue(tag)
            R = []
        n = 0
        for gi in range(3):
            for ti in range(4):
                acc = vACC + (gi*4 + ti)*4
                X = v(b+4*ti, 4); W = v(b+16+4*gi, 4)
                cc = "0" if step == 0 else v(acc, 4)
                if gi == 0: q.wait(("x", step, ti))
                if ti == 0: q.wait(("w", step, gi, 1))
                if gi < 2: A(f"v_mfma_f32_16x16x32_bf16 {v(acc,4)}, {W}, {X}, {cc}")
                else:      A(f"v_mfma_f32_16x16x32_bf16 {v(acc,4)}, {X}, {W}, {cc}")
                if n < len(R):
                    A(R[n][0]); q.issue(R[n][1])
                n += 1
    kg_scalars(A, 3, 20, False)
    A(f"s_mul_i32 s21, s22, {L_TCH}")
    A("s_lshl_b32 s23, s24, 8")
    A("s_add_u32 s21, s21, s23")
    A(f"s_add_u32 s21, s21, {L_TA + L_TBO}")
    A("v_lshlrev_b32 v8, 2, v0")
    A("v_add_u32 v8, s21, v8")
    lwait(A, C_PAR, 4, 22, sleep=1)
    kg_read(A, 22, 24, 2, 21)
    A("s_cmp_eq_u32 s22, 0")
    A("s_cselect_b32 s21, 16, 0")
    A("s_lshl_b32 s26, s26, s21"); A("s_and_b32 s26, s26, 0xffff0000")
    kg_setup(A, 26, 21, False)
    kg_bside(A, 8)
    A("s_waitcnt lgkmcnt(0)")
    lsig(A, C_G, 2)
    stamp(A, 9)
    A("v_and_b32 v80, 15, v0")
    A("v_lshrrev_b32 v81, 4, v0")
    A("v_lshrrev_b32 v82, 2, v80")
    A("v_lshl_add_u32 v82, v81, 3, v82")
    A("v_lshlrev_b32 v84, 5, v82")
    A("v_lshlrev_b32 v82, 7, v82")
    A("v_and_b32 v83, 3, v80")
    A("v_lshl_add_u32 v82, v83, 3, v82")
    A("v_lshl_add_u32 v84, v83, 3, v84")
    A(f"v_add_u32 v84, {L_WOT}, v84")
    A("s_lshl_b32 s20, s3, 5")
    A(f"s_add_u32 s20, s20, {L_UTL}")
    A("v_add_u32 v82, s20, v82")
    A("v_lshlrev_b32 v83, 12, v80")
    A("v_lshl_add_u32 v83, v81, 4, v83")
    A("s_and_b32 s20, s2, 7"); A("s_lshl_b32 s20, s20, 2"); A("s_add_u32 s20, s20, s3")
    A(f"s_lshl_b32 s21, s20, {5+FS}")
    A("s_lshl_b32 s20, s20, 16")
    A("s_lshr_b32 s22, s2, 3")
    A("s_lshl_b32 s23, s22, 7")
    A("s_add_u32 s20, s20, s23")
    A(f"s_add_u32 s20, s20, {WS_UT}")
    A(f"s_lshl_b32 s23, s22, {FS}")
    A("s_add_u32 s21, s21, s23")
    A(f"s_add_u32 s21, s21, {WS_FU}")
    A("s_lshr_b32 s24, s2, 3"); A(f"s_lshl_b32 s22, s24, {3+FS}"); A("s_lshl_b32 s24, s24, 14")
    A("s_and_b32 s19, s2, 7"); A(f"s_lshl_b32 s23, s19, {FS}"); A("s_lshl_b32 s19, s19, 11")
    A("s_add_u32 s24, s24, s19")
    A(f"s_add_u32 s24, s24, {WS_WOF}")
    A("s_add_u32 s22, s22, s23")
    A(f"s_add_u32 s22, s22, {WS_F3}")
    lwait(A, C_GU, 4, 86, sleep=1)
    for p in range(2):
        for hf in range(2):
            A(f"ds_read_b64_tr_b16 {v(64+4*p+2*hf,2)}, v82 offset:{(32*p+4*hf)*128}")
    for s_ in range(2):
        for hf in range(2):
            A(f"ds_read_b64_tr_b16 {v(72+4*s_+2*hf,2)}, v84 offset:{(32*s_+4*hf)*32}")
    A("s_waitcnt lgkmcnt(0)")
    stamp(A, 25)
    A(f"buffer_store_dwordx4 v[64:67], v83, {WSRD}, s20 offen sc1")
    A(f"buffer_store_dwordx4 v[68:71], v83, {WSRD}, s20 offen offset:64 sc1")
    A("s_cmp_eq_u32 s3, 0")
    A("s_cbranch_scc0 PC_NW")
    A(f"buffer_store_dwordx4 v[72:75], v{vL16}, {WSRD}, s24 offen sc1")
    A(f"buffer_store_dwordx4 v[76:79], v{vL16}, {WSRD}, s24 offen offset:1024 sc1")
    A.label("PC_NW")
    get_tag(A)
    stamp(A, 19)
    for c in range(8):
        A("s_barrier")
        if c in (0, 7): stamp(A, 10 if c == 0 else 17)
        if c == int(os.environ.get("CFL", 1)):
            A("s_waitcnt vmcnt(0)")
            flag_store(A, 21, 2, 3)
            A("s_cmp_eq_u32 s3, 0")
            A("s_cbranch_scc0 PC_NF")
            flag_store(A, 22, 2, 3)
            A.label("PC_NF")
        if c == 0: rd(0)
        else: mm(2*c - 1, 2*c)
        mm(2*c, 2*c + 1)
        q.drain()
    lsig(A, C_DONE(7), 4)
    mm(15)
    stamp(A, 1)
    T = vFR
    n = 0
    for gi, base in ((1, WS_K), (2, WS_V), (0, WS_Q)):
        if gi == 0:
            for ti in range(4):
                for r in range(4):
                    A(f"v_mul_f32 v{vACC+ti*4+r}, s17, v{vACC+ti*4+r}")
        for pair in range(2):
            a0 = vACC + (gi*4 + 2*pair)*4; a1 = a0 + 4
            t = T + 4 * n; n += 1
            A(f"v_cvt_pk_bf16_f32 v{t}, v{a0}, v{a0+1}")
            A(f"v_cvt_pk_bf16_f32 v{t+1}, v{a0+2}, v{a0+3}")
            A(f"v_cvt_pk_bf16_f32 v{t+2}, v{a1}, v{a1+1}")
            A(f"v_cvt_pk_bf16_f32 v{t+3}, v{a1+2}, v{a1+3}")
            A(f"s_add_u32 s24, s18, {base + pair*1024}")
            A("s_nop 0")
            op = "v_permlane32_swap_b32" if gi == 2 else "v_permlane16_swap_b32"
            A(f"{op} v{t}, v{t+2}")
            A(f"{op} v{t+1}, v{t+3}")
            A("s_nop 1")
            A(f"buffer_store_dwordx4 {v(t,4)}, v{vL16}, {WSRD}, s24 offen sc1")
    stamp(A, 18)
    A("s_waitcnt vmcnt(0)")
    get_tag(A)
    flag_store(A, 16, 2, 3)
    lsig(A, C_OWN, 2)
    A("s_setprio 0")
    stamp(A, 2)
    if os.environ.get("X_P1ONLY"): A("s_branch K_FIN")

def cmul(A, D, X, S, T):
    A(f"v_pk_mul_f32 {v(T,2)}, {v(X,2)}, {v(S,2)} op_sel:[0,0] op_sel_hi:[1,0]")
    A(f"v_pk_fma_f32 {v(D,2)}, {v(X,2)}, {v(S,2)}, {v(T,2)} op_sel:[1,1,0] op_sel_hi:[0,1,1] neg_lo:[0,1,0]")

def fl(p): return f"{float(p)!r}" if p in (1, 2, 4) else f"0x{f32bits(float(p)):08x}"
def anchor(A, D, p, vt2, vw, tmp, conj=False):
    A(f"v_mul_f32 v{tmp}, {fl(p)}, v{vt2}")
    A(f"v_mul_f32 v{tmp+1}, {fl(p)}, v{vw}")
    A(f"v_exp_f32 v{tmp}, v{tmp}")
    A(f"v_fract_f32 v{tmp+1}, v{tmp+1}")
    A(f"v_cos_f32 v{D}, v{tmp+1}")
    A(f"v_sin_f32 v{D+1}, v{tmp+1}")
    A("s_nop 0")
    A(f"v_mul_f32 v{D}, v{D}, v{tmp}")
    if conj: A(f"v_mul_f32_e64 v{D+1}, -v{D+1}, v{tmp}")
    else: A(f"v_mul_f32 v{D+1}, v{D+1}, v{tmp}")

def kg_scalars(A, kw_sreg, s0, dsk):
    chan_pair(A, s0, s0+1)
    A(f"s_lshr_b32 s{s0+2}, s{kw_sreg}, 1")
    A(f"s_and_b32 s{s0+4}, s{kw_sreg}, 1")
    A(f"s_lshl_b32 s{s0+1}, s{s0}, 1")
    A(f"s_add_u32 s{s0+8}, s{SP['ldt']}, s{s0+1}"); A(f"s_addc_u32 s{s0+9}, s{SP['ldt']+1}, 0")
    A(f"s_load_dword s{s0+6}, s[{s0+8}:{s0+9}], 0")
    if dsk:
        A(f"s_add_u32 s{s0+10}, s{SP['dsk']}, s{s0+1}"); A(f"s_addc_u32 s{s0+11}, s{SP['dsk']+1}, 0")
        A(f"s_load_dword s{s0+7}, s[{s0+10}:{s0+11}], 0")

def kg_read(A, s_c, s_mh, narr, s_tmp):
    A(f"s_lshl_b32 s{s_tmp}, s{s_c}, 8")
    A(f"v_lshlrev_b32 v9, 1, v0")
    A(f"v_add_u32 v9, s{s_tmp}, v9")
    A(f"s_lshl_b32 s{s_tmp}, s{s_mh}, 7")
    A(f"s_add_u32 s{s_tmp}, s{s_tmp}, {L_PAR}")
    A(f"v_add_u32 v9, s{s_tmp}, v9")
    for i in range(narr):
        A(f"ds_read_u16 v{10+i}, v9 offset:{512*i}")
    A("s_waitcnt lgkmcnt(0)")

def kg_setup(A, s_ldt, s_tmp, full):
    vt2, vw, vY0, tmp = 16, 17, 18, 20
    A(f"s_mov_b32 s{s_tmp}, 0x{f32bits(LOG2E):08x}")
    A(f"v_mov_b32 v{tmp}, s{s_ldt}")
    A(f"v_lshlrev_b32 v10, 16, v10")
    A(f"v_mul_f32 v{tmp}, s{s_tmp}, v{tmp}")
    A(f"v_mul_f32 v10, s{s_tmp}, v10")
    A(f"v_exp_f32 v{tmp}, v{tmp}")
    A(f"v_exp_f32 v10, v10")
    A(f"v_lshlrev_b32 v11, 16, v11")
    A(f"v_cvt_pk_bf16_f32 v{tmp}, v{tmp}, v10")
    if full: A(f"v_lshlrev_b32 v12, 16, v12")
    A(f"v_and_b32 v10, 0xffff0000, v{tmp}")
    A(f"v_lshlrev_b32 v{tmp}, 16, v{tmp}")
    if full: A(f"v_lshlrev_b32 v13, 16, v13")
    A(f"v_mul_f32 v10, v10, v{tmp}")
    A(f"v_mul_f32 v11, v11, v{tmp}")
    A(f"v_mul_f32 v{vt2}, 0x{f32bits(-LOG2E):08x}, v10")
    A(f"v_mul_f32 v{vw}, 0x{f32bits(INV2PI):08x}, v11")
    if full:
        A(f"v_add_f32 v{tmp}, v{tmp}, v{tmp}")
        A(f"v_mul_f32 v{vY0}, v12, v{tmp}")
        A(f"v_mul_f32_e64 v{vY0+1}, -v13, v{tmp}")

def kg_bside(A, vaddr):
    vt2, vw = 16, 17
    X = [24, 26, 28, 30]; S16, S32 = 32, 34
    anchor(A, X[1], 8, vt2, vw, 36)
    A(f"v_mov_b32 v{X[0]}, 1.0"); A(f"v_mov_b32 v{X[0]+1}, 0")
    cmul(A, X[2], X[1], X[1], 36)
    cmul(A, X[3], X[1], X[2], 38)
    cmul(A, S32, X[2], X[2], 40)
    ch = [Rec() for _ in range(4)]
    for j in range(4):
        for b in range(j, 32, 4):
            p_ = 50 + 2*j + (b // 4) % 2
            ch[j](f"v_cvt_pk_bf16_f32 v{p_}, v{X[j]}, v{X[j]+1}")
            if b + 4 < 32: cmul(ch[j], X[j], X[j], S32, 42 + 2*j)
            ch[j](f"ds_write_b32 v{vaddr}, v{p_} offset:{b*528}")
    for ins in merge(*[c.L for c in ch]): A(ins)

def kg_aside(A, vaddr):
    vt2, vw, vY0 = 16, 17, 18
    F1, F256, F2, F4, Y, Z, W = 24, 26, 28, 30, 32, 34, 36
    r2, r3 = Rec(), Rec()
    anchor(r2, F1, 1, vt2, vw, 48, conj=True)
    anchor(r3, F256, 256, vt2, vw, 50, conj=True)
    for ins in merge(r2.L, r3.L): A(ins)
    cmul(A, F2, F1, F1, 48)
    cmul(A, Z, vY0, F256, 50)
    cmul(A, F4, F2, F2, 48)
    ay, az, aw = Rec(), Rec(), Rec()
    cnt = {}
    def put(ch, base, reg, row):
        n_ = cnt.get(base, 0); cnt[base] = n_ + 1
        p = base + n_ % 2
        ch(f"v_cvt_pk_bf16_f32 v{p}, v{reg}, v{reg+1}")
        ch(f"ds_write_b32 v{vaddr}, v{p} offset:{row*528}")
    put(ay, 60, vY0, 0)
    cmul(ay, Y, vY0, F1, 64); put(ay, 60, Y, 1)
    for r in range(2, 8):
        cmul(ay, Y, Y, F1, 64); put(ay, 60, Y, r)
    A(f"v_mov_b32 v{W}, v{Z}"); A(f"v_mov_b32 v{W+1}, v{Z+1}")
    put(aw, 68, W, 8)
    for r in (9, 10, 11):
        cmul(aw, W, W, F2, 70); put(aw, 68, W, r)
    V = 38
    cmul(az, Z, Z, F256, 66); put(az, 62, Z, 12)
    cmul(az, V, Z, F4, 72); put(az, 62, V, 13)
    cmul(az, Z, Z, F256, 66); put(az, 62, Z, 14)
    cmul(az, V, Z, F4, 72); put(az, 62, V, 15)
    for r in range(16, 21):
        cmul(az, Z, Z, F256, 66); put(az, 62, Z, r)
    for ins in merge(az.L, ay.L, aw.L): A(ins)

L_WOT = 57344 + 2048
def kgen_pre(A):
    A("s_sub_u32 s15, s3, 12")
    A("s_setprio 3")
    chan_pair(A, 14, 17)
    A("s_lshl_b32 s17, s14, 8")
    A("s_lshl_b32 s18, s15, 9")
    A("s_mov_b32 s40, -1"); A("s_mov_b32 s41, 0")
    A("v_lshrrev_b32 v14, 3, v0")
    A("v_lshlrev_b32 v14, 10, v14")
    A("v_and_b32 v13, 7, v0")
    A("v_lshl_add_u32 v14, v13, 4, v14")
    A("s_lshr_b32 s19, s2, 3"); A("s_lshl_b32 s19, s19, 16")
    A("s_lshl_b32 s16, s15, 14")
    A("s_add_u32 s19, s19, s16")
    A("s_and_b32 s16, s2, 7"); A("s_lshl_b32 s16, s16, 7")
    A("s_add_u32 s19, s19, s16")
    A("v_lshrrev_b32 v12, 1, v0")
    A("v_lshlrev_b32 v12, 10, v12")
    A("v_and_b32 v13, 1, v0")
    A("v_lshl_add_u32 v12, v13, 4, v12")
    ka_wait(A)
    A(f"s_mov_b32 s32, s{SP['lar']}"); A(f"s_mov_b32 s33, s{SP['lar']+1}")
    for mm_, nm in ((1, 'aim'), (2, 'cre'), (3, 'cim')):
        A(f"s_cmp_eq_u32 s15, {mm_}")
        A(f"s_cselect_b32 s32, s{SP[nm]}, s32"); A(f"s_cselect_b32 s33, s{SP[nm]+1}, s33")
    A(f"s_mov_b32 s34, {512*128*2}"); A("s_mov_b32 s35, 0x00020000")
    A(f"s_add_u32 m0, s18, {L_PAR}")
    A("s_mov_b64 exec, s[40:41]")
    A(f"buffer_load_dwordx4 v{vL16}, s[32:35], s17 offen lds")
    A("s_mov_b64 exec, -1")
    kg_scalars(A, 15, 20, True)
    A("s_getpc_b64 s[32:33]")
    A.label("KG_PC")
    A("s_add_u32 s32, s32, GTAB-KG_PC")
    A("s_addc_u32 s33, s33, 0")
    A("s_lshl_b32 s17, s15, 11")
    A("v_lshlrev_b32 v11, 5, v0")
    A("v_add_u32 v11, s17, v11")
    A("global_load_dwordx4 v[96:99], v11, s[32:33]")
    A("global_load_dwordx4 v[100:103], v11, s[32:33] offset:16")
    srd(A, 32, SP['u'], 2048*512*2)
    A(f"s_add_u32 m0, s17, {L_UTL}")
    A("s_nop 0")
    A("buffer_load_dwordx4 v14, s[32:35], s19 offen lds")
    A(f"s_add_u32 m0, s17, {L_UTL + 1024}")
    A("s_add_u32 s19, s19, 8192")
    A("buffer_load_dwordx4 v14, s[32:35], s19 offen lds")
    srd(A, 32, SP['wo'], 512*512*2)
    A("s_and_b32 s17, s2, 7"); A("s_lshl_b32 s17, s17, 16")
    A("s_lshl_b32 s19, s15, 14")
    A("s_add_u32 s17, s17, s19")
    A("s_lshr_b32 s19, s2, 3"); A("s_lshl_b32 s19, s19, 5")
    A("s_add_u32 s17, s17, s19")
    A(f"s_add_u32 m0, s18, {L_WOT}")
    A("s_mov_b64 exec, s[40:41]")
    A("buffer_load_dwordx4 v12, s[32:35], s17 offen lds")
    A("s_mov_b64 exec, -1")
    A("s_cmp_eq_u32 s15, 0")
    A("s_cbranch_scc0 KG_NE")
    A(f"s_mov_b32 s16, {WS_EP}")
    A("v_mov_b32 v9, 0")
    A("s_mov_b64 exec, 1")
    A(f"buffer_load_dword v{vE}, v9, {WSRD}, s16 offen sc1")
    A("s_mov_b64 exec, -1")
    A.label("KG_NE")

def kgen(A):
    A("s_mov_b32 s16, s22"); A("s_mov_b32 s18, s24"); A("s_mov_b32 s14, s20")
    A(f"s_mul_i32 s25, s16, {L_TCH}")
    A("s_lshl_b32 s23, s18, 8")
    A("s_add_u32 s25, s25, s23")
    A(f"s_add_u32 s25, s25, {L_TA}")
    A("v_lshlrev_b32 v15, 2, v0")
    A("v_add_u32 v15, s25, v15")
    A("s_cmp_eq_u32 s15, 0")
    A("s_cbranch_scc1 KG_WP")
    A("s_waitcnt vmcnt(5)")
    A.label("KG_WP")
    A("s_waitcnt vmcnt(6)")
    gsync(A, C_PAR, 4, 66)
    stamp(A, 24)
    kg_read(A, 16, 18, 4, 23)
    A("s_cmp_eq_u32 s16, 0")
    A("s_cselect_b32 s23, 16, 0")
    A("s_lshl_b32 s26, s26, s23"); A("s_and_b32 s26, s26, 0xffff0000")
    A("s_lshl_b32 s27, s27, s23"); A("s_and_b32 s27, s27, 0xffff0000")
    kg_setup(A, 26, 23, True)
    kg_aside(A, 15)
    A("s_waitcnt lgkmcnt(0)")
    lsig(A, C_G, 66)
    stamp(A, 21)
    A("s_waitcnt vmcnt(0)")
    A("s_cmp_eq_u32 s15, 0")
    A("s_cbranch_scc0 KG_NT")
    make_tag(A)
    A.label("KG_NT")
    A("s_waitcnt lgkmcnt(0)")
    lsig(A, C_GU, 86)
    A("v_and_b32 v9, 15, v0")
    A("v_lshrrev_b32 v10, 4, v0")
    A("v_mul_u32_u24 v11, 528, v9")
    A("v_lshl_add_u32 v11, v10, 4, v11")
    A(f"s_mul_i32 s25, s16, {L_TCH}")
    A(f"s_add_u32 s25, s25, {L_TA}")
    A(f"s_mul_i32 s23, s18, {16*528}")
    A("s_add_u32 s23, s23, s25")
    A("v_add_u32 v12, s23, v11")
    A(f"s_add_u32 s25, s25, {L_TBO}")
    A("v_add_u32 v13, s25, v11")
    A("s_lshl_b32 s25, s16, 11")
    A("s_lshl_b32 s23, s18, 10")
    A("s_add_u32 s25, s25, s23")
    A(f"s_add_u32 s25, s25, {L_T}")
    A("v_lshlrev_b32 v14, 8, v10")
    A("v_lshl_add_u32 v14, v9, 1, v14")
    A("v_add_u32 v14, s25, v14")
    A("s_cmp_eq_u32 s18, 0")
    A("s_cselect_b32 s27, s27, 0")
    A("v_mov_b32 v15, s27")
    lwait(A, C_G, 8, 86, sleep=1)
    stamp(A, 22)
    q = DSQ(A)
    def rd(s_):
        b = s_ % 4
        A(f"ds_read_b128 {v(16+4*b,4)}, v12 offset:{s_*64}"); q.issue(("a", s_))
        A(f"ds_read_b128 {v(32+4*b,4)}, v13 offset:{s_*64}"); q.issue(("b0", s_))
        A(f"ds_read_b128 {v(48+4*b,4)}, v13 offset:{16*528 + s_*64}"); q.issue(("b1", s_))
    for s_ in range(3): rd(s_)
    for s_ in range(8):
        if s_ + 3 < 8: rd(s_ + 3)
        b = s_ % 4
        q.wait(("b0", s_))
        A(f"v_mfma_f32_16x16x32_bf16 v[120:123], {v(16+4*b,4)}, {v(32+4*b,4)}, {'0' if s_==0 else 'v[120:123]'}")
        q.wait(("b1", s_))
        A(f"v_mfma_f32_16x16x32_bf16 v[4:7], {v(16+4*b,4)}, {v(48+4*b,4)}, {'0' if s_==0 else 'v[4:7]'}")
    A("s_nop 7")
    A("v_cmp_eq_u32 vcc, 0, v0")
    A("s_nop 1")
    A("v_cndmask_b32 v15, 0, v15, vcc")
    A("v_add_f32 v120, v120, v15")
    for ct, b_ in enumerate((120, 4)):
        A(f"v_cvt_pk_bf16_f32 v{16+2*ct}, v{b_}, v{b_+1}")
        A(f"v_cvt_pk_bf16_f32 v{17+2*ct}, v{b_+2}, v{b_+3}")
        A(f"ds_write_b16 v14, v{16+2*ct} offset:{32*ct}")
        A(f"ds_write_b16_d16_hi v14, v{16+2*ct} offset:{32*ct+64}")
        A(f"ds_write_b16 v14, v{17+2*ct} offset:{32*ct+128}")
        A(f"ds_write_b16_d16_hi v14, v{17+2*ct} offset:{32*ct+192}")
    gsync(A, C_GT2, 4, 2)
    stamp(A, 23)
    for e in range(8): A(f"v_add_u32 v{96+e}, {L_T}, v{96+e}")
    for c in range(2):
        for e in range(8):
            op = "ds_read_u16_d16_hi" if e % 2 else "ds_read_u16"
            A(f"{op} v{(32 if e % 2 else 16)+4*c+e//2}, v{96+e} offset:{c*2048}")
    A("s_lshl_b32 s25, s15, 6")
    A("v_add_u32 v9, s25, v0")
    A("v_lshrrev_b32 v10, 2, v9")
    A("v_mul_u32_u24 v10, 80, v10")
    A("v_and_b32 v9, 3, v9")
    A("v_lshl_add_u32 v10, v9, 4, v10")
    A(f"v_add_u32 v10, {L_KREV}, v10")
    for j in range(4): A(f"v_mov_b32 v{40+j}, 0")
    A(f"s_mul_i32 s25, s16, {KREV_SZ}")
    A(f"s_mul_i32 s23, s18, 1280")
    A("s_add_u32 s25, s25, s23")
    A(f"s_add_u32 s25, s25, {L_KREV + 64*80}")
    A(f"v_add_u32 v11, s25, v{vL16}")
    A("ds_write_b128 v11, v[40:43]")
    A("s_mov_b64 exec, 0xffff")
    A("ds_write_b128 v11, v[40:43] offset:1024")
    A("s_mov_b64 exec, -1")
    A("s_waitcnt lgkmcnt(10)")
    for j in range(4): A(f"v_or_b32 v{16+j}, v{16+j}, v{32+j}")
    A("s_waitcnt lgkmcnt(2)")
    for j in range(4): A(f"v_or_b32 v{20+j}, v{20+j}, v{36+j}")
    A("ds_write_b128 v10, v[16:19]")
    A(f"ds_write_b128 v10, v[20:23] offset:{KREV_SZ}")
    A("s_waitcnt lgkmcnt(0)")
    stamp(A, 27)
    FLAT = int(os.environ.get("FLAT", 3))
    for i in range(8):
        A("s_barrier")
        if i == FLAT:
            get_tag(A)
            chan_pair(A, 14, 17)
            A("s_lshr_b32 s28, s14, 4")
            A(f"s_lshl_b32 s28, s28, {5+FS}")
            A(f"s_add_u32 s28, s28, {WS_FU}")
            A(f"v_lshlrev_b32 v104, {FS}, v0")
            A("s_mov_b32 s40, 0")
        if i == FLAT + 2:
            A("s_cmp_eq_u32 s15, 3")
            A("s_cbranch_scc0 KG_L2")
            A("s_waitcnt vmcnt(0)")
            A("s_mov_b32 s30, -1"); A("s_mov_b32 s31, 0")
            A(f"v_cmp_ne_u32 vcc, s{sT}, v105")
            A("s_nop 1")
            A("s_and_b64 vcc, vcc, s[30:31]")
            A("s_cbranch_vccnz KG_L2")
            lsig(A, C_FU, 66)
            A("s_mov_b32 s40, 1")
            A.label("KG_L2")
        if i == FLAT + 1:
            A("s_cmp_eq_u32 s15, 3")
            A("s_cbranch_scc0 KG_L1")
            A("s_mov_b32 s30, -1"); A("s_mov_b32 s31, 0")
            A("s_mov_b64 exec, s[30:31]")
            A(f"buffer_load_dword v105, v104, {WSRD}, s28 offen sc1")
            A("s_mov_b64 exec, -1")
            A.label("KG_L1")
    A("s_cmp_eq_u32 s15, 3")
    A("s_cbranch_scc0 KG_END2")
    A("s_cmp_lg_u32 s40, 0")
    A("s_cbranch_scc1 KG_END2")
    poll(A, "KG_PU", 104, 28, "-1", 105, sleep=2)
    lsig(A, C_FU, 66)
    A.label("KG_END2")
    if os.environ.get("X_P1ONLY"): A("s_branch K_FIN")

vKA, vVA, vQ, vKF, vVF, vS, vP, vO, vM, vT = 2, 3, 4, 8, 16, 32, 64, 72, 88, 89
vLD = 92
vLW = 124
vLW2 = 89
NT = 32
SCHED = "e0 e1 PV1 RV e2 e3 c0 e4 e5 c1 QK RK e6 e7 c2 e8 e9 c3 e10 e11 PV0 c4 e12 e13 c5 e14 e15 c6 c7"
PRIO = {0: 3, 8: 2, 16: 1, 24: 0}

def attn_ids(A):
    A("s_and_b32 s12, s2, 7")
    A("s_lshl_b32 s12, s12, 2")
    A("s_lshr_b32 s13, s2, 3")
    A("s_and_b32 s17, s13, 3")
    A("s_add_u32 s12, s12, s17")
    A("s_lshr_b32 s13, s2, 5")
    A("s_lshl_b32 s17, s12, 16")

def ld_group(A):
    attn_setup(A)
    A("s_cmp_lt_u32 s3, 4")
    A("s_cselect_b32 s28, 0, 8")
    A("s_sub_u32 s28, s3, s28")
    A(f"v_lshlrev_b32 v8, {FS}, v0")
    A(f"s_lshl_b32 s27, s12, {5+FS}")
    A(f"s_add_u32 s27, s27, {WS_F1}")
    A("s_lshr_b32 s22, s28, 1")
    A("s_and_b32 s23, s28, 1"); A("s_lshl_b32 s23, s23, 1")
    A("s_and_b32 s4, s22, 1"); A("s_lshl_b32 s4, s4, 15")
    A("s_lshr_b32 s26, s22, 1"); A("s_lshl_b32 s26, s26, 21")
    A("s_add_u32 s4, s4, s26")
    A("s_lshl_b32 s26, s23, 10")
    A("s_add_u32 s4, s4, s26")
    A("s_add_u32 s4, s4, s17")
    A(f"s_add_u32 s4, s4, {WS_K}")
    A("s_lshl_b32 s24, s23, 12")
    A("s_lshl_b32 s26, s22, 10")
    A("s_add_u32 s24, s24, s26")
    A(f"v_add_u32 v{vLW2}, s24, v{vL16}")
    A("s_lshl_b32 s5, s13, 3"); A("s_add_u32 s5, s5, s28"); A("s_lshl_b32 s5, s5, 10"); A("s_add_u32 s5, s5, s17")
    A("s_lshl_b32 s6, s28, 10"); A(f"s_add_u32 s6, s6, {L_QS}")
    A(f"v_add_u32 v12, s6, v{vL16}")
    A("s_cmp_eq_u32 s3, 13")
    A("s_cbranch_scc0 LD_NOPOLL")
    lwait(A, C_OWN, 4, 44, sleep=2)
    poll(A, "LD_POLL", 8, 27, "-1", 13, sleep=2)
    lsig(A, C_F1, 44)
    A.label("LD_NOPOLL")
    lwait(A, C_F1, 1, 44, sleep=1)
    stamp(A, 3)
    def rload(r, d0):
        A(f"s_add_u32 s26, s13, {r}")
        A("s_and_b32 s26, s26, 7")
        A("s_lshl_b32 s26, s26, 12")
        A("s_add_u32 s26, s26, s4")
        A(f"buffer_load_dwordx4 {v(d0,4)}, v{vL16}, {WSRD}, s26 offen sc1")
        A(f"buffer_load_dwordx4 {v(d0+4,4)}, v{vL16}, {WSRD}, s26 offen offset:1024 sc1")
    rload(0, 32)
    A(f"buffer_load_dwordx4 v[40:43], v{vL16}, {WSRD}, s5 offen sc1")
    rload(1, vLD)
    rload(2, vLD + 8)
    lwait(A, C_DONE(7), 4, 44)
    A("s_waitcnt vmcnt(4)")
    A(f"ds_write_b128 v{vLW2}, v[32:35]")
    A(f"ds_write_b128 v{vLW2}, v[36:39] offset:4096")
    A("ds_write_b128 v12, v[40:43]")
    A("s_waitcnt vmcnt(2)")
    A(f"ds_write_b128 v{vLW2}, {v(vLD,4)} offset:16384")
    A(f"ds_write_b128 v{vLW2}, {v(vLD+4,4)} offset:20480")
    A("s_waitcnt vmcnt(0)")
    A(f"ds_write_b128 v{vLW2}, {v(vLD+8,4)} offset:32768")
    A(f"ds_write_b128 v{vLW2}, {v(vLD+12,4)} offset:36864")

def attn_setup(A):
    attn_ids(A)
    A("s_mov_b32 s20, 0x0000ffff")
    A("s_mov_b32 s21, 0x0000ffff")
    A("s_and_b32 s15, s3, 7")
    A("s_lshr_b32 s16, s3, 3")
    A("s_lshl_b32 s19, s16, 10")
    A(f"v_add_u32 v{vKA}, s19, v{vL16}")
    A("v_lshrrev_b32 v8, 5, v0")
    A("v_lshlrev_b32 v8, 8, v8")
    A("v_and_b32 v9, 15, v0")
    A("v_lshlrev_b32 v9, 4, v9")
    A("s_add_u32 s19, s19, 2048")
    A(f"v_add3_u32 v{vVA}, v8, v9, s19")
    A("v_and_b32 v8, 31, v0")
    A("v_cmp_eq_u32 vcc, 16, v8")
    A("v_mov_b32 v9, 0x3f803f80")
    A("s_lshl_b32 s22, s15, 10"); A(f"s_add_u32 s22, s22, {L_QS}")
    A("v_cndmask_b32 v9, 0, v9, vcc")
    A(f"v_add_u32 v{vQ}, s22, v{vL16}")
    for i in range(16): A(f"v_mov_b32 v{vVF+i}, v9")
    A(f"v_mov_b32 v{vM}, 0")
    A("s_lshl_b32 s18, s13, 3")
    A("s_add_u32 s18, s18, s15")
    A(f"s_lshl_b32 s19, s18, {5+FS}")
    A(f"s_lshl_b32 s22, s12, {FS}")
    A("s_add_u32 s19, s19, s22")
    A(f"s_add_u32 s19, s19, {WS_F2}")
    A("s_lshl_b32 s18, s18, 10")
    A("s_add_u32 s18, s18, s17")
    A("s_lshr_b32 s22, s3, 2")
    A("s_and_b32 s23, s3, 3")
    A("s_lshl_b32 s24, s23, 12")
    A("s_lshl_b32 s26, s22, 10")
    A("s_add_u32 s24, s24, s26")
    A(f"v_add_u32 v{vLW}, s24, v{vL16}")
    A("s_and_b32 s25, s22, 1"); A("s_lshl_b32 s25, s25, 15")
    A("s_lshr_b32 s26, s22, 1"); A("s_lshl_b32 s26, s26, 21")
    A("s_add_u32 s25, s25, s26")
    A("s_lshl_b32 s23, s23, 10")
    A("s_add_u32 s25, s25, s23")
    A("s_add_u32 s25, s25, s17")
    A(f"s_add_u32 s25, s25, {WS_K}")
    A("s_lshr_b32 s37, s2, 3"); A("s_and_b32 s37, s37, 3"); A("s_lshl_b32 s37, s37, 3"); A("s_add_u32 s37, s37, s15")

def attention(A):
    A("s_setprio 3")
    A("s_waitcnt lgkmcnt(0)")
    A("s_barrier")
    stamp(A, 4)
    A(f"ds_read_b128 {v(vQ,4)}, v{vQ}")
    q = DSQ(A)
    KF = lambda t: vKF + 4 * (t % 2)
    VF = lambda t, j: vVF + 8 * (t % 2) + 4 * j
    S = lambda t: vS + 16 * (t % 2)
    def rdK(t):
        A(f"ds_read_b128 {v(KF(t),4)}, v{vKA} offset:{(t%16)*4096}"); q.issue(("K", t))
    def rdV(t):
        A("s_mov_b64 exec, s[20:21]")
        A(f"ds_read_b128 {v(VF(t,0),4)}, v{vVA} offset:{(t%16)*4096}"); q.issue(("V0", t))
        A(f"ds_read_b128 {v(VF(t,1),4)}, v{vVA} offset:{(t%16)*4096+512}"); q.issue(("V1", t))
        A("s_mov_b64 exec, -1")
    def qk(t):
        q.wait(("K", t))
        A(f"v_mfma_f32_32x32x16_bf16 {v(S(t),16)}, {v(KF(t),4)}, {v(vQ,4)}, 0")
    def e(t, i): A(f"v_exp_f32 v{S(t)+i}, v{S(t)+i}")
    def c(t, k): A(f"v_cvt_pk_bf16_f32 v{vP+k}, v{S(t)+2*k}, v{S(t)+2*k+1}")
    def pv(t, j):
        cc = "0" if (t == 0 and j == 0) else v(vO, 16)
        A(f"v_mfma_f32_32x32x16_bf16 {v(vO,16)}, {v(VF(t,j),4)}, {v(vP+4*j,4)}, {cc}")
    rdK(0); rdK(1); rdV(0)
    qk(0)
    A("s_nop 7"); A("s_nop 3")
    for t in range(NT):
        A.comment(f"--- tile {t}")
        if t in PRIO: A(f"s_setprio {PRIO[t]}")
        for tok in SCHED.split():
            if tok[0] == 'e': e(t, int(tok[1:]))
            elif tok[0] == 'c': c(t, int(tok[1:]))
            elif tok == 'PV1':
                if t > 0: pv(t - 1, 1)
            elif tok == 'QK':
                if t + 1 < NT: qk(t + 1)
            elif tok == 'PV0':
                q.wait(("V1", t)); pv(t, 0)
            elif tok == 'RK':
                slot_of = {3: 4, 4: 5, 5: 6, 6: 7, 7: 0}
                XN = os.environ.get("X_NOLAND")
                if XN:
                    if t + 2 < NT: rdK(t + 2)
                    if t == 14: A(f"v_add_u32 v{vKA}, 65536, v{vKA}") if False else None
                    continue
                if t < 5:
                    r = 3 + t
                    A(f"s_add_u32 s26, s13, {r}")
                    A("s_and_b32 s26, s26, 7")
                    A("s_lshl_b32 s26, s26, 12")
                    A("s_add_u32 s26, s26, s25")
                    A(f"buffer_load_dwordx4 {v(vLD+4*slot_of[r],4)}, v{vL16}, {WSRD}, s26 offen sc1")
                if t == 6:
                    A("s_waitcnt vmcnt(0)")
                    A(f"ds_write_b128 v{vLW}, {v(vLD+4*slot_of[3],4)} offset:49152")
                    A(f"v_add_u32 v{vLW}, 65536, v{vLW}")
                    for r in range(4, 8):
                        A(f"ds_write_b128 v{vLW}, {v(vLD+4*slot_of[r],4)} offset:{r*16384 - 65536}")
                    A("s_waitcnt lgkmcnt(0)"); q.q = []
                    lsig(A, C_LAND, vT + 0) if False else None
                    A(f"v_mov_b32 v{vT}, {C_LAND}")
                    A(f"v_mov_b32 v{vLW}, 1")
                    A("s_mov_b64 exec, 1")
                    A(f"ds_add_u32 v{vT}, v{vLW}")
                    A("s_mov_b64 exec, -1")
                if t == 9:
                    A(f"ds_read_b32 v{vLW}, v{vT}"); q.issue(("land", 0))
                if t == 10:
                    q.wait(("land", 0))
                    A(f"v_readfirstlane_b32 s42, v{vLW}")
                    A("s_nop 0")
                    A("s_cmp_ge_u32 s42, 16")
                    A("s_cbranch_scc1 AT_LANDED")
                    lwait(A, C_LAND, 16, 126 if False else 12, sleep=1) if False else None
                    A.label("AT_LSPIN")
                    A(f"ds_read_b32 v{vLW}, v{vT}")
                    A("s_waitcnt lgkmcnt(0)")
                    A(f"v_readfirstlane_b32 s42, v{vLW}")
                    A("s_sleep 1")
                    A("s_cmp_ge_u32 s42, 16")
                    A("s_cbranch_scc0 AT_LSPIN")
                    A.label("AT_LANDED")
                    A(f"v_lshlrev_b32 v{vT}, {FS}, v0")
                    A(f"s_lshl_b32 s26, s37, {3+FS}")
                    A(f"s_add_u32 s26, s26, {WS_F3}")
                    A("s_mov_b64 exec, 0xff")
                    A(f"buffer_load_dword v{vLW}, v{vT}, {WSRD}, s26 offen sc1")
                    A("s_mov_b64 exec, -1")
                if t == 12:
                    A("s_waitcnt vmcnt(0)")
                    check_or_poll(A, "AT_P3", vT, 26, "0xff", vLW)
                    A("s_lshl_b32 s27, s37, 14")
                    A("s_lshl_b32 s26, s16, 13")
                    A("s_add_u32 s27, s27, s26")
                    A(f"s_add_u32 s27, s27, {WS_WOF}")
                if 12 <= t < 20:
                    A(f"buffer_load_dwordx4 {v(vLD+4*(t-12),4)}, v{vL16}, {WSRD}, s27 offen sc1")
                    A("s_add_u32 s27, s27, 1024")
                if t == 20:
                    A("s_sub_u32 s26, s3, 4")
                    A("s_cmp_lt_u32 s26, 8")
                    A("s_cbranch_scc0 AT_NY0")
                    A(f"v_and_b32 v{vT}, 31, v0")
                    A(f"v_lshrrev_b32 v{vLW}, 5, v0")
                    A(f"v_lshlrev_b32 v{vT}, 16, v{vT}")
                    A(f"v_lshl_add_u32 v{vT}, v{vLW}, 13, v{vT}")
                    A.label("AT_NY0")
                    srd(A, 4, SP['out'], 2048*1024*2)
                if 21 <= t < 25:
                    r = t - 21
                    A("s_sub_u32 s26, s3, 4")
                    A("s_cmp_lt_u32 s26, 8")
                    A(f"s_cbranch_scc0 AT_NY{r+1}")
                    if r == 2: A("s_add_u32 s36, s36, 4096")
                    A(f"buffer_store_dword v{vY[r]}, v{vT}, s[4:7], s36 offen" + (" offset:2048" if r % 2 else ""))
                    A.label(f"AT_NY{r+1}")
                WBL = [int(x) for x in os.environ.get("WBL", "").split(",") if x]
                if t in WBL:
                    A("s_lshr_b32 s26, s2, 3")
                    A("s_lshl_b32 s26, s26, 4")
                    A("s_add_u32 s26, s26, s3")
                    A("s_cmp_eq_u32 s26, 15")
                    A(f"s_cbranch_scc0 AT_WB{t}")
                    A("buffer_wbl2 sc1")
                    A.label(f"AT_WB{t}")
                if t == 14:
                    A(f"v_add_u32 v{vKA}, 65536, v{vKA}")
                if t + 2 < NT: rdK(t + 2)
            elif tok == 'RV':
                if t == 15:
                    A(f"v_add_u32 v{vVA}, 65536, v{vVA}")
                if t + 1 < NT: rdV(t + 1)
            else: raise ValueError(tok)
    A("s_nop 1")
    pv(NT - 1, 1)
    A("s_nop 15")
    stamp(A, 5)
    A(f"v_mov_b32 v{vT}, v{vO+8}")
    A("s_nop 1")
    A(f"v_permlane32_swap_b32 v{vT}, v{vO+8}")
    A("s_nop 1")
    A(f"v_mov_b32 v{vO+8}, v{vT}")
    A("s_mov_b32 s28, 0x1f800000")
    A("s_mov_b32 s29, 0x5f800000")
    A(f"v_cmp_le_f32 vcc, s28, v{vO+8}")
    A(f"v_cmp_ge_f32 s[30:31], s29, v{vO+8}")
    A("s_nop 1")
    A("s_and_b64 vcc, vcc, s[30:31]")
    A("s_cmp_eq_u64 vcc, -1")
    A("s_cbranch_scc0 AT_FALLBACK")
    A.label("AT_COMBINE")
    A("s_lshl_b32 s17, s15, 11")
    A(f"s_add_u32 s17, s17, {L_SCR}")
    A(f"v_add_u32 v{vT}, s17, v{vL16}")
    A("v_lshlrev_b32 v12, 3, v0")
    A("s_lshl_b32 s17, s15, 9")
    A(f"s_add_u32 s17, s17, {L_KREV}")
    A(f"v_add_u32 v12, s17, v12")
    A("s_cmp_eq_u32 s16, 0")
    A("s_cbranch_scc1 AT_LOW")
    A(f"ds_write_b128 v{vT}, {v(vO,4)}")
    A(f"ds_write_b128 v{vT}, {v(vO+4,4)} offset:1024")
    A(f"v_mov_b32 v{vO+9}, v{vM}")
    A(f"ds_write_b64 v12, {v(vO+8,2)}")
    A("s_waitcnt lgkmcnt(0)")
    A("s_barrier")
    A("s_branch AT_DONE")
    A.label("AT_LOW")
    A("s_barrier")
    B = vS
    A(f"ds_read_b128 {v(B,4)}, v{vT}")
    A(f"ds_read_b128 {v(B+4,4)}, v{vT} offset:1024")
    A(f"ds_read_b64 {v(B+8,2)}, v12")
    A("s_waitcnt lgkmcnt(0)")
    t0, t1, t2 = 8, 9, 10
    A(f"v_max_f32 v{t0}, v{vM}, v{B+9}")
    A(f"v_sub_f32 v{t1}, v{vM}, v{t0}")
    A(f"v_sub_f32 v{t2}, v{B+9}, v{t0}")
    A(f"v_exp_f32 v{t1}, v{t1}")
    A(f"v_exp_f32 v{t2}, v{t2}")
    A("s_nop 0")
    for i in range(9):
        A(f"v_mul_f32 v{vO+i}, v{vO+i}, v{t1}")
    for i in range(9):
        A(f"v_fmac_f32 v{vO+i}, v{B+i}, v{t2}")
    A(f"v_rcp_f32 v{t0}, v{vO+8}")
    A("s_nop 0")
    for i in range(8):
        A(f"v_mul_f32 v{vO+i}, v{vO+i}, v{t0}")
    for k in range(4):
        A(f"v_cvt_pk_bf16_f32 v{vP+k}, v{vO+2*k}, v{vO+2*k+1}")
    A("s_nop 1")
    A(f"v_permlane32_swap_b32 v{vP}, v{vP+2}")
    A(f"v_permlane32_swap_b32 v{vP+1}, v{vP+3}")
    A(f"s_add_u32 s18, s18, {WS_O}")
    A("s_nop 1")
    A(f"buffer_store_dwordx4 {v(vP,4)}, v{vL16}, {WSRD}, s18 offen sc1")
    A("s_waitcnt vmcnt(0)")
    flag_store(A, 19, 12, 13)
    lsig(A, C_OWN2, 12)
    A.label("AT_DONE")
    stamp(A, 6)

def attention_fallback(A):
    A.label("AT_FALLBACK")
    A(f"v_mov_b32 v{vM}, 0xff800000")
    A(f"v_subrev_u32 v{vT}, 65536, v{vKA}")
    A("s_mov_b32 s17, 0")
    A.label("AT_FB1")
    A(f"ds_read_b128 {v(vKF,4)}, v{vT}")
    A(f"v_add_u32 v{vT}, 4096, v{vT}")
    A("s_waitcnt lgkmcnt(0)")
    A(f"v_mfma_f32_32x32x16_bf16 {v(vS,16)}, {v(vKF,4)}, {v(vQ,4)}, 0")
    A("s_nop 15")
    for k in range(8):
        A(f"v_max3_f32 v{vM}, v{vS+2*k}, v{vS+2*k+1}, v{vM}")
    A("s_add_u32 s17, s17, 1")
    A("s_cmp_lt_u32 s17, 32")
    A("s_cbranch_scc1 AT_FB1")
    A(f"v_mov_b32 v{vT}, v{vM}")
    A(f"v_mov_b32 v12, v{vM}")
    A("s_nop 1")
    A(f"v_permlane32_swap_b32 v{vT}, v12")
    A("s_nop 1")
    A(f"v_max_f32 v{vM}, v{vT}, v12")
    for i in range(16): A(f"v_mov_b32 v{vO+i}, 0")
    A(f"v_subrev_u32 v{vT}, 65536, v{vKA}")
    A(f"v_subrev_u32 v12, 65536, v{vVA}")
    A("s_mov_b32 s17, 0")
    A.label("AT_FB2")
    A(f"ds_read_b128 {v(vKF,4)}, v{vT}")
    A("s_mov_b64 exec, s[20:21]")
    A(f"ds_read_b128 {v(vVF,4)}, v12")
    A(f"ds_read_b128 {v(vVF+4,4)}, v12 offset:512")
    A("s_mov_b64 exec, -1")
    A(f"v_add_u32 v{vT}, 4096, v{vT}")
    A(f"v_add_u32 v12, 4096, v12")
    A("s_waitcnt lgkmcnt(0)")
    A(f"v_mfma_f32_32x32x16_bf16 {v(vS,16)}, {v(vKF,4)}, {v(vQ,4)}, 0")
    A("s_nop 15")
    for i in range(16): A(f"v_sub_f32 v{vS+i}, v{vS+i}, v{vM}")
    for i in range(16): A(f"v_exp_f32 v{vS+i}, v{vS+i}")
    A("s_nop 0")
    for k in range(8): A(f"v_cvt_pk_bf16_f32 v{vP+k}, v{vS+2*k}, v{vS+2*k+1}")
    A("s_nop 1")
    A(f"v_mfma_f32_32x32x16_bf16 {v(vO,16)}, {v(vVF,4)}, {v(vP,4)}, {v(vO,16)}")
    A(f"v_mfma_f32_32x32x16_bf16 {v(vO,16)}, {v(vVF+4,4)}, {v(vP+4,4)}, {v(vO,16)}")
    A("s_add_u32 s17, s17, 1")
    A("s_cmp_lt_u32 s17, 32")
    A("s_cbranch_scc1 AT_FB2")
    A("s_nop 15")
    A(f"v_mov_b32 v{vT}, v{vO+8}")
    A("s_nop 1")
    A(f"v_permlane32_swap_b32 v{vT}, v{vO+8}")
    A("s_nop 1")
    A(f"v_mov_b32 v{vO+8}, v{vT}")
    A("s_branch AT_COMBINE")

def tail(A):
    A("s_and_b32 s12, s2, 7"); A("s_lshl_b32 s12, s12, 3"); A("s_lshr_b32 s13, s2, 5"); A("s_add_u32 s12, s12, s13")
    A("s_lshr_b32 s13, s2, 3"); A("s_and_b32 s13, s13, 3")
    A(f"v_lshlrev_b32 v10, {FS}, v0")
    A(f"s_lshl_b32 s17, s12, {5+FS}")
    A(f"s_add_u32 s17, s17, {WS_F2}")
    A("s_cmp_eq_u32 s3, 8")
    A("s_cbranch_scc0 TL_NOPOLL")
    lwait(A, C_OWN2, 8, 12, sleep=1)
    poll(A, "TL_P2", 10, 17, "-1", 12, sleep=1)
    lsig(A, C_F2, 12)
    A.label("TL_NOPOLL")
    A("v_and_b32 v4, 15, v0")
    A("v_lshrrev_b32 v5, 4, v0")
    A("v_lshlrev_b32 v14, 9, v5")
    A("v_lshl_add_u32 v14, v4, 4, v14")
    A("s_lshl_b32 s17, s16, 14")
    A(f"s_add_u32 s17, s17, {L_OT}")
    A(f"v_add_u32 v14, s17, v14")
    A("v_lshlrev_b32 v15, 11, v4")
    A("v_lshl_add_u32 v15, v5, 3, v15")
    A("s_lshl_b32 s20, s12, 16")
    A("s_lshl_b32 s19, s16, 15")
    A("s_add_u32 s20, s20, s19")
    A("s_lshl_b32 s19, s13, 8")
    A("s_add_u32 s20, s20, s19")
    A("s_lshl_b32 s19, s15, 5")
    A("s_add_u32 s20, s20, s19")
    A("s_add_u32 s20, s20, 1024")
    srd(A, 4, SP['out'], 2048*1024*2)
    A("s_lshl_b32 s17, s3, 10")
    A(f"s_add_u32 s17, s17, {L_PC}")
    A(f"v_add_u32 v6, s17, v{vL16}")
    A("s_xor_b32 s17, s17, 8192")
    A(f"v_add_u32 v7, s17, v{vL16}")
    A("s_lshl_b32 s17, s3, 17")
    A("s_lshl_b32 s18, s12, 10")
    A("s_add_u32 s17, s17, s18")
    A(f"s_add_u32 s17, s17, {WS_O}")
    A("s_lshl_b32 s18, s3, 11")
    A(f"s_add_u32 s18, s18, {L_OT}")
    A(f"v_add_u32 v13, s18, v{vL16}")
    lwait(A, C_F2, 1, 8, sleep=1)
    stamp(A, 43)
    A(f"buffer_load_dwordx4 v[16:19], v{vL16}, {WSRD}, s17 offen sc1")
    A("s_add_u32 s17, s17, 65536")
    A(f"buffer_load_dwordx4 v[20:23], v{vL16}, {WSRD}, s17 offen sc1")
    A("s_waitcnt vmcnt(1)")
    A("ds_write_b128 v13, v[16:19]")
    A("s_waitcnt vmcnt(0)")
    A("ds_write_b128 v13, v[20:23] offset:1024")
    A("s_waitcnt lgkmcnt(0)")
    stamp(A, 44)
    A("s_barrier")
    stamp(A, 45)
    q = DSQ(A)
    FO = 16
    def rd(s_):
        b = s_ % 3
        for th in range(2):
            A(f"ds_read_b128 {v(FO+12*th+4*b,4)}, v14 offset:{s_*2048 + th*256}"); q.issue(("o", s_, th))
    rd(0); rd(1)
    for s_ in range(8):
        if s_ + 2 < 8: rd(s_ + 2)
        b = s_ % 3
        for th in range(2):
            q.wait(("o", s_, th))
            cc = "0" if s_ == 0 else v(40+4*th, 4)
            A(f"v_mfma_f32_16x16x32_bf16 {v(40+4*th,4)}, {v(vLD+4*s_,4)}, {v(FO+12*th+4*b,4)}, {cc}")
    A("s_cmp_eq_u32 s2, 0")
    A("s_cbranch_scc0 TL_NE")
    A("s_cmp_eq_u32 s3, 8")
    A("s_cbranch_scc0 TL_NE")
    A(f"s_mov_b32 s17, {WS_EP}")
    flag_store(A, 17, 12, 13)
    A.label("TL_NE")
    A("s_nop 7")
    A("s_cmp_eq_u32 s16, 0")
    A("s_cbranch_scc1 TL_LO")
    A("ds_write_b128 v6, v[40:43]")
    for i in range(4): A(f"v_mov_b32 v{40+i}, v{44+i}")
    A("s_branch TL_X")
    A.label("TL_LO")
    A("ds_write_b128 v6, v[44:47]")
    A.label("TL_X")
    A("s_waitcnt lgkmcnt(0)")
    A("s_barrier")
    A("ds_read_b128 v[16:19], v7")
    A("s_waitcnt lgkmcnt(0)")
    for i in range(4):
        A(f"v_add_f32 v{40+i}, v{40+i}, v{16+i}")
    A("v_cvt_pk_bf16_f32 v48, v40, v41")
    A("v_cvt_pk_bf16_f32 v49, v42, v43")
    A("buffer_store_dwordx2 v[48:49], v15, s[4:7], s20 offen")

def gen():
    A = Asm()
    kernel_begin(A, NAME)
    A.label("K_START")
    if not os.environ.get("NOPF"):
        A("s_getpc_b64 s[4:5]")
        A.label("PF_PC")
        A("v_lshlrev_b32 v2, 7, v0")
        A("v_cmp_gt_u32 vcc, GTAB_END-PF_PC-128, v2")
        A("s_and_saveexec_b64 s[6:7], vcc")
        A("s_cbranch_execz PF_DONE")
        A(f"global_load_dword v{vE}, v2, s[4:5]")
        A.label("PF_DONE")
        A("s_mov_b64 exec, s[6:7]")
    if DBG: A("v_mov_b32 v125, 0")
    if PROF:
        A("v_mov_b32 v125, 0")
        A("s_memrealtime s[38:39]")
    stamp(A, 0)
    A("s_cmp_ge_u32 s2, 256")
    A("s_cbranch_scc1 K_END")
    A("s_load_dwordx16 s[64:79], s[0:1], 0")
    A("s_load_dwordx8 s[80:87], s[0:1], 64")
    A("s_load_dwordx2 s[88:89], s[0:1], 96")
    A("v_lshrrev_b32 v8, 6, v0")
    A("v_and_b32 v0, 63, v0")
    A("v_readfirstlane_b32 s3, v8")
    A(f"v_lshlrev_b32 v{vL16}, 4, v0")
    p1_ids(A)
    A("s_cmp_eq_u32 s3, 12")
    A("s_cbranch_scc0 E_NZ")
    A("v_lshlrev_b32 v20, 2, v0")
    A(f"v_add_u32 v20, {L_CNT}, v20")
    A("v_mov_b32 v24, 0")
    A("ds_write_b32 v20, v24")
    A.label("E_NZ")
    A("s_cmp_ge_u32 s3, 12")
    A("s_cbranch_scc0 E_NG")
    kgen_pre(A)
    A.label("E_NG")
    ka_wait(A)
    A("s_barrier")
    A("s_cmp_lt_u32 s3, 4")
    A("s_cbranch_scc1 R_COMPUTE")
    A("s_cmp_ge_u32 s3, 12")
    A("s_cbranch_scc1 R_KGEN")
    p1_loader(A)
    attn_setup(A)
    A("s_branch R_JOIN")
    A.label("R_KGEN")
    kgen(A)
    A("s_branch R_LD")
    A.label("R_COMPUTE")
    p1_compute(A)
    A.label("R_LD")
    ld_group(A)
    A.label("R_JOIN")
    attention(A)
    tail(A)
    A.label("K_FIN")
    stamp(A, 50)
    A("s_waitcnt vmcnt(0)")
    stamp(A, 51)
    write_stamps(A)
    if DBG:
        A("s_cmp_eq_u32 s2, 8"); A("s_cbranch_scc0 K_END")
        A("s_cmp_eq_u32 s3, 0"); A("s_cbranch_scc0 K_END")
        A("s_memtime s[48:49]"); A("s_memrealtime s[50:51]"); A("s_waitcnt lgkmcnt(0)")
        A("v_readlane_b32 s52, v125, 0"); A("v_readlane_b32 s53, v125, 1")
        A("s_nop 3")
        A("v_writelane_b32 v125, s48, 0"); A("v_writelane_b32 v125, s50, 1")
        A("v_and_b32 v16, 1, v0")
        A("v_cmp_eq_u32 vcc, 0, v16")
        A("v_mov_b32 v17, s53"); A("v_mov_b32 v18, s52")
        A("s_nop 1")
        A("v_cndmask_b32 v17, v17, v18, vcc")
        A("v_sub_u32 v17, v125, v17")
        srd(A, 4, SP['dbg'], 256)
        A("v_lshlrev_b32 v16, 2, v0")
        A("s_mov_b64 exec, 0xffff")
        A("buffer_store_dword v17, v16, s[4:7], 0 offen")
        A("s_waitcnt vmcnt(0)")
    A.label("K_END")
    A("s_endpgm")
    attention_fallback(A)
    A(".p2align 6")
    A(".type GTAB,@object")
    A.label("GTAB")
    t = gather_table()
    for i in range(0, 2048, 16):
        A(".long " + ", ".join(str(int(x)) for x in t[i:i+16]))
    A(".size GTAB, 8192")
    A.label("GTAB_END")
    hdr_src = open("concat_heads__ssm_conv_s4d__mha_block__prompt.s.ref").read().split("\n")
    hdr = [l for l in hdr_src if l.startswith(";") and "@launch" not in l and "Override launch" not in l and "grid=ceil" not in l]
    out = "\n".join(hdr) + "\n; @launch grid=(256,1,1) block=(1024,1,1) lds=163840\n"
    out += '.amdgcn_target "amdgcn-amd-amdhsa--gfx950"\n'
    out += A.text() + kernel_desc(NAME, 128, 100)
    return out

if __name__ == "__main__":
    open(sys.argv[1] if len(sys.argv) > 1 else "fused.s", "w").write(gen())
```

```python
import os, struct, sys
from asmlib import *
from ssm_common import gather_table

NAME = "concat_heads__ssm_conv_s4d__mha_block__prompt_kernel"
PROF = bool(os.environ.get("PROF"))
DBG = bool(os.environ.get("DBG"))
DBGMAP = {0: 0, 10: 1, 1: 2, 2: 3, 4: 4, 5: 5, 6: 6, 45: 7}

def f32bits(x): return struct.unpack("<I", struct.pack("<f", x))[0]
LOG2E = 1.4426950408889634
INV2PI = 0.15915494309189535
C_SCALE = 0.25 * LOG2E

WS_Q = 0x000000; WS_K = 0x200000; WS_V = 0x400000; WS_O = 0x600000
WS_UT = 0x800000
WS_WOF = 0xA00000
FS = 8
WS_F1 = 0xA80000
WS_F2 = 0xAC0000
WS_F3 = 0xB40000
WS_FU = 0xB50000
WS_EP = 0xB90000
WS_TOTAL = 0xBA0000
WS_PROF = 0x1000000
SP = dict(u=64, lar=66, aim=68, cre=70, cim=72, ldt=74, dsk=76, x=78, wqkv=80, wo=82, out=84, dbg=86, ws=88)
sWS = 44
WSRD = f"s[{sWS}:{sWS+3}]"
sT = 90
vL16 = 1
vE = 127

SLOT = 28672; NSLOT = 3; AHEAD = 2
L_TA = 86016; L_TBO = 11088; L_TCH = 27984
L_T = 143360
L_CNT = 147968
C_G = L_CNT; C_CV = L_CNT + 4; C_WO = L_CNT + 8; C_KR = L_CNT + 12
def C_RDY(c): return L_CNT + 16 + 4*c
def C_DONE(c): return L_CNT + 48 + 4*c
C_FU = L_CNT + 80; C_F1 = L_CNT + 84; C_F2 = L_CNT + 88; C_ISS = L_CNT + 92; C_T = L_CNT + 96; C_GU = L_CNT + 100; C_GT = L_CNT + 104; C_OWN = L_CNT + 108; C_OWN2 = L_CNT + 112; C_PAR = L_CNT + 116; C_GT2 = L_CNT + 120; C_LAND = L_CNT + 128
L_PAR = 57344
L_KREV = 148480; KREV_SZ = 7680
L_UTL = 57344 + 4096
L_WOT = 86016
L_UC = 57344; UC_RHO = 4160; UC_CH = 16640
L_PART = 90624
L_QS = 49152
L_SCR = 131072
L_OT = 0
L_PC = 32768

class DSQ:
    def __init__(self, A): self.A = A; self.q = []
    def issue(self, tag): self.q.append(tag)
    def wait(self, tag):
        if tag not in self.q: return
        i = len(self.q) - 1 - self.q[::-1].index(tag)
        n = len(self.q) - 1 - i
        assert n <= 15, n
        self.A(f"s_waitcnt lgkmcnt({n})")
        self.q = self.q[i+1:]
    def room(self):
        if len(self.q) >= 15: self.wait(self.q[0])
    def drain(self):
        self.A("s_waitcnt lgkmcnt(0)"); self.q = []

def stamp(A, k):
    if DBG and k in DBGMAP:
        j = DBGMAP[k]
        A("s_memtime s[48:49]")
        A("s_memrealtime s[50:51]")
        A("s_waitcnt lgkmcnt(0)")
        A(f"v_writelane_b32 v125, s48, {2*j}")
        A(f"v_writelane_b32 v125, s50, {2*j+1}")
    if PROF:
        A("s_memtime s[48:49]")
        A("s_waitcnt lgkmcnt(0)")
        A(f"v_writelane_b32 v125, s48, {k}")

def write_stamps(A):
    if not PROF: return
    A("s_memrealtime s[40:41]")
    A("s_waitcnt lgkmcnt(0)")
    A(f"v_writelane_b32 v125, s40, 62")
    A(f"v_writelane_b32 v125, s91, 63")
    A(f"s_add_u32 s92, s{SP['ws']}, {WS_PROF}")
    A(f"s_addc_u32 s93, s{SP['ws']+1}, 0")
    A("s_mov_b32 s94, 0x200000")
    A("s_mov_b32 s95, 0x00020000")
    A("s_lshl_b32 s42, s2, 4"); A("s_add_u32 s42, s42, s3"); A("s_lshl_b32 s42, s42, 8")
    A("v_lshlrev_b32 v16, 2, v0")
    A("buffer_store_dword v125, v16, s[92:95], s42 offen")
    A("s_waitcnt vmcnt(0)")

def poll(A, label, vaddr, soff, mask_lo, vtmp, sleep=4):
    A(f"s_mov_b32 s30, {mask_lo}")
    A("s_mov_b32 s31, 0")
    A("s_mov_b64 exec, s[30:31]")
    A("s_mov_b32 s29, 0")
    A.label(label)
    A(f"buffer_load_dword v{vtmp}, v{vaddr}, {WSRD}, s{soff} offen sc1")
    A("s_add_u32 s29, s29, 1")
    A("s_waitcnt vmcnt(0)")
    A(f"v_cmp_ne_u32 vcc, s{sT}, v{vtmp}")
    A("s_cmp_gt_u32 s29, 0x10000")
    A(f"s_cbranch_scc1 {label}_x")
    A(f"s_cbranch_vccz {label}_x")
    A(f"s_sleep {sleep}")
    A(f"s_branch {label}")
    A.label(label + "_x")
    A("s_mov_b64 exec, -1")

def check_or_poll(A, label, vaddr, soff, mask_lo, vflag):
    A(f"s_mov_b32 s30, {mask_lo}")
    A("s_mov_b32 s31, 0")
    A(f"v_cmp_ne_u32 vcc, s{sT}, v{vflag}")
    A("s_nop 1")
    A("s_and_b64 vcc, vcc, s[30:31]")
    A(f"s_cbranch_vccz {label}_ok")
    poll(A, label, vaddr, soff, mask_lo, vflag)
    A.label(label + "_ok")

def flag_store(A, soff, vtmp, vzero):
    A(f"v_mov_b32 v{vtmp}, s{sT}")
    A(f"v_mov_b32 v{vzero}, 0")
    A("s_mov_b64 exec, 1")
    A(f"buffer_store_dword v{vtmp}, v{vzero}, {WSRD}, s{soff} offen sc1")
    A("s_mov_b64 exec, -1")

def get_tag(A, vt=126, vd=None):
    L = A.newlabel("GT")
    A(f"v_mov_b32 v{vt}, {C_T}")
    A("s_mov_b32 s43, 0")
    A.label(L)
    A(f"ds_read_b32 v{vE}, v{vt}")
    A("s_add_u32 s43, s43, 1")
    A("s_waitcnt lgkmcnt(0)")
    A(f"v_readfirstlane_b32 s{sT}, v{vE}")
    A("s_cmp_gt_u32 s43, 0x80000")
    A(f"s_cbranch_scc1 {L}_x")
    A(f"s_cmp_eq_u32 s{sT}, 0")
    A(f"s_cbranch_scc1 {L}")
    A.label(L + "_x")

def make_tag(A):
    A(f"v_readfirstlane_b32 s{sT}, v{vE}")
    A("s_nop 3")
    A(f"s_mul_i32 s{sT}, s{sT}, 0x9e3779b1")
    A(f"s_add_u32 s{sT}, s{sT}, 0x7f4a7c15")
    A(f"s_or_b32 s{sT}, s{sT}, 1")
    A(f"v_mov_b32 v{vE}, s{sT}")
    A(f"v_mov_b32 v126, {C_T}")
    A(f"ds_write_b32 v126, v{vE}")

def gsync(A, cnt_addr, target, vt):
    A("s_waitcnt lgkmcnt(0)")
    lsig(A, cnt_addr, vt)
    lwait(A, cnt_addr, target, vt, sleep=1)

def lsig(A, addr, vt):
    A(f"v_mov_b32 v{vt}, {addr}")
    A(f"v_mov_b32 v{vt+1}, 1")
    A("s_mov_b64 exec, 1")
    A(f"ds_add_u32 v{vt}, v{vt+1}")
    A("s_mov_b64 exec, -1")

def lwait(A, addr, target, vt, sleep=0):
    L = A.newlabel("LW")
    A(f"v_mov_b32 v{vt}, {addr}")
    A("s_mov_b32 s43, 0")
    A.label(L)
    A(f"ds_read_b32 v{vt+1}, v{vt}")
    A("s_add_u32 s43, s43, 1")
    A("s_waitcnt lgkmcnt(0)")
    A(f"v_readfirstlane_b32 s42, v{vt+1}")
    A("s_cmp_gt_u32 s43, 0x80000")
    A(f"s_cbranch_scc1 {L}_x")
    A(f"s_cmp_ge_u32 s42, {target}")
    if sleep:
        A(f"s_cbranch_scc1 {L}_x")
        A(f"s_sleep {sleep}")
        A(f"s_branch {L}")
    else:
        A(f"s_cbranch_scc0 {L}")
    A.label(L + "_x")

def merge(*chains):
    out = []; idx = [0] * len(chains)
    while any(idx[i] < len(chains[i]) for i in range(len(chains))):
        for i, ch in enumerate(chains):
            if idx[i] < len(ch):
                out.append(ch[idx[i]]); idx[i] += 1
    return out

class Rec:
    def __init__(self): self.L = []
    def __call__(self, s): self.L.append(s)

def chan_pair(A, dst, tmp):
    A(f"s_and_b32 s{dst}, s2, 7"); A(f"s_lshl_b32 s{dst}, s{dst}, 5"); A(f"s_lshr_b32 s{tmp}, s2, 3")
    A(f"s_add_u32 s{dst}, s{dst}, s{tmp}"); A(f"s_lshl_b32 s{dst}, s{dst}, 1")

def ka_wait(A):
    A("s_waitcnt lgkmcnt(0)")
    if PROF: A("s_mov_b32 s91, s38")
    srd(A, sWS, SP['ws'], WS_TOTAL)

def p1_ids(A):
    A("s_and_b32 s17, s2, 7")
    A("s_lshr_b32 s18, s2, 3")
    A("s_and_b32 s12, s17, 3")
    A("s_lshl_b32 s12, s12, 2")
    A("s_and_b32 s19, s18, 3")
    A("s_add_u32 s12, s12, s19")
    A("s_lshr_b32 s13, s17, 2")
    A("s_lshl_b32 s13, s13, 3")
    A("s_lshr_b32 s19, s18, 2")
    A("s_add_u32 s13, s13, s19")

def conv_part(A, p, vUA, vKB0, vKB1, ACC0, ACC1):
    ks = list({0: range(0, 24), 1: range(24, 48), 2: range(48, 80), 3: range(80, 128)}[p])
    q = DSQ(A)
    NB = 4
    FA, FB0, FB1 = 8, 24, 40
    def rd(i):
        k = ks[i]; b = i % NB
        A(f"ds_read_b64 {v(FA+4*b,2)}, v{vUA} offset:{32*k}"); q.issue(("a0", i))
        A(f"ds_read_b64 {v(FA+4*b+2,2)}, v{vUA} offset:{32*k+8}"); q.issue(("a1", i))
        off = (k//2)*80 + (k%2)*32
        A(f"ds_read_b128 {v(FB1+4*b,4)}, v{vKB1} offset:{off}"); q.issue(("b1", i))
        if k < 64:
            A(f"ds_read_b128 {v(FB0+4*b,4)}, v{vKB0} offset:{off}"); q.issue(("b0", i))
    n = len(ks)
    for i in range(min(NB-1, n)): rd(i)
    first0 = first1 = True
    for i in range(n):
        if i + NB - 1 < n: rd(i + NB - 1)
        k = ks[i]; b = i % NB
        q.wait(("b1", i))
        A(f"v_mfma_f32_32x32x16_bf16 {v(ACC1,16)}, {v(FA+4*b,4)}, {v(FB1+4*b,4)}, {'0' if first1 else v(ACC1,16)}"); first1 = False
        if k < 64:
            q.wait(("b0", i))
            A(f"v_mfma_f32_32x32x16_bf16 {v(ACC0,16)}, {v(FA+4*b,4)}, {v(FB0+4*b,4)}, {'0' if first0 else v(ACC0,16)}"); first0 = False

vY = [90, 91, 126, 127]

def p1_loader(A):
    vDX, vDX1, vDW = 2, 3, 5
    A("s_sub_u32 s15, s3, 4")
    A("s_setprio 3")
    A("v_lshrrev_b32 v9, 3, v0")
    A("v_lshrrev_b32 v10, 1, v9")
    A("v_xor_b32 v10, v10, v0")
    A("v_and_b32 v10, 7, v10")
    A("v_lshlrev_b32 v10, 4, v10")
    A(f"v_lshl_add_u32 v{vDX}, v9, 10, v10")
    A(f"v_xor_b32 v{vDX1}, 64, v{vDX}")
    A("s_lshl_b32 s20, s12, 17")
    A("s_lshl_b32 s17, s15, 14")
    A("s_add_u32 s20, s20, s17")
    A("s_lshl_b32 s21, s13, 6")
    A("s_lshl_b32 s22, s15, 11")
    A("s_lshl_b32 s23, s15, 10")
    A("s_add_u32 s23, s23, 16384")
    A("s_lshr_b32 s25, s2, 5")
    A("s_lshr_b32 s17, s2, 3")
    A("s_and_b32 s17, s17, 3")
    A("s_lshl_b32 s17, s17, 1")
    A("s_add_u32 s25, s25, s17")
    A("s_waitcnt lgkmcnt(0)")
    srd(A, 4, SP['x'], 2048*512*2)
    srd(A, 8, SP['wqkv'], 512*1536*2)
    def issue_x(c):
        slot = (c % NSLOT) * SLOT
        A(f"s_add_u32 s26, s25, {c}")
        A("s_and_b32 s26, s26, 7")
        A(f"s_lshl_b32 s24, s26, 7")
        A(f"s_add_u32 s24, s24, s20")
        A(f"s_add_u32 m0, s22, {slot}")
        A(f"s_mul_i32 s27, s26, {64*3072}")
        A(f"buffer_load_dwordx4 v{vDX}, s[4:7], s24 offen lds")
        A(f"s_add_u32 m0, s22, {slot + 1024}")
        A(f"s_add_u32 s24, s24, 8192")
        A(f"buffer_load_dwordx4 v{vDX1}, s[4:7], s24 offen lds")
    def issue_w(c, nw):
        slot = (c % NSLOT) * SLOT
        A(f"s_add_u32 m0, s23, {slot}")
        A(f"s_add_u32 s27, s27, s21")
        A(f"buffer_load_dwordx4 v{vDW}, s[8:11], s27 offen lds")
        if nw == 2:
            A(f"s_add_u32 m0, s23, {slot + 8192}")
            A("s_nop 0")
            A(f"buffer_load_dwordx4 v{vDW+1}, s[8:11], s27 offen lds")
    def wsetup():
        A("s_lshl_b32 s17, s15, 6")
        A("s_movk_i32 s18, 3072")
        A("s_mov_b32 s19, 43691")
        for i in range(2):
            A(f"v_add_u32 v9, s17, v0")
            if i: A(f"v_add_u32 v9, 512, v9")
            A("v_mul_u32_u24 v10, s19, v9")
            A("v_lshrrev_b32 v10, 19, v10")
            A("v_mul_u32_u24 v11, 12, v10")
            A("v_sub_u32 v11, v9, v11")
            A("v_lshrrev_b32 v12, 2, v10")
            A("v_and_b32 v12, 2, v12")
            A("v_xor_b32 v11, v11, v12")
            A("v_lshrrev_b32 v12, 2, v11")
            A("v_and_b32 v11, 3, v11")
            A("v_lshlrev_b32 v11, 4, v11")
            A("v_lshl_add_u32 v11, v12, 10, v11")
            A(f"v_mad_u32_u24 v{vDW+i}, v10, s18, v11")
    def gtab():
        A("s_getpc_b64 s[32:33]")
        L = A.newlabel("CPC"); A.label(L)
        A(f"s_add_u32 s32, s32, GTAB-{L}")
        A("s_addc_u32 s33, s33, 0")
        A("s_and_b32 s17, s15, 3"); A("s_lshl_b32 s17, s17, 11")
        A("v_lshlrev_b32 v14, 5, v0")
        A("v_add_u32 v14, s17, v14")
        A("global_load_dwordx4 v[96:99], v14, s[32:33]")
        A("global_load_dwordx4 v[100:103], v14, s[32:33] offset:16")
    def ut_loads():
        A("buffer_load_dwordx4 v[108:111], v117, s[32:35], 0 offen sc1")
        A("buffer_load_dwordx4 v[112:115], v116, s[32:35], 0 offen sc1")
        A("buffer_load_dwordx4 v[120:123], v119, s[32:35], 0 offen sc1")
    def ut_prep():
        chan_pair(A, 14, 17)
        A("s_lshr_b32 s16, s15, 2")
        A("s_add_u32 s17, s14, s16")
        A("s_lshl_b32 s17, s17, 12")
        A(f"s_add_u32 s17, s17, {WS_UT}")
        ka_wait(A)
        A(f"s_add_u32 s32, s{SP['ws']}, s17"); A(f"s_addc_u32 s33, s{SP['ws']+1}, 0")
        A("s_mov_b32 s34, 4096"); A("s_mov_b32 s35, 0x00020000")
        A("s_and_b32 s19, s15, 3"); A("s_lshl_b32 s19, s19, 10")
        A(f"v_add_u32 v116, s19, v{vL16}")
        A("v_subrev_u32 v117, 16, v116")
        A("v_cmp_eq_u32 vcc, 0, v116")
        A("v_mov_b32 v118, 4096")
        A("s_nop 0")
        A("v_cndmask_b32 v117, v117, v118, vcc")
        A("v_mov_b32 v119, 4096")
        A(f"v_mov_b32 v120, {255*16}")
        A("v_cmp_eq_u32 vcc, 3, v0")
        A("s_nop 1")
        A("v_cndmask_b32 v119, v119, v120, vcc")
    def loop(nw):
        per = 2 + nw
        issue_w(0, nw)
        issue_x(1); issue_w(1, nw)
        for c in range(8):
            last = min(7, c + 1)
            if c != 7: A(f"s_waitcnt vmcnt({per * (last - c)})")
            A("s_barrier")
            if c + AHEAD < 8:
                issue_x(c + AHEAD); issue_w(c + AHEAD, nw)
            if c == 5: ut_prep()
            if c == 6:
                L = A.newlabel("CVC")
                A(f"v_mov_b32 v30, {C_FU}")
                A("ds_read_b32 v31, v30")
                A("s_waitcnt lgkmcnt(0)")
                A("v_readfirstlane_b32 s40, v31")
                A("s_nop 0")
                A("s_cmp_eq_u32 s40, 0")
                A(f"s_cbranch_scc1 {L}")
                ut_loads()
                A("s_waitcnt vmcnt(3)")
                A(f"s_branch {L}b")
                A.label(L)
                A("s_waitcnt vmcnt(0)")
                A.label(L + "b")
    issue_x(0)
    wsetup()
    A("s_cmp_ge_u32 s15, 4")
    A("s_cbranch_scc1 P1_LOADER1")
    loop(2)
    A("s_branch P1_LOADER_END")
    A.label("P1_LOADER1")
    loop(1)
    A.label("P1_LOADER_END")
    A("s_setprio 1")
    stamp(A, 28)
    if os.environ.get("X_P1ONLY"): A("s_branch K_FIN")
    A("s_cmp_lg_u32 s40, 0")
    A("s_cbranch_scc1 CV_HAVE")
    lwait(A, C_FU, 1, 72, sleep=1)
    ut_loads()
    A.label("CV_HAVE")
    get_tag(A, vt=30)
    def copies(D, dest):
        T0, T1, T2 = 44, 48, 52
        for j in range(4): A(f"v_alignbit_b32 v{T0+j}, v{D+j+1}, v{D+j}, 16")
        for j in range(4): A(f"v_mov_b32 v{T1+j}, v{D+1+j}")
        for j in range(4): A(f"v_alignbit_b32 v{T2+j}, v{D+j+2}, v{D+j+1}, 16")
        A(f"ds_write_b128 v{dest}, {v(T0,4)}")
        A(f"ds_write_b128 v{dest}, {v(T1,4)} offset:{UC_RHO}")
        A(f"ds_write_b128 v{dest}, {v(T2,4)} offset:{2*UC_RHO}")
        A(f"ds_write_b128 v{dest}, {v(D+2,4)} offset:{3*UC_RHO}")
    A("s_lshr_b32 s16, s15, 2")
    A(f"s_mul_i32 s21, s16, {UC_CH}")
    A(f"s_add_u32 s21, s21, {L_UC + 48}")
    A("v_add_u32 v19, s21, v116")
    A(f"s_mul_i32 s23, s16, {KREV_SZ}")
    A(f"s_add_u32 s23, s23, {L_KREV}")
    A("v_and_b32 v9, 31, v0")
    A("v_lshrrev_b32 v10, 5, v0")
    A("v_and_b32 v11, 3, v9")
    A(f"v_mul_u32_u24 v11, {UC_RHO}, v11")
    A("v_lshrrev_b32 v12, 2, v9")
    A("v_lshl_add_u32 v11, v12, 3, v11")
    A("v_lshl_add_u32 v11, v10, 4, v11")
    A(f"s_mul_i32 s24, s16, {UC_CH}")
    A(f"s_add_u32 s24, s24, {L_UC}")
    A("v_add_u32 v4, s24, v11")
    A("v_sub_u32 v11, 63, v9")
    A("v_mul_u32_u24 v11, 80, v11")
    A("v_lshl_add_u32 v11, v10, 4, v11")
    A("v_add_u32 v5, s23, v11")
    A("v_subrev_u32 v6, 2560, v5")
    A("s_and_b32 s24, s15, 3")
    A(f"s_mul_i32 s25, s16, 28672")
    A("s_lshl_b32 s26, s24, 12")
    A("s_add_u32 s25, s25, s26")
    A(f"s_add_u32 s25, s25, {L_PART}")
    A(f"v_add_u32 v7, s25, v{vL16}")
    A("s_waitcnt vmcnt(0)")
    copies(108, 19)
    A("s_cmp_eq_u32 s19, 0")
    A("s_cbranch_scc0 CV_NOX2")
    for j in range(4): A(f"v_mov_b32 v{56+j}, v{120+j}")
    for j in range(4): A(f"v_mov_b32 v{60+j}, 0")
    A(f"v_mov_b32 v30, {259*16}")
    A("v_cmp_eq_u32 vcc, 3, v0")
    A("s_sub_u32 s21, s21, 48")
    A(f"v_cndmask_b32 v30, v{vL16}, v30, vcc")
    A("v_add_u32 v30, s21, v30")
    A("s_mov_b64 exec, 15")
    copies(56, 30)
    A("s_mov_b64 exec, -1")
    A.label("CV_NOX2")
    gsync(A, C_CV, 8, 8)
    stamp(A, 30)
    ACC0, ACC1 = 56, 72
    for p in range(4):
        if p < 3:
            A(f"s_cmp_eq_u32 s24, {p}")
            A(f"s_cbranch_scc0 CV_P{p+1}")
        conv_part(A, p, 4, 5, 6, ACC0, ACC1)
        A("s_nop 15")
        for qd in range(4):
            A(f"ds_write_b128 v7, {v(ACC1+4*qd,4)} offset:{qd*1024}")
        if p < 3:
            for qd in range(4):
                A(f"ds_write_b128 v7, {v(ACC0+4*qd,4)} offset:{16384 + qd*1024}")
            A("s_branch CV_PE")
            A.label(f"CV_P{p+1}")
    A.label("CV_PE")
    stamp(A, 31)
    gsync(A, C_CV, 16, 8)
    stamp(A, 32)
    A("s_lshl_b32 s26, s24, 10")
    A(f"s_add_u32 s26, s26, {L_PART}")
    A(f"v_add_u32 v4, s26, v{vL16}")
    A("s_cmp_eq_u32 s16, 0")
    A("s_cbranch_scc1 CV_F0")
    for c in range(2):
        for p in range(4):
            A(f"ds_read_b128 {v(16+16*c+4*p,4)}, v4 offset:{c*28672 + p*4096}")
    A("s_waitcnt lgkmcnt(0)")
    for c in range(2):
        for r in range(4):
            b_ = 16 + 16*c + r
            A(f"v_add_f32 v{b_}, v{b_}, v{b_+4}"); A(f"v_add_f32 v{b_+8}, v{b_+8}, v{b_+12}")
        for r in range(4):
            b_ = 16 + 16*c + r
            A(f"v_add_f32 v{b_}, v{b_}, v{b_+8}")
    A("s_branch CV_F1")
    A.label("CV_F0")
    for c in range(2):
        for p in range(3):
            A(f"ds_read_b128 {v(16+16*c+4*p,4)}, v4 offset:{c*28672 + 16384 + p*4096}")
    A("s_waitcnt lgkmcnt(0)")
    for c in range(2):
        for r in range(4):
            b_ = 16 + 16*c + r
            A(f"v_add_f32 v{b_}, v{b_}, v{b_+4}")
        for r in range(4):
            b_ = 16 + 16*c + r
            A(f"v_add_f32 v{b_}, v{b_}, v{b_+8}")
    A.label("CV_F1")
    for r in range(4):
        A(f"v_cvt_pk_bf16_f32 v{vY[r]}, v{16+r}, v{32+r}")
    A("s_lshl_b32 s36, s16, 21")
    A("s_lshl_b32 s25, s24, 14")
    A("s_add_u32 s36, s36, s25")
    A("s_lshl_b32 s25, s14, 1")
    A("s_add_u32 s36, s36, s25")
    A("s_setprio 0")
    stamp(A, 33)

def p1_compute(A):
    vFR, vACC, vXA, vWA = 8, 64, 112, 118
    A("v_and_b32 v4, 15, v0")
    A("v_lshrrev_b32 v5, 4, v0")
    A("v_lshrrev_b32 v6, 1, v4")
    A("v_xor_b32 v6, v6, v5")
    A("v_lshlrev_b32 v6, 4, v6")
    A("v_lshl_add_u32 v6, v4, 7, v6")
    A("s_lshr_b32 s17, s3, 1")
    A("s_lshl_b32 s17, s17, 13")
    A(f"v_add_u32 v{vXA}, s17, v6")
    A(f"v_xor_b32 v{vXA+1}, 64, v{vXA}")
    for st in (1, 2):
        A(f"v_add_u32 v{vXA+2*st}, {st*2*SLOT}, v{vXA}")
        A(f"v_add_u32 v{vXA+2*st+1}, {st*2*SLOT}, v{vXA+1}")
    A("v_lshrrev_b32 v6, 2, v4")
    A("v_lshl_add_u32 v6, v5, 3, v6")
    A("v_mul_u32_u24 v6, 192, v6")
    A("v_and_b32 v7, 3, v4")
    A("v_lshl_add_u32 v6, v7, 3, v6")
    A("s_and_b32 s17, s3, 1")
    A("v_xor_b32 v7, s17, v5")
    A("v_and_b32 v7, 1, v7")
    A(f"v_lshl_add_u32 v{vWA}, v7, 5, v6")
    A(f"v_add_u32 v{vWA+1}, {2*SLOT}, v{vWA}")
    A(f"v_add_u32 v{vWA+2}, {4*SLOT}, v{vWA}")
    A("s_and_b32 s18, s3, 1")
    A("s_lshl_b32 s19, s13, 1")
    A("s_add_u32 s18, s18, s19")
    A(f"s_lshl_b32 s16, s18, {5+FS}")
    A("s_lshl_b32 s18, s18, 16")
    A("s_lshr_b32 s19, s3, 1")
    A("s_lshl_b32 s24, s12, 1")
    A("s_add_u32 s24, s24, s19")
    A(f"s_lshl_b32 s25, s24, {FS}")
    A("s_add_u32 s16, s16, s25")
    A(f"s_add_u32 s16, s16, {WS_F1}")
    A("s_lshl_b32 s19, s24, 11")
    A("s_add_u32 s18, s18, s19")
    A(f"s_mov_b32 s17, 0x{f32bits(C_SCALE):08x}")
    A("s_setprio 3")
    q = DSQ(A)
    def fr(buf): return vFR + 28 * buf
    def rd_list(step):
        c, ks2 = step // 2, step % 2
        slot = c % NSLOT
        st, so = slot // 2, (slot % 2) * SLOT
        b = fr(step % 2)
        L = []
        for hf in range(2):
            L.append((f"ds_read_b64_tr_b16 {v(b+16+2*hf,2)}, v{vWA+st} offset:{so + 16384 + (32*ks2+4*hf)*192}", ("w", step, 0, hf)))
        for ti in range(4):
            L.append((f"ds_read_b128 {v(b+4*ti,4)}, v{vXA+2*st+ks2} offset:{so + ti*2048}", ("x", step, ti)))
        for gi in range(1, 3):
            for hf in range(2):
                L.append((f"ds_read_b64_tr_b16 {v(b+16+4*gi+2*hf,2)}, v{vWA+st} offset:{so + 16384 + (32*ks2+4*hf)*192 + 64*gi}", ("w", step, gi, hf)))
        return L
    def rd(step):
        for ins, tag in rd_list(step):
            A(ins); q.issue(tag)
    def mm(step, nxt=None):
        b = fr(step % 2)
        R = rd_list(nxt) if nxt is not None else []
        if os.environ.get("X_BURST"):
            for ins, tag in R:
                A(ins); q.issue(tag)
            R = []
        n = 0
        for gi in range(3):
            for ti in range(4):
                acc = vACC + (gi*4 + ti)*4
                X = v(b+4*ti, 4); W = v(b+16+4*gi, 4)
                cc = "0" if step == 0 else v(acc, 4)
                if gi == 0: q.wait(("x", step, ti))
                if ti == 0: q.wait(("w", step, gi, 1))
                if gi < 2: A(f"v_mfma_f32_16x16x32_bf16 {v(acc,4)}, {W}, {X}, {cc}")
                else:      A(f"v_mfma_f32_16x16x32_bf16 {v(acc,4)}, {X}, {W}, {cc}")
                if n < len(R):
                    A(R[n][0]); q.issue(R[n][1])
                n += 1
    kg_scalars(A, 3, 20, False)
    A(f"s_mul_i32 s21, s22, {L_TCH}")
    A("s_lshl_b32 s23, s24, 8")
    A("s_add_u32 s21, s21, s23")
    A(f"s_add_u32 s21, s21, {L_TA + L_TBO}")
    A("v_lshlrev_b32 v8, 2, v0")
    A("v_add_u32 v8, s21, v8")
    lwait(A, C_PAR, 4, 22, sleep=1)
    kg_read(A, 22, 24, 2, 21)
    A("s_cmp_eq_u32 s22, 0")
    A("s_cselect_b32 s21, 16, 0")
    A("s_lshl_b32 s26, s26, s21"); A("s_and_b32 s26, s26, 0xffff0000")
    kg_setup(A, 26, 21, False)
    kg_bside(A, 8)
    A("s_waitcnt lgkmcnt(0)")
    lsig(A, C_G, 2)
    stamp(A, 9)
    A("v_and_b32 v80, 15, v0")
    A("v_lshrrev_b32 v81, 4, v0")
    A("v_lshrrev_b32 v82, 2, v80")
    A("v_lshl_add_u32 v82, v81, 3, v82")
    A("v_lshlrev_b32 v84, 5, v82")
    A("v_lshlrev_b32 v82, 7, v82")
    A("v_and_b32 v83, 3, v80")
    A("v_lshl_add_u32 v82, v83, 3, v82")
    A("v_lshl_add_u32 v84, v83, 3, v84")
    A(f"v_add_u32 v84, {L_WOT}, v84")
    A("s_lshl_b32 s20, s3, 5")
    A(f"s_add_u32 s20, s20, {L_UTL}")
    A("v_add_u32 v82, s20, v82")
    A("v_lshlrev_b32 v83, 12, v80")
    A("v_lshl_add_u32 v83, v81, 4, v83")
    A("s_and_b32 s20, s2, 7"); A("s_lshl_b32 s20, s20, 2"); A("s_add_u32 s20, s20, s3")
    A(f"s_lshl_b32 s21, s20, {5+FS}")
    A("s_lshl_b32 s20, s20, 16")
    A("s_lshr_b32 s22, s2, 3")
    A("s_lshl_b32 s23, s22, 7")
    A("s_add_u32 s20, s20, s23")
    A(f"s_add_u32 s20, s20, {WS_UT}")
    A(f"s_lshl_b32 s23, s22, {FS}")
    A("s_add_u32 s21, s21, s23")
    A(f"s_add_u32 s21, s21, {WS_FU}")
    A("s_lshr_b32 s24, s2, 3"); A(f"s_lshl_b32 s22, s24, {3+FS}"); A("s_lshl_b32 s24, s24, 14")
    A("s_and_b32 s19, s2, 7"); A(f"s_lshl_b32 s23, s19, {FS}"); A("s_lshl_b32 s19, s19, 11")
    A("s_add_u32 s24, s24, s19")
    A(f"s_add_u32 s24, s24, {WS_WOF}")
    A("s_add_u32 s22, s22, s23")
    A(f"s_add_u32 s22, s22, {WS_F3}")
    lwait(A, C_GU, 4, 86, sleep=1)
    for p in range(2):
        for hf in range(2):
            A(f"ds_read_b64_tr_b16 {v(64+4*p+2*hf,2)}, v82 offset:{(32*p+4*hf)*128}")
    for s_ in range(2):
        for hf in range(2):
            A(f"ds_read_b64_tr_b16 {v(72+4*s_+2*hf,2)}, v84 offset:{(32*s_+4*hf)*32}")
    A("s_waitcnt lgkmcnt(0)")
    stamp(A, 25)
    A(f"buffer_store_dwordx4 v[64:67], v83, {WSRD}, s20 offen sc1")
    A(f"buffer_store_dwordx4 v[68:71], v83, {WSRD}, s20 offen offset:64 sc1")
    A("s_cmp_eq_u32 s3, 0")
    A("s_cbranch_scc0 PC_NW")
    A(f"buffer_store_dwordx4 v[72:75], v{vL16}, {WSRD}, s24 offen sc1")
    A(f"buffer_store_dwordx4 v[76:79], v{vL16}, {WSRD}, s24 offen offset:1024 sc1")
    A.label("PC_NW")
    get_tag(A)
    stamp(A, 19)
    for c in range(8):
        A("s_barrier")
        if c in (0, 7): stamp(A, 10 if c == 0 else 17)
        if c == int(os.environ.get("CFL", 1)):
            A("s_waitcnt vmcnt(0)")
            flag_store(A, 21, 2, 3)
            A("s_cmp_eq_u32 s3, 0")
            A("s_cbranch_scc0 PC_NF")
            flag_store(A, 22, 2, 3)
            A.label("PC_NF")
        if c == 0: rd(0)
        else: mm(2*c - 1, 2*c)
        mm(2*c, 2*c + 1)
        q.drain()
    lsig(A, C_DONE(7), 4)
    mm(15)
    stamp(A, 1)
    T = vFR
    n = 0
    for gi, base in ((1, WS_K), (2, WS_V), (0, WS_Q)):
        if gi == 0:
            for ti in range(4):
                for r in range(4):
                    A(f"v_mul_f32 v{vACC+ti*4+r}, s17, v{vACC+ti*4+r}")
        for pair in range(2):
            a0 = vACC + (gi*4 + 2*pair)*4; a1 = a0 + 4
            t = T + 4 * n; n += 1
            A(f"v_cvt_pk_bf16_f32 v{t}, v{a0}, v{a0+1}")
            A(f"v_cvt_pk_bf16_f32 v{t+1}, v{a0+2}, v{a0+3}")
            A(f"v_cvt_pk_bf16_f32 v{t+2}, v{a1}, v{a1+1}")
            A(f"v_cvt_pk_bf16_f32 v{t+3}, v{a1+2}, v{a1+3}")
            A(f"s_add_u32 s24, s18, {base + pair*1024}")
            A("s_nop 0")
            op = "v_permlane32_swap_b32" if gi == 2 else "v_permlane16_swap_b32"
            A(f"{op} v{t}, v{t+2}")
            A(f"{op} v{t+1}, v{t+3}")
            A("s_nop 1")
            A(f"buffer_store_dwordx4 {v(t,4)}, v{vL16}, {WSRD}, s24 offen sc1")
    stamp(A, 18)
    A("s_waitcnt vmcnt(0)")
    get_tag(A)
    flag_store(A, 16, 2, 3)
    lsig(A, C_OWN, 2)
    A("s_setprio 0")
    stamp(A, 2)
    if os.environ.get("X_P1ONLY"): A("s_branch K_FIN")

def cmul(A, D, X, S, T):
    A(f"v_pk_mul_f32 {v(T,2)}, {v(X,2)}, {v(S,2)} op_sel:[0,0] op_sel_hi:[1,0]")
    A(f"v_pk_fma_f32 {v(D,2)}, {v(X,2)}, {v(S,2)}, {v(T,2)} op_sel:[1,1,0] op_sel_hi:[0,1,1] neg_lo:[0,1,0]")

def fl(p): return f"{float(p)!r}" if p in (1, 2, 4) else f"0x{f32bits(float(p)):08x}"
def anchor(A, D, p, vt2, vw, tmp, conj=False):
    A(f"v_mul_f32 v{tmp}, {fl(p)}, v{vt2}")
    A(f"v_mul_f32 v{tmp+1}, {fl(p)}, v{vw}")
    A(f"v_exp_f32 v{tmp}, v{tmp}")
    A(f"v_fract_f32 v{tmp+1}, v{tmp+1}")
    A(f"v_cos_f32 v{D}, v{tmp+1}")
    A(f"v_sin_f32 v{D+1}, v{tmp+1}")
    A("s_nop 0")
    A(f"v_mul_f32 v{D}, v{D}, v{tmp}")
    if conj: A(f"v_mul_f32_e64 v{D+1}, -v{D+1}, v{tmp}")
    else: A(f"v_mul_f32 v{D+1}, v{D+1}, v{tmp}")

def kg_scalars(A, kw_sreg, s0, dsk):
    chan_pair(A, s0, s0+1)
    A(f"s_lshr_b32 s{s0+2}, s{kw_sreg}, 1")
    A(f"s_and_b32 s{s0+4}, s{kw_sreg}, 1")
    A(f"s_lshl_b32 s{s0+1}, s{s0}, 1")
    A(f"s_add_u32 s{s0+8}, s{SP['ldt']}, s{s0+1}"); A(f"s_addc_u32 s{s0+9}, s{SP['ldt']+1}, 0")
    A(f"s_load_dword s{s0+6}, s[{s0+8}:{s0+9}], 0")
    if dsk:
        A(f"s_add_u32 s{s0+10}, s{SP['dsk']}, s{s0+1}"); A(f"s_addc_u32 s{s0+11}, s{SP['dsk']+1}, 0")
        A(f"s_load_dword s{s0+7}, s[{s0+10}:{s0+11}], 0")

def kg_read(A, s_c, s_mh, narr, s_tmp):
    A(f"s_lshl_b32 s{s_tmp}, s{s_c}, 8")
    A(f"v_lshlrev_b32 v9, 1, v0")
    A(f"v_add_u32 v9, s{s_tmp}, v9")
    A(f"s_lshl_b32 s{s_tmp}, s{s_mh}, 7")
    A(f"s_add_u32 s{s_tmp}, s{s_tmp}, {L_PAR}")
    A(f"v_add_u32 v9, s{s_tmp}, v9")
    for i in range(narr):
        A(f"ds_read_u16 v{10+i}, v9 offset:{512*i}")
    A("s_waitcnt lgkmcnt(0)")

def kg_setup(A, s_ldt, s_tmp, full):
    vt2, vw, vY0, tmp = 16, 17, 18, 20
    A(f"s_mov_b32 s{s_tmp}, 0x{f32bits(LOG2E):08x}")
    A(f"v_mov_b32 v{tmp}, s{s_ldt}")
    A(f"v_lshlrev_b32 v10, 16, v10")
    A(f"v_mul_f32 v{tmp}, s{s_tmp}, v{tmp}")
    A(f"v_mul_f32 v10, s{s_tmp}, v10")
    A(f"v_exp_f32 v{tmp}, v{tmp}")
    A(f"v_exp_f32 v10, v10")
    A(f"v_lshlrev_b32 v11, 16, v11")
    A(f"v_cvt_pk_bf16_f32 v{tmp}, v{tmp}, v10")
    if full: A(f"v_lshlrev_b32 v12, 16, v12")
    A(f"v_and_b32 v10, 0xffff0000, v{tmp}")
    A(f"v_lshlrev_b32 v{tmp}, 16, v{tmp}")
    if full: A(f"v_lshlrev_b32 v13, 16, v13")
    A(f"v_mul_f32 v10, v10, v{tmp}")
    A(f"v_mul_f32 v11, v11, v{tmp}")
    A(f"v_mul_f32 v{vt2}, 0x{f32bits(-LOG2E):08x}, v10")
    A(f"v_mul_f32 v{vw}, 0x{f32bits(INV2PI):08x}, v11")
    if full:
        A(f"v_add_f32 v{tmp}, v{tmp}, v{tmp}")
        A(f"v_mul_f32 v{vY0}, v12, v{tmp}")
        A(f"v_mul_f32_e64 v{vY0+1}, -v13, v{tmp}")

def kg_bside(A, vaddr):
    vt2, vw = 16, 17
    X = [24, 26, 28, 30]; S16, S32 = 32, 34
    anchor(A, X[1], 8, vt2, vw, 36)
    A(f"v_mov_b32 v{X[0]}, 1.0"); A(f"v_mov_b32 v{X[0]+1}, 0")
    cmul(A, X[2], X[1], X[1], 36)
    cmul(A, X[3], X[1], X[2], 38)
    cmul(A, S32, X[2], X[2], 40)
    ch = [Rec() for _ in range(4)]
    for j in range(4):
        for b in range(j, 32, 4):
            p_ = 50 + 2*j + (b // 4) % 2
            ch[j](f"v_cvt_pk_bf16_f32 v{p_}, v{X[j]}, v{X[j]+1}")
            if b + 4 < 32: cmul(ch[j], X[j], X[j], S32, 42 + 2*j)
            ch[j](f"ds_write_b32 v{vaddr}, v{p_} offset:{b*528}")
    for ins in merge(*[c.L for c in ch]): A(ins)

def kg_aside(A, vaddr):
    vt2, vw, vY0 = 16, 17, 18
    F1, F256, F2, F4, Y, Z, W = 24, 26, 28, 30, 32, 34, 36
    r2, r3 = Rec(), Rec()
    anchor(r2, F1, 1, vt2, vw, 48, conj=True)
    anchor(r3, F256, 256, vt2, vw, 50, conj=True)
    for ins in merge(r2.L, r3.L): A(ins)
    cmul(A, F2, F1, F1, 48)
    cmul(A, Z, vY0, F256, 50)
    cmul(A, F4, F2, F2, 48)
    ay, az, aw = Rec(), Rec(), Rec()
    cnt = {}
    def put(ch, base, reg, row):
        n_ = cnt.get(base, 0); cnt[base] = n_ + 1
        p = base + n_ % 2
        ch(f"v_cvt_pk_bf16_f32 v{p}, v{reg}, v{reg+1}")
        ch(f"ds_write_b32 v{vaddr}, v{p} offset:{row*528}")
    put(ay, 60, vY0, 0)
    cmul(ay, Y, vY0, F1, 64); put(ay, 60, Y, 1)
    for r in range(2, 8):
        cmul(ay, Y, Y, F1, 64); put(ay, 60, Y, r)
    A(f"v_mov_b32 v{W}, v{Z}"); A(f"v_mov_b32 v{W+1}, v{Z+1}")
    put(aw, 68, W, 8)
    for r in (9, 10, 11):
        cmul(aw, W, W, F2, 70); put(aw, 68, W, r)
    V = 38
    cmul(az, Z, Z, F256, 66); put(az, 62, Z, 12)
    cmul(az, V, Z, F4, 72); put(az, 62, V, 13)
    cmul(az, Z, Z, F256, 66); put(az, 62, Z, 14)
    cmul(az, V, Z, F4, 72); put(az, 62, V, 15)
    for r in range(16, 21):
        cmul(az, Z, Z, F256, 66); put(az, 62, Z, r)
    for ins in merge(az.L, ay.L, aw.L): A(ins)

L_WOT = 57344 + 2048
def kgen_pre(A):
    A("s_sub_u32 s15, s3, 12")
    A("s_setprio 3")
    chan_pair(A, 14, 17)
    A("s_lshl_b32 s17, s14, 8")
    A("s_lshl_b32 s18, s15, 9")
    A("s_mov_b32 s40, -1"); A("s_mov_b32 s41, 0")
    A("v_lshrrev_b32 v14, 3, v0")
    A("v_lshlrev_b32 v14, 10, v14")
    A("v_and_b32 v13, 7, v0")
    A("v_lshl_add_u32 v14, v13, 4, v14")
    A("s_lshr_b32 s19, s2, 3"); A("s_lshl_b32 s19, s19, 16")
    A("s_lshl_b32 s16, s15, 14")
    A("s_add_u32 s19, s19, s16")
    A("s_and_b32 s16, s2, 7"); A("s_lshl_b32 s16, s16, 7")
    A("s_add_u32 s19, s19, s16")
    A("v_lshrrev_b32 v12, 1, v0")
    A("v_lshlrev_b32 v12, 10, v12")
    A("v_and_b32 v13, 1, v0")
    A("v_lshl_add_u32 v12, v13, 4, v12")
    ka_wait(A)
    A(f"s_mov_b32 s32, s{SP['lar']}"); A(f"s_mov_b32 s33, s{SP['lar']+1}")
    for mm_, nm in ((1, 'aim'), (2, 'cre'), (3, 'cim')):
        A(f"s_cmp_eq_u32 s15, {mm_}")
        A(f"s_cselect_b32 s32, s{SP[nm]}, s32"); A(f"s_cselect_b32 s33, s{SP[nm]+1}, s33")
    A(f"s_mov_b32 s34, {512*128*2}"); A("s_mov_b32 s35, 0x00020000")
    A(f"s_add_u32 m0, s18, {L_PAR}")
    A("s_mov_b64 exec, s[40:41]")
    A(f"buffer_load_dwordx4 v{vL16}, s[32:35], s17 offen lds")
    A("s_mov_b64 exec, -1")
    kg_scalars(A, 15, 20, True)
    A("s_getpc_b64 s[32:33]")
    A.label("KG_PC")
    A("s_add_u32 s32, s32, GTAB-KG_PC")
    A("s_addc_u32 s33, s33, 0")
    A("s_lshl_b32 s17, s15, 11")
    A("v_lshlrev_b32 v11, 5, v0")
    A("v_add_u32 v11, s17, v11")
    A("global_load_dwordx4 v[96:99], v11, s[32:33]")
    A("global_load_dwordx4 v[100:103], v11, s[32:33] offset:16")
    srd(A, 32, SP['u'], 2048*512*2)
    A(f"s_add_u32 m0, s17, {L_UTL}")
    A("s_nop 0")
    A("buffer_load_dwordx4 v14, s[32:35], s19 offen lds")
    A(f"s_add_u32 m0, s17, {L_UTL + 1024}")
    A("s_add_u32 s19, s19, 8192")
    A("buffer_load_dwordx4 v14, s[32:35], s19 offen lds")
    srd(A, 32, SP['wo'], 512*512*2)
    A("s_and_b32 s17, s2, 7"); A("s_lshl_b32 s17, s17, 16")
    A("s_lshl_b32 s19, s15, 14")
    A("s_add_u32 s17, s17, s19")
    A("s_lshr_b32 s19, s2, 3"); A("s_lshl_b32 s19, s19, 5")
    A("s_add_u32 s17, s17, s19")
    A(f"s_add_u32 m0, s18, {L_WOT}")
    A("s_mov_b64 exec, s[40:41]")
    A("buffer_load_dwordx4 v12, s[32:35], s17 offen lds")
    A("s_mov_b64 exec, -1")
    A("s_cmp_eq_u32 s15, 0")
    A("s_cbranch_scc0 KG_NE")
    A(f"s_mov_b32 s16, {WS_EP}")
    A("v_mov_b32 v9, 0")
    A("s_mov_b64 exec, 1")
    A(f"buffer_load_dword v{vE}, v9, {WSRD}, s16 offen sc1")
    A("s_mov_b64 exec, -1")
    A.label("KG_NE")

def kgen(A):
    A("s_mov_b32 s16, s22"); A("s_mov_b32 s18, s24"); A("s_mov_b32 s14, s20")
    A(f"s_mul_i32 s25, s16, {L_TCH}")
    A("s_lshl_b32 s23, s18, 8")
    A("s_add_u32 s25, s25, s23")
    A(f"s_add_u32 s25, s25, {L_TA}")
    A("v_lshlrev_b32 v15, 2, v0")
    A("v_add_u32 v15, s25, v15")
    A("s_cmp_eq_u32 s15, 0")
    A("s_cbranch_scc1 KG_WP")
    A("s_waitcnt vmcnt(5)")
    A.label("KG_WP")
    A("s_waitcnt vmcnt(6)")
    gsync(A, C_PAR, 4, 66)
    stamp(A, 24)
    kg_read(A, 16, 18, 4, 23)
    A("s_cmp_eq_u32 s16, 0")
    A("s_cselect_b32 s23, 16, 0")
    A("s_lshl_b32 s26, s26, s23"); A("s_and_b32 s26, s26, 0xffff0000")
    A("s_lshl_b32 s27, s27, s23"); A("s_and_b32 s27, s27, 0xffff0000")
    kg_setup(A, 26, 23, True)
    kg_aside(A, 15)
    A("s_waitcnt lgkmcnt(0)")
    lsig(A, C_G, 66)
    stamp(A, 21)
    A("s_waitcnt vmcnt(0)")
    A("s_cmp_eq_u32 s15, 0")
    A("s_cbranch_scc0 KG_NT")
    make_tag(A)
    A.label("KG_NT")
    A("s_waitcnt lgkmcnt(0)")
    lsig(A, C_GU, 86)
    A("v_and_b32 v9, 15, v0")
    A("v_lshrrev_b32 v10, 4, v0")
    A("v_mul_u32_u24 v11, 528, v9")
    A("v_lshl_add_u32 v11, v10, 4, v11")
    A(f"s_mul_i32 s25, s16, {L_TCH}")
    A(f"s_add_u32 s25, s25, {L_TA}")
    A(f"s_mul_i32 s23, s18, {16*528}")
    A("s_add_u32 s23, s23, s25")
    A("v_add_u32 v12, s23, v11")
    A(f"s_add_u32 s25, s25, {L_TBO}")
    A("v_add_u32 v13, s25, v11")
    A("s_lshl_b32 s25, s16, 11")
    A("s_lshl_b32 s23, s18, 10")
    A("s_add_u32 s25, s25, s23")
    A(f"s_add_u32 s25, s25, {L_T}")
    A("v_lshlrev_b32 v14, 8, v10")
    A("v_lshl_add_u32 v14, v9, 1, v14")
    A("v_add_u32 v14, s25, v14")
    A("s_cmp_eq_u32 s18, 0")
    A("s_cselect_b32 s27, s27, 0")
    A("v_mov_b32 v15, s27")
    lwait(A, C_G, 8, 86, sleep=1)
    stamp(A, 22)
    q = DSQ(A)
    def rd(s_):
        b = s_ % 4
        A(f"ds_read_b128 {v(16+4*b,4)}, v12 offset:{s_*64}"); q.issue(("a", s_))
        A(f"ds_read_b128 {v(32+4*b,4)}, v13 offset:{s_*64}"); q.issue(("b0", s_))
        A(f"ds_read_b128 {v(48+4*b,4)}, v13 offset:{16*528 + s_*64}"); q.issue(("b1", s_))
    for s_ in range(3): rd(s_)
    for s_ in range(8):
        if s_ + 3 < 8: rd(s_ + 3)
        b = s_ % 4
        q.wait(("b0", s_))
        A(f"v_mfma_f32_16x16x32_bf16 v[120:123], {v(16+4*b,4)}, {v(32+4*b,4)}, {'0' if s_==0 else 'v[120:123]'}")
        q.wait(("b1", s_))
        A(f"v_mfma_f32_16x16x32_bf16 v[4:7], {v(16+4*b,4)}, {v(48+4*b,4)}, {'0' if s_==0 else 'v[4:7]'}")
    A("s_nop 7")
    A("v_cmp_eq_u32 vcc, 0, v0")
    A("s_nop 1")
    A("v_cndmask_b32 v15, 0, v15, vcc")
    A("v_add_f32 v120, v120, v15")
    for ct, b_ in enumerate((120, 4)):
        A(f"v_cvt_pk_bf16_f32 v{16+2*ct}, v{b_}, v{b_+1}")
        A(f"v_cvt_pk_bf16_f32 v{17+2*ct}, v{b_+2}, v{b_+3}")
        A(f"ds_write_b16 v14, v{16+2*ct} offset:{32*ct}")
        A(f"ds_write_b16_d16_hi v14, v{16+2*ct} offset:{32*ct+64}")
        A(f"ds_write_b16 v14, v{17+2*ct} offset:{32*ct+128}")
        A(f"ds_write_b16_d16_hi v14, v{17+2*ct} offset:{32*ct+192}")
    gsync(A, C_GT2, 4, 2)
    stamp(A, 23)
    for e in range(8): A(f"v_add_u32 v{96+e}, {L_T}, v{96+e}")
    for c in range(2):
        for e in range(8):
            op = "ds_read_u16_d16_hi" if e % 2 else "ds_read_u16"
            A(f"{op} v{(32 if e % 2 else 16)+4*c+e//2}, v{96+e} offset:{c*2048}")
    A("s_lshl_b32 s25, s15, 6")
    A("v_add_u32 v9, s25, v0")
    A("v_lshrrev_b32 v10, 2, v9")
    A("v_mul_u32_u24 v10, 80, v10")
    A("v_and_b32 v9, 3, v9")
    A("v_lshl_add_u32 v10, v9, 4, v10")
    A(f"v_add_u32 v10, {L_KREV}, v10")
    for j in range(4): A(f"v_mov_b32 v{40+j}, 0")
    A(f"s_mul_i32 s25, s16, {KREV_SZ}")
    A(f"s_mul_i32 s23, s18, 1280")
    A("s_add_u32 s25, s25, s23")
    A(f"s_add_u32 s25, s25, {L_KREV + 64*80}")
    A(f"v_add_u32 v11, s25, v{vL16}")
    A("ds_write_b128 v11, v[40:43]")
    A("s_mov_b64 exec, 0xffff")
    A("ds_write_b128 v11, v[40:43] offset:1024")
    A("s_mov_b64 exec, -1")
    A("s_waitcnt lgkmcnt(10)")
    for j in range(4): A(f"v_or_b32 v{16+j}, v{16+j}, v{32+j}")
    A("s_waitcnt lgkmcnt(2)")
    for j in range(4): A(f"v_or_b32 v{20+j}, v{20+j}, v{36+j}")
    A("ds_write_b128 v10, v[16:19]")
    A(f"ds_write_b128 v10, v[20:23] offset:{KREV_SZ}")
    A("s_waitcnt lgkmcnt(0)")
    stamp(A, 27)
    FLAT = int(os.environ.get("FLAT", 3))
    for i in range(8):
        A("s_barrier")
        if i == FLAT:
            get_tag(A)
            chan_pair(A, 14, 17)
            A("s_lshr_b32 s28, s14, 4")
            A(f"s_lshl_b32 s28, s28, {5+FS}")
            A(f"s_add_u32 s28, s28, {WS_FU}")
            A(f"v_lshlrev_b32 v104, {FS}, v0")
            A("s_mov_b32 s40, 0")
        if i == FLAT + 2:
            A("s_cmp_eq_u32 s15, 3")
            A("s_cbranch_scc0 KG_L2")
            A("s_waitcnt vmcnt(0)")
            A("s_mov_b32 s30, -1"); A("s_mov_b32 s31, 0")
            A(f"v_cmp_ne_u32 vcc, s{sT}, v105")
            A("s_nop 1")
            A("s_and_b64 vcc, vcc, s[30:31]")
            A("s_cbranch_vccnz KG_L2")
            lsig(A, C_FU, 66)
            A("s_mov_b32 s40, 1")
            A.label("KG_L2")
        if i == FLAT + 1:
            A("s_cmp_eq_u32 s15, 3")
            A("s_cbranch_scc0 KG_L1")
            A("s_mov_b32 s30, -1"); A("s_mov_b32 s31, 0")
            A("s_mov_b64 exec, s[30:31]")
            A(f"buffer_load_dword v105, v104, {WSRD}, s28 offen sc1")
            A("s_mov_b64 exec, -1")
            A.label("KG_L1")
    A("s_cmp_eq_u32 s15, 3")
    A("s_cbranch_scc0 KG_END2")
    A("s_cmp_lg_u32 s40, 0")
    A("s_cbranch_scc1 KG_END2")
    poll(A, "KG_PU", 104, 28, "-1", 105, sleep=2)
    lsig(A, C_FU, 66)
    A.label("KG_END2")
    if os.environ.get("X_P1ONLY"): A("s_branch K_FIN")

vKA, vVA, vQ, vKF, vVF, vS, vP, vO, vM, vT = 2, 3, 4, 8, 16, 32, 64, 72, 88, 89
vLD = 92
vLW = 124
vLW2 = 89
NT = 32
SCHED = "e0 e1 PV1 RV e2 e3 c0 e4 e5 c1 QK RK e6 e7 c2 e8 e9 c3 e10 e11 PV0 c4 e12 e13 c5 e14 e15 c6 c7"
PRIO = {0: 3, 8: 2, 16: 1, 24: 0}

def attn_ids(A):
    A("s_and_b32 s12, s2, 7")
    A("s_lshl_b32 s12, s12, 2")
    A("s_lshr_b32 s13, s2, 3")
    A("s_and_b32 s17, s13, 3")
    A("s_add_u32 s12, s12, s17")
    A("s_lshr_b32 s13, s2, 5")
    A("s_lshl_b32 s17, s12, 16")

def ld_group(A):
    attn_setup(A)
    A("s_cmp_lt_u32 s3, 4")
    A("s_cselect_b32 s28, 0, 8")
    A("s_sub_u32 s28, s3, s28")
    A(f"v_lshlrev_b32 v8, {FS}, v0")
    A(f"s_lshl_b32 s27, s12, {5+FS}")
    A(f"s_add_u32 s27, s27, {WS_F1}")
    A("s_lshr_b32 s22, s28, 1")
    A("s_and_b32 s23, s28, 1"); A("s_lshl_b32 s23, s23, 1")
    A("s_and_b32 s4, s22, 1"); A("s_lshl_b32 s4, s4, 15")
    A("s_lshr_b32 s26, s22, 1"); A("s_lshl_b32 s26, s26, 21")
    A("s_add_u32 s4, s4, s26")
    A("s_lshl_b32 s26, s23, 10")
    A("s_add_u32 s4, s4, s26")
    A("s_add_u32 s4, s4, s17")
    A(f"s_add_u32 s4, s4, {WS_K}")
    A("s_lshl_b32 s24, s23, 12")
    A("s_lshl_b32 s26, s22, 10")
    A("s_add_u32 s24, s24, s26")
    A(f"v_add_u32 v{vLW2}, s24, v{vL16}")
    A("s_lshl_b32 s5, s13, 3"); A("s_add_u32 s5, s5, s28"); A("s_lshl_b32 s5, s5, 10"); A("s_add_u32 s5, s5, s17")
    A("s_lshl_b32 s6, s28, 10"); A(f"s_add_u32 s6, s6, {L_QS}")
    A(f"v_add_u32 v12, s6, v{vL16}")
    A("s_cmp_eq_u32 s3, 13")
    A("s_cbranch_scc0 LD_NOPOLL")
    lwait(A, C_OWN, 4, 44, sleep=2)
    poll(A, "LD_POLL", 8, 27, "-1", 13, sleep=2)
    lsig(A, C_F1, 44)
    A.label("LD_NOPOLL")
    lwait(A, C_F1, 1, 44, sleep=1)
    stamp(A, 3)
    def rload(r, d0):
        A(f"s_add_u32 s26, s13, {r}")
        A("s_and_b32 s26, s26, 7")
        A("s_lshl_b32 s26, s26, 12")
        A("s_add_u32 s26, s26, s4")
        A(f"buffer_load_dwordx4 {v(d0,4)}, v{vL16}, {WSRD}, s26 offen sc1")
        A(f"buffer_load_dwordx4 {v(d0+4,4)}, v{vL16}, {WSRD}, s26 offen offset:1024 sc1")
    rload(0, 32)
    A(f"buffer_load_dwordx4 v[40:43], v{vL16}, {WSRD}, s5 offen sc1")
    rload(1, vLD)
    rload(2, vLD + 8)
    lwait(A, C_DONE(7), 4, 44)
    A("s_waitcnt vmcnt(4)")
    A(f"ds_write_b128 v{vLW2}, v[32:35]")
    A(f"ds_write_b128 v{vLW2}, v[36:39] offset:4096")
    A("ds_write_b128 v12, v[40:43]")
    A("s_waitcnt vmcnt(2)")
    A(f"ds_write_b128 v{vLW2}, {v(vLD,4)} offset:16384")
    A(f"ds_write_b128 v{vLW2}, {v(vLD+4,4)} offset:20480")
    A("s_waitcnt vmcnt(0)")
    A(f"ds_write_b128 v{vLW2}, {v(vLD+8,4)} offset:32768")
    A(f"ds_write_b128 v{vLW2}, {v(vLD+12,4)} offset:36864")

def attn_setup(A):
    attn_ids(A)
    A("s_mov_b32 s20, 0x0000ffff")
    A("s_mov_b32 s21, 0x0000ffff")
    A("s_and_b32 s15, s3, 7")
    A("s_lshr_b32 s16, s3, 3")
    A("s_lshl_b32 s19, s16, 10")
    A(f"v_add_u32 v{vKA}, s19, v{vL16}")
    A("v_lshrrev_b32 v8, 5, v0")
    A("v_lshlrev_b32 v8, 8, v8")
    A("v_and_b32 v9, 15, v0")
    A("v_lshlrev_b32 v9, 4, v9")
    A("s_add_u32 s19, s19, 2048")
    A(f"v_add3_u32 v{vVA}, v8, v9, s19")
    A("v_and_b32 v8, 31, v0")
    A("v_cmp_eq_u32 vcc, 16, v8")
    A("v_mov_b32 v9, 0x3f803f80")
    A("s_lshl_b32 s22, s15, 10"); A(f"s_add_u32 s22, s22, {L_QS}")
    A("v_cndmask_b32 v9, 0, v9, vcc")
    A(f"v_add_u32 v{vQ}, s22, v{vL16}")
    for i in range(16): A(f"v_mov_b32 v{vVF+i}, v9")
    A(f"v_mov_b32 v{vM}, 0")
    A("s_lshl_b32 s18, s13, 3")
    A("s_add_u32 s18, s18, s15")
    A(f"s_lshl_b32 s19, s18, {5+FS}")
    A(f"s_lshl_b32 s22, s12, {FS}")
    A("s_add_u32 s19, s19, s22")
    A(f"s_add_u32 s19, s19, {WS_F2}")
    A("s_lshl_b32 s18, s18, 10")
    A("s_add_u32 s18, s18, s17")
    A("s_lshr_b32 s22, s3, 2")
    A("s_and_b32 s23, s3, 3")
    A("s_lshl_b32 s24, s23, 12")
    A("s_lshl_b32 s26, s22, 10")
    A("s_add_u32 s24, s24, s26")
    A(f"v_add_u32 v{vLW}, s24, v{vL16}")
    A("s_and_b32 s25, s22, 1"); A("s_lshl_b32 s25, s25, 15")
    A("s_lshr_b32 s26, s22, 1"); A("s_lshl_b32 s26, s26, 21")
    A("s_add_u32 s25, s25, s26")
    A("s_lshl_b32 s23, s23, 10")
    A("s_add_u32 s25, s25, s23")
    A("s_add_u32 s25, s25, s17")
    A(f"s_add_u32 s25, s25, {WS_K}")
    A("s_lshr_b32 s37, s2, 3"); A("s_and_b32 s37, s37, 3"); A("s_lshl_b32 s37, s37, 3"); A("s_add_u32 s37, s37, s15")

def attention(A):
    A("s_setprio 3")
    A("s_waitcnt lgkmcnt(0)")
    A("s_barrier")
    stamp(A, 4)
    A(f"ds_read_b128 {v(vQ,4)}, v{vQ}")
    q = DSQ(A)
    KF = lambda t: vKF + 4 * (t % 2)
    VF = lambda t, j: vVF + 8 * (t % 2) + 4 * j
    S = lambda t: vS + 16 * (t % 2)
    def rdK(t):
        A(f"ds_read_b128 {v(KF(t),4)}, v{vKA} offset:{(t%16)*4096}"); q.issue(("K", t))
    def rdV(t):
        A("s_mov_b64 exec, s[20:21]")
        A(f"ds_read_b128 {v(VF(t,0),4)}, v{vVA} offset:{(t%16)*4096}"); q.issue(("V0", t))
        A(f"ds_read_b128 {v(VF(t,1),4)}, v{vVA} offset:{(t%16)*4096+512}"); q.issue(("V1", t))
        A("s_mov_b64 exec, -1")
    def qk(t):
        q.wait(("K", t))
        A(f"v_mfma_f32_32x32x16_bf16 {v(S(t),16)}, {v(KF(t),4)}, {v(vQ,4)}, 0")
    def e(t, i): A(f"v_exp_f32 v{S(t)+i}, v{S(t)+i}")
    def c(t, k): A(f"v_cvt_pk_bf16_f32 v{vP+k}, v{S(t)+2*k}, v{S(t)+2*k+1}")
    def pv(t, j):
        cc = "0" if (t == 0 and j == 0) else v(vO, 16)
        A(f"v_mfma_f32_32x32x16_bf16 {v(vO,16)}, {v(VF(t,j),4)}, {v(vP+4*j,4)}, {cc}")
    rdK(0); rdK(1); rdV(0)
    qk(0)
    A("s_nop 7"); A("s_nop 3")
    for t in range(NT):
        A.comment(f"--- tile {t}")
        if t in PRIO: A(f"s_setprio {PRIO[t]}")
        for tok in SCHED.split():
            if tok[0] == 'e': e(t, int(tok[1:]))
            elif tok[0] == 'c': c(t, int(tok[1:]))
            elif tok == 'PV1':
                if t > 0: pv(t - 1, 1)
            elif tok == 'QK':
                if t + 1 < NT: qk(t + 1)
            elif tok == 'PV0':
                q.wait(("V1", t)); pv(t, 0)
            elif tok == 'RK':
                slot_of = {3: 4, 4: 5, 5: 6, 6: 7, 7: 0}
                XN = os.environ.get("X_NOLAND")
                if XN:
                    if t + 2 < NT: rdK(t + 2)
                    if t == 14: A(f"v_add_u32 v{vKA}, 65536, v{vKA}") if False else None
                    continue
                if t < 5:
                    r = 3 + t
                    A(f"s_add_u32 s26, s13, {r}")
                    A("s_and_b32 s26, s26, 7")
                    A("s_lshl_b32 s26, s26, 12")
                    A("s_add_u32 s26, s26, s25")
                    A(f"buffer_load_dwordx4 {v(vLD+4*slot_of[r],4)}, v{vL16}, {WSRD}, s26 offen sc1")
                if t == 6:
                    A("s_waitcnt vmcnt(0)")
                    A(f"ds_write_b128 v{vLW}, {v(vLD+4*slot_of[3],4)} offset:49152")
                    A(f"v_add_u32 v{vLW}, 65536, v{vLW}")
                    for r in range(4, 8):
                        A(f"ds_write_b128 v{vLW}, {v(vLD+4*slot_of[r],4)} offset:{r*16384 - 65536}")
                    A("s_waitcnt lgkmcnt(0)"); q.q = []
                    lsig(A, C_LAND, vT + 0) if False else None
                    A(f"v_mov_b32 v{vT}, {C_LAND}")
                    A(f"v_mov_b32 v{vLW}, 1")
                    A("s_mov_b64 exec, 1")
                    A(f"ds_add_u32 v{vT}, v{vLW}")
                    A("s_mov_b64 exec, -1")
                if t == 9:
                    A(f"ds_read_b32 v{vLW}, v{vT}"); q.issue(("land", 0))
                if t == 10:
                    q.wait(("land", 0))
                    A(f"v_readfirstlane_b32 s42, v{vLW}")
                    A("s_nop 0")
                    A("s_cmp_ge_u32 s42, 16")
                    A("s_cbranch_scc1 AT_LANDED")
                    lwait(A, C_LAND, 16, 126 if False else 12, sleep=1) if False else None
                    A.label("AT_LSPIN")
                    A(f"ds_read_b32 v{vLW}, v{vT}")
                    A("s_waitcnt lgkmcnt(0)")
                    A(f"v_readfirstlane_b32 s42, v{vLW}")
                    A("s_sleep 1")
                    A("s_cmp_ge_u32 s42, 16")
                    A("s_cbranch_scc0 AT_LSPIN")
                    A.label("AT_LANDED")
                    A(f"v_lshlrev_b32 v{vT}, {FS}, v0")
                    A(f"s_lshl_b32 s26, s37, {3+FS}")
                    A(f"s_add_u32 s26, s26, {WS_F3}")
                    A("s_mov_b64 exec, 0xff")
                    A(f"buffer_load_dword v{vLW}, v{vT}, {WSRD}, s26 offen sc1")
                    A("s_mov_b64 exec, -1")
                if t == 12:
                    A("s_waitcnt vmcnt(0)")
                    check_or_poll(A, "AT_P3", vT, 26, "0xff", vLW)
                    A("s_lshl_b32 s27, s37, 14")
                    A("s_lshl_b32 s26, s16, 13")
                    A("s_add_u32 s27, s27, s26")
                    A(f"s_add_u32 s27, s27, {WS_WOF}")
                if 12 <= t < 20:
                    A(f"buffer_load_dwordx4 {v(vLD+4*(t-12),4)}, v{vL16}, {WSRD}, s27 offen sc1")
                    A("s_add_u32 s27, s27, 1024")
                if t == 20:
                    A("s_sub_u32 s26, s3, 4")
                    A("s_cmp_lt_u32 s26, 8")
                    A("s_cbranch_scc0 AT_NY0")
                    A(f"v_and_b32 v{vT}, 31, v0")
                    A(f"v_lshrrev_b32 v{vLW}, 5, v0")
                    A(f"v_lshlrev_b32 v{vT}, 16, v{vT}")
                    A(f"v_lshl_add_u32 v{vT}, v{vLW}, 13, v{vT}")
                    A.label("AT_NY0")
                    srd(A, 4, SP['out'], 2048*1024*2)
                if 21 <= t < 25:
                    r = t - 21
                    A("s_sub_u32 s26, s3, 4")
                    A("s_cmp_lt_u32 s26, 8")
                    A(f"s_cbranch_scc0 AT_NY{r+1}")
                    if r == 2: A("s_add_u32 s36, s36, 4096")
                    A(f"buffer_store_dword v{vY[r]}, v{vT}, s[4:7], s36 offen" + (" offset:2048" if r % 2 else "") + os.environ.get("YSC", ""))
                    A.label(f"AT_NY{r+1}")
                WBL = [int(x) for x in os.environ.get("WBL", "26").split(",") if x]
                if t in WBL:
                    A("s_lshr_b32 s26, s2, 3")
                    A("s_lshl_b32 s26, s26, 4")
                    A("s_add_u32 s26, s26, s3")
                    A("s_cmp_eq_u32 s26, 15")
                    A(f"s_cbranch_scc0 AT_WB{t}")
                    A("buffer_wbl2 sc1")
                    A.label(f"AT_WB{t}")
                if t == 14:
                    A(f"v_add_u32 v{vKA}, 65536, v{vKA}")
                if t + 2 < NT: rdK(t + 2)
            elif tok == 'RV':
                if t == 15:
                    A(f"v_add_u32 v{vVA}, 65536, v{vVA}")
                if t + 1 < NT: rdV(t + 1)
            else: raise ValueError(tok)
    A("s_nop 1")
    pv(NT - 1, 1)
    A("s_nop 15")
    stamp(A, 5)
    A(f"v_mov_b32 v{vT}, v{vO+8}")
    A("s_nop 1")
    A(f"v_permlane32_swap_b32 v{vT}, v{vO+8}")
    A("s_nop 1")
    A(f"v_mov_b32 v{vO+8}, v{vT}")
    A("s_mov_b32 s28, 0x1f800000")
    A("s_mov_b32 s29, 0x5f800000")
    A(f"v_cmp_le_f32 vcc, s28, v{vO+8}")
    A(f"v_cmp_ge_f32 s[30:31], s29, v{vO+8}")
    A("s_nop 1")
    A("s_and_b64 vcc, vcc, s[30:31]")
    A("s_cmp_eq_u64 vcc, -1")
    A("s_cbranch_scc0 AT_FALLBACK")
    A.label("AT_COMBINE")
    A("s_lshl_b32 s17, s15, 11")
    A(f"s_add_u32 s17, s17, {L_SCR}")
    A(f"v_add_u32 v{vT}, s17, v{vL16}")
    A("v_lshlrev_b32 v12, 3, v0")
    A("s_lshl_b32 s17, s15, 9")
    A(f"s_add_u32 s17, s17, {L_KREV}")
    A(f"v_add_u32 v12, s17, v12")
    A("s_cmp_eq_u32 s16, 0")
    A("s_cbranch_scc1 AT_LOW")
    A(f"ds_write_b128 v{vT}, {v(vO,4)}")
    A(f"ds_write_b128 v{vT}, {v(vO+4,4)} offset:1024")
    A(f"v_mov_b32 v{vO+9}, v{vM}")
    A(f"ds_write_b64 v12, {v(vO+8,2)}")
    A("s_waitcnt lgkmcnt(0)")
    A("s_barrier")
    A("s_branch AT_DONE")
    A.label("AT_LOW")
    A("s_barrier")
    B = vS
    A(f"ds_read_b128 {v(B,4)}, v{vT}")
    A(f"ds_read_b128 {v(B+4,4)}, v{vT} offset:1024")
    A(f"ds_read_b64 {v(B+8,2)}, v12")
    A("s_waitcnt lgkmcnt(0)")
    t0, t1, t2 = 8, 9, 10
    A(f"v_max_f32 v{t0}, v{vM}, v{B+9}")
    A(f"v_sub_f32 v{t1}, v{vM}, v{t0}")
    A(f"v_sub_f32 v{t2}, v{B+9}, v{t0}")
    A(f"v_exp_f32 v{t1}, v{t1}")
    A(f"v_exp_f32 v{t2}, v{t2}")
    A("s_nop 0")
    for i in range(9):
        A(f"v_mul_f32 v{vO+i}, v{vO+i}, v{t1}")
    for i in range(9):
        A(f"v_fmac_f32 v{vO+i}, v{B+i}, v{t2}")
    A(f"v_rcp_f32 v{t0}, v{vO+8}")
    A("s_nop 0")
    for i in range(8):
        A(f"v_mul_f32 v{vO+i}, v{vO+i}, v{t0}")
    for k in range(4):
        A(f"v_cvt_pk_bf16_f32 v{vP+k}, v{vO+2*k}, v{vO+2*k+1}")
    A("s_nop 1")
    A(f"v_permlane32_swap_b32 v{vP}, v{vP+2}")
    A(f"v_permlane32_swap_b32 v{vP+1}, v{vP+3}")
    A(f"s_add_u32 s18, s18, {WS_O}")
    A("s_nop 1")
    A(f"buffer_store_dwordx4 {v(vP,4)}, v{vL16}, {WSRD}, s18 offen sc1")
    A("s_waitcnt vmcnt(0)")
    flag_store(A, 19, 12, 13)
    lsig(A, C_OWN2, 12)
    A.label("AT_DONE")
    stamp(A, 6)

def attention_fallback(A):
    A.label("AT_FALLBACK")
    A(f"v_mov_b32 v{vM}, 0xff800000")
    A(f"v_subrev_u32 v{vT}, 65536, v{vKA}")
    A("s_mov_b32 s17, 0")
    A.label("AT_FB1")
    A(f"ds_read_b128 {v(vKF,4)}, v{vT}")
    A(f"v_add_u32 v{vT}, 4096, v{vT}")
    A("s_waitcnt lgkmcnt(0)")
    A(f"v_mfma_f32_32x32x16_bf16 {v(vS,16)}, {v(vKF,4)}, {v(vQ,4)}, 0")
    A("s_nop 15")
    for k in range(8):
        A(f"v_max3_f32 v{vM}, v{vS+2*k}, v{vS+2*k+1}, v{vM}")
    A("s_add_u32 s17, s17, 1")
    A("s_cmp_lt_u32 s17, 32")
    A("s_cbranch_scc1 AT_FB1")
    A(f"v_mov_b32 v{vT}, v{vM}")
    A(f"v_mov_b32 v12, v{vM}")
    A("s_nop 1")
    A(f"v_permlane32_swap_b32 v{vT}, v12")
    A("s_nop 1")
    A(f"v_max_f32 v{vM}, v{vT}, v12")
    for i in range(16): A(f"v_mov_b32 v{vO+i}, 0")
    A(f"v_subrev_u32 v{vT}, 65536, v{vKA}")
    A(f"v_subrev_u32 v12, 65536, v{vVA}")
    A("s_mov_b32 s17, 0")
    A.label("AT_FB2")
    A(f"ds_read_b128 {v(vKF,4)}, v{vT}")
    A("s_mov_b64 exec, s[20:21]")
    A(f"ds_read_b128 {v(vVF,4)}, v12")
    A(f"ds_read_b128 {v(vVF+4,4)}, v12 offset:512")
    A("s_mov_b64 exec, -1")
    A(f"v_add_u32 v{vT}, 4096, v{vT}")
    A(f"v_add_u32 v12, 4096, v12")
    A("s_waitcnt lgkmcnt(0)")
    A(f"v_mfma_f32_32x32x16_bf16 {v(vS,16)}, {v(vKF,4)}, {v(vQ,4)}, 0")
    A("s_nop 15")
    for i in range(16): A(f"v_sub_f32 v{vS+i}, v{vS+i}, v{vM}")
    for i in range(16): A(f"v_exp_f32 v{vS+i}, v{vS+i}")
    A("s_nop 0")
    for k in range(8): A(f"v_cvt_pk_bf16_f32 v{vP+k}, v{vS+2*k}, v{vS+2*k+1}")
    A("s_nop 1")
    A(f"v_mfma_f32_32x32x16_bf16 {v(vO,16)}, {v(vVF,4)}, {v(vP,4)}, {v(vO,16)}")
    A(f"v_mfma_f32_32x32x16_bf16 {v(vO,16)}, {v(vVF+4,4)}, {v(vP+4,4)}, {v(vO,16)}")
    A("s_add_u32 s17, s17, 1")
    A("s_cmp_lt_u32 s17, 32")
    A("s_cbranch_scc1 AT_FB2")
    A("s_nop 15")
    A(f"v_mov_b32 v{vT}, v{vO+8}")
    A("s_nop 1")
    A(f"v_permlane32_swap_b32 v{vT}, v{vO+8}")
    A("s_nop 1")
    A(f"v_mov_b32 v{vO+8}, v{vT}")
    A("s_branch AT_COMBINE")

def tail(A):
    A("s_and_b32 s12, s2, 7"); A("s_lshl_b32 s12, s12, 3"); A("s_lshr_b32 s13, s2, 5"); A("s_add_u32 s12, s12, s13")
    A("s_lshr_b32 s13, s2, 3"); A("s_and_b32 s13, s13, 3")
    A(f"v_lshlrev_b32 v10, {FS}, v0")
    A(f"s_lshl_b32 s17, s12, {5+FS}")
    A(f"s_add_u32 s17, s17, {WS_F2}")
    A("s_cmp_eq_u32 s3, 8")
    A("s_cbranch_scc0 TL_NOPOLL")
    lwait(A, C_OWN2, 8, 12, sleep=1)
    poll(A, "TL_P2", 10, 17, "-1", 12, sleep=1)
    lsig(A, C_F2, 12)
    A.label("TL_NOPOLL")
    A("v_and_b32 v4, 15, v0")
    A("v_lshrrev_b32 v5, 4, v0")
    A("v_lshlrev_b32 v14, 9, v5")
    A("v_lshl_add_u32 v14, v4, 4, v14")
    A("s_lshl_b32 s17, s16, 14")
    A(f"s_add_u32 s17, s17, {L_OT}")
    A(f"v_add_u32 v14, s17, v14")
    A("v_lshlrev_b32 v15, 11, v4")
    A("v_lshl_add_u32 v15, v5, 3, v15")
    A("s_lshl_b32 s20, s12, 16")
    A("s_lshl_b32 s19, s16, 15")
    A("s_add_u32 s20, s20, s19")
    A("s_lshl_b32 s19, s13, 8")
    A("s_add_u32 s20, s20, s19")
    A("s_lshl_b32 s19, s15, 5")
    A("s_add_u32 s20, s20, s19")
    A("s_add_u32 s20, s20, 1024")
    srd(A, 4, SP['out'], 2048*1024*2)
    A("s_lshl_b32 s17, s3, 10")
    A(f"s_add_u32 s17, s17, {L_PC}")
    A(f"v_add_u32 v6, s17, v{vL16}")
    A("s_xor_b32 s17, s17, 8192")
    A(f"v_add_u32 v7, s17, v{vL16}")
    A("s_lshl_b32 s17, s3, 17")
    A("s_lshl_b32 s18, s12, 10")
    A("s_add_u32 s17, s17, s18")
    A(f"s_add_u32 s17, s17, {WS_O}")
    A("s_lshl_b32 s18, s3, 11")
    A(f"s_add_u32 s18, s18, {L_OT}")
    A(f"v_add_u32 v13, s18, v{vL16}")
    lwait(A, C_F2, 1, 8, sleep=1)
    stamp(A, 43)
    A(f"buffer_load_dwordx4 v[16:19], v{vL16}, {WSRD}, s17 offen sc1")
    A("s_add_u32 s17, s17, 65536")
    A(f"buffer_load_dwordx4 v[20:23], v{vL16}, {WSRD}, s17 offen sc1")
    A("s_waitcnt vmcnt(1)")
    A("ds_write_b128 v13, v[16:19]")
    A("s_waitcnt vmcnt(0)")
    A("ds_write_b128 v13, v[20:23] offset:1024")
    A("s_waitcnt lgkmcnt(0)")
    stamp(A, 44)
    A("s_barrier")
    stamp(A, 45)
    q = DSQ(A)
    FO = 16
    def rd(s_):
        b = s_ % 3
        for th in range(2):
            A(f"ds_read_b128 {v(FO+12*th+4*b,4)}, v14 offset:{s_*2048 + th*256}"); q.issue(("o", s_, th))
    rd(0); rd(1)
    for s_ in range(8):
        if s_ + 2 < 8: rd(s_ + 2)
        b = s_ % 3
        for th in range(2):
            q.wait(("o", s_, th))
            cc = "0" if s_ == 0 else v(40+4*th, 4)
            A(f"v_mfma_f32_16x16x32_bf16 {v(40+4*th,4)}, {v(vLD+4*s_,4)}, {v(FO+12*th+4*b,4)}, {cc}")
    A("s_cmp_eq_u32 s2, 0")
    A("s_cbranch_scc0 TL_NE")
    A("s_cmp_eq_u32 s3, 8")
    A("s_cbranch_scc0 TL_NE")
    A(f"s_mov_b32 s17, {WS_EP}")
    flag_store(A, 17, 12, 13)
    A.label("TL_NE")
    A("s_nop 7")
    A("s_cmp_eq_u32 s16, 0")
    A("s_cbranch_scc1 TL_LO")
    A("ds_write_b128 v6, v[40:43]")
    for i in range(4): A(f"v_mov_b32 v{40+i}, v{44+i}")
    A("s_branch TL_X")
    A.label("TL_LO")
    A("ds_write_b128 v6, v[44:47]")
    A.label("TL_X")
    A("s_waitcnt lgkmcnt(0)")
    A("s_barrier")
    A("ds_read_b128 v[16:19], v7")
    A("s_waitcnt lgkmcnt(0)")
    for i in range(4):
        A(f"v_add_f32 v{40+i}, v{40+i}, v{16+i}")
    A("v_cvt_pk_bf16_f32 v48, v40, v41")
    A("v_cvt_pk_bf16_f32 v49, v42, v43")
    A("buffer_store_dwordx2 v[48:49], v15, s[4:7], s20 offen" + os.environ.get("OUTSC", ""))

def gen():
    A = Asm()
    kernel_begin(A, NAME)
    A.label("K_START")
    if not os.environ.get("NOPF"):
        A("s_getpc_b64 s[4:5]")
        A.label("PF_PC")
        A("v_lshlrev_b32 v2, 7, v0")
        A("v_cmp_gt_u32 vcc, GTAB_END-PF_PC-128, v2")
        A("s_and_saveexec_b64 s[6:7], vcc")
        A("s_cbranch_execz PF_DONE")
        A(f"global_load_dword v{vE}, v2, s[4:5]")
        A.label("PF_DONE")
        A("s_mov_b64 exec, s[6:7]")
    if DBG: A("v_mov_b32 v125, 0")
    if PROF:
        A("v_mov_b32 v125, 0")
        A("s_memrealtime s[38:39]")
    stamp(A, 0)
    A("s_cmp_ge_u32 s2, 256")
    A("s_cbranch_scc1 K_END")
    A("s_load_dwordx16 s[64:79], s[0:1], 0")
    A("s_load_dwordx8 s[80:87], s[0:1], 64")
    A("s_load_dwordx2 s[88:89], s[0:1], 96")
    A("v_lshrrev_b32 v8, 6, v0")
    A("v_and_b32 v0, 63, v0")
    A("v_readfirstlane_b32 s3, v8")
    A(f"v_lshlrev_b32 v{vL16}, 4, v0")
    p1_ids(A)
    A("s_cmp_eq_u32 s3, 12")
    A("s_cbranch_scc0 E_NZ")
    A("v_lshlrev_b32 v20, 2, v0")
    A(f"v_add_u32 v20, {L_CNT}, v20")
    A("v_mov_b32 v24, 0")
    A("ds_write_b32 v20, v24")
    A.label("E_NZ")
    A("s_cmp_ge_u32 s3, 12")
    A("s_cbranch_scc0 E_NG")
    kgen_pre(A)
    A.label("E_NG")
    ka_wait(A)
    A("s_barrier")
    A("s_cmp_lt_u32 s3, 4")
    A("s_cbranch_scc1 R_COMPUTE")
    A("s_cmp_ge_u32 s3, 12")
    A("s_cbranch_scc1 R_KGEN")
    p1_loader(A)
    attn_setup(A)
    A("s_branch R_JOIN")
    A.label("R_KGEN")
    kgen(A)
    A("s_branch R_LD")
    A.label("R_COMPUTE")
    p1_compute(A)
    A.label("R_LD")
    ld_group(A)
    A.label("R_JOIN")
    attention(A)
    tail(A)
    A.label("K_FIN")
    stamp(A, 50)
    A("s_waitcnt vmcnt(0)")
    stamp(A, 51)
    write_stamps(A)
    if DBG:
        A("s_cmp_eq_u32 s2, 8"); A("s_cbranch_scc0 K_END")
        A("s_cmp_eq_u32 s3, 0"); A("s_cbranch_scc0 K_END")
        A("s_memtime s[48:49]"); A("s_memrealtime s[50:51]"); A("s_waitcnt lgkmcnt(0)")
        A("v_readlane_b32 s52, v125, 0"); A("v_readlane_b32 s53, v125, 1")
        A("s_nop 3")
        A("v_writelane_b32 v125, s48, 0"); A("v_writelane_b32 v125, s50, 1")
        A("v_and_b32 v16, 1, v0")
        A("v_cmp_eq_u32 vcc, 0, v16")
        A("v_mov_b32 v17, s53"); A("v_mov_b32 v18, s52")
        A("s_nop 1")
        A("v_cndmask_b32 v17, v17, v18, vcc")
        A("v_sub_u32 v17, v125, v17")
        srd(A, 4, SP['dbg'], 256)
        A("v_lshlrev_b32 v16, 2, v0")
        A("s_mov_b64 exec, 0xffff")
        A("buffer_store_dword v17, v16, s[4:7], 0 offen")
        A("s_waitcnt vmcnt(0)")
    A.label("K_END")
    A("s_endpgm")
    attention_fallback(A)
    A(".p2align 6")
    A(".type GTAB,@object")
    A.label("GTAB")
    t = gather_table()
    for i in range(0, 2048, 16):
        A(".long " + ", ".join(str(int(x)) for x in t[i:i+16]))
    A(".size GTAB, 8192")
    A.label("GTAB_END")
    hdr_src = open("concat_heads__ssm_conv_s4d__mha_block__prompt.s.ref").read().split("\n")
    hdr = [l for l in hdr_src if l.startswith(";") and "@launch" not in l and "Override launch" not in l and "grid=ceil" not in l]
    out = "\n".join(hdr) + "\n; @launch grid=(256,1,1) block=(1024,1,1) lds=163840\n"
    out += '.amdgcn_target "amdgcn-amd-amdhsa--gfx950"\n'
    out += A.text() + kernel_desc(NAME, 128, 100)
    return out

if __name__ == "__main__":
    open(sys.argv[1] if len(sys.argv) > 1 else "fused.s", "w").write(gen())
```

```python
import os, struct, sys
from asmlib import *
from ssm_common import gather_table

NAME = "concat_heads__ssm_conv_s4d__mha_block__prompt_kernel"
PROF = bool(os.environ.get("PROF"))
DBG = bool(os.environ.get("DBG"))
DBGMAP = {0: 0, 10: 1, 1: 2, 2: 3, 4: 4, 5: 5, 6: 6, 45: 7}

def f32bits(x): return struct.unpack("<I", struct.pack("<f", x))[0]
LOG2E = 1.4426950408889634
INV2PI = 0.15915494309189535
C_SCALE = 0.25 * LOG2E

WS_Q = 0x000000; WS_K = 0x200000; WS_V = 0x400000; WS_O = 0x600000
WS_UT = 0x800000
WS_WOF = 0xA00000
FS = 8
WS_F1 = 0xA80000
WS_F2 = 0xAC0000
WS_F3 = 0xB40000
WS_FU = 0xB50000
WS_F4 = 0xBA0000
WS_EP = 0xB90000
WS_TOTAL = 0xBB0000
WS_PROF = 0x1000000
SP = dict(u=64, lar=66, aim=68, cre=70, cim=72, ldt=74, dsk=76, x=78, wqkv=80, wo=82, out=84, dbg=86, ws=88)
sWS = 44
WSRD = f"s[{sWS}:{sWS+3}]"
sT = 90
vL16 = 1
vE = 127

SLOT = 28672; NSLOT = 3; AHEAD = 2
L_TA = 86016; L_TBO = 11088; L_TCH = 27984
L_T = 143360
L_CNT = 147968
C_G = L_CNT; C_CV = L_CNT + 4; C_WO = L_CNT + 8; C_KR = L_CNT + 12
def C_RDY(c): return L_CNT + 16 + 4*c
def C_DONE(c): return L_CNT + 48 + 4*c
C_FU = L_CNT + 80; C_F1 = L_CNT + 84; C_F2 = L_CNT + 88; C_ISS = L_CNT + 92; C_T = L_CNT + 96; C_GU = L_CNT + 100; C_GT = L_CNT + 104; C_OWN = L_CNT + 108; C_OWN2 = L_CNT + 112; C_PAR = L_CNT + 116; C_GT2 = L_CNT + 120; C_LAND = L_CNT + 128; C_F4 = L_CNT + 140
L_PAR = 57344
L_KREV = 148480; KREV_SZ = 7680
L_UTL = 57344 + 4096
L_WOT = 86016
L_UC = 57344; UC_RHO = 4160; UC_CH = 16640
L_PART = 90624
L_QS = 49152
L_SCR = 131072
L_OT = 0
L_PC = 32768

class DSQ:
    def __init__(self, A): self.A = A; self.q = []
    def issue(self, tag): self.q.append(tag)
    def wait(self, tag):
        if tag not in self.q: return
        i = len(self.q) - 1 - self.q[::-1].index(tag)
        n = len(self.q) - 1 - i
        assert n <= 15, n
        self.A(f"s_waitcnt lgkmcnt({n})")
        self.q = self.q[i+1:]
    def room(self):
        if len(self.q) >= 15: self.wait(self.q[0])
    def drain(self):
        self.A("s_waitcnt lgkmcnt(0)"); self.q = []

def stamp(A, k):
    if DBG and k in DBGMAP:
        j = DBGMAP[k]
        A("s_memtime s[48:49]")
        A("s_memrealtime s[50:51]")
        A("s_waitcnt lgkmcnt(0)")
        A(f"v_writelane_b32 v125, s48, {2*j}")
        A(f"v_writelane_b32 v125, s50, {2*j+1}")
    if PROF:
        A("s_memtime s[48:49]")
        A("s_waitcnt lgkmcnt(0)")
        A(f"v_writelane_b32 v125, s48, {k}")

def write_stamps(A):
    if not PROF: return
    A("s_memrealtime s[40:41]")
    A("s_waitcnt lgkmcnt(0)")
    A(f"v_writelane_b32 v125, s40, 62")
    A(f"v_writelane_b32 v125, s91, 63")
    A(f"s_add_u32 s92, s{SP['ws']}, {WS_PROF}")
    A(f"s_addc_u32 s93, s{SP['ws']+1}, 0")
    A("s_mov_b32 s94, 0x200000")
    A("s_mov_b32 s95, 0x00020000")
    A("s_lshl_b32 s42, s2, 4"); A("s_add_u32 s42, s42, s3"); A("s_lshl_b32 s42, s42, 8")
    A("v_lshlrev_b32 v16, 2, v0")
    A("buffer_store_dword v125, v16, s[92:95], s42 offen")
    A("s_waitcnt vmcnt(0)")

def poll(A, label, vaddr, soff, mask_lo, vtmp, sleep=4):
    A(f"s_mov_b32 s30, {mask_lo}")
    A("s_mov_b32 s31, 0")
    A("s_mov_b64 exec, s[30:31]")
    A("s_mov_b32 s29, 0")
    A.label(label)
    A(f"buffer_load_dword v{vtmp}, v{vaddr}, {WSRD}, s{soff} offen sc1")
    A("s_add_u32 s29, s29, 1")
    A("s_waitcnt vmcnt(0)")
    A(f"v_cmp_ne_u32 vcc, s{sT}, v{vtmp}")
    A("s_cmp_gt_u32 s29, 0x10000")
    A(f"s_cbranch_scc1 {label}_x")
    A(f"s_cbranch_vccz {label}_x")
    A(f"s_sleep {sleep}")
    A(f"s_branch {label}")
    A.label(label + "_x")
    A("s_mov_b64 exec, -1")

def check_or_poll(A, label, vaddr, soff, mask_lo, vflag):
    A(f"s_mov_b32 s30, {mask_lo}")
    A("s_mov_b32 s31, 0")
    A(f"v_cmp_ne_u32 vcc, s{sT}, v{vflag}")
    A("s_nop 1")
    A("s_and_b64 vcc, vcc, s[30:31]")
    A(f"s_cbranch_vccz {label}_ok")
    poll(A, label, vaddr, soff, mask_lo, vflag)
    A.label(label + "_ok")

def flag_store(A, soff, vtmp, vzero):
    A(f"v_mov_b32 v{vtmp}, s{sT}")
    A(f"v_mov_b32 v{vzero}, 0")
    A("s_mov_b64 exec, 1")
    A(f"buffer_store_dword v{vtmp}, v{vzero}, {WSRD}, s{soff} offen sc1")
    A("s_mov_b64 exec, -1")

def get_tag(A, vt=126, vd=None):
    L = A.newlabel("GT")
    A(f"v_mov_b32 v{vt}, {C_T}")
    A("s_mov_b32 s43, 0")
    A.label(L)
    A(f"ds_read_b32 v{vE}, v{vt}")
    A("s_add_u32 s43, s43, 1")
    A("s_waitcnt lgkmcnt(0)")
    A(f"v_readfirstlane_b32 s{sT}, v{vE}")
    A("s_cmp_gt_u32 s43, 0x80000")
    A(f"s_cbranch_scc1 {L}_x")
    A(f"s_cmp_eq_u32 s{sT}, 0")
    A(f"s_cbranch_scc1 {L}")
    A.label(L + "_x")

def make_tag(A):
    A(f"v_readfirstlane_b32 s{sT}, v{vE}")
    A("s_nop 3")
    A(f"s_mul_i32 s{sT}, s{sT}, 0x9e3779b1")
    A(f"s_add_u32 s{sT}, s{sT}, 0x7f4a7c15")
    A(f"s_or_b32 s{sT}, s{sT}, 1")
    A(f"v_mov_b32 v{vE}, s{sT}")
    A(f"v_mov_b32 v126, {C_T}")
    A(f"ds_write_b32 v126, v{vE}")

def gsync(A, cnt_addr, target, vt):
    A("s_waitcnt lgkmcnt(0)")
    lsig(A, cnt_addr, vt)
    lwait(A, cnt_addr, target, vt, sleep=1)

def lsig(A, addr, vt):
    A(f"v_mov_b32 v{vt}, {addr}")
    A(f"v_mov_b32 v{vt+1}, 1")
    A("s_mov_b64 exec, 1")
    A(f"ds_add_u32 v{vt}, v{vt+1}")
    A("s_mov_b64 exec, -1")

def lwait(A, addr, target, vt, sleep=0):
    L = A.newlabel("LW")
    A(f"v_mov_b32 v{vt}, {addr}")
    A("s_mov_b32 s43, 0")
    A.label(L)
    A(f"ds_read_b32 v{vt+1}, v{vt}")
    A("s_add_u32 s43, s43, 1")
    A("s_waitcnt lgkmcnt(0)")
    A(f"v_readfirstlane_b32 s42, v{vt+1}")
    A("s_cmp_gt_u32 s43, 0x80000")
    A(f"s_cbranch_scc1 {L}_x")
    A(f"s_cmp_ge_u32 s42, {target}")
    if sleep:
        A(f"s_cbranch_scc1 {L}_x")
        A(f"s_sleep {sleep}")
        A(f"s_branch {L}")
    else:
        A(f"s_cbranch_scc0 {L}")
    A.label(L + "_x")

def merge(*chains):
    out = []; idx = [0] * len(chains)
    while any(idx[i] < len(chains[i]) for i in range(len(chains))):
        for i, ch in enumerate(chains):
            if idx[i] < len(ch):
                out.append(ch[idx[i]]); idx[i] += 1
    return out

class Rec:
    def __init__(self): self.L = []
    def __call__(self, s): self.L.append(s)

def chan_pair(A, dst, tmp):
    A(f"s_and_b32 s{dst}, s2, 7"); A(f"s_lshl_b32 s{dst}, s{dst}, 5"); A(f"s_lshr_b32 s{tmp}, s2, 3")
    A(f"s_add_u32 s{dst}, s{dst}, s{tmp}"); A(f"s_lshl_b32 s{dst}, s{dst}, 1")

def ka_wait(A):
    A("s_waitcnt lgkmcnt(0)")
    if PROF: A("s_mov_b32 s91, s38")
    srd(A, sWS, SP['ws'], WS_TOTAL)

def p1_ids(A):
    A("s_and_b32 s17, s2, 7")
    A("s_lshr_b32 s18, s2, 3")
    A("s_and_b32 s12, s17, 3")
    A("s_lshl_b32 s12, s12, 2")
    A("s_and_b32 s19, s18, 3")
    A("s_add_u32 s12, s12, s19")
    A("s_lshr_b32 s13, s17, 2")
    A("s_lshl_b32 s13, s13, 3")
    A("s_lshr_b32 s19, s18, 2")
    A("s_add_u32 s13, s13, s19")

def conv_part(A, p, vUA, vKB0, vKB1, ACC0, ACC1):
    ks = list({0: range(0, 24), 1: range(24, 48), 2: range(48, 80), 3: range(80, 128)}[p])
    q = DSQ(A)
    NB = 4
    FA, FB0, FB1 = 8, 24, 40
    def rd(i):
        k = ks[i]; b = i % NB
        A(f"ds_read_b64 {v(FA+4*b,2)}, v{vUA} offset:{32*k}"); q.issue(("a0", i))
        A(f"ds_read_b64 {v(FA+4*b+2,2)}, v{vUA} offset:{32*k+8}"); q.issue(("a1", i))
        off = (k//2)*80 + (k%2)*32
        A(f"ds_read_b128 {v(FB1+4*b,4)}, v{vKB1} offset:{off}"); q.issue(("b1", i))
        if k < 64:
            A(f"ds_read_b128 {v(FB0+4*b,4)}, v{vKB0} offset:{off}"); q.issue(("b0", i))
    n = len(ks)
    for i in range(min(NB-1, n)): rd(i)
    first0 = first1 = True
    for i in range(n):
        if i + NB - 1 < n: rd(i + NB - 1)
        k = ks[i]; b = i % NB
        q.wait(("b1", i))
        A(f"v_mfma_f32_32x32x16_bf16 {v(ACC1,16)}, {v(FA+4*b,4)}, {v(FB1+4*b,4)}, {'0' if first1 else v(ACC1,16)}"); first1 = False
        if k < 64:
            q.wait(("b0", i))
            A(f"v_mfma_f32_32x32x16_bf16 {v(ACC0,16)}, {v(FA+4*b,4)}, {v(FB0+4*b,4)}, {'0' if first0 else v(ACC0,16)}"); first0 = False

vY = [90, 91, 126, 127]

def p1_loader(A):
    vDX, vDX1, vDW = 2, 3, 5
    A("s_sub_u32 s15, s3, 4")
    A("s_setprio 3")
    A("v_lshrrev_b32 v9, 3, v0")
    A("v_lshrrev_b32 v10, 1, v9")
    A("v_xor_b32 v10, v10, v0")
    A("v_and_b32 v10, 7, v10")
    A("v_lshlrev_b32 v10, 4, v10")
    A(f"v_lshl_add_u32 v{vDX}, v9, 10, v10")
    A(f"v_xor_b32 v{vDX1}, 64, v{vDX}")
    A("s_lshl_b32 s20, s12, 17")
    A("s_lshl_b32 s17, s15, 14")
    A("s_add_u32 s20, s20, s17")
    A("s_lshl_b32 s21, s13, 6")
    A("s_lshl_b32 s22, s15, 11")
    A("s_lshl_b32 s23, s15, 10")
    A("s_add_u32 s23, s23, 16384")
    A("s_lshr_b32 s25, s2, 5")
    A("s_lshr_b32 s17, s2, 3")
    A("s_and_b32 s17, s17, 3")
    A("s_lshl_b32 s17, s17, 1")
    A("s_add_u32 s25, s25, s17")
    A("s_waitcnt lgkmcnt(0)")
    srd(A, 4, SP['x'], 2048*512*2)
    srd(A, 8, SP['wqkv'], 512*1536*2)
    def issue_x(c):
        slot = (c % NSLOT) * SLOT
        A(f"s_add_u32 s26, s25, {c}")
        A("s_and_b32 s26, s26, 7")
        A(f"s_lshl_b32 s24, s26, 7")
        A(f"s_add_u32 s24, s24, s20")
        A(f"s_add_u32 m0, s22, {slot}")
        A(f"s_mul_i32 s27, s26, {64*3072}")
        A(f"buffer_load_dwordx4 v{vDX}, s[4:7], s24 offen lds")
        A(f"s_add_u32 m0, s22, {slot + 1024}")
        A(f"s_add_u32 s24, s24, 8192")
        A(f"buffer_load_dwordx4 v{vDX1}, s[4:7], s24 offen lds")
    def issue_w(c, nw):
        slot = (c % NSLOT) * SLOT
        A(f"s_add_u32 m0, s23, {slot}")
        A(f"s_add_u32 s27, s27, s21")
        A(f"buffer_load_dwordx4 v{vDW}, s[8:11], s27 offen lds")
        if nw == 2:
            A(f"s_add_u32 m0, s23, {slot + 8192}")
            A("s_nop 0")
            A(f"buffer_load_dwordx4 v{vDW+1}, s[8:11], s27 offen lds")
    def wsetup():
        A("s_lshl_b32 s17, s15, 6")
        A("s_movk_i32 s18, 3072")
        A("s_mov_b32 s19, 43691")
        for i in range(2):
            A(f"v_add_u32 v9, s17, v0")
            if i: A(f"v_add_u32 v9, 512, v9")
            A("v_mul_u32_u24 v10, s19, v9")
            A("v_lshrrev_b32 v10, 19, v10")
            A("v_mul_u32_u24 v11, 12, v10")
            A("v_sub_u32 v11, v9, v11")
            A("v_lshrrev_b32 v12, 2, v10")
            A("v_and_b32 v12, 2, v12")
            A("v_xor_b32 v11, v11, v12")
            A("v_lshrrev_b32 v12, 2, v11")
            A("v_and_b32 v11, 3, v11")
            A("v_lshlrev_b32 v11, 4, v11")
            A("v_lshl_add_u32 v11, v12, 10, v11")
            A(f"v_mad_u32_u24 v{vDW+i}, v10, s18, v11")
    def gtab():
        A("s_getpc_b64 s[32:33]")
        L = A.newlabel("CPC"); A.label(L)
        A(f"s_add_u32 s32, s32, GTAB-{L}")
        A("s_addc_u32 s33, s33, 0")
        A("s_and_b32 s17, s15, 3"); A("s_lshl_b32 s17, s17, 11")
        A("v_lshlrev_b32 v14, 5, v0")
        A("v_add_u32 v14, s17, v14")
        A("global_load_dwordx4 v[96:99], v14, s[32:33]")
        A("global_load_dwordx4 v[100:103], v14, s[32:33] offset:16")
    def ut_loads():
        A("buffer_load_dwordx4 v[108:111], v117, s[32:35], 0 offen sc1")
        A("buffer_load_dwordx4 v[112:115], v116, s[32:35], 0 offen sc1")
        A("buffer_load_dwordx4 v[120:123], v119, s[32:35], 0 offen sc1")
    def ut_prep():
        chan_pair(A, 14, 17)
        A("s_lshr_b32 s16, s15, 2")
        A("s_add_u32 s17, s14, s16")
        A("s_lshl_b32 s17, s17, 12")
        A(f"s_add_u32 s17, s17, {WS_UT}")
        ka_wait(A)
        A(f"s_add_u32 s32, s{SP['ws']}, s17"); A(f"s_addc_u32 s33, s{SP['ws']+1}, 0")
        A("s_mov_b32 s34, 4096"); A("s_mov_b32 s35, 0x00020000")
        A("s_and_b32 s19, s15, 3"); A("s_lshl_b32 s19, s19, 10")
        A(f"v_add_u32 v116, s19, v{vL16}")
        A("v_subrev_u32 v117, 16, v116")
        A("v_cmp_eq_u32 vcc, 0, v116")
        A("v_mov_b32 v118, 4096")
        A("s_nop 0")
        A("v_cndmask_b32 v117, v117, v118, vcc")
        A("v_mov_b32 v119, 4096")
        A(f"v_mov_b32 v120, {255*16}")
        A("v_cmp_eq_u32 vcc, 3, v0")
        A("s_nop 1")
        A("v_cndmask_b32 v119, v119, v120, vcc")
    def loop(nw):
        per = 2 + nw
        issue_w(0, nw)
        issue_x(1); issue_w(1, nw)
        for c in range(8):
            last = min(7, c + 1)
            if c != 7: A(f"s_waitcnt vmcnt({per * (last - c)})")
            A("s_barrier")
            if c + AHEAD < 8:
                issue_x(c + AHEAD); issue_w(c + AHEAD, nw)
            if c == 5: ut_prep()
            if c == 6:
                L = A.newlabel("CVC")
                A(f"v_mov_b32 v30, {C_FU}")
                A("ds_read_b32 v31, v30")
                A("s_waitcnt lgkmcnt(0)")
                A("v_readfirstlane_b32 s40, v31")
                A("s_nop 0")
                A("s_cmp_eq_u32 s40, 0")
                A(f"s_cbranch_scc1 {L}")
                ut_loads()
                A("s_waitcnt vmcnt(3)")
                A(f"s_branch {L}b")
                A.label(L)
                A("s_waitcnt vmcnt(0)")
                A.label(L + "b")
    issue_x(0)
    wsetup()
    A("s_cmp_ge_u32 s15, 4")
    A("s_cbranch_scc1 P1_LOADER1")
    loop(2)
    A("s_branch P1_LOADER_END")
    A.label("P1_LOADER1")
    loop(1)
    A.label("P1_LOADER_END")
    A("s_setprio 1")
    stamp(A, 28)
    if os.environ.get("X_P1ONLY"): A("s_branch K_FIN")
    A("s_cmp_lg_u32 s40, 0")
    A("s_cbranch_scc1 CV_HAVE")
    lwait(A, C_FU, 1, 72, sleep=1)
    ut_loads()
    A.label("CV_HAVE")
    get_tag(A, vt=30)
    def copies(D, dest):
        T0, T1, T2 = 44, 48, 52
        for j in range(4): A(f"v_alignbit_b32 v{T0+j}, v{D+j+1}, v{D+j}, 16")
        for j in range(4): A(f"v_mov_b32 v{T1+j}, v{D+1+j}")
        for j in range(4): A(f"v_alignbit_b32 v{T2+j}, v{D+j+2}, v{D+j+1}, 16")
        A(f"ds_write_b128 v{dest}, {v(T0,4)}")
        A(f"ds_write_b128 v{dest}, {v(T1,4)} offset:{UC_RHO}")
        A(f"ds_write_b128 v{dest}, {v(T2,4)} offset:{2*UC_RHO}")
        A(f"ds_write_b128 v{dest}, {v(D+2,4)} offset:{3*UC_RHO}")
    A("s_lshr_b32 s16, s15, 2")
    A(f"s_mul_i32 s21, s16, {UC_CH}")
    A(f"s_add_u32 s21, s21, {L_UC + 48}")
    A("v_add_u32 v19, s21, v116")
    A(f"s_mul_i32 s23, s16, {KREV_SZ}")
    A(f"s_add_u32 s23, s23, {L_KREV}")
    A("v_and_b32 v9, 31, v0")
    A("v_lshrrev_b32 v10, 5, v0")
    A("v_and_b32 v11, 3, v9")
    A(f"v_mul_u32_u24 v11, {UC_RHO}, v11")
    A("v_lshrrev_b32 v12, 2, v9")
    A("v_lshl_add_u32 v11, v12, 3, v11")
    A("v_lshl_add_u32 v11, v10, 4, v11")
    A(f"s_mul_i32 s24, s16, {UC_CH}")
    A(f"s_add_u32 s24, s24, {L_UC}")
    A("v_add_u32 v4, s24, v11")
    A("v_sub_u32 v11, 63, v9")
    A("v_mul_u32_u24 v11, 80, v11")
    A("v_lshl_add_u32 v11, v10, 4, v11")
    A("v_add_u32 v5, s23, v11")
    A("v_subrev_u32 v6, 2560, v5")
    A("s_and_b32 s24, s15, 3")
    A(f"s_mul_i32 s25, s16, 28672")
    A("s_lshl_b32 s26, s24, 12")
    A("s_add_u32 s25, s25, s26")
    A(f"s_add_u32 s25, s25, {L_PART}")
    A(f"v_add_u32 v7, s25, v{vL16}")
    A("s_waitcnt vmcnt(0)")
    copies(108, 19)
    A("s_cmp_eq_u32 s19, 0")
    A("s_cbranch_scc0 CV_NOX2")
    for j in range(4): A(f"v_mov_b32 v{56+j}, v{120+j}")
    for j in range(4): A(f"v_mov_b32 v{60+j}, 0")
    A(f"v_mov_b32 v30, {259*16}")
    A("v_cmp_eq_u32 vcc, 3, v0")
    A("s_sub_u32 s21, s21, 48")
    A(f"v_cndmask_b32 v30, v{vL16}, v30, vcc")
    A("v_add_u32 v30, s21, v30")
    A("s_mov_b64 exec, 15")
    copies(56, 30)
    A("s_mov_b64 exec, -1")
    A.label("CV_NOX2")
    gsync(A, C_CV, 8, 8)
    stamp(A, 30)
    ACC0, ACC1 = 56, 72
    for p in range(4):
        if p < 3:
            A(f"s_cmp_eq_u32 s24, {p}")
            A(f"s_cbranch_scc0 CV_P{p+1}")
        conv_part(A, p, 4, 5, 6, ACC0, ACC1)
        A("s_nop 15")
        for qd in range(4):
            A(f"ds_write_b128 v7, {v(ACC1+4*qd,4)} offset:{qd*1024}")
        if p < 3:
            for qd in range(4):
                A(f"ds_write_b128 v7, {v(ACC0+4*qd,4)} offset:{16384 + qd*1024}")
            A("s_branch CV_PE")
            A.label(f"CV_P{p+1}")
    A.label("CV_PE")
    stamp(A, 31)
    gsync(A, C_CV, 16, 8)
    stamp(A, 32)
    A("s_lshl_b32 s26, s24, 10")
    A(f"s_add_u32 s26, s26, {L_PART}")
    A(f"v_add_u32 v4, s26, v{vL16}")
    A("s_cmp_eq_u32 s16, 0")
    A("s_cbranch_scc1 CV_F0")
    for c in range(2):
        for p in range(4):
            A(f"ds_read_b128 {v(16+16*c+4*p,4)}, v4 offset:{c*28672 + p*4096}")
    A("s_waitcnt lgkmcnt(0)")
    for c in range(2):
        for r in range(4):
            b_ = 16 + 16*c + r
            A(f"v_add_f32 v{b_}, v{b_}, v{b_+4}"); A(f"v_add_f32 v{b_+8}, v{b_+8}, v{b_+12}")
        for r in range(4):
            b_ = 16 + 16*c + r
            A(f"v_add_f32 v{b_}, v{b_}, v{b_+8}")
    A("s_branch CV_F1")
    A.label("CV_F0")
    for c in range(2):
        for p in range(3):
            A(f"ds_read_b128 {v(16+16*c+4*p,4)}, v4 offset:{c*28672 + 16384 + p*4096}")
    A("s_waitcnt lgkmcnt(0)")
    for c in range(2):
        for r in range(4):
            b_ = 16 + 16*c + r
            A(f"v_add_f32 v{b_}, v{b_}, v{b_+4}")
        for r in range(4):
            b_ = 16 + 16*c + r
            A(f"v_add_f32 v{b_}, v{b_}, v{b_+8}")
    A.label("CV_F1")
    for r in range(4):
        A(f"v_cvt_pk_bf16_f32 v{vY[r]}, v{16+r}, v{32+r}")
    A("s_lshl_b32 s36, s16, 21")
    A("s_lshl_b32 s25, s24, 14")
    A("s_add_u32 s36, s36, s25")
    A("s_lshl_b32 s25, s14, 1")
    A("s_add_u32 s36, s36, s25")
    A("s_setprio 0")
    stamp(A, 33)

def p1_compute(A):
    vFR, vACC, vXA, vWA = 8, 64, 112, 118
    A("v_and_b32 v4, 15, v0")
    A("v_lshrrev_b32 v5, 4, v0")
    A("v_lshrrev_b32 v6, 1, v4")
    A("v_xor_b32 v6, v6, v5")
    A("v_lshlrev_b32 v6, 4, v6")
    A("v_lshl_add_u32 v6, v4, 7, v6")
    A("s_lshr_b32 s17, s3, 1")
    A("s_lshl_b32 s17, s17, 13")
    A(f"v_add_u32 v{vXA}, s17, v6")
    A(f"v_xor_b32 v{vXA+1}, 64, v{vXA}")
    for st in (1, 2):
        A(f"v_add_u32 v{vXA+2*st}, {st*2*SLOT}, v{vXA}")
        A(f"v_add_u32 v{vXA+2*st+1}, {st*2*SLOT}, v{vXA+1}")
    A("v_lshrrev_b32 v6, 2, v4")
    A("v_lshl_add_u32 v6, v5, 3, v6")
    A("v_mul_u32_u24 v6, 192, v6")
    A("v_and_b32 v7, 3, v4")
    A("v_lshl_add_u32 v6, v7, 3, v6")
    A("s_and_b32 s17, s3, 1")
    A("v_xor_b32 v7, s17, v5")
    A("v_and_b32 v7, 1, v7")
    A(f"v_lshl_add_u32 v{vWA}, v7, 5, v6")
    A(f"v_add_u32 v{vWA+1}, {2*SLOT}, v{vWA}")
    A(f"v_add_u32 v{vWA+2}, {4*SLOT}, v{vWA}")
    A("s_and_b32 s18, s3, 1")
    A("s_lshl_b32 s19, s13, 1")
    A("s_add_u32 s18, s18, s19")
    A(f"s_lshl_b32 s16, s18, {5+FS}")
    A("s_lshl_b32 s18, s18, 16")
    A("s_lshr_b32 s19, s3, 1")
    A("s_lshl_b32 s24, s12, 1")
    A("s_add_u32 s24, s24, s19")
    A(f"s_lshl_b32 s25, s24, {FS}")
    A("s_add_u32 s16, s16, s25")
    A(f"s_add_u32 s16, s16, {WS_F1}")
    A("s_lshl_b32 s19, s24, 11")
    A("s_add_u32 s18, s18, s19")
    A(f"s_mov_b32 s17, 0x{f32bits(C_SCALE):08x}")
    A("s_setprio 3")
    q = DSQ(A)
    def fr(buf): return vFR + 28 * buf
    def rd_list(step):
        c, ks2 = step // 2, step % 2
        slot = c % NSLOT
        st, so = slot // 2, (slot % 2) * SLOT
        b = fr(step % 2)
        L = []
        for hf in range(2):
            L.append((f"ds_read_b64_tr_b16 {v(b+16+2*hf,2)}, v{vWA+st} offset:{so + 16384 + (32*ks2+4*hf)*192}", ("w", step, 0, hf)))
        for ti in range(4):
            L.append((f"ds_read_b128 {v(b+4*ti,4)}, v{vXA+2*st+ks2} offset:{so + ti*2048}", ("x", step, ti)))
        for gi in range(1, 3):
            for hf in range(2):
                L.append((f"ds_read_b64_tr_b16 {v(b+16+4*gi+2*hf,2)}, v{vWA+st} offset:{so + 16384 + (32*ks2+4*hf)*192 + 64*gi}", ("w", step, gi, hf)))
        return L
    def rd(step):
        for ins, tag in rd_list(step):
            A(ins); q.issue(tag)
    def mm(step, nxt=None):
        b = fr(step % 2)
        R = rd_list(nxt) if nxt is not None else []
        if os.environ.get("X_BURST"):
            for ins, tag in R:
                A(ins); q.issue(tag)
            R = []
        n = 0
        for gi in range(3):
            for ti in range(4):
                acc = vACC + (gi*4 + ti)*4
                X = v(b+4*ti, 4); W = v(b+16+4*gi, 4)
                cc = "0" if step == 0 else v(acc, 4)
                if gi == 0: q.wait(("x", step, ti))
                if ti == 0: q.wait(("w", step, gi, 1))
                if gi < 2: A(f"v_mfma_f32_16x16x32_bf16 {v(acc,4)}, {W}, {X}, {cc}")
                else:      A(f"v_mfma_f32_16x16x32_bf16 {v(acc,4)}, {X}, {W}, {cc}")
                if n < len(R):
                    A(R[n][0]); q.issue(R[n][1])
                n += 1
    kg_scalars(A, 3, 20, False)
    A(f"s_mul_i32 s21, s22, {L_TCH}")
    A("s_lshl_b32 s23, s24, 8")
    A("s_add_u32 s21, s21, s23")
    A(f"s_add_u32 s21, s21, {L_TA + L_TBO}")
    A("v_lshlrev_b32 v8, 2, v0")
    A("v_add_u32 v8, s21, v8")
    lwait(A, C_PAR, 4, 22, sleep=1)
    kg_read(A, 22, 24, 2, 21)
    A("s_cmp_eq_u32 s22, 0")
    A("s_cselect_b32 s21, 16, 0")
    A("s_lshl_b32 s26, s26, s21"); A("s_and_b32 s26, s26, 0xffff0000")
    kg_setup(A, 26, 21, False)
    kg_bside(A, 8)
    A("s_waitcnt lgkmcnt(0)")
    lsig(A, C_G, 2)
    stamp(A, 9)
    A("v_and_b32 v80, 15, v0")
    A("v_lshrrev_b32 v81, 4, v0")
    A("v_lshrrev_b32 v82, 2, v80")
    A("v_lshl_add_u32 v82, v81, 3, v82")
    A("v_lshlrev_b32 v84, 5, v82")
    A("v_lshlrev_b32 v82, 7, v82")
    A("v_and_b32 v83, 3, v80")
    A("v_lshl_add_u32 v82, v83, 3, v82")
    A("v_lshl_add_u32 v84, v83, 3, v84")
    A(f"v_add_u32 v84, {L_WOT}, v84")
    A("s_lshl_b32 s20, s3, 5")
    A(f"s_add_u32 s20, s20, {L_UTL}")
    A("v_add_u32 v82, s20, v82")
    A("v_lshlrev_b32 v83, 12, v80")
    A("v_lshl_add_u32 v83, v81, 4, v83")
    A("s_and_b32 s20, s2, 7"); A("s_lshl_b32 s20, s20, 2"); A("s_add_u32 s20, s20, s3")
    A(f"s_lshl_b32 s21, s20, {5+FS}")
    A("s_lshl_b32 s20, s20, 16")
    A("s_lshr_b32 s22, s2, 3")
    A("s_lshl_b32 s23, s22, 7")
    A("s_add_u32 s20, s20, s23")
    A(f"s_add_u32 s20, s20, {WS_UT}")
    A(f"s_lshl_b32 s23, s22, {FS}")
    A("s_add_u32 s21, s21, s23")
    A(f"s_add_u32 s21, s21, {WS_FU}")
    A("s_lshr_b32 s24, s2, 3"); A(f"s_lshl_b32 s22, s24, {3+FS}"); A("s_lshl_b32 s24, s24, 14")
    A("s_and_b32 s19, s2, 7"); A(f"s_lshl_b32 s23, s19, {FS}"); A("s_lshl_b32 s19, s19, 11")
    A("s_add_u32 s24, s24, s19")
    A(f"s_add_u32 s24, s24, {WS_WOF}")
    A("s_add_u32 s22, s22, s23")
    A(f"s_add_u32 s22, s22, {WS_F3}")
    lwait(A, C_GU, 4, 86, sleep=1)
    for p in range(2):
        for hf in range(2):
            A(f"ds_read_b64_tr_b16 {v(64+4*p+2*hf,2)}, v82 offset:{(32*p+4*hf)*128}")
    for s_ in range(2):
        for hf in range(2):
            A(f"ds_read_b64_tr_b16 {v(72+4*s_+2*hf,2)}, v84 offset:{(32*s_+4*hf)*32}")
    A("s_waitcnt lgkmcnt(0)")
    stamp(A, 25)
    A(f"buffer_store_dwordx4 v[64:67], v83, {WSRD}, s20 offen sc1")
    A(f"buffer_store_dwordx4 v[68:71], v83, {WSRD}, s20 offen offset:64 sc1")
    A("s_cmp_eq_u32 s3, 0")
    A("s_cbranch_scc0 PC_NW")
    A(f"buffer_store_dwordx4 v[72:75], v{vL16}, {WSRD}, s24 offen sc1")
    A(f"buffer_store_dwordx4 v[76:79], v{vL16}, {WSRD}, s24 offen offset:1024 sc1")
    A.label("PC_NW")
    get_tag(A)
    stamp(A, 19)
    for c in range(8):
        A("s_barrier")
        if c in (0, 7): stamp(A, 10 if c == 0 else 17)
        if c == int(os.environ.get("CFL", 1)):
            A("s_waitcnt vmcnt(0)")
            flag_store(A, 21, 2, 3)
            A("s_cmp_eq_u32 s3, 0")
            A("s_cbranch_scc0 PC_NF")
            flag_store(A, 22, 2, 3)
            A.label("PC_NF")
        if c == 0: rd(0)
        else: mm(2*c - 1, 2*c)
        mm(2*c, 2*c + 1)
        q.drain()
    lsig(A, C_DONE(7), 4)
    mm(15)
    stamp(A, 1)
    T = vFR
    n = 0
    for gi, base in ((1, WS_K), (2, WS_V), (0, WS_Q)):
        if gi == 0:
            for ti in range(4):
                for r in range(4):
                    A(f"v_mul_f32 v{vACC+ti*4+r}, s17, v{vACC+ti*4+r}")
        for pair in range(2):
            a0 = vACC + (gi*4 + 2*pair)*4; a1 = a0 + 4
            t = T + 4 * n; n += 1
            A(f"v_cvt_pk_bf16_f32 v{t}, v{a0}, v{a0+1}")
            A(f"v_cvt_pk_bf16_f32 v{t+1}, v{a0+2}, v{a0+3}")
            A(f"v_cvt_pk_bf16_f32 v{t+2}, v{a1}, v{a1+1}")
            A(f"v_cvt_pk_bf16_f32 v{t+3}, v{a1+2}, v{a1+3}")
            A(f"s_add_u32 s24, s18, {base + pair*1024}")
            A("s_nop 0")
            op = "v_permlane32_swap_b32" if gi == 2 else "v_permlane16_swap_b32"
            A(f"{op} v{t}, v{t+2}")
            A(f"{op} v{t+1}, v{t+3}")
            A("s_nop 1")
            A(f"buffer_store_dwordx4 {v(t,4)}, v{vL16}, {WSRD}, s24 offen sc1")
    stamp(A, 18)
    A("s_waitcnt vmcnt(0)")
    get_tag(A)
    flag_store(A, 16, 2, 3)
    lsig(A, C_OWN, 2)
    A("s_setprio 0")
    stamp(A, 2)
    if os.environ.get("X_P1ONLY"): A("s_branch K_FIN")

def cmul(A, D, X, S, T):
    A(f"v_pk_mul_f32 {v(T,2)}, {v(X,2)}, {v(S,2)} op_sel:[0,0] op_sel_hi:[1,0]")
    A(f"v_pk_fma_f32 {v(D,2)}, {v(X,2)}, {v(S,2)}, {v(T,2)} op_sel:[1,1,0] op_sel_hi:[0,1,1] neg_lo:[0,1,0]")

def fl(p): return f"{float(p)!r}" if p in (1, 2, 4) else f"0x{f32bits(float(p)):08x}"
def anchor(A, D, p, vt2, vw, tmp, conj=False):
    A(f"v_mul_f32 v{tmp}, {fl(p)}, v{vt2}")
    A(f"v_mul_f32 v{tmp+1}, {fl(p)}, v{vw}")
    A(f"v_exp_f32 v{tmp}, v{tmp}")
    A(f"v_fract_f32 v{tmp+1}, v{tmp+1}")
    A(f"v_cos_f32 v{D}, v{tmp+1}")
    A(f"v_sin_f32 v{D+1}, v{tmp+1}")
    A("s_nop 0")
    A(f"v_mul_f32 v{D}, v{D}, v{tmp}")
    if conj: A(f"v_mul_f32_e64 v{D+1}, -v{D+1}, v{tmp}")
    else: A(f"v_mul_f32 v{D+1}, v{D+1}, v{tmp}")

def kg_scalars(A, kw_sreg, s0, dsk):
    chan_pair(A, s0, s0+1)
    A(f"s_lshr_b32 s{s0+2}, s{kw_sreg}, 1")
    A(f"s_and_b32 s{s0+4}, s{kw_sreg}, 1")
    A(f"s_lshl_b32 s{s0+1}, s{s0}, 1")
    A(f"s_add_u32 s{s0+8}, s{SP['ldt']}, s{s0+1}"); A(f"s_addc_u32 s{s0+9}, s{SP['ldt']+1}, 0")
    A(f"s_load_dword s{s0+6}, s[{s0+8}:{s0+9}], 0")
    if dsk:
        A(f"s_add_u32 s{s0+10}, s{SP['dsk']}, s{s0+1}"); A(f"s_addc_u32 s{s0+11}, s{SP['dsk']+1}, 0")
        A(f"s_load_dword s{s0+7}, s[{s0+10}:{s0+11}], 0")

def kg_read(A, s_c, s_mh, narr, s_tmp):
    A(f"s_lshl_b32 s{s_tmp}, s{s_c}, 8")
    A(f"v_lshlrev_b32 v9, 1, v0")
    A(f"v_add_u32 v9, s{s_tmp}, v9")
    A(f"s_lshl_b32 s{s_tmp}, s{s_mh}, 7")
    A(f"s_add_u32 s{s_tmp}, s{s_tmp}, {L_PAR}")
    A(f"v_add_u32 v9, s{s_tmp}, v9")
    for i in range(narr):
        A(f"ds_read_u16 v{10+i}, v9 offset:{512*i}")
    A("s_waitcnt lgkmcnt(0)")

def kg_setup(A, s_ldt, s_tmp, full):
    vt2, vw, vY0, tmp = 16, 17, 18, 20
    A(f"s_mov_b32 s{s_tmp}, 0x{f32bits(LOG2E):08x}")
    A(f"v_mov_b32 v{tmp}, s{s_ldt}")
    A(f"v_lshlrev_b32 v10, 16, v10")
    A(f"v_mul_f32 v{tmp}, s{s_tmp}, v{tmp}")
    A(f"v_mul_f32 v10, s{s_tmp}, v10")
    A(f"v_exp_f32 v{tmp}, v{tmp}")
    A(f"v_exp_f32 v10, v10")
    A(f"v_lshlrev_b32 v11, 16, v11")
    A(f"v_cvt_pk_bf16_f32 v{tmp}, v{tmp}, v10")
    if full: A(f"v_lshlrev_b32 v12, 16, v12")
    A(f"v_and_b32 v10, 0xffff0000, v{tmp}")
    A(f"v_lshlrev_b32 v{tmp}, 16, v{tmp}")
    if full: A(f"v_lshlrev_b32 v13, 16, v13")
    A(f"v_mul_f32 v10, v10, v{tmp}")
    A(f"v_mul_f32 v11, v11, v{tmp}")
    A(f"v_mul_f32 v{vt2}, 0x{f32bits(-LOG2E):08x}, v10")
    A(f"v_mul_f32 v{vw}, 0x{f32bits(INV2PI):08x}, v11")
    if full:
        A(f"v_add_f32 v{tmp}, v{tmp}, v{tmp}")
        A(f"v_mul_f32 v{vY0}, v12, v{tmp}")
        A(f"v_mul_f32_e64 v{vY0+1}, -v13, v{tmp}")

def kg_bside(A, vaddr):
    vt2, vw = 16, 17
    X = [24, 26, 28, 30]; S16, S32 = 32, 34
    anchor(A, X[1], 8, vt2, vw, 36)
    A(f"v_mov_b32 v{X[0]}, 1.0"); A(f"v_mov_b32 v{X[0]+1}, 0")
    cmul(A, X[2], X[1], X[1], 36)
    cmul(A, X[3], X[1], X[2], 38)
    cmul(A, S32, X[2], X[2], 40)
    ch = [Rec() for _ in range(4)]
    for j in range(4):
        for b in range(j, 32, 4):
            p_ = 50 + 2*j + (b // 4) % 2
            ch[j](f"v_cvt_pk_bf16_f32 v{p_}, v{X[j]}, v{X[j]+1}")
            if b + 4 < 32: cmul(ch[j], X[j], X[j], S32, 42 + 2*j)
            ch[j](f"ds_write_b32 v{vaddr}, v{p_} offset:{b*528}")
    for ins in merge(*[c.L for c in ch]): A(ins)

def kg_aside(A, vaddr):
    vt2, vw, vY0 = 16, 17, 18
    F1, F256, F2, F4, Y, Z, W = 24, 26, 28, 30, 32, 34, 36
    r2, r3 = Rec(), Rec()
    anchor(r2, F1, 1, vt2, vw, 48, conj=True)
    anchor(r3, F256, 256, vt2, vw, 50, conj=True)
    for ins in merge(r2.L, r3.L): A(ins)
    cmul(A, F2, F1, F1, 48)
    cmul(A, Z, vY0, F256, 50)
    cmul(A, F4, F2, F2, 48)
    ay, az, aw = Rec(), Rec(), Rec()
    cnt = {}
    def put(ch, base, reg, row):
        n_ = cnt.get(base, 0); cnt[base] = n_ + 1
        p = base + n_ % 2
        ch(f"v_cvt_pk_bf16_f32 v{p}, v{reg}, v{reg+1}")
        ch(f"ds_write_b32 v{vaddr}, v{p} offset:{row*528}")
    put(ay, 60, vY0, 0)
    cmul(ay, Y, vY0, F1, 64); put(ay, 60, Y, 1)
    for r in range(2, 8):
        cmul(ay, Y, Y, F1, 64); put(ay, 60, Y, r)
    A(f"v_mov_b32 v{W}, v{Z}"); A(f"v_mov_b32 v{W+1}, v{Z+1}")
    put(aw, 68, W, 8)
    for r in (9, 10, 11):
        cmul(aw, W, W, F2, 70); put(aw, 68, W, r)
    V = 38
    cmul(az, Z, Z, F256, 66); put(az, 62, Z, 12)
    cmul(az, V, Z, F4, 72); put(az, 62, V, 13)
    cmul(az, Z, Z, F256, 66); put(az, 62, Z, 14)
    cmul(az, V, Z, F4, 72); put(az, 62, V, 15)
    for r in range(16, 21):
        cmul(az, Z, Z, F256, 66); put(az, 62, Z, r)
    for ins in merge(az.L, ay.L, aw.L): A(ins)

L_WOT = 57344 + 2048
def kgen_pre(A):
    A("s_sub_u32 s15, s3, 12")
    A("s_setprio 3")
    chan_pair(A, 14, 17)
    A("s_lshl_b32 s17, s14, 8")
    A("s_lshl_b32 s18, s15, 9")
    A("s_mov_b32 s40, -1"); A("s_mov_b32 s41, 0")
    A("v_lshrrev_b32 v14, 3, v0")
    A("v_lshlrev_b32 v14, 10, v14")
    A("v_and_b32 v13, 7, v0")
    A("v_lshl_add_u32 v14, v13, 4, v14")
    A("s_lshr_b32 s19, s2, 3"); A("s_lshl_b32 s19, s19, 16")
    A("s_lshl_b32 s16, s15, 14")
    A("s_add_u32 s19, s19, s16")
    A("s_and_b32 s16, s2, 7"); A("s_lshl_b32 s16, s16, 7")
    A("s_add_u32 s19, s19, s16")
    A("v_lshrrev_b32 v12, 1, v0")
    A("v_lshlrev_b32 v12, 10, v12")
    A("v_and_b32 v13, 1, v0")
    A("v_lshl_add_u32 v12, v13, 4, v12")
    ka_wait(A)
    A(f"s_mov_b32 s32, s{SP['lar']}"); A(f"s_mov_b32 s33, s{SP['lar']+1}")
    for mm_, nm in ((1, 'aim'), (2, 'cre'), (3, 'cim')):
        A(f"s_cmp_eq_u32 s15, {mm_}")
        A(f"s_cselect_b32 s32, s{SP[nm]}, s32"); A(f"s_cselect_b32 s33, s{SP[nm]+1}, s33")
    A(f"s_mov_b32 s34, {512*128*2}"); A("s_mov_b32 s35, 0x00020000")
    A(f"s_add_u32 m0, s18, {L_PAR}")
    A("s_mov_b64 exec, s[40:41]")
    A(f"buffer_load_dwordx4 v{vL16}, s[32:35], s17 offen lds")
    A("s_mov_b64 exec, -1")
    kg_scalars(A, 15, 20, True)
    A("s_getpc_b64 s[32:33]")
    A.label("KG_PC")
    A("s_add_u32 s32, s32, GTAB-KG_PC")
    A("s_addc_u32 s33, s33, 0")
    A("s_lshl_b32 s17, s15, 11")
    A("v_lshlrev_b32 v11, 5, v0")
    A("v_add_u32 v11, s17, v11")
    A("global_load_dwordx4 v[96:99], v11, s[32:33]")
    A("global_load_dwordx4 v[100:103], v11, s[32:33] offset:16")
    srd(A, 32, SP['u'], 2048*512*2)
    A(f"s_add_u32 m0, s17, {L_UTL}")
    A("s_nop 0")
    A("buffer_load_dwordx4 v14, s[32:35], s19 offen lds")
    A(f"s_add_u32 m0, s17, {L_UTL + 1024}")
    A("s_add_u32 s19, s19, 8192")
    A("buffer_load_dwordx4 v14, s[32:35], s19 offen lds")
    srd(A, 32, SP['wo'], 512*512*2)
    A("s_and_b32 s17, s2, 7"); A("s_lshl_b32 s17, s17, 16")
    A("s_lshl_b32 s19, s15, 14")
    A("s_add_u32 s17, s17, s19")
    A("s_lshr_b32 s19, s2, 3"); A("s_lshl_b32 s19, s19, 5")
    A("s_add_u32 s17, s17, s19")
    A(f"s_add_u32 m0, s18, {L_WOT}")
    A("s_mov_b64 exec, s[40:41]")
    A("buffer_load_dwordx4 v12, s[32:35], s17 offen lds")
    A("s_mov_b64 exec, -1")
    A("s_cmp_eq_u32 s15, 0")
    A("s_cbranch_scc0 KG_NE")
    A(f"s_mov_b32 s16, {WS_EP}")
    A("v_mov_b32 v9, 0")
    A("s_mov_b64 exec, 1")
    A(f"buffer_load_dword v{vE}, v9, {WSRD}, s16 offen sc1")
    A("s_mov_b64 exec, -1")
    A.label("KG_NE")

def kgen(A):
    A("s_mov_b32 s16, s22"); A("s_mov_b32 s18, s24"); A("s_mov_b32 s14, s20")
    A(f"s_mul_i32 s25, s16, {L_TCH}")
    A("s_lshl_b32 s23, s18, 8")
    A("s_add_u32 s25, s25, s23")
    A(f"s_add_u32 s25, s25, {L_TA}")
    A("v_lshlrev_b32 v15, 2, v0")
    A("v_add_u32 v15, s25, v15")
    A("s_cmp_eq_u32 s15, 0")
    A("s_cbranch_scc1 KG_WP")
    A("s_waitcnt vmcnt(5)")
    A.label("KG_WP")
    A("s_waitcnt vmcnt(6)")
    gsync(A, C_PAR, 4, 66)
    stamp(A, 24)
    kg_read(A, 16, 18, 4, 23)
    A("s_cmp_eq_u32 s16, 0")
    A("s_cselect_b32 s23, 16, 0")
    A("s_lshl_b32 s26, s26, s23"); A("s_and_b32 s26, s26, 0xffff0000")
    A("s_lshl_b32 s27, s27, s23"); A("s_and_b32 s27, s27, 0xffff0000")
    kg_setup(A, 26, 23, True)
    kg_aside(A, 15)
    A("s_waitcnt lgkmcnt(0)")
    lsig(A, C_G, 66)
    stamp(A, 21)
    A("s_waitcnt vmcnt(0)")
    A("s_cmp_eq_u32 s15, 0")
    A("s_cbranch_scc0 KG_NT")
    make_tag(A)
    A.label("KG_NT")
    A("s_waitcnt lgkmcnt(0)")
    lsig(A, C_GU, 86)
    A("v_and_b32 v9, 15, v0")
    A("v_lshrrev_b32 v10, 4, v0")
    A("v_mul_u32_u24 v11, 528, v9")
    A("v_lshl_add_u32 v11, v10, 4, v11")
    A(f"s_mul_i32 s25, s16, {L_TCH}")
    A(f"s_add_u32 s25, s25, {L_TA}")
    A(f"s_mul_i32 s23, s18, {16*528}")
    A("s_add_u32 s23, s23, s25")
    A("v_add_u32 v12, s23, v11")
    A(f"s_add_u32 s25, s25, {L_TBO}")
    A("v_add_u32 v13, s25, v11")
    A("s_lshl_b32 s25, s16, 11")
    A("s_lshl_b32 s23, s18, 10")
    A("s_add_u32 s25, s25, s23")
    A(f"s_add_u32 s25, s25, {L_T}")
    A("v_lshlrev_b32 v14, 8, v10")
    A("v_lshl_add_u32 v14, v9, 1, v14")
    A("v_add_u32 v14, s25, v14")
    A("s_cmp_eq_u32 s18, 0")
    A("s_cselect_b32 s27, s27, 0")
    A("v_mov_b32 v15, s27")
    lwait(A, C_G, 8, 86, sleep=1)
    stamp(A, 22)
    q = DSQ(A)
    def rd(s_):
        b = s_ % 4
        A(f"ds_read_b128 {v(16+4*b,4)}, v12 offset:{s_*64}"); q.issue(("a", s_))
        A(f"ds_read_b128 {v(32+4*b,4)}, v13 offset:{s_*64}"); q.issue(("b0", s_))
        A(f"ds_read_b128 {v(48+4*b,4)}, v13 offset:{16*528 + s_*64}"); q.issue(("b1", s_))
    for s_ in range(3): rd(s_)
    for s_ in range(8):
        if s_ + 3 < 8: rd(s_ + 3)
        b = s_ % 4
        q.wait(("b0", s_))
        A(f"v_mfma_f32_16x16x32_bf16 v[120:123], {v(16+4*b,4)}, {v(32+4*b,4)}, {'0' if s_==0 else 'v[120:123]'}")
        q.wait(("b1", s_))
        A(f"v_mfma_f32_16x16x32_bf16 v[4:7], {v(16+4*b,4)}, {v(48+4*b,4)}, {'0' if s_==0 else 'v[4:7]'}")
    A("s_nop 7")
    A("v_cmp_eq_u32 vcc, 0, v0")
    A("s_nop 1")
    A("v_cndmask_b32 v15, 0, v15, vcc")
    A("v_add_f32 v120, v120, v15")
    for ct, b_ in enumerate((120, 4)):
        A(f"v_cvt_pk_bf16_f32 v{16+2*ct}, v{b_}, v{b_+1}")
        A(f"v_cvt_pk_bf16_f32 v{17+2*ct}, v{b_+2}, v{b_+3}")
        A(f"ds_write_b16 v14, v{16+2*ct} offset:{32*ct}")
        A(f"ds_write_b16_d16_hi v14, v{16+2*ct} offset:{32*ct+64}")
        A(f"ds_write_b16 v14, v{17+2*ct} offset:{32*ct+128}")
        A(f"ds_write_b16_d16_hi v14, v{17+2*ct} offset:{32*ct+192}")
    gsync(A, C_GT2, 4, 2)
    stamp(A, 23)
    for e in range(8): A(f"v_add_u32 v{96+e}, {L_T}, v{96+e}")
    for c in range(2):
        for e in range(8):
            op = "ds_read_u16_d16_hi" if e % 2 else "ds_read_u16"
            A(f"{op} v{(32 if e % 2 else 16)+4*c+e//2}, v{96+e} offset:{c*2048}")
    A("s_lshl_b32 s25, s15, 6")
    A("v_add_u32 v9, s25, v0")
    A("v_lshrrev_b32 v10, 2, v9")
    A("v_mul_u32_u24 v10, 80, v10")
    A("v_and_b32 v9, 3, v9")
    A("v_lshl_add_u32 v10, v9, 4, v10")
    A(f"v_add_u32 v10, {L_KREV}, v10")
    for j in range(4): A(f"v_mov_b32 v{40+j}, 0")
    A(f"s_mul_i32 s25, s16, {KREV_SZ}")
    A(f"s_mul_i32 s23, s18, 1280")
    A("s_add_u32 s25, s25, s23")
    A(f"s_add_u32 s25, s25, {L_KREV + 64*80}")
    A(f"v_add_u32 v11, s25, v{vL16}")
    A("ds_write_b128 v11, v[40:43]")
    A("s_mov_b64 exec, 0xffff")
    A("ds_write_b128 v11, v[40:43] offset:1024")
    A("s_mov_b64 exec, -1")
    A("s_waitcnt lgkmcnt(10)")
    for j in range(4): A(f"v_or_b32 v{16+j}, v{16+j}, v{32+j}")
    A("s_waitcnt lgkmcnt(2)")
    for j in range(4): A(f"v_or_b32 v{20+j}, v{20+j}, v{36+j}")
    A("ds_write_b128 v10, v[16:19]")
    A(f"ds_write_b128 v10, v[20:23] offset:{KREV_SZ}")
    A("s_waitcnt lgkmcnt(0)")
    stamp(A, 27)
    FLAT = int(os.environ.get("FLAT", 3))
    for i in range(8):
        A("s_barrier")
        if i == FLAT:
            get_tag(A)
            chan_pair(A, 14, 17)
            A("s_lshr_b32 s28, s14, 4")
            A(f"s_lshl_b32 s28, s28, {5+FS}")
            A(f"s_add_u32 s28, s28, {WS_FU}")
            A(f"v_lshlrev_b32 v104, {FS}, v0")
            A("s_mov_b32 s40, 0")
        if i == FLAT + 2:
            A("s_cmp_eq_u32 s15, 3")
            A("s_cbranch_scc0 KG_L2")
            A("s_waitcnt vmcnt(0)")
            A("s_mov_b32 s30, -1"); A("s_mov_b32 s31, 0")
            A(f"v_cmp_ne_u32 vcc, s{sT}, v105")
            A("s_nop 1")
            A("s_and_b64 vcc, vcc, s[30:31]")
            A("s_cbranch_vccnz KG_L2")
            lsig(A, C_FU, 66)
            A("s_mov_b32 s40, 1")
            A.label("KG_L2")
        if i == FLAT + 1:
            A("s_cmp_eq_u32 s15, 3")
            A("s_cbranch_scc0 KG_L1")
            A("s_mov_b32 s30, -1"); A("s_mov_b32 s31, 0")
            A("s_mov_b64 exec, s[30:31]")
            A(f"buffer_load_dword v105, v104, {WSRD}, s28 offen sc1")
            A("s_mov_b64 exec, -1")
            A.label("KG_L1")
    A("s_cmp_eq_u32 s15, 3")
    A("s_cbranch_scc0 KG_END2")
    A("s_cmp_lg_u32 s40, 0")
    A("s_cbranch_scc1 KG_END2")
    poll(A, "KG_PU", 104, 28, "-1", 105, sleep=2)
    lsig(A, C_FU, 66)
    A.label("KG_END2")
    if os.environ.get("X_P1ONLY"): A("s_branch K_FIN")

vKA, vVA, vQ, vKF, vVF, vS, vP, vO, vM, vT = 2, 3, 4, 8, 16, 32, 64, 72, 88, 89
vLD = 92
vLW = 124
vLW2 = 89
NT = 32
SCHED = "e0 e1 PV1 RV e2 e3 c0 e4 e5 c1 QK RK e6 e7 c2 e8 e9 c3 e10 e11 PV0 c4 e12 e13 c5 e14 e15 c6 c7"
PRIO = {0: 3, 8: 2, 16: 1, 24: 0}

def attn_ids(A):
    A("s_and_b32 s12, s2, 7")
    A("s_lshl_b32 s12, s12, 2")
    A("s_lshr_b32 s13, s2, 3")
    A("s_and_b32 s17, s13, 3")
    A("s_add_u32 s12, s12, s17")
    A("s_lshr_b32 s13, s2, 5")
    A("s_lshl_b32 s17, s12, 16")

def ld_group(A):
    attn_setup(A)
    A("s_cmp_lt_u32 s3, 4")
    A("s_cselect_b32 s28, 0, 8")
    A("s_sub_u32 s28, s3, s28")
    A(f"v_lshlrev_b32 v8, {FS}, v0")
    A(f"s_lshl_b32 s27, s12, {5+FS}")
    A(f"s_add_u32 s27, s27, {WS_F1}")
    A("s_lshr_b32 s22, s28, 1")
    A("s_and_b32 s23, s28, 1"); A("s_lshl_b32 s23, s23, 1")
    A("s_and_b32 s4, s22, 1"); A("s_lshl_b32 s4, s4, 15")
    A("s_lshr_b32 s26, s22, 1"); A("s_lshl_b32 s26, s26, 21")
    A("s_add_u32 s4, s4, s26")
    A("s_lshl_b32 s26, s23, 10")
    A("s_add_u32 s4, s4, s26")
    A("s_add_u32 s4, s4, s17")
    A(f"s_add_u32 s4, s4, {WS_K}")
    A("s_lshl_b32 s24, s23, 12")
    A("s_lshl_b32 s26, s22, 10")
    A("s_add_u32 s24, s24, s26")
    A(f"v_add_u32 v{vLW2}, s24, v{vL16}")
    A("s_lshl_b32 s5, s13, 3"); A("s_add_u32 s5, s5, s28"); A("s_lshl_b32 s5, s5, 10"); A("s_add_u32 s5, s5, s17")
    A("s_lshl_b32 s6, s28, 10"); A(f"s_add_u32 s6, s6, {L_QS}")
    A(f"v_add_u32 v12, s6, v{vL16}")
    A("s_cmp_eq_u32 s3, 13")
    A("s_cbranch_scc0 LD_NOPOLL")
    lwait(A, C_OWN, 4, 44, sleep=2)
    poll(A, "LD_POLL", 8, 27, "-1", 13, sleep=2)
    lsig(A, C_F1, 44)
    A.label("LD_NOPOLL")
    lwait(A, C_F1, 1, 44, sleep=1)
    stamp(A, 3)
    def rload(r, d0):
        A(f"s_add_u32 s26, s13, {r}")
        A("s_and_b32 s26, s26, 7")
        A("s_lshl_b32 s26, s26, 12")
        A("s_add_u32 s26, s26, s4")
        A(f"buffer_load_dwordx4 {v(d0,4)}, v{vL16}, {WSRD}, s26 offen sc1")
        A(f"buffer_load_dwordx4 {v(d0+4,4)}, v{vL16}, {WSRD}, s26 offen offset:1024 sc1")
    rload(0, 32)
    A(f"buffer_load_dwordx4 v[40:43], v{vL16}, {WSRD}, s5 offen sc1")
    rload(1, vLD)
    rload(2, vLD + 8)
    lwait(A, C_DONE(7), 4, 44)
    A("s_waitcnt vmcnt(4)")
    A(f"ds_write_b128 v{vLW2}, v[32:35]")
    A(f"ds_write_b128 v{vLW2}, v[36:39] offset:4096")
    A("ds_write_b128 v12, v[40:43]")
    A("s_waitcnt vmcnt(2)")
    A(f"ds_write_b128 v{vLW2}, {v(vLD,4)} offset:16384")
    A(f"ds_write_b128 v{vLW2}, {v(vLD+4,4)} offset:20480")
    A("s_waitcnt vmcnt(0)")
    A(f"ds_write_b128 v{vLW2}, {v(vLD+8,4)} offset:32768")
    A(f"ds_write_b128 v{vLW2}, {v(vLD+12,4)} offset:36864")

def attn_setup(A):
    attn_ids(A)
    A("s_mov_b32 s20, 0x0000ffff")
    A("s_mov_b32 s21, 0x0000ffff")
    A("s_and_b32 s15, s3, 7")
    A("s_lshr_b32 s16, s3, 3")
    A("s_lshl_b32 s19, s16, 10")
    A(f"v_add_u32 v{vKA}, s19, v{vL16}")
    A("v_lshrrev_b32 v8, 5, v0")
    A("v_lshlrev_b32 v8, 8, v8")
    A("v_and_b32 v9, 15, v0")
    A("v_lshlrev_b32 v9, 4, v9")
    A("s_add_u32 s19, s19, 2048")
    A(f"v_add3_u32 v{vVA}, v8, v9, s19")
    A("v_and_b32 v8, 31, v0")
    A("v_cmp_eq_u32 vcc, 16, v8")
    A("v_mov_b32 v9, 0x3f803f80")
    A("s_lshl_b32 s22, s15, 10"); A(f"s_add_u32 s22, s22, {L_QS}")
    A("v_cndmask_b32 v9, 0, v9, vcc")
    A(f"v_add_u32 v{vQ}, s22, v{vL16}")
    for i in range(16): A(f"v_mov_b32 v{vVF+i}, v9")
    A(f"v_mov_b32 v{vM}, 0")
    A("s_lshl_b32 s18, s13, 3")
    A("s_add_u32 s18, s18, s15")
    A(f"s_lshl_b32 s19, s18, {5+FS}")
    A(f"s_lshl_b32 s22, s12, {FS}")
    A("s_add_u32 s19, s19, s22")
    A(f"s_add_u32 s19, s19, {WS_F2}")
    A("s_lshl_b32 s18, s18, 10")
    A("s_add_u32 s18, s18, s17")
    A("s_lshr_b32 s22, s3, 2")
    A("s_and_b32 s23, s3, 3")
    A("s_lshl_b32 s24, s23, 12")
    A("s_lshl_b32 s26, s22, 10")
    A("s_add_u32 s24, s24, s26")
    A(f"v_add_u32 v{vLW}, s24, v{vL16}")
    A("s_and_b32 s25, s22, 1"); A("s_lshl_b32 s25, s25, 15")
    A("s_lshr_b32 s26, s22, 1"); A("s_lshl_b32 s26, s26, 21")
    A("s_add_u32 s25, s25, s26")
    A("s_lshl_b32 s23, s23, 10")
    A("s_add_u32 s25, s25, s23")
    A("s_add_u32 s25, s25, s17")
    A(f"s_add_u32 s25, s25, {WS_K}")
    A("s_lshr_b32 s37, s2, 3"); A("s_and_b32 s37, s37, 3"); A("s_lshl_b32 s37, s37, 3"); A("s_add_u32 s37, s37, s15")

def attention(A):
    A("s_setprio 3")
    A("s_waitcnt lgkmcnt(0)")
    A("s_barrier")
    stamp(A, 4)
    A(f"ds_read_b128 {v(vQ,4)}, v{vQ}")
    q = DSQ(A)
    KF = lambda t: vKF + 4 * (t % 2)
    VF = lambda t, j: vVF + 8 * (t % 2) + 4 * j
    S = lambda t: vS + 16 * (t % 2)
    def rdK(t):
        A(f"ds_read_b128 {v(KF(t),4)}, v{vKA} offset:{(t%16)*4096}"); q.issue(("K", t))
    def rdV(t):
        A("s_mov_b64 exec, s[20:21]")
        A(f"ds_read_b128 {v(VF(t,0),4)}, v{vVA} offset:{(t%16)*4096}"); q.issue(("V0", t))
        A(f"ds_read_b128 {v(VF(t,1),4)}, v{vVA} offset:{(t%16)*4096+512}"); q.issue(("V1", t))
        A("s_mov_b64 exec, -1")
    def qk(t):
        q.wait(("K", t))
        A(f"v_mfma_f32_32x32x16_bf16 {v(S(t),16)}, {v(KF(t),4)}, {v(vQ,4)}, 0")
    def e(t, i): A(f"v_exp_f32 v{S(t)+i}, v{S(t)+i}")
    def c(t, k): A(f"v_cvt_pk_bf16_f32 v{vP+k}, v{S(t)+2*k}, v{S(t)+2*k+1}")
    def pv(t, j):
        cc = "0" if (t == 0 and j == 0) else v(vO, 16)
        A(f"v_mfma_f32_32x32x16_bf16 {v(vO,16)}, {v(VF(t,j),4)}, {v(vP+4*j,4)}, {cc}")
    rdK(0); rdK(1); rdV(0)
    qk(0)
    A("s_nop 7"); A("s_nop 3")
    for t in range(NT):
        A.comment(f"--- tile {t}")
        if t in PRIO: A(f"s_setprio {PRIO[t]}")
        for tok in SCHED.split():
            if tok[0] == 'e': e(t, int(tok[1:]))
            elif tok[0] == 'c': c(t, int(tok[1:]))
            elif tok == 'PV1':
                if t > 0: pv(t - 1, 1)
            elif tok == 'QK':
                if t + 1 < NT: qk(t + 1)
            elif tok == 'PV0':
                q.wait(("V1", t)); pv(t, 0)
            elif tok == 'RK':
                slot_of = {3: 4, 4: 5, 5: 6, 6: 7, 7: 0}
                XN = os.environ.get("X_NOLAND")
                if XN:
                    if t + 2 < NT: rdK(t + 2)
                    if t == 14: A(f"v_add_u32 v{vKA}, 65536, v{vKA}") if False else None
                    continue
                if t == 1:
                    A("s_cmp_eq_u32 s16, 0")
                    A("s_cbranch_scc0 AT_NS")
                    for j in range(4): A(f"v_mov_b32 v{vLD+4+j}, -1")
                    A(f"s_add_u32 s26, s18, {WS_O}")
                    A(f"buffer_store_dwordx4 {v(vLD+4,4)}, v{vL16}, {WSRD}, s26 offen sc1")
                    A.label("AT_NS")
                if t == 22:
                    A("s_cmp_eq_u32 s3, 13")
                    A("s_cbranch_scc0 AT_N4a")
                    A(f"v_lshlrev_b32 v{vT}, {FS}, v0")
                    A("s_and_b32 s28, s2, 7")
                    A(f"s_lshl_b32 s28, s28, {5+FS}")
                    A(f"s_add_u32 s28, s28, {WS_F4}")
                    A("s_mov_b32 s30, -1"); A("s_mov_b32 s31, 0")
                    A("s_mov_b64 exec, s[30:31]")
                    A(f"buffer_load_dword v{vLW}, v{vT}, {WSRD}, s28 offen sc1")
                    A("s_mov_b64 exec, -1")
                    A.label("AT_N4a")
                if t == 25:
                    A("s_cmp_eq_u32 s3, 13")
                    A("s_cbranch_scc0 AT_N4b")
                    A("s_waitcnt vmcnt(0)")
                    check_or_poll(A, "AT_P4", vT, 28, "-1", vLW)
                    A(f"v_mov_b32 v{vT}, {C_F4}"); A(f"v_mov_b32 v{vLW}, 1")
                    A("s_mov_b64 exec, 1")
                    A(f"ds_add_u32 v{vT}, v{vLW}")
                    A("s_mov_b64 exec, -1")
                    A.label("AT_N4b")
                if t == 11:
                    A("s_cmp_eq_u32 s3, 9")
                    A("s_cbranch_scc0 AT_NF4")
                    A(f"s_lshl_b32 s29, s13, {5+FS}")
                    A(f"s_lshl_b32 s28, s12, {FS}")
                    A("s_add_u32 s28, s29, s28")
                    A(f"s_add_u32 s28, s28, {WS_F4}")
                    A(f"v_mov_b32 v{vLD+28}, s{sT}"); A(f"v_mov_b32 v{vLD+29}, 0")
                    A("s_mov_b64 exec, 1")
                    A(f"buffer_store_dword v{vLD+28}, v{vLD+29}, {WSRD}, s28 offen sc1")
                    A("s_mov_b64 exec, -1")
                    A.label("AT_NF4")
                if t < 5:
                    r = 3 + t
                    A(f"s_add_u32 s26, s13, {r}")
                    A("s_and_b32 s26, s26, 7")
                    A("s_lshl_b32 s26, s26, 12")
                    A("s_add_u32 s26, s26, s25")
                    A(f"buffer_load_dwordx4 {v(vLD+4*slot_of[r],4)}, v{vL16}, {WSRD}, s26 offen sc1")
                if t == 6:
                    A("s_waitcnt vmcnt(0)")
                    A(f"ds_write_b128 v{vLW}, {v(vLD+4*slot_of[3],4)} offset:49152")
                    A(f"v_add_u32 v{vLW}, 65536, v{vLW}")
                    for r in range(4, 8):
                        A(f"ds_write_b128 v{vLW}, {v(vLD+4*slot_of[r],4)} offset:{r*16384 - 65536}")
                    A("s_waitcnt lgkmcnt(0)"); q.q = []
                    lsig(A, C_LAND, vT + 0) if False else None
                    A(f"v_mov_b32 v{vT}, {C_LAND}")
                    A(f"v_mov_b32 v{vLW}, 1")
                    A("s_mov_b64 exec, 1")
                    A(f"ds_add_u32 v{vT}, v{vLW}")
                    A("s_mov_b64 exec, -1")
                if t == 9:
                    A(f"ds_read_b32 v{vLW}, v{vT}"); q.issue(("land", 0))
                if t == 10:
                    q.wait(("land", 0))
                    A(f"v_readfirstlane_b32 s42, v{vLW}")
                    A("s_nop 0")
                    A("s_cmp_ge_u32 s42, 16")
                    A("s_cbranch_scc1 AT_LANDED")
                    lwait(A, C_LAND, 16, 126 if False else 12, sleep=1) if False else None
                    A.label("AT_LSPIN")
                    A(f"ds_read_b32 v{vLW}, v{vT}")
                    A("s_waitcnt lgkmcnt(0)")
                    A(f"v_readfirstlane_b32 s42, v{vLW}")
                    A("s_sleep 1")
                    A("s_cmp_ge_u32 s42, 16")
                    A("s_cbranch_scc0 AT_LSPIN")
                    A.label("AT_LANDED")
                    A(f"v_lshlrev_b32 v{vT}, {FS}, v0")
                    A(f"s_lshl_b32 s26, s37, {3+FS}")
                    A(f"s_add_u32 s26, s26, {WS_F3}")
                    A("s_mov_b64 exec, 0xff")
                    A(f"buffer_load_dword v{vLW}, v{vT}, {WSRD}, s26 offen sc1")
                    A("s_mov_b64 exec, -1")
                if t == 12:
                    A("s_waitcnt vmcnt(0)")
                    check_or_poll(A, "AT_P3", vT, 26, "0xff", vLW)
                    A("s_lshl_b32 s27, s37, 14")
                    A("s_lshl_b32 s26, s16, 13")
                    A("s_add_u32 s27, s27, s26")
                    A(f"s_add_u32 s27, s27, {WS_WOF}")
                if 12 <= t < 20:
                    A(f"buffer_load_dwordx4 {v(vLD+4*(t-12),4)}, v{vL16}, {WSRD}, s27 offen sc1")
                    A("s_add_u32 s27, s27, 1024")
                if t == 20:
                    A("s_sub_u32 s26, s3, 4")
                    A("s_cmp_lt_u32 s26, 8")
                    A("s_cbranch_scc0 AT_NY0")
                    A(f"v_and_b32 v{vT}, 31, v0")
                    A(f"v_lshrrev_b32 v{vLW}, 5, v0")
                    A(f"v_lshlrev_b32 v{vT}, 16, v{vT}")
                    A(f"v_lshl_add_u32 v{vT}, v{vLW}, 13, v{vT}")
                    A.label("AT_NY0")
                    srd(A, 4, SP['out'], 2048*1024*2)
                if 21 <= t < 25:
                    r = t - 21
                    A("s_sub_u32 s26, s3, 4")
                    A("s_cmp_lt_u32 s26, 8")
                    A(f"s_cbranch_scc0 AT_NY{r+1}")
                    if r == 2: A("s_add_u32 s36, s36, 4096")
                    A(f"buffer_store_dword v{vY[r]}, v{vT}, s[4:7], s36 offen" + (" offset:2048" if r % 2 else "") + os.environ.get("YSC", ""))
                    A.label(f"AT_NY{r+1}")
                WBL = [int(x) for x in os.environ.get("WBL", "26").split(",") if x]
                if t in WBL:
                    A("s_lshr_b32 s26, s2, 3")
                    A("s_lshl_b32 s26, s26, 4")
                    A("s_add_u32 s26, s26, s3")
                    A("s_cmp_eq_u32 s26, 15")
                    A(f"s_cbranch_scc0 AT_WB{t}")
                    A("buffer_wbl2 sc1")
                    A.label(f"AT_WB{t}")
                if t == 14:
                    A(f"v_add_u32 v{vKA}, 65536, v{vKA}")
                if t + 2 < NT: rdK(t + 2)
            elif tok == 'RV':
                if t == 15:
                    A(f"v_add_u32 v{vVA}, 65536, v{vVA}")
                if t + 1 < NT: rdV(t + 1)
            else: raise ValueError(tok)
    A("s_nop 1")
    pv(NT - 1, 1)
    A("s_nop 15")
    stamp(A, 5)
    A(f"v_mov_b32 v{vT}, v{vO+8}")
    A("s_nop 1")
    A(f"v_permlane32_swap_b32 v{vT}, v{vO+8}")
    A("s_nop 1")
    A(f"v_mov_b32 v{vO+8}, v{vT}")
    A("s_mov_b32 s28, 0x1f800000")
    A("s_mov_b32 s29, 0x5f800000")
    A(f"v_cmp_le_f32 vcc, s28, v{vO+8}")
    A(f"v_cmp_ge_f32 s[30:31], s29, v{vO+8}")
    A("s_nop 1")
    A("s_and_b64 vcc, vcc, s[30:31]")
    A("s_cmp_eq_u64 vcc, -1")
    A("s_cbranch_scc0 AT_FALLBACK")
    A.label("AT_COMBINE")
    A("s_lshl_b32 s17, s15, 11")
    A(f"s_add_u32 s17, s17, {L_SCR}")
    A(f"v_add_u32 v{vT}, s17, v{vL16}")
    A("v_lshlrev_b32 v12, 3, v0")
    A("s_lshl_b32 s17, s15, 9")
    A(f"s_add_u32 s17, s17, {L_KREV}")
    A(f"v_add_u32 v12, s17, v12")
    A("s_cmp_eq_u32 s16, 0")
    A("s_cbranch_scc1 AT_LOW")
    A(f"ds_write_b128 v{vT}, {v(vO,4)}")
    A(f"ds_write_b128 v{vT}, {v(vO+4,4)} offset:1024")
    A(f"v_mov_b32 v{vO+9}, v{vM}")
    A(f"ds_write_b64 v12, {v(vO+8,2)}")
    A("s_waitcnt lgkmcnt(0)")
    A("s_barrier")
    A("s_branch AT_DONE")
    A.label("AT_LOW")
    A("s_barrier")
    B = vS
    A(f"ds_read_b128 {v(B,4)}, v{vT}")
    A(f"ds_read_b128 {v(B+4,4)}, v{vT} offset:1024")
    A(f"ds_read_b64 {v(B+8,2)}, v12")
    A("s_waitcnt lgkmcnt(0)")
    t0, t1, t2 = 8, 9, 10
    A(f"v_max_f32 v{t0}, v{vM}, v{B+9}")
    A(f"v_sub_f32 v{t1}, v{vM}, v{t0}")
    A(f"v_sub_f32 v{t2}, v{B+9}, v{t0}")
    A(f"v_exp_f32 v{t1}, v{t1}")
    A(f"v_exp_f32 v{t2}, v{t2}")
    A("s_nop 0")
    for i in range(9):
        A(f"v_mul_f32 v{vO+i}, v{vO+i}, v{t1}")
    for i in range(9):
        A(f"v_fmac_f32 v{vO+i}, v{B+i}, v{t2}")
    A(f"v_rcp_f32 v{t0}, v{vO+8}")
    A("s_nop 0")
    for i in range(8):
        A(f"v_mul_f32 v{vO+i}, v{vO+i}, v{t0}")
    for k in range(4):
        A(f"v_cvt_pk_bf16_f32 v{vP+k}, v{vO+2*k}, v{vO+2*k+1}")
    A("s_nop 1")
    A(f"v_permlane32_swap_b32 v{vP}, v{vP+2}")
    A(f"v_permlane32_swap_b32 v{vP+1}, v{vP+3}")
    A(f"s_add_u32 s18, s18, {WS_O}")
    for j in range(4):
        A(f"v_cmp_eq_u32 vcc, -1, v{vP+j}")
        A(f"v_mov_b32 v12, 0xfffefffe")
        A("s_nop 0")
        A(f"v_cndmask_b32 v{vP+j}, v{vP+j}, v12, vcc")
    A(f"buffer_store_dwordx4 {v(vP,4)}, v{vL16}, {WSRD}, s18 offen sc1")
    lsig(A, C_OWN2, 12)
    A.label("AT_DONE")
    stamp(A, 6)

def attention_fallback(A):
    A.label("AT_FALLBACK")
    A(f"v_mov_b32 v{vM}, 0xff800000")
    A(f"v_subrev_u32 v{vT}, 65536, v{vKA}")
    A("s_mov_b32 s17, 0")
    A.label("AT_FB1")
    A(f"ds_read_b128 {v(vKF,4)}, v{vT}")
    A(f"v_add_u32 v{vT}, 4096, v{vT}")
    A("s_waitcnt lgkmcnt(0)")
    A(f"v_mfma_f32_32x32x16_bf16 {v(vS,16)}, {v(vKF,4)}, {v(vQ,4)}, 0")
    A("s_nop 15")
    for k in range(8):
        A(f"v_max3_f32 v{vM}, v{vS+2*k}, v{vS+2*k+1}, v{vM}")
    A("s_add_u32 s17, s17, 1")
    A("s_cmp_lt_u32 s17, 32")
    A("s_cbranch_scc1 AT_FB1")
    A(f"v_mov_b32 v{vT}, v{vM}")
    A(f"v_mov_b32 v12, v{vM}")
    A("s_nop 1")
    A(f"v_permlane32_swap_b32 v{vT}, v12")
    A("s_nop 1")
    A(f"v_max_f32 v{vM}, v{vT}, v12")
    for i in range(16): A(f"v_mov_b32 v{vO+i}, 0")
    A(f"v_subrev_u32 v{vT}, 65536, v{vKA}")
    A(f"v_subrev_u32 v12, 65536, v{vVA}")
    A("s_mov_b32 s17, 0")
    A.label("AT_FB2")
    A(f"ds_read_b128 {v(vKF,4)}, v{vT}")
    A("s_mov_b64 exec, s[20:21]")
    A(f"ds_read_b128 {v(vVF,4)}, v12")
    A(f"ds_read_b128 {v(vVF+4,4)}, v12 offset:512")
    A("s_mov_b64 exec, -1")
    A(f"v_add_u32 v{vT}, 4096, v{vT}")
    A(f"v_add_u32 v12, 4096, v12")
    A("s_waitcnt lgkmcnt(0)")
    A(f"v_mfma_f32_32x32x16_bf16 {v(vS,16)}, {v(vKF,4)}, {v(vQ,4)}, 0")
    A("s_nop 15")
    for i in range(16): A(f"v_sub_f32 v{vS+i}, v{vS+i}, v{vM}")
    for i in range(16): A(f"v_exp_f32 v{vS+i}, v{vS+i}")
    A("s_nop 0")
    for k in range(8): A(f"v_cvt_pk_bf16_f32 v{vP+k}, v{vS+2*k}, v{vS+2*k+1}")
    A("s_nop 1")
    A(f"v_mfma_f32_32x32x16_bf16 {v(vO,16)}, {v(vVF,4)}, {v(vP,4)}, {v(vO,16)}")
    A(f"v_mfma_f32_32x32x16_bf16 {v(vO,16)}, {v(vVF+4,4)}, {v(vP+4,4)}, {v(vO,16)}")
    A("s_add_u32 s17, s17, 1")
    A("s_cmp_lt_u32 s17, 32")
    A("s_cbranch_scc1 AT_FB2")
    A("s_nop 15")
    A(f"v_mov_b32 v{vT}, v{vO+8}")
    A("s_nop 1")
    A(f"v_permlane32_swap_b32 v{vT}, v{vO+8}")
    A("s_nop 1")
    A(f"v_mov_b32 v{vO+8}, v{vT}")
    A("s_branch AT_COMBINE")

def tail(A):
    A("s_and_b32 s12, s2, 7"); A("s_lshl_b32 s12, s12, 3"); A("s_lshr_b32 s13, s2, 5"); A("s_add_u32 s12, s12, s13")
    A("s_lshr_b32 s13, s2, 3"); A("s_and_b32 s13, s13, 3")
    A("v_and_b32 v4, 15, v0")
    A("v_lshrrev_b32 v5, 4, v0")
    A("v_lshlrev_b32 v14, 9, v5")
    A("v_lshl_add_u32 v14, v4, 4, v14")
    A("s_lshl_b32 s17, s16, 14")
    A(f"s_add_u32 s17, s17, {L_OT}")
    A(f"v_add_u32 v14, s17, v14")
    A("v_lshlrev_b32 v15, 11, v4")
    A("v_lshl_add_u32 v15, v5, 3, v15")
    A("s_lshl_b32 s20, s12, 16")
    A("s_lshl_b32 s19, s16, 15")
    A("s_add_u32 s20, s20, s19")
    A("s_lshl_b32 s19, s13, 8")
    A("s_add_u32 s20, s20, s19")
    A("s_lshl_b32 s19, s15, 5")
    A("s_add_u32 s20, s20, s19")
    A("s_add_u32 s20, s20, 1024")
    srd(A, 4, SP['out'], 2048*1024*2)
    A("s_lshl_b32 s17, s3, 10")
    A(f"s_add_u32 s17, s17, {L_PC}")
    A(f"v_add_u32 v6, s17, v{vL16}")
    A("s_xor_b32 s17, s17, 8192")
    A(f"v_add_u32 v7, s17, v{vL16}")
    A("s_lshl_b32 s17, s3, 17")
    A("s_lshl_b32 s18, s12, 10")
    A("s_add_u32 s17, s17, s18")
    A(f"s_add_u32 s17, s17, {WS_O}")
    A("s_lshl_b32 s18, s3, 11")
    A(f"s_add_u32 s18, s18, {L_OT}")
    A(f"v_add_u32 v13, s18, v{vL16}")
    lwait(A, C_F4, 1, 8, sleep=1)
    lwait(A, C_OWN2, 8, 8, sleep=1)
    stamp(A, 43)
    A("s_add_u32 s18, s17, 65536")
    A("s_mov_b32 s29, 0")
    A("s_mov_b32 s28, 3")
    A.label("TL_POLL")
    A("s_bitcmp1_b32 s28, 0")
    A("s_cbranch_scc0 TL_P1")
    A(f"buffer_load_dwordx4 v[16:19], v{vL16}, {WSRD}, s17 offen sc1")
    A.label("TL_P1")
    A("s_bitcmp1_b32 s28, 1")
    A("s_cbranch_scc0 TL_P2")
    A(f"buffer_load_dwordx4 v[20:23], v{vL16}, {WSRD}, s18 offen sc1")
    A.label("TL_P2")
    A("s_add_u32 s29, s29, 1")
    A("s_waitcnt vmcnt(0)")
    A("v_max3_u32 v8, v16, v17, v18")
    A("v_max3_u32 v9, v20, v21, v22")
    A("v_max_u32 v8, v8, v19")
    A("v_max_u32 v9, v9, v23")
    A("v_cmp_eq_u32 vcc, -1, v8")
    A("v_cmp_eq_u32 s[30:31], -1, v9")
    A("s_nop 1")
    A("s_cmp_lg_u64 vcc, 0")
    A("s_cselect_b32 s28, 1, 0")
    A("s_cmp_lg_u64 s[30:31], 0")
    A("s_cselect_b32 s19, 2, 0")
    A("s_or_b32 s28, s28, s19")
    A("s_cmp_gt_u32 s29, 0x8000")
    A("s_cbranch_scc1 TL_GOT")
    A("s_cmp_eq_u32 s28, 0")
    A("s_cbranch_scc1 TL_GOT")
    A("s_sleep 2")
    A("s_branch TL_POLL")
    A.label("TL_GOT")
    A("ds_write_b128 v13, v[16:19]")
    A("ds_write_b128 v13, v[20:23] offset:1024")
    A("s_waitcnt lgkmcnt(0)")
    stamp(A, 44)
    A("s_barrier")
    stamp(A, 45)
    q = DSQ(A)
    FO = 16
    def rd(s_):
        b = s_ % 3
        for th in range(2):
            A(f"ds_read_b128 {v(FO+12*th+4*b,4)}, v14 offset:{s_*2048 + th*256}"); q.issue(("o", s_, th))
    rd(0); rd(1)
    for s_ in range(8):
        if s_ + 2 < 8: rd(s_ + 2)
        b = s_ % 3
        for th in range(2):
            q.wait(("o", s_, th))
            cc = "0" if s_ == 0 else v(40+4*th, 4)
            A(f"v_mfma_f32_16x16x32_bf16 {v(40+4*th,4)}, {v(vLD+4*s_,4)}, {v(FO+12*th+4*b,4)}, {cc}")
    A("s_cmp_eq_u32 s2, 0")
    A("s_cbranch_scc0 TL_NE")
    A("s_cmp_eq_u32 s3, 8")
    A("s_cbranch_scc0 TL_NE")
    A(f"s_mov_b32 s17, {WS_EP}")
    flag_store(A, 17, 12, 13)
    A.label("TL_NE")
    A("s_nop 7")
    A("s_cmp_eq_u32 s16, 0")
    A("s_cbranch_scc1 TL_LO")
    A("ds_write_b128 v6, v[40:43]")
    for i in range(4): A(f"v_mov_b32 v{40+i}, v{44+i}")
    A("s_branch TL_X")
    A.label("TL_LO")
    A("ds_write_b128 v6, v[44:47]")
    A.label("TL_X")
    A("s_waitcnt lgkmcnt(0)")
    A("s_barrier")
    A("ds_read_b128 v[16:19], v7")
    A("s_waitcnt lgkmcnt(0)")
    for i in range(4):
        A(f"v_add_f32 v{40+i}, v{40+i}, v{16+i}")
    A("v_cvt_pk_bf16_f32 v48, v40, v41")
    A("v_cvt_pk_bf16_f32 v49, v42, v43")
    A("buffer_store_dwordx2 v[48:49], v15, s[4:7], s20 offen" + os.environ.get("OUTSC", ""))

def gen():
    A = Asm()
    kernel_begin(A, NAME)
    A.label("K_START")
    if not os.environ.get("NOPF"):
        A("s_getpc_b64 s[4:5]")
        A.label("PF_PC")
        A("v_lshlrev_b32 v2, 7, v0")
        A("v_cmp_gt_u32 vcc, GTAB_END-PF_PC-128, v2")
        A("s_and_saveexec_b64 s[6:7], vcc")
        A("s_cbranch_execz PF_DONE")
        A(f"global_load_dword v{vE}, v2, s[4:5]")
        A.label("PF_DONE")
        A("s_mov_b64 exec, s[6:7]")
    if DBG: A("v_mov_b32 v125, 0")
    if PROF:
        A("v_mov_b32 v125, 0")
        A("s_memrealtime s[38:39]")
    stamp(A, 0)
    A("s_cmp_ge_u32 s2, 256")
    A("s_cbranch_scc1 K_END")
    A("s_load_dwordx16 s[64:79], s[0:1], 0")
    A("s_load_dwordx8 s[80:87], s[0:1], 64")
    A("s_load_dwordx2 s[88:89], s[0:1], 96")
    A("v_lshrrev_b32 v8, 6, v0")
    A("v_and_b32 v0, 63, v0")
    A("v_readfirstlane_b32 s3, v8")
    A(f"v_lshlrev_b32 v{vL16}, 4, v0")
    p1_ids(A)
    A("s_cmp_eq_u32 s3, 12")
    A("s_cbranch_scc0 E_NZ")
    A("v_lshlrev_b32 v20, 2, v0")
    A(f"v_add_u32 v20, {L_CNT}, v20")
    A("v_mov_b32 v24, 0")
    A("ds_write_b32 v20, v24")
    A.label("E_NZ")
    A("s_cmp_ge_u32 s3, 12")
    A("s_cbranch_scc0 E_NG")
    kgen_pre(A)
    A.label("E_NG")
    ka_wait(A)
    A("s_barrier")
    A("s_cmp_lt_u32 s3, 4")
    A("s_cbranch_scc1 R_COMPUTE")
    A("s_cmp_ge_u32 s3, 12")
    A("s_cbranch_scc1 R_KGEN")
    p1_loader(A)
    attn_setup(A)
    A("s_branch R_JOIN")
    A.label("R_KGEN")
    kgen(A)
    A("s_branch R_LD")
    A.label("R_COMPUTE")
    p1_compute(A)
    A.label("R_LD")
    ld_group(A)
    A.label("R_JOIN")
    attention(A)
    tail(A)
    A.label("K_FIN")
    stamp(A, 50)
    A("s_waitcnt vmcnt(0)")
    stamp(A, 51)
    write_stamps(A)
    if DBG:
        A("s_cmp_eq_u32 s2, 8"); A("s_cbranch_scc0 K_END")
        A("s_cmp_eq_u32 s3, 0"); A("s_cbranch_scc0 K_END")
        A("s_memtime s[48:49]"); A("s_memrealtime s[50:51]"); A("s_waitcnt lgkmcnt(0)")
        A("v_readlane_b32 s52, v125, 0"); A("v_readlane_b32 s53, v125, 1")
        A("s_nop 3")
        A("v_writelane_b32 v125, s48, 0"); A("v_writelane_b32 v125, s50, 1")
        A("v_and_b32 v16, 1, v0")
        A("v_cmp_eq_u32 vcc, 0, v16")
        A("v_mov_b32 v17, s53"); A("v_mov_b32 v18, s52")
        A("s_nop 1")
        A("v_cndmask_b32 v17, v17, v18, vcc")
        A("v_sub_u32 v17, v125, v17")
        srd(A, 4, SP['dbg'], 256)
        A("v_lshlrev_b32 v16, 2, v0")
        A("s_mov_b64 exec, 0xffff")
        A("buffer_store_dword v17, v16, s[4:7], 0 offen")
        A("s_waitcnt vmcnt(0)")
    A.label("K_END")
    A("s_endpgm")
    attention_fallback(A)
    A(".p2align 6")
    A(".type GTAB,@object")
    A.label("GTAB")
    t = gather_table()
    for i in range(0, 2048, 16):
        A(".long " + ", ".join(str(int(x)) for x in t[i:i+16]))
    A(".size GTAB, 8192")
    A.label("GTAB_END")
    hdr_src = open("concat_heads__ssm_conv_s4d__mha_block__prompt.s.ref").read().split("\n")
    hdr = [l for l in hdr_src if l.startswith(";") and "@launch" not in l and "Override launch" not in l and "grid=ceil" not in l]
    out = "\n".join(hdr) + "\n; @launch grid=(256,1,1) block=(1024,1,1) lds=163840\n"
    out += '.amdgcn_target "amdgcn-amd-amdhsa--gfx950"\n'
    out += A.text() + kernel_desc(NAME, 128, 100)
    return out

if __name__ == "__main__":
    open(sys.argv[1] if len(sys.argv) > 1 else "fused.s", "w").write(gen())
```

```python
import os, struct, sys
from asmlib import *
from ssm_common import gather_table

NAME = "concat_heads__ssm_conv_s4d__mha_block__prompt_kernel"
PROF = bool(os.environ.get("PROF"))
DBG = bool(os.environ.get("DBG"))
DBGMAP = {0: 0, 10: 1, 1: 2, 2: 3, 4: 4, 5: 5, 6: 6, 45: 7}

def f32bits(x): return struct.unpack("<I", struct.pack("<f", x))[0]
LOG2E = 1.4426950408889634
INV2PI = 0.15915494309189535
C_SCALE = 0.25 * LOG2E

WS_Q = 0x000000; WS_K = 0x200000; WS_V = 0x400000; WS_O = 0x600000
WS_UT = 0x800000
WS_WOF = 0xA00000
FS = 8
WS_F1 = 0xA80000
WS_F2 = 0xAC0000
WS_F3 = 0xB40000
WS_FU = 0xB50000
WS_F4 = 0xBA0000
WS_EP = 0xB90000
WS_TOTAL = 0xBB0000
WS_PROF = 0x1000000
SP = dict(u=64, lar=66, aim=68, cre=70, cim=72, ldt=74, dsk=76, x=78, wqkv=80, wo=82, out=84, dbg=86, ws=88)
sWS = 44
WSRD = f"s[{sWS}:{sWS+3}]"
sT = 90
vL16 = 1
vE = 127

SLOT = 28672; NSLOT = 3; AHEAD = 2
L_TA = 86016; L_TBO = 11088; L_TCH = 27984
L_T = 143360
L_CNT = 147968
C_G = L_CNT; C_CV = L_CNT + 4; C_WO = L_CNT + 8; C_KR = L_CNT + 12
def C_RDY(c): return L_CNT + 16 + 4*c
def C_DONE(c): return L_CNT + 48 + 4*c
C_FU = L_CNT + 80; C_F1 = L_CNT + 84; C_F2 = L_CNT + 88; C_ISS = L_CNT + 92; C_T = L_CNT + 96; C_GU = L_CNT + 100; C_GT = L_CNT + 104; C_OWN = L_CNT + 108; C_OWN2 = L_CNT + 112; C_PAR = L_CNT + 116; C_GT2 = L_CNT + 120; C_LAND = L_CNT + 128; C_F4 = L_CNT + 140
L_PAR = 57344
L_KREV = 148480; KREV_SZ = 7680
L_UTL = 57344 + 4096
L_WOT = 86016
L_UC = 57344; UC_RHO = 4160; UC_CH = 16640
L_PART = 90624
L_QS = 49152
L_SCR = 131072
L_OT = 0
L_PC = 32768

class DSQ:
    def __init__(self, A): self.A = A; self.q = []
    def issue(self, tag): self.q.append(tag)
    def wait(self, tag):
        if tag not in self.q: return
        i = len(self.q) - 1 - self.q[::-1].index(tag)
        n = len(self.q) - 1 - i
        assert n <= 15, n
        self.A(f"s_waitcnt lgkmcnt({n})")
        self.q = self.q[i+1:]
    def room(self):
        if len(self.q) >= 15: self.wait(self.q[0])
    def drain(self):
        self.A("s_waitcnt lgkmcnt(0)"); self.q = []

def stamp(A, k):
    if DBG and k in DBGMAP:
        j = DBGMAP[k]
        A("s_memtime s[48:49]")
        A("s_memrealtime s[50:51]")
        A("s_waitcnt lgkmcnt(0)")
        A(f"v_writelane_b32 v125, s48, {2*j}")
        A(f"v_writelane_b32 v125, s50, {2*j+1}")
    if PROF:
        A("s_memtime s[48:49]")
        A("s_waitcnt lgkmcnt(0)")
        A(f"v_writelane_b32 v125, s48, {k}")

def write_stamps(A):
    if not PROF: return
    A("s_memrealtime s[40:41]")
    A("s_waitcnt lgkmcnt(0)")
    A(f"v_writelane_b32 v125, s40, 62")
    A(f"v_writelane_b32 v125, s91, 63")
    A(f"s_add_u32 s92, s{SP['ws']}, {WS_PROF}")
    A(f"s_addc_u32 s93, s{SP['ws']+1}, 0")
    A("s_mov_b32 s94, 0x200000")
    A("s_mov_b32 s95, 0x00020000")
    A("s_lshl_b32 s42, s2, 4"); A("s_add_u32 s42, s42, s3"); A("s_lshl_b32 s42, s42, 8")
    A("v_lshlrev_b32 v16, 2, v0")
    A("buffer_store_dword v125, v16, s[92:95], s42 offen")
    A("s_waitcnt vmcnt(0)")

def poll(A, label, vaddr, soff, mask_lo, vtmp, sleep=4):
    A(f"s_mov_b32 s30, {mask_lo}")
    A("s_mov_b32 s31, 0")
    A("s_mov_b64 exec, s[30:31]")
    A("s_mov_b32 s29, 0")
    A.label(label)
    A(f"buffer_load_dword v{vtmp}, v{vaddr}, {WSRD}, s{soff} offen sc1")
    A("s_add_u32 s29, s29, 1")
    A("s_waitcnt vmcnt(0)")
    A(f"v_cmp_ne_u32 vcc, s{sT}, v{vtmp}")
    A("s_cmp_gt_u32 s29, 0x10000")
    A(f"s_cbranch_scc1 {label}_x")
    A(f"s_cbranch_vccz {label}_x")
    A(f"s_sleep {sleep}")
    A(f"s_branch {label}")
    A.label(label + "_x")
    A("s_mov_b64 exec, -1")

def check_or_poll(A, label, vaddr, soff, mask_lo, vflag):
    A(f"s_mov_b32 s30, {mask_lo}")
    A("s_mov_b32 s31, 0")
    A(f"v_cmp_ne_u32 vcc, s{sT}, v{vflag}")
    A("s_nop 1")
    A("s_and_b64 vcc, vcc, s[30:31]")
    A(f"s_cbranch_vccz {label}_ok")
    poll(A, label, vaddr, soff, mask_lo, vflag)
    A.label(label + "_ok")

def flag_store(A, soff, vtmp, vzero):
    A(f"v_mov_b32 v{vtmp}, s{sT}")
    A(f"v_mov_b32 v{vzero}, 0")
    A("s_mov_b64 exec, 1")
    A(f"buffer_store_dword v{vtmp}, v{vzero}, {WSRD}, s{soff} offen sc1")
    A("s_mov_b64 exec, -1")

def get_tag(A, vt=126, vd=None):
    L = A.newlabel("GT")
    A(f"v_mov_b32 v{vt}, {C_T}")
    A("s_mov_b32 s43, 0")
    A.label(L)
    A(f"ds_read_b32 v{vE}, v{vt}")
    A("s_add_u32 s43, s43, 1")
    A("s_waitcnt lgkmcnt(0)")
    A(f"v_readfirstlane_b32 s{sT}, v{vE}")
    A("s_cmp_gt_u32 s43, 0x80000")
    A(f"s_cbranch_scc1 {L}_x")
    A(f"s_cmp_eq_u32 s{sT}, 0")
    A(f"s_cbranch_scc1 {L}")
    A.label(L + "_x")

def make_tag(A):
    A(f"v_readfirstlane_b32 s{sT}, v{vE}")
    A("s_nop 3")
    A(f"s_mul_i32 s{sT}, s{sT}, 0x9e3779b1")
    A(f"s_add_u32 s{sT}, s{sT}, 0x7f4a7c15")
    A(f"s_or_b32 s{sT}, s{sT}, 1")
    A(f"v_mov_b32 v{vE}, s{sT}")
    A(f"v_mov_b32 v126, {C_T}")
    A(f"ds_write_b32 v126, v{vE}")

def gsync(A, cnt_addr, target, vt):
    A("s_waitcnt lgkmcnt(0)")
    lsig(A, cnt_addr, vt)
    lwait(A, cnt_addr, target, vt, sleep=1)

def lsig(A, addr, vt):
    A(f"v_mov_b32 v{vt}, {addr}")
    A(f"v_mov_b32 v{vt+1}, 1")
    A("s_mov_b64 exec, 1")
    A(f"ds_add_u32 v{vt}, v{vt+1}")
    A("s_mov_b64 exec, -1")

def lwait(A, addr, target, vt, sleep=0):
    L = A.newlabel("LW")
    A(f"v_mov_b32 v{vt}, {addr}")
    A("s_mov_b32 s43, 0")
    A.label(L)
    A(f"ds_read_b32 v{vt+1}, v{vt}")
    A("s_add_u32 s43, s43, 1")
    A("s_waitcnt lgkmcnt(0)")
    A(f"v_readfirstlane_b32 s42, v{vt+1}")
    A("s_cmp_gt_u32 s43, 0x80000")
    A(f"s_cbranch_scc1 {L}_x")
    A(f"s_cmp_ge_u32 s42, {target}")
    if sleep:
        A(f"s_cbranch_scc1 {L}_x")
        A(f"s_sleep {sleep}")
        A(f"s_branch {L}")
    else:
        A(f"s_cbranch_scc0 {L}")
    A.label(L + "_x")

def merge(*chains):
    out = []; idx = [0] * len(chains)
    while any(idx[i] < len(chains[i]) for i in range(len(chains))):
        for i, ch in enumerate(chains):
            if idx[i] < len(ch):
                out.append(ch[idx[i]]); idx[i] += 1
    return out

class Rec:
    def __init__(self): self.L = []
    def __call__(self, s): self.L.append(s)

def chan_pair(A, dst, tmp):
    A(f"s_and_b32 s{dst}, s2, 7"); A(f"s_lshl_b32 s{dst}, s{dst}, 5"); A(f"s_lshr_b32 s{tmp}, s2, 3")
    A(f"s_add_u32 s{dst}, s{dst}, s{tmp}"); A(f"s_lshl_b32 s{dst}, s{dst}, 1")

def ka_wait(A):
    A("s_waitcnt lgkmcnt(0)")
    if PROF: A("s_mov_b32 s91, s38")
    srd(A, sWS, SP['ws'], WS_TOTAL)

def p1_ids(A):
    A("s_and_b32 s17, s2, 7")
    A("s_lshr_b32 s18, s2, 3")
    A("s_and_b32 s12, s17, 3")
    A("s_lshl_b32 s12, s12, 2")
    A("s_and_b32 s19, s18, 3")
    A("s_add_u32 s12, s12, s19")
    A("s_lshr_b32 s13, s17, 2")
    A("s_lshl_b32 s13, s13, 3")
    A("s_lshr_b32 s19, s18, 2")
    A("s_add_u32 s13, s13, s19")

def conv_part(A, p, vUA, vKB0, vKB1, ACC0, ACC1):
    ks = list({0: range(0, 24), 1: range(24, 48), 2: range(48, 80), 3: range(80, 128)}[p])
    q = DSQ(A)
    NB = 4
    FA, FB0, FB1 = 8, 24, 40
    def rd(i):
        k = ks[i]; b = i % NB
        A(f"ds_read_b64 {v(FA+4*b,2)}, v{vUA} offset:{32*k}"); q.issue(("a0", i))
        A(f"ds_read_b64 {v(FA+4*b+2,2)}, v{vUA} offset:{32*k+8}"); q.issue(("a1", i))
        off = (k//2)*80 + (k%2)*32
        A(f"ds_read_b128 {v(FB1+4*b,4)}, v{vKB1} offset:{off}"); q.issue(("b1", i))
        if k < 64:
            A(f"ds_read_b128 {v(FB0+4*b,4)}, v{vKB0} offset:{off}"); q.issue(("b0", i))
    n = len(ks)
    for i in range(min(NB-1, n)): rd(i)
    first0 = first1 = True
    for i in range(n):
        if i + NB - 1 < n: rd(i + NB - 1)
        k = ks[i]; b = i % NB
        q.wait(("b1", i))
        A(f"v_mfma_f32_32x32x16_bf16 {v(ACC1,16)}, {v(FA+4*b,4)}, {v(FB1+4*b,4)}, {'0' if first1 else v(ACC1,16)}"); first1 = False
        if k < 64:
            q.wait(("b0", i))
            A(f"v_mfma_f32_32x32x16_bf16 {v(ACC0,16)}, {v(FA+4*b,4)}, {v(FB0+4*b,4)}, {'0' if first0 else v(ACC0,16)}"); first0 = False

vY = [90, 91, 126, 127]

def p1_loader(A):
    vDX, vDX1, vDW = 2, 3, 5
    A("s_sub_u32 s15, s3, 4")
    A("s_setprio 3")
    A("v_lshrrev_b32 v9, 3, v0")
    A("v_lshrrev_b32 v10, 1, v9")
    A("v_xor_b32 v10, v10, v0")
    A("v_and_b32 v10, 7, v10")
    A("v_lshlrev_b32 v10, 4, v10")
    A(f"v_lshl_add_u32 v{vDX}, v9, 10, v10")
    A(f"v_xor_b32 v{vDX1}, 64, v{vDX}")
    A("s_lshl_b32 s20, s12, 17")
    A("s_lshl_b32 s17, s15, 14")
    A("s_add_u32 s20, s20, s17")
    A("s_lshl_b32 s21, s13, 6")
    A("s_lshl_b32 s22, s15, 11")
    A("s_lshl_b32 s23, s15, 10")
    A("s_add_u32 s23, s23, 16384")
    A("s_lshr_b32 s25, s2, 5")
    A("s_lshr_b32 s17, s2, 3")
    A("s_and_b32 s17, s17, 3")
    A("s_lshl_b32 s17, s17, 1")
    A("s_add_u32 s25, s25, s17")
    A("s_waitcnt lgkmcnt(0)")
    srd(A, 4, SP['x'], 2048*512*2)
    srd(A, 8, SP['wqkv'], 512*1536*2)
    def issue_x(c):
        slot = (c % NSLOT) * SLOT
        A(f"s_add_u32 s26, s25, {c}")
        A("s_and_b32 s26, s26, 7")
        A(f"s_lshl_b32 s24, s26, 7")
        A(f"s_add_u32 s24, s24, s20")
        A(f"s_add_u32 m0, s22, {slot}")
        A(f"s_mul_i32 s27, s26, {64*3072}")
        A(f"buffer_load_dwordx4 v{vDX}, s[4:7], s24 offen lds")
        A(f"s_add_u32 m0, s22, {slot + 1024}")
        A(f"s_add_u32 s24, s24, 8192")
        A(f"buffer_load_dwordx4 v{vDX1}, s[4:7], s24 offen lds")
    def issue_w(c, nw):
        slot = (c % NSLOT) * SLOT
        A(f"s_add_u32 m0, s23, {slot}")
        A(f"s_add_u32 s27, s27, s21")
        A(f"buffer_load_dwordx4 v{vDW}, s[8:11], s27 offen lds")
        if nw == 2:
            A(f"s_add_u32 m0, s23, {slot + 8192}")
            A("s_nop 0")
            A(f"buffer_load_dwordx4 v{vDW+1}, s[8:11], s27 offen lds")
    def wsetup():
        A("s_lshl_b32 s17, s15, 6")
        A("s_movk_i32 s18, 3072")
        A("s_mov_b32 s19, 43691")
        for i in range(2):
            A(f"v_add_u32 v9, s17, v0")
            if i: A(f"v_add_u32 v9, 512, v9")
            A("v_mul_u32_u24 v10, s19, v9")
            A("v_lshrrev_b32 v10, 19, v10")
            A("v_mul_u32_u24 v11, 12, v10")
            A("v_sub_u32 v11, v9, v11")
            A("v_lshrrev_b32 v12, 2, v10")
            A("v_and_b32 v12, 2, v12")
            A("v_xor_b32 v11, v11, v12")
            A("v_lshrrev_b32 v12, 2, v11")
            A("v_and_b32 v11, 3, v11")
            A("v_lshlrev_b32 v11, 4, v11")
            A("v_lshl_add_u32 v11, v12, 10, v11")
            A(f"v_mad_u32_u24 v{vDW+i}, v10, s18, v11")
    def gtab():
        A("s_getpc_b64 s[32:33]")
        L = A.newlabel("CPC"); A.label(L)
        A(f"s_add_u32 s32, s32, GTAB-{L}")
        A("s_addc_u32 s33, s33, 0")
        A("s_and_b32 s17, s15, 3"); A("s_lshl_b32 s17, s17, 11")
        A("v_lshlrev_b32 v14, 5, v0")
        A("v_add_u32 v14, s17, v14")
        A("global_load_dwordx4 v[96:99], v14, s[32:33]")
        A("global_load_dwordx4 v[100:103], v14, s[32:33] offset:16")
    def ut_loads():
        A("buffer_load_dwordx4 v[108:111], v117, s[32:35], 0 offen sc1")
        A("buffer_load_dwordx4 v[112:115], v116, s[32:35], 0 offen sc1")
        A("buffer_load_dwordx4 v[120:123], v119, s[32:35], 0 offen sc1")
    def ut_prep():
        chan_pair(A, 14, 17)
        A("s_lshr_b32 s16, s15, 2")
        A("s_add_u32 s17, s14, s16")
        A("s_lshl_b32 s17, s17, 12")
        A(f"s_add_u32 s17, s17, {WS_UT}")
        ka_wait(A)
        A(f"s_add_u32 s32, s{SP['ws']}, s17"); A(f"s_addc_u32 s33, s{SP['ws']+1}, 0")
        A("s_mov_b32 s34, 4096"); A("s_mov_b32 s35, 0x00020000")
        A("s_and_b32 s19, s15, 3"); A("s_lshl_b32 s19, s19, 10")
        A(f"v_add_u32 v116, s19, v{vL16}")
        A("v_subrev_u32 v117, 16, v116")
        A("v_cmp_eq_u32 vcc, 0, v116")
        A("v_mov_b32 v118, 4096")
        A("s_nop 0")
        A("v_cndmask_b32 v117, v117, v118, vcc")
        A("v_mov_b32 v119, 4096")
        A(f"v_mov_b32 v120, {255*16}")
        A("v_cmp_eq_u32 vcc, 3, v0")
        A("s_nop 1")
        A("v_cndmask_b32 v119, v119, v120, vcc")
    def loop(nw):
        per = 2 + nw
        issue_w(0, nw)
        if os.environ.get("EARLY") == "2": A("s_barrier")
        issue_x(1); issue_w(1, nw)
        for c in range(8):
            last = min(7, c + 1)
            if c != 7: A(f"s_waitcnt vmcnt({per * (last - c)})")
            A("s_barrier")
            if c + AHEAD < 8:
                issue_x(c + AHEAD); issue_w(c + AHEAD, nw)
            if c == 5: ut_prep()
            if c == 6:
                L = A.newlabel("CVC")
                A(f"v_mov_b32 v30, {C_FU}")
                A("ds_read_b32 v31, v30")
                A("s_waitcnt lgkmcnt(0)")
                A("v_readfirstlane_b32 s40, v31")
                A("s_nop 0")
                A("s_cmp_eq_u32 s40, 0")
                A(f"s_cbranch_scc1 {L}")
                ut_loads()
                A("s_waitcnt vmcnt(3)")
                A(f"s_branch {L}b")
                A.label(L)
                A("s_waitcnt vmcnt(0)")
                A.label(L + "b")
    issue_x(0)
    if os.environ.get("EARLY") == "1": A("s_barrier")
    wsetup()
    A("s_cmp_ge_u32 s15, 4")
    A("s_cbranch_scc1 P1_LOADER1")
    loop(2)
    A("s_branch P1_LOADER_END")
    A.label("P1_LOADER1")
    loop(1)
    A.label("P1_LOADER_END")
    A("s_setprio 1")
    stamp(A, 28)
    if os.environ.get("X_P1ONLY"): A("s_branch K_FIN")
    A("s_cmp_lg_u32 s40, 0")
    A("s_cbranch_scc1 CV_HAVE")
    lwait(A, C_FU, 1, 72, sleep=1)
    ut_loads()
    A.label("CV_HAVE")
    get_tag(A, vt=30)
    def copies(D, dest):
        T0, T1, T2 = 44, 48, 52
        for j in range(4): A(f"v_alignbit_b32 v{T0+j}, v{D+j+1}, v{D+j}, 16")
        for j in range(4): A(f"v_mov_b32 v{T1+j}, v{D+1+j}")
        for j in range(4): A(f"v_alignbit_b32 v{T2+j}, v{D+j+2}, v{D+j+1}, 16")
        A(f"ds_write_b128 v{dest}, {v(T0,4)}")
        A(f"ds_write_b128 v{dest}, {v(T1,4)} offset:{UC_RHO}")
        A(f"ds_write_b128 v{dest}, {v(T2,4)} offset:{2*UC_RHO}")
        A(f"ds_write_b128 v{dest}, {v(D+2,4)} offset:{3*UC_RHO}")
    A("s_lshr_b32 s16, s15, 2")
    A(f"s_mul_i32 s21, s16, {UC_CH}")
    A(f"s_add_u32 s21, s21, {L_UC + 48}")
    A("v_add_u32 v19, s21, v116")
    A(f"s_mul_i32 s23, s16, {KREV_SZ}")
    A(f"s_add_u32 s23, s23, {L_KREV}")
    A("v_and_b32 v9, 31, v0")
    A("v_lshrrev_b32 v10, 5, v0")
    A("v_and_b32 v11, 3, v9")
    A(f"v_mul_u32_u24 v11, {UC_RHO}, v11")
    A("v_lshrrev_b32 v12, 2, v9")
    A("v_lshl_add_u32 v11, v12, 3, v11")
    A("v_lshl_add_u32 v11, v10, 4, v11")
    A(f"s_mul_i32 s24, s16, {UC_CH}")
    A(f"s_add_u32 s24, s24, {L_UC}")
    A("v_add_u32 v4, s24, v11")
    A("v_sub_u32 v11, 63, v9")
    A("v_mul_u32_u24 v11, 80, v11")
    A("v_lshl_add_u32 v11, v10, 4, v11")
    A("v_add_u32 v5, s23, v11")
    A("v_subrev_u32 v6, 2560, v5")
    A("s_and_b32 s24, s15, 3")
    A(f"s_mul_i32 s25, s16, 28672")
    A("s_lshl_b32 s26, s24, 12")
    A("s_add_u32 s25, s25, s26")
    A(f"s_add_u32 s25, s25, {L_PART}")
    A(f"v_add_u32 v7, s25, v{vL16}")
    A("s_waitcnt vmcnt(0)")
    copies(108, 19)
    A("s_cmp_eq_u32 s19, 0")
    A("s_cbranch_scc0 CV_NOX2")
    for j in range(4): A(f"v_mov_b32 v{56+j}, v{120+j}")
    for j in range(4): A(f"v_mov_b32 v{60+j}, 0")
    A(f"v_mov_b32 v30, {259*16}")
    A("v_cmp_eq_u32 vcc, 3, v0")
    A("s_sub_u32 s21, s21, 48")
    A(f"v_cndmask_b32 v30, v{vL16}, v30, vcc")
    A("v_add_u32 v30, s21, v30")
    A("s_mov_b64 exec, 15")
    copies(56, 30)
    A("s_mov_b64 exec, -1")
    A.label("CV_NOX2")
    gsync(A, C_CV, 8, 8)
    stamp(A, 30)
    ACC0, ACC1 = 56, 72
    for p in range(4):
        if p < 3:
            A(f"s_cmp_eq_u32 s24, {p}")
            A(f"s_cbranch_scc0 CV_P{p+1}")
        conv_part(A, p, 4, 5, 6, ACC0, ACC1)
        A("s_nop 15")
        for qd in range(4):
            A(f"ds_write_b128 v7, {v(ACC1+4*qd,4)} offset:{qd*1024}")
        if p < 3:
            for qd in range(4):
                A(f"ds_write_b128 v7, {v(ACC0+4*qd,4)} offset:{16384 + qd*1024}")
            A("s_branch CV_PE")
            A.label(f"CV_P{p+1}")
    A.label("CV_PE")
    stamp(A, 31)
    gsync(A, C_CV, 16, 8)
    stamp(A, 32)
    A("s_lshl_b32 s26, s24, 10")
    A(f"s_add_u32 s26, s26, {L_PART}")
    A(f"v_add_u32 v4, s26, v{vL16}")
    A("s_cmp_eq_u32 s16, 0")
    A("s_cbranch_scc1 CV_F0")
    for c in range(2):
        for p in range(4):
            A(f"ds_read_b128 {v(16+16*c+4*p,4)}, v4 offset:{c*28672 + p*4096}")
    A("s_waitcnt lgkmcnt(0)")
    for c in range(2):
        for r in range(4):
            b_ = 16 + 16*c + r
            A(f"v_add_f32 v{b_}, v{b_}, v{b_+4}"); A(f"v_add_f32 v{b_+8}, v{b_+8}, v{b_+12}")
        for r in range(4):
            b_ = 16 + 16*c + r
            A(f"v_add_f32 v{b_}, v{b_}, v{b_+8}")
    A("s_branch CV_F1")
    A.label("CV_F0")
    for c in range(2):
        for p in range(3):
            A(f"ds_read_b128 {v(16+16*c+4*p,4)}, v4 offset:{c*28672 + 16384 + p*4096}")
    A("s_waitcnt lgkmcnt(0)")
    for c in range(2):
        for r in range(4):
            b_ = 16 + 16*c + r
            A(f"v_add_f32 v{b_}, v{b_}, v{b_+4}")
        for r in range(4):
            b_ = 16 + 16*c + r
            A(f"v_add_f32 v{b_}, v{b_}, v{b_+8}")
    A.label("CV_F1")
    for r in range(4):
        A(f"v_cvt_pk_bf16_f32 v{vY[r]}, v{16+r}, v{32+r}")
    A("s_lshl_b32 s36, s16, 21")
    A("s_lshl_b32 s25, s24, 14")
    A("s_add_u32 s36, s36, s25")
    A("s_lshl_b32 s25, s14, 1")
    A("s_add_u32 s36, s36, s25")
    A("s_setprio 0")
    stamp(A, 33)

def p1_compute(A):
    vFR, vACC, vXA, vWA = 8, 64, 112, 118
    A("v_and_b32 v4, 15, v0")
    A("v_lshrrev_b32 v5, 4, v0")
    A("v_lshrrev_b32 v6, 1, v4")
    A("v_xor_b32 v6, v6, v5")
    A("v_lshlrev_b32 v6, 4, v6")
    A("v_lshl_add_u32 v6, v4, 7, v6")
    A("s_lshr_b32 s17, s3, 1")
    A("s_lshl_b32 s17, s17, 13")
    A(f"v_add_u32 v{vXA}, s17, v6")
    A(f"v_xor_b32 v{vXA+1}, 64, v{vXA}")
    for st in (1, 2):
        A(f"v_add_u32 v{vXA+2*st}, {st*2*SLOT}, v{vXA}")
        A(f"v_add_u32 v{vXA+2*st+1}, {st*2*SLOT}, v{vXA+1}")
    A("v_lshrrev_b32 v6, 2, v4")
    A("v_lshl_add_u32 v6, v5, 3, v6")
    A("v_mul_u32_u24 v6, 192, v6")
    A("v_and_b32 v7, 3, v4")
    A("v_lshl_add_u32 v6, v7, 3, v6")
    A("s_and_b32 s17, s3, 1")
    A("v_xor_b32 v7, s17, v5")
    A("v_and_b32 v7, 1, v7")
    A(f"v_lshl_add_u32 v{vWA}, v7, 5, v6")
    A(f"v_add_u32 v{vWA+1}, {2*SLOT}, v{vWA}")
    A(f"v_add_u32 v{vWA+2}, {4*SLOT}, v{vWA}")
    A("s_and_b32 s18, s3, 1")
    A("s_lshl_b32 s19, s13, 1")
    A("s_add_u32 s18, s18, s19")
    A(f"s_lshl_b32 s16, s18, {5+FS}")
    A("s_lshl_b32 s18, s18, 16")
    A("s_lshr_b32 s19, s3, 1")
    A("s_lshl_b32 s24, s12, 1")
    A("s_add_u32 s24, s24, s19")
    A(f"s_lshl_b32 s25, s24, {FS}")
    A("s_add_u32 s16, s16, s25")
    A(f"s_add_u32 s16, s16, {WS_F1}")
    A("s_lshl_b32 s19, s24, 11")
    A("s_add_u32 s18, s18, s19")
    A(f"s_mov_b32 s17, 0x{f32bits(C_SCALE):08x}")
    A("s_setprio 3")
    q = DSQ(A)
    def fr(buf): return vFR + 28 * buf
    def rd_list(step):
        c, ks2 = step // 2, step % 2
        slot = c % NSLOT
        st, so = slot // 2, (slot % 2) * SLOT
        b = fr(step % 2)
        L = []
        for hf in range(2):
            L.append((f"ds_read_b64_tr_b16 {v(b+16+2*hf,2)}, v{vWA+st} offset:{so + 16384 + (32*ks2+4*hf)*192}", ("w", step, 0, hf)))
        for ti in range(4):
            L.append((f"ds_read_b128 {v(b+4*ti,4)}, v{vXA+2*st+ks2} offset:{so + ti*2048}", ("x", step, ti)))
        for gi in range(1, 3):
            for hf in range(2):
                L.append((f"ds_read_b64_tr_b16 {v(b+16+4*gi+2*hf,2)}, v{vWA+st} offset:{so + 16384 + (32*ks2+4*hf)*192 + 64*gi}", ("w", step, gi, hf)))
        return L
    def rd(step):
        for ins, tag in rd_list(step):
            A(ins); q.issue(tag)
    def mm(step, nxt=None):
        b = fr(step % 2)
        R = rd_list(nxt) if nxt is not None else []
        if os.environ.get("X_BURST"):
            for ins, tag in R:
                A(ins); q.issue(tag)
            R = []
        n = 0
        for gi in range(3):
            for ti in range(4):
                acc = vACC + (gi*4 + ti)*4
                X = v(b+4*ti, 4); W = v(b+16+4*gi, 4)
                cc = "0" if step == 0 else v(acc, 4)
                if gi == 0: q.wait(("x", step, ti))
                if ti == 0: q.wait(("w", step, gi, 1))
                if gi < 2: A(f"v_mfma_f32_16x16x32_bf16 {v(acc,4)}, {W}, {X}, {cc}")
                else:      A(f"v_mfma_f32_16x16x32_bf16 {v(acc,4)}, {X}, {W}, {cc}")
                if n < len(R):
                    A(R[n][0]); q.issue(R[n][1])
                n += 1
    kg_scalars(A, 3, 20, False)
    A(f"s_mul_i32 s21, s22, {L_TCH}")
    A("s_lshl_b32 s23, s24, 8")
    A("s_add_u32 s21, s21, s23")
    A(f"s_add_u32 s21, s21, {L_TA + L_TBO}")
    A("v_lshlrev_b32 v8, 2, v0")
    A("v_add_u32 v8, s21, v8")
    lwait(A, C_PAR, 4, 22, sleep=1)
    kg_read(A, 22, 24, 2, 21)
    A("s_cmp_eq_u32 s22, 0")
    A("s_cselect_b32 s21, 16, 0")
    A("s_lshl_b32 s26, s26, s21"); A("s_and_b32 s26, s26, 0xffff0000")
    kg_setup(A, 26, 21, False)
    kg_bside(A, 8)
    A("s_waitcnt lgkmcnt(0)")
    lsig(A, C_G, 2)
    stamp(A, 9)
    A("v_and_b32 v80, 15, v0")
    A("v_lshrrev_b32 v81, 4, v0")
    A("v_lshrrev_b32 v82, 2, v80")
    A("v_lshl_add_u32 v82, v81, 3, v82")
    A("v_lshlrev_b32 v84, 5, v82")
    A("v_lshlrev_b32 v82, 7, v82")
    A("v_and_b32 v83, 3, v80")
    A("v_lshl_add_u32 v82, v83, 3, v82")
    A("v_lshl_add_u32 v84, v83, 3, v84")
    A(f"v_add_u32 v84, {L_WOT}, v84")
    A("s_lshl_b32 s20, s3, 5")
    A(f"s_add_u32 s20, s20, {L_UTL}")
    A("v_add_u32 v82, s20, v82")
    A("v_lshlrev_b32 v83, 12, v80")
    A("v_lshl_add_u32 v83, v81, 4, v83")
    A("s_and_b32 s20, s2, 7"); A("s_lshl_b32 s20, s20, 2"); A("s_add_u32 s20, s20, s3")
    A(f"s_lshl_b32 s21, s20, {5+FS}")
    A("s_lshl_b32 s20, s20, 16")
    A("s_lshr_b32 s22, s2, 3")
    A("s_lshl_b32 s23, s22, 7")
    A("s_add_u32 s20, s20, s23")
    A(f"s_add_u32 s20, s20, {WS_UT}")
    A(f"s_lshl_b32 s23, s22, {FS}")
    A("s_add_u32 s21, s21, s23")
    A(f"s_add_u32 s21, s21, {WS_FU}")
    A("s_lshr_b32 s24, s2, 3"); A(f"s_lshl_b32 s22, s24, {3+FS}"); A("s_lshl_b32 s24, s24, 14")
    A("s_and_b32 s19, s2, 7"); A(f"s_lshl_b32 s23, s19, {FS}"); A("s_lshl_b32 s19, s19, 11")
    A("s_add_u32 s24, s24, s19")
    A(f"s_add_u32 s24, s24, {WS_WOF}")
    A("s_add_u32 s22, s22, s23")
    A(f"s_add_u32 s22, s22, {WS_F3}")
    lwait(A, C_GU, 4, 86, sleep=1)
    for p in range(2):
        for hf in range(2):
            A(f"ds_read_b64_tr_b16 {v(64+4*p+2*hf,2)}, v82 offset:{(32*p+4*hf)*128}")
    for s_ in range(2):
        for hf in range(2):
            A(f"ds_read_b64_tr_b16 {v(72+4*s_+2*hf,2)}, v84 offset:{(32*s_+4*hf)*32}")
    A("s_waitcnt lgkmcnt(0)")
    stamp(A, 25)
    A(f"buffer_store_dwordx4 v[64:67], v83, {WSRD}, s20 offen sc1")
    A(f"buffer_store_dwordx4 v[68:71], v83, {WSRD}, s20 offen offset:64 sc1")
    A("s_cmp_eq_u32 s3, 0")
    A("s_cbranch_scc0 PC_NW")
    A(f"buffer_store_dwordx4 v[72:75], v{vL16}, {WSRD}, s24 offen sc1")
    A(f"buffer_store_dwordx4 v[76:79], v{vL16}, {WSRD}, s24 offen offset:1024 sc1")
    A.label("PC_NW")
    get_tag(A)
    stamp(A, 19)
    for c in range(8):
        A("s_barrier")
        if c in (0, 7): stamp(A, 10 if c == 0 else 17)
        if c == int(os.environ.get("CFL", 1)):
            A("s_waitcnt vmcnt(0)")
            flag_store(A, 21, 2, 3)
            A("s_cmp_eq_u32 s3, 0")
            A("s_cbranch_scc0 PC_NF")
            flag_store(A, 22, 2, 3)
            A.label("PC_NF")
        if c == 0: rd(0)
        else: mm(2*c - 1, 2*c)
        mm(2*c, 2*c + 1)
        q.drain()
    lsig(A, C_DONE(7), 4)
    mm(15)
    stamp(A, 1)
    T = vFR
    n = 0
    for gi, base in ((1, WS_K), (2, WS_V), (0, WS_Q)):
        if gi == 0:
            for ti in range(4):
                for r in range(4):
                    A(f"v_mul_f32 v{vACC+ti*4+r}, s17, v{vACC+ti*4+r}")
        for pair in range(2):
            a0 = vACC + (gi*4 + 2*pair)*4; a1 = a0 + 4
            t = T + 4 * n; n += 1
            A(f"v_cvt_pk_bf16_f32 v{t}, v{a0}, v{a0+1}")
            A(f"v_cvt_pk_bf16_f32 v{t+1}, v{a0+2}, v{a0+3}")
            A(f"v_cvt_pk_bf16_f32 v{t+2}, v{a1}, v{a1+1}")
            A(f"v_cvt_pk_bf16_f32 v{t+3}, v{a1+2}, v{a1+3}")
            A(f"s_add_u32 s24, s18, {base + pair*1024}")
            A("s_nop 0")
            op = "v_permlane32_swap_b32" if gi == 2 else "v_permlane16_swap_b32"
            A(f"{op} v{t}, v{t+2}")
            A(f"{op} v{t+1}, v{t+3}")
            A("s_nop 1")
            A(f"buffer_store_dwordx4 {v(t,4)}, v{vL16}, {WSRD}, s24 offen sc1")
    stamp(A, 18)
    A("s_waitcnt vmcnt(0)")
    get_tag(A)
    flag_store(A, 16, 2, 3)
    lsig(A, C_OWN, 2)
    A("s_setprio 0")
    stamp(A, 2)
    if os.environ.get("X_P1ONLY"): A("s_branch K_FIN")

def cmul(A, D, X, S, T):
    A(f"v_pk_mul_f32 {v(T,2)}, {v(X,2)}, {v(S,2)} op_sel:[0,0] op_sel_hi:[1,0]")
    A(f"v_pk_fma_f32 {v(D,2)}, {v(X,2)}, {v(S,2)}, {v(T,2)} op_sel:[1,1,0] op_sel_hi:[0,1,1] neg_lo:[0,1,0]")

def fl(p): return f"{float(p)!r}" if p in (1, 2, 4) else f"0x{f32bits(float(p)):08x}"
def anchor(A, D, p, vt2, vw, tmp, conj=False):
    A(f"v_mul_f32 v{tmp}, {fl(p)}, v{vt2}")
    A(f"v_mul_f32 v{tmp+1}, {fl(p)}, v{vw}")
    A(f"v_exp_f32 v{tmp}, v{tmp}")
    A(f"v_fract_f32 v{tmp+1}, v{tmp+1}")
    A(f"v_cos_f32 v{D}, v{tmp+1}")
    A(f"v_sin_f32 v{D+1}, v{tmp+1}")
    A("s_nop 0")
    A(f"v_mul_f32 v{D}, v{D}, v{tmp}")
    if conj: A(f"v_mul_f32_e64 v{D+1}, -v{D+1}, v{tmp}")
    else: A(f"v_mul_f32 v{D+1}, v{D+1}, v{tmp}")

def kg_scalars(A, kw_sreg, s0, dsk):
    chan_pair(A, s0, s0+1)
    A(f"s_lshr_b32 s{s0+2}, s{kw_sreg}, 1")
    A(f"s_and_b32 s{s0+4}, s{kw_sreg}, 1")
    A(f"s_lshl_b32 s{s0+1}, s{s0}, 1")
    A(f"s_add_u32 s{s0+8}, s{SP['ldt']}, s{s0+1}"); A(f"s_addc_u32 s{s0+9}, s{SP['ldt']+1}, 0")
    A(f"s_load_dword s{s0+6}, s[{s0+8}:{s0+9}], 0")
    if dsk:
        A(f"s_add_u32 s{s0+10}, s{SP['dsk']}, s{s0+1}"); A(f"s_addc_u32 s{s0+11}, s{SP['dsk']+1}, 0")
        A(f"s_load_dword s{s0+7}, s[{s0+10}:{s0+11}], 0")

def kg_read(A, s_c, s_mh, narr, s_tmp):
    A(f"s_lshl_b32 s{s_tmp}, s{s_c}, 8")
    A(f"v_lshlrev_b32 v9, 1, v0")
    A(f"v_add_u32 v9, s{s_tmp}, v9")
    A(f"s_lshl_b32 s{s_tmp}, s{s_mh}, 7")
    A(f"s_add_u32 s{s_tmp}, s{s_tmp}, {L_PAR}")
    A(f"v_add_u32 v9, s{s_tmp}, v9")
    for i in range(narr):
        A(f"ds_read_u16 v{10+i}, v9 offset:{512*i}")
    A("s_waitcnt lgkmcnt(0)")

def kg_setup(A, s_ldt, s_tmp, full):
    vt2, vw, vY0, tmp = 16, 17, 18, 20
    A(f"s_mov_b32 s{s_tmp}, 0x{f32bits(LOG2E):08x}")
    A(f"v_mov_b32 v{tmp}, s{s_ldt}")
    A(f"v_lshlrev_b32 v10, 16, v10")
    A(f"v_mul_f32 v{tmp}, s{s_tmp}, v{tmp}")
    A(f"v_mul_f32 v10, s{s_tmp}, v10")
    A(f"v_exp_f32 v{tmp}, v{tmp}")
    A(f"v_exp_f32 v10, v10")
    A(f"v_lshlrev_b32 v11, 16, v11")
    A(f"v_cvt_pk_bf16_f32 v{tmp}, v{tmp}, v10")
    if full: A(f"v_lshlrev_b32 v12, 16, v12")
    A(f"v_and_b32 v10, 0xffff0000, v{tmp}")
    A(f"v_lshlrev_b32 v{tmp}, 16, v{tmp}")
    if full: A(f"v_lshlrev_b32 v13, 16, v13")
    A(f"v_mul_f32 v10, v10, v{tmp}")
    A(f"v_mul_f32 v11, v11, v{tmp}")
    A(f"v_mul_f32 v{vt2}, 0x{f32bits(-LOG2E):08x}, v10")
    A(f"v_mul_f32 v{vw}, 0x{f32bits(INV2PI):08x}, v11")
    if full:
        A(f"v_add_f32 v{tmp}, v{tmp}, v{tmp}")
        A(f"v_mul_f32 v{vY0}, v12, v{tmp}")
        A(f"v_mul_f32_e64 v{vY0+1}, -v13, v{tmp}")

def kg_bside(A, vaddr):
    vt2, vw = 16, 17
    X = [24, 26, 28, 30]; S16, S32 = 32, 34
    anchor(A, X[1], 8, vt2, vw, 36)
    A(f"v_mov_b32 v{X[0]}, 1.0"); A(f"v_mov_b32 v{X[0]+1}, 0")
    cmul(A, X[2], X[1], X[1], 36)
    cmul(A, X[3], X[1], X[2], 38)
    cmul(A, S32, X[2], X[2], 40)
    ch = [Rec() for _ in range(4)]
    for j in range(4):
        for b in range(j, 32, 4):
            p_ = 50 + 2*j + (b // 4) % 2
            ch[j](f"v_cvt_pk_bf16_f32 v{p_}, v{X[j]}, v{X[j]+1}")
            if b + 4 < 32: cmul(ch[j], X[j], X[j], S32, 42 + 2*j)
            ch[j](f"ds_write_b32 v{vaddr}, v{p_} offset:{b*528}")
    for ins in merge(*[c.L for c in ch]): A(ins)

def kg_aside(A, vaddr):
    vt2, vw, vY0 = 16, 17, 18
    F1, F256, F2, F4, Y, Z, W = 24, 26, 28, 30, 32, 34, 36
    r2, r3 = Rec(), Rec()
    anchor(r2, F1, 1, vt2, vw, 48, conj=True)
    anchor(r3, F256, 256, vt2, vw, 50, conj=True)
    for ins in merge(r2.L, r3.L): A(ins)
    cmul(A, F2, F1, F1, 48)
    cmul(A, Z, vY0, F256, 50)
    cmul(A, F4, F2, F2, 48)
    ay, az, aw = Rec(), Rec(), Rec()
    cnt = {}
    def put(ch, base, reg, row):
        n_ = cnt.get(base, 0); cnt[base] = n_ + 1
        p = base + n_ % 2
        ch(f"v_cvt_pk_bf16_f32 v{p}, v{reg}, v{reg+1}")
        ch(f"ds_write_b32 v{vaddr}, v{p} offset:{row*528}")
    put(ay, 60, vY0, 0)
    cmul(ay, Y, vY0, F1, 64); put(ay, 60, Y, 1)
    for r in range(2, 8):
        cmul(ay, Y, Y, F1, 64); put(ay, 60, Y, r)
    A(f"v_mov_b32 v{W}, v{Z}"); A(f"v_mov_b32 v{W+1}, v{Z+1}")
    put(aw, 68, W, 8)
    for r in (9, 10, 11):
        cmul(aw, W, W, F2, 70); put(aw, 68, W, r)
    V = 38
    cmul(az, Z, Z, F256, 66); put(az, 62, Z, 12)
    cmul(az, V, Z, F4, 72); put(az, 62, V, 13)
    cmul(az, Z, Z, F256, 66); put(az, 62, Z, 14)
    cmul(az, V, Z, F4, 72); put(az, 62, V, 15)
    for r in range(16, 21):
        cmul(az, Z, Z, F256, 66); put(az, 62, Z, r)
    for ins in merge(az.L, ay.L, aw.L): A(ins)

L_WOT = 57344 + 2048
def kgen_pre(A):
    A("s_sub_u32 s15, s3, 12")
    A("s_setprio 3")
    chan_pair(A, 14, 17)
    A("s_lshl_b32 s17, s14, 8")
    A("s_lshl_b32 s18, s15, 9")
    A("s_mov_b32 s40, -1"); A("s_mov_b32 s41, 0")
    A("v_lshrrev_b32 v14, 3, v0")
    A("v_lshlrev_b32 v14, 10, v14")
    A("v_and_b32 v13, 7, v0")
    A("v_lshl_add_u32 v14, v13, 4, v14")
    A("s_lshr_b32 s19, s2, 3"); A("s_lshl_b32 s19, s19, 16")
    A("s_lshl_b32 s16, s15, 14")
    A("s_add_u32 s19, s19, s16")
    A("s_and_b32 s16, s2, 7"); A("s_lshl_b32 s16, s16, 7")
    A("s_add_u32 s19, s19, s16")
    A("v_lshrrev_b32 v12, 1, v0")
    A("v_lshlrev_b32 v12, 10, v12")
    A("v_and_b32 v13, 1, v0")
    A("v_lshl_add_u32 v12, v13, 4, v12")
    ka_wait(A)
    A(f"s_mov_b32 s32, s{SP['lar']}"); A(f"s_mov_b32 s33, s{SP['lar']+1}")
    for mm_, nm in ((1, 'aim'), (2, 'cre'), (3, 'cim')):
        A(f"s_cmp_eq_u32 s15, {mm_}")
        A(f"s_cselect_b32 s32, s{SP[nm]}, s32"); A(f"s_cselect_b32 s33, s{SP[nm]+1}, s33")
    A(f"s_mov_b32 s34, {512*128*2}"); A("s_mov_b32 s35, 0x00020000")
    A(f"s_add_u32 m0, s18, {L_PAR}")
    A("s_mov_b64 exec, s[40:41]")
    A(f"buffer_load_dwordx4 v{vL16}, s[32:35], s17 offen lds")
    A("s_mov_b64 exec, -1")
    kg_scalars(A, 15, 20, True)
    A("s_getpc_b64 s[32:33]")
    A.label("KG_PC")
    A("s_add_u32 s32, s32, GTAB-KG_PC")
    A("s_addc_u32 s33, s33, 0")
    A("s_lshl_b32 s17, s15, 11")
    A("v_lshlrev_b32 v11, 5, v0")
    A("v_add_u32 v11, s17, v11")
    A("global_load_dwordx4 v[96:99], v11, s[32:33]")
    A("global_load_dwordx4 v[100:103], v11, s[32:33] offset:16")
    srd(A, 32, SP['u'], 2048*512*2)
    A(f"s_add_u32 m0, s17, {L_UTL}")
    A("s_nop 0")
    A("buffer_load_dwordx4 v14, s[32:35], s19 offen lds")
    A(f"s_add_u32 m0, s17, {L_UTL + 1024}")
    A("s_add_u32 s19, s19, 8192")
    A("buffer_load_dwordx4 v14, s[32:35], s19 offen lds")
    srd(A, 32, SP['wo'], 512*512*2)
    A("s_and_b32 s17, s2, 7"); A("s_lshl_b32 s17, s17, 16")
    A("s_lshl_b32 s19, s15, 14")
    A("s_add_u32 s17, s17, s19")
    A("s_lshr_b32 s19, s2, 3"); A("s_lshl_b32 s19, s19, 5")
    A("s_add_u32 s17, s17, s19")
    A(f"s_add_u32 m0, s18, {L_WOT}")
    A("s_mov_b64 exec, s[40:41]")
    A("buffer_load_dwordx4 v12, s[32:35], s17 offen lds")
    A("s_mov_b64 exec, -1")
    A("s_cmp_eq_u32 s15, 0")
    A("s_cbranch_scc0 KG_NE")
    A(f"s_mov_b32 s16, {WS_EP}")
    A("v_mov_b32 v9, 0")
    A("s_mov_b64 exec, 1")
    A(f"buffer_load_dword v{vE}, v9, {WSRD}, s16 offen sc1")
    A("s_mov_b64 exec, -1")
    A.label("KG_NE")

def kgen(A):
    A("s_mov_b32 s16, s22"); A("s_mov_b32 s18, s24"); A("s_mov_b32 s14, s20")
    A(f"s_mul_i32 s25, s16, {L_TCH}")
    A("s_lshl_b32 s23, s18, 8")
    A("s_add_u32 s25, s25, s23")
    A(f"s_add_u32 s25, s25, {L_TA}")
    A("v_lshlrev_b32 v15, 2, v0")
    A("v_add_u32 v15, s25, v15")
    A("s_cmp_eq_u32 s15, 0")
    A("s_cbranch_scc1 KG_WP")
    A("s_waitcnt vmcnt(5)")
    A.label("KG_WP")
    A("s_waitcnt vmcnt(6)")
    gsync(A, C_PAR, 4, 66)
    stamp(A, 24)
    kg_read(A, 16, 18, 4, 23)
    A("s_cmp_eq_u32 s16, 0")
    A("s_cselect_b32 s23, 16, 0")
    A("s_lshl_b32 s26, s26, s23"); A("s_and_b32 s26, s26, 0xffff0000")
    A("s_lshl_b32 s27, s27, s23"); A("s_and_b32 s27, s27, 0xffff0000")
    kg_setup(A, 26, 23, True)
    kg_aside(A, 15)
    A("s_waitcnt lgkmcnt(0)")
    lsig(A, C_G, 66)
    stamp(A, 21)
    A("s_waitcnt vmcnt(0)")
    A("s_cmp_eq_u32 s15, 0")
    A("s_cbranch_scc0 KG_NT")
    make_tag(A)
    A.label("KG_NT")
    A("s_waitcnt lgkmcnt(0)")
    lsig(A, C_GU, 86)
    A("v_and_b32 v9, 15, v0")
    A("v_lshrrev_b32 v10, 4, v0")
    A("v_mul_u32_u24 v11, 528, v9")
    A("v_lshl_add_u32 v11, v10, 4, v11")
    A(f"s_mul_i32 s25, s16, {L_TCH}")
    A(f"s_add_u32 s25, s25, {L_TA}")
    A(f"s_mul_i32 s23, s18, {16*528}")
    A("s_add_u32 s23, s23, s25")
    A("v_add_u32 v12, s23, v11")
    A(f"s_add_u32 s25, s25, {L_TBO}")
    A("v_add_u32 v13, s25, v11")
    A("s_lshl_b32 s25, s16, 11")
    A("s_lshl_b32 s23, s18, 10")
    A("s_add_u32 s25, s25, s23")
    A(f"s_add_u32 s25, s25, {L_T}")
    A("v_lshlrev_b32 v14, 8, v10")
    A("v_lshl_add_u32 v14, v9, 1, v14")
    A("v_add_u32 v14, s25, v14")
    A("s_cmp_eq_u32 s18, 0")
    A("s_cselect_b32 s27, s27, 0")
    A("v_mov_b32 v15, s27")
    lwait(A, C_G, 8, 86, sleep=1)
    stamp(A, 22)
    q = DSQ(A)
    def rd(s_):
        b = s_ % 4
        A(f"ds_read_b128 {v(16+4*b,4)}, v12 offset:{s_*64}"); q.issue(("a", s_))
        A(f"ds_read_b128 {v(32+4*b,4)}, v13 offset:{s_*64}"); q.issue(("b0", s_))
        A(f"ds_read_b128 {v(48+4*b,4)}, v13 offset:{16*528 + s_*64}"); q.issue(("b1", s_))
    for s_ in range(3): rd(s_)
    for s_ in range(8):
        if s_ + 3 < 8: rd(s_ + 3)
        b = s_ % 4
        q.wait(("b0", s_))
        A(f"v_mfma_f32_16x16x32_bf16 v[120:123], {v(16+4*b,4)}, {v(32+4*b,4)}, {'0' if s_==0 else 'v[120:123]'}")
        q.wait(("b1", s_))
        A(f"v_mfma_f32_16x16x32_bf16 v[4:7], {v(16+4*b,4)}, {v(48+4*b,4)}, {'0' if s_==0 else 'v[4:7]'}")
    A("s_nop 7")
    A("v_cmp_eq_u32 vcc, 0, v0")
    A("s_nop 1")
    A("v_cndmask_b32 v15, 0, v15, vcc")
    A("v_add_f32 v120, v120, v15")
    for ct, b_ in enumerate((120, 4)):
        A(f"v_cvt_pk_bf16_f32 v{16+2*ct}, v{b_}, v{b_+1}")
        A(f"v_cvt_pk_bf16_f32 v{17+2*ct}, v{b_+2}, v{b_+3}")
        A(f"ds_write_b16 v14, v{16+2*ct} offset:{32*ct}")
        A(f"ds_write_b16_d16_hi v14, v{16+2*ct} offset:{32*ct+64}")
        A(f"ds_write_b16 v14, v{17+2*ct} offset:{32*ct+128}")
        A(f"ds_write_b16_d16_hi v14, v{17+2*ct} offset:{32*ct+192}")
    gsync(A, C_GT2, 4, 2)
    stamp(A, 23)
    for e in range(8): A(f"v_add_u32 v{96+e}, {L_T}, v{96+e}")
    for c in range(2):
        for e in range(8):
            op = "ds_read_u16_d16_hi" if e % 2 else "ds_read_u16"
            A(f"{op} v{(32 if e % 2 else 16)+4*c+e//2}, v{96+e} offset:{c*2048}")
    A("s_lshl_b32 s25, s15, 6")
    A("v_add_u32 v9, s25, v0")
    A("v_lshrrev_b32 v10, 2, v9")
    A("v_mul_u32_u24 v10, 80, v10")
    A("v_and_b32 v9, 3, v9")
    A("v_lshl_add_u32 v10, v9, 4, v10")
    A(f"v_add_u32 v10, {L_KREV}, v10")
    for j in range(4): A(f"v_mov_b32 v{40+j}, 0")
    A(f"s_mul_i32 s25, s16, {KREV_SZ}")
    A(f"s_mul_i32 s23, s18, 1280")
    A("s_add_u32 s25, s25, s23")
    A(f"s_add_u32 s25, s25, {L_KREV + 64*80}")
    A(f"v_add_u32 v11, s25, v{vL16}")
    A("ds_write_b128 v11, v[40:43]")
    A("s_mov_b64 exec, 0xffff")
    A("ds_write_b128 v11, v[40:43] offset:1024")
    A("s_mov_b64 exec, -1")
    A("s_waitcnt lgkmcnt(10)")
    for j in range(4): A(f"v_or_b32 v{16+j}, v{16+j}, v{32+j}")
    A("s_waitcnt lgkmcnt(2)")
    for j in range(4): A(f"v_or_b32 v{20+j}, v{20+j}, v{36+j}")
    A("ds_write_b128 v10, v[16:19]")
    A(f"ds_write_b128 v10, v[20:23] offset:{KREV_SZ}")
    A("s_waitcnt lgkmcnt(0)")
    stamp(A, 27)
    FLAT = int(os.environ.get("FLAT", 3))
    for i in range(8):
        A("s_barrier")
        if i == FLAT:
            get_tag(A)
            chan_pair(A, 14, 17)
            A("s_lshr_b32 s28, s14, 4")
            A(f"s_lshl_b32 s28, s28, {5+FS}")
            A(f"s_add_u32 s28, s28, {WS_FU}")
            A(f"v_lshlrev_b32 v104, {FS}, v0")
            A("s_mov_b32 s40, 0")
        if i == FLAT + 2:
            A("s_cmp_eq_u32 s15, 3")
            A("s_cbranch_scc0 KG_L2")
            A("s_waitcnt vmcnt(0)")
            A("s_mov_b32 s30, -1"); A("s_mov_b32 s31, 0")
            A(f"v_cmp_ne_u32 vcc, s{sT}, v105")
            A("s_nop 1")
            A("s_and_b64 vcc, vcc, s[30:31]")
            A("s_cbranch_vccnz KG_L2")
            lsig(A, C_FU, 66)
            A("s_mov_b32 s40, 1")
            A.label("KG_L2")
        if i == FLAT + 1:
            A("s_cmp_eq_u32 s15, 3")
            A("s_cbranch_scc0 KG_L1")
            A("s_mov_b32 s30, -1"); A("s_mov_b32 s31, 0")
            A("s_mov_b64 exec, s[30:31]")
            A(f"buffer_load_dword v105, v104, {WSRD}, s28 offen sc1")
            A("s_mov_b64 exec, -1")
            A.label("KG_L1")
    A("s_cmp_eq_u32 s15, 3")
    A("s_cbranch_scc0 KG_END2")
    A("s_cmp_lg_u32 s40, 0")
    A("s_cbranch_scc1 KG_END2")
    poll(A, "KG_PU", 104, 28, "-1", 105, sleep=2)
    lsig(A, C_FU, 66)
    A.label("KG_END2")
    if os.environ.get("X_P1ONLY"): A("s_branch K_FIN")

vKA, vVA, vQ, vKF, vVF, vS, vP, vO, vM, vT = 2, 3, 4, 8, 16, 32, 64, 72, 88, 89
vLD = 92
vLW = 124
vLW2 = 89
NT = 32
SCHED = "e0 e1 PV1 RV e2 e3 c0 e4 e5 c1 QK RK e6 e7 c2 e8 e9 c3 e10 e11 PV0 c4 e12 e13 c5 e14 e15 c6 c7"
PRIO = {0: 3, 8: 2, 16: 1, 24: 0}

def attn_ids(A):
    A("s_and_b32 s12, s2, 7")
    A("s_lshl_b32 s12, s12, 2")
    A("s_lshr_b32 s13, s2, 3")
    A("s_and_b32 s17, s13, 3")
    A("s_add_u32 s12, s12, s17")
    A("s_lshr_b32 s13, s2, 5")
    A("s_lshl_b32 s17, s12, 16")

def ld_group(A):
    attn_setup(A)
    A("s_cmp_lt_u32 s3, 4")
    A("s_cselect_b32 s28, 0, 8")
    A("s_sub_u32 s28, s3, s28")
    A(f"v_lshlrev_b32 v8, {FS}, v0")
    A(f"s_lshl_b32 s27, s12, {5+FS}")
    A(f"s_add_u32 s27, s27, {WS_F1}")
    A("s_lshr_b32 s22, s28, 1")
    A("s_and_b32 s23, s28, 1"); A("s_lshl_b32 s23, s23, 1")
    A("s_and_b32 s4, s22, 1"); A("s_lshl_b32 s4, s4, 15")
    A("s_lshr_b32 s26, s22, 1"); A("s_lshl_b32 s26, s26, 21")
    A("s_add_u32 s4, s4, s26")
    A("s_lshl_b32 s26, s23, 10")
    A("s_add_u32 s4, s4, s26")
    A("s_add_u32 s4, s4, s17")
    A(f"s_add_u32 s4, s4, {WS_K}")
    A("s_lshl_b32 s24, s23, 12")
    A("s_lshl_b32 s26, s22, 10")
    A("s_add_u32 s24, s24, s26")
    A(f"v_add_u32 v{vLW2}, s24, v{vL16}")
    A("s_lshl_b32 s5, s13, 3"); A("s_add_u32 s5, s5, s28"); A("s_lshl_b32 s5, s5, 10"); A("s_add_u32 s5, s5, s17")
    A("s_lshl_b32 s6, s28, 10"); A(f"s_add_u32 s6, s6, {L_QS}")
    A(f"v_add_u32 v12, s6, v{vL16}")
    A("s_cmp_eq_u32 s3, 13")
    A("s_cbranch_scc0 LD_NOPOLL")
    lwait(A, C_OWN, 4, 44, sleep=2)
    poll(A, "LD_POLL", 8, 27, "-1", 13, sleep=2)
    lsig(A, C_F1, 44)
    A.label("LD_NOPOLL")
    lwait(A, C_F1, 1, 44, sleep=1)
    stamp(A, 3)
    def rload(r, d0):
        A(f"s_add_u32 s26, s13, {r}")
        A("s_and_b32 s26, s26, 7")
        A("s_lshl_b32 s26, s26, 12")
        A("s_add_u32 s26, s26, s4")
        A(f"buffer_load_dwordx4 {v(d0,4)}, v{vL16}, {WSRD}, s26 offen sc1")
        A(f"buffer_load_dwordx4 {v(d0+4,4)}, v{vL16}, {WSRD}, s26 offen offset:1024 sc1")
    rload(0, 32)
    A(f"buffer_load_dwordx4 v[40:43], v{vL16}, {WSRD}, s5 offen sc1")
    rload(1, vLD)
    rload(2, vLD + 8)
    lwait(A, C_DONE(7), 4, 44)
    A("s_waitcnt vmcnt(4)")
    A(f"ds_write_b128 v{vLW2}, v[32:35]")
    A(f"ds_write_b128 v{vLW2}, v[36:39] offset:4096")
    A("ds_write_b128 v12, v[40:43]")
    A("s_waitcnt vmcnt(2)")
    A(f"ds_write_b128 v{vLW2}, {v(vLD,4)} offset:16384")
    A(f"ds_write_b128 v{vLW2}, {v(vLD+4,4)} offset:20480")
    A("s_waitcnt vmcnt(0)")
    A(f"ds_write_b128 v{vLW2}, {v(vLD+8,4)} offset:32768")
    A(f"ds_write_b128 v{vLW2}, {v(vLD+12,4)} offset:36864")

def attn_setup(A):
    attn_ids(A)
    A("s_mov_b32 s20, 0x0000ffff")
    A("s_mov_b32 s21, 0x0000ffff")
    A("s_and_b32 s15, s3, 7")
    A("s_lshr_b32 s16, s3, 3")
    A("s_lshl_b32 s19, s16, 10")
    A(f"v_add_u32 v{vKA}, s19, v{vL16}")
    A("v_lshrrev_b32 v8, 5, v0")
    A("v_lshlrev_b32 v8, 8, v8")
    A("v_and_b32 v9, 15, v0")
    A("v_lshlrev_b32 v9, 4, v9")
    A("s_add_u32 s19, s19, 2048")
    A(f"v_add3_u32 v{vVA}, v8, v9, s19")
    A("v_and_b32 v8, 31, v0")
    A("v_cmp_eq_u32 vcc, 16, v8")
    A("v_mov_b32 v9, 0x3f803f80")
    A("s_lshl_b32 s22, s15, 10"); A(f"s_add_u32 s22, s22, {L_QS}")
    A("v_cndmask_b32 v9, 0, v9, vcc")
    A(f"v_add_u32 v{vQ}, s22, v{vL16}")
    for i in range(16): A(f"v_mov_b32 v{vVF+i}, v9")
    A(f"v_mov_b32 v{vM}, 0")
    A("s_lshl_b32 s18, s13, 3")
    A("s_add_u32 s18, s18, s15")
    A(f"s_lshl_b32 s19, s18, {5+FS}")
    A(f"s_lshl_b32 s22, s12, {FS}")
    A("s_add_u32 s19, s19, s22")
    A(f"s_add_u32 s19, s19, {WS_F2}")
    A("s_lshl_b32 s18, s18, 10")
    A("s_add_u32 s18, s18, s17")
    A("s_lshr_b32 s22, s3, 2")
    A("s_and_b32 s23, s3, 3")
    A("s_lshl_b32 s24, s23, 12")
    A("s_lshl_b32 s26, s22, 10")
    A("s_add_u32 s24, s24, s26")
    A(f"v_add_u32 v{vLW}, s24, v{vL16}")
    A("s_and_b32 s25, s22, 1"); A("s_lshl_b32 s25, s25, 15")
    A("s_lshr_b32 s26, s22, 1"); A("s_lshl_b32 s26, s26, 21")
    A("s_add_u32 s25, s25, s26")
    A("s_lshl_b32 s23, s23, 10")
    A("s_add_u32 s25, s25, s23")
    A("s_add_u32 s25, s25, s17")
    A(f"s_add_u32 s25, s25, {WS_K}")
    A("s_lshr_b32 s37, s2, 3"); A("s_and_b32 s37, s37, 3"); A("s_lshl_b32 s37, s37, 3"); A("s_add_u32 s37, s37, s15")

def attention(A):
    A("s_setprio 3")
    A("s_waitcnt lgkmcnt(0)")
    A("s_barrier")
    stamp(A, 4)
    A(f"ds_read_b128 {v(vQ,4)}, v{vQ}")
    q = DSQ(A)
    KF = lambda t: vKF + 4 * (t % 2)
    VF = lambda t, j: vVF + 8 * (t % 2) + 4 * j
    S = lambda t: vS + 16 * (t % 2)
    def rdK(t):
        A(f"ds_read_b128 {v(KF(t),4)}, v{vKA} offset:{(t%16)*4096}"); q.issue(("K", t))
    def rdV(t):
        A("s_mov_b64 exec, s[20:21]")
        A(f"ds_read_b128 {v(VF(t,0),4)}, v{vVA} offset:{(t%16)*4096}"); q.issue(("V0", t))
        A(f"ds_read_b128 {v(VF(t,1),4)}, v{vVA} offset:{(t%16)*4096+512}"); q.issue(("V1", t))
        A("s_mov_b64 exec, -1")
    def qk(t):
        q.wait(("K", t))
        A(f"v_mfma_f32_32x32x16_bf16 {v(S(t),16)}, {v(KF(t),4)}, {v(vQ,4)}, 0")
    def e(t, i): A(f"v_exp_f32 v{S(t)+i}, v{S(t)+i}")
    def c(t, k): A(f"v_cvt_pk_bf16_f32 v{vP+k}, v{S(t)+2*k}, v{S(t)+2*k+1}")
    def pv(t, j):
        cc = "0" if (t == 0 and j == 0) else v(vO, 16)
        A(f"v_mfma_f32_32x32x16_bf16 {v(vO,16)}, {v(VF(t,j),4)}, {v(vP+4*j,4)}, {cc}")
    rdK(0); rdK(1); rdV(0)
    qk(0)
    A("s_nop 7"); A("s_nop 3")
    for t in range(NT):
        A.comment(f"--- tile {t}")
        if t in PRIO: A(f"s_setprio {PRIO[t]}")
        for tok in SCHED.split():
            if tok[0] == 'e': e(t, int(tok[1:]))
            elif tok[0] == 'c': c(t, int(tok[1:]))
            elif tok == 'PV1':
                if t > 0: pv(t - 1, 1)
            elif tok == 'QK':
                if t + 1 < NT: qk(t + 1)
            elif tok == 'PV0':
                q.wait(("V1", t)); pv(t, 0)
            elif tok == 'RK':
                slot_of = {3: 4, 4: 5, 5: 6, 6: 7, 7: 0}
                XN = os.environ.get("X_NOLAND")
                if XN:
                    if t + 2 < NT: rdK(t + 2)
                    if t == 14: A(f"v_add_u32 v{vKA}, 65536, v{vKA}") if False else None
                    continue
                if t == 1:
                    A("s_cmp_eq_u32 s16, 0")
                    A("s_cbranch_scc0 AT_NS")
                    for j in range(4): A(f"v_mov_b32 v{vLD+4+j}, -1")
                    A(f"s_add_u32 s26, s18, {WS_O}")
                    A(f"buffer_store_dwordx4 {v(vLD+4,4)}, v{vL16}, {WSRD}, s26 offen sc1")
                    A.label("AT_NS")
                if t == 22:
                    A("s_cmp_eq_u32 s3, 13")
                    A("s_cbranch_scc0 AT_N4a")
                    A(f"v_lshlrev_b32 v{vT}, {FS}, v0")
                    A("s_and_b32 s28, s2, 7")
                    A(f"s_lshl_b32 s28, s28, {5+FS}")
                    A(f"s_add_u32 s28, s28, {WS_F4}")
                    A("s_mov_b32 s30, -1"); A("s_mov_b32 s31, 0")
                    A("s_mov_b64 exec, s[30:31]")
                    A(f"buffer_load_dword v{vLW}, v{vT}, {WSRD}, s28 offen sc1")
                    A("s_mov_b64 exec, -1")
                    A.label("AT_N4a")
                if t == 25:
                    A("s_cmp_eq_u32 s3, 13")
                    A("s_cbranch_scc0 AT_N4b")
                    A("s_waitcnt vmcnt(0)")
                    check_or_poll(A, "AT_P4", vT, 28, "-1", vLW)
                    A(f"v_mov_b32 v{vT}, {C_F4}"); A(f"v_mov_b32 v{vLW}, 1")
                    A("s_mov_b64 exec, 1")
                    A(f"ds_add_u32 v{vT}, v{vLW}")
                    A("s_mov_b64 exec, -1")
                    A.label("AT_N4b")
                if t == 11:
                    A("s_cmp_eq_u32 s3, 9")
                    A("s_cbranch_scc0 AT_NF4")
                    A(f"s_lshl_b32 s29, s13, {5+FS}")
                    A(f"s_lshl_b32 s28, s12, {FS}")
                    A("s_add_u32 s28, s29, s28")
                    A(f"s_add_u32 s28, s28, {WS_F4}")
                    A(f"v_mov_b32 v{vLD+28}, s{sT}"); A(f"v_mov_b32 v{vLD+29}, 0")
                    A("s_mov_b64 exec, 1")
                    A(f"buffer_store_dword v{vLD+28}, v{vLD+29}, {WSRD}, s28 offen sc1")
                    A("s_mov_b64 exec, -1")
                    A.label("AT_NF4")
                if t < 5:
                    r = 3 + t
                    A(f"s_add_u32 s26, s13, {r}")
                    A("s_and_b32 s26, s26, 7")
                    A("s_lshl_b32 s26, s26, 12")
                    A("s_add_u32 s26, s26, s25")
                    A(f"buffer_load_dwordx4 {v(vLD+4*slot_of[r],4)}, v{vL16}, {WSRD}, s26 offen sc1")
                if t == 6:
                    A("s_waitcnt vmcnt(0)")
                    A(f"ds_write_b128 v{vLW}, {v(vLD+4*slot_of[3],4)} offset:49152")
                    A(f"v_add_u32 v{vLW}, 65536, v{vLW}")
                    for r in range(4, 8):
                        A(f"ds_write_b128 v{vLW}, {v(vLD+4*slot_of[r],4)} offset:{r*16384 - 65536}")
                    A("s_waitcnt lgkmcnt(0)"); q.q = []
                    lsig(A, C_LAND, vT + 0) if False else None
                    A(f"v_mov_b32 v{vT}, {C_LAND}")
                    A(f"v_mov_b32 v{vLW}, 1")
                    A("s_mov_b64 exec, 1")
                    A(f"ds_add_u32 v{vT}, v{vLW}")
                    A("s_mov_b64 exec, -1")
                if t == 9:
                    A(f"ds_read_b32 v{vLW}, v{vT}"); q.issue(("land", 0))
                if t == 10:
                    q.wait(("land", 0))
                    A(f"v_readfirstlane_b32 s42, v{vLW}")
                    A("s_nop 0")
                    A("s_cmp_ge_u32 s42, 16")
                    A("s_cbranch_scc1 AT_LANDED")
                    lwait(A, C_LAND, 16, 126 if False else 12, sleep=1) if False else None
                    A.label("AT_LSPIN")
                    A(f"ds_read_b32 v{vLW}, v{vT}")
                    A("s_waitcnt lgkmcnt(0)")
                    A(f"v_readfirstlane_b32 s42, v{vLW}")
                    A("s_sleep 1")
                    A("s_cmp_ge_u32 s42, 16")
                    A("s_cbranch_scc0 AT_LSPIN")
                    A.label("AT_LANDED")
                    A(f"v_lshlrev_b32 v{vT}, {FS}, v0")
                    A(f"s_lshl_b32 s26, s37, {3+FS}")
                    A(f"s_add_u32 s26, s26, {WS_F3}")
                    A("s_mov_b64 exec, 0xff")
                    A(f"buffer_load_dword v{vLW}, v{vT}, {WSRD}, s26 offen sc1")
                    A("s_mov_b64 exec, -1")
                if t == 12:
                    A("s_waitcnt vmcnt(0)")
                    check_or_poll(A, "AT_P3", vT, 26, "0xff", vLW)
                    A("s_lshl_b32 s27, s37, 14")
                    A("s_lshl_b32 s26, s16, 13")
                    A("s_add_u32 s27, s27, s26")
                    A(f"s_add_u32 s27, s27, {WS_WOF}")
                if 12 <= t < 20:
                    A(f"buffer_load_dwordx4 {v(vLD+4*(t-12),4)}, v{vL16}, {WSRD}, s27 offen sc1")
                    A("s_add_u32 s27, s27, 1024")
                if t == 20:
                    A("s_sub_u32 s26, s3, 4")
                    A("s_cmp_lt_u32 s26, 8")
                    A("s_cbranch_scc0 AT_NY0")
                    A(f"v_and_b32 v{vT}, 31, v0")
                    A(f"v_lshrrev_b32 v{vLW}, 5, v0")
                    A(f"v_lshlrev_b32 v{vT}, 16, v{vT}")
                    A(f"v_lshl_add_u32 v{vT}, v{vLW}, 13, v{vT}")
                    A.label("AT_NY0")
                    srd(A, 4, SP['out'], 2048*1024*2)
                if 21 <= t < 25:
                    r = t - 21
                    A("s_sub_u32 s26, s3, 4")
                    A("s_cmp_lt_u32 s26, 8")
                    A(f"s_cbranch_scc0 AT_NY{r+1}")
                    if r == 2: A("s_add_u32 s36, s36, 4096")
                    A(f"buffer_store_dword v{vY[r]}, v{vT}, s[4:7], s36 offen" + (" offset:2048" if r % 2 else "") + os.environ.get("YSC", ""))
                    A.label(f"AT_NY{r+1}")
                WBL = [int(x) for x in os.environ.get("WBL", "26").split(",") if x]
                if t in WBL:
                    A("s_lshr_b32 s26, s2, 3")
                    A("s_lshl_b32 s26, s26, 4")
                    A("s_add_u32 s26, s26, s3")
                    A("s_cmp_eq_u32 s26, 15")
                    A(f"s_cbranch_scc0 AT_WB{t}")
                    A("buffer_wbl2 sc1")
                    A.label(f"AT_WB{t}")
                if t == 14:
                    A(f"v_add_u32 v{vKA}, 65536, v{vKA}")
                if t + 2 < NT: rdK(t + 2)
            elif tok == 'RV':
                if t == 15:
                    A(f"v_add_u32 v{vVA}, 65536, v{vVA}")
                if t + 1 < NT: rdV(t + 1)
            else: raise ValueError(tok)
    A("s_nop 1")
    pv(NT - 1, 1)
    A("s_nop 15")
    stamp(A, 5)
    A(f"v_mov_b32 v{vT}, v{vO+8}")
    A("s_nop 1")
    A(f"v_permlane32_swap_b32 v{vT}, v{vO+8}")
    A("s_nop 1")
    A(f"v_mov_b32 v{vO+8}, v{vT}")
    A("s_mov_b32 s28, 0x1f800000")
    A("s_mov_b32 s29, 0x5f800000")
    A(f"v_cmp_le_f32 vcc, s28, v{vO+8}")
    A(f"v_cmp_ge_f32 s[30:31], s29, v{vO+8}")
    A("s_nop 1")
    A("s_and_b64 vcc, vcc, s[30:31]")
    A("s_cmp_eq_u64 vcc, -1")
    A("s_cbranch_scc0 AT_FALLBACK")
    A.label("AT_COMBINE")
    A("s_lshl_b32 s17, s15, 11")
    A(f"s_add_u32 s17, s17, {L_SCR}")
    A(f"v_add_u32 v{vT}, s17, v{vL16}")
    A("v_lshlrev_b32 v12, 3, v0")
    A("s_lshl_b32 s17, s15, 9")
    A(f"s_add_u32 s17, s17, {L_KREV}")
    A(f"v_add_u32 v12, s17, v12")
    A("s_cmp_eq_u32 s16, 0")
    A("s_cbranch_scc1 AT_LOW")
    A(f"ds_write_b128 v{vT}, {v(vO,4)}")
    A(f"ds_write_b128 v{vT}, {v(vO+4,4)} offset:1024")
    A(f"v_mov_b32 v{vO+9}, v{vM}")
    A(f"ds_write_b64 v12, {v(vO+8,2)}")
    A("s_waitcnt lgkmcnt(0)")
    A("s_barrier")
    A("s_branch AT_DONE")
    A.label("AT_LOW")
    A("s_barrier")
    B = vS
    A(f"ds_read_b128 {v(B,4)}, v{vT}")
    A(f"ds_read_b128 {v(B+4,4)}, v{vT} offset:1024")
    A(f"ds_read_b64 {v(B+8,2)}, v12")
    A("s_waitcnt lgkmcnt(0)")
    t0, t1, t2 = 8, 9, 10
    A(f"v_max_f32 v{t0}, v{vM}, v{B+9}")
    A(f"v_sub_f32 v{t1}, v{vM}, v{t0}")
    A(f"v_sub_f32 v{t2}, v{B+9}, v{t0}")
    A(f"v_exp_f32 v{t1}, v{t1}")
    A(f"v_exp_f32 v{t2}, v{t2}")
    A("s_nop 0")
    for i in range(9):
        A(f"v_mul_f32 v{vO+i}, v{vO+i}, v{t1}")
    for i in range(9):
        A(f"v_fmac_f32 v{vO+i}, v{B+i}, v{t2}")
    A(f"v_rcp_f32 v{t0}, v{vO+8}")
    A("s_nop 0")
    for i in range(8):
        A(f"v_mul_f32 v{vO+i}, v{vO+i}, v{t0}")
    for k in range(4):
        A(f"v_cvt_pk_bf16_f32 v{vP+k}, v{vO+2*k}, v{vO+2*k+1}")
    A("s_nop 1")
    A(f"v_permlane32_swap_b32 v{vP}, v{vP+2}")
    A(f"v_permlane32_swap_b32 v{vP+1}, v{vP+3}")
    A(f"s_add_u32 s18, s18, {WS_O}")
    for j in range(4):
        A(f"v_cmp_eq_u32 vcc, -1, v{vP+j}")
        A(f"v_mov_b32 v12, 0xfffefffe")
        A("s_nop 0")
        A(f"v_cndmask_b32 v{vP+j}, v{vP+j}, v12, vcc")
    A(f"buffer_store_dwordx4 {v(vP,4)}, v{vL16}, {WSRD}, s18 offen sc1")
    lsig(A, C_OWN2, 12)
    A.label("AT_DONE")
    stamp(A, 6)

def attention_fallback(A):
    A.label("AT_FALLBACK")
    A(f"v_mov_b32 v{vM}, 0xff800000")
    A(f"v_subrev_u32 v{vT}, 65536, v{vKA}")
    A("s_mov_b32 s17, 0")
    A.label("AT_FB1")
    A(f"ds_read_b128 {v(vKF,4)}, v{vT}")
    A(f"v_add_u32 v{vT}, 4096, v{vT}")
    A("s_waitcnt lgkmcnt(0)")
    A(f"v_mfma_f32_32x32x16_bf16 {v(vS,16)}, {v(vKF,4)}, {v(vQ,4)}, 0")
    A("s_nop 15")
    for k in range(8):
        A(f"v_max3_f32 v{vM}, v{vS+2*k}, v{vS+2*k+1}, v{vM}")
    A("s_add_u32 s17, s17, 1")
    A("s_cmp_lt_u32 s17, 32")
    A("s_cbranch_scc1 AT_FB1")
    A(f"v_mov_b32 v{vT}, v{vM}")
    A(f"v_mov_b32 v12, v{vM}")
    A("s_nop 1")
    A(f"v_permlane32_swap_b32 v{vT}, v12")
    A("s_nop 1")
    A(f"v_max_f32 v{vM}, v{vT}, v12")
    for i in range(16): A(f"v_mov_b32 v{vO+i}, 0")
    A(f"v_subrev_u32 v{vT}, 65536, v{vKA}")
    A(f"v_subrev_u32 v12, 65536, v{vVA}")
    A("s_mov_b32 s17, 0")
    A.label("AT_FB2")
    A(f"ds_read_b128 {v(vKF,4)}, v{vT}")
    A("s_mov_b64 exec, s[20:21]")
    A(f"ds_read_b128 {v(vVF,4)}, v12")
    A(f"ds_read_b128 {v(vVF+4,4)}, v12 offset:512")
    A("s_mov_b64 exec, -1")
    A(f"v_add_u32 v{vT}, 4096, v{vT}")
    A(f"v_add_u32 v12, 4096, v12")
    A("s_waitcnt lgkmcnt(0)")
    A(f"v_mfma_f32_32x32x16_bf16 {v(vS,16)}, {v(vKF,4)}, {v(vQ,4)}, 0")
    A("s_nop 15")
    for i in range(16): A(f"v_sub_f32 v{vS+i}, v{vS+i}, v{vM}")
    for i in range(16): A(f"v_exp_f32 v{vS+i}, v{vS+i}")
    A("s_nop 0")
    for k in range(8): A(f"v_cvt_pk_bf16_f32 v{vP+k}, v{vS+2*k}, v{vS+2*k+1}")
    A("s_nop 1")
    A(f"v_mfma_f32_32x32x16_bf16 {v(vO,16)}, {v(vVF,4)}, {v(vP,4)}, {v(vO,16)}")
    A(f"v_mfma_f32_32x32x16_bf16 {v(vO,16)}, {v(vVF+4,4)}, {v(vP+4,4)}, {v(vO,16)}")
    A("s_add_u32 s17, s17, 1")
    A("s_cmp_lt_u32 s17, 32")
    A("s_cbranch_scc1 AT_FB2")
    A("s_nop 15")
    A(f"v_mov_b32 v{vT}, v{vO+8}")
    A("s_nop 1")
    A(f"v_permlane32_swap_b32 v{vT}, v{vO+8}")
    A("s_nop 1")
    A(f"v_mov_b32 v{vO+8}, v{vT}")
    A("s_branch AT_COMBINE")

def tail(A):
    A("s_and_b32 s12, s2, 7"); A("s_lshl_b32 s12, s12, 3"); A("s_lshr_b32 s13, s2, 5"); A("s_add_u32 s12, s12, s13")
    A("s_lshr_b32 s13, s2, 3"); A("s_and_b32 s13, s13, 3")
    A("v_and_b32 v4, 15, v0")
    A("v_lshrrev_b32 v5, 4, v0")
    A("v_lshlrev_b32 v14, 9, v5")
    A("v_lshl_add_u32 v14, v4, 4, v14")
    A("s_lshl_b32 s17, s16, 14")
    A(f"s_add_u32 s17, s17, {L_OT}")
    A(f"v_add_u32 v14, s17, v14")
    A("v_lshlrev_b32 v15, 11, v4")
    A("v_lshl_add_u32 v15, v5, 3, v15")
    A("s_lshl_b32 s20, s12, 16")
    A("s_lshl_b32 s19, s16, 15")
    A("s_add_u32 s20, s20, s19")
    A("s_lshl_b32 s19, s13, 8")
    A("s_add_u32 s20, s20, s19")
    A("s_lshl_b32 s19, s15, 5")
    A("s_add_u32 s20, s20, s19")
    A("s_add_u32 s20, s20, 1024")
    srd(A, 4, SP['out'], 2048*1024*2)
    A("s_lshl_b32 s17, s3, 10")
    A(f"s_add_u32 s17, s17, {L_PC}")
    A(f"v_add_u32 v6, s17, v{vL16}")
    A("s_xor_b32 s17, s17, 8192")
    A(f"v_add_u32 v7, s17, v{vL16}")
    A("s_lshl_b32 s17, s3, 17")
    A("s_lshl_b32 s18, s12, 10")
    A("s_add_u32 s17, s17, s18")
    A(f"s_add_u32 s17, s17, {WS_O}")
    A("s_lshl_b32 s18, s3, 11")
    A(f"s_add_u32 s18, s18, {L_OT}")
    A(f"v_add_u32 v13, s18, v{vL16}")
    lwait(A, C_F4, 1, 8, sleep=1)
    lwait(A, C_OWN2, 8, 8, sleep=1)
    stamp(A, 43)
    A("s_add_u32 s18, s17, 65536")
    A("s_mov_b32 s29, 0")
    A("s_mov_b32 s28, 3")
    A.label("TL_POLL")
    A("s_bitcmp1_b32 s28, 0")
    A("s_cbranch_scc0 TL_P1")
    A(f"buffer_load_dwordx4 v[16:19], v{vL16}, {WSRD}, s17 offen sc1")
    A.label("TL_P1")
    A("s_bitcmp1_b32 s28, 1")
    A("s_cbranch_scc0 TL_P2")
    A(f"buffer_load_dwordx4 v[20:23], v{vL16}, {WSRD}, s18 offen sc1")
    A.label("TL_P2")
    A("s_add_u32 s29, s29, 1")
    A("s_waitcnt vmcnt(0)")
    A("v_max3_u32 v8, v16, v17, v18")
    A("v_max3_u32 v9, v20, v21, v22")
    A("v_max_u32 v8, v8, v19")
    A("v_max_u32 v9, v9, v23")
    A("v_cmp_eq_u32 vcc, -1, v8")
    A("v_cmp_eq_u32 s[30:31], -1, v9")
    A("s_nop 1")
    A("s_cmp_lg_u64 vcc, 0")
    A("s_cselect_b32 s28, 1, 0")
    A("s_cmp_lg_u64 s[30:31], 0")
    A("s_cselect_b32 s19, 2, 0")
    A("s_or_b32 s28, s28, s19")
    A("s_cmp_gt_u32 s29, 0x8000")
    A("s_cbranch_scc1 TL_GOT")
    A("s_cmp_eq_u32 s28, 0")
    A("s_cbranch_scc1 TL_GOT")
    A("s_sleep 2")
    A("s_branch TL_POLL")
    A.label("TL_GOT")
    A("ds_write_b128 v13, v[16:19]")
    A("ds_write_b128 v13, v[20:23] offset:1024")
    A("s_waitcnt lgkmcnt(0)")
    stamp(A, 44)
    A("s_barrier")
    stamp(A, 45)
    q = DSQ(A)
    FO = 16
    def rd(s_):
        b = s_ % 3
        for th in range(2):
            A(f"ds_read_b128 {v(FO+12*th+4*b,4)}, v14 offset:{s_*2048 + th*256}"); q.issue(("o", s_, th))
    rd(0); rd(1)
    for s_ in range(8):
        if s_ + 2 < 8: rd(s_ + 2)
        b = s_ % 3
        for th in range(2):
            q.wait(("o", s_, th))
            cc = "0" if s_ == 0 else v(40+4*th, 4)
            A(f"v_mfma_f32_16x16x32_bf16 {v(40+4*th,4)}, {v(vLD+4*s_,4)}, {v(FO+12*th+4*b,4)}, {cc}")
    A("s_cmp_eq_u32 s2, 0")
    A("s_cbranch_scc0 TL_NE")
    A("s_cmp_eq_u32 s3, 8")
    A("s_cbranch_scc0 TL_NE")
    A(f"s_mov_b32 s17, {WS_EP}")
    flag_store(A, 17, 12, 13)
    A.label("TL_NE")
    A("s_nop 7")
    A("s_cmp_eq_u32 s16, 0")
    A("s_cbranch_scc1 TL_LO")
    A("ds_write_b128 v6, v[40:43]")
    for i in range(4): A(f"v_mov_b32 v{40+i}, v{44+i}")
    A("s_branch TL_X")
    A.label("TL_LO")
    A("ds_write_b128 v6, v[44:47]")
    A.label("TL_X")
    A("s_waitcnt lgkmcnt(0)")
    A("s_barrier")
    A("ds_read_b128 v[16:19], v7")
    A("s_waitcnt lgkmcnt(0)")
    for i in range(4):
        A(f"v_add_f32 v{40+i}, v{40+i}, v{16+i}")
    A("v_cvt_pk_bf16_f32 v48, v40, v41")
    A("v_cvt_pk_bf16_f32 v49, v42, v43")
    A("buffer_store_dwordx2 v[48:49], v15, s[4:7], s20 offen" + os.environ.get("OUTSC", ""))

def gen():
    A = Asm()
    kernel_begin(A, NAME)
    A.label("K_START")
    if not os.environ.get("NOPF"):
        A("s_getpc_b64 s[4:5]")
        A.label("PF_PC")
        A("v_lshlrev_b32 v2, 7, v0")
        A("v_cmp_gt_u32 vcc, GTAB_END-PF_PC-128, v2")
        A("s_and_saveexec_b64 s[6:7], vcc")
        A("s_cbranch_execz PF_DONE")
        A(f"global_load_dword v{vE}, v2, s[4:5]")
        A.label("PF_DONE")
        A("s_mov_b64 exec, s[6:7]")
    if DBG: A("v_mov_b32 v125, 0")
    if PROF:
        A("v_mov_b32 v125, 0")
        A("s_memrealtime s[38:39]")
    stamp(A, 0)
    A("s_cmp_ge_u32 s2, 256")
    A("s_cbranch_scc1 K_END")
    A("s_load_dwordx16 s[64:79], s[0:1], 0")
    A("s_load_dwordx8 s[80:87], s[0:1], 64")
    A("s_load_dwordx2 s[88:89], s[0:1], 96")
    A("v_lshrrev_b32 v8, 6, v0")
    A("v_and_b32 v0, 63, v0")
    A("v_readfirstlane_b32 s3, v8")
    A(f"v_lshlrev_b32 v{vL16}, 4, v0")
    p1_ids(A)
    A("s_cmp_eq_u32 s3, 12")
    A("s_cbranch_scc0 E_NZ")
    A("v_lshlrev_b32 v20, 2, v0")
    A(f"v_add_u32 v20, {L_CNT}, v20")
    A("v_mov_b32 v24, 0")
    A("ds_write_b32 v20, v24")
    A.label("E_NZ")
    A("s_cmp_ge_u32 s3, 12")
    A("s_cbranch_scc0 E_NG")
    kgen_pre(A)
    A.label("E_NG")
    EARLY = os.environ.get("EARLY")
    if EARLY:
        A("s_sub_u32 s17, s3, 4")
        A("s_cmp_lt_u32 s17, 8")
        A("s_cbranch_scc1 R_LOAD")
    ka_wait(A)
    A("s_barrier")
    A("s_cmp_lt_u32 s3, 4")
    A("s_cbranch_scc1 R_COMPUTE")
    A("s_cmp_ge_u32 s3, 12")
    A("s_cbranch_scc1 R_KGEN")
    A.label("R_LOAD")
    p1_loader(A)
    attn_setup(A)
    A("s_branch R_JOIN")
    A.label("R_KGEN")
    kgen(A)
    A("s_branch R_LD")
    A.label("R_COMPUTE")
    p1_compute(A)
    A.label("R_LD")
    ld_group(A)
    A.label("R_JOIN")
    attention(A)
    tail(A)
    A.label("K_FIN")
    stamp(A, 50)
    A("s_waitcnt vmcnt(0)")
    stamp(A, 51)
    write_stamps(A)
    if DBG:
        A("s_cmp_eq_u32 s2, 8"); A("s_cbranch_scc0 K_END")
        A("s_cmp_eq_u32 s3, 0"); A("s_cbranch_scc0 K_END")
        A("s_memtime s[48:49]"); A("s_memrealtime s[50:51]"); A("s_waitcnt lgkmcnt(0)")
        A("v_readlane_b32 s52, v125, 0"); A("v_readlane_b32 s53, v125, 1")
        A("s_nop 3")
        A("v_writelane_b32 v125, s48, 0"); A("v_writelane_b32 v125, s50, 1")
        A("v_and_b32 v16, 1, v0")
        A("v_cmp_eq_u32 vcc, 0, v16")
        A("v_mov_b32 v17, s53"); A("v_mov_b32 v18, s52")
        A("s_nop 1")
        A("v_cndmask_b32 v17, v17, v18, vcc")
        A("v_sub_u32 v17, v125, v17")
        srd(A, 4, SP['dbg'], 256)
        A("v_lshlrev_b32 v16, 2, v0")
        A("s_mov_b64 exec, 0xffff")
        A("buffer_store_dword v17, v16, s[4:7], 0 offen")
        A("s_waitcnt vmcnt(0)")
    A.label("K_END")
    A("s_endpgm")
    attention_fallback(A)
    A(".p2align 6")
    A(".type GTAB,@object")
    A.label("GTAB")
    t = gather_table()
    for i in range(0, 2048, 16):
        A(".long " + ", ".join(str(int(x)) for x in t[i:i+16]))
    A(".size GTAB, 8192")
    A.label("GTAB_END")
    hdr_src = open("concat_heads__ssm_conv_s4d__mha_block__prompt.s.ref").read().split("\n")
    hdr = [l for l in hdr_src if l.startswith(";") and "@launch" not in l and "Override launch" not in l and "grid=ceil" not in l]
    out = "\n".join(hdr) + "\n; @launch grid=(256,1,1) block=(1024,1,1) lds=163840\n"
    out += '.amdgcn_target "amdgcn-amd-amdhsa--gfx950"\n'
    out += A.text() + kernel_desc(NAME, 128, 100)
    return out

if __name__ == "__main__":
    open(sys.argv[1] if len(sys.argv) > 1 else "fused.s", "w").write(gen())
```

```python
import os, struct, sys
from asmlib import *
from ssm_common import gather_table

NAME = "concat_heads__ssm_conv_s4d__mha_block__prompt_kernel"
PROF = bool(os.environ.get("PROF"))
DBG = bool(os.environ.get("DBG"))
DBGMAP = {0: 0, 10: 1, 1: 2, 2: 3, 4: 4, 5: 5, 6: 6, 45: 7}

def f32bits(x): return struct.unpack("<I", struct.pack("<f", x))[0]
LOG2E = 1.4426950408889634
INV2PI = 0.15915494309189535
C_SCALE = 0.25 * LOG2E

WS_Q = 0x000000; WS_K = 0x200000; WS_V = 0x400000; WS_O = 0x600000
WS_UT = 0x800000
WS_WOF = 0xA00000
FS = 8
WS_F1 = 0xA80000
WS_F2 = 0xAC0000
WS_F3 = 0xB40000
WS_FU = 0xB50000
WS_F4 = 0xBA0000
WS_EP = 0xB90000
WS_TOTAL = 0xBB0000
WS_PROF = 0x1000000
SP = dict(u=64, lar=66, aim=68, cre=70, cim=72, ldt=74, dsk=76, x=78, wqkv=80, wo=82, out=84, dbg=86, ws=88)
sWS = 44
WSRD = f"s[{sWS}:{sWS+3}]"
sT = 90
vL16 = 1
vE = 127

SLOT = 28672; NSLOT = 3; AHEAD = 2
L_TA = 86016; L_TBO = 11088; L_TCH = 27984
L_T = 143360
L_CNT = 147968
C_G = L_CNT; C_CV = L_CNT + 4; C_WO = L_CNT + 8; C_KR = L_CNT + 12
def C_RDY(c): return L_CNT + 16 + 4*c
def C_DONE(c): return L_CNT + 48 + 4*c
C_FU = L_CNT + 80; C_F1 = L_CNT + 84; C_F2 = L_CNT + 88; C_ISS = L_CNT + 92; C_T = L_CNT + 96; C_GU = L_CNT + 100; C_GT = L_CNT + 104; C_OWN = L_CNT + 108; C_OWN2 = L_CNT + 112; C_PAR = L_CNT + 116; C_GT2 = L_CNT + 120; C_LAND = L_CNT + 128; C_F4 = L_CNT + 140
L_PAR = 57344
L_KREV = 148480; KREV_SZ = 7680
L_UTL = 57344 + 4096
L_WOT = 86016
L_UC = 57344; UC_RHO = 4160; UC_CH = 16640
L_PART = 90624
L_QS = 49152
L_SCR = 131072
L_OT = 0
L_PC = 32768

class DSQ:
    def __init__(self, A): self.A = A; self.q = []
    def issue(self, tag): self.q.append(tag)
    def wait(self, tag):
        if tag not in self.q: return
        i = len(self.q) - 1 - self.q[::-1].index(tag)
        n = len(self.q) - 1 - i
        assert n <= 15, n
        self.A(f"s_waitcnt lgkmcnt({n})")
        self.q = self.q[i+1:]
    def room(self):
        if len(self.q) >= 15: self.wait(self.q[0])
    def drain(self):
        self.A("s_waitcnt lgkmcnt(0)"); self.q = []

def stamp(A, k):
    if DBG and k in DBGMAP:
        j = DBGMAP[k]
        A("s_memtime s[48:49]")
        A("s_memrealtime s[50:51]")
        A("s_waitcnt lgkmcnt(0)")
        A(f"v_writelane_b32 v125, s48, {2*j}")
        A(f"v_writelane_b32 v125, s50, {2*j+1}")
    if PROF:
        A("s_memtime s[48:49]")
        A("s_waitcnt lgkmcnt(0)")
        A(f"v_writelane_b32 v125, s48, {k}")

def write_stamps(A):
    if not PROF: return
    A("s_memrealtime s[40:41]")
    A("s_waitcnt lgkmcnt(0)")
    A(f"v_writelane_b32 v125, s40, 62")
    A(f"v_writelane_b32 v125, s91, 63")
    A(f"s_add_u32 s92, s{SP['ws']}, {WS_PROF}")
    A(f"s_addc_u32 s93, s{SP['ws']+1}, 0")
    A("s_mov_b32 s94, 0x200000")
    A("s_mov_b32 s95, 0x00020000")
    A("s_lshl_b32 s42, s2, 4"); A("s_add_u32 s42, s42, s3"); A("s_lshl_b32 s42, s42, 8")
    A("v_lshlrev_b32 v16, 2, v0")
    A("buffer_store_dword v125, v16, s[92:95], s42 offen")
    A("s_waitcnt vmcnt(0)")

def poll(A, label, vaddr, soff, mask_lo, vtmp, sleep=4):
    A(f"s_mov_b32 s30, {mask_lo}")
    A("s_mov_b32 s31, 0")
    A("s_mov_b64 exec, s[30:31]")
    A("s_mov_b32 s29, 0")
    A.label(label)
    A(f"buffer_load_dword v{vtmp}, v{vaddr}, {WSRD}, s{soff} offen sc1")
    A("s_add_u32 s29, s29, 1")
    A("s_waitcnt vmcnt(0)")
    A(f"v_cmp_ne_u32 vcc, s{sT}, v{vtmp}")
    A("s_cmp_gt_u32 s29, 0x10000")
    A(f"s_cbranch_scc1 {label}_x")
    A(f"s_cbranch_vccz {label}_x")
    A(f"s_sleep {sleep}")
    A(f"s_branch {label}")
    A.label(label + "_x")
    A("s_mov_b64 exec, -1")

def check_or_poll(A, label, vaddr, soff, mask_lo, vflag):
    A(f"s_mov_b32 s30, {mask_lo}")
    A("s_mov_b32 s31, 0")
    A(f"v_cmp_ne_u32 vcc, s{sT}, v{vflag}")
    A("s_nop 1")
    A("s_and_b64 vcc, vcc, s[30:31]")
    A(f"s_cbranch_vccz {label}_ok")
    poll(A, label, vaddr, soff, mask_lo, vflag)
    A.label(label + "_ok")

def flag_store(A, soff, vtmp, vzero):
    A(f"v_mov_b32 v{vtmp}, s{sT}")
    A(f"v_mov_b32 v{vzero}, 0")
    A("s_mov_b64 exec, 1")
    A(f"buffer_store_dword v{vtmp}, v{vzero}, {WSRD}, s{soff} offen sc1")
    A("s_mov_b64 exec, -1")

def get_tag(A, vt=126, vd=None):
    L = A.newlabel("GT")
    A(f"v_mov_b32 v{vt}, {C_T}")
    A("s_mov_b32 s43, 0")
    A.label(L)
    A(f"ds_read_b32 v{vE}, v{vt}")
    A("s_add_u32 s43, s43, 1")
    A("s_waitcnt lgkmcnt(0)")
    A(f"v_readfirstlane_b32 s{sT}, v{vE}")
    A("s_cmp_gt_u32 s43, 0x80000")
    A(f"s_cbranch_scc1 {L}_x")
    A(f"s_cmp_eq_u32 s{sT}, 0")
    A(f"s_cbranch_scc1 {L}")
    A.label(L + "_x")

def make_tag(A):
    A(f"v_readfirstlane_b32 s{sT}, v{vE}")
    A("s_nop 3")
    A(f"s_mul_i32 s{sT}, s{sT}, 0x9e3779b1")
    A(f"s_add_u32 s{sT}, s{sT}, 0x7f4a7c15")
    A(f"s_or_b32 s{sT}, s{sT}, 1")
    A(f"v_mov_b32 v{vE}, s{sT}")
    A(f"v_mov_b32 v126, {C_T}")
    A(f"ds_write_b32 v126, v{vE}")

def gsync(A, cnt_addr, target, vt):
    A("s_waitcnt lgkmcnt(0)")
    lsig(A, cnt_addr, vt)
    lwait(A, cnt_addr, target, vt, sleep=int(os.environ.get('GSL', 0)))

def lsig(A, addr, vt):
    A(f"v_mov_b32 v{vt}, {addr}")
    A(f"v_mov_b32 v{vt+1}, 1")
    A("s_mov_b64 exec, 1")
    A(f"ds_add_u32 v{vt}, v{vt+1}")
    A("s_mov_b64 exec, -1")

def lwait(A, addr, target, vt, sleep=0):
    L = A.newlabel("LW")
    A(f"v_mov_b32 v{vt}, {addr}")
    A("s_mov_b32 s43, 0")
    A.label(L)
    A(f"ds_read_b32 v{vt+1}, v{vt}")
    A("s_add_u32 s43, s43, 1")
    A("s_waitcnt lgkmcnt(0)")
    A(f"v_readfirstlane_b32 s42, v{vt+1}")
    A("s_cmp_gt_u32 s43, 0x80000")
    A(f"s_cbranch_scc1 {L}_x")
    A(f"s_cmp_ge_u32 s42, {target}")
    if sleep:
        A(f"s_cbranch_scc1 {L}_x")
        A(f"s_sleep {sleep}")
        A(f"s_branch {L}")
    else:
        A(f"s_cbranch_scc0 {L}")
    A.label(L + "_x")

def merge(*chains):
    out = []; idx = [0] * len(chains)
    while any(idx[i] < len(chains[i]) for i in range(len(chains))):
        for i, ch in enumerate(chains):
            if idx[i] < len(ch):
                out.append(ch[idx[i]]); idx[i] += 1
    return out

class Rec:
    def __init__(self): self.L = []
    def __call__(self, s): self.L.append(s)

def chan_pair(A, dst, tmp):
    A(f"s_and_b32 s{dst}, s2, 7"); A(f"s_lshl_b32 s{dst}, s{dst}, 5"); A(f"s_lshr_b32 s{tmp}, s2, 3")
    A(f"s_add_u32 s{dst}, s{dst}, s{tmp}"); A(f"s_lshl_b32 s{dst}, s{dst}, 1")

def ka_wait(A):
    A("s_waitcnt lgkmcnt(0)")
    if PROF: A("s_mov_b32 s91, s38")
    srd(A, sWS, SP['ws'], WS_TOTAL)

def p1_ids(A):
    A("s_and_b32 s17, s2, 7")
    A("s_lshr_b32 s18, s2, 3")
    A("s_and_b32 s12, s17, 3")
    A("s_lshl_b32 s12, s12, 2")
    A("s_and_b32 s19, s18, 3")
    A("s_add_u32 s12, s12, s19")
    A("s_lshr_b32 s13, s17, 2")
    A("s_lshl_b32 s13, s13, 3")
    A("s_lshr_b32 s19, s18, 2")
    A("s_add_u32 s13, s13, s19")

def conv_part(A, p, vUA, vKB0, vKB1, ACC0, ACC1):
    ks = list({0: range(0, 24), 1: range(24, 48), 2: range(48, 80), 3: range(80, 128)}[p])
    q = DSQ(A)
    NB = 4
    FA, FB0, FB1 = 8, 24, 40
    def rds(i):
        k = ks[i]; b = i % NB
        off = (k//2)*80 + (k%2)*32
        L = [(f"ds_read_b64 {v(FA+4*b,2)}, v{vUA} offset:{32*k}", ("a0", i)),
             (f"ds_read_b64 {v(FA+4*b+2,2)}, v{vUA} offset:{32*k+8}", ("a1", i)),
             (f"ds_read_b128 {v(FB1+4*b,4)}, v{vKB1} offset:{off}", ("b1", i))]
        if k < 64: L.append((f"ds_read_b128 {v(FB0+4*b,4)}, v{vKB0} offset:{off}", ("b0", i)))
        return L
    def emit(L):
        for ins, tag in L: A(ins); q.issue(tag)
    n = len(ks)
    for i in range(min(NB-1, n)): emit(rds(i))
    first0 = first1 = True
    for i in range(n):
        nxt = rds(i + NB - 1) if i + NB - 1 < n else []
        k = ks[i]; b = i % NB
        q.wait(("b1", i))
        A(f"v_mfma_f32_32x32x16_bf16 {v(ACC1,16)}, {v(FA+4*b,4)}, {v(FB1+4*b,4)}, {'0' if first1 else v(ACC1,16)}"); first1 = False
        if k < 64:
            emit(nxt[:2])
            q.wait(("b0", i))
            A(f"v_mfma_f32_32x32x16_bf16 {v(ACC0,16)}, {v(FA+4*b,4)}, {v(FB0+4*b,4)}, {'0' if first0 else v(ACC0,16)}"); first0 = False
            emit(nxt[2:])
        else:
            emit(nxt)

vY = [90, 91, 126, 127]

def p1_loader(A):
    vDX, vDX1, vDW = 2, 3, 5
    A("s_sub_u32 s15, s3, 4")
    A("s_setprio 3")
    A("v_lshrrev_b32 v9, 3, v0")
    A("v_lshrrev_b32 v10, 1, v9")
    A("v_xor_b32 v10, v10, v0")
    A("v_and_b32 v10, 7, v10")
    A("v_lshlrev_b32 v10, 4, v10")
    A(f"v_lshl_add_u32 v{vDX}, v9, 10, v10")
    A(f"v_xor_b32 v{vDX1}, 64, v{vDX}")
    A("s_lshl_b32 s20, s12, 17")
    A("s_lshl_b32 s17, s15, 14")
    A("s_add_u32 s20, s20, s17")
    A("s_lshl_b32 s21, s13, 6")
    A("s_lshl_b32 s22, s15, 11")
    A("s_lshl_b32 s23, s15, 10")
    A("s_add_u32 s23, s23, 16384")
    A("s_lshr_b32 s25, s2, 5")
    A("s_lshr_b32 s17, s2, 3")
    A("s_and_b32 s17, s17, 3")
    A("s_lshl_b32 s17, s17, 1")
    A("s_add_u32 s25, s25, s17")
    A("s_waitcnt lgkmcnt(0)")
    srd(A, 4, SP['x'], 2048*512*2)
    srd(A, 8, SP['wqkv'], 512*1536*2)
    def issue_x(c):
        slot = (c % NSLOT) * SLOT
        A(f"s_add_u32 s26, s25, {c}")
        A("s_and_b32 s26, s26, 7")
        A(f"s_lshl_b32 s24, s26, 7")
        A(f"s_add_u32 s24, s24, s20")
        A(f"s_add_u32 m0, s22, {slot}")
        A(f"s_mul_i32 s27, s26, {64*3072}")
        A(f"buffer_load_dwordx4 v{vDX}, s[4:7], s24 offen lds")
        A(f"s_add_u32 m0, s22, {slot + 1024}")
        A(f"s_add_u32 s24, s24, 8192")
        A(f"buffer_load_dwordx4 v{vDX1}, s[4:7], s24 offen lds")
    def issue_w(c, nw):
        slot = (c % NSLOT) * SLOT
        A(f"s_add_u32 m0, s23, {slot}")
        A(f"s_add_u32 s27, s27, s21")
        A(f"buffer_load_dwordx4 v{vDW}, s[8:11], s27 offen lds")
        if nw == 2:
            A(f"s_add_u32 m0, s23, {slot + 8192}")
            A("s_nop 0")
            A(f"buffer_load_dwordx4 v{vDW+1}, s[8:11], s27 offen lds")
    def wsetup():
        A("s_lshl_b32 s17, s15, 6")
        A("s_movk_i32 s18, 3072")
        A("s_mov_b32 s19, 43691")
        for i in range(2):
            A(f"v_add_u32 v9, s17, v0")
            if i: A(f"v_add_u32 v9, 512, v9")
            A("v_mul_u32_u24 v10, s19, v9")
            A("v_lshrrev_b32 v10, 19, v10")
            A("v_mul_u32_u24 v11, 12, v10")
            A("v_sub_u32 v11, v9, v11")
            A("v_lshrrev_b32 v12, 2, v10")
            A("v_and_b32 v12, 2, v12")
            A("v_xor_b32 v11, v11, v12")
            A("v_lshrrev_b32 v12, 2, v11")
            A("v_and_b32 v11, 3, v11")
            A("v_lshlrev_b32 v11, 4, v11")
            A("v_lshl_add_u32 v11, v12, 10, v11")
            A(f"v_mad_u32_u24 v{vDW+i}, v10, s18, v11")
    def gtab():
        A("s_getpc_b64 s[32:33]")
        L = A.newlabel("CPC"); A.label(L)
        A(f"s_add_u32 s32, s32, GTAB-{L}")
        A("s_addc_u32 s33, s33, 0")
        A("s_and_b32 s17, s15, 3"); A("s_lshl_b32 s17, s17, 11")
        A("v_lshlrev_b32 v14, 5, v0")
        A("v_add_u32 v14, s17, v14")
        A("global_load_dwordx4 v[96:99], v14, s[32:33]")
        A("global_load_dwordx4 v[100:103], v14, s[32:33] offset:16")
    def ut_loads():
        A("buffer_load_dwordx4 v[108:111], v117, s[32:35], 0 offen sc1")
        A("buffer_load_dwordx4 v[112:115], v116, s[32:35], 0 offen sc1")
        A("buffer_load_dwordx4 v[120:123], v119, s[32:35], 0 offen sc1")
    def ut_prep():
        chan_pair(A, 14, 17)
        A("s_lshr_b32 s16, s15, 2")
        A("s_add_u32 s17, s14, s16")
        A("s_lshl_b32 s17, s17, 12")
        A(f"s_add_u32 s17, s17, {WS_UT}")
        ka_wait(A)
        A(f"s_add_u32 s32, s{SP['ws']}, s17"); A(f"s_addc_u32 s33, s{SP['ws']+1}, 0")
        A("s_mov_b32 s34, 4096"); A("s_mov_b32 s35, 0x00020000")
        A("s_and_b32 s19, s15, 3"); A("s_lshl_b32 s19, s19, 10")
        A(f"v_add_u32 v116, s19, v{vL16}")
        A("v_subrev_u32 v117, 16, v116")
        A("v_cmp_eq_u32 vcc, 0, v116")
        A("v_mov_b32 v118, 4096")
        A("s_nop 0")
        A("v_cndmask_b32 v117, v117, v118, vcc")
        A("v_mov_b32 v119, 4096")
        A(f"v_mov_b32 v120, {255*16}")
        A("v_cmp_eq_u32 vcc, 3, v0")
        A("s_nop 1")
        A("v_cndmask_b32 v119, v119, v120, vcc")
    def loop(nw):
        per = 2 + nw
        issue_w(0, nw)
        if os.environ.get("EARLY") == "2": A("s_barrier")
        issue_x(1); issue_w(1, nw)
        for c in range(8):
            last = min(7, c + 1)
            if c != 7: A(f"s_waitcnt vmcnt({per * (last - c)})")
            A("s_barrier")
            if c + AHEAD < 8:
                issue_x(c + AHEAD); issue_w(c + AHEAD, nw)
            if c == 5: ut_prep()
            if c == 6:
                L = A.newlabel("CVC")
                A(f"v_mov_b32 v30, {C_FU}")
                A("ds_read_b32 v31, v30")
                A("s_waitcnt lgkmcnt(0)")
                A("v_readfirstlane_b32 s40, v31")
                A("s_nop 0")
                A("s_cmp_eq_u32 s40, 0")
                A(f"s_cbranch_scc1 {L}")
                ut_loads()
                A("s_waitcnt vmcnt(3)")
                A(f"s_branch {L}b")
                A.label(L)
                A("s_waitcnt vmcnt(0)")
                A.label(L + "b")
    issue_x(0)
    if os.environ.get("EARLY") == "1": A("s_barrier")
    wsetup()
    A("s_cmp_ge_u32 s15, 4")
    A("s_cbranch_scc1 P1_LOADER1")
    loop(2)
    A("s_branch P1_LOADER_END")
    A.label("P1_LOADER1")
    loop(1)
    A.label("P1_LOADER_END")
    A("s_setprio 1")
    stamp(A, 28)
    if os.environ.get("X_P1ONLY"): A("s_branch K_FIN")
    A("s_cmp_lg_u32 s40, 0")
    A("s_cbranch_scc1 CV_HAVE")
    lwait(A, C_FU, 1, 72, sleep=1)
    ut_loads()
    A.label("CV_HAVE")
    get_tag(A, vt=30)
    def copies(D, dest):
        T0, T1, T2 = 44, 48, 52
        for j in range(4): A(f"v_alignbit_b32 v{T0+j}, v{D+j+1}, v{D+j}, 16")
        for j in range(4): A(f"v_mov_b32 v{T1+j}, v{D+1+j}")
        for j in range(4): A(f"v_alignbit_b32 v{T2+j}, v{D+j+2}, v{D+j+1}, 16")
        A(f"ds_write_b128 v{dest}, {v(T0,4)}")
        A(f"ds_write_b128 v{dest}, {v(T1,4)} offset:{UC_RHO}")
        A(f"ds_write_b128 v{dest}, {v(T2,4)} offset:{2*UC_RHO}")
        A(f"ds_write_b128 v{dest}, {v(D+2,4)} offset:{3*UC_RHO}")
    A("s_lshr_b32 s16, s15, 2")
    A(f"s_mul_i32 s21, s16, {UC_CH}")
    A(f"s_add_u32 s21, s21, {L_UC + 48}")
    A("v_add_u32 v19, s21, v116")
    A(f"s_mul_i32 s23, s16, {KREV_SZ}")
    A(f"s_add_u32 s23, s23, {L_KREV}")
    A("v_and_b32 v9, 31, v0")
    A("v_lshrrev_b32 v10, 5, v0")
    A("v_and_b32 v11, 3, v9")
    A(f"v_mul_u32_u24 v11, {UC_RHO}, v11")
    A("v_lshrrev_b32 v12, 2, v9")
    A("v_lshl_add_u32 v11, v12, 3, v11")
    A("v_lshl_add_u32 v11, v10, 4, v11")
    A(f"s_mul_i32 s24, s16, {UC_CH}")
    A(f"s_add_u32 s24, s24, {L_UC}")
    A("v_add_u32 v4, s24, v11")
    A("v_sub_u32 v11, 63, v9")
    A("v_mul_u32_u24 v11, 80, v11")
    A("v_lshl_add_u32 v11, v10, 4, v11")
    A("v_add_u32 v5, s23, v11")
    A("v_subrev_u32 v6, 2560, v5")
    A("s_and_b32 s24, s15, 3")
    A(f"s_mul_i32 s25, s16, 28672")
    A("s_lshl_b32 s26, s24, 12")
    A("s_add_u32 s25, s25, s26")
    A(f"s_add_u32 s25, s25, {L_PART}")
    A(f"v_add_u32 v7, s25, v{vL16}")
    A("s_waitcnt vmcnt(0)")
    copies(108, 19)
    A("s_cmp_eq_u32 s19, 0")
    A("s_cbranch_scc0 CV_NOX2")
    for j in range(4): A(f"v_mov_b32 v{56+j}, v{120+j}")
    for j in range(4): A(f"v_mov_b32 v{60+j}, 0")
    A(f"v_mov_b32 v30, {259*16}")
    A("v_cmp_eq_u32 vcc, 3, v0")
    A("s_sub_u32 s21, s21, 48")
    A(f"v_cndmask_b32 v30, v{vL16}, v30, vcc")
    A("v_add_u32 v30, s21, v30")
    A("s_mov_b64 exec, 15")
    copies(56, 30)
    A("s_mov_b64 exec, -1")
    A.label("CV_NOX2")
    gsync(A, C_CV, 8, 8)
    stamp(A, 30)
    ACC0, ACC1 = 56, 72
    for p in range(4):
        if p < 3:
            A(f"s_cmp_eq_u32 s24, {p}")
            A(f"s_cbranch_scc0 CV_P{p+1}")
        conv_part(A, p, 4, 5, 6, ACC0, ACC1)
        A("s_nop 15")
        for qd in range(4):
            A(f"ds_write_b128 v7, {v(ACC1+4*qd,4)} offset:{qd*1024}")
        if p < 3:
            for qd in range(4):
                A(f"ds_write_b128 v7, {v(ACC0+4*qd,4)} offset:{16384 + qd*1024}")
            A("s_branch CV_PE")
            A.label(f"CV_P{p+1}")
    A.label("CV_PE")
    stamp(A, 31)
    gsync(A, C_CV, 16, 8)
    stamp(A, 32)
    A("s_lshl_b32 s26, s24, 10")
    A(f"s_add_u32 s26, s26, {L_PART}")
    A(f"v_add_u32 v4, s26, v{vL16}")
    A("s_cmp_eq_u32 s16, 0")
    A("s_cbranch_scc1 CV_F0")
    for c in range(2):
        for p in range(4):
            A(f"ds_read_b128 {v(16+16*c+4*p,4)}, v4 offset:{c*28672 + p*4096}")
    A("s_waitcnt lgkmcnt(0)")
    for c in range(2):
        for r in range(4):
            b_ = 16 + 16*c + r
            A(f"v_add_f32 v{b_}, v{b_}, v{b_+4}"); A(f"v_add_f32 v{b_+8}, v{b_+8}, v{b_+12}")
        for r in range(4):
            b_ = 16 + 16*c + r
            A(f"v_add_f32 v{b_}, v{b_}, v{b_+8}")
    A("s_branch CV_F1")
    A.label("CV_F0")
    for c in range(2):
        for p in range(3):
            A(f"ds_read_b128 {v(16+16*c+4*p,4)}, v4 offset:{c*28672 + 16384 + p*4096}")
    A("s_waitcnt lgkmcnt(0)")
    for c in range(2):
        for r in range(4):
            b_ = 16 + 16*c + r
            A(f"v_add_f32 v{b_}, v{b_}, v{b_+4}")
        for r in range(4):
            b_ = 16 + 16*c + r
            A(f"v_add_f32 v{b_}, v{b_}, v{b_+8}")
    A.label("CV_F1")
    for r in range(4):
        A(f"v_cvt_pk_bf16_f32 v{vY[r]}, v{16+r}, v{32+r}")
    A("s_lshl_b32 s36, s16, 21")
    A("s_lshl_b32 s25, s24, 14")
    A("s_add_u32 s36, s36, s25")
    A("s_lshl_b32 s25, s14, 1")
    A("s_add_u32 s36, s36, s25")
    A("s_setprio 0")
    stamp(A, 33)

def p1_compute(A):
    vFR, vACC, vXA, vWA = 8, 64, 112, 118
    A("v_and_b32 v4, 15, v0")
    A("v_lshrrev_b32 v5, 4, v0")
    A("v_lshrrev_b32 v6, 1, v4")
    A("v_xor_b32 v6, v6, v5")
    A("v_lshlrev_b32 v6, 4, v6")
    A("v_lshl_add_u32 v6, v4, 7, v6")
    A("s_lshr_b32 s17, s3, 1")
    A("s_lshl_b32 s17, s17, 13")
    A(f"v_add_u32 v{vXA}, s17, v6")
    A(f"v_xor_b32 v{vXA+1}, 64, v{vXA}")
    for st in (1, 2):
        A(f"v_add_u32 v{vXA+2*st}, {st*2*SLOT}, v{vXA}")
        A(f"v_add_u32 v{vXA+2*st+1}, {st*2*SLOT}, v{vXA+1}")
    A("v_lshrrev_b32 v6, 2, v4")
    A("v_lshl_add_u32 v6, v5, 3, v6")
    A("v_mul_u32_u24 v6, 192, v6")
    A("v_and_b32 v7, 3, v4")
    A("v_lshl_add_u32 v6, v7, 3, v6")
    A("s_and_b32 s17, s3, 1")
    A("v_xor_b32 v7, s17, v5")
    A("v_and_b32 v7, 1, v7")
    A(f"v_lshl_add_u32 v{vWA}, v7, 5, v6")
    A(f"v_add_u32 v{vWA+1}, {2*SLOT}, v{vWA}")
    A(f"v_add_u32 v{vWA+2}, {4*SLOT}, v{vWA}")
    A("s_and_b32 s18, s3, 1")
    A("s_lshl_b32 s19, s13, 1")
    A("s_add_u32 s18, s18, s19")
    A(f"s_lshl_b32 s16, s18, {5+FS}")
    A("s_lshl_b32 s18, s18, 16")
    A("s_lshr_b32 s19, s3, 1")
    A("s_lshl_b32 s24, s12, 1")
    A("s_add_u32 s24, s24, s19")
    A(f"s_lshl_b32 s25, s24, {FS}")
    A("s_add_u32 s16, s16, s25")
    A(f"s_add_u32 s16, s16, {WS_F1}")
    A("s_lshl_b32 s19, s24, 11")
    A("s_add_u32 s18, s18, s19")
    A(f"s_mov_b32 s17, 0x{f32bits(C_SCALE):08x}")
    A("s_setprio 3")
    q = DSQ(A)
    def fr(buf): return vFR + 28 * buf
    def rd_list(step):
        c, ks2 = step // 2, step % 2
        slot = c % NSLOT
        st, so = slot // 2, (slot % 2) * SLOT
        b = fr(step % 2)
        L = []
        for hf in range(2):
            L.append((f"ds_read_b64_tr_b16 {v(b+16+2*hf,2)}, v{vWA+st} offset:{so + 16384 + (32*ks2+4*hf)*192}", ("w", step, 0, hf)))
        for ti in range(4):
            L.append((f"ds_read_b128 {v(b+4*ti,4)}, v{vXA+2*st+ks2} offset:{so + ti*2048}", ("x", step, ti)))
        for gi in range(1, 3):
            for hf in range(2):
                L.append((f"ds_read_b64_tr_b16 {v(b+16+4*gi+2*hf,2)}, v{vWA+st} offset:{so + 16384 + (32*ks2+4*hf)*192 + 64*gi}", ("w", step, gi, hf)))
        return L
    def rd(step):
        for ins, tag in rd_list(step):
            A(ins); q.issue(tag)
    def mm(step, nxt=None):
        b = fr(step % 2)
        R = rd_list(nxt) if nxt is not None else []
        if os.environ.get("X_BURST"):
            for ins, tag in R:
                A(ins); q.issue(tag)
            R = []
        n = 0
        for gi in range(3):
            for ti in range(4):
                acc = vACC + (gi*4 + ti)*4
                X = v(b+4*ti, 4); W = v(b+16+4*gi, 4)
                cc = "0" if step == 0 else v(acc, 4)
                if gi == 0: q.wait(("x", step, ti))
                if ti == 0: q.wait(("w", step, gi, 1))
                if gi < 2: A(f"v_mfma_f32_16x16x32_bf16 {v(acc,4)}, {W}, {X}, {cc}")
                else:      A(f"v_mfma_f32_16x16x32_bf16 {v(acc,4)}, {X}, {W}, {cc}")
                if n < len(R):
                    A(R[n][0]); q.issue(R[n][1])
                n += 1
    kg_scalars(A, 3, 20, False)
    A(f"s_mul_i32 s21, s22, {L_TCH}")
    A("s_lshl_b32 s23, s24, 8")
    A("s_add_u32 s21, s21, s23")
    A(f"s_add_u32 s21, s21, {L_TA + L_TBO}")
    A("v_lshlrev_b32 v8, 2, v0")
    A("v_add_u32 v8, s21, v8")
    lwait(A, C_PAR, 4, 22, sleep=1)
    kg_read(A, 22, 24, 2, 21)
    A("s_cmp_eq_u32 s22, 0")
    A("s_cselect_b32 s21, 16, 0")
    A("s_lshl_b32 s26, s26, s21"); A("s_and_b32 s26, s26, 0xffff0000")
    kg_setup(A, 26, 21, False)
    kg_bside(A, 8)
    A("s_waitcnt lgkmcnt(0)")
    lsig(A, C_G, 2)
    stamp(A, 9)
    A("v_and_b32 v80, 15, v0")
    A("v_lshrrev_b32 v81, 4, v0")
    A("v_lshrrev_b32 v82, 2, v80")
    A("v_lshl_add_u32 v82, v81, 3, v82")
    A("v_lshlrev_b32 v84, 5, v82")
    A("v_lshlrev_b32 v82, 7, v82")
    A("v_and_b32 v83, 3, v80")
    A("v_lshl_add_u32 v82, v83, 3, v82")
    A("v_lshl_add_u32 v84, v83, 3, v84")
    A(f"v_add_u32 v84, {L_WOT}, v84")
    A("s_lshl_b32 s20, s3, 5")
    A(f"s_add_u32 s20, s20, {L_UTL}")
    A("v_add_u32 v82, s20, v82")
    A("v_lshlrev_b32 v83, 12, v80")
    A("v_lshl_add_u32 v83, v81, 4, v83")
    A("s_and_b32 s20, s2, 7"); A("s_lshl_b32 s20, s20, 2"); A("s_add_u32 s20, s20, s3")
    A(f"s_lshl_b32 s21, s20, {5+FS}")
    A("s_lshl_b32 s20, s20, 16")
    A("s_lshr_b32 s22, s2, 3")
    A("s_lshl_b32 s23, s22, 7")
    A("s_add_u32 s20, s20, s23")
    A(f"s_add_u32 s20, s20, {WS_UT}")
    A(f"s_lshl_b32 s23, s22, {FS}")
    A("s_add_u32 s21, s21, s23")
    A(f"s_add_u32 s21, s21, {WS_FU}")
    A("s_lshr_b32 s24, s2, 3"); A(f"s_lshl_b32 s22, s24, {3+FS}"); A("s_lshl_b32 s24, s24, 14")
    A("s_and_b32 s19, s2, 7"); A(f"s_lshl_b32 s23, s19, {FS}"); A("s_lshl_b32 s19, s19, 11")
    A("s_add_u32 s24, s24, s19")
    A(f"s_add_u32 s24, s24, {WS_WOF}")
    A("s_add_u32 s22, s22, s23")
    A(f"s_add_u32 s22, s22, {WS_F3}")
    lwait(A, C_GU, 4, 86, sleep=1)
    for p in range(2):
        for hf in range(2):
            A(f"ds_read_b64_tr_b16 {v(64+4*p+2*hf,2)}, v82 offset:{(32*p+4*hf)*128}")
    for s_ in range(2):
        for hf in range(2):
            A(f"ds_read_b64_tr_b16 {v(72+4*s_+2*hf,2)}, v84 offset:{(32*s_+4*hf)*32}")
    A("s_waitcnt lgkmcnt(0)")
    stamp(A, 25)
    A(f"buffer_store_dwordx4 v[64:67], v83, {WSRD}, s20 offen sc1")
    A(f"buffer_store_dwordx4 v[68:71], v83, {WSRD}, s20 offen offset:64 sc1")
    A("s_cmp_eq_u32 s3, 0")
    A("s_cbranch_scc0 PC_NW")
    A(f"buffer_store_dwordx4 v[72:75], v{vL16}, {WSRD}, s24 offen sc1")
    A(f"buffer_store_dwordx4 v[76:79], v{vL16}, {WSRD}, s24 offen offset:1024 sc1")
    A.label("PC_NW")
    get_tag(A)
    stamp(A, 19)
    for c in range(8):
        A("s_barrier")
        if c in (0, 7): stamp(A, 10 if c == 0 else 17)
        if c == int(os.environ.get("CFL", 1)):
            A("s_waitcnt vmcnt(0)")
            flag_store(A, 21, 2, 3)
            A("s_cmp_eq_u32 s3, 0")
            A("s_cbranch_scc0 PC_NF")
            flag_store(A, 22, 2, 3)
            A.label("PC_NF")
        if c == 0: rd(0)
        else: mm(2*c - 1, 2*c)
        mm(2*c, 2*c + 1)
        q.drain()
    lsig(A, C_DONE(7), 4)
    mm(15)
    stamp(A, 1)
    T = vFR
    n = 0
    for gi, base in ((1, WS_K), (2, WS_V), (0, WS_Q)):
        if gi == 0:
            for ti in range(4):
                for r in range(4):
                    A(f"v_mul_f32 v{vACC+ti*4+r}, s17, v{vACC+ti*4+r}")
        for pair in range(2):
            a0 = vACC + (gi*4 + 2*pair)*4; a1 = a0 + 4
            t = T + 4 * n; n += 1
            A(f"v_cvt_pk_bf16_f32 v{t}, v{a0}, v{a0+1}")
            A(f"v_cvt_pk_bf16_f32 v{t+1}, v{a0+2}, v{a0+3}")
            A(f"v_cvt_pk_bf16_f32 v{t+2}, v{a1}, v{a1+1}")
            A(f"v_cvt_pk_bf16_f32 v{t+3}, v{a1+2}, v{a1+3}")
            A(f"s_add_u32 s24, s18, {base + pair*1024}")
            A("s_nop 0")
            op = "v_permlane32_swap_b32" if gi == 2 else "v_permlane16_swap_b32"
            A(f"{op} v{t}, v{t+2}")
            A(f"{op} v{t+1}, v{t+3}")
            A("s_nop 1")
            A(f"buffer_store_dwordx4 {v(t,4)}, v{vL16}, {WSRD}, s24 offen sc1")
    stamp(A, 18)
    A("s_waitcnt vmcnt(0)")
    get_tag(A)
    flag_store(A, 16, 2, 3)
    lsig(A, C_OWN, 2)
    A("s_setprio 0")
    stamp(A, 2)
    if os.environ.get("X_P1ONLY"): A("s_branch K_FIN")

def cmul(A, D, X, S, T):
    A(f"v_pk_mul_f32 {v(T,2)}, {v(X,2)}, {v(S,2)} op_sel:[0,0] op_sel_hi:[1,0]")
    A(f"v_pk_fma_f32 {v(D,2)}, {v(X,2)}, {v(S,2)}, {v(T,2)} op_sel:[1,1,0] op_sel_hi:[0,1,1] neg_lo:[0,1,0]")

def fl(p): return f"{float(p)!r}" if p in (1, 2, 4) else f"0x{f32bits(float(p)):08x}"
def anchor(A, D, p, vt2, vw, tmp, conj=False):
    A(f"v_mul_f32 v{tmp}, {fl(p)}, v{vt2}")
    A(f"v_mul_f32 v{tmp+1}, {fl(p)}, v{vw}")
    A(f"v_exp_f32 v{tmp}, v{tmp}")
    A(f"v_fract_f32 v{tmp+1}, v{tmp+1}")
    A(f"v_cos_f32 v{D}, v{tmp+1}")
    A(f"v_sin_f32 v{D+1}, v{tmp+1}")
    A("s_nop 0")
    A(f"v_mul_f32 v{D}, v{D}, v{tmp}")
    if conj: A(f"v_mul_f32_e64 v{D+1}, -v{D+1}, v{tmp}")
    else: A(f"v_mul_f32 v{D+1}, v{D+1}, v{tmp}")

def kg_scalars(A, kw_sreg, s0, dsk):
    chan_pair(A, s0, s0+1)
    A(f"s_lshr_b32 s{s0+2}, s{kw_sreg}, 1")
    A(f"s_and_b32 s{s0+4}, s{kw_sreg}, 1")
    A(f"s_lshl_b32 s{s0+1}, s{s0}, 1")
    A(f"s_add_u32 s{s0+8}, s{SP['ldt']}, s{s0+1}"); A(f"s_addc_u32 s{s0+9}, s{SP['ldt']+1}, 0")
    A(f"s_load_dword s{s0+6}, s[{s0+8}:{s0+9}], 0")
    if dsk:
        A(f"s_add_u32 s{s0+10}, s{SP['dsk']}, s{s0+1}"); A(f"s_addc_u32 s{s0+11}, s{SP['dsk']+1}, 0")
        A(f"s_load_dword s{s0+7}, s[{s0+10}:{s0+11}], 0")

def kg_read(A, s_c, s_mh, narr, s_tmp):
    A(f"s_lshl_b32 s{s_tmp}, s{s_c}, 8")
    A(f"v_lshlrev_b32 v9, 1, v0")
    A(f"v_add_u32 v9, s{s_tmp}, v9")
    A(f"s_lshl_b32 s{s_tmp}, s{s_mh}, 7")
    A(f"s_add_u32 s{s_tmp}, s{s_tmp}, {L_PAR}")
    A(f"v_add_u32 v9, s{s_tmp}, v9")
    for i in range(narr):
        A(f"ds_read_u16 v{10+i}, v9 offset:{512*i}")
    A("s_waitcnt lgkmcnt(0)")

def kg_setup(A, s_ldt, s_tmp, full):
    vt2, vw, vY0, tmp = 16, 17, 18, 20
    A(f"s_mov_b32 s{s_tmp}, 0x{f32bits(LOG2E):08x}")
    A(f"v_mov_b32 v{tmp}, s{s_ldt}")
    A(f"v_lshlrev_b32 v10, 16, v10")
    A(f"v_mul_f32 v{tmp}, s{s_tmp}, v{tmp}")
    A(f"v_mul_f32 v10, s{s_tmp}, v10")
    A(f"v_exp_f32 v{tmp}, v{tmp}")
    A(f"v_exp_f32 v10, v10")
    A(f"v_lshlrev_b32 v11, 16, v11")
    A(f"v_cvt_pk_bf16_f32 v{tmp}, v{tmp}, v10")
    if full: A(f"v_lshlrev_b32 v12, 16, v12")
    A(f"v_and_b32 v10, 0xffff0000, v{tmp}")
    A(f"v_lshlrev_b32 v{tmp}, 16, v{tmp}")
    if full: A(f"v_lshlrev_b32 v13, 16, v13")
    A(f"v_mul_f32 v10, v10, v{tmp}")
    A(f"v_mul_f32 v11, v11, v{tmp}")
    A(f"v_mul_f32 v{vt2}, 0x{f32bits(-LOG2E):08x}, v10")
    A(f"v_mul_f32 v{vw}, 0x{f32bits(INV2PI):08x}, v11")
    if full:
        A(f"v_add_f32 v{tmp}, v{tmp}, v{tmp}")
        A(f"v_mul_f32 v{vY0}, v12, v{tmp}")
        A(f"v_mul_f32_e64 v{vY0+1}, -v13, v{tmp}")

def kg_bside(A, vaddr):
    vt2, vw = 16, 17
    X = [24 + 2*j for j in range(8)]
    S = 40
    T = [42 + 2*j for j in range(8)]
    PK = [58 + j for j in range(8)]
    anchor(A, X[1], 8, vt2, vw, 42)
    A(f"v_mov_b32 v{X[0]}, 1.0"); A(f"v_mov_b32 v{X[0]+1}, 0")
    cmul(A, X[2], X[1], X[1], T[0])
    r1, r2 = Rec(), Rec()
    cmul(r1, X[3], X[1], X[2], T[0]); cmul(r2, X[4], X[2], X[2], T[1])
    for ins in merge(r1.L, r2.L): A(ins)
    rr = [Rec() for _ in range(4)]
    cmul(rr[0], X[5], X[4], X[1], T[0]); cmul(rr[1], X[6], X[4], X[2], T[1]); cmul(rr[2], X[7], X[4], X[3], T[2]); cmul(rr[3], S, X[4], X[4], T[3])
    for ins in merge(*[r.L for r in rr]): A(ins)
    for lvl in range(4):
        for j in range(8): A(f"v_cvt_pk_bf16_f32 v{PK[j]}, v{X[j]}, v{X[j]+1}")
        if lvl < 3:
            ch = [Rec() for _ in range(8)]
            for j in range(8): cmul(ch[j], X[j], X[j], S, T[j])
            mm_ = merge(*[c.L for c in ch])
        else: mm_ = []
        wr = [f"ds_write_b32 v{vaddr}, v{PK[j]} offset:{(8*lvl + j)*528}" for j in range(8)]
        for ins in merge(mm_[:8], wr): A(ins)
        for ins in mm_[8:]: A(ins)

def kg_aside(A, vaddr):
    vt2, vw, Y0 = 16, 17, 18
    F1, F256, F2, F4, F512 = 24, 26, 28, 30, 32
    r2, r3 = Rec(), Rec()
    anchor(r2, F1, 1, vt2, vw, 48, conj=True)
    anchor(r3, F256, 256, vt2, vw, 50, conj=True)
    for ins in merge(r2.L, r3.L): A(ins)
    R = {}
    regs = iter(list(range(60, 96, 2)) + list(range(104, 124, 2)))
    def new(row): R[row] = next(regs); return R[row]
    T = [34, 36, 38, 40, 42, 44, 46]
    def level(items):
        ch = []
        for k, (row, x, s_) in enumerate(items):
            r = Rec(); d = new(row) if isinstance(row, int) else row[0]
            cmul(r, d, x, s_, T[k % 7]); ch.append(r.L)
        for ins in merge(*ch): A(ins)
    R[0] = Y0
    level([((F2,), F1, F1), ((F512,), F256, F256), (1, Y0, F1), (8, Y0, F256)])
    level([((F4,), F2, F2), (2, Y0, F2), (3, R[1], F2), (9, R[8], F2), (12, R[8], F256), (14, R[8], F512)])
    level([(4, Y0, F4), (5, R[1], F4), (6, R[2], F4), (7, R[3], F4), (10, R[9], F2), (16, R[12], F512), (17, R[14], F512)])
    level([(11, R[10], F2), (13, R[12], F4), (15, R[14], F4), (18, R[16], F512), (19, R[17], F512)])
    level([(20, R[18], F512)])
    pk = [52, 53, 54, 55, 56, 57, 58, 59]
    rows = list(range(21))
    for n, row in enumerate(rows):
        A(f"v_cvt_pk_bf16_f32 v{pk[n % 8]}, v{R[row]}, v{R[row]+1}")
        if n >= 1: A(f"ds_write_b32 v{vaddr}, v{pk[(n-1) % 8]} offset:{rows[n-1]*528}")
    A(f"ds_write_b32 v{vaddr}, v{pk[20 % 8]} offset:{20*528}")

L_WOT = 57344 + 2048
def kgen_pre(A):
    A("s_sub_u32 s15, s3, 12")
    A("s_setprio 3")
    chan_pair(A, 14, 17)
    A("s_lshl_b32 s17, s14, 8")
    A("s_lshl_b32 s18, s15, 9")
    A("s_mov_b32 s40, -1"); A("s_mov_b32 s41, 0")
    A("v_lshrrev_b32 v14, 3, v0")
    A("v_lshlrev_b32 v14, 10, v14")
    A("v_and_b32 v13, 7, v0")
    A("v_lshl_add_u32 v14, v13, 4, v14")
    A("s_lshr_b32 s19, s2, 3"); A("s_lshl_b32 s19, s19, 16")
    A("s_lshl_b32 s16, s15, 14")
    A("s_add_u32 s19, s19, s16")
    A("s_and_b32 s16, s2, 7"); A("s_lshl_b32 s16, s16, 7")
    A("s_add_u32 s19, s19, s16")
    A("v_lshrrev_b32 v12, 1, v0")
    A("v_lshlrev_b32 v12, 10, v12")
    A("v_and_b32 v13, 1, v0")
    A("v_lshl_add_u32 v12, v13, 4, v12")
    ka_wait(A)
    A(f"s_mov_b32 s32, s{SP['lar']}"); A(f"s_mov_b32 s33, s{SP['lar']+1}")
    for mm_, nm in ((1, 'aim'), (2, 'cre'), (3, 'cim')):
        A(f"s_cmp_eq_u32 s15, {mm_}")
        A(f"s_cselect_b32 s32, s{SP[nm]}, s32"); A(f"s_cselect_b32 s33, s{SP[nm]+1}, s33")
    A(f"s_mov_b32 s34, {512*128*2}"); A("s_mov_b32 s35, 0x00020000")
    A(f"s_add_u32 m0, s18, {L_PAR}")
    A("s_mov_b64 exec, s[40:41]")
    A(f"buffer_load_dwordx4 v{vL16}, s[32:35], s17 offen lds")
    A("s_mov_b64 exec, -1")
    kg_scalars(A, 15, 20, True)
    A("s_getpc_b64 s[32:33]")
    A.label("KG_PC")
    A("s_add_u32 s32, s32, GTAB-KG_PC")
    A("s_addc_u32 s33, s33, 0")
    A("s_lshl_b32 s17, s15, 11")
    A("v_lshlrev_b32 v11, 5, v0")
    A("v_add_u32 v11, s17, v11")
    A("global_load_dwordx4 v[96:99], v11, s[32:33]")
    A("global_load_dwordx4 v[100:103], v11, s[32:33] offset:16")
    srd(A, 32, SP['u'], 2048*512*2)
    A(f"s_add_u32 m0, s17, {L_UTL}")
    A("s_nop 0")
    A("buffer_load_dwordx4 v14, s[32:35], s19 offen lds")
    A(f"s_add_u32 m0, s17, {L_UTL + 1024}")
    A("s_add_u32 s19, s19, 8192")
    A("buffer_load_dwordx4 v14, s[32:35], s19 offen lds")
    srd(A, 32, SP['wo'], 512*512*2)
    A("s_and_b32 s17, s2, 7"); A("s_lshl_b32 s17, s17, 16")
    A("s_lshl_b32 s19, s15, 14")
    A("s_add_u32 s17, s17, s19")
    A("s_lshr_b32 s19, s2, 3"); A("s_lshl_b32 s19, s19, 5")
    A("s_add_u32 s17, s17, s19")
    A(f"s_add_u32 m0, s18, {L_WOT}")
    A("s_mov_b64 exec, s[40:41]")
    A("buffer_load_dwordx4 v12, s[32:35], s17 offen lds")
    A("s_mov_b64 exec, -1")
    A("s_cmp_eq_u32 s15, 0")
    A("s_cbranch_scc0 KG_NE")
    A(f"s_mov_b32 s16, {WS_EP}")
    A("v_mov_b32 v9, 0")
    A("s_mov_b64 exec, 1")
    A(f"buffer_load_dword v{vE}, v9, {WSRD}, s16 offen sc1")
    A("s_mov_b64 exec, -1")
    A.label("KG_NE")

def kgen(A):
    A("s_mov_b32 s16, s22"); A("s_mov_b32 s18, s24"); A("s_mov_b32 s14, s20")
    A(f"s_mul_i32 s25, s16, {L_TCH}")
    A("s_lshl_b32 s23, s18, 8")
    A("s_add_u32 s25, s25, s23")
    A(f"s_add_u32 s25, s25, {L_TA}")
    A("v_lshlrev_b32 v15, 2, v0")
    A("v_add_u32 v15, s25, v15")
    A("s_cmp_eq_u32 s15, 0")
    A("s_cbranch_scc1 KG_WP")
    A("s_waitcnt vmcnt(5)")
    A.label("KG_WP")
    A("s_waitcnt vmcnt(6)")
    gsync(A, C_PAR, 4, 66)
    stamp(A, 24)
    kg_read(A, 16, 18, 4, 23)
    A("s_cmp_eq_u32 s16, 0")
    A("s_cselect_b32 s23, 16, 0")
    A("s_lshl_b32 s26, s26, s23"); A("s_and_b32 s26, s26, 0xffff0000")
    A("s_lshl_b32 s27, s27, s23"); A("s_and_b32 s27, s27, 0xffff0000")
    kg_setup(A, 26, 23, True)
    kg_aside(A, 15)
    A("s_waitcnt lgkmcnt(0)")
    lsig(A, C_G, 66)
    stamp(A, 21)
    A("s_waitcnt vmcnt(0)")
    A("s_cmp_eq_u32 s15, 0")
    A("s_cbranch_scc0 KG_NT")
    make_tag(A)
    A.label("KG_NT")
    A("s_waitcnt lgkmcnt(0)")
    lsig(A, C_GU, 86)
    A("v_and_b32 v9, 15, v0")
    A("v_lshrrev_b32 v10, 4, v0")
    A("v_mul_u32_u24 v11, 528, v9")
    A("v_lshl_add_u32 v11, v10, 4, v11")
    A(f"s_mul_i32 s25, s16, {L_TCH}")
    A(f"s_add_u32 s25, s25, {L_TA}")
    A(f"s_mul_i32 s23, s18, {16*528}")
    A("s_add_u32 s23, s23, s25")
    A("v_add_u32 v12, s23, v11")
    A(f"s_add_u32 s25, s25, {L_TBO}")
    A("v_add_u32 v13, s25, v11")
    A("s_lshl_b32 s25, s16, 11")
    A("s_lshl_b32 s23, s18, 10")
    A("s_add_u32 s25, s25, s23")
    A(f"s_add_u32 s25, s25, {L_T}")
    A("v_lshlrev_b32 v14, 8, v10")
    A("v_lshl_add_u32 v14, v9, 1, v14")
    A("v_add_u32 v14, s25, v14")
    A("s_cmp_eq_u32 s18, 0")
    A("s_cselect_b32 s27, s27, 0")
    A("v_mov_b32 v15, s27")
    lwait(A, C_G, 8, 86)
    stamp(A, 22)
    q = DSQ(A)
    def rd(s_):
        b = s_ % 4
        A(f"ds_read_b128 {v(16+4*b,4)}, v12 offset:{s_*64}"); q.issue(("a", s_))
        A(f"ds_read_b128 {v(32+4*b,4)}, v13 offset:{s_*64}"); q.issue(("b0", s_))
        A(f"ds_read_b128 {v(48+4*b,4)}, v13 offset:{16*528 + s_*64}"); q.issue(("b1", s_))
    for s_ in range(3): rd(s_)
    for s_ in range(8):
        if s_ + 3 < 8: rd(s_ + 3)
        b = s_ % 4
        q.wait(("b0", s_))
        A(f"v_mfma_f32_16x16x32_bf16 v[120:123], {v(16+4*b,4)}, {v(32+4*b,4)}, {'0' if s_==0 else 'v[120:123]'}")
        q.wait(("b1", s_))
        A(f"v_mfma_f32_16x16x32_bf16 v[4:7], {v(16+4*b,4)}, {v(48+4*b,4)}, {'0' if s_==0 else 'v[4:7]'}")
    A("s_nop 7")
    A("v_cmp_eq_u32 vcc, 0, v0")
    A("s_nop 1")
    A("v_cndmask_b32 v15, 0, v15, vcc")
    A("v_add_f32 v120, v120, v15")
    for ct, b_ in enumerate((120, 4)):
        A(f"v_cvt_pk_bf16_f32 v{16+2*ct}, v{b_}, v{b_+1}")
        A(f"v_cvt_pk_bf16_f32 v{17+2*ct}, v{b_+2}, v{b_+3}")
        A(f"ds_write_b16 v14, v{16+2*ct} offset:{32*ct}")
        A(f"ds_write_b16_d16_hi v14, v{16+2*ct} offset:{32*ct+64}")
        A(f"ds_write_b16 v14, v{17+2*ct} offset:{32*ct+128}")
        A(f"ds_write_b16_d16_hi v14, v{17+2*ct} offset:{32*ct+192}")
    gsync(A, C_GT2, 4, 2)
    stamp(A, 23)
    for e in range(8): A(f"v_add_u32 v{96+e}, {L_T}, v{96+e}")
    for c in range(2):
        for e in range(8):
            op = "ds_read_u16_d16_hi" if e % 2 else "ds_read_u16"
            A(f"{op} v{(32 if e % 2 else 16)+4*c+e//2}, v{96+e} offset:{c*2048}")
    A("s_lshl_b32 s25, s15, 6")
    A("v_add_u32 v9, s25, v0")
    A("v_lshrrev_b32 v10, 2, v9")
    A("v_mul_u32_u24 v10, 80, v10")
    A("v_and_b32 v9, 3, v9")
    A("v_lshl_add_u32 v10, v9, 4, v10")
    A(f"v_add_u32 v10, {L_KREV}, v10")
    for j in range(4): A(f"v_mov_b32 v{40+j}, 0")
    A(f"s_mul_i32 s25, s16, {KREV_SZ}")
    A(f"s_mul_i32 s23, s18, 1280")
    A("s_add_u32 s25, s25, s23")
    A(f"s_add_u32 s25, s25, {L_KREV + 64*80}")
    A(f"v_add_u32 v11, s25, v{vL16}")
    A("ds_write_b128 v11, v[40:43]")
    A("s_mov_b64 exec, 0xffff")
    A("ds_write_b128 v11, v[40:43] offset:1024")
    A("s_mov_b64 exec, -1")
    A("s_waitcnt lgkmcnt(10)")
    for j in range(4): A(f"v_or_b32 v{16+j}, v{16+j}, v{32+j}")
    A("s_waitcnt lgkmcnt(2)")
    for j in range(4): A(f"v_or_b32 v{20+j}, v{20+j}, v{36+j}")
    A("ds_write_b128 v10, v[16:19]")
    A(f"ds_write_b128 v10, v[20:23] offset:{KREV_SZ}")
    A("s_waitcnt lgkmcnt(0)")
    stamp(A, 27)
    FLAT = int(os.environ.get("FLAT", 3))
    for i in range(8):
        A("s_barrier")
        if i == FLAT:
            get_tag(A)
            chan_pair(A, 14, 17)
            A("s_lshr_b32 s28, s14, 4")
            A(f"s_lshl_b32 s28, s28, {5+FS}")
            A(f"s_add_u32 s28, s28, {WS_FU}")
            A(f"v_lshlrev_b32 v104, {FS}, v0")
            A("s_mov_b32 s40, 0")
        if i == FLAT + 2:
            A("s_cmp_eq_u32 s15, 3")
            A("s_cbranch_scc0 KG_L2")
            A("s_waitcnt vmcnt(0)")
            A("s_mov_b32 s30, -1"); A("s_mov_b32 s31, 0")
            A(f"v_cmp_ne_u32 vcc, s{sT}, v105")
            A("s_nop 1")
            A("s_and_b64 vcc, vcc, s[30:31]")
            A("s_cbranch_vccnz KG_L2")
            lsig(A, C_FU, 66)
            A("s_mov_b32 s40, 1")
            A.label("KG_L2")
        if i == FLAT + 1:
            A("s_cmp_eq_u32 s15, 3")
            A("s_cbranch_scc0 KG_L1")
            A("s_mov_b32 s30, -1"); A("s_mov_b32 s31, 0")
            A("s_mov_b64 exec, s[30:31]")
            A(f"buffer_load_dword v105, v104, {WSRD}, s28 offen sc1")
            A("s_mov_b64 exec, -1")
            A.label("KG_L1")
    A("s_cmp_eq_u32 s15, 3")
    A("s_cbranch_scc0 KG_END2")
    A("s_cmp_lg_u32 s40, 0")
    A("s_cbranch_scc1 KG_END2")
    poll(A, "KG_PU", 104, 28, "-1", 105, sleep=2)
    lsig(A, C_FU, 66)
    A.label("KG_END2")
    if os.environ.get("X_P1ONLY"): A("s_branch K_FIN")

vKA, vVA, vQ, vKF, vVF, vS, vP, vO, vM, vT = 2, 3, 4, 8, 16, 32, 64, 72, 88, 89
vLD = 92
vLW = 124
vLW2 = 89
NT = 32
SCHED = "e0 e1 PV1 RV e2 e3 c0 e4 e5 c1 QK RK e6 e7 c2 e8 e9 c3 e10 e11 PV0 c4 e12 e13 c5 e14 e15 c6 c7"
PRIO = {0: 3, 8: 2, 16: 1, 24: 0}

def attn_ids(A):
    A("s_and_b32 s12, s2, 7")
    A("s_lshl_b32 s12, s12, 2")
    A("s_lshr_b32 s13, s2, 3")
    A("s_and_b32 s17, s13, 3")
    A("s_add_u32 s12, s12, s17")
    A("s_lshr_b32 s13, s2, 5")
    A("s_lshl_b32 s17, s12, 16")

def ld_group(A):
    attn_setup(A)
    A("s_cmp_lt_u32 s3, 4")
    A("s_cselect_b32 s28, 0, 8")
    A("s_sub_u32 s28, s3, s28")
    A(f"v_lshlrev_b32 v8, {FS}, v0")
    A(f"s_lshl_b32 s27, s12, {5+FS}")
    A(f"s_add_u32 s27, s27, {WS_F1}")
    A("s_lshr_b32 s22, s28, 1")
    A("s_and_b32 s23, s28, 1"); A("s_lshl_b32 s23, s23, 1")
    A("s_and_b32 s4, s22, 1"); A("s_lshl_b32 s4, s4, 15")
    A("s_lshr_b32 s26, s22, 1"); A("s_lshl_b32 s26, s26, 21")
    A("s_add_u32 s4, s4, s26")
    A("s_lshl_b32 s26, s23, 10")
    A("s_add_u32 s4, s4, s26")
    A("s_add_u32 s4, s4, s17")
    A(f"s_add_u32 s4, s4, {WS_K}")
    A("s_lshl_b32 s24, s23, 12")
    A("s_lshl_b32 s26, s22, 10")
    A("s_add_u32 s24, s24, s26")
    A(f"v_add_u32 v{vLW2}, s24, v{vL16}")
    A("s_lshl_b32 s5, s13, 3"); A("s_add_u32 s5, s5, s28"); A("s_lshl_b32 s5, s5, 10"); A("s_add_u32 s5, s5, s17")
    A("s_lshl_b32 s6, s28, 10"); A(f"s_add_u32 s6, s6, {L_QS}")
    A(f"v_add_u32 v12, s6, v{vL16}")
    A("s_cmp_eq_u32 s3, 13")
    A("s_cbranch_scc0 LD_NOPOLL")
    lwait(A, C_OWN, 4, 44, sleep=2)
    poll(A, "LD_POLL", 8, 27, "-1", 13, sleep=2)
    lsig(A, C_F1, 44)
    A.label("LD_NOPOLL")
    lwait(A, C_F1, 1, 44, sleep=1)
    stamp(A, 3)
    def rload(r, d0):
        A(f"s_add_u32 s26, s13, {r}")
        A("s_and_b32 s26, s26, 7")
        A("s_lshl_b32 s26, s26, 12")
        A("s_add_u32 s26, s26, s4")
        A(f"buffer_load_dwordx4 {v(d0,4)}, v{vL16}, {WSRD}, s26 offen sc1")
        A(f"buffer_load_dwordx4 {v(d0+4,4)}, v{vL16}, {WSRD}, s26 offen offset:1024 sc1")
    rload(0, 32)
    A(f"buffer_load_dwordx4 v[40:43], v{vL16}, {WSRD}, s5 offen sc1")
    rload(1, vLD)
    rload(2, vLD + 8)
    lwait(A, C_DONE(7), 4, 44)
    A("s_waitcnt vmcnt(4)")
    A(f"ds_write_b128 v{vLW2}, v[32:35]")
    A(f"ds_write_b128 v{vLW2}, v[36:39] offset:4096")
    A("ds_write_b128 v12, v[40:43]")
    A("s_waitcnt vmcnt(2)")
    A(f"ds_write_b128 v{vLW2}, {v(vLD,4)} offset:16384")
    A(f"ds_write_b128 v{vLW2}, {v(vLD+4,4)} offset:20480")
    A("s_waitcnt vmcnt(0)")
    A(f"ds_write_b128 v{vLW2}, {v(vLD+8,4)} offset:32768")
    A(f"ds_write_b128 v{vLW2}, {v(vLD+12,4)} offset:36864")

def attn_setup(A):
    attn_ids(A)
    A("s_mov_b32 s20, 0x0000ffff")
    A("s_mov_b32 s21, 0x0000ffff")
    A("s_and_b32 s15, s3, 7")
    A("s_lshr_b32 s16, s3, 3")
    A("s_lshl_b32 s19, s16, 10")
    A(f"v_add_u32 v{vKA}, s19, v{vL16}")
    A("v_lshrrev_b32 v8, 5, v0")
    A("v_lshlrev_b32 v8, 8, v8")
    A("v_and_b32 v9, 15, v0")
    A("v_lshlrev_b32 v9, 4, v9")
    A("s_add_u32 s19, s19, 2048")
    A(f"v_add3_u32 v{vVA}, v8, v9, s19")
    A("v_and_b32 v8, 31, v0")
    A("v_cmp_eq_u32 vcc, 16, v8")
    A("v_mov_b32 v9, 0x3f803f80")
    A("s_lshl_b32 s22, s15, 10"); A(f"s_add_u32 s22, s22, {L_QS}")
    A("v_cndmask_b32 v9, 0, v9, vcc")
    A(f"v_add_u32 v{vQ}, s22, v{vL16}")
    for i in range(16): A(f"v_mov_b32 v{vVF+i}, v9")
    A(f"v_mov_b32 v{vM}, 0")
    A("s_lshl_b32 s18, s13, 3")
    A("s_add_u32 s18, s18, s15")
    A(f"s_lshl_b32 s19, s18, {5+FS}")
    A(f"s_lshl_b32 s22, s12, {FS}")
    A("s_add_u32 s19, s19, s22")
    A(f"s_add_u32 s19, s19, {WS_F2}")
    A("s_lshl_b32 s18, s18, 10")
    A("s_add_u32 s18, s18, s17")
    A("s_lshr_b32 s22, s3, 2")
    A("s_and_b32 s23, s3, 3")
    A("s_lshl_b32 s24, s23, 12")
    A("s_lshl_b32 s26, s22, 10")
    A("s_add_u32 s24, s24, s26")
    A(f"v_add_u32 v{vLW}, s24, v{vL16}")
    A("s_and_b32 s25, s22, 1"); A("s_lshl_b32 s25, s25, 15")
    A("s_lshr_b32 s26, s22, 1"); A("s_lshl_b32 s26, s26, 21")
    A("s_add_u32 s25, s25, s26")
    A("s_lshl_b32 s23, s23, 10")
    A("s_add_u32 s25, s25, s23")
    A("s_add_u32 s25, s25, s17")
    A(f"s_add_u32 s25, s25, {WS_K}")
    A("s_lshr_b32 s37, s2, 3"); A("s_and_b32 s37, s37, 3"); A("s_lshl_b32 s37, s37, 3"); A("s_add_u32 s37, s37, s15")

def attention(A):
    A("s_setprio 3")
    A("s_waitcnt lgkmcnt(0)")
    A("s_barrier")
    stamp(A, 4)
    A(f"ds_read_b128 {v(vQ,4)}, v{vQ}")
    q = DSQ(A)
    KF = lambda t: vKF + 4 * (t % 2)
    VF = lambda t, j: vVF + 8 * (t % 2) + 4 * j
    S = lambda t: vS + 16 * (t % 2)
    def rdK(t):
        A(f"ds_read_b128 {v(KF(t),4)}, v{vKA} offset:{(t%16)*4096}"); q.issue(("K", t))
    def rdV(t):
        A("s_mov_b64 exec, s[20:21]")
        A(f"ds_read_b128 {v(VF(t,0),4)}, v{vVA} offset:{(t%16)*4096}"); q.issue(("V0", t))
        A(f"ds_read_b128 {v(VF(t,1),4)}, v{vVA} offset:{(t%16)*4096+512}"); q.issue(("V1", t))
        A("s_mov_b64 exec, -1")
    def qk(t):
        q.wait(("K", t))
        A(f"v_mfma_f32_32x32x16_bf16 {v(S(t),16)}, {v(KF(t),4)}, {v(vQ,4)}, 0")
    def e(t, i): A(f"v_exp_f32 v{S(t)+i}, v{S(t)+i}")
    def c(t, k): A(f"v_cvt_pk_bf16_f32 v{vP+k}, v{S(t)+2*k}, v{S(t)+2*k+1}")
    def pv(t, j):
        cc = "0" if (t == 0 and j == 0) else v(vO, 16)
        A(f"v_mfma_f32_32x32x16_bf16 {v(vO,16)}, {v(VF(t,j),4)}, {v(vP+4*j,4)}, {cc}")
    rdK(0); rdK(1); rdV(0)
    qk(0)
    A("s_nop 7"); A("s_nop 3")
    for t in range(NT):
        A.comment(f"--- tile {t}")
        if t in PRIO: A(f"s_setprio {PRIO[t]}")
        for tok in SCHED.split():
            if tok[0] == 'e': e(t, int(tok[1:]))
            elif tok[0] == 'c': c(t, int(tok[1:]))
            elif tok == 'PV1':
                if t > 0: pv(t - 1, 1)
            elif tok == 'QK':
                if t + 1 < NT: qk(t + 1)
            elif tok == 'PV0':
                q.wait(("V1", t)); pv(t, 0)
            elif tok == 'RK':
                slot_of = {3: 4, 4: 5, 5: 6, 6: 7, 7: 0}
                XN = os.environ.get("X_NOLAND")
                if XN:
                    if t + 2 < NT: rdK(t + 2)
                    if t == 14: A(f"v_add_u32 v{vKA}, 65536, v{vKA}") if False else None
                    continue
                if t == 1:
                    A("s_cmp_eq_u32 s16, 0")
                    A("s_cbranch_scc0 AT_NS")
                    for j in range(4): A(f"v_mov_b32 v{vLD+4+j}, -1")
                    A(f"s_add_u32 s26, s18, {WS_O}")
                    A(f"buffer_store_dwordx4 {v(vLD+4,4)}, v{vL16}, {WSRD}, s26 offen sc1")
                    A.label("AT_NS")
                if t == 22:
                    A("s_cmp_eq_u32 s3, 13")
                    A("s_cbranch_scc0 AT_N4a")
                    A(f"v_lshlrev_b32 v{vT}, {FS}, v0")
                    A("s_and_b32 s28, s2, 7")
                    A(f"s_lshl_b32 s28, s28, {5+FS}")
                    A(f"s_add_u32 s28, s28, {WS_F4}")
                    A("s_mov_b32 s30, -1"); A("s_mov_b32 s31, 0")
                    A("s_mov_b64 exec, s[30:31]")
                    A(f"buffer_load_dword v{vLW}, v{vT}, {WSRD}, s28 offen sc1")
                    A("s_mov_b64 exec, -1")
                    A.label("AT_N4a")
                if t == 25:
                    A("s_cmp_eq_u32 s3, 13")
                    A("s_cbranch_scc0 AT_N4b")
                    A("s_waitcnt vmcnt(0)")
                    check_or_poll(A, "AT_P4", vT, 28, "-1", vLW)
                    A(f"v_mov_b32 v{vT}, {C_F4}"); A(f"v_mov_b32 v{vLW}, 1")
                    A("s_mov_b64 exec, 1")
                    A(f"ds_add_u32 v{vT}, v{vLW}")
                    A("s_mov_b64 exec, -1")
                    A.label("AT_N4b")
                if t == 11:
                    A("s_cmp_eq_u32 s3, 9")
                    A("s_cbranch_scc0 AT_NF4")
                    A(f"s_lshl_b32 s29, s13, {5+FS}")
                    A(f"s_lshl_b32 s28, s12, {FS}")
                    A("s_add_u32 s28, s29, s28")
                    A(f"s_add_u32 s28, s28, {WS_F4}")
                    A(f"v_mov_b32 v{vLD+28}, s{sT}"); A(f"v_mov_b32 v{vLD+29}, 0")
                    A("s_mov_b64 exec, 1")
                    A(f"buffer_store_dword v{vLD+28}, v{vLD+29}, {WSRD}, s28 offen sc1")
                    A("s_mov_b64 exec, -1")
                    A.label("AT_NF4")
                if t < 5:
                    r = 3 + t
                    A(f"s_add_u32 s26, s13, {r}")
                    A("s_and_b32 s26, s26, 7")
                    A("s_lshl_b32 s26, s26, 12")
                    A("s_add_u32 s26, s26, s25")
                    A(f"buffer_load_dwordx4 {v(vLD+4*slot_of[r],4)}, v{vL16}, {WSRD}, s26 offen sc1")
                if t == 6:
                    A("s_waitcnt vmcnt(0)")
                    A(f"ds_write_b128 v{vLW}, {v(vLD+4*slot_of[3],4)} offset:49152")
                    A(f"v_add_u32 v{vLW}, 65536, v{vLW}")
                    for r in range(4, 8):
                        A(f"ds_write_b128 v{vLW}, {v(vLD+4*slot_of[r],4)} offset:{r*16384 - 65536}")
                    A("s_waitcnt lgkmcnt(0)"); q.q = []
                    lsig(A, C_LAND, vT + 0) if False else None
                    A(f"v_mov_b32 v{vT}, {C_LAND}")
                    A(f"v_mov_b32 v{vLW}, 1")
                    A("s_mov_b64 exec, 1")
                    A(f"ds_add_u32 v{vT}, v{vLW}")
                    A("s_mov_b64 exec, -1")
                if t == 9:
                    A(f"ds_read_b32 v{vLW}, v{vT}"); q.issue(("land", 0))
                if t == 10:
                    q.wait(("land", 0))
                    A(f"v_readfirstlane_b32 s42, v{vLW}")
                    A("s_nop 0")
                    A("s_cmp_ge_u32 s42, 16")
                    A("s_cbranch_scc1 AT_LANDED")
                    lwait(A, C_LAND, 16, 126 if False else 12, sleep=1) if False else None
                    A.label("AT_LSPIN")
                    A(f"ds_read_b32 v{vLW}, v{vT}")
                    A("s_waitcnt lgkmcnt(0)")
                    A(f"v_readfirstlane_b32 s42, v{vLW}")
                    A("s_sleep 1")
                    A("s_cmp_ge_u32 s42, 16")
                    A("s_cbranch_scc0 AT_LSPIN")
                    A.label("AT_LANDED")
                    A(f"v_lshlrev_b32 v{vT}, {FS}, v0")
                    A(f"s_lshl_b32 s26, s37, {3+FS}")
                    A(f"s_add_u32 s26, s26, {WS_F3}")
                    A("s_mov_b64 exec, 0xff")
                    A(f"buffer_load_dword v{vLW}, v{vT}, {WSRD}, s26 offen sc1")
                    A("s_mov_b64 exec, -1")
                if t == 12:
                    A("s_waitcnt vmcnt(0)")
                    check_or_poll(A, "AT_P3", vT, 26, "0xff", vLW)
                    A("s_lshl_b32 s27, s37, 14")
                    A("s_lshl_b32 s26, s16, 13")
                    A("s_add_u32 s27, s27, s26")
                    A(f"s_add_u32 s27, s27, {WS_WOF}")
                if 12 <= t < 20:
                    A(f"buffer_load_dwordx4 {v(vLD+4*(t-12),4)}, v{vL16}, {WSRD}, s27 offen sc1")
                    A("s_add_u32 s27, s27, 1024")
                if t == 20:
                    A("s_sub_u32 s26, s3, 4")
                    A("s_cmp_lt_u32 s26, 8")
                    A("s_cbranch_scc0 AT_NY0")
                    A(f"v_and_b32 v{vT}, 31, v0")
                    A(f"v_lshrrev_b32 v{vLW}, 5, v0")
                    A(f"v_lshlrev_b32 v{vT}, 16, v{vT}")
                    A(f"v_lshl_add_u32 v{vT}, v{vLW}, 13, v{vT}")
                    A.label("AT_NY0")
                    srd(A, 4, SP['out'], 2048*1024*2)
                if 21 <= t < 25:
                    r = t - 21
                    A("s_sub_u32 s26, s3, 4")
                    A("s_cmp_lt_u32 s26, 8")
                    A(f"s_cbranch_scc0 AT_NY{r+1}")
                    if r == 2: A("s_add_u32 s36, s36, 4096")
                    A(f"buffer_store_dword v{vY[r]}, v{vT}, s[4:7], s36 offen" + (" offset:2048" if r % 2 else "") + os.environ.get("YSC", ""))
                    A.label(f"AT_NY{r+1}")
                WBL = [int(x) for x in os.environ.get("WBL", "26").split(",") if x]
                if t in WBL:
                    A("s_lshr_b32 s26, s2, 3")
                    A("s_lshl_b32 s26, s26, 4")
                    A("s_add_u32 s26, s26, s3")
                    A("s_cmp_eq_u32 s26, 15")
                    A(f"s_cbranch_scc0 AT_WB{t}")
                    A("buffer_wbl2 sc1")
                    A.label(f"AT_WB{t}")
                if t == 14:
                    A(f"v_add_u32 v{vKA}, 65536, v{vKA}")
                if t + 2 < NT: rdK(t + 2)
            elif tok == 'RV':
                if t == 15:
                    A(f"v_add_u32 v{vVA}, 65536, v{vVA}")
                if t + 1 < NT: rdV(t + 1)
            else: raise ValueError(tok)
    A("s_nop 1")
    pv(NT - 1, 1)
    A("s_nop 15")
    stamp(A, 5)
    A(f"v_mov_b32 v{vT}, v{vO+8}")
    A("s_nop 1")
    A(f"v_permlane32_swap_b32 v{vT}, v{vO+8}")
    A("s_nop 1")
    A(f"v_mov_b32 v{vO+8}, v{vT}")
    A("s_mov_b32 s28, 0x1f800000")
    A("s_mov_b32 s29, 0x5f800000")
    A(f"v_cmp_le_f32 vcc, s28, v{vO+8}")
    A(f"v_cmp_ge_f32 s[30:31], s29, v{vO+8}")
    A("s_nop 1")
    A("s_and_b64 vcc, vcc, s[30:31]")
    A("s_cmp_eq_u64 vcc, -1")
    A("s_cbranch_scc0 AT_FALLBACK")
    A.label("AT_COMBINE")
    A("s_lshl_b32 s17, s15, 11")
    A(f"s_add_u32 s17, s17, {L_SCR}")
    A(f"v_add_u32 v{vT}, s17, v{vL16}")
    A("v_lshlrev_b32 v12, 3, v0")
    A("s_lshl_b32 s17, s15, 9")
    A(f"s_add_u32 s17, s17, {L_KREV}")
    A(f"v_add_u32 v12, s17, v12")
    A("s_cmp_eq_u32 s16, 0")
    A("s_cbranch_scc1 AT_LOW")
    A(f"ds_write_b128 v{vT}, {v(vO,4)}")
    A(f"ds_write_b128 v{vT}, {v(vO+4,4)} offset:1024")
    A(f"v_mov_b32 v{vO+9}, v{vM}")
    A(f"ds_write_b64 v12, {v(vO+8,2)}")
    A("s_waitcnt lgkmcnt(0)")
    A("s_barrier")
    A("s_branch AT_DONE")
    A.label("AT_LOW")
    A("s_barrier")
    B = vS
    A(f"ds_read_b128 {v(B,4)}, v{vT}")
    A(f"ds_read_b128 {v(B+4,4)}, v{vT} offset:1024")
    A(f"ds_read_b64 {v(B+8,2)}, v12")
    A("s_waitcnt lgkmcnt(0)")
    t0, t1, t2 = 8, 9, 10
    A(f"v_max_f32 v{t0}, v{vM}, v{B+9}")
    A(f"v_sub_f32 v{t1}, v{vM}, v{t0}")
    A(f"v_sub_f32 v{t2}, v{B+9}, v{t0}")
    A(f"v_exp_f32 v{t1}, v{t1}")
    A(f"v_exp_f32 v{t2}, v{t2}")
    A("s_nop 0")
    for i in range(9):
        A(f"v_mul_f32 v{vO+i}, v{vO+i}, v{t1}")
    for i in range(9):
        A(f"v_fmac_f32 v{vO+i}, v{B+i}, v{t2}")
    A(f"v_rcp_f32 v{t0}, v{vO+8}")
    A("s_nop 0")
    for i in range(8):
        A(f"v_mul_f32 v{vO+i}, v{vO+i}, v{t0}")
    for k in range(4):
        A(f"v_cvt_pk_bf16_f32 v{vP+k}, v{vO+2*k}, v{vO+2*k+1}")
    A("s_nop 1")
    A(f"v_permlane32_swap_b32 v{vP}, v{vP+2}")
    A(f"v_permlane32_swap_b32 v{vP+1}, v{vP+3}")
    A(f"s_add_u32 s18, s18, {WS_O}")
    for j in range(4):
        A(f"v_cmp_eq_u32 vcc, -1, v{vP+j}")
        A(f"v_mov_b32 v12, 0xfffefffe")
        A("s_nop 0")
        A(f"v_cndmask_b32 v{vP+j}, v{vP+j}, v12, vcc")
    A(f"buffer_store_dwordx4 {v(vP,4)}, v{vL16}, {WSRD}, s18 offen sc1")
    lsig(A, C_OWN2, 12)
    A.label("AT_DONE")
    stamp(A, 6)

def attention_fallback(A):
    A.label("AT_FALLBACK")
    A(f"v_mov_b32 v{vM}, 0xff800000")
    A(f"v_subrev_u32 v{vT}, 65536, v{vKA}")
    A("s_mov_b32 s17, 0")
    A.label("AT_FB1")
    A(f"ds_read_b128 {v(vKF,4)}, v{vT}")
    A(f"v_add_u32 v{vT}, 4096, v{vT}")
    A("s_waitcnt lgkmcnt(0)")
    A(f"v_mfma_f32_32x32x16_bf16 {v(vS,16)}, {v(vKF,4)}, {v(vQ,4)}, 0")
    A("s_nop 15")
    for k in range(8):
        A(f"v_max3_f32 v{vM}, v{vS+2*k}, v{vS+2*k+1}, v{vM}")
    A("s_add_u32 s17, s17, 1")
    A("s_cmp_lt_u32 s17, 32")
    A("s_cbranch_scc1 AT_FB1")
    A(f"v_mov_b32 v{vT}, v{vM}")
    A(f"v_mov_b32 v12, v{vM}")
    A("s_nop 1")
    A(f"v_permlane32_swap_b32 v{vT}, v12")
    A("s_nop 1")
    A(f"v_max_f32 v{vM}, v{vT}, v12")
    for i in range(16): A(f"v_mov_b32 v{vO+i}, 0")
    A(f"v_subrev_u32 v{vT}, 65536, v{vKA}")
    A(f"v_subrev_u32 v12, 65536, v{vVA}")
    A("s_mov_b32 s17, 0")
    A.label("AT_FB2")
    A(f"ds_read_b128 {v(vKF,4)}, v{vT}")
    A("s_mov_b64 exec, s[20:21]")
    A(f"ds_read_b128 {v(vVF,4)}, v12")
    A(f"ds_read_b128 {v(vVF+4,4)}, v12 offset:512")
    A("s_mov_b64 exec, -1")
    A(f"v_add_u32 v{vT}, 4096, v{vT}")
    A(f"v_add_u32 v12, 4096, v12")
    A("s_waitcnt lgkmcnt(0)")
    A(f"v_mfma_f32_32x32x16_bf16 {v(vS,16)}, {v(vKF,4)}, {v(vQ,4)}, 0")
    A("s_nop 15")
    for i in range(16): A(f"v_sub_f32 v{vS+i}, v{vS+i}, v{vM}")
    for i in range(16): A(f"v_exp_f32 v{vS+i}, v{vS+i}")
    A("s_nop 0")
    for k in range(8): A(f"v_cvt_pk_bf16_f32 v{vP+k}, v{vS+2*k}, v{vS+2*k+1}")
    A("s_nop 1")
    A(f"v_mfma_f32_32x32x16_bf16 {v(vO,16)}, {v(vVF,4)}, {v(vP,4)}, {v(vO,16)}")
    A(f"v_mfma_f32_32x32x16_bf16 {v(vO,16)}, {v(vVF+4,4)}, {v(vP+4,4)}, {v(vO,16)}")
    A("s_add_u32 s17, s17, 1")
    A("s_cmp_lt_u32 s17, 32")
    A("s_cbranch_scc1 AT_FB2")
    A("s_nop 15")
    A(f"v_mov_b32 v{vT}, v{vO+8}")
    A("s_nop 1")
    A(f"v_permlane32_swap_b32 v{vT}, v{vO+8}")
    A("s_nop 1")
    A(f"v_mov_b32 v{vO+8}, v{vT}")
    A("s_branch AT_COMBINE")

def tail(A):
    A("s_and_b32 s12, s2, 7"); A("s_lshl_b32 s12, s12, 3"); A("s_lshr_b32 s13, s2, 5"); A("s_add_u32 s12, s12, s13")
    A("s_lshr_b32 s13, s2, 3"); A("s_and_b32 s13, s13, 3")
    A("v_and_b32 v4, 15, v0")
    A("v_lshrrev_b32 v5, 4, v0")
    A("v_lshlrev_b32 v14, 9, v5")
    A("v_lshl_add_u32 v14, v4, 4, v14")
    A("s_lshl_b32 s17, s16, 14")
    A(f"s_add_u32 s17, s17, {L_OT}")
    A(f"v_add_u32 v14, s17, v14")
    A("v_lshlrev_b32 v15, 11, v4")
    A("v_lshl_add_u32 v15, v5, 3, v15")
    A("s_lshl_b32 s20, s12, 16")
    A("s_lshl_b32 s19, s16, 15")
    A("s_add_u32 s20, s20, s19")
    A("s_lshl_b32 s19, s13, 8")
    A("s_add_u32 s20, s20, s19")
    A("s_lshl_b32 s19, s15, 5")
    A("s_add_u32 s20, s20, s19")
    A("s_add_u32 s20, s20, 1024")
    srd(A, 4, SP['out'], 2048*1024*2)
    A("s_lshl_b32 s17, s3, 10")
    A(f"s_add_u32 s17, s17, {L_PC}")
    A(f"v_add_u32 v6, s17, v{vL16}")
    A("s_xor_b32 s17, s17, 8192")
    A(f"v_add_u32 v7, s17, v{vL16}")
    A("s_lshl_b32 s17, s3, 17")
    A("s_lshl_b32 s18, s12, 10")
    A("s_add_u32 s17, s17, s18")
    A(f"s_add_u32 s17, s17, {WS_O}")
    A("s_lshl_b32 s18, s3, 11")
    A(f"s_add_u32 s18, s18, {L_OT}")
    A(f"v_add_u32 v13, s18, v{vL16}")
    lwait(A, C_F4, 1, 8, sleep=1)
    lwait(A, C_OWN2, 8, 8, sleep=1)
    stamp(A, 43)
    A("s_add_u32 s18, s17, 65536")
    A("s_mov_b32 s29, 0")
    A("s_mov_b32 s28, 3")
    A.label("TL_POLL")
    A("s_bitcmp1_b32 s28, 0")
    A("s_cbranch_scc0 TL_P1")
    A(f"buffer_load_dwordx4 v[16:19], v{vL16}, {WSRD}, s17 offen sc1")
    A.label("TL_P1")
    A("s_bitcmp1_b32 s28, 1")
    A("s_cbranch_scc0 TL_P2")
    A(f"buffer_load_dwordx4 v[20:23], v{vL16}, {WSRD}, s18 offen sc1")
    A.label("TL_P2")
    A("s_add_u32 s29, s29, 1")
    A("s_waitcnt vmcnt(0)")
    A("v_max3_u32 v8, v16, v17, v18")
    A("v_max3_u32 v9, v20, v21, v22")
    A("v_max_u32 v8, v8, v19")
    A("v_max_u32 v9, v9, v23")
    A("v_cmp_eq_u32 vcc, -1, v8")
    A("v_cmp_eq_u32 s[30:31], -1, v9")
    A("s_nop 1")
    A("s_cmp_lg_u64 vcc, 0")
    A("s_cselect_b32 s28, 1, 0")
    A("s_cmp_lg_u64 s[30:31], 0")
    A("s_cselect_b32 s19, 2, 0")
    A("s_or_b32 s28, s28, s19")
    A("s_cmp_gt_u32 s29, 0x8000")
    A("s_cbranch_scc1 TL_GOT")
    A("s_cmp_eq_u32 s28, 0")
    A("s_cbranch_scc1 TL_GOT")
    A("s_sleep 2")
    A("s_branch TL_POLL")
    A.label("TL_GOT")
    A("ds_write_b128 v13, v[16:19]")
    A("ds_write_b128 v13, v[20:23] offset:1024")
    A("s_waitcnt lgkmcnt(0)")
    stamp(A, 44)
    A("s_barrier")
    stamp(A, 45)
    q = DSQ(A)
    FO = 16
    def rd(s_):
        b = s_ % 3
        for th in range(2):
            A(f"ds_read_b128 {v(FO+12*th+4*b,4)}, v14 offset:{s_*2048 + th*256}"); q.issue(("o", s_, th))
    rd(0); rd(1)
    for s_ in range(8):
        if s_ + 2 < 8: rd(s_ + 2)
        b = s_ % 3
        for th in range(2):
            q.wait(("o", s_, th))
            cc = "0" if s_ == 0 else v(40+4*th, 4)
            A(f"v_mfma_f32_16x16x32_bf16 {v(40+4*th,4)}, {v(vLD+4*s_,4)}, {v(FO+12*th+4*b,4)}, {cc}")
    A("s_cmp_eq_u32 s2, 0")
    A("s_cbranch_scc0 TL_NE")
    A("s_cmp_eq_u32 s3, 8")
    A("s_cbranch_scc0 TL_NE")
    A(f"s_mov_b32 s17, {WS_EP}")
    flag_store(A, 17, 12, 13)
    A.label("TL_NE")
    A("s_nop 7")
    A("s_cmp_eq_u32 s16, 0")
    A("s_cbranch_scc1 TL_LO")
    A("ds_write_b128 v6, v[40:43]")
    for i in range(4): A(f"v_mov_b32 v{40+i}, v{44+i}")
    A("s_branch TL_X")
    A.label("TL_LO")
    A("ds_write_b128 v6, v[44:47]")
    A.label("TL_X")
    A("s_waitcnt lgkmcnt(0)")
    A("s_barrier")
    A("ds_read_b128 v[16:19], v7")
    A("s_waitcnt lgkmcnt(0)")
    for i in range(4):
        A(f"v_add_f32 v{40+i}, v{40+i}, v{16+i}")
    A("v_cvt_pk_bf16_f32 v48, v40, v41")
    A("v_cvt_pk_bf16_f32 v49, v42, v43")
    A("buffer_store_dwordx2 v[48:49], v15, s[4:7], s20 offen" + os.environ.get("OUTSC", ""))

def gen():
    A = Asm()
    kernel_begin(A, NAME)
    A.label("K_START")
    if not os.environ.get("NOPF"):
        A("s_getpc_b64 s[4:5]")
        A.label("PF_PC")
        A("v_lshlrev_b32 v2, 7, v0")
        A("v_cmp_gt_u32 vcc, GTAB_END-PF_PC-128, v2")
        A("s_and_saveexec_b64 s[6:7], vcc")
        A("s_cbranch_execz PF_DONE")
        A(f"global_load_dword v{vE}, v2, s[4:5]")
        A.label("PF_DONE")
        A("s_mov_b64 exec, s[6:7]")
    if DBG: A("v_mov_b32 v125, 0")
    if PROF:
        A("v_mov_b32 v125, 0")
        A("s_memrealtime s[38:39]")
    stamp(A, 0)
    A("s_cmp_ge_u32 s2, 256")
    A("s_cbranch_scc1 K_END")
    A("s_load_dwordx16 s[64:79], s[0:1], 0")
    A("s_load_dwordx8 s[80:87], s[0:1], 64")
    A("s_load_dwordx2 s[88:89], s[0:1], 96")
    A("v_lshrrev_b32 v8, 6, v0")
    A("v_and_b32 v0, 63, v0")
    A("v_readfirstlane_b32 s3, v8")
    A(f"v_lshlrev_b32 v{vL16}, 4, v0")
    p1_ids(A)
    A("s_cmp_eq_u32 s3, 12")
    A("s_cbranch_scc0 E_NZ")
    A("v_lshlrev_b32 v20, 2, v0")
    A(f"v_add_u32 v20, {L_CNT}, v20")
    A("v_mov_b32 v24, 0")
    A("ds_write_b32 v20, v24")
    A.label("E_NZ")
    A("s_cmp_ge_u32 s3, 12")
    A("s_cbranch_scc0 E_NG")
    kgen_pre(A)
    A.label("E_NG")
    EARLY = os.environ.get("EARLY")
    if EARLY:
        A("s_sub_u32 s17, s3, 4")
        A("s_cmp_lt_u32 s17, 8")
        A("s_cbranch_scc1 R_LOAD")
    ka_wait(A)
    A("s_barrier")
    A("s_cmp_lt_u32 s3, 4")
    A("s_cbranch_scc1 R_COMPUTE")
    A("s_cmp_ge_u32 s3, 12")
    A("s_cbranch_scc1 R_KGEN")
    A.label("R_LOAD")
    p1_loader(A)
    attn_setup(A)
    A("s_branch R_JOIN")
    A.label("R_KGEN")
    kgen(A)
    A("s_branch R_LD")
    A.label("R_COMPUTE")
    p1_compute(A)
    A.label("R_LD")
    ld_group(A)
    A.label("R_JOIN")
    attention(A)
    tail(A)
    A.label("K_FIN")
    stamp(A, 50)
    A("s_waitcnt vmcnt(0)")
    stamp(A, 51)
    write_stamps(A)
    if DBG:
        A("s_cmp_eq_u32 s2, 8"); A("s_cbranch_scc0 K_END")
        A("s_cmp_eq_u32 s3, 0"); A("s_cbranch_scc0 K_END")
        A("s_memtime s[48:49]"); A("s_memrealtime s[50:51]"); A("s_waitcnt lgkmcnt(0)")
        A("v_readlane_b32 s52, v125, 0"); A("v_readlane_b32 s53, v125, 1")
        A("s_nop 3")
        A("v_writelane_b32 v125, s48, 0"); A("v_writelane_b32 v125, s50, 1")
        A("v_and_b32 v16, 1, v0")
        A("v_cmp_eq_u32 vcc, 0, v16")
        A("v_mov_b32 v17, s53"); A("v_mov_b32 v18, s52")
        A("s_nop 1")
        A("v_cndmask_b32 v17, v17, v18, vcc")
        A("v_sub_u32 v17, v125, v17")
        srd(A, 4, SP['dbg'], 256)
        A("v_lshlrev_b32 v16, 2, v0")
        A("s_mov_b64 exec, 0xffff")
        A("buffer_store_dword v17, v16, s[4:7], 0 offen")
        A("s_waitcnt vmcnt(0)")
    A.label("K_END")
    A("s_endpgm")
    attention_fallback(A)
    A(".p2align 6")
    A(".type GTAB,@object")
    A.label("GTAB")
    t = gather_table()
    for i in range(0, 2048, 16):
        A(".long " + ", ".join(str(int(x)) for x in t[i:i+16]))
    A(".size GTAB, 8192")
    A.label("GTAB_END")
    hdr_src = open("concat_heads__ssm_conv_s4d__mha_block__prompt.s.ref").read().split("\n")
    hdr = [l for l in hdr_src if l.startswith(";") and "@launch" not in l and "Override launch" not in l and "grid=ceil" not in l]
    out = "\n".join(hdr) + "\n; @launch grid=(256,1,1) block=(1024,1,1) lds=163840\n"
    out += '.amdgcn_target "amdgcn-amd-amdhsa--gfx950"\n'
    out += A.text() + kernel_desc(NAME, 128, 100)
    return out

if __name__ == "__main__":
    open(sys.argv[1] if len(sys.argv) > 1 else "fused.s", "w").write(gen())
```

```python
import os, struct, sys
from asmlib import *
from ssm_common import gather_table

NAME = "concat_heads__ssm_conv_s4d__mha_block__prompt_kernel"
PROF = bool(os.environ.get("PROF"))
DBG = bool(os.environ.get("DBG"))
DBGMAP = {0: 0, 10: 1, 1: 2, 2: 3, 4: 4, 5: 5, 6: 6, 45: 7}

def f32bits(x): return struct.unpack("<I", struct.pack("<f", x))[0]
LOG2E = 1.4426950408889634
INV2PI = 0.15915494309189535
C_SCALE = 0.25 * LOG2E

WS_Q = 0x000000; WS_K = 0x200000; WS_V = 0x400000; WS_O = 0x600000
WS_UT = 0x800000
WS_WOF = 0xA00000
FS = 8
WS_F1 = 0xA80000
WS_F2 = 0xAC0000
WS_F3 = 0xB40000
WS_FU = 0xB50000
WS_F4 = 0xBA0000
WS_EP = 0xB90000
WS_TOTAL = 0xBB0000
WS_PROF = 0x1000000
SP = dict(u=64, lar=66, aim=68, cre=70, cim=72, ldt=74, dsk=76, x=78, wqkv=80, wo=82, out=84, dbg=86, ws=88)
sWS = 44
WSRD = f"s[{sWS}:{sWS+3}]"
sT = 90
vL16 = 1
vE = 127

SLOT = 28672; NSLOT = 3; AHEAD = 2
L_TA = 86016; L_TBO = 11088; L_TCH = 27984
L_T = 143360
L_CNT = 147968
C_G = L_CNT; C_CV = L_CNT + 4; C_WO = L_CNT + 8; C_KR = L_CNT + 12
def C_RDY(c): return L_CNT + 16 + 4*c
def C_DONE(c): return L_CNT + 48 + 4*c
C_FU = L_CNT + 80; C_F1 = L_CNT + 84; C_F2 = L_CNT + 88; C_ISS = L_CNT + 92; C_T = L_CNT + 96; C_GU = L_CNT + 100; C_GT = L_CNT + 104; C_OWN = L_CNT + 108; C_OWN2 = L_CNT + 112; C_PAR = L_CNT + 116; C_GT2 = L_CNT + 120; C_LAND = L_CNT + 128; C_F4 = L_CNT + 140
L_PAR = 57344
L_KREV = 148480; KREV_SZ = 7680
L_UTL = 57344 + 4096
L_WOT = 86016
L_UC = 57344; UC_RHO = 4160; UC_CH = 16640
L_PART = 90624
L_QS = 49152
L_SCR = 131072
L_OT = 0
L_PC = 32768

class DSQ:
    def __init__(self, A): self.A = A; self.q = []
    def issue(self, tag): self.q.append(tag)
    def wait(self, tag):
        if tag not in self.q: return
        i = len(self.q) - 1 - self.q[::-1].index(tag)
        n = len(self.q) - 1 - i
        assert n <= 15, n
        self.A(f"s_waitcnt lgkmcnt({n})")
        self.q = self.q[i+1:]
    def room(self):
        if len(self.q) >= 15: self.wait(self.q[0])
    def drain(self):
        self.A("s_waitcnt lgkmcnt(0)"); self.q = []

def stamp(A, k):
    if DBG and k in DBGMAP:
        j = DBGMAP[k]
        A("s_memtime s[48:49]")
        A("s_memrealtime s[50:51]")
        A("s_waitcnt lgkmcnt(0)")
        A(f"v_writelane_b32 v125, s48, {2*j}")
        A(f"v_writelane_b32 v125, s50, {2*j+1}")
    if PROF:
        A("s_memtime s[48:49]")
        A("s_waitcnt lgkmcnt(0)")
        A(f"v_writelane_b32 v125, s48, {k}")

def write_stamps(A):
    if not PROF: return
    A("s_memrealtime s[40:41]")
    A("s_waitcnt lgkmcnt(0)")
    A(f"v_writelane_b32 v125, s40, 62")
    A(f"v_writelane_b32 v125, s91, 63")
    A(f"s_add_u32 s92, s{SP['ws']}, {WS_PROF}")
    A(f"s_addc_u32 s93, s{SP['ws']+1}, 0")
    A("s_mov_b32 s94, 0x200000")
    A("s_mov_b32 s95, 0x00020000")
    A("s_lshl_b32 s42, s2, 4"); A("s_add_u32 s42, s42, s3"); A("s_lshl_b32 s42, s42, 8")
    A("v_lshlrev_b32 v16, 2, v0")
    A("buffer_store_dword v125, v16, s[92:95], s42 offen")
    A("s_waitcnt vmcnt(0)")

def poll(A, label, vaddr, soff, mask_lo, vtmp, sleep=4):
    A(f"s_mov_b32 s30, {mask_lo}")
    A("s_mov_b32 s31, 0")
    A("s_mov_b64 exec, s[30:31]")
    A("s_mov_b32 s29, 0")
    A.label(label)
    A(f"buffer_load_dword v{vtmp}, v{vaddr}, {WSRD}, s{soff} offen sc1")
    A("s_add_u32 s29, s29, 1")
    A("s_waitcnt vmcnt(0)")
    A(f"v_cmp_ne_u32 vcc, s{sT}, v{vtmp}")
    A("s_cmp_gt_u32 s29, 0x10000")
    A(f"s_cbranch_scc1 {label}_x")
    A(f"s_cbranch_vccz {label}_x")
    A(f"s_sleep {sleep}")
    A(f"s_branch {label}")
    A.label(label + "_x")
    A("s_mov_b64 exec, -1")

def check_or_poll(A, label, vaddr, soff, mask_lo, vflag):
    A(f"s_mov_b32 s30, {mask_lo}")
    A("s_mov_b32 s31, 0")
    A(f"v_cmp_ne_u32 vcc, s{sT}, v{vflag}")
    A("s_nop 1")
    A("s_and_b64 vcc, vcc, s[30:31]")
    A(f"s_cbranch_vccz {label}_ok")
    poll(A, label, vaddr, soff, mask_lo, vflag)
    A.label(label + "_ok")

def flag_store(A, soff, vtmp, vzero):
    A(f"v_mov_b32 v{vtmp}, s{sT}")
    A(f"v_mov_b32 v{vzero}, 0")
    A("s_mov_b64 exec, 1")
    A(f"buffer_store_dword v{vtmp}, v{vzero}, {WSRD}, s{soff} offen sc1")
    A("s_mov_b64 exec, -1")

def get_tag(A, vt=126, vd=None):
    L = A.newlabel("GT")
    A(f"v_mov_b32 v{vt}, {C_T}")
    A("s_mov_b32 s43, 0")
    A.label(L)
    A(f"ds_read_b32 v{vE}, v{vt}")
    A("s_add_u32 s43, s43, 1")
    A("s_waitcnt lgkmcnt(0)")
    A(f"v_readfirstlane_b32 s{sT}, v{vE}")
    A("s_cmp_gt_u32 s43, 0x80000")
    A(f"s_cbranch_scc1 {L}_x")
    A(f"s_cmp_eq_u32 s{sT}, 0")
    A(f"s_cbranch_scc1 {L}")
    A.label(L + "_x")

def make_tag(A):
    A(f"v_readfirstlane_b32 s{sT}, v{vE}")
    A("s_nop 3")
    A(f"s_mul_i32 s{sT}, s{sT}, 0x9e3779b1")
    A(f"s_add_u32 s{sT}, s{sT}, 0x7f4a7c15")
    A(f"s_or_b32 s{sT}, s{sT}, 1")
    A(f"v_mov_b32 v{vE}, s{sT}")
    A(f"v_mov_b32 v126, {C_T}")
    A(f"ds_write_b32 v126, v{vE}")

def gsync(A, cnt_addr, target, vt):
    A("s_waitcnt lgkmcnt(0)")
    lsig(A, cnt_addr, vt)
    lwait(A, cnt_addr, target, vt, sleep=int(os.environ.get('GSL', 0)))

def lsig(A, addr, vt):
    A(f"v_mov_b32 v{vt}, {addr}")
    A(f"v_mov_b32 v{vt+1}, 1")
    A("s_mov_b64 exec, 1")
    A(f"ds_add_u32 v{vt}, v{vt+1}")
    A("s_mov_b64 exec, -1")

def lwait(A, addr, target, vt, sleep=0):
    L = A.newlabel("LW")
    A(f"v_mov_b32 v{vt}, {addr}")
    A("s_mov_b32 s43, 0")
    A.label(L)
    A(f"ds_read_b32 v{vt+1}, v{vt}")
    A("s_add_u32 s43, s43, 1")
    A("s_waitcnt lgkmcnt(0)")
    A(f"v_readfirstlane_b32 s42, v{vt+1}")
    A("s_cmp_gt_u32 s43, 0x80000")
    A(f"s_cbranch_scc1 {L}_x")
    A(f"s_cmp_ge_u32 s42, {target}")
    if sleep:
        A(f"s_cbranch_scc1 {L}_x")
        A(f"s_sleep {sleep}")
        A(f"s_branch {L}")
    else:
        A(f"s_cbranch_scc0 {L}")
    A.label(L + "_x")

def merge(*chains):
    out = []; idx = [0] * len(chains)
    while any(idx[i] < len(chains[i]) for i in range(len(chains))):
        for i, ch in enumerate(chains):
            if idx[i] < len(ch):
                out.append(ch[idx[i]]); idx[i] += 1
    return out

class Rec:
    def __init__(self): self.L = []
    def __call__(self, s): self.L.append(s)

def chan_pair(A, dst, tmp):
    A(f"s_and_b32 s{dst}, s2, 7"); A(f"s_lshl_b32 s{dst}, s{dst}, 5"); A(f"s_lshr_b32 s{tmp}, s2, 3")
    A(f"s_add_u32 s{dst}, s{dst}, s{tmp}"); A(f"s_lshl_b32 s{dst}, s{dst}, 1")

def ka_wait(A):
    A("s_waitcnt lgkmcnt(0)")
    if PROF: A("s_mov_b32 s91, s38")
    srd(A, sWS, SP['ws'], WS_TOTAL)

def p1_ids(A):
    A("s_and_b32 s17, s2, 7")
    A("s_lshr_b32 s18, s2, 3")
    A("s_and_b32 s12, s17, 3")
    A("s_lshl_b32 s12, s12, 2")
    A("s_and_b32 s19, s18, 3")
    A("s_add_u32 s12, s12, s19")
    A("s_lshr_b32 s13, s17, 2")
    A("s_lshl_b32 s13, s13, 3")
    A("s_lshr_b32 s19, s18, 2")
    A("s_add_u32 s13, s13, s19")

def conv_rolled(A, vUA, vKB0, vKB1, ACC0, ACC1, sD, sS):
    NB = 4
    FA, FB0, FB1 = 8, 24, 40
    def rds(j, b, with0):
        off = (j//2)*80 + (j%2)*32
        L = [f"ds_read_b64 {v(FA+4*b,2)}, v{vUA} offset:{32*j}",
             f"ds_read_b64 {v(FA+4*b+2,2)}, v{vUA} offset:{32*j+8}",
             f"ds_read_b128 {v(FB1+4*b,4)}, v{vKB1} offset:{off}"]
        if with0: L.append(f"ds_read_b128 {v(FB0+4*b,4)}, v{vKB0} offset:{off}")
        return L
    for j in range(3):
        for ins in rds(j, j, True): A(ins)
    A(f"s_cmp_eq_u32 s{sD}, 0")
    A("s_cbranch_scc1 CV_SL0")
    A.label("CV_DL")
    for j in range(4):
        nxt = rds(j + 3, (j + 3) % NB, True)
        A("s_waitcnt lgkmcnt(9)")
        A(f"v_mfma_f32_32x32x16_bf16 {v(ACC1,16)}, {v(FA+4*j,4)}, {v(FB1+4*j,4)}, {v(ACC1,16)}")
        A(nxt[0]); A(nxt[1])
        A("s_waitcnt lgkmcnt(10)")
        A(f"v_mfma_f32_32x32x16_bf16 {v(ACC0,16)}, {v(FA+4*j,4)}, {v(FB0+4*j,4)}, {v(ACC0,16)}")
        A(nxt[2]); A(nxt[3])
    A(f"v_add_u32 v{vUA}, 128, v{vUA}")
    A(f"v_add_u32 v{vKB0}, 160, v{vKB0}")
    A(f"v_add_u32 v{vKB1}, 160, v{vKB1}")
    A(f"s_sub_u32 s{sD}, s{sD}, 1")
    A(f"s_cmp_lg_u32 s{sD}, 0")
    A("s_cbranch_scc1 CV_DL")
    A.label("CV_SL0")
    A(f"s_cmp_eq_u32 s{sS}, 0")
    A("s_cbranch_scc1 CV_DONE")
    A.label("CV_SL")
    for j in range(4):
        nxt = rds(j + 3, (j + 3) % NB, False)
        A("s_waitcnt lgkmcnt(6)")
        A(f"v_mfma_f32_32x32x16_bf16 {v(ACC1,16)}, {v(FA+4*j,4)}, {v(FB1+4*j,4)}, {v(ACC1,16)}")
        for ins in nxt: A(ins)
    A(f"v_add_u32 v{vUA}, 128, v{vUA}")
    A(f"v_add_u32 v{vKB1}, 160, v{vKB1}")
    A(f"s_sub_u32 s{sS}, s{sS}, 1")
    A(f"s_cmp_lg_u32 s{sS}, 0")
    A("s_cbranch_scc1 CV_SL")
    A.label("CV_DONE")
    A("s_waitcnt lgkmcnt(0)")

vY = [90, 91, 126, 127]

def p1_loader(A):
    vDX, vDX1, vDW = 2, 3, 5
    A("s_sub_u32 s15, s3, 4")
    A("s_setprio 3")
    A("v_lshrrev_b32 v9, 3, v0")
    A("v_lshrrev_b32 v10, 1, v9")
    A("v_xor_b32 v10, v10, v0")
    A("v_and_b32 v10, 7, v10")
    A("v_lshlrev_b32 v10, 4, v10")
    A(f"v_lshl_add_u32 v{vDX}, v9, 10, v10")
    A(f"v_xor_b32 v{vDX1}, 64, v{vDX}")
    A("s_lshl_b32 s20, s12, 17")
    A("s_lshl_b32 s17, s15, 14")
    A("s_add_u32 s20, s20, s17")
    A("s_lshl_b32 s21, s13, 6")
    A("s_lshl_b32 s22, s15, 11")
    A("s_lshl_b32 s23, s15, 10")
    A("s_add_u32 s23, s23, 16384")
    A("s_lshr_b32 s25, s2, 5")
    A("s_lshr_b32 s17, s2, 3")
    A("s_and_b32 s17, s17, 3")
    A("s_lshl_b32 s17, s17, 1")
    A("s_add_u32 s25, s25, s17")
    A("s_waitcnt lgkmcnt(0)")
    srd(A, 4, SP['x'], 2048*512*2)
    srd(A, 8, SP['wqkv'], 512*1536*2)
    def issue_x(c):
        slot = (c % NSLOT) * SLOT
        A(f"s_add_u32 s26, s25, {c}")
        A("s_and_b32 s26, s26, 7")
        A(f"s_lshl_b32 s24, s26, 7")
        A(f"s_add_u32 s24, s24, s20")
        A(f"s_add_u32 m0, s22, {slot}")
        A(f"s_mul_i32 s27, s26, {64*3072}")
        A(f"buffer_load_dwordx4 v{vDX}, s[4:7], s24 offen lds")
        A(f"s_add_u32 m0, s22, {slot + 1024}")
        A(f"s_add_u32 s24, s24, 8192")
        A(f"buffer_load_dwordx4 v{vDX1}, s[4:7], s24 offen lds")
    def issue_w(c, nw):
        slot = (c % NSLOT) * SLOT
        A(f"s_add_u32 m0, s23, {slot}")
        A(f"s_add_u32 s27, s27, s21")
        A(f"buffer_load_dwordx4 v{vDW}, s[8:11], s27 offen lds")
        if nw == 2:
            A(f"s_add_u32 m0, s23, {slot + 8192}")
            A("s_nop 0")
            A(f"buffer_load_dwordx4 v{vDW+1}, s[8:11], s27 offen lds")
    def wsetup():
        A("s_lshl_b32 s17, s15, 6")
        A("s_movk_i32 s18, 3072")
        A("s_mov_b32 s19, 43691")
        for i in range(2):
            A(f"v_add_u32 v9, s17, v0")
            if i: A(f"v_add_u32 v9, 512, v9")
            A("v_mul_u32_u24 v10, s19, v9")
            A("v_lshrrev_b32 v10, 19, v10")
            A("v_mul_u32_u24 v11, 12, v10")
            A("v_sub_u32 v11, v9, v11")
            A("v_lshrrev_b32 v12, 2, v10")
            A("v_and_b32 v12, 2, v12")
            A("v_xor_b32 v11, v11, v12")
            A("v_lshrrev_b32 v12, 2, v11")
            A("v_and_b32 v11, 3, v11")
            A("v_lshlrev_b32 v11, 4, v11")
            A("v_lshl_add_u32 v11, v12, 10, v11")
            A(f"v_mad_u32_u24 v{vDW+i}, v10, s18, v11")
    def gtab():
        A("s_getpc_b64 s[32:33]")
        L = A.newlabel("CPC"); A.label(L)
        A(f"s_add_u32 s32, s32, GTAB-{L}")
        A("s_addc_u32 s33, s33, 0")
        A("s_and_b32 s17, s15, 3"); A("s_lshl_b32 s17, s17, 11")
        A("v_lshlrev_b32 v14, 5, v0")
        A("v_add_u32 v14, s17, v14")
        A("global_load_dwordx4 v[96:99], v14, s[32:33]")
        A("global_load_dwordx4 v[100:103], v14, s[32:33] offset:16")
    def ut_loads():
        A("buffer_load_dwordx4 v[108:111], v117, s[32:35], 0 offen sc1")
        A("buffer_load_dwordx4 v[112:115], v116, s[32:35], 0 offen sc1")
        A("buffer_load_dwordx4 v[120:123], v119, s[32:35], 0 offen sc1")
    def ut_prep():
        chan_pair(A, 14, 17)
        A("s_lshr_b32 s16, s15, 2")
        A("s_add_u32 s17, s14, s16")
        A("s_lshl_b32 s17, s17, 12")
        A(f"s_add_u32 s17, s17, {WS_UT}")
        ka_wait(A)
        A(f"s_add_u32 s32, s{SP['ws']}, s17"); A(f"s_addc_u32 s33, s{SP['ws']+1}, 0")
        A("s_mov_b32 s34, 4096"); A("s_mov_b32 s35, 0x00020000")
        A("s_and_b32 s19, s15, 3"); A("s_lshl_b32 s19, s19, 10")
        A(f"v_add_u32 v116, s19, v{vL16}")
        A("v_subrev_u32 v117, 16, v116")
        A("v_cmp_eq_u32 vcc, 0, v116")
        A("v_mov_b32 v118, 4096")
        A("s_nop 0")
        A("v_cndmask_b32 v117, v117, v118, vcc")
        A("v_mov_b32 v119, 4096")
        A(f"v_mov_b32 v120, {255*16}")
        A("v_cmp_eq_u32 vcc, 3, v0")
        A("s_nop 1")
        A("v_cndmask_b32 v119, v119, v120, vcc")
    def loop(nw):
        per = 2 + nw
        issue_w(0, nw)
        if os.environ.get("EARLY") == "2": A("s_barrier")
        issue_x(1); issue_w(1, nw)
        for c in range(8):
            last = min(7, c + 1)
            if c != 7: A(f"s_waitcnt vmcnt({per * (last - c)})")
            A("s_barrier")
            if c + AHEAD < 8:
                issue_x(c + AHEAD); issue_w(c + AHEAD, nw)
            if c == 5: ut_prep()
            if c == 6:
                L = A.newlabel("CVC")
                A(f"v_mov_b32 v30, {C_FU}")
                A("ds_read_b32 v31, v30")
                A("s_waitcnt lgkmcnt(0)")
                A("v_readfirstlane_b32 s40, v31")
                A("s_nop 0")
                A("s_cmp_eq_u32 s40, 0")
                A(f"s_cbranch_scc1 {L}")
                ut_loads()
                A("s_waitcnt vmcnt(3)")
                A(f"s_branch {L}b")
                A.label(L)
                A("s_waitcnt vmcnt(0)")
                A.label(L + "b")
    issue_x(0)
    if os.environ.get("EARLY") == "1": A("s_barrier")
    wsetup()
    A("s_cmp_ge_u32 s15, 4")
    A("s_cbranch_scc1 P1_LOADER1")
    loop(2)
    A("s_branch P1_LOADER_END")
    A.label("P1_LOADER1")
    loop(1)
    A.label("P1_LOADER_END")
    A("s_setprio 1")
    stamp(A, 28)
    if os.environ.get("X_P1ONLY"): A("s_branch K_FIN")
    A("s_cmp_lg_u32 s40, 0")
    A("s_cbranch_scc1 CV_HAVE")
    lwait(A, C_FU, 1, 72, sleep=1)
    ut_loads()
    A.label("CV_HAVE")
    get_tag(A, vt=30)
    def copies(D, dest):
        T0, T1, T2 = 44, 48, 52
        for j in range(4): A(f"v_alignbit_b32 v{T0+j}, v{D+j+1}, v{D+j}, 16")
        for j in range(4): A(f"v_mov_b32 v{T1+j}, v{D+1+j}")
        for j in range(4): A(f"v_alignbit_b32 v{T2+j}, v{D+j+2}, v{D+j+1}, 16")
        A(f"ds_write_b128 v{dest}, {v(T0,4)}")
        A(f"ds_write_b128 v{dest}, {v(T1,4)} offset:{UC_RHO}")
        A(f"ds_write_b128 v{dest}, {v(T2,4)} offset:{2*UC_RHO}")
        A(f"ds_write_b128 v{dest}, {v(D+2,4)} offset:{3*UC_RHO}")
    A("s_lshr_b32 s16, s15, 2")
    A(f"s_mul_i32 s21, s16, {UC_CH}")
    A(f"s_add_u32 s21, s21, {L_UC + 48}")
    A("v_add_u32 v19, s21, v116")
    A(f"s_mul_i32 s23, s16, {KREV_SZ}")
    A(f"s_add_u32 s23, s23, {L_KREV}")
    A("v_and_b32 v9, 31, v0")
    A("v_lshrrev_b32 v10, 5, v0")
    A("v_and_b32 v11, 3, v9")
    A(f"v_mul_u32_u24 v11, {UC_RHO}, v11")
    A("v_lshrrev_b32 v12, 2, v9")
    A("v_lshl_add_u32 v11, v12, 3, v11")
    A("v_lshl_add_u32 v11, v10, 4, v11")
    A(f"s_mul_i32 s24, s16, {UC_CH}")
    A(f"s_add_u32 s24, s24, {L_UC}")
    A("v_add_u32 v4, s24, v11")
    A("v_sub_u32 v11, 63, v9")
    A("v_mul_u32_u24 v11, 80, v11")
    A("v_lshl_add_u32 v11, v10, 4, v11")
    A("v_add_u32 v5, s23, v11")
    A("v_subrev_u32 v6, 2560, v5")
    A("s_and_b32 s24, s15, 3")
    A(f"s_mul_i32 s25, s16, 28672")
    A("s_lshl_b32 s26, s24, 12")
    A("s_add_u32 s25, s25, s26")
    A(f"s_add_u32 s25, s25, {L_PART}")
    A(f"v_add_u32 v7, s25, v{vL16}")
    A("s_mul_i32 s26, s24, 24")
    A("s_cmp_eq_u32 s24, 3"); A("s_cselect_b32 s26, 80, s26")
    A("s_cmp_ge_u32 s24, 2"); A("s_cselect_b32 s28, 4, 6")
    A("s_cmp_eq_u32 s24, 3"); A("s_cselect_b32 s28, 0, s28")
    A("s_cmp_eq_u32 s24, 2"); A("s_cselect_b32 s29, 4, 0")
    A("s_cmp_eq_u32 s24, 3"); A("s_cselect_b32 s29, 12, s29")
    A("s_lshl_b32 s27, s26, 5")
    A("v_add_u32 v4, s27, v4")
    A("s_mul_i32 s27, s26, 40")
    A("v_add_u32 v5, s27, v5")
    A("v_add_u32 v6, s27, v6")
    A("s_waitcnt vmcnt(0)")
    copies(108, 19)
    A("s_cmp_eq_u32 s19, 0")
    A("s_cbranch_scc0 CV_NOX2")
    for j in range(4): A(f"v_mov_b32 v{56+j}, v{120+j}")
    for j in range(4): A(f"v_mov_b32 v{60+j}, 0")
    A(f"v_mov_b32 v30, {259*16}")
    A("v_cmp_eq_u32 vcc, 3, v0")
    A("s_sub_u32 s21, s21, 48")
    A(f"v_cndmask_b32 v30, v{vL16}, v30, vcc")
    A("v_add_u32 v30, s21, v30")
    A("s_mov_b64 exec, 15")
    copies(56, 30)
    A("s_mov_b64 exec, -1")
    A.label("CV_NOX2")
    for i in range(32): A(f"v_mov_b32 v{56+i}, 0")
    gsync(A, C_CV, 8, 8)
    stamp(A, 30)
    ACC0, ACC1 = 56, 72
    conv_rolled(A, 4, 5, 6, ACC0, ACC1, 28, 29)
    A("s_nop 15")
    for qd in range(4):
        A(f"ds_write_b128 v7, {v(ACC1+4*qd,4)} offset:{qd*1024}")
    A("s_cmp_eq_u32 s24, 3")
    A("s_cbranch_scc1 CV_PE")
    for qd in range(4):
        A(f"ds_write_b128 v7, {v(ACC0+4*qd,4)} offset:{16384 + qd*1024}")
    A.label("CV_PE")
    stamp(A, 31)
    gsync(A, C_CV, 16, 8)
    stamp(A, 32)
    A("s_lshl_b32 s26, s24, 10")
    A(f"s_add_u32 s26, s26, {L_PART}")
    A(f"v_add_u32 v4, s26, v{vL16}")
    A("s_cmp_eq_u32 s16, 0")
    A("s_cbranch_scc1 CV_F0")
    for c in range(2):
        for p in range(4):
            A(f"ds_read_b128 {v(16+16*c+4*p,4)}, v4 offset:{c*28672 + p*4096}")
    A("s_waitcnt lgkmcnt(0)")
    for c in range(2):
        for r in range(4):
            b_ = 16 + 16*c + r
            A(f"v_add_f32 v{b_}, v{b_}, v{b_+4}"); A(f"v_add_f32 v{b_+8}, v{b_+8}, v{b_+12}")
        for r in range(4):
            b_ = 16 + 16*c + r
            A(f"v_add_f32 v{b_}, v{b_}, v{b_+8}")
    A("s_branch CV_F1")
    A.label("CV_F0")
    for c in range(2):
        for p in range(3):
            A(f"ds_read_b128 {v(16+16*c+4*p,4)}, v4 offset:{c*28672 + 16384 + p*4096}")
    A("s_waitcnt lgkmcnt(0)")
    for c in range(2):
        for r in range(4):
            b_ = 16 + 16*c + r
            A(f"v_add_f32 v{b_}, v{b_}, v{b_+4}")
        for r in range(4):
            b_ = 16 + 16*c + r
            A(f"v_add_f32 v{b_}, v{b_}, v{b_+8}")
    A.label("CV_F1")
    for r in range(4):
        A(f"v_cvt_pk_bf16_f32 v{vY[r]}, v{16+r}, v{32+r}")
    A("s_lshl_b32 s36, s16, 21")
    A("s_lshl_b32 s25, s24, 14")
    A("s_add_u32 s36, s36, s25")
    A("s_lshl_b32 s25, s14, 1")
    A("s_add_u32 s36, s36, s25")
    A("s_setprio 0")
    stamp(A, 33)

def p1_compute(A):
    vFR, vACC, vXA, vWA = 8, 64, 112, 118
    A("v_and_b32 v4, 15, v0")
    A("v_lshrrev_b32 v5, 4, v0")
    A("v_lshrrev_b32 v6, 1, v4")
    A("v_xor_b32 v6, v6, v5")
    A("v_lshlrev_b32 v6, 4, v6")
    A("v_lshl_add_u32 v6, v4, 7, v6")
    A("s_lshr_b32 s17, s3, 1")
    A("s_lshl_b32 s17, s17, 13")
    A(f"v_add_u32 v{vXA}, s17, v6")
    A(f"v_xor_b32 v{vXA+1}, 64, v{vXA}")
    for st in (1, 2):
        A(f"v_add_u32 v{vXA+2*st}, {st*2*SLOT}, v{vXA}")
        A(f"v_add_u32 v{vXA+2*st+1}, {st*2*SLOT}, v{vXA+1}")
    A("v_lshrrev_b32 v6, 2, v4")
    A("v_lshl_add_u32 v6, v5, 3, v6")
    A("v_mul_u32_u24 v6, 192, v6")
    A("v_and_b32 v7, 3, v4")
    A("v_lshl_add_u32 v6, v7, 3, v6")
    A("s_and_b32 s17, s3, 1")
    A("v_xor_b32 v7, s17, v5")
    A("v_and_b32 v7, 1, v7")
    A(f"v_lshl_add_u32 v{vWA}, v7, 5, v6")
    A(f"v_add_u32 v{vWA+1}, {2*SLOT}, v{vWA}")
    A(f"v_add_u32 v{vWA+2}, {4*SLOT}, v{vWA}")
    A("s_and_b32 s18, s3, 1")
    A("s_lshl_b32 s19, s13, 1")
    A("s_add_u32 s18, s18, s19")
    A(f"s_lshl_b32 s16, s18, {5+FS}")
    A("s_lshl_b32 s18, s18, 16")
    A("s_lshr_b32 s19, s3, 1")
    A("s_lshl_b32 s24, s12, 1")
    A("s_add_u32 s24, s24, s19")
    A(f"s_lshl_b32 s25, s24, {FS}")
    A("s_add_u32 s16, s16, s25")
    A(f"s_add_u32 s16, s16, {WS_F1}")
    A("s_lshl_b32 s19, s24, 11")
    A("s_add_u32 s18, s18, s19")
    A(f"s_mov_b32 s17, 0x{f32bits(C_SCALE):08x}")
    A("s_setprio 3")
    q = DSQ(A)
    def fr(buf): return vFR + 28 * buf
    def rd_list(step):
        c, ks2 = step // 2, step % 2
        slot = c % NSLOT
        st, so = slot // 2, (slot % 2) * SLOT
        b = fr(step % 2)
        L = []
        for hf in range(2):
            L.append((f"ds_read_b64_tr_b16 {v(b+16+2*hf,2)}, v{vWA+st} offset:{so + 16384 + (32*ks2+4*hf)*192}", ("w", step, 0, hf)))
        for ti in range(4):
            L.append((f"ds_read_b128 {v(b+4*ti,4)}, v{vXA+2*st+ks2} offset:{so + ti*2048}", ("x", step, ti)))
        for gi in range(1, 3):
            for hf in range(2):
                L.append((f"ds_read_b64_tr_b16 {v(b+16+4*gi+2*hf,2)}, v{vWA+st} offset:{so + 16384 + (32*ks2+4*hf)*192 + 64*gi}", ("w", step, gi, hf)))
        return L
    def rd(step):
        for ins, tag in rd_list(step):
            A(ins); q.issue(tag)
    def mm(step, nxt=None):
        b = fr(step % 2)
        R = rd_list(nxt) if nxt is not None else []
        if os.environ.get("X_BURST"):
            for ins, tag in R:
                A(ins); q.issue(tag)
            R = []
        n = 0
        for gi in range(3):
            for ti in range(4):
                acc = vACC + (gi*4 + ti)*4
                X = v(b+4*ti, 4); W = v(b+16+4*gi, 4)
                cc = "0" if step == 0 else v(acc, 4)
                if gi == 0: q.wait(("x", step, ti))
                if ti == 0: q.wait(("w", step, gi, 1))
                if gi < 2: A(f"v_mfma_f32_16x16x32_bf16 {v(acc,4)}, {W}, {X}, {cc}")
                else:      A(f"v_mfma_f32_16x16x32_bf16 {v(acc,4)}, {X}, {W}, {cc}")
                if n < len(R):
                    A(R[n][0]); q.issue(R[n][1])
                n += 1
    kg_scalars(A, 3, 20, False)
    A(f"s_mul_i32 s21, s22, {L_TCH}")
    A("s_lshl_b32 s23, s24, 8")
    A("s_add_u32 s21, s21, s23")
    A(f"s_add_u32 s21, s21, {L_TA + L_TBO}")
    A("v_lshlrev_b32 v8, 2, v0")
    A("v_add_u32 v8, s21, v8")
    lwait(A, C_PAR, 4, 22, sleep=1)
    kg_read(A, 22, 24, 2, 21)
    A("s_cmp_eq_u32 s22, 0")
    A("s_cselect_b32 s21, 16, 0")
    A("s_lshl_b32 s26, s26, s21"); A("s_and_b32 s26, s26, 0xffff0000")
    kg_setup(A, 26, 21, False)
    kg_bside(A, 8)
    A("s_waitcnt lgkmcnt(0)")
    lsig(A, C_G, 2)
    stamp(A, 9)
    A("v_and_b32 v80, 15, v0")
    A("v_lshrrev_b32 v81, 4, v0")
    A("v_lshrrev_b32 v82, 2, v80")
    A("v_lshl_add_u32 v82, v81, 3, v82")
    A("v_lshlrev_b32 v84, 5, v82")
    A("v_lshlrev_b32 v82, 7, v82")
    A("v_and_b32 v83, 3, v80")
    A("v_lshl_add_u32 v82, v83, 3, v82")
    A("v_lshl_add_u32 v84, v83, 3, v84")
    A(f"v_add_u32 v84, {L_WOT}, v84")
    A("s_lshl_b32 s20, s3, 5")
    A(f"s_add_u32 s20, s20, {L_UTL}")
    A("v_add_u32 v82, s20, v82")
    A("v_lshlrev_b32 v83, 12, v80")
    A("v_lshl_add_u32 v83, v81, 4, v83")
    A("s_and_b32 s20, s2, 7"); A("s_lshl_b32 s20, s20, 2"); A("s_add_u32 s20, s20, s3")
    A(f"s_lshl_b32 s21, s20, {5+FS}")
    A("s_lshl_b32 s20, s20, 16")
    A("s_lshr_b32 s22, s2, 3")
    A("s_lshl_b32 s23, s22, 7")
    A("s_add_u32 s20, s20, s23")
    A(f"s_add_u32 s20, s20, {WS_UT}")
    A(f"s_lshl_b32 s23, s22, {FS}")
    A("s_add_u32 s21, s21, s23")
    A(f"s_add_u32 s21, s21, {WS_FU}")
    A("s_lshr_b32 s24, s2, 3"); A(f"s_lshl_b32 s22, s24, {3+FS}"); A("s_lshl_b32 s24, s24, 14")
    A("s_and_b32 s19, s2, 7"); A(f"s_lshl_b32 s23, s19, {FS}"); A("s_lshl_b32 s19, s19, 11")
    A("s_add_u32 s24, s24, s19")
    A(f"s_add_u32 s24, s24, {WS_WOF}")
    A("s_add_u32 s22, s22, s23")
    A(f"s_add_u32 s22, s22, {WS_F3}")
    lwait(A, C_GU, 4, 86, sleep=1)
    for p in range(2):
        for hf in range(2):
            A(f"ds_read_b64_tr_b16 {v(64+4*p+2*hf,2)}, v82 offset:{(32*p+4*hf)*128}")
    for s_ in range(2):
        for hf in range(2):
            A(f"ds_read_b64_tr_b16 {v(72+4*s_+2*hf,2)}, v84 offset:{(32*s_+4*hf)*32}")
    A("s_waitcnt lgkmcnt(0)")
    stamp(A, 25)
    A(f"buffer_store_dwordx4 v[64:67], v83, {WSRD}, s20 offen sc1")
    A(f"buffer_store_dwordx4 v[68:71], v83, {WSRD}, s20 offen offset:64 sc1")
    A("s_cmp_eq_u32 s3, 0")
    A("s_cbranch_scc0 PC_NW")
    A(f"buffer_store_dwordx4 v[72:75], v{vL16}, {WSRD}, s24 offen sc1")
    A(f"buffer_store_dwordx4 v[76:79], v{vL16}, {WSRD}, s24 offen offset:1024 sc1")
    A.label("PC_NW")
    get_tag(A)
    stamp(A, 19)
    for c in range(8):
        A("s_barrier")
        if c in (0, 7): stamp(A, 10 if c == 0 else 17)
        if c == int(os.environ.get("CFL", 1)):
            A("s_waitcnt vmcnt(0)")
            flag_store(A, 21, 2, 3)
            A("s_cmp_eq_u32 s3, 0")
            A("s_cbranch_scc0 PC_NF")
            flag_store(A, 22, 2, 3)
            A.label("PC_NF")
        if c == 0: rd(0)
        else: mm(2*c - 1, 2*c)
        mm(2*c, 2*c + 1)
        q.drain()
    lsig(A, C_DONE(7), 4)
    mm(15)
    stamp(A, 1)
    T = vFR
    n = 0
    for gi, base in ((1, WS_K), (2, WS_V), (0, WS_Q)):
        if gi == 0:
            for ti in range(4):
                for r in range(4):
                    A(f"v_mul_f32 v{vACC+ti*4+r}, s17, v{vACC+ti*4+r}")
        for pair in range(2):
            a0 = vACC + (gi*4 + 2*pair)*4; a1 = a0 + 4
            t = T + 4 * n; n += 1
            A(f"v_cvt_pk_bf16_f32 v{t}, v{a0}, v{a0+1}")
            A(f"v_cvt_pk_bf16_f32 v{t+1}, v{a0+2}, v{a0+3}")
            A(f"v_cvt_pk_bf16_f32 v{t+2}, v{a1}, v{a1+1}")
            A(f"v_cvt_pk_bf16_f32 v{t+3}, v{a1+2}, v{a1+3}")
            A(f"s_add_u32 s24, s18, {base + pair*1024}")
            A("s_nop 0")
            op = "v_permlane32_swap_b32" if gi == 2 else "v_permlane16_swap_b32"
            A(f"{op} v{t}, v{t+2}")
            A(f"{op} v{t+1}, v{t+3}")
            A("s_nop 1")
            A(f"buffer_store_dwordx4 {v(t,4)}, v{vL16}, {WSRD}, s24 offen sc1")
    stamp(A, 18)
    A("s_waitcnt vmcnt(0)")
    get_tag(A)
    flag_store(A, 16, 2, 3)
    lsig(A, C_OWN, 2)
    A("s_setprio 0")
    stamp(A, 2)
    if os.environ.get("X_P1ONLY"): A("s_branch K_FIN")

def cmul(A, D, X, S, T):
    A(f"v_pk_mul_f32 {v(T,2)}, {v(X,2)}, {v(S,2)} op_sel:[0,0] op_sel_hi:[1,0]")
    A(f"v_pk_fma_f32 {v(D,2)}, {v(X,2)}, {v(S,2)}, {v(T,2)} op_sel:[1,1,0] op_sel_hi:[0,1,1] neg_lo:[0,1,0]")

def fl(p): return f"{float(p)!r}" if p in (1, 2, 4) else f"0x{f32bits(float(p)):08x}"
def anchor(A, D, p, vt2, vw, tmp, conj=False):
    A(f"v_mul_f32 v{tmp}, {fl(p)}, v{vt2}")
    A(f"v_mul_f32 v{tmp+1}, {fl(p)}, v{vw}")
    A(f"v_exp_f32 v{tmp}, v{tmp}")
    A(f"v_fract_f32 v{tmp+1}, v{tmp+1}")
    A(f"v_cos_f32 v{D}, v{tmp+1}")
    A(f"v_sin_f32 v{D+1}, v{tmp+1}")
    A("s_nop 0")
    A(f"v_mul_f32 v{D}, v{D}, v{tmp}")
    if conj: A(f"v_mul_f32_e64 v{D+1}, -v{D+1}, v{tmp}")
    else: A(f"v_mul_f32 v{D+1}, v{D+1}, v{tmp}")

def kg_scalars(A, kw_sreg, s0, dsk):
    chan_pair(A, s0, s0+1)
    A(f"s_lshr_b32 s{s0+2}, s{kw_sreg}, 1")
    A(f"s_and_b32 s{s0+4}, s{kw_sreg}, 1")
    A(f"s_lshl_b32 s{s0+1}, s{s0}, 1")
    A(f"s_add_u32 s{s0+8}, s{SP['ldt']}, s{s0+1}"); A(f"s_addc_u32 s{s0+9}, s{SP['ldt']+1}, 0")
    A(f"s_load_dword s{s0+6}, s[{s0+8}:{s0+9}], 0")
    if dsk:
        A(f"s_add_u32 s{s0+10}, s{SP['dsk']}, s{s0+1}"); A(f"s_addc_u32 s{s0+11}, s{SP['dsk']+1}, 0")
        A(f"s_load_dword s{s0+7}, s[{s0+10}:{s0+11}], 0")

def kg_read(A, s_c, s_mh, narr, s_tmp):
    A(f"s_lshl_b32 s{s_tmp}, s{s_c}, 8")
    A(f"v_lshlrev_b32 v9, 1, v0")
    A(f"v_add_u32 v9, s{s_tmp}, v9")
    A(f"s_lshl_b32 s{s_tmp}, s{s_mh}, 7")
    A(f"s_add_u32 s{s_tmp}, s{s_tmp}, {L_PAR}")
    A(f"v_add_u32 v9, s{s_tmp}, v9")
    for i in range(narr):
        A(f"ds_read_u16 v{10+i}, v9 offset:{512*i}")
    A("s_waitcnt lgkmcnt(0)")

def kg_setup(A, s_ldt, s_tmp, full):
    vt2, vw, vY0, tmp = 16, 17, 18, 20
    A(f"s_mov_b32 s{s_tmp}, 0x{f32bits(LOG2E):08x}")
    A(f"v_mov_b32 v{tmp}, s{s_ldt}")
    A(f"v_lshlrev_b32 v10, 16, v10")
    A(f"v_mul_f32 v{tmp}, s{s_tmp}, v{tmp}")
    A(f"v_mul_f32 v10, s{s_tmp}, v10")
    A(f"v_exp_f32 v{tmp}, v{tmp}")
    A(f"v_exp_f32 v10, v10")
    A(f"v_lshlrev_b32 v11, 16, v11")
    A(f"v_cvt_pk_bf16_f32 v{tmp}, v{tmp}, v10")
    if full: A(f"v_lshlrev_b32 v12, 16, v12")
    A(f"v_and_b32 v10, 0xffff0000, v{tmp}")
    A(f"v_lshlrev_b32 v{tmp}, 16, v{tmp}")
    if full: A(f"v_lshlrev_b32 v13, 16, v13")
    A(f"v_mul_f32 v10, v10, v{tmp}")
    A(f"v_mul_f32 v11, v11, v{tmp}")
    A(f"v_mul_f32 v{vt2}, 0x{f32bits(-LOG2E):08x}, v10")
    A(f"v_mul_f32 v{vw}, 0x{f32bits(INV2PI):08x}, v11")
    if full:
        A(f"v_add_f32 v{tmp}, v{tmp}, v{tmp}")
        A(f"v_mul_f32 v{vY0}, v12, v{tmp}")
        A(f"v_mul_f32_e64 v{vY0+1}, -v13, v{tmp}")

def kg_bside(A, vaddr):
    vt2, vw = 16, 17
    X = [24 + 2*j for j in range(8)]
    S = 40
    T = [42 + 2*j for j in range(8)]
    PK = [58 + j for j in range(8)]
    anchor(A, X[1], 8, vt2, vw, 42)
    A(f"v_mov_b32 v{X[0]}, 1.0"); A(f"v_mov_b32 v{X[0]+1}, 0")
    cmul(A, X[2], X[1], X[1], T[0])
    r1, r2 = Rec(), Rec()
    cmul(r1, X[3], X[1], X[2], T[0]); cmul(r2, X[4], X[2], X[2], T[1])
    for ins in merge(r1.L, r2.L): A(ins)
    rr = [Rec() for _ in range(4)]
    cmul(rr[0], X[5], X[4], X[1], T[0]); cmul(rr[1], X[6], X[4], X[2], T[1]); cmul(rr[2], X[7], X[4], X[3], T[2]); cmul(rr[3], S, X[4], X[4], T[3])
    for ins in merge(*[r.L for r in rr]): A(ins)
    for lvl in range(4):
        for j in range(8): A(f"v_cvt_pk_bf16_f32 v{PK[j]}, v{X[j]}, v{X[j]+1}")
        if lvl < 3:
            ch = [Rec() for _ in range(8)]
            for j in range(8): cmul(ch[j], X[j], X[j], S, T[j])
            mm_ = merge(*[c.L for c in ch])
        else: mm_ = []
        wr = [f"ds_write_b32 v{vaddr}, v{PK[j]} offset:{(8*lvl + j)*528}" for j in range(8)]
        for ins in merge(mm_[:8], wr): A(ins)
        for ins in mm_[8:]: A(ins)

def kg_aside(A, vaddr):
    vt2, vw, Y0 = 16, 17, 18
    F1, F256, F2, F4, F512 = 24, 26, 28, 30, 32
    r2, r3 = Rec(), Rec()
    anchor(r2, F1, 1, vt2, vw, 48, conj=True)
    anchor(r3, F256, 256, vt2, vw, 50, conj=True)
    for ins in merge(r2.L, r3.L): A(ins)
    R = {}
    regs = iter(list(range(60, 96, 2)) + list(range(104, 124, 2)))
    def new(row): R[row] = next(regs); return R[row]
    T = [34, 36, 38, 40, 42, 44, 46]
    def level(items):
        ch = []
        for k, (row, x, s_) in enumerate(items):
            r = Rec(); d = new(row) if isinstance(row, int) else row[0]
            cmul(r, d, x, s_, T[k % 7]); ch.append(r.L)
        for ins in merge(*ch): A(ins)
    R[0] = Y0
    level([((F2,), F1, F1), ((F512,), F256, F256), (1, Y0, F1), (8, Y0, F256)])
    level([((F4,), F2, F2), (2, Y0, F2), (3, R[1], F2), (9, R[8], F2), (12, R[8], F256), (14, R[8], F512)])
    level([(4, Y0, F4), (5, R[1], F4), (6, R[2], F4), (7, R[3], F4), (10, R[9], F2), (16, R[12], F512), (17, R[14], F512)])
    level([(11, R[10], F2), (13, R[12], F4), (15, R[14], F4), (18, R[16], F512), (19, R[17], F512)])
    level([(20, R[18], F512)])
    pk = [52, 53, 54, 55, 56, 57, 58, 59]
    rows = list(range(21))
    for n, row in enumerate(rows):
        A(f"v_cvt_pk_bf16_f32 v{pk[n % 8]}, v{R[row]}, v{R[row]+1}")
        if n >= 1: A(f"ds_write_b32 v{vaddr}, v{pk[(n-1) % 8]} offset:{rows[n-1]*528}")
    A(f"ds_write_b32 v{vaddr}, v{pk[20 % 8]} offset:{20*528}")

L_WOT = 57344 + 2048
def kgen_pre(A):
    A("s_sub_u32 s15, s3, 12")
    A("s_setprio 3")
    chan_pair(A, 14, 17)
    A("s_lshl_b32 s17, s14, 8")
    A("s_lshl_b32 s18, s15, 9")
    A("s_mov_b32 s40, -1"); A("s_mov_b32 s41, 0")
    A("v_lshrrev_b32 v14, 3, v0")
    A("v_lshlrev_b32 v14, 10, v14")
    A("v_and_b32 v13, 7, v0")
    A("v_lshl_add_u32 v14, v13, 4, v14")
    A("s_lshr_b32 s19, s2, 3"); A("s_lshl_b32 s19, s19, 16")
    A("s_lshl_b32 s16, s15, 14")
    A("s_add_u32 s19, s19, s16")
    A("s_and_b32 s16, s2, 7"); A("s_lshl_b32 s16, s16, 7")
    A("s_add_u32 s19, s19, s16")
    A("v_lshrrev_b32 v12, 1, v0")
    A("v_lshlrev_b32 v12, 10, v12")
    A("v_and_b32 v13, 1, v0")
    A("v_lshl_add_u32 v12, v13, 4, v12")
    ka_wait(A)
    A(f"s_mov_b32 s32, s{SP['lar']}"); A(f"s_mov_b32 s33, s{SP['lar']+1}")
    for mm_, nm in ((1, 'aim'), (2, 'cre'), (3, 'cim')):
        A(f"s_cmp_eq_u32 s15, {mm_}")
        A(f"s_cselect_b32 s32, s{SP[nm]}, s32"); A(f"s_cselect_b32 s33, s{SP[nm]+1}, s33")
    A(f"s_mov_b32 s34, {512*128*2}"); A("s_mov_b32 s35, 0x00020000")
    A(f"s_add_u32 m0, s18, {L_PAR}")
    A("s_mov_b64 exec, s[40:41]")
    A(f"buffer_load_dwordx4 v{vL16}, s[32:35], s17 offen lds")
    A("s_mov_b64 exec, -1")
    kg_scalars(A, 15, 20, True)
    A("s_getpc_b64 s[32:33]")
    A.label("KG_PC")
    A("s_add_u32 s32, s32, GTAB-KG_PC")
    A("s_addc_u32 s33, s33, 0")
    A("s_lshl_b32 s17, s15, 11")
    A("v_lshlrev_b32 v11, 5, v0")
    A("v_add_u32 v11, s17, v11")
    A("global_load_dwordx4 v[96:99], v11, s[32:33]")
    A("global_load_dwordx4 v[100:103], v11, s[32:33] offset:16")
    srd(A, 32, SP['u'], 2048*512*2)
    A(f"s_add_u32 m0, s17, {L_UTL}")
    A("s_nop 0")
    A("buffer_load_dwordx4 v14, s[32:35], s19 offen lds")
    A(f"s_add_u32 m0, s17, {L_UTL + 1024}")
    A("s_add_u32 s19, s19, 8192")
    A("buffer_load_dwordx4 v14, s[32:35], s19 offen lds")
    srd(A, 32, SP['wo'], 512*512*2)
    A("s_and_b32 s17, s2, 7"); A("s_lshl_b32 s17, s17, 16")
    A("s_lshl_b32 s19, s15, 14")
    A("s_add_u32 s17, s17, s19")
    A("s_lshr_b32 s19, s2, 3"); A("s_lshl_b32 s19, s19, 5")
    A("s_add_u32 s17, s17, s19")
    A(f"s_add_u32 m0, s18, {L_WOT}")
    A("s_mov_b64 exec, s[40:41]")
    A("buffer_load_dwordx4 v12, s[32:35], s17 offen lds")
    A("s_mov_b64 exec, -1")
    A("s_cmp_eq_u32 s15, 0")
    A("s_cbranch_scc0 KG_NE")
    A(f"s_mov_b32 s16, {WS_EP}")
    A("v_mov_b32 v9, 0")
    A("s_mov_b64 exec, 1")
    A(f"buffer_load_dword v{vE}, v9, {WSRD}, s16 offen sc1")
    A("s_mov_b64 exec, -1")
    A.label("KG_NE")

def kgen(A):
    A("s_mov_b32 s16, s22"); A("s_mov_b32 s18, s24"); A("s_mov_b32 s14, s20")
    A(f"s_mul_i32 s25, s16, {L_TCH}")
    A("s_lshl_b32 s23, s18, 8")
    A("s_add_u32 s25, s25, s23")
    A(f"s_add_u32 s25, s25, {L_TA}")
    A("v_lshlrev_b32 v15, 2, v0")
    A("v_add_u32 v15, s25, v15")
    A("s_cmp_eq_u32 s15, 0")
    A("s_cbranch_scc1 KG_WP")
    A("s_waitcnt vmcnt(5)")
    A.label("KG_WP")
    A("s_waitcnt vmcnt(6)")
    gsync(A, C_PAR, 4, 66)
    stamp(A, 24)
    kg_read(A, 16, 18, 4, 23)
    A("s_cmp_eq_u32 s16, 0")
    A("s_cselect_b32 s23, 16, 0")
    A("s_lshl_b32 s26, s26, s23"); A("s_and_b32 s26, s26, 0xffff0000")
    A("s_lshl_b32 s27, s27, s23"); A("s_and_b32 s27, s27, 0xffff0000")
    kg_setup(A, 26, 23, True)
    kg_aside(A, 15)
    A("s_waitcnt lgkmcnt(0)")
    lsig(A, C_G, 66)
    stamp(A, 21)
    A("s_waitcnt vmcnt(0)")
    A("s_cmp_eq_u32 s15, 0")
    A("s_cbranch_scc0 KG_NT")
    make_tag(A)
    A.label("KG_NT")
    A("s_waitcnt lgkmcnt(0)")
    lsig(A, C_GU, 86)
    A("v_and_b32 v9, 15, v0")
    A("v_lshrrev_b32 v10, 4, v0")
    A("v_mul_u32_u24 v11, 528, v9")
    A("v_lshl_add_u32 v11, v10, 4, v11")
    A(f"s_mul_i32 s25, s16, {L_TCH}")
    A(f"s_add_u32 s25, s25, {L_TA}")
    A(f"s_mul_i32 s23, s18, {16*528}")
    A("s_add_u32 s23, s23, s25")
    A("v_add_u32 v12, s23, v11")
    A(f"s_add_u32 s25, s25, {L_TBO}")
    A("v_add_u32 v13, s25, v11")
    A("s_lshl_b32 s25, s16, 11")
    A("s_lshl_b32 s23, s18, 10")
    A("s_add_u32 s25, s25, s23")
    A(f"s_add_u32 s25, s25, {L_T}")
    A("v_lshlrev_b32 v14, 8, v10")
    A("v_lshl_add_u32 v14, v9, 1, v14")
    A("v_add_u32 v14, s25, v14")
    A("s_cmp_eq_u32 s18, 0")
    A("s_cselect_b32 s27, s27, 0")
    A("v_mov_b32 v15, s27")
    lwait(A, C_G, 8, 86)
    stamp(A, 22)
    q = DSQ(A)
    def rd(s_):
        b = s_ % 4
        A(f"ds_read_b128 {v(16+4*b,4)}, v12 offset:{s_*64}"); q.issue(("a", s_))
        A(f"ds_read_b128 {v(32+4*b,4)}, v13 offset:{s_*64}"); q.issue(("b0", s_))
        A(f"ds_read_b128 {v(48+4*b,4)}, v13 offset:{16*528 + s_*64}"); q.issue(("b1", s_))
    for s_ in range(3): rd(s_)
    for s_ in range(8):
        if s_ + 3 < 8: rd(s_ + 3)
        b = s_ % 4
        q.wait(("b0", s_))
        A(f"v_mfma_f32_16x16x32_bf16 v[120:123], {v(16+4*b,4)}, {v(32+4*b,4)}, {'0' if s_==0 else 'v[120:123]'}")
        q.wait(("b1", s_))
        A(f"v_mfma_f32_16x16x32_bf16 v[4:7], {v(16+4*b,4)}, {v(48+4*b,4)}, {'0' if s_==0 else 'v[4:7]'}")
    A("s_nop 7")
    A("v_cmp_eq_u32 vcc, 0, v0")
    A("s_nop 1")
    A("v_cndmask_b32 v15, 0, v15, vcc")
    A("v_add_f32 v120, v120, v15")
    for ct, b_ in enumerate((120, 4)):
        A(f"v_cvt_pk_bf16_f32 v{16+2*ct}, v{b_}, v{b_+1}")
        A(f"v_cvt_pk_bf16_f32 v{17+2*ct}, v{b_+2}, v{b_+3}")
        A(f"ds_write_b16 v14, v{16+2*ct} offset:{32*ct}")
        A(f"ds_write_b16_d16_hi v14, v{16+2*ct} offset:{32*ct+64}")
        A(f"ds_write_b16 v14, v{17+2*ct} offset:{32*ct+128}")
        A(f"ds_write_b16_d16_hi v14, v{17+2*ct} offset:{32*ct+192}")
    gsync(A, C_GT2, 4, 2)
    stamp(A, 23)
    for e in range(8): A(f"v_add_u32 v{96+e}, {L_T}, v{96+e}")
    for c in range(2):
        for e in range(8):
            op = "ds_read_u16_d16_hi" if e % 2 else "ds_read_u16"
            A(f"{op} v{(32 if e % 2 else 16)+4*c+e//2}, v{96+e} offset:{c*2048}")
    A("s_lshl_b32 s25, s15, 6")
    A("v_add_u32 v9, s25, v0")
    A("v_lshrrev_b32 v10, 2, v9")
    A("v_mul_u32_u24 v10, 80, v10")
    A("v_and_b32 v9, 3, v9")
    A("v_lshl_add_u32 v10, v9, 4, v10")
    A(f"v_add_u32 v10, {L_KREV}, v10")
    for j in range(4): A(f"v_mov_b32 v{40+j}, 0")
    A(f"s_mul_i32 s25, s16, {KREV_SZ}")
    A(f"s_mul_i32 s23, s18, 1280")
    A("s_add_u32 s25, s25, s23")
    A(f"s_add_u32 s25, s25, {L_KREV + 64*80}")
    A(f"v_add_u32 v11, s25, v{vL16}")
    A("ds_write_b128 v11, v[40:43]")
    A("s_mov_b64 exec, 0xffff")
    A("ds_write_b128 v11, v[40:43] offset:1024")
    A("s_mov_b64 exec, -1")
    A("s_waitcnt lgkmcnt(10)")
    for j in range(4): A(f"v_or_b32 v{16+j}, v{16+j}, v{32+j}")
    A("s_waitcnt lgkmcnt(2)")
    for j in range(4): A(f"v_or_b32 v{20+j}, v{20+j}, v{36+j}")
    A("ds_write_b128 v10, v[16:19]")
    A(f"ds_write_b128 v10, v[20:23] offset:{KREV_SZ}")
    A("s_waitcnt lgkmcnt(0)")
    stamp(A, 27)
    FLAT = int(os.environ.get("FLAT", 3))
    for i in range(8):
        A("s_barrier")
        if i == FLAT:
            get_tag(A)
            chan_pair(A, 14, 17)
            A("s_lshr_b32 s28, s14, 4")
            A(f"s_lshl_b32 s28, s28, {5+FS}")
            A(f"s_add_u32 s28, s28, {WS_FU}")
            A(f"v_lshlrev_b32 v104, {FS}, v0")
            A("s_mov_b32 s40, 0")
        if i == FLAT + 2:
            A("s_cmp_eq_u32 s15, 3")
            A("s_cbranch_scc0 KG_L2")
            A("s_waitcnt vmcnt(0)")
            A("s_mov_b32 s30, -1"); A("s_mov_b32 s31, 0")
            A(f"v_cmp_ne_u32 vcc, s{sT}, v105")
            A("s_nop 1")
            A("s_and_b64 vcc, vcc, s[30:31]")
            A("s_cbranch_vccnz KG_L2")
            lsig(A, C_FU, 66)
            A("s_mov_b32 s40, 1")
            A.label("KG_L2")
        if i == FLAT + 1:
            A("s_cmp_eq_u32 s15, 3")
            A("s_cbranch_scc0 KG_L1")
            A("s_mov_b32 s30, -1"); A("s_mov_b32 s31, 0")
            A("s_mov_b64 exec, s[30:31]")
            A(f"buffer_load_dword v105, v104, {WSRD}, s28 offen sc1")
            A("s_mov_b64 exec, -1")
            A.label("KG_L1")
    A("s_cmp_eq_u32 s15, 3")
    A("s_cbranch_scc0 KG_END2")
    A("s_cmp_lg_u32 s40, 0")
    A("s_cbranch_scc1 KG_END2")
    poll(A, "KG_PU", 104, 28, "-1", 105, sleep=2)
    lsig(A, C_FU, 66)
    A.label("KG_END2")
    if os.environ.get("X_P1ONLY"): A("s_branch K_FIN")

vKA, vVA, vQ, vKF, vVF, vS, vP, vO, vM, vT = 2, 3, 4, 8, 16, 32, 64, 72, 88, 89
vLD = 92
vLW = 124
vLW2 = 89
NT = 32
SCHED = "e0 e1 PV1 RV e2 e3 c0 e4 e5 c1 QK RK e6 e7 c2 e8 e9 c3 e10 e11 PV0 c4 e12 e13 c5 e14 e15 c6 c7"
PRIO = {0: 3, 8: 2, 16: 1, 24: 0}

def attn_ids(A):
    A("s_and_b32 s12, s2, 7")
    A("s_lshl_b32 s12, s12, 2")
    A("s_lshr_b32 s13, s2, 3")
    A("s_and_b32 s17, s13, 3")
    A("s_add_u32 s12, s12, s17")
    A("s_lshr_b32 s13, s2, 5")
    A("s_lshl_b32 s17, s12, 16")

def ld_group(A):
    attn_setup(A)
    A("s_cmp_lt_u32 s3, 4")
    A("s_cselect_b32 s28, 0, 8")
    A("s_sub_u32 s28, s3, s28")
    A(f"v_lshlrev_b32 v8, {FS}, v0")
    A(f"s_lshl_b32 s27, s12, {5+FS}")
    A(f"s_add_u32 s27, s27, {WS_F1}")
    A("s_lshr_b32 s22, s28, 1")
    A("s_and_b32 s23, s28, 1"); A("s_lshl_b32 s23, s23, 1")
    A("s_and_b32 s4, s22, 1"); A("s_lshl_b32 s4, s4, 15")
    A("s_lshr_b32 s26, s22, 1"); A("s_lshl_b32 s26, s26, 21")
    A("s_add_u32 s4, s4, s26")
    A("s_lshl_b32 s26, s23, 10")
    A("s_add_u32 s4, s4, s26")
    A("s_add_u32 s4, s4, s17")
    A(f"s_add_u32 s4, s4, {WS_K}")
    A("s_lshl_b32 s24, s23, 12")
    A("s_lshl_b32 s26, s22, 10")
    A("s_add_u32 s24, s24, s26")
    A(f"v_add_u32 v{vLW2}, s24, v{vL16}")
    A("s_lshl_b32 s5, s13, 3"); A("s_add_u32 s5, s5, s28"); A("s_lshl_b32 s5, s5, 10"); A("s_add_u32 s5, s5, s17")
    A("s_lshl_b32 s6, s28, 10"); A(f"s_add_u32 s6, s6, {L_QS}")
    A(f"v_add_u32 v12, s6, v{vL16}")
    A("s_cmp_eq_u32 s3, 13")
    A("s_cbranch_scc0 LD_NOPOLL")
    lwait(A, C_OWN, 4, 44, sleep=2)
    poll(A, "LD_POLL", 8, 27, "-1", 13, sleep=2)
    lsig(A, C_F1, 44)
    A.label("LD_NOPOLL")
    lwait(A, C_F1, 1, 44, sleep=1)
    stamp(A, 3)
    def rload(r, d0):
        A(f"s_add_u32 s26, s13, {r}")
        A("s_and_b32 s26, s26, 7")
        A("s_lshl_b32 s26, s26, 12")
        A("s_add_u32 s26, s26, s4")
        A(f"buffer_load_dwordx4 {v(d0,4)}, v{vL16}, {WSRD}, s26 offen sc1")
        A(f"buffer_load_dwordx4 {v(d0+4,4)}, v{vL16}, {WSRD}, s26 offen offset:1024 sc1")
    rload(0, 32)
    A(f"buffer_load_dwordx4 v[40:43], v{vL16}, {WSRD}, s5 offen sc1")
    rload(1, vLD)
    rload(2, vLD + 8)
    lwait(A, C_DONE(7), 4, 44)
    A("s_waitcnt vmcnt(4)")
    A(f"ds_write_b128 v{vLW2}, v[32:35]")
    A(f"ds_write_b128 v{vLW2}, v[36:39] offset:4096")
    A("ds_write_b128 v12, v[40:43]")
    A("s_waitcnt vmcnt(2)")
    A(f"ds_write_b128 v{vLW2}, {v(vLD,4)} offset:16384")
    A(f"ds_write_b128 v{vLW2}, {v(vLD+4,4)} offset:20480")
    A("s_waitcnt vmcnt(0)")
    A(f"ds_write_b128 v{vLW2}, {v(vLD+8,4)} offset:32768")
    A(f"ds_write_b128 v{vLW2}, {v(vLD+12,4)} offset:36864")

def attn_setup(A):
    attn_ids(A)
    A("s_mov_b32 s20, 0x0000ffff")
    A("s_mov_b32 s21, 0x0000ffff")
    A("s_and_b32 s15, s3, 7")
    A("s_lshr_b32 s16, s3, 3")
    A("s_lshl_b32 s19, s16, 10")
    A(f"v_add_u32 v{vKA}, s19, v{vL16}")
    A("v_lshrrev_b32 v8, 5, v0")
    A("v_lshlrev_b32 v8, 8, v8")
    A("v_and_b32 v9, 15, v0")
    A("v_lshlrev_b32 v9, 4, v9")
    A("s_add_u32 s19, s19, 2048")
    A(f"v_add3_u32 v{vVA}, v8, v9, s19")
    A("v_and_b32 v8, 31, v0")
    A("v_cmp_eq_u32 vcc, 16, v8")
    A("v_mov_b32 v9, 0x3f803f80")
    A("s_lshl_b32 s22, s15, 10"); A(f"s_add_u32 s22, s22, {L_QS}")
    A("v_cndmask_b32 v9, 0, v9, vcc")
    A(f"v_add_u32 v{vQ}, s22, v{vL16}")
    for i in range(16): A(f"v_mov_b32 v{vVF+i}, v9")
    A(f"v_mov_b32 v{vM}, 0")
    A("s_lshl_b32 s18, s13, 3")
    A("s_add_u32 s18, s18, s15")
    A(f"s_lshl_b32 s19, s18, {5+FS}")
    A(f"s_lshl_b32 s22, s12, {FS}")
    A("s_add_u32 s19, s19, s22")
    A(f"s_add_u32 s19, s19, {WS_F2}")
    A("s_lshl_b32 s18, s18, 10")
    A("s_add_u32 s18, s18, s17")
    A("s_lshr_b32 s22, s3, 2")
    A("s_and_b32 s23, s3, 3")
    A("s_lshl_b32 s24, s23, 12")
    A("s_lshl_b32 s26, s22, 10")
    A("s_add_u32 s24, s24, s26")
    A(f"v_add_u32 v{vLW}, s24, v{vL16}")
    A("s_and_b32 s25, s22, 1"); A("s_lshl_b32 s25, s25, 15")
    A("s_lshr_b32 s26, s22, 1"); A("s_lshl_b32 s26, s26, 21")
    A("s_add_u32 s25, s25, s26")
    A("s_lshl_b32 s23, s23, 10")
    A("s_add_u32 s25, s25, s23")
    A("s_add_u32 s25, s25, s17")
    A(f"s_add_u32 s25, s25, {WS_K}")
    A("s_lshr_b32 s37, s2, 3"); A("s_and_b32 s37, s37, 3"); A("s_lshl_b32 s37, s37, 3"); A("s_add_u32 s37, s37, s15")

def attention(A):
    A("s_setprio 3")
    A("s_waitcnt lgkmcnt(0)")
    A("s_barrier")
    stamp(A, 4)
    A(f"ds_read_b128 {v(vQ,4)}, v{vQ}")
    q = DSQ(A)
    KF = lambda t: vKF + 4 * (t % 2)
    VF = lambda t, j: vVF + 8 * (t % 2) + 4 * j
    S = lambda t: vS + 16 * (t % 2)
    def rdK(t):
        A(f"ds_read_b128 {v(KF(t),4)}, v{vKA} offset:{(t%16)*4096}"); q.issue(("K", t))
    def rdV(t):
        A("s_mov_b64 exec, s[20:21]")
        A(f"ds_read_b128 {v(VF(t,0),4)}, v{vVA} offset:{(t%16)*4096}"); q.issue(("V0", t))
        A(f"ds_read_b128 {v(VF(t,1),4)}, v{vVA} offset:{(t%16)*4096+512}"); q.issue(("V1", t))
        A("s_mov_b64 exec, -1")
    def qk(t):
        q.wait(("K", t))
        A(f"v_mfma_f32_32x32x16_bf16 {v(S(t),16)}, {v(KF(t),4)}, {v(vQ,4)}, 0")
    def e(t, i): A(f"v_exp_f32 v{S(t)+i}, v{S(t)+i}")
    def c(t, k): A(f"v_cvt_pk_bf16_f32 v{vP+k}, v{S(t)+2*k}, v{S(t)+2*k+1}")
    def pv(t, j):
        cc = "0" if (t == 0 and j == 0) else v(vO, 16)
        A(f"v_mfma_f32_32x32x16_bf16 {v(vO,16)}, {v(VF(t,j),4)}, {v(vP+4*j,4)}, {cc}")
    rdK(0); rdK(1); rdV(0)
    qk(0)
    A("s_nop 7"); A("s_nop 3")
    for t in range(NT):
        A.comment(f"--- tile {t}")
        if t in PRIO: A(f"s_setprio {PRIO[t]}")
        for tok in SCHED.split():
            if tok[0] == 'e': e(t, int(tok[1:]))
            elif tok[0] == 'c': c(t, int(tok[1:]))
            elif tok == 'PV1':
                if t > 0: pv(t - 1, 1)
            elif tok == 'QK':
                if t + 1 < NT: qk(t + 1)
            elif tok == 'PV0':
                q.wait(("V1", t)); pv(t, 0)
            elif tok == 'RK':
                slot_of = {3: 4, 4: 5, 5: 6, 6: 7, 7: 0}
                XN = os.environ.get("X_NOLAND")
                if XN:
                    if t + 2 < NT: rdK(t + 2)
                    if t == 14: A(f"v_add_u32 v{vKA}, 65536, v{vKA}") if False else None
                    continue
                if t == 1:
                    A("s_cmp_eq_u32 s16, 0")
                    A("s_cbranch_scc0 AT_NS")
                    for j in range(4): A(f"v_mov_b32 v{vLD+4+j}, -1")
                    A(f"s_add_u32 s26, s18, {WS_O}")
                    A(f"buffer_store_dwordx4 {v(vLD+4,4)}, v{vL16}, {WSRD}, s26 offen sc1")
                    A.label("AT_NS")
                if t == 22:
                    A("s_cmp_eq_u32 s3, 13")
                    A("s_cbranch_scc0 AT_N4a")
                    A(f"v_lshlrev_b32 v{vT}, {FS}, v0")
                    A("s_and_b32 s28, s2, 7")
                    A(f"s_lshl_b32 s28, s28, {5+FS}")
                    A(f"s_add_u32 s28, s28, {WS_F4}")
                    A("s_mov_b32 s30, -1"); A("s_mov_b32 s31, 0")
                    A("s_mov_b64 exec, s[30:31]")
                    A(f"buffer_load_dword v{vLW}, v{vT}, {WSRD}, s28 offen sc1")
                    A("s_mov_b64 exec, -1")
                    A.label("AT_N4a")
                if t == 25:
                    A("s_cmp_eq_u32 s3, 13")
                    A("s_cbranch_scc0 AT_N4b")
                    A("s_waitcnt vmcnt(0)")
                    check_or_poll(A, "AT_P4", vT, 28, "-1", vLW)
                    A(f"v_mov_b32 v{vT}, {C_F4}"); A(f"v_mov_b32 v{vLW}, 1")
                    A("s_mov_b64 exec, 1")
                    A(f"ds_add_u32 v{vT}, v{vLW}")
                    A("s_mov_b64 exec, -1")
                    A.label("AT_N4b")
                if t == 11:
                    A("s_cmp_eq_u32 s3, 9")
                    A("s_cbranch_scc0 AT_NF4")
                    A(f"s_lshl_b32 s29, s13, {5+FS}")
                    A(f"s_lshl_b32 s28, s12, {FS}")
                    A("s_add_u32 s28, s29, s28")
                    A(f"s_add_u32 s28, s28, {WS_F4}")
                    A(f"v_mov_b32 v{vLD+28}, s{sT}"); A(f"v_mov_b32 v{vLD+29}, 0")
                    A("s_mov_b64 exec, 1")
                    A(f"buffer_store_dword v{vLD+28}, v{vLD+29}, {WSRD}, s28 offen sc1")
                    A("s_mov_b64 exec, -1")
                    A.label("AT_NF4")
                if t < 5:
                    r = 3 + t
                    A(f"s_add_u32 s26, s13, {r}")
                    A("s_and_b32 s26, s26, 7")
                    A("s_lshl_b32 s26, s26, 12")
                    A("s_add_u32 s26, s26, s25")
                    A(f"buffer_load_dwordx4 {v(vLD+4*slot_of[r],4)}, v{vL16}, {WSRD}, s26 offen sc1")
                if t == 6:
                    A("s_waitcnt vmcnt(0)")
                    A(f"ds_write_b128 v{vLW}, {v(vLD+4*slot_of[3],4)} offset:49152")
                    A(f"v_add_u32 v{vLW}, 65536, v{vLW}")
                    for r in range(4, 8):
                        A(f"ds_write_b128 v{vLW}, {v(vLD+4*slot_of[r],4)} offset:{r*16384 - 65536}")
                    A("s_waitcnt lgkmcnt(0)"); q.q = []
                    lsig(A, C_LAND, vT + 0) if False else None
                    A(f"v_mov_b32 v{vT}, {C_LAND}")
                    A(f"v_mov_b32 v{vLW}, 1")
                    A("s_mov_b64 exec, 1")
                    A(f"ds_add_u32 v{vT}, v{vLW}")
                    A("s_mov_b64 exec, -1")
                if t == 9:
                    A(f"ds_read_b32 v{vLW}, v{vT}"); q.issue(("land", 0))
                if t == 10:
                    q.wait(("land", 0))
                    A(f"v_readfirstlane_b32 s42, v{vLW}")
                    A("s_nop 0")
                    A("s_cmp_ge_u32 s42, 16")
                    A("s_cbranch_scc1 AT_LANDED")
                    lwait(A, C_LAND, 16, 126 if False else 12, sleep=1) if False else None
                    A.label("AT_LSPIN")
                    A(f"ds_read_b32 v{vLW}, v{vT}")
                    A("s_waitcnt lgkmcnt(0)")
                    A(f"v_readfirstlane_b32 s42, v{vLW}")
                    A("s_sleep 1")
                    A("s_cmp_ge_u32 s42, 16")
                    A("s_cbranch_scc0 AT_LSPIN")
                    A.label("AT_LANDED")
                    A(f"v_lshlrev_b32 v{vT}, {FS}, v0")
                    A(f"s_lshl_b32 s26, s37, {3+FS}")
                    A(f"s_add_u32 s26, s26, {WS_F3}")
                    A("s_mov_b64 exec, 0xff")
                    A(f"buffer_load_dword v{vLW}, v{vT}, {WSRD}, s26 offen sc1")
                    A("s_mov_b64 exec, -1")
                if t == 12:
                    A("s_waitcnt vmcnt(0)")
                    check_or_poll(A, "AT_P3", vT, 26, "0xff", vLW)
                    A("s_lshl_b32 s27, s37, 14")
                    A("s_lshl_b32 s26, s16, 13")
                    A("s_add_u32 s27, s27, s26")
                    A(f"s_add_u32 s27, s27, {WS_WOF}")
                if 12 <= t < 20:
                    A(f"buffer_load_dwordx4 {v(vLD+4*(t-12),4)}, v{vL16}, {WSRD}, s27 offen sc1")
                    A("s_add_u32 s27, s27, 1024")
                if t == 20:
                    A("s_sub_u32 s26, s3, 4")
                    A("s_cmp_lt_u32 s26, 8")
                    A("s_cbranch_scc0 AT_NY0")
                    A(f"v_and_b32 v{vT}, 31, v0")
                    A(f"v_lshrrev_b32 v{vLW}, 5, v0")
                    A(f"v_lshlrev_b32 v{vT}, 16, v{vT}")
                    A(f"v_lshl_add_u32 v{vT}, v{vLW}, 13, v{vT}")
                    A.label("AT_NY0")
                    srd(A, 4, SP['out'], 2048*1024*2)
                if 21 <= t < 25:
                    r = t - 21
                    A("s_sub_u32 s26, s3, 4")
                    A("s_cmp_lt_u32 s26, 8")
                    A(f"s_cbranch_scc0 AT_NY{r+1}")
                    if r == 2: A("s_add_u32 s36, s36, 4096")
                    A(f"buffer_store_dword v{vY[r]}, v{vT}, s[4:7], s36 offen" + (" offset:2048" if r % 2 else "") + os.environ.get("YSC", ""))
                    A.label(f"AT_NY{r+1}")
                WBL = [int(x) for x in os.environ.get("WBL", "26").split(",") if x]
                if t in WBL:
                    A("s_lshr_b32 s26, s2, 3")
                    A("s_lshl_b32 s26, s26, 4")
                    A("s_add_u32 s26, s26, s3")
                    A("s_cmp_eq_u32 s26, 15")
                    A(f"s_cbranch_scc0 AT_WB{t}")
                    A("buffer_wbl2 sc1")
                    A.label(f"AT_WB{t}")
                if t == 14:
                    A(f"v_add_u32 v{vKA}, 65536, v{vKA}")
                if t + 2 < NT: rdK(t + 2)
            elif tok == 'RV':
                if t == 15:
                    A(f"v_add_u32 v{vVA}, 65536, v{vVA}")
                if t + 1 < NT: rdV(t + 1)
            else: raise ValueError(tok)
    A("s_nop 1")
    pv(NT - 1, 1)
    A("s_nop 15")
    stamp(A, 5)
    A(f"v_mov_b32 v{vT}, v{vO+8}")
    A("s_nop 1")
    A(f"v_permlane32_swap_b32 v{vT}, v{vO+8}")
    A("s_nop 1")
    A(f"v_mov_b32 v{vO+8}, v{vT}")
    A("s_mov_b32 s28, 0x1f800000")
    A("s_mov_b32 s29, 0x5f800000")
    A(f"v_cmp_le_f32 vcc, s28, v{vO+8}")
    A(f"v_cmp_ge_f32 s[30:31], s29, v{vO+8}")
    A("s_nop 1")
    A("s_and_b64 vcc, vcc, s[30:31]")
    A("s_cmp_eq_u64 vcc, -1")
    A("s_cbranch_scc0 AT_FALLBACK")
    A.label("AT_COMBINE")
    A("s_lshl_b32 s17, s15, 11")
    A(f"s_add_u32 s17, s17, {L_SCR}")
    A(f"v_add_u32 v{vT}, s17, v{vL16}")
    A("v_lshlrev_b32 v12, 3, v0")
    A("s_lshl_b32 s17, s15, 9")
    A(f"s_add_u32 s17, s17, {L_KREV}")
    A(f"v_add_u32 v12, s17, v12")
    A("s_cmp_eq_u32 s16, 0")
    A("s_cbranch_scc1 AT_LOW")
    A(f"ds_write_b128 v{vT}, {v(vO,4)}")
    A(f"ds_write_b128 v{vT}, {v(vO+4,4)} offset:1024")
    A(f"v_mov_b32 v{vO+9}, v{vM}")
    A(f"ds_write_b64 v12, {v(vO+8,2)}")
    A("s_waitcnt lgkmcnt(0)")
    A("s_barrier")
    A("s_branch AT_DONE")
    A.label("AT_LOW")
    A("s_barrier")
    B = vS
    A(f"ds_read_b128 {v(B,4)}, v{vT}")
    A(f"ds_read_b128 {v(B+4,4)}, v{vT} offset:1024")
    A(f"ds_read_b64 {v(B+8,2)}, v12")
    A("s_waitcnt lgkmcnt(0)")
    t0, t1, t2 = 8, 9, 10
    A(f"v_max_f32 v{t0}, v{vM}, v{B+9}")
    A(f"v_sub_f32 v{t1}, v{vM}, v{t0}")
    A(f"v_sub_f32 v{t2}, v{B+9}, v{t0}")
    A(f"v_exp_f32 v{t1}, v{t1}")
    A(f"v_exp_f32 v{t2}, v{t2}")
    A("s_nop 0")
    for i in range(9):
        A(f"v_mul_f32 v{vO+i}, v{vO+i}, v{t1}")
    for i in range(9):
        A(f"v_fmac_f32 v{vO+i}, v{B+i}, v{t2}")
    A(f"v_rcp_f32 v{t0}, v{vO+8}")
    A("s_nop 0")
    for i in range(8):
        A(f"v_mul_f32 v{vO+i}, v{vO+i}, v{t0}")
    for k in range(4):
        A(f"v_cvt_pk_bf16_f32 v{vP+k}, v{vO+2*k}, v{vO+2*k+1}")
    A("s_nop 1")
    A(f"v_permlane32_swap_b32 v{vP}, v{vP+2}")
    A(f"v_permlane32_swap_b32 v{vP+1}, v{vP+3}")
    A(f"s_add_u32 s18, s18, {WS_O}")
    for j in range(4):
        A(f"v_cmp_eq_u32 vcc, -1, v{vP+j}")
        A(f"v_mov_b32 v12, 0xfffefffe")
        A("s_nop 0")
        A(f"v_cndmask_b32 v{vP+j}, v{vP+j}, v12, vcc")
    A(f"buffer_store_dwordx4 {v(vP,4)}, v{vL16}, {WSRD}, s18 offen sc1")
    lsig(A, C_OWN2, 12)
    A.label("AT_DONE")
    stamp(A, 6)

def attention_fallback(A):
    A.label("AT_FALLBACK")
    A(f"v_mov_b32 v{vM}, 0xff800000")
    A(f"v_subrev_u32 v{vT}, 65536, v{vKA}")
    A("s_mov_b32 s17, 0")
    A.label("AT_FB1")
    A(f"ds_read_b128 {v(vKF,4)}, v{vT}")
    A(f"v_add_u32 v{vT}, 4096, v{vT}")
    A("s_waitcnt lgkmcnt(0)")
    A(f"v_mfma_f32_32x32x16_bf16 {v(vS,16)}, {v(vKF,4)}, {v(vQ,4)}, 0")
    A("s_nop 15")
    for k in range(8):
        A(f"v_max3_f32 v{vM}, v{vS+2*k}, v{vS+2*k+1}, v{vM}")
    A("s_add_u32 s17, s17, 1")
    A("s_cmp_lt_u32 s17, 32")
    A("s_cbranch_scc1 AT_FB1")
    A(f"v_mov_b32 v{vT}, v{vM}")
    A(f"v_mov_b32 v12, v{vM}")
    A("s_nop 1")
    A(f"v_permlane32_swap_b32 v{vT}, v12")
    A("s_nop 1")
    A(f"v_max_f32 v{vM}, v{vT}, v12")
    for i in range(16): A(f"v_mov_b32 v{vO+i}, 0")
    A(f"v_subrev_u32 v{vT}, 65536, v{vKA}")
    A(f"v_subrev_u32 v12, 65536, v{vVA}")
    A("s_mov_b32 s17, 0")
    A.label("AT_FB2")
    A(f"ds_read_b128 {v(vKF,4)}, v{vT}")
    A("s_mov_b64 exec, s[20:21]")
    A(f"ds_read_b128 {v(vVF,4)}, v12")
    A(f"ds_read_b128 {v(vVF+4,4)}, v12 offset:512")
    A("s_mov_b64 exec, -1")
    A(f"v_add_u32 v{vT}, 4096, v{vT}")
    A(f"v_add_u32 v12, 4096, v12")
    A("s_waitcnt lgkmcnt(0)")
    A(f"v_mfma_f32_32x32x16_bf16 {v(vS,16)}, {v(vKF,4)}, {v(vQ,4)}, 0")
    A("s_nop 15")
    for i in range(16): A(f"v_sub_f32 v{vS+i}, v{vS+i}, v{vM}")
    for i in range(16): A(f"v_exp_f32 v{vS+i}, v{vS+i}")
    A("s_nop 0")
    for k in range(8): A(f"v_cvt_pk_bf16_f32 v{vP+k}, v{vS+2*k}, v{vS+2*k+1}")
    A("s_nop 1")
    A(f"v_mfma_f32_32x32x16_bf16 {v(vO,16)}, {v(vVF,4)}, {v(vP,4)}, {v(vO,16)}")
    A(f"v_mfma_f32_32x32x16_bf16 {v(vO,16)}, {v(vVF+4,4)}, {v(vP+4,4)}, {v(vO,16)}")
    A("s_add_u32 s17, s17, 1")
    A("s_cmp_lt_u32 s17, 32")
    A("s_cbranch_scc1 AT_FB2")
    A("s_nop 15")
    A(f"v_mov_b32 v{vT}, v{vO+8}")
    A("s_nop 1")
    A(f"v_permlane32_swap_b32 v{vT}, v{vO+8}")
    A("s_nop 1")
    A(f"v_mov_b32 v{vO+8}, v{vT}")
    A("s_branch AT_COMBINE")

def tail(A):
    A("s_and_b32 s12, s2, 7"); A("s_lshl_b32 s12, s12, 3"); A("s_lshr_b32 s13, s2, 5"); A("s_add_u32 s12, s12, s13")
    A("s_lshr_b32 s13, s2, 3"); A("s_and_b32 s13, s13, 3")
    A("v_and_b32 v4, 15, v0")
    A("v_lshrrev_b32 v5, 4, v0")
    A("v_lshlrev_b32 v14, 9, v5")
    A("v_lshl_add_u32 v14, v4, 4, v14")
    A("s_lshl_b32 s17, s16, 14")
    A(f"s_add_u32 s17, s17, {L_OT}")
    A(f"v_add_u32 v14, s17, v14")
    A("v_lshlrev_b32 v15, 11, v4")
    A("v_lshl_add_u32 v15, v5, 3, v15")
    A("s_lshl_b32 s20, s12, 16")
    A("s_lshl_b32 s19, s16, 15")
    A("s_add_u32 s20, s20, s19")
    A("s_lshl_b32 s19, s13, 8")
    A("s_add_u32 s20, s20, s19")
    A("s_lshl_b32 s19, s15, 5")
    A("s_add_u32 s20, s20, s19")
    A("s_add_u32 s20, s20, 1024")
    srd(A, 4, SP['out'], 2048*1024*2)
    A("s_lshl_b32 s17, s3, 10")
    A(f"s_add_u32 s17, s17, {L_PC}")
    A(f"v_add_u32 v6, s17, v{vL16}")
    A("s_xor_b32 s17, s17, 8192")
    A(f"v_add_u32 v7, s17, v{vL16}")
    A("s_lshl_b32 s17, s3, 17")
    A("s_lshl_b32 s18, s12, 10")
    A("s_add_u32 s17, s17, s18")
    A(f"s_add_u32 s17, s17, {WS_O}")
    A("s_lshl_b32 s18, s3, 11")
    A(f"s_add_u32 s18, s18, {L_OT}")
    A(f"v_add_u32 v13, s18, v{vL16}")
    lwait(A, C_F4, 1, 8, sleep=1)
    lwait(A, C_OWN2, 8, 8, sleep=1)
    stamp(A, 43)
    A("s_add_u32 s18, s17, 65536")
    A("s_mov_b32 s29, 0")
    A("s_mov_b32 s28, 3")
    A.label("TL_POLL")
    A("s_bitcmp1_b32 s28, 0")
    A("s_cbranch_scc0 TL_P1")
    A(f"buffer_load_dwordx4 v[16:19], v{vL16}, {WSRD}, s17 offen sc1")
    A.label("TL_P1")
    A("s_bitcmp1_b32 s28, 1")
    A("s_cbranch_scc0 TL_P2")
    A(f"buffer_load_dwordx4 v[20:23], v{vL16}, {WSRD}, s18 offen sc1")
    A.label("TL_P2")
    A("s_add_u32 s29, s29, 1")
    A("s_waitcnt vmcnt(0)")
    A("v_max3_u32 v8, v16, v17, v18")
    A("v_max3_u32 v9, v20, v21, v22")
    A("v_max_u32 v8, v8, v19")
    A("v_max_u32 v9, v9, v23")
    A("v_cmp_eq_u32 vcc, -1, v8")
    A("v_cmp_eq_u32 s[30:31], -1, v9")
    A("s_nop 1")
    A("s_cmp_lg_u64 vcc, 0")
    A("s_cselect_b32 s28, 1, 0")
    A("s_cmp_lg_u64 s[30:31], 0")
    A("s_cselect_b32 s19, 2, 0")
    A("s_or_b32 s28, s28, s19")
    A("s_cmp_gt_u32 s29, 0x8000")
    A("s_cbranch_scc1 TL_GOT")
    A("s_cmp_eq_u32 s28, 0")
    A("s_cbranch_scc1 TL_GOT")
    A("s_sleep 2")
    A("s_branch TL_POLL")
    A.label("TL_GOT")
    A("ds_write_b128 v13, v[16:19]")
    A("ds_write_b128 v13, v[20:23] offset:1024")
    A("s_waitcnt lgkmcnt(0)")
    stamp(A, 44)
    A("s_barrier")
    stamp(A, 45)
    q = DSQ(A)
    FO = 16
    def rd(s_):
        b = s_ % 3
        for th in range(2):
            A(f"ds_read_b128 {v(FO+12*th+4*b,4)}, v14 offset:{s_*2048 + th*256}"); q.issue(("o", s_, th))
    rd(0); rd(1)
    for s_ in range(8):
        if s_ + 2 < 8: rd(s_ + 2)
        b = s_ % 3
        for th in range(2):
            q.wait(("o", s_, th))
            cc = "0" if s_ == 0 else v(40+4*th, 4)
            A(f"v_mfma_f32_16x16x32_bf16 {v(40+4*th,4)}, {v(vLD+4*s_,4)}, {v(FO+12*th+4*b,4)}, {cc}")
    A("s_cmp_eq_u32 s2, 0")
    A("s_cbranch_scc0 TL_NE")
    A("s_cmp_eq_u32 s3, 8")
    A("s_cbranch_scc0 TL_NE")
    A(f"s_mov_b32 s17, {WS_EP}")
    flag_store(A, 17, 12, 13)
    A.label("TL_NE")
    A("s_nop 7")
    A("s_cmp_eq_u32 s16, 0")
    A("s_cbranch_scc1 TL_LO")
    A("ds_write_b128 v6, v[40:43]")
    for i in range(4): A(f"v_mov_b32 v{40+i}, v{44+i}")
    A("s_branch TL_X")
    A.label("TL_LO")
    A("ds_write_b128 v6, v[44:47]")
    A.label("TL_X")
    A("s_waitcnt lgkmcnt(0)")
    A("s_barrier")
    A("ds_read_b128 v[16:19], v7")
    A("s_waitcnt lgkmcnt(0)")
    for i in range(4):
        A(f"v_add_f32 v{40+i}, v{40+i}, v{16+i}")
    A("v_cvt_pk_bf16_f32 v48, v40, v41")
    A("v_cvt_pk_bf16_f32 v49, v42, v43")
    A("buffer_store_dwordx2 v[48:49], v15, s[4:7], s20 offen" + os.environ.get("OUTSC", ""))

def gen():
    A = Asm()
    kernel_begin(A, NAME)
    A.label("K_START")
    if not os.environ.get("NOPF"):
        A("s_getpc_b64 s[4:5]")
        A.label("PF_PC")
        A("v_lshlrev_b32 v2, 7, v0")
        A("v_cmp_gt_u32 vcc, GTAB_END-PF_PC-128, v2")
        A("s_and_saveexec_b64 s[6:7], vcc")
        A("s_cbranch_execz PF_DONE")
        A(f"global_load_dword v{vE}, v2, s[4:5]")
        A.label("PF_DONE")
        A("s_mov_b64 exec, s[6:7]")
    if DBG: A("v_mov_b32 v125, 0")
    if PROF:
        A("v_mov_b32 v125, 0")
        A("s_memrealtime s[38:39]")
    stamp(A, 0)
    A("s_cmp_ge_u32 s2, 256")
    A("s_cbranch_scc1 K_END")
    A("s_load_dwordx16 s[64:79], s[0:1], 0")
    A("s_load_dwordx8 s[80:87], s[0:1], 64")
    A("s_load_dwordx2 s[88:89], s[0:1], 96")
    A("v_lshrrev_b32 v8, 6, v0")
    A("v_and_b32 v0, 63, v0")
    A("v_readfirstlane_b32 s3, v8")
    A(f"v_lshlrev_b32 v{vL16}, 4, v0")
    p1_ids(A)
    A("s_cmp_eq_u32 s3, 12")
    A("s_cbranch_scc0 E_NZ")
    A("v_lshlrev_b32 v20, 2, v0")
    A(f"v_add_u32 v20, {L_CNT}, v20")
    A("v_mov_b32 v24, 0")
    A("ds_write_b32 v20, v24")
    A.label("E_NZ")
    A("s_cmp_ge_u32 s3, 12")
    A("s_cbranch_scc0 E_NG")
    kgen_pre(A)
    A.label("E_NG")
    EARLY = os.environ.get("EARLY")
    if EARLY:
        A("s_sub_u32 s17, s3, 4")
        A("s_cmp_lt_u32 s17, 8")
        A("s_cbranch_scc1 R_LOAD")
    ka_wait(A)
    A("s_barrier")
    A("s_cmp_lt_u32 s3, 4")
    A("s_cbranch_scc1 R_COMPUTE")
    A("s_cmp_ge_u32 s3, 12")
    A("s_cbranch_scc1 R_KGEN")
    A.label("R_LOAD")
    p1_loader(A)
    attn_setup(A)
    A("s_branch R_JOIN")
    A.label("R_KGEN")
    kgen(A)
    A("s_branch R_LD")
    A.label("R_COMPUTE")
    p1_compute(A)
    A.label("R_LD")
    ld_group(A)
    A.label("R_JOIN")
    attention(A)
    tail(A)
    A.label("K_FIN")
    stamp(A, 50)
    A("s_waitcnt vmcnt(0)")
    stamp(A, 51)
    write_stamps(A)
    if DBG:
        A("s_cmp_eq_u32 s2, 8"); A("s_cbranch_scc0 K_END")
        A("s_cmp_eq_u32 s3, 0"); A("s_cbranch_scc0 K_END")
        A("s_memtime s[48:49]"); A("s_memrealtime s[50:51]"); A("s_waitcnt lgkmcnt(0)")
        A("v_readlane_b32 s52, v125, 0"); A("v_readlane_b32 s53, v125, 1")
        A("s_nop 3")
        A("v_writelane_b32 v125, s48, 0"); A("v_writelane_b32 v125, s50, 1")
        A("v_and_b32 v16, 1, v0")
        A("v_cmp_eq_u32 vcc, 0, v16")
        A("v_mov_b32 v17, s53"); A("v_mov_b32 v18, s52")
        A("s_nop 1")
        A("v_cndmask_b32 v17, v17, v18, vcc")
        A("v_sub_u32 v17, v125, v17")
        srd(A, 4, SP['dbg'], 256)
        A("v_lshlrev_b32 v16, 2, v0")
        A("s_mov_b64 exec, 0xffff")
        A("buffer_store_dword v17, v16, s[4:7], 0 offen")
        A("s_waitcnt vmcnt(0)")
    A.label("K_END")
    A("s_endpgm")
    attention_fallback(A)
    A(".p2align 6")
    A(".type GTAB,@object")
    A.label("GTAB")
    t = gather_table()
    for i in range(0, 2048, 16):
        A(".long " + ", ".join(str(int(x)) for x in t[i:i+16]))
    A(".size GTAB, 8192")
    A.label("GTAB_END")
    hdr_src = open("concat_heads__ssm_conv_s4d__mha_block__prompt.s.ref").read().split("\n")
    hdr = [l for l in hdr_src if l.startswith(";") and "@launch" not in l and "Override launch" not in l and "grid=ceil" not in l]
    out = "\n".join(hdr) + "\n; @launch grid=(256,1,1) block=(1024,1,1) lds=163840\n"
    out += '.amdgcn_target "amdgcn-amd-amdhsa--gfx950"\n'
    out += A.text() + kernel_desc(NAME, 128, 100)
    return out

if __name__ == "__main__":
    open(sys.argv[1] if len(sys.argv) > 1 else "fused.s", "w").write(gen())
```

```python
import os, struct, sys
from asmlib import *
from ssm_common import gather_table

NAME = "concat_heads__ssm_conv_s4d__mha_block__prompt_kernel"
PROF = bool(os.environ.get("PROF"))
DBG = bool(os.environ.get("DBG"))
DBGMAP = {0: 0, 10: 1, 1: 2, 2: 3, 4: 4, 5: 5, 6: 6, 45: 7}

def f32bits(x): return struct.unpack("<I", struct.pack("<f", x))[0]
LOG2E = 1.4426950408889634
INV2PI = 0.15915494309189535
C_SCALE = 0.25 * LOG2E

WS_Q = 0x000000; WS_K = 0x200000; WS_V = 0x400000; WS_O = 0x600000
WS_UT = 0x800000
WS_WOF = 0xA00000
FS = 8
WS_F1 = 0xA80000
WS_F2 = 0xAC0000
WS_F3 = 0xB40000
WS_FU = 0xB50000
WS_F4 = 0xBA0000
WS_EP = 0xB90000
WS_TOTAL = 0xBB0000
WS_PROF = 0x1000000
SP = dict(u=64, lar=66, aim=68, cre=70, cim=72, ldt=74, dsk=76, x=78, wqkv=80, wo=82, out=84, dbg=86, ws=88)
sWS = 44
WSRD = f"s[{sWS}:{sWS+3}]"
sT = 90
vL16 = 1
vE = 127

SLOT = 28672; NSLOT = 3; AHEAD = 2
L_TA = 86016; L_TBO = 11088; L_TCH = 27984
L_T = 143360
L_CNT = 147968
C_G = L_CNT; C_CV = L_CNT + 4; C_WO = L_CNT + 8; C_KR = L_CNT + 12
def C_RDY(c): return L_CNT + 16 + 4*c
def C_DONE(c): return L_CNT + 48 + 4*c
C_FU = L_CNT + 80; C_F1 = L_CNT + 84; C_F2 = L_CNT + 88; C_ISS = L_CNT + 92; C_T = L_CNT + 96; C_GU = L_CNT + 100; C_GT = L_CNT + 104; C_OWN = L_CNT + 108; C_OWN2 = L_CNT + 112; C_PAR = L_CNT + 116; C_GT2 = L_CNT + 120; C_LAND = L_CNT + 128; C_F4 = L_CNT + 140
L_PAR = 57344
L_KREV = 148480; KREV_SZ = 7680
L_UTL = 57344 + 4096
L_WOT = 86016
L_UC = 57344; UC_RHO = 4160; UC_CH = 16640
L_PART = 90624
L_QS = 49152
L_SCR = 131072
L_OT = 0
L_PC = 32768

class DSQ:
    def __init__(self, A): self.A = A; self.q = []
    def issue(self, tag): self.q.append(tag)
    def wait(self, tag):
        if tag not in self.q: return
        i = len(self.q) - 1 - self.q[::-1].index(tag)
        n = len(self.q) - 1 - i
        assert n <= 15, n
        self.A(f"s_waitcnt lgkmcnt({n})")
        self.q = self.q[i+1:]
    def room(self):
        if len(self.q) >= 15: self.wait(self.q[0])
    def drain(self):
        self.A("s_waitcnt lgkmcnt(0)"); self.q = []

def stamp(A, k):
    if DBG and k in DBGMAP:
        j = DBGMAP[k]
        A("s_memtime s[48:49]")
        A("s_memrealtime s[50:51]")
        A("s_waitcnt lgkmcnt(0)")
        A(f"v_writelane_b32 v125, s48, {2*j}")
        A(f"v_writelane_b32 v125, s50, {2*j+1}")
    if PROF:
        A("s_memtime s[48:49]")
        A("s_waitcnt lgkmcnt(0)")
        A(f"v_writelane_b32 v125, s48, {k}")

def write_stamps(A):
    if not PROF: return
    A("s_memrealtime s[40:41]")
    A("s_waitcnt lgkmcnt(0)")
    A(f"v_writelane_b32 v125, s40, 62")
    A(f"v_writelane_b32 v125, s91, 63")
    A(f"s_add_u32 s92, s{SP['ws']}, {WS_PROF}")
    A(f"s_addc_u32 s93, s{SP['ws']+1}, 0")
    A("s_mov_b32 s94, 0x200000")
    A("s_mov_b32 s95, 0x00020000")
    A("s_lshl_b32 s42, s2, 4"); A("s_add_u32 s42, s42, s3"); A("s_lshl_b32 s42, s42, 8")
    A("v_lshlrev_b32 v16, 2, v0")
    A("buffer_store_dword v125, v16, s[92:95], s42 offen")
    A("s_waitcnt vmcnt(0)")

def poll(A, label, vaddr, soff, mask_lo, vtmp, sleep=4):
    A(f"s_mov_b32 s30, {mask_lo}")
    A("s_mov_b32 s31, 0")
    A("s_mov_b64 exec, s[30:31]")
    A("s_mov_b32 s29, 0")
    A.label(label)
    A(f"buffer_load_dword v{vtmp}, v{vaddr}, {WSRD}, s{soff} offen sc1")
    A("s_add_u32 s29, s29, 1")
    A("s_waitcnt vmcnt(0)")
    A(f"v_cmp_ne_u32 vcc, s{sT}, v{vtmp}")
    A("s_cmp_gt_u32 s29, 0x10000")
    A(f"s_cbranch_scc1 {label}_x")
    A(f"s_cbranch_vccz {label}_x")
    A(f"s_sleep {sleep}")
    A(f"s_branch {label}")
    A.label(label + "_x")
    A("s_mov_b64 exec, -1")

def check_or_poll(A, label, vaddr, soff, mask_lo, vflag):
    A(f"s_mov_b32 s30, {mask_lo}")
    A("s_mov_b32 s31, 0")
    A(f"v_cmp_ne_u32 vcc, s{sT}, v{vflag}")
    A("s_nop 1")
    A("s_and_b64 vcc, vcc, s[30:31]")
    A(f"s_cbranch_vccz {label}_ok")
    poll(A, label, vaddr, soff, mask_lo, vflag)
    A.label(label + "_ok")

def flag_store(A, soff, vtmp, vzero):
    A(f"v_mov_b32 v{vtmp}, s{sT}")
    A(f"v_mov_b32 v{vzero}, 0")
    A("s_mov_b64 exec, 1")
    A(f"buffer_store_dword v{vtmp}, v{vzero}, {WSRD}, s{soff} offen sc1")
    A("s_mov_b64 exec, -1")

def get_tag(A, vt=126, vd=None):
    L = A.newlabel("GT")
    A(f"v_mov_b32 v{vt}, {C_T}")
    A("s_mov_b32 s43, 0")
    A.label(L)
    A(f"ds_read_b32 v{vE}, v{vt}")
    A("s_add_u32 s43, s43, 1")
    A("s_waitcnt lgkmcnt(0)")
    A(f"v_readfirstlane_b32 s{sT}, v{vE}")
    A("s_cmp_gt_u32 s43, 0x80000")
    A(f"s_cbranch_scc1 {L}_x")
    A(f"s_cmp_eq_u32 s{sT}, 0")
    A(f"s_cbranch_scc1 {L}")
    A.label(L + "_x")

def make_tag(A):
    A(f"v_readfirstlane_b32 s{sT}, v{vE}")
    A("s_nop 3")
    A(f"s_mul_i32 s{sT}, s{sT}, 0x9e3779b1")
    A(f"s_add_u32 s{sT}, s{sT}, 0x7f4a7c15")
    A(f"s_or_b32 s{sT}, s{sT}, 1")
    A(f"v_mov_b32 v{vE}, s{sT}")
    A(f"v_mov_b32 v126, {C_T}")
    A(f"ds_write_b32 v126, v{vE}")

def gsync(A, cnt_addr, target, vt):
    A("s_waitcnt lgkmcnt(0)")
    lsig(A, cnt_addr, vt)
    lwait(A, cnt_addr, target, vt, sleep=int(os.environ.get('GSL', 0)))

def lsig(A, addr, vt):
    A(f"v_mov_b32 v{vt}, {addr}")
    A(f"v_mov_b32 v{vt+1}, 1")
    A("s_mov_b64 exec, 1")
    A(f"ds_add_u32 v{vt}, v{vt+1}")
    A("s_mov_b64 exec, -1")

def lwait(A, addr, target, vt, sleep=0):
    L = A.newlabel("LW")
    A(f"v_mov_b32 v{vt}, {addr}")
    A("s_mov_b32 s43, 0")
    A.label(L)
    A(f"ds_read_b32 v{vt+1}, v{vt}")
    A("s_add_u32 s43, s43, 1")
    A("s_waitcnt lgkmcnt(0)")
    A(f"v_readfirstlane_b32 s42, v{vt+1}")
    A("s_cmp_gt_u32 s43, 0x80000")
    A(f"s_cbranch_scc1 {L}_x")
    A(f"s_cmp_ge_u32 s42, {target}")
    if sleep:
        A(f"s_cbranch_scc1 {L}_x")
        A(f"s_sleep {sleep}")
        A(f"s_branch {L}")
    else:
        A(f"s_cbranch_scc0 {L}")
    A.label(L + "_x")

def merge(*chains):
    out = []; idx = [0] * len(chains)
    while any(idx[i] < len(chains[i]) for i in range(len(chains))):
        for i, ch in enumerate(chains):
            if idx[i] < len(ch):
                out.append(ch[idx[i]]); idx[i] += 1
    return out

class Rec:
    def __init__(self): self.L = []
    def __call__(self, s): self.L.append(s)

def chan_pair(A, dst, tmp):
    A(f"s_and_b32 s{dst}, s2, 7"); A(f"s_lshl_b32 s{dst}, s{dst}, 5"); A(f"s_lshr_b32 s{tmp}, s2, 3")
    A(f"s_add_u32 s{dst}, s{dst}, s{tmp}"); A(f"s_lshl_b32 s{dst}, s{dst}, 1")

def ka_wait(A):
    A("s_waitcnt lgkmcnt(0)")
    if PROF: A("s_mov_b32 s91, s38")
    srd(A, sWS, SP['ws'], WS_TOTAL)

def p1_ids(A):
    A("s_and_b32 s17, s2, 7")
    A("s_lshr_b32 s18, s2, 3")
    A("s_and_b32 s12, s17, 3")
    A("s_lshl_b32 s12, s12, 2")
    A("s_and_b32 s19, s18, 3")
    A("s_add_u32 s12, s12, s19")
    A("s_lshr_b32 s13, s17, 2")
    A("s_lshl_b32 s13, s13, 3")
    A("s_lshr_b32 s19, s18, 2")
    A("s_add_u32 s13, s13, s19")

def conv_rolled(A, vUA, vKB0, vKB1, ACC0, ACC1, sD, sS):
    NB = 4
    FA, FB0, FB1 = 8, 24, 40
    def rds(j, b, with0):
        off = (j//2)*80 + (j%2)*32
        L = [f"ds_read_b64 {v(FA+4*b,2)}, v{vUA} offset:{32*j}",
             f"ds_read_b64 {v(FA+4*b+2,2)}, v{vUA} offset:{32*j+8}",
             f"ds_read_b128 {v(FB1+4*b,4)}, v{vKB1} offset:{off}"]
        if with0: L.append(f"ds_read_b128 {v(FB0+4*b,4)}, v{vKB0} offset:{off}")
        return L
    for j in range(3):
        for ins in rds(j, j, True): A(ins)
    A(f"s_cmp_eq_u32 s{sD}, 0")
    A("s_cbranch_scc1 CV_SL0")
    A.label("CV_DL")
    for j in range(4):
        nxt = rds(j + 3, (j + 3) % NB, True)
        A("s_waitcnt lgkmcnt(9)")
        A(f"v_mfma_f32_32x32x16_bf16 {v(ACC1,16)}, {v(FA+4*j,4)}, {v(FB1+4*j,4)}, {v(ACC1,16)}")
        A(nxt[0]); A(nxt[1])
        A("s_waitcnt lgkmcnt(10)")
        A(f"v_mfma_f32_32x32x16_bf16 {v(ACC0,16)}, {v(FA+4*j,4)}, {v(FB0+4*j,4)}, {v(ACC0,16)}")
        A(nxt[2]); A(nxt[3])
    A(f"v_add_u32 v{vUA}, 128, v{vUA}")
    A(f"v_add_u32 v{vKB0}, 160, v{vKB0}")
    A(f"v_add_u32 v{vKB1}, 160, v{vKB1}")
    A(f"s_sub_u32 s{sD}, s{sD}, 1")
    A(f"s_cmp_lg_u32 s{sD}, 0")
    A("s_cbranch_scc1 CV_DL")
    A.label("CV_SL0")
    A(f"s_cmp_eq_u32 s{sS}, 0")
    A("s_cbranch_scc1 CV_DONE")
    A.label("CV_SL")
    for j in range(4):
        nxt = rds(j + 3, (j + 3) % NB, False)
        A("s_waitcnt lgkmcnt(6)")
        A(f"v_mfma_f32_32x32x16_bf16 {v(ACC1,16)}, {v(FA+4*j,4)}, {v(FB1+4*j,4)}, {v(ACC1,16)}")
        for ins in nxt: A(ins)
    A(f"v_add_u32 v{vUA}, 128, v{vUA}")
    A(f"v_add_u32 v{vKB1}, 160, v{vKB1}")
    A(f"s_sub_u32 s{sS}, s{sS}, 1")
    A(f"s_cmp_lg_u32 s{sS}, 0")
    A("s_cbranch_scc1 CV_SL")
    A.label("CV_DONE")
    A("s_waitcnt lgkmcnt(0)")

vY = [90, 91, 126, 127]

def p1_loader(A):
    vDX, vDX1, vDW = 2, 3, 5
    A("s_sub_u32 s15, s3, 4")
    A("s_setprio 3")
    A("v_lshrrev_b32 v9, 3, v0")
    A("v_lshrrev_b32 v10, 1, v9")
    A("v_xor_b32 v10, v10, v0")
    A("v_and_b32 v10, 7, v10")
    A("v_lshlrev_b32 v10, 4, v10")
    A(f"v_lshl_add_u32 v{vDX}, v9, 10, v10")
    A(f"v_xor_b32 v{vDX1}, 64, v{vDX}")
    A("s_lshl_b32 s20, s12, 17")
    A("s_lshl_b32 s17, s15, 14")
    A("s_add_u32 s20, s20, s17")
    A("s_lshl_b32 s21, s13, 6")
    A("s_lshl_b32 s22, s15, 11")
    A("s_lshl_b32 s23, s15, 10")
    A("s_add_u32 s23, s23, 16384")
    A("s_lshr_b32 s25, s2, 5")
    A("s_lshr_b32 s17, s2, 3")
    A("s_and_b32 s17, s17, 3")
    A("s_lshl_b32 s17, s17, 1")
    A("s_add_u32 s25, s25, s17")
    A("s_waitcnt lgkmcnt(0)")
    srd(A, 4, SP['x'], 2048*512*2)
    srd(A, 8, SP['wqkv'], 512*1536*2)
    def issue_x(c):
        slot = (c % NSLOT) * SLOT
        A(f"s_add_u32 s26, s25, {c}")
        A("s_and_b32 s26, s26, 7")
        A(f"s_lshl_b32 s24, s26, 7")
        A(f"s_add_u32 s24, s24, s20")
        A(f"s_add_u32 m0, s22, {slot}")
        A(f"s_mul_i32 s27, s26, {64*3072}")
        A(f"buffer_load_dwordx4 v{vDX}, s[4:7], s24 offen lds")
        A(f"s_add_u32 m0, s22, {slot + 1024}")
        A(f"s_add_u32 s24, s24, 8192")
        A(f"buffer_load_dwordx4 v{vDX1}, s[4:7], s24 offen lds")
    def issue_w(c, nw):
        slot = (c % NSLOT) * SLOT
        A(f"s_add_u32 m0, s23, {slot}")
        A(f"s_add_u32 s27, s27, s21")
        A(f"buffer_load_dwordx4 v{vDW}, s[8:11], s27 offen lds")
        if nw == 2:
            A(f"s_add_u32 m0, s23, {slot + 8192}")
            A("s_nop 0")
            A(f"buffer_load_dwordx4 v{vDW+1}, s[8:11], s27 offen lds")
    def wsetup():
        A("s_lshl_b32 s17, s15, 6")
        A("s_movk_i32 s18, 3072")
        A("s_mov_b32 s19, 43691")
        for i in range(2):
            A(f"v_add_u32 v9, s17, v0")
            if i: A(f"v_add_u32 v9, 512, v9")
            A("v_mul_u32_u24 v10, s19, v9")
            A("v_lshrrev_b32 v10, 19, v10")
            A("v_mul_u32_u24 v11, 12, v10")
            A("v_sub_u32 v11, v9, v11")
            A("v_lshrrev_b32 v12, 2, v10")
            A("v_and_b32 v12, 2, v12")
            A("v_xor_b32 v11, v11, v12")
            A("v_lshrrev_b32 v12, 2, v11")
            A("v_and_b32 v11, 3, v11")
            A("v_lshlrev_b32 v11, 4, v11")
            A("v_lshl_add_u32 v11, v12, 10, v11")
            A(f"v_mad_u32_u24 v{vDW+i}, v10, s18, v11")
    def gtab():
        A("s_getpc_b64 s[32:33]")
        L = A.newlabel("CPC"); A.label(L)
        A(f"s_add_u32 s32, s32, GTAB-{L}")
        A("s_addc_u32 s33, s33, 0")
        A("s_and_b32 s17, s15, 3"); A("s_lshl_b32 s17, s17, 11")
        A("v_lshlrev_b32 v14, 5, v0")
        A("v_add_u32 v14, s17, v14")
        A("global_load_dwordx4 v[96:99], v14, s[32:33]")
        A("global_load_dwordx4 v[100:103], v14, s[32:33] offset:16")
    def ut_loads():
        A("buffer_load_dwordx4 v[108:111], v117, s[32:35], 0 offen sc1")
        A("buffer_load_dwordx4 v[112:115], v116, s[32:35], 0 offen sc1")
        A("buffer_load_dwordx4 v[120:123], v119, s[32:35], 0 offen sc1")
    def ut_prep():
        chan_pair(A, 14, 17)
        A("s_lshr_b32 s16, s15, 2")
        A("s_add_u32 s17, s14, s16")
        A("s_lshl_b32 s17, s17, 12")
        A(f"s_add_u32 s17, s17, {WS_UT}")
        ka_wait(A)
        A(f"s_add_u32 s32, s{SP['ws']}, s17"); A(f"s_addc_u32 s33, s{SP['ws']+1}, 0")
        A("s_mov_b32 s34, 4096"); A("s_mov_b32 s35, 0x00020000")
        A("s_and_b32 s19, s15, 3"); A("s_lshl_b32 s19, s19, 10")
        A(f"v_add_u32 v116, s19, v{vL16}")
        A("v_subrev_u32 v117, 16, v116")
        A("v_cmp_eq_u32 vcc, 0, v116")
        A("v_mov_b32 v118, 4096")
        A("s_nop 0")
        A("v_cndmask_b32 v117, v117, v118, vcc")
        A("v_mov_b32 v119, 4096")
        A(f"v_mov_b32 v120, {255*16}")
        A("v_cmp_eq_u32 vcc, 3, v0")
        A("s_nop 1")
        A("v_cndmask_b32 v119, v119, v120, vcc")
    def loop(nw):
        per = 2 + nw
        issue_w(0, nw)
        if os.environ.get("EARLY") == "2": A("s_barrier")
        issue_x(1); issue_w(1, nw)
        for c in range(8):
            last = min(7, c + 1)
            if c != 7: A(f"s_waitcnt vmcnt({per * (last - c)})")
            A("s_barrier")
            if c + AHEAD < 8:
                issue_x(c + AHEAD); issue_w(c + AHEAD, nw)
            if c == 5: ut_prep()
            if c == 6:
                L = A.newlabel("CVC")
                A(f"v_mov_b32 v30, {C_FU}")
                A("ds_read_b32 v31, v30")
                A("s_waitcnt lgkmcnt(0)")
                A("v_readfirstlane_b32 s40, v31")
                A("s_nop 0")
                A("s_cmp_eq_u32 s40, 0")
                A(f"s_cbranch_scc1 {L}")
                ut_loads()
                A("s_waitcnt vmcnt(3)")
                A(f"s_branch {L}b")
                A.label(L)
                A("s_waitcnt vmcnt(0)")
                A.label(L + "b")
    issue_x(0)
    if os.environ.get("EARLY") == "1": A("s_barrier")
    wsetup()
    A("s_cmp_ge_u32 s15, 4")
    A("s_cbranch_scc1 P1_LOADER1")
    loop(2)
    A("s_branch P1_LOADER_END")
    A.label("P1_LOADER1")
    loop(1)
    A.label("P1_LOADER_END")
    A("s_setprio 1")
    stamp(A, 28)
    if os.environ.get("X_P1ONLY"): A("s_branch K_FIN")
    A("s_cmp_lg_u32 s40, 0")
    A("s_cbranch_scc1 CV_HAVE")
    lwait(A, C_FU, 1, 72, sleep=1)
    ut_loads()
    A.label("CV_HAVE")
    get_tag(A, vt=30)
    def copies(D, dest):
        T0, T1, T2 = 44, 48, 52
        for j in range(4): A(f"v_alignbit_b32 v{T0+j}, v{D+j+1}, v{D+j}, 16")
        for j in range(4): A(f"v_mov_b32 v{T1+j}, v{D+1+j}")
        for j in range(4): A(f"v_alignbit_b32 v{T2+j}, v{D+j+2}, v{D+j+1}, 16")
        A(f"ds_write_b128 v{dest}, {v(T0,4)}")
        A(f"ds_write_b128 v{dest}, {v(T1,4)} offset:{UC_RHO}")
        A(f"ds_write_b128 v{dest}, {v(T2,4)} offset:{2*UC_RHO}")
        A(f"ds_write_b128 v{dest}, {v(D+2,4)} offset:{3*UC_RHO}")
    A("s_lshr_b32 s16, s15, 2")
    A(f"s_mul_i32 s21, s16, {UC_CH}")
    A(f"s_add_u32 s21, s21, {L_UC + 48}")
    A("v_add_u32 v19, s21, v116")
    A(f"s_mul_i32 s23, s16, {KREV_SZ}")
    A(f"s_add_u32 s23, s23, {L_KREV}")
    A("v_and_b32 v9, 31, v0")
    A("v_lshrrev_b32 v10, 5, v0")
    A("v_and_b32 v11, 3, v9")
    A(f"v_mul_u32_u24 v11, {UC_RHO}, v11")
    A("v_lshrrev_b32 v12, 2, v9")
    A("v_lshl_add_u32 v11, v12, 3, v11")
    A("v_lshl_add_u32 v11, v10, 4, v11")
    A(f"s_mul_i32 s24, s16, {UC_CH}")
    A(f"s_add_u32 s24, s24, {L_UC}")
    A("v_add_u32 v4, s24, v11")
    A("v_sub_u32 v11, 63, v9")
    A("v_mul_u32_u24 v11, 80, v11")
    A("v_lshl_add_u32 v11, v10, 4, v11")
    A("v_add_u32 v5, s23, v11")
    A("v_subrev_u32 v6, 2560, v5")
    A("s_and_b32 s24, s15, 3")
    A(f"s_mul_i32 s25, s16, 28672")
    A("s_lshl_b32 s26, s24, 12")
    A("s_add_u32 s25, s25, s26")
    A(f"s_add_u32 s25, s25, {L_PART}")
    A(f"v_add_u32 v7, s25, v{vL16}")
    A("s_mul_i32 s26, s24, 24")
    A("s_cmp_eq_u32 s24, 3"); A("s_cselect_b32 s26, 80, s26")
    A("s_cmp_ge_u32 s24, 2"); A("s_cselect_b32 s28, 4, 6")
    A("s_cmp_eq_u32 s24, 3"); A("s_cselect_b32 s28, 0, s28")
    A("s_cmp_eq_u32 s24, 2"); A("s_cselect_b32 s29, 4, 0")
    A("s_cmp_eq_u32 s24, 3"); A("s_cselect_b32 s29, 12, s29")
    A("s_lshl_b32 s27, s26, 5")
    A("v_add_u32 v4, s27, v4")
    A("s_mul_i32 s27, s26, 40")
    A("v_add_u32 v5, s27, v5")
    A("v_add_u32 v6, s27, v6")
    A("s_waitcnt vmcnt(0)")
    copies(108, 19)
    A("s_cmp_eq_u32 s19, 0")
    A("s_cbranch_scc0 CV_NOX2")
    for j in range(4): A(f"v_mov_b32 v{56+j}, v{120+j}")
    for j in range(4): A(f"v_mov_b32 v{60+j}, 0")
    A(f"v_mov_b32 v30, {259*16}")
    A("v_cmp_eq_u32 vcc, 3, v0")
    A("s_sub_u32 s21, s21, 48")
    A(f"v_cndmask_b32 v30, v{vL16}, v30, vcc")
    A("v_add_u32 v30, s21, v30")
    A("s_mov_b64 exec, 15")
    copies(56, 30)
    A("s_mov_b64 exec, -1")
    A.label("CV_NOX2")
    for i in range(32): A(f"v_mov_b32 v{56+i}, 0")
    gsync(A, C_CV, 8, 8)
    stamp(A, 30)
    ACC0, ACC1 = 56, 72
    conv_rolled(A, 4, 5, 6, ACC0, ACC1, 28, 29)
    A("s_nop 15")
    for qd in range(4):
        A(f"ds_write_b128 v7, {v(ACC1+4*qd,4)} offset:{qd*1024}")
    A("s_cmp_eq_u32 s24, 3")
    A("s_cbranch_scc1 CV_PE")
    for qd in range(4):
        A(f"ds_write_b128 v7, {v(ACC0+4*qd,4)} offset:{16384 + qd*1024}")
    A.label("CV_PE")
    stamp(A, 31)
    gsync(A, C_CV, 16, 8)
    stamp(A, 32)
    A("s_lshl_b32 s26, s24, 10")
    A(f"s_add_u32 s26, s26, {L_PART}")
    A(f"v_add_u32 v4, s26, v{vL16}")
    A("s_cmp_eq_u32 s16, 0")
    A("s_cbranch_scc1 CV_F0")
    for c in range(2):
        for p in range(4):
            A(f"ds_read_b128 {v(16+16*c+4*p,4)}, v4 offset:{c*28672 + p*4096}")
    A("s_waitcnt lgkmcnt(0)")
    for c in range(2):
        for r in range(4):
            b_ = 16 + 16*c + r
            A(f"v_add_f32 v{b_}, v{b_}, v{b_+4}"); A(f"v_add_f32 v{b_+8}, v{b_+8}, v{b_+12}")
        for r in range(4):
            b_ = 16 + 16*c + r
            A(f"v_add_f32 v{b_}, v{b_}, v{b_+8}")
    A("s_branch CV_F1")
    A.label("CV_F0")
    for c in range(2):
        for p in range(3):
            A(f"ds_read_b128 {v(16+16*c+4*p,4)}, v4 offset:{c*28672 + 16384 + p*4096}")
    A("s_waitcnt lgkmcnt(0)")
    for c in range(2):
        for r in range(4):
            b_ = 16 + 16*c + r
            A(f"v_add_f32 v{b_}, v{b_}, v{b_+4}")
        for r in range(4):
            b_ = 16 + 16*c + r
            A(f"v_add_f32 v{b_}, v{b_}, v{b_+8}")
    A.label("CV_F1")
    for r in range(4):
        A(f"v_cvt_pk_bf16_f32 v{vY[r]}, v{16+r}, v{32+r}")
    A("s_lshl_b32 s36, s16, 21")
    A("s_lshl_b32 s25, s24, 14")
    A("s_add_u32 s36, s36, s25")
    A("s_lshl_b32 s25, s14, 1")
    A("s_add_u32 s36, s36, s25")
    A("s_setprio 0")
    stamp(A, 33)

def p1_compute(A):
    vFR, vACC, vXA, vWA = 8, 64, 112, 118
    vXC, vWC = 114, 116
    A("v_and_b32 v4, 15, v0")
    A("v_lshrrev_b32 v5, 4, v0")
    A("v_lshrrev_b32 v6, 1, v4")
    A("v_xor_b32 v6, v6, v5")
    A("v_lshlrev_b32 v6, 4, v6")
    A("v_lshl_add_u32 v6, v4, 7, v6")
    A("s_lshr_b32 s17, s3, 1")
    A("s_lshl_b32 s17, s17, 13")
    A(f"v_add_u32 v{vXA}, s17, v6")
    A(f"v_xor_b32 v{vXA+1}, 64, v{vXA}")
    A("v_lshrrev_b32 v6, 2, v4")
    A("v_lshl_add_u32 v6, v5, 3, v6")
    A("v_mul_u32_u24 v6, 192, v6")
    A("v_and_b32 v7, 3, v4")
    A("v_lshl_add_u32 v6, v7, 3, v6")
    A("s_and_b32 s17, s3, 1")
    A("v_xor_b32 v7, s17, v5")
    A("v_and_b32 v7, 1, v7")
    A(f"v_lshl_add_u32 v{vWA}, v7, 5, v6")
    A("s_and_b32 s18, s3, 1")
    A("s_lshl_b32 s19, s13, 1")
    A("s_add_u32 s18, s18, s19")
    A(f"s_lshl_b32 s16, s18, {5+FS}")
    A("s_lshl_b32 s18, s18, 16")
    A("s_lshr_b32 s19, s3, 1")
    A("s_lshl_b32 s24, s12, 1")
    A("s_add_u32 s24, s24, s19")
    A(f"s_lshl_b32 s25, s24, {FS}")
    A("s_add_u32 s16, s16, s25")
    A(f"s_add_u32 s16, s16, {WS_F1}")
    A("s_lshl_b32 s19, s24, 11")
    A("s_add_u32 s18, s18, s19")
    A(f"s_mov_b32 s17, 0x{f32bits(C_SCALE):08x}")
    A("s_setprio 3")
    q = DSQ(A)
    def fr(buf): return vFR + 28 * buf
    def rd_list(step):
        c, ks2 = step // 2, step % 2
        b = fr(step % 2)
        L = []
        st, so = 0, 0
        for hf in range(2):
            L.append((f"ds_read_b64_tr_b16 {v(b+16+2*hf,2)}, v{vWC} offset:{16384 + (32*ks2+4*hf)*192}", ("w", step, 0, hf)))
        for ti in range(4):
            L.append((f"ds_read_b128 {v(b+4*ti,4)}, v{vXC+ks2} offset:{ti*2048}", ("x", step, ti)))
        for gi in range(1, 3):
            for hf in range(2):
                L.append((f"ds_read_b64_tr_b16 {v(b+16+4*gi+2*hf,2)}, v{vWC} offset:{16384 + (32*ks2+4*hf)*192 + 64*gi}", ("w", step, gi, hf)))
        return L
    def rd(step):
        for ins, tag in rd_list(step):
            A(ins); q.issue(tag)
    def mm(step, nxt=None):
        b = fr(step % 2)
        R = rd_list(nxt) if nxt is not None else []
        if os.environ.get("X_BURST"):
            for ins, tag in R:
                A(ins); q.issue(tag)
            R = []
        n = 0
        for gi in range(3):
            for ti in range(4):
                acc = vACC + (gi*4 + ti)*4
                X = v(b+4*ti, 4); W = v(b+16+4*gi, 4)
                cc = "0" if step == 0 else v(acc, 4)
                if gi == 0: q.wait(("x", step, ti))
                if ti == 0: q.wait(("w", step, gi, 1))
                if gi < 2: A(f"v_mfma_f32_16x16x32_bf16 {v(acc,4)}, {W}, {X}, {cc}")
                else:      A(f"v_mfma_f32_16x16x32_bf16 {v(acc,4)}, {X}, {W}, {cc}")
                if n < len(R):
                    A(R[n][0]); q.issue(R[n][1])
                n += 1
    kg_scalars(A, 3, 20, False)
    A(f"s_mul_i32 s21, s22, {L_TCH}")
    A("s_lshl_b32 s23, s24, 8")
    A("s_add_u32 s21, s21, s23")
    A(f"s_add_u32 s21, s21, {L_TA + L_TBO}")
    A("v_lshlrev_b32 v8, 2, v0")
    A("v_add_u32 v8, s21, v8")
    lwait(A, C_PAR, 4, 22, sleep=1)
    kg_read(A, 22, 24, 2, 21)
    A("s_cmp_eq_u32 s22, 0")
    A("s_cselect_b32 s21, 16, 0")
    A("s_lshl_b32 s26, s26, s21"); A("s_and_b32 s26, s26, 0xffff0000")
    kg_setup(A, 26, 21, False)
    kg_bside(A, 8)
    A("s_waitcnt lgkmcnt(0)")
    lsig(A, C_G, 2)
    stamp(A, 9)
    A("v_and_b32 v80, 15, v0")
    A("v_lshrrev_b32 v81, 4, v0")
    A("v_lshrrev_b32 v82, 2, v80")
    A("v_lshl_add_u32 v82, v81, 3, v82")
    A("v_lshlrev_b32 v84, 5, v82")
    A("v_lshlrev_b32 v82, 7, v82")
    A("v_and_b32 v83, 3, v80")
    A("v_lshl_add_u32 v82, v83, 3, v82")
    A("v_lshl_add_u32 v84, v83, 3, v84")
    A(f"v_add_u32 v84, {L_WOT}, v84")
    A("s_lshl_b32 s20, s3, 5")
    A(f"s_add_u32 s20, s20, {L_UTL}")
    A("v_add_u32 v82, s20, v82")
    A("v_lshlrev_b32 v83, 12, v80")
    A("v_lshl_add_u32 v83, v81, 4, v83")
    A("s_and_b32 s20, s2, 7"); A("s_lshl_b32 s20, s20, 2"); A("s_add_u32 s20, s20, s3")
    A(f"s_lshl_b32 s21, s20, {5+FS}")
    A("s_lshl_b32 s20, s20, 16")
    A("s_lshr_b32 s22, s2, 3")
    A("s_lshl_b32 s23, s22, 7")
    A("s_add_u32 s20, s20, s23")
    A(f"s_add_u32 s20, s20, {WS_UT}")
    A(f"s_lshl_b32 s23, s22, {FS}")
    A("s_add_u32 s21, s21, s23")
    A(f"s_add_u32 s21, s21, {WS_FU}")
    A("s_lshr_b32 s24, s2, 3"); A(f"s_lshl_b32 s22, s24, {3+FS}"); A("s_lshl_b32 s24, s24, 14")
    A("s_and_b32 s19, s2, 7"); A(f"s_lshl_b32 s23, s19, {FS}"); A("s_lshl_b32 s19, s19, 11")
    A("s_add_u32 s24, s24, s19")
    A(f"s_add_u32 s24, s24, {WS_WOF}")
    A("s_add_u32 s22, s22, s23")
    A(f"s_add_u32 s22, s22, {WS_F3}")
    lwait(A, C_GU, 4, 86, sleep=1)
    for p in range(2):
        for hf in range(2):
            A(f"ds_read_b64_tr_b16 {v(64+4*p+2*hf,2)}, v82 offset:{(32*p+4*hf)*128}")
    for s_ in range(2):
        for hf in range(2):
            A(f"ds_read_b64_tr_b16 {v(72+4*s_+2*hf,2)}, v84 offset:{(32*s_+4*hf)*32}")
    A("s_waitcnt lgkmcnt(0)")
    stamp(A, 25)
    A(f"buffer_store_dwordx4 v[64:67], v83, {WSRD}, s20 offen sc1")
    A(f"buffer_store_dwordx4 v[68:71], v83, {WSRD}, s20 offen offset:64 sc1")
    A("s_cmp_eq_u32 s3, 0")
    A("s_cbranch_scc0 PC_NW")
    A(f"buffer_store_dwordx4 v[72:75], v{vL16}, {WSRD}, s24 offen sc1")
    A(f"buffer_store_dwordx4 v[76:79], v{vL16}, {WSRD}, s24 offen offset:1024 sc1")
    A.label("PC_NW")
    get_tag(A)
    stamp(A, 19)
    def setslot(sreg):
        A(f"v_add_u32 v{vXC}, s{sreg}, v{vXA}")
        A(f"v_add_u32 v{vXC+1}, s{sreg}, v{vXA+1}")
        A(f"v_add_u32 v{vWC}, s{sreg}, v{vWA}")
    A("s_mov_b32 s26, 0")
    A("s_mov_b32 s27, 1")
    setslot(26)
    A("s_barrier")
    stamp(A, 10)
    rd(0)
    mm(0, 1)
    q.drain()
    A.label("PC_LOOP")
    A("s_add_u32 s26, s26, %d" % SLOT)
    A("s_cmp_eq_u32 s26, %d" % (NSLOT * SLOT))
    A("s_cselect_b32 s26, 0, s26")
    A("s_barrier")
    setslot(26)
    A("s_cmp_eq_u32 s27, 1")
    A("s_cbranch_scc0 PC_NFL")
    A("s_waitcnt vmcnt(0)")
    flag_store(A, 21, 2, 3)
    A("s_cmp_eq_u32 s3, 0")
    A("s_cbranch_scc0 PC_NFL")
    flag_store(A, 22, 2, 3)
    A.label("PC_NFL")
    mm(1, 2)
    mm(2, 3)
    q.drain()
    A("s_add_u32 s27, s27, 1")
    A("s_cmp_lt_u32 s27, 8")
    A("s_cbranch_scc1 PC_LOOP")
    lsig(A, C_DONE(7), 4)
    mm(15)
    stamp(A, 1)
    T = vFR
    n = 0
    for gi, base in ((1, WS_K), (2, WS_V), (0, WS_Q)):
        if gi == 0:
            for ti in range(4):
                for r in range(4):
                    A(f"v_mul_f32 v{vACC+ti*4+r}, s17, v{vACC+ti*4+r}")
        for pair in range(2):
            a0 = vACC + (gi*4 + 2*pair)*4; a1 = a0 + 4
            t = T + 4 * n; n += 1
            A(f"v_cvt_pk_bf16_f32 v{t}, v{a0}, v{a0+1}")
            A(f"v_cvt_pk_bf16_f32 v{t+1}, v{a0+2}, v{a0+3}")
            A(f"v_cvt_pk_bf16_f32 v{t+2}, v{a1}, v{a1+1}")
            A(f"v_cvt_pk_bf16_f32 v{t+3}, v{a1+2}, v{a1+3}")
            A(f"s_add_u32 s24, s18, {base + pair*1024}")
            A("s_nop 0")
            op = "v_permlane32_swap_b32" if gi == 2 else "v_permlane16_swap_b32"
            A(f"{op} v{t}, v{t+2}")
            A(f"{op} v{t+1}, v{t+3}")
            A("s_nop 1")
            A(f"buffer_store_dwordx4 {v(t,4)}, v{vL16}, {WSRD}, s24 offen sc1")
    stamp(A, 18)
    A("s_waitcnt vmcnt(0)")
    get_tag(A)
    flag_store(A, 16, 2, 3)
    lsig(A, C_OWN, 2)
    A("s_setprio 0")
    stamp(A, 2)
    if os.environ.get("X_P1ONLY"): A("s_branch K_FIN")

def cmul(A, D, X, S, T):
    A(f"v_pk_mul_f32 {v(T,2)}, {v(X,2)}, {v(S,2)} op_sel:[0,0] op_sel_hi:[1,0]")
    A(f"v_pk_fma_f32 {v(D,2)}, {v(X,2)}, {v(S,2)}, {v(T,2)} op_sel:[1,1,0] op_sel_hi:[0,1,1] neg_lo:[0,1,0]")

def fl(p): return f"{float(p)!r}" if p in (1, 2, 4) else f"0x{f32bits(float(p)):08x}"
def anchor(A, D, p, vt2, vw, tmp, conj=False):
    A(f"v_mul_f32 v{tmp}, {fl(p)}, v{vt2}")
    A(f"v_mul_f32 v{tmp+1}, {fl(p)}, v{vw}")
    A(f"v_exp_f32 v{tmp}, v{tmp}")
    A(f"v_fract_f32 v{tmp+1}, v{tmp+1}")
    A(f"v_cos_f32 v{D}, v{tmp+1}")
    A(f"v_sin_f32 v{D+1}, v{tmp+1}")
    A("s_nop 0")
    A(f"v_mul_f32 v{D}, v{D}, v{tmp}")
    if conj: A(f"v_mul_f32_e64 v{D+1}, -v{D+1}, v{tmp}")
    else: A(f"v_mul_f32 v{D+1}, v{D+1}, v{tmp}")

def kg_scalars(A, kw_sreg, s0, dsk):
    chan_pair(A, s0, s0+1)
    A(f"s_lshr_b32 s{s0+2}, s{kw_sreg}, 1")
    A(f"s_and_b32 s{s0+4}, s{kw_sreg}, 1")
    A(f"s_lshl_b32 s{s0+1}, s{s0}, 1")
    A(f"s_add_u32 s{s0+8}, s{SP['ldt']}, s{s0+1}"); A(f"s_addc_u32 s{s0+9}, s{SP['ldt']+1}, 0")
    A(f"s_load_dword s{s0+6}, s[{s0+8}:{s0+9}], 0")
    if dsk:
        A(f"s_add_u32 s{s0+10}, s{SP['dsk']}, s{s0+1}"); A(f"s_addc_u32 s{s0+11}, s{SP['dsk']+1}, 0")
        A(f"s_load_dword s{s0+7}, s[{s0+10}:{s0+11}], 0")

def kg_read(A, s_c, s_mh, narr, s_tmp):
    A(f"s_lshl_b32 s{s_tmp}, s{s_c}, 8")
    A(f"v_lshlrev_b32 v9, 1, v0")
    A(f"v_add_u32 v9, s{s_tmp}, v9")
    A(f"s_lshl_b32 s{s_tmp}, s{s_mh}, 7")
    A(f"s_add_u32 s{s_tmp}, s{s_tmp}, {L_PAR}")
    A(f"v_add_u32 v9, s{s_tmp}, v9")
    for i in range(narr):
        A(f"ds_read_u16 v{10+i}, v9 offset:{512*i}")
    A("s_waitcnt lgkmcnt(0)")

def kg_setup(A, s_ldt, s_tmp, full):
    vt2, vw, vY0, tmp = 16, 17, 18, 20
    A(f"s_mov_b32 s{s_tmp}, 0x{f32bits(LOG2E):08x}")
    A(f"v_mov_b32 v{tmp}, s{s_ldt}")
    A(f"v_lshlrev_b32 v10, 16, v10")
    A(f"v_mul_f32 v{tmp}, s{s_tmp}, v{tmp}")
    A(f"v_mul_f32 v10, s{s_tmp}, v10")
    A(f"v_exp_f32 v{tmp}, v{tmp}")
    A(f"v_exp_f32 v10, v10")
    A(f"v_lshlrev_b32 v11, 16, v11")
    A(f"v_cvt_pk_bf16_f32 v{tmp}, v{tmp}, v10")
    if full: A(f"v_lshlrev_b32 v12, 16, v12")
    A(f"v_and_b32 v10, 0xffff0000, v{tmp}")
    A(f"v_lshlrev_b32 v{tmp}, 16, v{tmp}")
    if full: A(f"v_lshlrev_b32 v13, 16, v13")
    A(f"v_mul_f32 v10, v10, v{tmp}")
    A(f"v_mul_f32 v11, v11, v{tmp}")
    A(f"v_mul_f32 v{vt2}, 0x{f32bits(-LOG2E):08x}, v10")
    A(f"v_mul_f32 v{vw}, 0x{f32bits(INV2PI):08x}, v11")
    if full:
        A(f"v_add_f32 v{tmp}, v{tmp}, v{tmp}")
        A(f"v_mul_f32 v{vY0}, v12, v{tmp}")
        A(f"v_mul_f32_e64 v{vY0+1}, -v13, v{tmp}")

def kg_bside(A, vaddr):
    vt2, vw = 16, 17
    X = [24 + 2*j for j in range(8)]
    S = 40
    T = [42 + 2*j for j in range(8)]
    PK = [58 + j for j in range(8)]
    anchor(A, X[1], 8, vt2, vw, 42)
    A(f"v_mov_b32 v{X[0]}, 1.0"); A(f"v_mov_b32 v{X[0]+1}, 0")
    cmul(A, X[2], X[1], X[1], T[0])
    r1, r2 = Rec(), Rec()
    cmul(r1, X[3], X[1], X[2], T[0]); cmul(r2, X[4], X[2], X[2], T[1])
    for ins in merge(r1.L, r2.L): A(ins)
    rr = [Rec() for _ in range(4)]
    cmul(rr[0], X[5], X[4], X[1], T[0]); cmul(rr[1], X[6], X[4], X[2], T[1]); cmul(rr[2], X[7], X[4], X[3], T[2]); cmul(rr[3], S, X[4], X[4], T[3])
    for ins in merge(*[r.L for r in rr]): A(ins)
    for lvl in range(4):
        for j in range(8): A(f"v_cvt_pk_bf16_f32 v{PK[j]}, v{X[j]}, v{X[j]+1}")
        if lvl < 3:
            ch = [Rec() for _ in range(8)]
            for j in range(8): cmul(ch[j], X[j], X[j], S, T[j])
            mm_ = merge(*[c.L for c in ch])
        else: mm_ = []
        wr = [f"ds_write_b32 v{vaddr}, v{PK[j]} offset:{(8*lvl + j)*528}" for j in range(8)]
        for ins in merge(mm_[:8], wr): A(ins)
        for ins in mm_[8:]: A(ins)

def kg_aside(A, vaddr):
    vt2, vw, Y0 = 16, 17, 18
    F1, F256, F2, F4, F512 = 24, 26, 28, 30, 32
    r2, r3 = Rec(), Rec()
    anchor(r2, F1, 1, vt2, vw, 48, conj=True)
    anchor(r3, F256, 256, vt2, vw, 50, conj=True)
    for ins in merge(r2.L, r3.L): A(ins)
    R = {}
    regs = iter(list(range(60, 96, 2)) + list(range(104, 124, 2)))
    def new(row): R[row] = next(regs); return R[row]
    T = [34, 36, 38, 40, 42, 44, 46]
    def level(items):
        ch = []
        for k, (row, x, s_) in enumerate(items):
            r = Rec(); d = new(row) if isinstance(row, int) else row[0]
            cmul(r, d, x, s_, T[k % 7]); ch.append(r.L)
        for ins in merge(*ch): A(ins)
    R[0] = Y0
    level([((F2,), F1, F1), ((F512,), F256, F256), (1, Y0, F1), (8, Y0, F256)])
    level([((F4,), F2, F2), (2, Y0, F2), (3, R[1], F2), (9, R[8], F2), (12, R[8], F256), (14, R[8], F512)])
    level([(4, Y0, F4), (5, R[1], F4), (6, R[2], F4), (7, R[3], F4), (10, R[9], F2), (16, R[12], F512), (17, R[14], F512)])
    level([(11, R[10], F2), (13, R[12], F4), (15, R[14], F4), (18, R[16], F512), (19, R[17], F512)])
    level([(20, R[18], F512)])
    pk = [52, 53, 54, 55, 56, 57, 58, 59]
    rows = list(range(21))
    for n, row in enumerate(rows):
        A(f"v_cvt_pk_bf16_f32 v{pk[n % 8]}, v{R[row]}, v{R[row]+1}")
        if n >= 1: A(f"ds_write_b32 v{vaddr}, v{pk[(n-1) % 8]} offset:{rows[n-1]*528}")
    A(f"ds_write_b32 v{vaddr}, v{pk[20 % 8]} offset:{20*528}")

L_WOT = 57344 + 2048
def kgen_pre(A):
    A("s_sub_u32 s15, s3, 12")
    A("s_setprio 3")
    chan_pair(A, 14, 17)
    A("s_lshl_b32 s17, s14, 8")
    A("s_lshl_b32 s18, s15, 9")
    A("s_mov_b32 s40, -1"); A("s_mov_b32 s41, 0")
    A("v_lshrrev_b32 v14, 3, v0")
    A("v_lshlrev_b32 v14, 10, v14")
    A("v_and_b32 v13, 7, v0")
    A("v_lshl_add_u32 v14, v13, 4, v14")
    A("s_lshr_b32 s19, s2, 3"); A("s_lshl_b32 s19, s19, 16")
    A("s_lshl_b32 s16, s15, 14")
    A("s_add_u32 s19, s19, s16")
    A("s_and_b32 s16, s2, 7"); A("s_lshl_b32 s16, s16, 7")
    A("s_add_u32 s19, s19, s16")
    A("v_lshrrev_b32 v12, 1, v0")
    A("v_lshlrev_b32 v12, 10, v12")
    A("v_and_b32 v13, 1, v0")
    A("v_lshl_add_u32 v12, v13, 4, v12")
    ka_wait(A)
    A(f"s_mov_b32 s32, s{SP['lar']}"); A(f"s_mov_b32 s33, s{SP['lar']+1}")
    for mm_, nm in ((1, 'aim'), (2, 'cre'), (3, 'cim')):
        A(f"s_cmp_eq_u32 s15, {mm_}")
        A(f"s_cselect_b32 s32, s{SP[nm]}, s32"); A(f"s_cselect_b32 s33, s{SP[nm]+1}, s33")
    A(f"s_mov_b32 s34, {512*128*2}"); A("s_mov_b32 s35, 0x00020000")
    A(f"s_add_u32 m0, s18, {L_PAR}")
    A("s_mov_b64 exec, s[40:41]")
    A(f"buffer_load_dwordx4 v{vL16}, s[32:35], s17 offen lds")
    A("s_mov_b64 exec, -1")
    kg_scalars(A, 15, 20, True)
    A("s_getpc_b64 s[32:33]")
    A.label("KG_PC")
    A("s_add_u32 s32, s32, GTAB-KG_PC")
    A("s_addc_u32 s33, s33, 0")
    A("s_lshl_b32 s17, s15, 11")
    A("v_lshlrev_b32 v11, 5, v0")
    A("v_add_u32 v11, s17, v11")
    A("global_load_dwordx4 v[96:99], v11, s[32:33]")
    A("global_load_dwordx4 v[100:103], v11, s[32:33] offset:16")
    srd(A, 32, SP['u'], 2048*512*2)
    A(f"s_add_u32 m0, s17, {L_UTL}")
    A("s_nop 0")
    A("buffer_load_dwordx4 v14, s[32:35], s19 offen lds")
    A(f"s_add_u32 m0, s17, {L_UTL + 1024}")
    A("s_add_u32 s19, s19, 8192")
    A("buffer_load_dwordx4 v14, s[32:35], s19 offen lds")
    srd(A, 32, SP['wo'], 512*512*2)
    A("s_and_b32 s17, s2, 7"); A("s_lshl_b32 s17, s17, 16")
    A("s_lshl_b32 s19, s15, 14")
    A("s_add_u32 s17, s17, s19")
    A("s_lshr_b32 s19, s2, 3"); A("s_lshl_b32 s19, s19, 5")
    A("s_add_u32 s17, s17, s19")
    A(f"s_add_u32 m0, s18, {L_WOT}")
    A("s_mov_b64 exec, s[40:41]")
    A("buffer_load_dwordx4 v12, s[32:35], s17 offen lds")
    A("s_mov_b64 exec, -1")
    A("s_cmp_eq_u32 s15, 0")
    A("s_cbranch_scc0 KG_NE")
    A(f"s_mov_b32 s16, {WS_EP}")
    A("v_mov_b32 v9, 0")
    A("s_mov_b64 exec, 1")
    A(f"buffer_load_dword v{vE}, v9, {WSRD}, s16 offen sc1")
    A("s_mov_b64 exec, -1")
    A.label("KG_NE")

def kgen(A):
    A("s_mov_b32 s16, s22"); A("s_mov_b32 s18, s24"); A("s_mov_b32 s14, s20")
    A(f"s_mul_i32 s25, s16, {L_TCH}")
    A("s_lshl_b32 s23, s18, 8")
    A("s_add_u32 s25, s25, s23")
    A(f"s_add_u32 s25, s25, {L_TA}")
    A("v_lshlrev_b32 v15, 2, v0")
    A("v_add_u32 v15, s25, v15")
    A("s_cmp_eq_u32 s15, 0")
    A("s_cbranch_scc1 KG_WP")
    A("s_waitcnt vmcnt(5)")
    A.label("KG_WP")
    A("s_waitcnt vmcnt(6)")
    gsync(A, C_PAR, 4, 66)
    stamp(A, 24)
    kg_read(A, 16, 18, 4, 23)
    A("s_cmp_eq_u32 s16, 0")
    A("s_cselect_b32 s23, 16, 0")
    A("s_lshl_b32 s26, s26, s23"); A("s_and_b32 s26, s26, 0xffff0000")
    A("s_lshl_b32 s27, s27, s23"); A("s_and_b32 s27, s27, 0xffff0000")
    kg_setup(A, 26, 23, True)
    kg_aside(A, 15)
    A("s_waitcnt lgkmcnt(0)")
    lsig(A, C_G, 66)
    stamp(A, 21)
    A("s_waitcnt vmcnt(0)")
    A("s_cmp_eq_u32 s15, 0")
    A("s_cbranch_scc0 KG_NT")
    make_tag(A)
    A.label("KG_NT")
    A("s_waitcnt lgkmcnt(0)")
    lsig(A, C_GU, 86)
    A("v_and_b32 v9, 15, v0")
    A("v_lshrrev_b32 v10, 4, v0")
    A("v_mul_u32_u24 v11, 528, v9")
    A("v_lshl_add_u32 v11, v10, 4, v11")
    A(f"s_mul_i32 s25, s16, {L_TCH}")
    A(f"s_add_u32 s25, s25, {L_TA}")
    A(f"s_mul_i32 s23, s18, {16*528}")
    A("s_add_u32 s23, s23, s25")
    A("v_add_u32 v12, s23, v11")
    A(f"s_add_u32 s25, s25, {L_TBO}")
    A("v_add_u32 v13, s25, v11")
    A("s_lshl_b32 s25, s16, 11")
    A("s_lshl_b32 s23, s18, 10")
    A("s_add_u32 s25, s25, s23")
    A(f"s_add_u32 s25, s25, {L_T}")
    A("v_lshlrev_b32 v14, 8, v10")
    A("v_lshl_add_u32 v14, v9, 1, v14")
    A("v_add_u32 v14, s25, v14")
    A("s_cmp_eq_u32 s18, 0")
    A("s_cselect_b32 s27, s27, 0")
    A("v_mov_b32 v15, s27")
    lwait(A, C_G, 8, 86)
    stamp(A, 22)
    q = DSQ(A)
    def rd(s_):
        b = s_ % 4
        A(f"ds_read_b128 {v(16+4*b,4)}, v12 offset:{s_*64}"); q.issue(("a", s_))
        A(f"ds_read_b128 {v(32+4*b,4)}, v13 offset:{s_*64}"); q.issue(("b0", s_))
        A(f"ds_read_b128 {v(48+4*b,4)}, v13 offset:{16*528 + s_*64}"); q.issue(("b1", s_))
    for s_ in range(3): rd(s_)
    for s_ in range(8):
        if s_ + 3 < 8: rd(s_ + 3)
        b = s_ % 4
        q.wait(("b0", s_))
        A(f"v_mfma_f32_16x16x32_bf16 v[120:123], {v(16+4*b,4)}, {v(32+4*b,4)}, {'0' if s_==0 else 'v[120:123]'}")
        q.wait(("b1", s_))
        A(f"v_mfma_f32_16x16x32_bf16 v[4:7], {v(16+4*b,4)}, {v(48+4*b,4)}, {'0' if s_==0 else 'v[4:7]'}")
    A("s_nop 7")
    A("v_cmp_eq_u32 vcc, 0, v0")
    A("s_nop 1")
    A("v_cndmask_b32 v15, 0, v15, vcc")
    A("v_add_f32 v120, v120, v15")
    for ct, b_ in enumerate((120, 4)):
        A(f"v_cvt_pk_bf16_f32 v{16+2*ct}, v{b_}, v{b_+1}")
        A(f"v_cvt_pk_bf16_f32 v{17+2*ct}, v{b_+2}, v{b_+3}")
        A(f"ds_write_b16 v14, v{16+2*ct} offset:{32*ct}")
        A(f"ds_write_b16_d16_hi v14, v{16+2*ct} offset:{32*ct+64}")
        A(f"ds_write_b16 v14, v{17+2*ct} offset:{32*ct+128}")
        A(f"ds_write_b16_d16_hi v14, v{17+2*ct} offset:{32*ct+192}")
    gsync(A, C_GT2, 4, 2)
    stamp(A, 23)
    for e in range(8): A(f"v_add_u32 v{96+e}, {L_T}, v{96+e}")
    for c in range(2):
        for e in range(8):
            op = "ds_read_u16_d16_hi" if e % 2 else "ds_read_u16"
            A(f"{op} v{(32 if e % 2 else 16)+4*c+e//2}, v{96+e} offset:{c*2048}")
    A("s_lshl_b32 s25, s15, 6")
    A("v_add_u32 v9, s25, v0")
    A("v_lshrrev_b32 v10, 2, v9")
    A("v_mul_u32_u24 v10, 80, v10")
    A("v_and_b32 v9, 3, v9")
    A("v_lshl_add_u32 v10, v9, 4, v10")
    A(f"v_add_u32 v10, {L_KREV}, v10")
    for j in range(4): A(f"v_mov_b32 v{40+j}, 0")
    A(f"s_mul_i32 s25, s16, {KREV_SZ}")
    A(f"s_mul_i32 s23, s18, 1280")
    A("s_add_u32 s25, s25, s23")
    A(f"s_add_u32 s25, s25, {L_KREV + 64*80}")
    A(f"v_add_u32 v11, s25, v{vL16}")
    A("ds_write_b128 v11, v[40:43]")
    A("s_mov_b64 exec, 0xffff")
    A("ds_write_b128 v11, v[40:43] offset:1024")
    A("s_mov_b64 exec, -1")
    A("s_waitcnt lgkmcnt(10)")
    for j in range(4): A(f"v_or_b32 v{16+j}, v{16+j}, v{32+j}")
    A("s_waitcnt lgkmcnt(2)")
    for j in range(4): A(f"v_or_b32 v{20+j}, v{20+j}, v{36+j}")
    A("ds_write_b128 v10, v[16:19]")
    A(f"ds_write_b128 v10, v[20:23] offset:{KREV_SZ}")
    A("s_waitcnt lgkmcnt(0)")
    stamp(A, 27)
    FLAT = int(os.environ.get("FLAT", 3))
    for i in range(8):
        A("s_barrier")
        if i == FLAT:
            get_tag(A)
            chan_pair(A, 14, 17)
            A("s_lshr_b32 s28, s14, 4")
            A(f"s_lshl_b32 s28, s28, {5+FS}")
            A(f"s_add_u32 s28, s28, {WS_FU}")
            A(f"v_lshlrev_b32 v104, {FS}, v0")
            A("s_mov_b32 s40, 0")
        if i == FLAT + 2:
            A("s_cmp_eq_u32 s15, 3")
            A("s_cbranch_scc0 KG_L2")
            A("s_waitcnt vmcnt(0)")
            A("s_mov_b32 s30, -1"); A("s_mov_b32 s31, 0")
            A(f"v_cmp_ne_u32 vcc, s{sT}, v105")
            A("s_nop 1")
            A("s_and_b64 vcc, vcc, s[30:31]")
            A("s_cbranch_vccnz KG_L2")
            lsig(A, C_FU, 66)
            A("s_mov_b32 s40, 1")
            A.label("KG_L2")
        if i == FLAT + 1:
            A("s_cmp_eq_u32 s15, 3")
            A("s_cbranch_scc0 KG_L1")
            A("s_mov_b32 s30, -1"); A("s_mov_b32 s31, 0")
            A("s_mov_b64 exec, s[30:31]")
            A(f"buffer_load_dword v105, v104, {WSRD}, s28 offen sc1")
            A("s_mov_b64 exec, -1")
            A.label("KG_L1")
    A("s_cmp_eq_u32 s15, 3")
    A("s_cbranch_scc0 KG_END2")
    A("s_cmp_lg_u32 s40, 0")
    A("s_cbranch_scc1 KG_END2")
    poll(A, "KG_PU", 104, 28, "-1", 105, sleep=2)
    lsig(A, C_FU, 66)
    A.label("KG_END2")
    if os.environ.get("X_P1ONLY"): A("s_branch K_FIN")

vKA, vVA, vQ, vKF, vVF, vS, vP, vO, vM, vT = 2, 3, 4, 8, 16, 32, 64, 72, 88, 89
vLD = 92
vLW = 124
vLW2 = 89
NT = 32
SCHED = "e0 e1 PV1 RV e2 e3 c0 e4 e5 c1 QK RK e6 e7 c2 e8 e9 c3 e10 e11 PV0 c4 e12 e13 c5 e14 e15 c6 c7"
PRIO = {0: 3, 8: 2, 16: 1, 24: 0}

def attn_ids(A):
    A("s_and_b32 s12, s2, 7")
    A("s_lshl_b32 s12, s12, 2")
    A("s_lshr_b32 s13, s2, 3")
    A("s_and_b32 s17, s13, 3")
    A("s_add_u32 s12, s12, s17")
    A("s_lshr_b32 s13, s2, 5")
    A("s_lshl_b32 s17, s12, 16")

def ld_group(A):
    attn_setup(A)
    A("s_cmp_lt_u32 s3, 4")
    A("s_cselect_b32 s28, 0, 8")
    A("s_sub_u32 s28, s3, s28")
    A(f"v_lshlrev_b32 v8, {FS}, v0")
    A(f"s_lshl_b32 s27, s12, {5+FS}")
    A(f"s_add_u32 s27, s27, {WS_F1}")
    A("s_lshr_b32 s22, s28, 1")
    A("s_and_b32 s23, s28, 1"); A("s_lshl_b32 s23, s23, 1")
    A("s_and_b32 s4, s22, 1"); A("s_lshl_b32 s4, s4, 15")
    A("s_lshr_b32 s26, s22, 1"); A("s_lshl_b32 s26, s26, 21")
    A("s_add_u32 s4, s4, s26")
    A("s_lshl_b32 s26, s23, 10")
    A("s_add_u32 s4, s4, s26")
    A("s_add_u32 s4, s4, s17")
    A(f"s_add_u32 s4, s4, {WS_K}")
    A("s_lshl_b32 s24, s23, 12")
    A("s_lshl_b32 s26, s22, 10")
    A("s_add_u32 s24, s24, s26")
    A(f"v_add_u32 v{vLW2}, s24, v{vL16}")
    A("s_lshl_b32 s5, s13, 3"); A("s_add_u32 s5, s5, s28"); A("s_lshl_b32 s5, s5, 10"); A("s_add_u32 s5, s5, s17")
    A("s_lshl_b32 s6, s28, 10"); A(f"s_add_u32 s6, s6, {L_QS}")
    A(f"v_add_u32 v12, s6, v{vL16}")
    A("s_cmp_eq_u32 s3, 13")
    A("s_cbranch_scc0 LD_NOPOLL")
    lwait(A, C_OWN, 4, 44, sleep=2)
    poll(A, "LD_POLL", 8, 27, "-1", 13, sleep=2)
    lsig(A, C_F1, 44)
    A.label("LD_NOPOLL")
    lwait(A, C_F1, 1, 44, sleep=1)
    stamp(A, 3)
    def rload(r, d0):
        A(f"s_add_u32 s26, s13, {r}")
        A("s_and_b32 s26, s26, 7")
        A("s_lshl_b32 s26, s26, 12")
        A("s_add_u32 s26, s26, s4")
        A(f"buffer_load_dwordx4 {v(d0,4)}, v{vL16}, {WSRD}, s26 offen sc1")
        A(f"buffer_load_dwordx4 {v(d0+4,4)}, v{vL16}, {WSRD}, s26 offen offset:1024 sc1")
    rload(0, 32)
    A(f"buffer_load_dwordx4 v[40:43], v{vL16}, {WSRD}, s5 offen sc1")
    rload(1, vLD)
    rload(2, vLD + 8)
    lwait(A, C_DONE(7), 4, 44)
    A("s_waitcnt vmcnt(4)")
    A(f"ds_write_b128 v{vLW2}, v[32:35]")
    A(f"ds_write_b128 v{vLW2}, v[36:39] offset:4096")
    A("ds_write_b128 v12, v[40:43]")
    A("s_waitcnt vmcnt(2)")
    A(f"ds_write_b128 v{vLW2}, {v(vLD,4)} offset:16384")
    A(f"ds_write_b128 v{vLW2}, {v(vLD+4,4)} offset:20480")
    A("s_waitcnt vmcnt(0)")
    A(f"ds_write_b128 v{vLW2}, {v(vLD+8,4)} offset:32768")
    A(f"ds_write_b128 v{vLW2}, {v(vLD+12,4)} offset:36864")

def attn_setup(A):
    attn_ids(A)
    A("s_mov_b32 s20, 0x0000ffff")
    A("s_mov_b32 s21, 0x0000ffff")
    A("s_and_b32 s15, s3, 7")
    A("s_lshr_b32 s16, s3, 3")
    A("s_lshl_b32 s19, s16, 10")
    A(f"v_add_u32 v{vKA}, s19, v{vL16}")
    A("v_lshrrev_b32 v8, 5, v0")
    A("v_lshlrev_b32 v8, 8, v8")
    A("v_and_b32 v9, 15, v0")
    A("v_lshlrev_b32 v9, 4, v9")
    A("s_add_u32 s19, s19, 2048")
    A(f"v_add3_u32 v{vVA}, v8, v9, s19")
    A("v_and_b32 v8, 31, v0")
    A("v_cmp_eq_u32 vcc, 16, v8")
    A("v_mov_b32 v9, 0x3f803f80")
    A("s_lshl_b32 s22, s15, 10"); A(f"s_add_u32 s22, s22, {L_QS}")
    A("v_cndmask_b32 v9, 0, v9, vcc")
    A(f"v_add_u32 v{vQ}, s22, v{vL16}")
    for i in range(16): A(f"v_mov_b32 v{vVF+i}, v9")
    A(f"v_mov_b32 v{vM}, 0")
    A("s_lshl_b32 s18, s13, 3")
    A("s_add_u32 s18, s18, s15")
    A(f"s_lshl_b32 s19, s18, {5+FS}")
    A(f"s_lshl_b32 s22, s12, {FS}")
    A("s_add_u32 s19, s19, s22")
    A(f"s_add_u32 s19, s19, {WS_F2}")
    A("s_lshl_b32 s18, s18, 10")
    A("s_add_u32 s18, s18, s17")
    A("s_lshr_b32 s22, s3, 2")
    A("s_and_b32 s23, s3, 3")
    A("s_lshl_b32 s24, s23, 12")
    A("s_lshl_b32 s26, s22, 10")
    A("s_add_u32 s24, s24, s26")
    A(f"v_add_u32 v{vLW}, s24, v{vL16}")
    A("s_and_b32 s25, s22, 1"); A("s_lshl_b32 s25, s25, 15")
    A("s_lshr_b32 s26, s22, 1"); A("s_lshl_b32 s26, s26, 21")
    A("s_add_u32 s25, s25, s26")
    A("s_lshl_b32 s23, s23, 10")
    A("s_add_u32 s25, s25, s23")
    A("s_add_u32 s25, s25, s17")
    A(f"s_add_u32 s25, s25, {WS_K}")
    A("s_lshr_b32 s37, s2, 3"); A("s_and_b32 s37, s37, 3"); A("s_lshl_b32 s37, s37, 3"); A("s_add_u32 s37, s37, s15")

def attention(A):
    A("s_setprio 3")
    A("s_waitcnt lgkmcnt(0)")
    A("s_barrier")
    stamp(A, 4)
    A(f"ds_read_b128 {v(vQ,4)}, v{vQ}")
    q = DSQ(A)
    KF = lambda t: vKF + 4 * (t % 2)
    VF = lambda t, j: vVF + 8 * (t % 2) + 4 * j
    S = lambda t: vS + 16 * (t % 2)
    def rdK(t):
        A(f"ds_read_b128 {v(KF(t),4)}, v{vKA} offset:{(t%16)*4096}"); q.issue(("K", t))
    def rdV(t):
        A("s_mov_b64 exec, s[20:21]")
        A(f"ds_read_b128 {v(VF(t,0),4)}, v{vVA} offset:{(t%16)*4096}"); q.issue(("V0", t))
        A(f"ds_read_b128 {v(VF(t,1),4)}, v{vVA} offset:{(t%16)*4096+512}"); q.issue(("V1", t))
        A("s_mov_b64 exec, -1")
    def qk(t):
        q.wait(("K", t))
        A(f"v_mfma_f32_32x32x16_bf16 {v(S(t),16)}, {v(KF(t),4)}, {v(vQ,4)}, 0")
    def e(t, i): A(f"v_exp_f32 v{S(t)+i}, v{S(t)+i}")
    def c(t, k): A(f"v_cvt_pk_bf16_f32 v{vP+k}, v{S(t)+2*k}, v{S(t)+2*k+1}")
    def pv(t, j):
        cc = "0" if (t == 0 and j == 0) else v(vO, 16)
        A(f"v_mfma_f32_32x32x16_bf16 {v(vO,16)}, {v(VF(t,j),4)}, {v(vP+4*j,4)}, {cc}")
    rdK(0); rdK(1); rdV(0)
    qk(0)
    A("s_nop 7"); A("s_nop 3")
    for t in range(NT):
        A.comment(f"--- tile {t}")
        if t in PRIO: A(f"s_setprio {PRIO[t]}")
        for tok in SCHED.split():
            if tok[0] == 'e': e(t, int(tok[1:]))
            elif tok[0] == 'c': c(t, int(tok[1:]))
            elif tok == 'PV1':
                if t > 0: pv(t - 1, 1)
            elif tok == 'QK':
                if t + 1 < NT: qk(t + 1)
            elif tok == 'PV0':
                q.wait(("V1", t)); pv(t, 0)
            elif tok == 'RK':
                slot_of = {3: 4, 4: 5, 5: 6, 6: 7, 7: 0}
                XN = os.environ.get("X_NOLAND")
                if XN:
                    if t + 2 < NT: rdK(t + 2)
                    if t == 14: A(f"v_add_u32 v{vKA}, 65536, v{vKA}") if False else None
                    continue
                if t == 1:
                    A("s_cmp_eq_u32 s16, 0")
                    A("s_cbranch_scc0 AT_NS")
                    for j in range(4): A(f"v_mov_b32 v{vLD+4+j}, -1")
                    A(f"s_add_u32 s26, s18, {WS_O}")
                    A(f"buffer_store_dwordx4 {v(vLD+4,4)}, v{vL16}, {WSRD}, s26 offen sc1")
                    A.label("AT_NS")
                if t == 22:
                    A("s_cmp_eq_u32 s3, 13")
                    A("s_cbranch_scc0 AT_N4a")
                    A(f"v_lshlrev_b32 v{vT}, {FS}, v0")
                    A("s_and_b32 s28, s2, 7")
                    A(f"s_lshl_b32 s28, s28, {5+FS}")
                    A(f"s_add_u32 s28, s28, {WS_F4}")
                    A("s_mov_b32 s30, -1"); A("s_mov_b32 s31, 0")
                    A("s_mov_b64 exec, s[30:31]")
                    A(f"buffer_load_dword v{vLW}, v{vT}, {WSRD}, s28 offen sc1")
                    A("s_mov_b64 exec, -1")
                    A.label("AT_N4a")
                if t == 25:
                    A("s_cmp_eq_u32 s3, 13")
                    A("s_cbranch_scc0 AT_N4b")
                    A("s_waitcnt vmcnt(0)")
                    check_or_poll(A, "AT_P4", vT, 28, "-1", vLW)
                    A(f"v_mov_b32 v{vT}, {C_F4}"); A(f"v_mov_b32 v{vLW}, 1")
                    A("s_mov_b64 exec, 1")
                    A(f"ds_add_u32 v{vT}, v{vLW}")
                    A("s_mov_b64 exec, -1")
                    A.label("AT_N4b")
                if t == 11:
                    A("s_cmp_eq_u32 s3, 9")
                    A("s_cbranch_scc0 AT_NF4")
                    A(f"s_lshl_b32 s29, s13, {5+FS}")
                    A(f"s_lshl_b32 s28, s12, {FS}")
                    A("s_add_u32 s28, s29, s28")
                    A(f"s_add_u32 s28, s28, {WS_F4}")
                    A(f"v_mov_b32 v{vLD+28}, s{sT}"); A(f"v_mov_b32 v{vLD+29}, 0")
                    A("s_mov_b64 exec, 1")
                    A(f"buffer_store_dword v{vLD+28}, v{vLD+29}, {WSRD}, s28 offen sc1")
                    A("s_mov_b64 exec, -1")
                    A.label("AT_NF4")
                if t < 5:
                    r = 3 + t
                    A(f"s_add_u32 s26, s13, {r}")
                    A("s_and_b32 s26, s26, 7")
                    A("s_lshl_b32 s26, s26, 12")
                    A("s_add_u32 s26, s26, s25")
                    A(f"buffer_load_dwordx4 {v(vLD+4*slot_of[r],4)}, v{vL16}, {WSRD}, s26 offen sc1")
                if t == 6:
                    A("s_waitcnt vmcnt(0)")
                    A(f"ds_write_b128 v{vLW}, {v(vLD+4*slot_of[3],4)} offset:49152")
                    A(f"v_add_u32 v{vLW}, 65536, v{vLW}")
                    for r in range(4, 8):
                        A(f"ds_write_b128 v{vLW}, {v(vLD+4*slot_of[r],4)} offset:{r*16384 - 65536}")
                    A("s_waitcnt lgkmcnt(0)"); q.q = []
                    lsig(A, C_LAND, vT + 0) if False else None
                    A(f"v_mov_b32 v{vT}, {C_LAND}")
                    A(f"v_mov_b32 v{vLW}, 1")
                    A("s_mov_b64 exec, 1")
                    A(f"ds_add_u32 v{vT}, v{vLW}")
                    A("s_mov_b64 exec, -1")
                if t == 9:
                    A(f"ds_read_b32 v{vLW}, v{vT}"); q.issue(("land", 0))
                if t == 10:
                    q.wait(("land", 0))
                    A(f"v_readfirstlane_b32 s42, v{vLW}")
                    A("s_nop 0")
                    A("s_cmp_ge_u32 s42, 16")
                    A("s_cbranch_scc1 AT_LANDED")
                    lwait(A, C_LAND, 16, 126 if False else 12, sleep=1) if False else None
                    A.label("AT_LSPIN")
                    A(f"ds_read_b32 v{vLW}, v{vT}")
                    A("s_waitcnt lgkmcnt(0)")
                    A(f"v_readfirstlane_b32 s42, v{vLW}")
                    A("s_sleep 1")
                    A("s_cmp_ge_u32 s42, 16")
                    A("s_cbranch_scc0 AT_LSPIN")
                    A.label("AT_LANDED")
                    A(f"v_lshlrev_b32 v{vT}, {FS}, v0")
                    A(f"s_lshl_b32 s26, s37, {3+FS}")
                    A(f"s_add_u32 s26, s26, {WS_F3}")
                    A("s_mov_b64 exec, 0xff")
                    A(f"buffer_load_dword v{vLW}, v{vT}, {WSRD}, s26 offen sc1")
                    A("s_mov_b64 exec, -1")
                if t == 12:
                    A("s_waitcnt vmcnt(0)")
                    check_or_poll(A, "AT_P3", vT, 26, "0xff", vLW)
                    A("s_lshl_b32 s27, s37, 14")
                    A("s_lshl_b32 s26, s16, 13")
                    A("s_add_u32 s27, s27, s26")
                    A(f"s_add_u32 s27, s27, {WS_WOF}")
                if 12 <= t < 20:
                    A(f"buffer_load_dwordx4 {v(vLD+4*(t-12),4)}, v{vL16}, {WSRD}, s27 offen sc1")
                    A("s_add_u32 s27, s27, 1024")
                if t == 20:
                    A("s_sub_u32 s26, s3, 4")
                    A("s_cmp_lt_u32 s26, 8")
                    A("s_cbranch_scc0 AT_NY0")
                    A(f"v_and_b32 v{vT}, 31, v0")
                    A(f"v_lshrrev_b32 v{vLW}, 5, v0")
                    A(f"v_lshlrev_b32 v{vT}, 16, v{vT}")
                    A(f"v_lshl_add_u32 v{vT}, v{vLW}, 13, v{vT}")
                    A.label("AT_NY0")
                    srd(A, 4, SP['out'], 2048*1024*2)
                if 21 <= t < 25:
                    r = t - 21
                    A("s_sub_u32 s26, s3, 4")
                    A("s_cmp_lt_u32 s26, 8")
                    A(f"s_cbranch_scc0 AT_NY{r+1}")
                    if r == 2: A("s_add_u32 s36, s36, 4096")
                    A(f"buffer_store_dword v{vY[r]}, v{vT}, s[4:7], s36 offen" + (" offset:2048" if r % 2 else "") + os.environ.get("YSC", ""))
                    A.label(f"AT_NY{r+1}")
                WBL = [int(x) for x in os.environ.get("WBL", "26").split(",") if x]
                if t in WBL:
                    A("s_lshr_b32 s26, s2, 3")
                    A("s_lshl_b32 s26, s26, 4")
                    A("s_add_u32 s26, s26, s3")
                    A("s_cmp_eq_u32 s26, 15")
                    A(f"s_cbranch_scc0 AT_WB{t}")
                    A("buffer_wbl2 sc1")
                    A.label(f"AT_WB{t}")
                if t == 14:
                    A(f"v_add_u32 v{vKA}, 65536, v{vKA}")
                if t + 2 < NT: rdK(t + 2)
            elif tok == 'RV':
                if t == 15:
                    A(f"v_add_u32 v{vVA}, 65536, v{vVA}")
                if t + 1 < NT: rdV(t + 1)
            else: raise ValueError(tok)
    A("s_nop 1")
    pv(NT - 1, 1)
    A("s_nop 15")
    stamp(A, 5)
    A(f"v_mov_b32 v{vT}, v{vO+8}")
    A("s_nop 1")
    A(f"v_permlane32_swap_b32 v{vT}, v{vO+8}")
    A("s_nop 1")
    A(f"v_mov_b32 v{vO+8}, v{vT}")
    A("s_mov_b32 s28, 0x1f800000")
    A("s_mov_b32 s29, 0x5f800000")
    A(f"v_cmp_le_f32 vcc, s28, v{vO+8}")
    A(f"v_cmp_ge_f32 s[30:31], s29, v{vO+8}")
    A("s_nop 1")
    A("s_and_b64 vcc, vcc, s[30:31]")
    A("s_cmp_eq_u64 vcc, -1")
    A("s_cbranch_scc0 AT_FALLBACK")
    A.label("AT_COMBINE")
    A("s_lshl_b32 s17, s15, 11")
    A(f"s_add_u32 s17, s17, {L_SCR}")
    A(f"v_add_u32 v{vT}, s17, v{vL16}")
    A("v_lshlrev_b32 v12, 3, v0")
    A("s_lshl_b32 s17, s15, 9")
    A(f"s_add_u32 s17, s17, {L_KREV}")
    A(f"v_add_u32 v12, s17, v12")
    A("s_cmp_eq_u32 s16, 0")
    A("s_cbranch_scc1 AT_LOW")
    A(f"ds_write_b128 v{vT}, {v(vO,4)}")
    A(f"ds_write_b128 v{vT}, {v(vO+4,4)} offset:1024")
    A(f"v_mov_b32 v{vO+9}, v{vM}")
    A(f"ds_write_b64 v12, {v(vO+8,2)}")
    A("s_waitcnt lgkmcnt(0)")
    A("s_barrier")
    A("s_branch AT_DONE")
    A.label("AT_LOW")
    A("s_barrier")
    B = vS
    A(f"ds_read_b128 {v(B,4)}, v{vT}")
    A(f"ds_read_b128 {v(B+4,4)}, v{vT} offset:1024")
    A(f"ds_read_b64 {v(B+8,2)}, v12")
    A("s_waitcnt lgkmcnt(0)")
    t0, t1, t2 = 8, 9, 10
    A(f"v_max_f32 v{t0}, v{vM}, v{B+9}")
    A(f"v_sub_f32 v{t1}, v{vM}, v{t0}")
    A(f"v_sub_f32 v{t2}, v{B+9}, v{t0}")
    A(f"v_exp_f32 v{t1}, v{t1}")
    A(f"v_exp_f32 v{t2}, v{t2}")
    A("s_nop 0")
    for i in range(9):
        A(f"v_mul_f32 v{vO+i}, v{vO+i}, v{t1}")
    for i in range(9):
        A(f"v_fmac_f32 v{vO+i}, v{B+i}, v{t2}")
    A(f"v_rcp_f32 v{t0}, v{vO+8}")
    A("s_nop 0")
    for i in range(8):
        A(f"v_mul_f32 v{vO+i}, v{vO+i}, v{t0}")
    for k in range(4):
        A(f"v_cvt_pk_bf16_f32 v{vP+k}, v{vO+2*k}, v{vO+2*k+1}")
    A("s_nop 1")
    A(f"v_permlane32_swap_b32 v{vP}, v{vP+2}")
    A(f"v_permlane32_swap_b32 v{vP+1}, v{vP+3}")
    A(f"s_add_u32 s18, s18, {WS_O}")
    for j in range(4):
        A(f"v_cmp_eq_u32 vcc, -1, v{vP+j}")
        A(f"v_mov_b32 v12, 0xfffefffe")
        A("s_nop 0")
        A(f"v_cndmask_b32 v{vP+j}, v{vP+j}, v12, vcc")
    A(f"buffer_store_dwordx4 {v(vP,4)}, v{vL16}, {WSRD}, s18 offen sc1")
    lsig(A, C_OWN2, 12)
    A.label("AT_DONE")
    stamp(A, 6)

def attention_fallback(A):
    A.label("AT_FALLBACK")
    A(f"v_mov_b32 v{vM}, 0xff800000")
    A(f"v_subrev_u32 v{vT}, 65536, v{vKA}")
    A("s_mov_b32 s17, 0")
    A.label("AT_FB1")
    A(f"ds_read_b128 {v(vKF,4)}, v{vT}")
    A(f"v_add_u32 v{vT}, 4096, v{vT}")
    A("s_waitcnt lgkmcnt(0)")
    A(f"v_mfma_f32_32x32x16_bf16 {v(vS,16)}, {v(vKF,4)}, {v(vQ,4)}, 0")
    A("s_nop 15")
    for k in range(8):
        A(f"v_max3_f32 v{vM}, v{vS+2*k}, v{vS+2*k+1}, v{vM}")
    A("s_add_u32 s17, s17, 1")
    A("s_cmp_lt_u32 s17, 32")
    A("s_cbranch_scc1 AT_FB1")
    A(f"v_mov_b32 v{vT}, v{vM}")
    A(f"v_mov_b32 v12, v{vM}")
    A("s_nop 1")
    A(f"v_permlane32_swap_b32 v{vT}, v12")
    A("s_nop 1")
    A(f"v_max_f32 v{vM}, v{vT}, v12")
    for i in range(16): A(f"v_mov_b32 v{vO+i}, 0")
    A(f"v_subrev_u32 v{vT}, 65536, v{vKA}")
    A(f"v_subrev_u32 v12, 65536, v{vVA}")
    A("s_mov_b32 s17, 0")
    A.label("AT_FB2")
    A(f"ds_read_b128 {v(vKF,4)}, v{vT}")
    A("s_mov_b64 exec, s[20:21]")
    A(f"ds_read_b128 {v(vVF,4)}, v12")
    A(f"ds_read_b128 {v(vVF+4,4)}, v12 offset:512")
    A("s_mov_b64 exec, -1")
    A(f"v_add_u32 v{vT}, 4096, v{vT}")
    A(f"v_add_u32 v12, 4096, v12")
    A("s_waitcnt lgkmcnt(0)")
    A(f"v_mfma_f32_32x32x16_bf16 {v(vS,16)}, {v(vKF,4)}, {v(vQ,4)}, 0")
    A("s_nop 15")
    for i in range(16): A(f"v_sub_f32 v{vS+i}, v{vS+i}, v{vM}")
    for i in range(16): A(f"v_exp_f32 v{vS+i}, v{vS+i}")
    A("s_nop 0")
    for k in range(8): A(f"v_cvt_pk_bf16_f32 v{vP+k}, v{vS+2*k}, v{vS+2*k+1}")
    A("s_nop 1")
    A(f"v_mfma_f32_32x32x16_bf16 {v(vO,16)}, {v(vVF,4)}, {v(vP,4)}, {v(vO,16)}")
    A(f"v_mfma_f32_32x32x16_bf16 {v(vO,16)}, {v(vVF+4,4)}, {v(vP+4,4)}, {v(vO,16)}")
    A("s_add_u32 s17, s17, 1")
    A("s_cmp_lt_u32 s17, 32")
    A("s_cbranch_scc1 AT_FB2")
    A("s_nop 15")
    A(f"v_mov_b32 v{vT}, v{vO+8}")
    A("s_nop 1")
    A(f"v_permlane32_swap_b32 v{vT}, v{vO+8}")
    A("s_nop 1")
    A(f"v_mov_b32 v{vO+8}, v{vT}")
    A("s_branch AT_COMBINE")

def tail(A):
    A("s_and_b32 s12, s2, 7"); A("s_lshl_b32 s12, s12, 3"); A("s_lshr_b32 s13, s2, 5"); A("s_add_u32 s12, s12, s13")
    A("s_lshr_b32 s13, s2, 3"); A("s_and_b32 s13, s13, 3")
    A("v_and_b32 v4, 15, v0")
    A("v_lshrrev_b32 v5, 4, v0")
    A("v_lshlrev_b32 v14, 9, v5")
    A("v_lshl_add_u32 v14, v4, 4, v14")
    A("s_lshl_b32 s17, s16, 14")
    A(f"s_add_u32 s17, s17, {L_OT}")
    A(f"v_add_u32 v14, s17, v14")
    A("v_lshlrev_b32 v15, 11, v4")
    A("v_lshl_add_u32 v15, v5, 3, v15")
    A("s_lshl_b32 s20, s12, 16")
    A("s_lshl_b32 s19, s16, 15")
    A("s_add_u32 s20, s20, s19")
    A("s_lshl_b32 s19, s13, 8")
    A("s_add_u32 s20, s20, s19")
    A("s_lshl_b32 s19, s15, 5")
    A("s_add_u32 s20, s20, s19")
    A("s_add_u32 s20, s20, 1024")
    srd(A, 4, SP['out'], 2048*1024*2)
    A("s_lshl_b32 s17, s3, 10")
    A(f"s_add_u32 s17, s17, {L_PC}")
    A(f"v_add_u32 v6, s17, v{vL16}")
    A("s_xor_b32 s17, s17, 8192")
    A(f"v_add_u32 v7, s17, v{vL16}")
    A("s_lshl_b32 s17, s3, 17")
    A("s_lshl_b32 s18, s12, 10")
    A("s_add_u32 s17, s17, s18")
    A(f"s_add_u32 s17, s17, {WS_O}")
    A("s_lshl_b32 s18, s3, 11")
    A(f"s_add_u32 s18, s18, {L_OT}")
    A(f"v_add_u32 v13, s18, v{vL16}")
    lwait(A, C_F4, 1, 8, sleep=1)
    lwait(A, C_OWN2, 8, 8, sleep=1)
    stamp(A, 43)
    A("s_add_u32 s18, s17, 65536")
    A("s_mov_b32 s29, 0")
    A("s_mov_b32 s28, 3")
    A.label("TL_POLL")
    A("s_bitcmp1_b32 s28, 0")
    A("s_cbranch_scc0 TL_P1")
    A(f"buffer_load_dwordx4 v[16:19], v{vL16}, {WSRD}, s17 offen sc1")
    A.label("TL_P1")
    A("s_bitcmp1_b32 s28, 1")
    A("s_cbranch_scc0 TL_P2")
    A(f"buffer_load_dwordx4 v[20:23], v{vL16}, {WSRD}, s18 offen sc1")
    A.label("TL_P2")
    A("s_add_u32 s29, s29, 1")
    A("s_waitcnt vmcnt(0)")
    A("v_max3_u32 v8, v16, v17, v18")
    A("v_max3_u32 v9, v20, v21, v22")
    A("v_max_u32 v8, v8, v19")
    A("v_max_u32 v9, v9, v23")
    A("v_cmp_eq_u32 vcc, -1, v8")
    A("v_cmp_eq_u32 s[30:31], -1, v9")
    A("s_nop 1")
    A("s_cmp_lg_u64 vcc, 0")
    A("s_cselect_b32 s28, 1, 0")
    A("s_cmp_lg_u64 s[30:31], 0")
    A("s_cselect_b32 s19, 2, 0")
    A("s_or_b32 s28, s28, s19")
    A("s_cmp_gt_u32 s29, 0x8000")
    A("s_cbranch_scc1 TL_GOT")
    A("s_cmp_eq_u32 s28, 0")
    A("s_cbranch_scc1 TL_GOT")
    A("s_sleep 2")
    A("s_branch TL_POLL")
    A.label("TL_GOT")
    A("ds_write_b128 v13, v[16:19]")
    A("ds_write_b128 v13, v[20:23] offset:1024")
    A("s_waitcnt lgkmcnt(0)")
    stamp(A, 44)
    A("s_barrier")
    stamp(A, 45)
    q = DSQ(A)
    FO = 16
    def rd(s_):
        b = s_ % 3
        for th in range(2):
            A(f"ds_read_b128 {v(FO+12*th+4*b,4)}, v14 offset:{s_*2048 + th*256}"); q.issue(("o", s_, th))
    rd(0); rd(1)
    for s_ in range(8):
        if s_ + 2 < 8: rd(s_ + 2)
        b = s_ % 3
        for th in range(2):
            q.wait(("o", s_, th))
            cc = "0" if s_ == 0 else v(40+4*th, 4)
            A(f"v_mfma_f32_16x16x32_bf16 {v(40+4*th,4)}, {v(vLD+4*s_,4)}, {v(FO+12*th+4*b,4)}, {cc}")
    A("s_cmp_eq_u32 s2, 0")
    A("s_cbranch_scc0 TL_NE")
    A("s_cmp_eq_u32 s3, 8")
    A("s_cbranch_scc0 TL_NE")
    A(f"s_mov_b32 s17, {WS_EP}")
    flag_store(A, 17, 12, 13)
    A.label("TL_NE")
    A("s_nop 7")
    A("s_cmp_eq_u32 s16, 0")
    A("s_cbranch_scc1 TL_LO")
    A("ds_write_b128 v6, v[40:43]")
    for i in range(4): A(f"v_mov_b32 v{40+i}, v{44+i}")
    A("s_branch TL_X")
    A.label("TL_LO")
    A("ds_write_b128 v6, v[44:47]")
    A.label("TL_X")
    A("s_waitcnt lgkmcnt(0)")
    A("s_barrier")
    A("ds_read_b128 v[16:19], v7")
    A("s_waitcnt lgkmcnt(0)")
    for i in range(4):
        A(f"v_add_f32 v{40+i}, v{40+i}, v{16+i}")
    A("v_cvt_pk_bf16_f32 v48, v40, v41")
    A("v_cvt_pk_bf16_f32 v49, v42, v43")
    A("buffer_store_dwordx2 v[48:49], v15, s[4:7], s20 offen" + os.environ.get("OUTSC", ""))

def gen():
    A = Asm()
    kernel_begin(A, NAME)
    A.label("K_START")
    if not os.environ.get("NOPF"):
        A("s_getpc_b64 s[4:5]")
        A.label("PF_PC")
        A("v_lshlrev_b32 v2, 7, v0")
        A("v_cmp_gt_u32 vcc, GTAB_END-PF_PC-128, v2")
        A("s_and_saveexec_b64 s[6:7], vcc")
        A("s_cbranch_execz PF_DONE")
        A(f"global_load_dword v{vE}, v2, s[4:5]")
        A.label("PF_DONE")
        A("s_mov_b64 exec, s[6:7]")
    if DBG: A("v_mov_b32 v125, 0")
    if PROF:
        A("v_mov_b32 v125, 0")
        A("s_memrealtime s[38:39]")
    stamp(A, 0)
    A("s_cmp_ge_u32 s2, 256")
    A("s_cbranch_scc1 K_END")
    A("s_load_dwordx16 s[64:79], s[0:1], 0")
    A("s_load_dwordx8 s[80:87], s[0:1], 64")
    A("s_load_dwordx2 s[88:89], s[0:1], 96")
    A("v_lshrrev_b32 v8, 6, v0")
    A("v_and_b32 v0, 63, v0")
    A("v_readfirstlane_b32 s3, v8")
    A(f"v_lshlrev_b32 v{vL16}, 4, v0")
    p1_ids(A)
    A("s_cmp_eq_u32 s3, 12")
    A("s_cbranch_scc0 E_NZ")
    A("v_lshlrev_b32 v20, 2, v0")
    A(f"v_add_u32 v20, {L_CNT}, v20")
    A("v_mov_b32 v24, 0")
    A("ds_write_b32 v20, v24")
    A.label("E_NZ")
    A("s_cmp_ge_u32 s3, 12")
    A("s_cbranch_scc0 E_NG")
    kgen_pre(A)
    A.label("E_NG")
    EARLY = os.environ.get("EARLY")
    if EARLY:
        A("s_sub_u32 s17, s3, 4")
        A("s_cmp_lt_u32 s17, 8")
        A("s_cbranch_scc1 R_LOAD")
    ka_wait(A)
    A("s_barrier")
    A("s_cmp_lt_u32 s3, 4")
    A("s_cbranch_scc1 R_COMPUTE")
    A("s_cmp_ge_u32 s3, 12")
    A("s_cbranch_scc1 R_KGEN")
    A.label("R_LOAD")
    p1_loader(A)
    attn_setup(A)
    A("s_branch R_JOIN")
    A.label("R_KGEN")
    kgen(A)
    A("s_branch R_LD")
    A.label("R_COMPUTE")
    p1_compute(A)
    A.label("R_LD")
    ld_group(A)
    A.label("R_JOIN")
    attention(A)
    tail(A)
    A.label("K_FIN")
    stamp(A, 50)
    A("s_waitcnt vmcnt(0)")
    stamp(A, 51)
    write_stamps(A)
    if DBG:
        A("s_cmp_eq_u32 s2, 8"); A("s_cbranch_scc0 K_END")
        A("s_cmp_eq_u32 s3, 0"); A("s_cbranch_scc0 K_END")
        A("s_memtime s[48:49]"); A("s_memrealtime s[50:51]"); A("s_waitcnt lgkmcnt(0)")
        A("v_readlane_b32 s52, v125, 0"); A("v_readlane_b32 s53, v125, 1")
        A("s_nop 3")
        A("v_writelane_b32 v125, s48, 0"); A("v_writelane_b32 v125, s50, 1")
        A("v_and_b32 v16, 1, v0")
        A("v_cmp_eq_u32 vcc, 0, v16")
        A("v_mov_b32 v17, s53"); A("v_mov_b32 v18, s52")
        A("s_nop 1")
        A("v_cndmask_b32 v17, v17, v18, vcc")
        A("v_sub_u32 v17, v125, v17")
        srd(A, 4, SP['dbg'], 256)
        A("v_lshlrev_b32 v16, 2, v0")
        A("s_mov_b64 exec, 0xffff")
        A("buffer_store_dword v17, v16, s[4:7], 0 offen")
        A("s_waitcnt vmcnt(0)")
    A.label("K_END")
    A("s_endpgm")
    attention_fallback(A)
    A(".p2align 6")
    A(".type GTAB,@object")
    A.label("GTAB")
    t = gather_table()
    for i in range(0, 2048, 16):
        A(".long " + ", ".join(str(int(x)) for x in t[i:i+16]))
    A(".size GTAB, 8192")
    A.label("GTAB_END")
    hdr_src = open("concat_heads__ssm_conv_s4d__mha_block__prompt.s.ref").read().split("\n")
    hdr = [l for l in hdr_src if l.startswith(";") and "@launch" not in l and "Override launch" not in l and "grid=ceil" not in l]
    out = "\n".join(hdr) + "\n; @launch grid=(256,1,1) block=(1024,1,1) lds=163840\n"
    out += '.amdgcn_target "amdgcn-amd-amdhsa--gfx950"\n'
    out += A.text() + kernel_desc(NAME, 128, 100)
    return out

if __name__ == "__main__":
    open(sys.argv[1] if len(sys.argv) > 1 else "fused.s", "w").write(gen())
```

```python
import os, struct, sys
from asmlib import *
from ssm_common import gather_table

NAME = "concat_heads__ssm_conv_s4d__mha_block__prompt_kernel"
PROF = bool(os.environ.get("PROF"))
DBG = bool(os.environ.get("DBG"))
DBGMAP = {0: 0, 10: 1, 1: 2, 2: 3, 4: 4, 5: 5, 6: 6, 45: 7}

def f32bits(x): return struct.unpack("<I", struct.pack("<f", x))[0]
LOG2E = 1.4426950408889634
INV2PI = 0.15915494309189535
C_SCALE = 0.25 * LOG2E

WS_Q = 0x000000; WS_K = 0x200000; WS_V = 0x400000; WS_O = 0x600000
WS_UT = 0x800000
WS_WOF = 0xA00000
FS = 8
WS_F1 = 0xA80000
WS_F2 = 0xAC0000
WS_F3 = 0xB40000
WS_FU = 0xB50000
WS_F4 = 0xBA0000
WS_EP = 0xB90000
WS_TOTAL = 0xBB0000
WS_PROF = 0x1000000
SP = dict(u=64, lar=66, aim=68, cre=70, cim=72, ldt=74, dsk=76, x=78, wqkv=80, wo=82, out=84, dbg=86, ws=88)
sWS = 44
WSRD = f"s[{sWS}:{sWS+3}]"
sT = 90
vL16 = 1
vE = 127

SLOT = 28672; NSLOT = 3; AHEAD = 2
L_TA = 86016; L_TBO = 11088; L_TCH = 27984
L_T = 143360
L_CNT = 147968
C_G = L_CNT; C_CV = L_CNT + 4; C_WO = L_CNT + 8; C_KR = L_CNT + 12
def C_RDY(c): return L_CNT + 16 + 4*c
def C_DONE(c): return L_CNT + 48 + 4*c
C_FU = L_CNT + 80; C_F1 = L_CNT + 84; C_F2 = L_CNT + 88; C_ISS = L_CNT + 92; C_T = L_CNT + 96; C_GU = L_CNT + 100; C_GT = L_CNT + 104; C_OWN = L_CNT + 108; C_OWN2 = L_CNT + 112; C_PAR = L_CNT + 116; C_GT2 = L_CNT + 120; C_LAND = L_CNT + 128; C_F4 = L_CNT + 140
L_PAR = 57344
L_KREV = 148480; KREV_SZ = 7680
L_UTL = 57344 + 4096
L_WOT = 86016
L_UC = 57344; UC_RHO = 4160; UC_CH = 16640
L_PART = 90624
L_QS = 49152
L_SCR = 131072
L_OT = 0
L_PC = 32768

class DSQ:
    def __init__(self, A): self.A = A; self.q = []
    def issue(self, tag): self.q.append(tag)
    def wait(self, tag):
        if tag not in self.q: return
        i = len(self.q) - 1 - self.q[::-1].index(tag)
        n = len(self.q) - 1 - i
        assert n <= 15, n
        self.A(f"s_waitcnt lgkmcnt({n})")
        self.q = self.q[i+1:]
    def room(self):
        if len(self.q) >= 15: self.wait(self.q[0])
    def drain(self):
        self.A("s_waitcnt lgkmcnt(0)"); self.q = []

def stamp(A, k):
    if DBG and k in DBGMAP:
        j = DBGMAP[k]
        A("s_memtime s[48:49]")
        A("s_memrealtime s[50:51]")
        A("s_waitcnt lgkmcnt(0)")
        A(f"v_writelane_b32 v125, s48, {2*j}")
        A(f"v_writelane_b32 v125, s50, {2*j+1}")
    if PROF:
        A("s_memtime s[48:49]")
        A("s_waitcnt lgkmcnt(0)")
        A(f"v_writelane_b32 v125, s48, {k}")

def write_stamps(A):
    if not PROF: return
    A("s_memrealtime s[40:41]")
    A("s_waitcnt lgkmcnt(0)")
    A(f"v_writelane_b32 v125, s40, 62")
    A(f"v_writelane_b32 v125, s91, 63")
    A(f"s_add_u32 s92, s{SP['ws']}, {WS_PROF}")
    A(f"s_addc_u32 s93, s{SP['ws']+1}, 0")
    A("s_mov_b32 s94, 0x200000")
    A("s_mov_b32 s95, 0x00020000")
    A("s_lshl_b32 s42, s2, 4"); A("s_add_u32 s42, s42, s3"); A("s_lshl_b32 s42, s42, 8")
    A("v_lshlrev_b32 v16, 2, v0")
    A("buffer_store_dword v125, v16, s[92:95], s42 offen")
    A("s_waitcnt vmcnt(0)")

def poll(A, label, vaddr, soff, mask_lo, vtmp, sleep=4):
    A(f"s_mov_b32 s30, {mask_lo}")
    A("s_mov_b32 s31, 0")
    A("s_mov_b64 exec, s[30:31]")
    A("s_mov_b32 s29, 0")
    A.label(label)
    A(f"buffer_load_dword v{vtmp}, v{vaddr}, {WSRD}, s{soff} offen sc1")
    A("s_add_u32 s29, s29, 1")
    A("s_waitcnt vmcnt(0)")
    A(f"v_cmp_ne_u32 vcc, s{sT}, v{vtmp}")
    A("s_cmp_gt_u32 s29, 0x10000")
    A(f"s_cbranch_scc1 {label}_x")
    A(f"s_cbranch_vccz {label}_x")
    A(f"s_sleep {sleep}")
    A(f"s_branch {label}")
    A.label(label + "_x")
    A("s_mov_b64 exec, -1")

def check_or_poll(A, label, vaddr, soff, mask_lo, vflag):
    A(f"s_mov_b32 s30, {mask_lo}")
    A("s_mov_b32 s31, 0")
    A(f"v_cmp_ne_u32 vcc, s{sT}, v{vflag}")
    A("s_nop 1")
    A("s_and_b64 vcc, vcc, s[30:31]")
    A(f"s_cbranch_vccz {label}_ok")
    poll(A, label, vaddr, soff, mask_lo, vflag)
    A.label(label + "_ok")

def flag_store(A, soff, vtmp, vzero):
    A(f"v_mov_b32 v{vtmp}, s{sT}")
    A(f"v_mov_b32 v{vzero}, 0")
    A("s_mov_b64 exec, 1")
    A(f"buffer_store_dword v{vtmp}, v{vzero}, {WSRD}, s{soff} offen sc1")
    A("s_mov_b64 exec, -1")

def get_tag(A, vt=126, vd=None):
    L = A.newlabel("GT")
    A(f"v_mov_b32 v{vt}, {C_T}")
    A("s_mov_b32 s43, 0")
    A.label(L)
    A(f"ds_read_b32 v{vE}, v{vt}")
    A("s_add_u32 s43, s43, 1")
    A("s_waitcnt lgkmcnt(0)")
    A(f"v_readfirstlane_b32 s{sT}, v{vE}")
    A("s_cmp_gt_u32 s43, 0x80000")
    A(f"s_cbranch_scc1 {L}_x")
    A(f"s_cmp_eq_u32 s{sT}, 0")
    A(f"s_cbranch_scc1 {L}")
    A.label(L + "_x")

def make_tag(A):
    A(f"v_readfirstlane_b32 s{sT}, v{vE}")
    A("s_nop 3")
    A(f"s_mul_i32 s{sT}, s{sT}, 0x9e3779b1")
    A(f"s_add_u32 s{sT}, s{sT}, 0x7f4a7c15")
    A(f"s_or_b32 s{sT}, s{sT}, 1")
    A(f"v_mov_b32 v{vE}, s{sT}")
    A(f"v_mov_b32 v126, {C_T}")
    A(f"ds_write_b32 v126, v{vE}")

def gsync(A, cnt_addr, target, vt):
    A("s_waitcnt lgkmcnt(0)")
    lsig(A, cnt_addr, vt)
    lwait(A, cnt_addr, target, vt, sleep=int(os.environ.get('GSL', 0)))

def lsig(A, addr, vt):
    A(f"v_mov_b32 v{vt}, {addr}")
    A(f"v_mov_b32 v{vt+1}, 1")
    A("s_mov_b64 exec, 1")
    A(f"ds_add_u32 v{vt}, v{vt+1}")
    A("s_mov_b64 exec, -1")

def lwait(A, addr, target, vt, sleep=0):
    L = A.newlabel("LW")
    A(f"v_mov_b32 v{vt}, {addr}")
    A("s_mov_b32 s43, 0")
    A.label(L)
    A(f"ds_read_b32 v{vt+1}, v{vt}")
    A("s_add_u32 s43, s43, 1")
    A("s_waitcnt lgkmcnt(0)")
    A(f"v_readfirstlane_b32 s42, v{vt+1}")
    A("s_cmp_gt_u32 s43, 0x80000")
    A(f"s_cbranch_scc1 {L}_x")
    A(f"s_cmp_ge_u32 s42, {target}")
    if sleep:
        A(f"s_cbranch_scc1 {L}_x")
        A(f"s_sleep {sleep}")
        A(f"s_branch {L}")
    else:
        A(f"s_cbranch_scc0 {L}")
    A.label(L + "_x")

def merge(*chains):
    out = []; idx = [0] * len(chains)
    while any(idx[i] < len(chains[i]) for i in range(len(chains))):
        for i, ch in enumerate(chains):
            if idx[i] < len(ch):
                out.append(ch[idx[i]]); idx[i] += 1
    return out

class Rec:
    def __init__(self): self.L = []
    def __call__(self, s): self.L.append(s)

def chan_pair(A, dst, tmp):
    A(f"s_and_b32 s{dst}, s2, 7"); A(f"s_lshl_b32 s{dst}, s{dst}, 5"); A(f"s_lshr_b32 s{tmp}, s2, 3")
    A(f"s_add_u32 s{dst}, s{dst}, s{tmp}"); A(f"s_lshl_b32 s{dst}, s{dst}, 1")

def ka_wait(A):
    A("s_waitcnt lgkmcnt(0)")
    if PROF: A("s_mov_b32 s91, s38")
    srd(A, sWS, SP['ws'], WS_TOTAL)

def p1_ids(A):
    A("s_and_b32 s17, s2, 7")
    A("s_lshr_b32 s18, s2, 3")
    A("s_and_b32 s12, s17, 3")
    A("s_lshl_b32 s12, s12, 2")
    A("s_and_b32 s19, s18, 3")
    A("s_add_u32 s12, s12, s19")
    A("s_lshr_b32 s13, s17, 2")
    A("s_lshl_b32 s13, s13, 3")
    A("s_lshr_b32 s19, s18, 2")
    A("s_add_u32 s13, s13, s19")

def conv_rolled(A, vUA, vKB0, vKB1, ACC0, ACC1, sD, sS):
    NB = 4
    FA, FB0, FB1 = 8, 24, 40
    def rds(j, b, with0):
        off = (j//2)*80 + (j%2)*32
        L = [f"ds_read_b64 {v(FA+4*b,2)}, v{vUA} offset:{32*j}",
             f"ds_read_b64 {v(FA+4*b+2,2)}, v{vUA} offset:{32*j+8}",
             f"ds_read_b128 {v(FB1+4*b,4)}, v{vKB1} offset:{off}"]
        if with0: L.append(f"ds_read_b128 {v(FB0+4*b,4)}, v{vKB0} offset:{off}")
        return L
    for j in range(3):
        for ins in rds(j, j, True): A(ins)
    A(f"s_cmp_eq_u32 s{sD}, 0")
    A("s_cbranch_scc1 CV_SL0")
    A.label("CV_DL")
    for j in range(4):
        nxt = rds(j + 3, (j + 3) % NB, True)
        A("s_waitcnt lgkmcnt(9)")
        A(f"v_mfma_f32_32x32x16_bf16 {v(ACC1,16)}, {v(FA+4*j,4)}, {v(FB1+4*j,4)}, {v(ACC1,16)}")
        A(nxt[0]); A(nxt[1])
        A("s_waitcnt lgkmcnt(10)")
        A(f"v_mfma_f32_32x32x16_bf16 {v(ACC0,16)}, {v(FA+4*j,4)}, {v(FB0+4*j,4)}, {v(ACC0,16)}")
        A(nxt[2]); A(nxt[3])
    A(f"v_add_u32 v{vUA}, 128, v{vUA}")
    A(f"v_add_u32 v{vKB0}, 160, v{vKB0}")
    A(f"v_add_u32 v{vKB1}, 160, v{vKB1}")
    A(f"s_sub_u32 s{sD}, s{sD}, 1")
    A(f"s_cmp_lg_u32 s{sD}, 0")
    A("s_cbranch_scc1 CV_DL")
    A.label("CV_SL0")
    A(f"s_cmp_eq_u32 s{sS}, 0")
    A("s_cbranch_scc1 CV_DONE")
    A.label("CV_SL")
    for j in range(4):
        nxt = rds(j + 3, (j + 3) % NB, False)
        A("s_waitcnt lgkmcnt(6)")
        A(f"v_mfma_f32_32x32x16_bf16 {v(ACC1,16)}, {v(FA+4*j,4)}, {v(FB1+4*j,4)}, {v(ACC1,16)}")
        for ins in nxt: A(ins)
    A(f"v_add_u32 v{vUA}, 128, v{vUA}")
    A(f"v_add_u32 v{vKB1}, 160, v{vKB1}")
    A(f"s_sub_u32 s{sS}, s{sS}, 1")
    A(f"s_cmp_lg_u32 s{sS}, 0")
    A("s_cbranch_scc1 CV_SL")
    A.label("CV_DONE")
    A("s_waitcnt lgkmcnt(0)")

vY = [90, 91, 126, 127]

def p1_loader(A):
    vDX, vDX1, vDW = 2, 3, 5
    A("s_sub_u32 s15, s3, 4")
    A("s_setprio 3")
    A("v_lshrrev_b32 v9, 3, v0")
    A("v_lshrrev_b32 v10, 1, v9")
    A("v_xor_b32 v10, v10, v0")
    A("v_and_b32 v10, 7, v10")
    A("v_lshlrev_b32 v10, 4, v10")
    A(f"v_lshl_add_u32 v{vDX}, v9, 10, v10")
    A(f"v_xor_b32 v{vDX1}, 64, v{vDX}")
    A("s_lshl_b32 s20, s12, 17")
    A("s_lshl_b32 s17, s15, 14")
    A("s_add_u32 s20, s20, s17")
    A("s_lshl_b32 s21, s13, 6")
    A("s_lshl_b32 s22, s15, 11")
    A("s_lshl_b32 s23, s15, 10")
    A("s_add_u32 s23, s23, 16384")
    A("s_lshr_b32 s25, s2, 5")
    A("s_lshr_b32 s17, s2, 3")
    A("s_and_b32 s17, s17, 3")
    A("s_lshl_b32 s17, s17, 1")
    A("s_add_u32 s25, s25, s17")
    A("s_waitcnt lgkmcnt(0)")
    srd(A, 4, SP['x'], 2048*512*2)
    srd(A, 8, SP['wqkv'], 512*1536*2)
    def issue_x(c):
        slot = (c % NSLOT) * SLOT
        A(f"s_add_u32 s26, s25, {c}")
        A("s_and_b32 s26, s26, 7")
        A(f"s_lshl_b32 s24, s26, 7")
        A(f"s_add_u32 s24, s24, s20")
        A(f"s_add_u32 m0, s22, {slot}")
        A(f"s_mul_i32 s27, s26, {64*3072}")
        A(f"buffer_load_dwordx4 v{vDX}, s[4:7], s24 offen lds")
        A(f"s_add_u32 m0, s22, {slot + 1024}")
        A(f"s_add_u32 s24, s24, 8192")
        A(f"buffer_load_dwordx4 v{vDX1}, s[4:7], s24 offen lds")
    def issue_w(c, nw):
        slot = (c % NSLOT) * SLOT
        A(f"s_add_u32 m0, s23, {slot}")
        A(f"s_add_u32 s27, s27, s21")
        A(f"buffer_load_dwordx4 v{vDW}, s[8:11], s27 offen lds")
        if nw == 2:
            A(f"s_add_u32 m0, s23, {slot + 8192}")
            A("s_nop 0")
            A(f"buffer_load_dwordx4 v{vDW+1}, s[8:11], s27 offen lds")
    def wsetup():
        A("s_lshl_b32 s17, s15, 6")
        A("s_movk_i32 s18, 3072")
        A("s_mov_b32 s19, 43691")
        for i in range(2):
            A(f"v_add_u32 v9, s17, v0")
            if i: A(f"v_add_u32 v9, 512, v9")
            A("v_mul_u32_u24 v10, s19, v9")
            A("v_lshrrev_b32 v10, 19, v10")
            A("v_mul_u32_u24 v11, 12, v10")
            A("v_sub_u32 v11, v9, v11")
            A("v_lshrrev_b32 v12, 2, v10")
            A("v_and_b32 v12, 2, v12")
            A("v_xor_b32 v11, v11, v12")
            A("v_lshrrev_b32 v12, 2, v11")
            A("v_and_b32 v11, 3, v11")
            A("v_lshlrev_b32 v11, 4, v11")
            A("v_lshl_add_u32 v11, v12, 10, v11")
            A(f"v_mad_u32_u24 v{vDW+i}, v10, s18, v11")
    def gtab():
        A("s_getpc_b64 s[32:33]")
        L = A.newlabel("CPC"); A.label(L)
        A(f"s_add_u32 s32, s32, GTAB-{L}")
        A("s_addc_u32 s33, s33, 0")
        A("s_and_b32 s17, s15, 3"); A("s_lshl_b32 s17, s17, 11")
        A("v_lshlrev_b32 v14, 5, v0")
        A("v_add_u32 v14, s17, v14")
        A("global_load_dwordx4 v[96:99], v14, s[32:33]")
        A("global_load_dwordx4 v[100:103], v14, s[32:33] offset:16")
    def ut_loads():
        A("buffer_load_dwordx4 v[108:111], v117, s[32:35], 0 offen sc1")
        A("buffer_load_dwordx4 v[112:115], v116, s[32:35], 0 offen sc1")
        A("buffer_load_dwordx4 v[120:123], v119, s[32:35], 0 offen sc1")
    def ut_prep():
        chan_pair(A, 14, 17)
        A("s_lshr_b32 s16, s15, 2")
        A("s_add_u32 s17, s14, s16")
        A("s_lshl_b32 s17, s17, 12")
        A(f"s_add_u32 s17, s17, {WS_UT}")
        ka_wait(A)
        A(f"s_add_u32 s32, s{SP['ws']}, s17"); A(f"s_addc_u32 s33, s{SP['ws']+1}, 0")
        A("s_mov_b32 s34, 4096"); A("s_mov_b32 s35, 0x00020000")
        A("s_and_b32 s19, s15, 3"); A("s_lshl_b32 s19, s19, 10")
        A(f"v_add_u32 v116, s19, v{vL16}")
        A("v_subrev_u32 v117, 16, v116")
        A("v_cmp_eq_u32 vcc, 0, v116")
        A("v_mov_b32 v118, 4096")
        A("s_nop 0")
        A("v_cndmask_b32 v117, v117, v118, vcc")
        A("v_mov_b32 v119, 4096")
        A(f"v_mov_b32 v120, {255*16}")
        A("v_cmp_eq_u32 vcc, 3, v0")
        A("s_nop 1")
        A("v_cndmask_b32 v119, v119, v120, vcc")
    def issue_dyn(nw):
        A("s_add_u32 s26, s25, s28")
        A("s_and_b32 s26, s26, 7")
        A("s_lshl_b32 s24, s26, 7")
        A("s_add_u32 s24, s24, s20")
        A("s_add_u32 s30, s22, s29")
        A("s_mov_b32 m0, s30")
        A(f"s_mul_i32 s27, s26, {64*3072}")
        A(f"buffer_load_dwordx4 v{vDX}, s[4:7], s24 offen lds")
        A("s_add_u32 m0, s30, 1024")
        A("s_add_u32 s24, s24, 8192")
        A(f"buffer_load_dwordx4 v{vDX1}, s[4:7], s24 offen lds")
        A("s_add_u32 s30, s23, s29")
        A("s_mov_b32 m0, s30")
        A("s_add_u32 s27, s27, s21")
        A(f"buffer_load_dwordx4 v{vDW}, s[8:11], s27 offen lds")
        if nw == 2:
            A("s_add_u32 m0, s30, 8192")
            A("s_nop 0")
            A(f"buffer_load_dwordx4 v{vDW+1}, s[8:11], s27 offen lds")
    def loop(nw):
        per = 2 + nw
        issue_w(0, nw)
        issue_x(1); issue_w(1, nw)
        A("s_mov_b32 s28, 2"); A(f"s_mov_b32 s29, {2*SLOT}")
        L = A.newlabel("LDL")
        A.label(L)
        A(f"s_waitcnt vmcnt({per})")
        A("s_barrier")
        issue_dyn(nw)
        A(f"s_add_u32 s29, s29, {SLOT}")
        A(f"s_cmp_eq_u32 s29, {NSLOT*SLOT}")
        A("s_cselect_b32 s29, 0, s29")
        A("s_add_u32 s28, s28, 1")
        A("s_cmp_lt_u32 s28, 8")
        A(f"s_cbranch_scc1 {L}")
        ut_prep()
        A(f"s_waitcnt vmcnt({per})")
        A("s_barrier")
        L = A.newlabel("CVC")
        A(f"v_mov_b32 v30, {C_FU}")
        A("ds_read_b32 v31, v30")
        A("s_waitcnt lgkmcnt(0)")
        A("v_readfirstlane_b32 s40, v31")
        A("s_nop 0")
        A("s_cmp_eq_u32 s40, 0")
        A(f"s_cbranch_scc1 {L}")
        ut_loads()
        A("s_waitcnt vmcnt(3)")
        A(f"s_branch {L}b")
        A.label(L)
        A("s_waitcnt vmcnt(0)")
        A.label(L + "b")
        A("s_barrier")
    issue_x(0)
    if os.environ.get("EARLY") == "1": A("s_barrier")
    wsetup()
    A("s_cmp_ge_u32 s15, 4")
    A("s_cbranch_scc1 P1_LOADER1")
    loop(2)
    A("s_branch P1_LOADER_END")
    A.label("P1_LOADER1")
    loop(1)
    A.label("P1_LOADER_END")
    A("s_setprio 1")
    stamp(A, 28)
    if os.environ.get("X_P1ONLY"): A("s_branch K_FIN")
    A("s_cmp_lg_u32 s40, 0")
    A("s_cbranch_scc1 CV_HAVE")
    lwait(A, C_FU, 1, 72, sleep=1)
    ut_loads()
    A.label("CV_HAVE")
    get_tag(A, vt=30)
    def copies(D, dest):
        T0, T1, T2 = 44, 48, 52
        for j in range(4): A(f"v_alignbit_b32 v{T0+j}, v{D+j+1}, v{D+j}, 16")
        for j in range(4): A(f"v_mov_b32 v{T1+j}, v{D+1+j}")
        for j in range(4): A(f"v_alignbit_b32 v{T2+j}, v{D+j+2}, v{D+j+1}, 16")
        A(f"ds_write_b128 v{dest}, {v(T0,4)}")
        A(f"ds_write_b128 v{dest}, {v(T1,4)} offset:{UC_RHO}")
        A(f"ds_write_b128 v{dest}, {v(T2,4)} offset:{2*UC_RHO}")
        A(f"ds_write_b128 v{dest}, {v(D+2,4)} offset:{3*UC_RHO}")
    A("s_lshr_b32 s16, s15, 2")
    A(f"s_mul_i32 s21, s16, {UC_CH}")
    A(f"s_add_u32 s21, s21, {L_UC + 48}")
    A("v_add_u32 v19, s21, v116")
    A(f"s_mul_i32 s23, s16, {KREV_SZ}")
    A(f"s_add_u32 s23, s23, {L_KREV}")
    A("v_and_b32 v9, 31, v0")
    A("v_lshrrev_b32 v10, 5, v0")
    A("v_and_b32 v11, 3, v9")
    A(f"v_mul_u32_u24 v11, {UC_RHO}, v11")
    A("v_lshrrev_b32 v12, 2, v9")
    A("v_lshl_add_u32 v11, v12, 3, v11")
    A("v_lshl_add_u32 v11, v10, 4, v11")
    A(f"s_mul_i32 s24, s16, {UC_CH}")
    A(f"s_add_u32 s24, s24, {L_UC}")
    A("v_add_u32 v4, s24, v11")
    A("v_sub_u32 v11, 63, v9")
    A("v_mul_u32_u24 v11, 80, v11")
    A("v_lshl_add_u32 v11, v10, 4, v11")
    A("v_add_u32 v5, s23, v11")
    A("v_subrev_u32 v6, 2560, v5")
    A("s_and_b32 s24, s15, 3")
    A(f"s_mul_i32 s25, s16, 28672")
    A("s_lshl_b32 s26, s24, 12")
    A("s_add_u32 s25, s25, s26")
    A(f"s_add_u32 s25, s25, {L_PART}")
    A(f"v_add_u32 v7, s25, v{vL16}")
    A("s_mul_i32 s26, s24, 24")
    A("s_cmp_eq_u32 s24, 3"); A("s_cselect_b32 s26, 80, s26")
    A("s_cmp_ge_u32 s24, 2"); A("s_cselect_b32 s28, 4, 6")
    A("s_cmp_eq_u32 s24, 3"); A("s_cselect_b32 s28, 0, s28")
    A("s_cmp_eq_u32 s24, 2"); A("s_cselect_b32 s29, 4, 0")
    A("s_cmp_eq_u32 s24, 3"); A("s_cselect_b32 s29, 12, s29")
    A("s_lshl_b32 s27, s26, 5")
    A("v_add_u32 v4, s27, v4")
    A("s_mul_i32 s27, s26, 40")
    A("v_add_u32 v5, s27, v5")
    A("v_add_u32 v6, s27, v6")
    A("s_waitcnt vmcnt(0)")
    copies(108, 19)
    A("s_cmp_eq_u32 s19, 0")
    A("s_cbranch_scc0 CV_NOX2")
    for j in range(4): A(f"v_mov_b32 v{56+j}, v{120+j}")
    for j in range(4): A(f"v_mov_b32 v{60+j}, 0")
    A(f"v_mov_b32 v30, {259*16}")
    A("v_cmp_eq_u32 vcc, 3, v0")
    A("s_sub_u32 s21, s21, 48")
    A(f"v_cndmask_b32 v30, v{vL16}, v30, vcc")
    A("v_add_u32 v30, s21, v30")
    A("s_mov_b64 exec, 15")
    copies(56, 30)
    A("s_mov_b64 exec, -1")
    A.label("CV_NOX2")
    for i in range(32): A(f"v_mov_b32 v{56+i}, 0")
    gsync(A, C_CV, 8, 8)
    stamp(A, 30)
    ACC0, ACC1 = 56, 72
    conv_rolled(A, 4, 5, 6, ACC0, ACC1, 28, 29)
    A("s_nop 15")
    for qd in range(4):
        A(f"ds_write_b128 v7, {v(ACC1+4*qd,4)} offset:{qd*1024}")
    A("s_cmp_eq_u32 s24, 3")
    A("s_cbranch_scc1 CV_PE")
    for qd in range(4):
        A(f"ds_write_b128 v7, {v(ACC0+4*qd,4)} offset:{16384 + qd*1024}")
    A.label("CV_PE")
    stamp(A, 31)
    gsync(A, C_CV, 16, 8)
    stamp(A, 32)
    A("s_lshl_b32 s26, s24, 10")
    A(f"s_add_u32 s26, s26, {L_PART}")
    A(f"v_add_u32 v4, s26, v{vL16}")
    A("s_cmp_eq_u32 s16, 0")
    A("s_cbranch_scc1 CV_F0")
    for c in range(2):
        for p in range(4):
            A(f"ds_read_b128 {v(16+16*c+4*p,4)}, v4 offset:{c*28672 + p*4096}")
    A("s_waitcnt lgkmcnt(0)")
    for c in range(2):
        for r in range(4):
            b_ = 16 + 16*c + r
            A(f"v_add_f32 v{b_}, v{b_}, v{b_+4}"); A(f"v_add_f32 v{b_+8}, v{b_+8}, v{b_+12}")
        for r in range(4):
            b_ = 16 + 16*c + r
            A(f"v_add_f32 v{b_}, v{b_}, v{b_+8}")
    A("s_branch CV_F1")
    A.label("CV_F0")
    for c in range(2):
        for p in range(3):
            A(f"ds_read_b128 {v(16+16*c+4*p,4)}, v4 offset:{c*28672 + 16384 + p*4096}")
    A("s_waitcnt lgkmcnt(0)")
    for c in range(2):
        for r in range(4):
            b_ = 16 + 16*c + r
            A(f"v_add_f32 v{b_}, v{b_}, v{b_+4}")
        for r in range(4):
            b_ = 16 + 16*c + r
            A(f"v_add_f32 v{b_}, v{b_}, v{b_+8}")
    A.label("CV_F1")
    for r in range(4):
        A(f"v_cvt_pk_bf16_f32 v{vY[r]}, v{16+r}, v{32+r}")
    A("s_lshl_b32 s36, s16, 21")
    A("s_lshl_b32 s25, s24, 14")
    A("s_add_u32 s36, s36, s25")
    A("s_lshl_b32 s25, s14, 1")
    A("s_add_u32 s36, s36, s25")
    A("s_setprio 0")
    stamp(A, 33)

def p1_compute(A):
    vFR, vACC, vXA, vWA = 8, 64, 112, 118
    vXC, vWC = 114, 116
    A("v_and_b32 v4, 15, v0")
    A("v_lshrrev_b32 v5, 4, v0")
    A("v_lshrrev_b32 v6, 1, v4")
    A("v_xor_b32 v6, v6, v5")
    A("v_lshlrev_b32 v6, 4, v6")
    A("v_lshl_add_u32 v6, v4, 7, v6")
    A("s_lshr_b32 s17, s3, 1")
    A("s_lshl_b32 s17, s17, 13")
    A(f"v_add_u32 v{vXA}, s17, v6")
    A(f"v_xor_b32 v{vXA+1}, 64, v{vXA}")
    A("v_lshrrev_b32 v6, 2, v4")
    A("v_lshl_add_u32 v6, v5, 3, v6")
    A("v_mul_u32_u24 v6, 192, v6")
    A("v_and_b32 v7, 3, v4")
    A("v_lshl_add_u32 v6, v7, 3, v6")
    A("s_and_b32 s17, s3, 1")
    A("v_xor_b32 v7, s17, v5")
    A("v_and_b32 v7, 1, v7")
    A(f"v_lshl_add_u32 v{vWA}, v7, 5, v6")
    A("s_and_b32 s18, s3, 1")
    A("s_lshl_b32 s19, s13, 1")
    A("s_add_u32 s18, s18, s19")
    A(f"s_lshl_b32 s16, s18, {5+FS}")
    A("s_lshl_b32 s18, s18, 16")
    A("s_lshr_b32 s19, s3, 1")
    A("s_lshl_b32 s24, s12, 1")
    A("s_add_u32 s24, s24, s19")
    A(f"s_lshl_b32 s25, s24, {FS}")
    A("s_add_u32 s16, s16, s25")
    A(f"s_add_u32 s16, s16, {WS_F1}")
    A("s_lshl_b32 s19, s24, 11")
    A("s_add_u32 s18, s18, s19")
    A(f"s_mov_b32 s17, 0x{f32bits(C_SCALE):08x}")
    A("s_setprio 3")
    q = DSQ(A)
    def fr(buf): return vFR + 28 * buf
    def rd_list(step):
        c, ks2 = step // 2, step % 2
        b = fr(step % 2)
        L = []
        st, so = 0, 0
        for hf in range(2):
            L.append((f"ds_read_b64_tr_b16 {v(b+16+2*hf,2)}, v{vWC} offset:{16384 + (32*ks2+4*hf)*192}", ("w", step, 0, hf)))
        for ti in range(4):
            L.append((f"ds_read_b128 {v(b+4*ti,4)}, v{vXC+ks2} offset:{ti*2048}", ("x", step, ti)))
        for gi in range(1, 3):
            for hf in range(2):
                L.append((f"ds_read_b64_tr_b16 {v(b+16+4*gi+2*hf,2)}, v{vWC} offset:{16384 + (32*ks2+4*hf)*192 + 64*gi}", ("w", step, gi, hf)))
        return L
    def rd(step):
        for ins, tag in rd_list(step):
            A(ins); q.issue(tag)
    def mm(step, nxt=None):
        b = fr(step % 2)
        R = rd_list(nxt) if nxt is not None else []
        if os.environ.get("X_BURST"):
            for ins, tag in R:
                A(ins); q.issue(tag)
            R = []
        n = 0
        for gi in range(3):
            for ti in range(4):
                acc = vACC + (gi*4 + ti)*4
                X = v(b+4*ti, 4); W = v(b+16+4*gi, 4)
                cc = "0" if step == 0 else v(acc, 4)
                if gi == 0: q.wait(("x", step, ti))
                if ti == 0: q.wait(("w", step, gi, 1))
                if gi < 2: A(f"v_mfma_f32_16x16x32_bf16 {v(acc,4)}, {W}, {X}, {cc}")
                else:      A(f"v_mfma_f32_16x16x32_bf16 {v(acc,4)}, {X}, {W}, {cc}")
                if n < len(R):
                    A(R[n][0]); q.issue(R[n][1])
                n += 1
    kg_scalars(A, 3, 20, False)
    A(f"s_mul_i32 s21, s22, {L_TCH}")
    A("s_lshl_b32 s23, s24, 8")
    A("s_add_u32 s21, s21, s23")
    A(f"s_add_u32 s21, s21, {L_TA + L_TBO}")
    A("v_lshlrev_b32 v8, 2, v0")
    A("v_add_u32 v8, s21, v8")
    lwait(A, C_PAR, 4, 22, sleep=1)
    kg_read(A, 22, 24, 2, 21)
    A("s_cmp_eq_u32 s22, 0")
    A("s_cselect_b32 s21, 16, 0")
    A("s_lshl_b32 s26, s26, s21"); A("s_and_b32 s26, s26, 0xffff0000")
    kg_setup(A, 26, 21, False)
    kg_bside(A, 8)
    A("s_waitcnt lgkmcnt(0)")
    lsig(A, C_G, 2)
    stamp(A, 9)
    A("v_and_b32 v80, 15, v0")
    A("v_lshrrev_b32 v81, 4, v0")
    A("v_lshrrev_b32 v82, 2, v80")
    A("v_lshl_add_u32 v82, v81, 3, v82")
    A("v_lshlrev_b32 v84, 5, v82")
    A("v_lshlrev_b32 v82, 7, v82")
    A("v_and_b32 v83, 3, v80")
    A("v_lshl_add_u32 v82, v83, 3, v82")
    A("v_lshl_add_u32 v84, v83, 3, v84")
    A(f"v_add_u32 v84, {L_WOT}, v84")
    A("s_lshl_b32 s20, s3, 5")
    A(f"s_add_u32 s20, s20, {L_UTL}")
    A("v_add_u32 v82, s20, v82")
    A("v_lshlrev_b32 v83, 12, v80")
    A("v_lshl_add_u32 v83, v81, 4, v83")
    A("s_and_b32 s20, s2, 7"); A("s_lshl_b32 s20, s20, 2"); A("s_add_u32 s20, s20, s3")
    A(f"s_lshl_b32 s21, s20, {5+FS}")
    A("s_lshl_b32 s20, s20, 16")
    A("s_lshr_b32 s22, s2, 3")
    A("s_lshl_b32 s23, s22, 7")
    A("s_add_u32 s20, s20, s23")
    A(f"s_add_u32 s20, s20, {WS_UT}")
    A(f"s_lshl_b32 s23, s22, {FS}")
    A("s_add_u32 s21, s21, s23")
    A(f"s_add_u32 s21, s21, {WS_FU}")
    A("s_lshr_b32 s24, s2, 3"); A(f"s_lshl_b32 s22, s24, {3+FS}"); A("s_lshl_b32 s24, s24, 14")
    A("s_and_b32 s19, s2, 7"); A(f"s_lshl_b32 s23, s19, {FS}"); A("s_lshl_b32 s19, s19, 11")
    A("s_add_u32 s24, s24, s19")
    A(f"s_add_u32 s24, s24, {WS_WOF}")
    A("s_add_u32 s22, s22, s23")
    A(f"s_add_u32 s22, s22, {WS_F3}")
    lwait(A, C_GU, 4, 86, sleep=1)
    for p in range(2):
        for hf in range(2):
            A(f"ds_read_b64_tr_b16 {v(64+4*p+2*hf,2)}, v82 offset:{(32*p+4*hf)*128}")
    for s_ in range(2):
        for hf in range(2):
            A(f"ds_read_b64_tr_b16 {v(72+4*s_+2*hf,2)}, v84 offset:{(32*s_+4*hf)*32}")
    A("s_waitcnt lgkmcnt(0)")
    stamp(A, 25)
    A(f"buffer_store_dwordx4 v[64:67], v83, {WSRD}, s20 offen sc1")
    A(f"buffer_store_dwordx4 v[68:71], v83, {WSRD}, s20 offen offset:64 sc1")
    A("s_cmp_eq_u32 s3, 0")
    A("s_cbranch_scc0 PC_NW")
    A(f"buffer_store_dwordx4 v[72:75], v{vL16}, {WSRD}, s24 offen sc1")
    A(f"buffer_store_dwordx4 v[76:79], v{vL16}, {WSRD}, s24 offen offset:1024 sc1")
    A.label("PC_NW")
    get_tag(A)
    stamp(A, 19)
    def setslot(sreg):
        A(f"v_add_u32 v{vXC}, s{sreg}, v{vXA}")
        A(f"v_add_u32 v{vXC+1}, s{sreg}, v{vXA+1}")
        A(f"v_add_u32 v{vWC}, s{sreg}, v{vWA}")
    A("s_mov_b32 s26, 0")
    A("s_mov_b32 s27, 1")
    setslot(26)
    A("s_barrier")
    stamp(A, 10)
    rd(0)
    mm(0, 1)
    q.drain()
    A.label("PC_LOOP")
    A("s_add_u32 s26, s26, %d" % SLOT)
    A("s_cmp_eq_u32 s26, %d" % (NSLOT * SLOT))
    A("s_cselect_b32 s26, 0, s26")
    A("s_barrier")
    setslot(26)
    A("s_cmp_eq_u32 s27, 1")
    A("s_cbranch_scc0 PC_NFL")
    A("s_waitcnt vmcnt(0)")
    flag_store(A, 21, 2, 3)
    A("s_cmp_eq_u32 s3, 0")
    A("s_cbranch_scc0 PC_NFL")
    flag_store(A, 22, 2, 3)
    A.label("PC_NFL")
    mm(1, 2)
    mm(2, 3)
    q.drain()
    A("s_add_u32 s27, s27, 1")
    A("s_cmp_lt_u32 s27, 8")
    A("s_cbranch_scc1 PC_LOOP")
    lsig(A, C_DONE(7), 4)
    mm(15)
    stamp(A, 1)
    T = vFR
    n = 0
    for gi, base in ((1, WS_K), (2, WS_V), (0, WS_Q)):
        if gi == 0:
            for ti in range(4):
                for r in range(4):
                    A(f"v_mul_f32 v{vACC+ti*4+r}, s17, v{vACC+ti*4+r}")
        for pair in range(2):
            a0 = vACC + (gi*4 + 2*pair)*4; a1 = a0 + 4
            t = T + 4 * n; n += 1
            A(f"v_cvt_pk_bf16_f32 v{t}, v{a0}, v{a0+1}")
            A(f"v_cvt_pk_bf16_f32 v{t+1}, v{a0+2}, v{a0+3}")
            A(f"v_cvt_pk_bf16_f32 v{t+2}, v{a1}, v{a1+1}")
            A(f"v_cvt_pk_bf16_f32 v{t+3}, v{a1+2}, v{a1+3}")
            A(f"s_add_u32 s24, s18, {base + pair*1024}")
            A("s_nop 0")
            op = "v_permlane32_swap_b32" if gi == 2 else "v_permlane16_swap_b32"
            A(f"{op} v{t}, v{t+2}")
            A(f"{op} v{t+1}, v{t+3}")
            A("s_nop 1")
            A(f"buffer_store_dwordx4 {v(t,4)}, v{vL16}, {WSRD}, s24 offen sc1")
    stamp(A, 18)
    A("s_waitcnt vmcnt(0)")
    get_tag(A)
    flag_store(A, 16, 2, 3)
    lsig(A, C_OWN, 2)
    A("s_setprio 0")
    stamp(A, 2)
    if os.environ.get("X_P1ONLY"): A("s_branch K_FIN")

def cmul(A, D, X, S, T):
    A(f"v_pk_mul_f32 {v(T,2)}, {v(X,2)}, {v(S,2)} op_sel:[0,0] op_sel_hi:[1,0]")
    A(f"v_pk_fma_f32 {v(D,2)}, {v(X,2)}, {v(S,2)}, {v(T,2)} op_sel:[1,1,0] op_sel_hi:[0,1,1] neg_lo:[0,1,0]")

def fl(p): return f"{float(p)!r}" if p in (1, 2, 4) else f"0x{f32bits(float(p)):08x}"
def anchor(A, D, p, vt2, vw, tmp, conj=False):
    A(f"v_mul_f32 v{tmp}, {fl(p)}, v{vt2}")
    A(f"v_mul_f32 v{tmp+1}, {fl(p)}, v{vw}")
    A(f"v_exp_f32 v{tmp}, v{tmp}")
    A(f"v_fract_f32 v{tmp+1}, v{tmp+1}")
    A(f"v_cos_f32 v{D}, v{tmp+1}")
    A(f"v_sin_f32 v{D+1}, v{tmp+1}")
    A("s_nop 0")
    A(f"v_mul_f32 v{D}, v{D}, v{tmp}")
    if conj: A(f"v_mul_f32_e64 v{D+1}, -v{D+1}, v{tmp}")
    else: A(f"v_mul_f32 v{D+1}, v{D+1}, v{tmp}")

def kg_scalars(A, kw_sreg, s0, dsk):
    chan_pair(A, s0, s0+1)
    A(f"s_lshr_b32 s{s0+2}, s{kw_sreg}, 1")
    A(f"s_and_b32 s{s0+4}, s{kw_sreg}, 1")
    A(f"s_lshl_b32 s{s0+1}, s{s0}, 1")
    A(f"s_add_u32 s{s0+8}, s{SP['ldt']}, s{s0+1}"); A(f"s_addc_u32 s{s0+9}, s{SP['ldt']+1}, 0")
    A(f"s_load_dword s{s0+6}, s[{s0+8}:{s0+9}], 0")
    if dsk:
        A(f"s_add_u32 s{s0+10}, s{SP['dsk']}, s{s0+1}"); A(f"s_addc_u32 s{s0+11}, s{SP['dsk']+1}, 0")
        A(f"s_load_dword s{s0+7}, s[{s0+10}:{s0+11}], 0")

def kg_read(A, s_c, s_mh, narr, s_tmp):
    A(f"s_lshl_b32 s{s_tmp}, s{s_c}, 8")
    A(f"v_lshlrev_b32 v9, 1, v0")
    A(f"v_add_u32 v9, s{s_tmp}, v9")
    A(f"s_lshl_b32 s{s_tmp}, s{s_mh}, 7")
    A(f"s_add_u32 s{s_tmp}, s{s_tmp}, {L_PAR}")
    A(f"v_add_u32 v9, s{s_tmp}, v9")
    for i in range(narr):
        A(f"ds_read_u16 v{10+i}, v9 offset:{512*i}")
    A("s_waitcnt lgkmcnt(0)")

def kg_setup(A, s_ldt, s_tmp, full):
    vt2, vw, vY0, tmp = 16, 17, 18, 20
    A(f"s_mov_b32 s{s_tmp}, 0x{f32bits(LOG2E):08x}")
    A(f"v_mov_b32 v{tmp}, s{s_ldt}")
    A(f"v_lshlrev_b32 v10, 16, v10")
    A(f"v_mul_f32 v{tmp}, s{s_tmp}, v{tmp}")
    A(f"v_mul_f32 v10, s{s_tmp}, v10")
    A(f"v_exp_f32 v{tmp}, v{tmp}")
    A(f"v_exp_f32 v10, v10")
    A(f"v_lshlrev_b32 v11, 16, v11")
    A(f"v_cvt_pk_bf16_f32 v{tmp}, v{tmp}, v10")
    if full: A(f"v_lshlrev_b32 v12, 16, v12")
    A(f"v_and_b32 v10, 0xffff0000, v{tmp}")
    A(f"v_lshlrev_b32 v{tmp}, 16, v{tmp}")
    if full: A(f"v_lshlrev_b32 v13, 16, v13")
    A(f"v_mul_f32 v10, v10, v{tmp}")
    A(f"v_mul_f32 v11, v11, v{tmp}")
    A(f"v_mul_f32 v{vt2}, 0x{f32bits(-LOG2E):08x}, v10")
    A(f"v_mul_f32 v{vw}, 0x{f32bits(INV2PI):08x}, v11")
    if full:
        A(f"v_add_f32 v{tmp}, v{tmp}, v{tmp}")
        A(f"v_mul_f32 v{vY0}, v12, v{tmp}")
        A(f"v_mul_f32_e64 v{vY0+1}, -v13, v{tmp}")

def kg_bside(A, vaddr):
    vt2, vw = 16, 17
    X = [24 + 2*j for j in range(8)]
    S = 40
    T = [42 + 2*j for j in range(8)]
    PK = [58 + j for j in range(8)]
    anchor(A, X[1], 8, vt2, vw, 42)
    A(f"v_mov_b32 v{X[0]}, 1.0"); A(f"v_mov_b32 v{X[0]+1}, 0")
    cmul(A, X[2], X[1], X[1], T[0])
    r1, r2 = Rec(), Rec()
    cmul(r1, X[3], X[1], X[2], T[0]); cmul(r2, X[4], X[2], X[2], T[1])
    for ins in merge(r1.L, r2.L): A(ins)
    rr = [Rec() for _ in range(4)]
    cmul(rr[0], X[5], X[4], X[1], T[0]); cmul(rr[1], X[6], X[4], X[2], T[1]); cmul(rr[2], X[7], X[4], X[3], T[2]); cmul(rr[3], S, X[4], X[4], T[3])
    for ins in merge(*[r.L for r in rr]): A(ins)
    for lvl in range(4):
        for j in range(8): A(f"v_cvt_pk_bf16_f32 v{PK[j]}, v{X[j]}, v{X[j]+1}")
        if lvl < 3:
            ch = [Rec() for _ in range(8)]
            for j in range(8): cmul(ch[j], X[j], X[j], S, T[j])
            mm_ = merge(*[c.L for c in ch])
        else: mm_ = []
        wr = [f"ds_write_b32 v{vaddr}, v{PK[j]} offset:{(8*lvl + j)*528}" for j in range(8)]
        for ins in merge(mm_[:8], wr): A(ins)
        for ins in mm_[8:]: A(ins)

def kg_aside(A, vaddr):
    vt2, vw, Y0 = 16, 17, 18
    F1, F256, F2, F4, F512 = 24, 26, 28, 30, 32
    r2, r3 = Rec(), Rec()
    anchor(r2, F1, 1, vt2, vw, 48, conj=True)
    anchor(r3, F256, 256, vt2, vw, 50, conj=True)
    for ins in merge(r2.L, r3.L): A(ins)
    R = {}
    regs = iter(list(range(60, 96, 2)) + list(range(104, 124, 2)))
    def new(row): R[row] = next(regs); return R[row]
    T = [34, 36, 38, 40, 42, 44, 46]
    def level(items):
        ch = []
        for k, (row, x, s_) in enumerate(items):
            r = Rec(); d = new(row) if isinstance(row, int) else row[0]
            cmul(r, d, x, s_, T[k % 7]); ch.append(r.L)
        for ins in merge(*ch): A(ins)
    R[0] = Y0
    level([((F2,), F1, F1), ((F512,), F256, F256), (1, Y0, F1), (8, Y0, F256)])
    level([((F4,), F2, F2), (2, Y0, F2), (3, R[1], F2), (9, R[8], F2), (12, R[8], F256), (14, R[8], F512)])
    level([(4, Y0, F4), (5, R[1], F4), (6, R[2], F4), (7, R[3], F4), (10, R[9], F2), (16, R[12], F512), (17, R[14], F512)])
    level([(11, R[10], F2), (13, R[12], F4), (15, R[14], F4), (18, R[16], F512), (19, R[17], F512)])
    level([(20, R[18], F512)])
    pk = [52, 53, 54, 55, 56, 57, 58, 59]
    rows = list(range(21))
    for n, row in enumerate(rows):
        A(f"v_cvt_pk_bf16_f32 v{pk[n % 8]}, v{R[row]}, v{R[row]+1}")
        if n >= 1: A(f"ds_write_b32 v{vaddr}, v{pk[(n-1) % 8]} offset:{rows[n-1]*528}")
    A(f"ds_write_b32 v{vaddr}, v{pk[20 % 8]} offset:{20*528}")

L_WOT = 57344 + 2048
def kgen_pre(A):
    A("s_sub_u32 s15, s3, 12")
    A("s_setprio 3")
    chan_pair(A, 14, 17)
    A("s_lshl_b32 s17, s14, 8")
    A("s_lshl_b32 s18, s15, 9")
    A("s_mov_b32 s40, -1"); A("s_mov_b32 s41, 0")
    A("v_lshrrev_b32 v14, 3, v0")
    A("v_lshlrev_b32 v14, 10, v14")
    A("v_and_b32 v13, 7, v0")
    A("v_lshl_add_u32 v14, v13, 4, v14")
    A("s_lshr_b32 s19, s2, 3"); A("s_lshl_b32 s19, s19, 16")
    A("s_lshl_b32 s16, s15, 14")
    A("s_add_u32 s19, s19, s16")
    A("s_and_b32 s16, s2, 7"); A("s_lshl_b32 s16, s16, 7")
    A("s_add_u32 s19, s19, s16")
    A("v_lshrrev_b32 v12, 1, v0")
    A("v_lshlrev_b32 v12, 10, v12")
    A("v_and_b32 v13, 1, v0")
    A("v_lshl_add_u32 v12, v13, 4, v12")
    ka_wait(A)
    A(f"s_mov_b32 s32, s{SP['lar']}"); A(f"s_mov_b32 s33, s{SP['lar']+1}")
    for mm_, nm in ((1, 'aim'), (2, 'cre'), (3, 'cim')):
        A(f"s_cmp_eq_u32 s15, {mm_}")
        A(f"s_cselect_b32 s32, s{SP[nm]}, s32"); A(f"s_cselect_b32 s33, s{SP[nm]+1}, s33")
    A(f"s_mov_b32 s34, {512*128*2}"); A("s_mov_b32 s35, 0x00020000")
    A(f"s_add_u32 m0, s18, {L_PAR}")
    A("s_mov_b64 exec, s[40:41]")
    A(f"buffer_load_dwordx4 v{vL16}, s[32:35], s17 offen lds")
    A("s_mov_b64 exec, -1")
    kg_scalars(A, 15, 20, True)
    A("s_getpc_b64 s[32:33]")
    A.label("KG_PC")
    A("s_add_u32 s32, s32, GTAB-KG_PC")
    A("s_addc_u32 s33, s33, 0")
    A("s_lshl_b32 s17, s15, 11")
    A("v_lshlrev_b32 v11, 5, v0")
    A("v_add_u32 v11, s17, v11")
    A("global_load_dwordx4 v[96:99], v11, s[32:33]")
    A("global_load_dwordx4 v[100:103], v11, s[32:33] offset:16")
    srd(A, 32, SP['u'], 2048*512*2)
    A(f"s_add_u32 m0, s17, {L_UTL}")
    A("s_nop 0")
    A("buffer_load_dwordx4 v14, s[32:35], s19 offen lds")
    A(f"s_add_u32 m0, s17, {L_UTL + 1024}")
    A("s_add_u32 s19, s19, 8192")
    A("buffer_load_dwordx4 v14, s[32:35], s19 offen lds")
    srd(A, 32, SP['wo'], 512*512*2)
    A("s_and_b32 s17, s2, 7"); A("s_lshl_b32 s17, s17, 16")
    A("s_lshl_b32 s19, s15, 14")
    A("s_add_u32 s17, s17, s19")
    A("s_lshr_b32 s19, s2, 3"); A("s_lshl_b32 s19, s19, 5")
    A("s_add_u32 s17, s17, s19")
    A(f"s_add_u32 m0, s18, {L_WOT}")
    A("s_mov_b64 exec, s[40:41]")
    A("buffer_load_dwordx4 v12, s[32:35], s17 offen lds")
    A("s_mov_b64 exec, -1")
    A("s_cmp_eq_u32 s15, 0")
    A("s_cbranch_scc0 KG_NE")
    A(f"s_mov_b32 s16, {WS_EP}")
    A("v_mov_b32 v9, 0")
    A("s_mov_b64 exec, 1")
    A(f"buffer_load_dword v{vE}, v9, {WSRD}, s16 offen sc1")
    A("s_mov_b64 exec, -1")
    A.label("KG_NE")

def kgen(A):
    A("s_mov_b32 s16, s22"); A("s_mov_b32 s18, s24"); A("s_mov_b32 s14, s20")
    A(f"s_mul_i32 s25, s16, {L_TCH}")
    A("s_lshl_b32 s23, s18, 8")
    A("s_add_u32 s25, s25, s23")
    A(f"s_add_u32 s25, s25, {L_TA}")
    A("v_lshlrev_b32 v15, 2, v0")
    A("v_add_u32 v15, s25, v15")
    A("s_cmp_eq_u32 s15, 0")
    A("s_cbranch_scc1 KG_WP")
    A("s_waitcnt vmcnt(5)")
    A.label("KG_WP")
    A("s_waitcnt vmcnt(6)")
    gsync(A, C_PAR, 4, 66)
    stamp(A, 24)
    kg_read(A, 16, 18, 4, 23)
    A("s_cmp_eq_u32 s16, 0")
    A("s_cselect_b32 s23, 16, 0")
    A("s_lshl_b32 s26, s26, s23"); A("s_and_b32 s26, s26, 0xffff0000")
    A("s_lshl_b32 s27, s27, s23"); A("s_and_b32 s27, s27, 0xffff0000")
    kg_setup(A, 26, 23, True)
    kg_aside(A, 15)
    A("s_waitcnt lgkmcnt(0)")
    lsig(A, C_G, 66)
    stamp(A, 21)
    A("s_waitcnt vmcnt(0)")
    A("s_cmp_eq_u32 s15, 0")
    A("s_cbranch_scc0 KG_NT")
    make_tag(A)
    A.label("KG_NT")
    A("s_waitcnt lgkmcnt(0)")
    lsig(A, C_GU, 86)
    A("v_and_b32 v9, 15, v0")
    A("v_lshrrev_b32 v10, 4, v0")
    A("v_mul_u32_u24 v11, 528, v9")
    A("v_lshl_add_u32 v11, v10, 4, v11")
    A(f"s_mul_i32 s25, s16, {L_TCH}")
    A(f"s_add_u32 s25, s25, {L_TA}")
    A(f"s_mul_i32 s23, s18, {16*528}")
    A("s_add_u32 s23, s23, s25")
    A("v_add_u32 v12, s23, v11")
    A(f"s_add_u32 s25, s25, {L_TBO}")
    A("v_add_u32 v13, s25, v11")
    A("s_lshl_b32 s25, s16, 11")
    A("s_lshl_b32 s23, s18, 10")
    A("s_add_u32 s25, s25, s23")
    A(f"s_add_u32 s25, s25, {L_T}")
    A("v_lshlrev_b32 v14, 8, v10")
    A("v_lshl_add_u32 v14, v9, 1, v14")
    A("v_add_u32 v14, s25, v14")
    A("s_cmp_eq_u32 s18, 0")
    A("s_cselect_b32 s27, s27, 0")
    A("v_mov_b32 v15, s27")
    lwait(A, C_G, 8, 86)
    stamp(A, 22)
    q = DSQ(A)
    def rd(s_):
        b = s_ % 4
        A(f"ds_read_b128 {v(16+4*b,4)}, v12 offset:{s_*64}"); q.issue(("a", s_))
        A(f"ds_read_b128 {v(32+4*b,4)}, v13 offset:{s_*64}"); q.issue(("b0", s_))
        A(f"ds_read_b128 {v(48+4*b,4)}, v13 offset:{16*528 + s_*64}"); q.issue(("b1", s_))
    for s_ in range(3): rd(s_)
    for s_ in range(8):
        if s_ + 3 < 8: rd(s_ + 3)
        b = s_ % 4
        q.wait(("b0", s_))
        A(f"v_mfma_f32_16x16x32_bf16 v[120:123], {v(16+4*b,4)}, {v(32+4*b,4)}, {'0' if s_==0 else 'v[120:123]'}")
        q.wait(("b1", s_))
        A(f"v_mfma_f32_16x16x32_bf16 v[4:7], {v(16+4*b,4)}, {v(48+4*b,4)}, {'0' if s_==0 else 'v[4:7]'}")
    A("s_nop 7")
    A("v_cmp_eq_u32 vcc, 0, v0")
    A("s_nop 1")
    A("v_cndmask_b32 v15, 0, v15, vcc")
    A("v_add_f32 v120, v120, v15")
    for ct, b_ in enumerate((120, 4)):
        A(f"v_cvt_pk_bf16_f32 v{16+2*ct}, v{b_}, v{b_+1}")
        A(f"v_cvt_pk_bf16_f32 v{17+2*ct}, v{b_+2}, v{b_+3}")
        A(f"ds_write_b16 v14, v{16+2*ct} offset:{32*ct}")
        A(f"ds_write_b16_d16_hi v14, v{16+2*ct} offset:{32*ct+64}")
        A(f"ds_write_b16 v14, v{17+2*ct} offset:{32*ct+128}")
        A(f"ds_write_b16_d16_hi v14, v{17+2*ct} offset:{32*ct+192}")
    gsync(A, C_GT2, 4, 2)
    stamp(A, 23)
    for e in range(8): A(f"v_add_u32 v{96+e}, {L_T}, v{96+e}")
    for c in range(2):
        for e in range(8):
            op = "ds_read_u16_d16_hi" if e % 2 else "ds_read_u16"
            A(f"{op} v{(32 if e % 2 else 16)+4*c+e//2}, v{96+e} offset:{c*2048}")
    A("s_lshl_b32 s25, s15, 6")
    A("v_add_u32 v9, s25, v0")
    A("v_lshrrev_b32 v10, 2, v9")
    A("v_mul_u32_u24 v10, 80, v10")
    A("v_and_b32 v9, 3, v9")
    A("v_lshl_add_u32 v10, v9, 4, v10")
    A(f"v_add_u32 v10, {L_KREV}, v10")
    for j in range(4): A(f"v_mov_b32 v{40+j}, 0")
    A(f"s_mul_i32 s25, s16, {KREV_SZ}")
    A(f"s_mul_i32 s23, s18, 1280")
    A("s_add_u32 s25, s25, s23")
    A(f"s_add_u32 s25, s25, {L_KREV + 64*80}")
    A(f"v_add_u32 v11, s25, v{vL16}")
    A("ds_write_b128 v11, v[40:43]")
    A("s_mov_b64 exec, 0xffff")
    A("ds_write_b128 v11, v[40:43] offset:1024")
    A("s_mov_b64 exec, -1")
    A("s_waitcnt lgkmcnt(10)")
    for j in range(4): A(f"v_or_b32 v{16+j}, v{16+j}, v{32+j}")
    A("s_waitcnt lgkmcnt(2)")
    for j in range(4): A(f"v_or_b32 v{20+j}, v{20+j}, v{36+j}")
    A("ds_write_b128 v10, v[16:19]")
    A(f"ds_write_b128 v10, v[20:23] offset:{KREV_SZ}")
    A("s_waitcnt lgkmcnt(0)")
    stamp(A, 27)
    FLAT = int(os.environ.get("FLAT", 3))
    for i in range(8):
        A("s_barrier")
        if i == FLAT:
            get_tag(A)
            chan_pair(A, 14, 17)
            A("s_lshr_b32 s28, s14, 4")
            A(f"s_lshl_b32 s28, s28, {5+FS}")
            A(f"s_add_u32 s28, s28, {WS_FU}")
            A(f"v_lshlrev_b32 v104, {FS}, v0")
            A("s_mov_b32 s40, 0")
        if i == FLAT + 2:
            A("s_cmp_eq_u32 s15, 3")
            A("s_cbranch_scc0 KG_L2")
            A("s_waitcnt vmcnt(0)")
            A("s_mov_b32 s30, -1"); A("s_mov_b32 s31, 0")
            A(f"v_cmp_ne_u32 vcc, s{sT}, v105")
            A("s_nop 1")
            A("s_and_b64 vcc, vcc, s[30:31]")
            A("s_cbranch_vccnz KG_L2")
            lsig(A, C_FU, 66)
            A("s_mov_b32 s40, 1")
            A.label("KG_L2")
        if i == FLAT + 1:
            A("s_cmp_eq_u32 s15, 3")
            A("s_cbranch_scc0 KG_L1")
            A("s_mov_b32 s30, -1"); A("s_mov_b32 s31, 0")
            A("s_mov_b64 exec, s[30:31]")
            A(f"buffer_load_dword v105, v104, {WSRD}, s28 offen sc1")
            A("s_mov_b64 exec, -1")
            A.label("KG_L1")
    A("s_cmp_eq_u32 s15, 3")
    A("s_cbranch_scc0 KG_END2")
    A("s_cmp_lg_u32 s40, 0")
    A("s_cbranch_scc1 KG_END2")
    poll(A, "KG_PU", 104, 28, "-1", 105, sleep=2)
    lsig(A, C_FU, 66)
    A.label("KG_END2")
    if os.environ.get("X_P1ONLY"): A("s_branch K_FIN")

vKA, vVA, vQ, vKF, vVF, vS, vP, vO, vM, vT = 2, 3, 4, 8, 16, 32, 64, 72, 88, 89
vLD = 92
vLW = 124
vLW2 = 89
NT = 32
SCHED = "e0 e1 PV1 RV e2 e3 c0 e4 e5 c1 QK RK e6 e7 c2 e8 e9 c3 e10 e11 PV0 c4 e12 e13 c5 e14 e15 c6 c7"
PRIO = {0: 3, 8: 2, 16: 1, 24: 0}

def attn_ids(A):
    A("s_and_b32 s12, s2, 7")
    A("s_lshl_b32 s12, s12, 2")
    A("s_lshr_b32 s13, s2, 3")
    A("s_and_b32 s17, s13, 3")
    A("s_add_u32 s12, s12, s17")
    A("s_lshr_b32 s13, s2, 5")
    A("s_lshl_b32 s17, s12, 16")

def ld_group(A):
    attn_setup(A)
    A("s_cmp_lt_u32 s3, 4")
    A("s_cselect_b32 s28, 0, 8")
    A("s_sub_u32 s28, s3, s28")
    A(f"v_lshlrev_b32 v8, {FS}, v0")
    A(f"s_lshl_b32 s27, s12, {5+FS}")
    A(f"s_add_u32 s27, s27, {WS_F1}")
    A("s_lshr_b32 s22, s28, 1")
    A("s_and_b32 s23, s28, 1"); A("s_lshl_b32 s23, s23, 1")
    A("s_and_b32 s4, s22, 1"); A("s_lshl_b32 s4, s4, 15")
    A("s_lshr_b32 s26, s22, 1"); A("s_lshl_b32 s26, s26, 21")
    A("s_add_u32 s4, s4, s26")
    A("s_lshl_b32 s26, s23, 10")
    A("s_add_u32 s4, s4, s26")
    A("s_add_u32 s4, s4, s17")
    A(f"s_add_u32 s4, s4, {WS_K}")
    A("s_lshl_b32 s24, s23, 12")
    A("s_lshl_b32 s26, s22, 10")
    A("s_add_u32 s24, s24, s26")
    A(f"v_add_u32 v{vLW2}, s24, v{vL16}")
    A("s_lshl_b32 s5, s13, 3"); A("s_add_u32 s5, s5, s28"); A("s_lshl_b32 s5, s5, 10"); A("s_add_u32 s5, s5, s17")
    A("s_lshl_b32 s6, s28, 10"); A(f"s_add_u32 s6, s6, {L_QS}")
    A(f"v_add_u32 v12, s6, v{vL16}")
    A("s_cmp_eq_u32 s3, 13")
    A("s_cbranch_scc0 LD_NOPOLL")
    lwait(A, C_OWN, 4, 44, sleep=2)
    poll(A, "LD_POLL", 8, 27, "-1", 13, sleep=2)
    lsig(A, C_F1, 44)
    A.label("LD_NOPOLL")
    lwait(A, C_F1, 1, 44, sleep=1)
    stamp(A, 3)
    def rload(r, d0):
        A(f"s_add_u32 s26, s13, {r}")
        A("s_and_b32 s26, s26, 7")
        A("s_lshl_b32 s26, s26, 12")
        A("s_add_u32 s26, s26, s4")
        A(f"buffer_load_dwordx4 {v(d0,4)}, v{vL16}, {WSRD}, s26 offen sc1")
        A(f"buffer_load_dwordx4 {v(d0+4,4)}, v{vL16}, {WSRD}, s26 offen offset:1024 sc1")
    rload(0, 32)
    A(f"buffer_load_dwordx4 v[40:43], v{vL16}, {WSRD}, s5 offen sc1")
    rload(1, vLD)
    rload(2, vLD + 8)
    lwait(A, C_DONE(7), 4, 44)
    A("s_waitcnt vmcnt(4)")
    A(f"ds_write_b128 v{vLW2}, v[32:35]")
    A(f"ds_write_b128 v{vLW2}, v[36:39] offset:4096")
    A("ds_write_b128 v12, v[40:43]")
    A("s_waitcnt vmcnt(2)")
    A(f"ds_write_b128 v{vLW2}, {v(vLD,4)} offset:16384")
    A(f"ds_write_b128 v{vLW2}, {v(vLD+4,4)} offset:20480")
    A("s_waitcnt vmcnt(0)")
    A(f"ds_write_b128 v{vLW2}, {v(vLD+8,4)} offset:32768")
    A(f"ds_write_b128 v{vLW2}, {v(vLD+12,4)} offset:36864")

def attn_setup(A):
    attn_ids(A)
    srd(A, 8, SP['out'], 2048*1024*2)
    A("s_mov_b32 s20, 0x0000ffff")
    A("s_mov_b32 s21, 0x0000ffff")
    A("s_and_b32 s15, s3, 7")
    A("s_lshr_b32 s16, s3, 3")
    A("s_lshl_b32 s19, s16, 10")
    A(f"v_add_u32 v{vKA}, s19, v{vL16}")
    A("v_lshrrev_b32 v8, 5, v0")
    A("v_lshlrev_b32 v8, 8, v8")
    A("v_and_b32 v9, 15, v0")
    A("v_lshlrev_b32 v9, 4, v9")
    A("s_add_u32 s19, s19, 2048")
    A(f"v_add3_u32 v{vVA}, v8, v9, s19")
    A("v_and_b32 v8, 31, v0")
    A("v_cmp_eq_u32 vcc, 16, v8")
    A("v_mov_b32 v9, 0x3f803f80")
    A("s_lshl_b32 s22, s15, 10"); A(f"s_add_u32 s22, s22, {L_QS}")
    A("v_cndmask_b32 v9, 0, v9, vcc")
    A(f"v_add_u32 v{vQ}, s22, v{vL16}")
    for i in range(16): A(f"v_mov_b32 v{vVF+i}, v9")
    A(f"v_mov_b32 v{vM}, 0")
    A(f"v_mov_b32 v{vT}, 0")
    A("s_lshl_b32 s18, s13, 3")
    A("s_add_u32 s18, s18, s15")
    A(f"s_lshl_b32 s19, s18, {5+FS}")
    A(f"s_lshl_b32 s22, s12, {FS}")
    A("s_add_u32 s19, s19, s22")
    A(f"s_add_u32 s19, s19, {WS_F2}")
    A("s_lshl_b32 s18, s18, 10")
    A("s_add_u32 s18, s18, s17")
    A("s_lshr_b32 s22, s3, 2")
    A("s_and_b32 s23, s3, 3")
    A("s_lshl_b32 s24, s23, 12")
    A("s_lshl_b32 s26, s22, 10")
    A("s_add_u32 s24, s24, s26")
    A(f"v_add_u32 v{vLW}, s24, v{vL16}")
    A("s_and_b32 s25, s22, 1"); A("s_lshl_b32 s25, s25, 15")
    A("s_lshr_b32 s26, s22, 1"); A("s_lshl_b32 s26, s26, 21")
    A("s_add_u32 s25, s25, s26")
    A("s_lshl_b32 s23, s23, 10")
    A("s_add_u32 s25, s25, s23")
    A("s_add_u32 s25, s25, s17")
    A(f"s_add_u32 s25, s25, {WS_K}")
    A("s_lshr_b32 s37, s2, 3"); A("s_and_b32 s37, s37, 3"); A("s_lshl_b32 s37, s37, 3"); A("s_add_u32 s37, s37, s15")

def attention(A):
    A("s_setprio 3")
    A("s_waitcnt lgkmcnt(0)")
    A("s_barrier")
    stamp(A, 4)
    A(f"ds_read_b128 {v(vQ,4)}, v{vQ}")
    q = DSQ(A)
    KF = lambda t: vKF + 4 * (t % 2)
    VF = lambda t, j: vVF + 8 * (t % 2) + 4 * j
    S = lambda t: vS + 16 * (t % 2)
    def rdK(t):
        A(f"ds_read_b128 {v(KF(t),4)}, v{vKA} offset:{t*4096}"); q.issue(("K", t))
    def rdV(t):
        A("s_mov_b64 exec, s[20:21]")
        A(f"ds_read_b128 {v(VF(t,0),4)}, v{vVA} offset:{t*4096}"); q.issue(("V0", t))
        A(f"ds_read_b128 {v(VF(t,1),4)}, v{vVA} offset:{t*4096+512}"); q.issue(("V1", t))
        A("s_mov_b64 exec, -1")
    def qk(t):
        q.wait(("K", t))
        A(f"v_mfma_f32_32x32x16_bf16 {v(S(t),16)}, {v(KF(t),4)}, {v(vQ,4)}, 0")
    def e(t, i): A(f"v_exp_f32 v{S(t)+i}, v{S(t)+i}")
    def c(t, k): A(f"v_cvt_pk_bf16_f32 v{vP+k}, v{S(t)+2*k}, v{S(t)+2*k+1}")
    def pv(t, j):
        cc = "0" if (t == 0 and j == 0) else v(vO, 16)
        A(f"v_mfma_f32_32x32x16_bf16 {v(vO,16)}, {v(VF(t,j),4)}, {v(vP+4*j,4)}, {cc}")
    def events(A, t):
        slot_of = {3: 4, 4: 5, 5: 6, 6: 7, 7: 0}
        if t == 1:
            A("s_cmp_eq_u32 s16, 0")
            A("s_cbranch_scc0 AT_NS")
            for j in range(4): A(f"v_mov_b32 v{vLD+4+j}, -1")
            A(f"s_add_u32 s26, s18, {WS_O}")
            A(f"buffer_store_dwordx4 {v(vLD+4,4)}, v{vL16}, {WSRD}, s26 offen sc1")
            A.label("AT_NS")
        if t == 22:
            A("s_cmp_eq_u32 s3, 13")
            A("s_cbranch_scc0 AT_N4a")
            A(f"v_lshlrev_b32 v{vT}, {FS}, v0")
            A("s_and_b32 s28, s2, 7")
            A(f"s_lshl_b32 s28, s28, {5+FS}")
            A(f"s_add_u32 s28, s28, {WS_F4}")
            A("s_mov_b32 s30, -1"); A("s_mov_b32 s31, 0")
            A("s_mov_b64 exec, s[30:31]")
            A(f"buffer_load_dword v{vLW}, v{vT}, {WSRD}, s28 offen sc1")
            A("s_mov_b64 exec, -1")
            A.label("AT_N4a")
        if t == 25:
            A("s_cmp_eq_u32 s3, 13")
            A("s_cbranch_scc0 AT_N4b")
            A("s_waitcnt vmcnt(0)")
            check_or_poll(A, "AT_P4", vT, 28, "-1", vLW)
            A(f"v_mov_b32 v{vT}, {C_F4}"); A(f"v_mov_b32 v{vLW}, 1")
            A("s_mov_b64 exec, 1")
            A(f"ds_add_u32 v{vT}, v{vLW}")
            A("s_mov_b64 exec, -1")
            A.label("AT_N4b")
        if t == 11:
            A("s_cmp_eq_u32 s3, 9")
            A("s_cbranch_scc0 AT_NF4")
            A(f"s_lshl_b32 s29, s13, {5+FS}")
            A(f"s_lshl_b32 s28, s12, {FS}")
            A("s_add_u32 s28, s29, s28")
            A(f"s_add_u32 s28, s28, {WS_F4}")
            A(f"v_mov_b32 v{vLD+28}, s{sT}"); A(f"v_mov_b32 v{vLD+29}, 0")
            A("s_mov_b64 exec, 1")
            A(f"buffer_store_dword v{vLD+28}, v{vLD+29}, {WSRD}, s28 offen sc1")
            A("s_mov_b64 exec, -1")
            A.label("AT_NF4")
        if t < 5:
            r = 3 + t
            A(f"s_add_u32 s26, s13, {r}")
            A("s_and_b32 s26, s26, 7")
            A("s_lshl_b32 s26, s26, 12")
            A("s_add_u32 s26, s26, s25")
            A(f"buffer_load_dwordx4 {v(vLD+4*slot_of[r],4)}, v{vL16}, {WSRD}, s26 offen sc1")
        if t == 6:
            A("s_waitcnt vmcnt(0)")
            A(f"ds_write_b128 v{vLW}, {v(vLD+4*slot_of[3],4)} offset:49152")
            A(f"v_add_u32 v{vLW}, 65536, v{vLW}")
            for r in range(4, 8):
                A(f"ds_write_b128 v{vLW}, {v(vLD+4*slot_of[r],4)} offset:{r*16384 - 65536}")
            A("s_waitcnt lgkmcnt(0)")
            lsig(A, C_LAND, vT + 0) if False else None
            A(f"v_mov_b32 v{vT}, {C_LAND}")
            A(f"v_mov_b32 v{vLW}, 1")
            A("s_mov_b64 exec, 1")
            A(f"ds_add_u32 v{vT}, v{vLW}")
            A("s_mov_b64 exec, -1")
        if t == 9:
            A(f"ds_read_b32 v{vLW}, v{vT}")
        if t == 10:
            A("s_waitcnt lgkmcnt(0)")
            A(f"v_readfirstlane_b32 s42, v{vLW}")
            A("s_nop 0")
            A("s_cmp_ge_u32 s42, 16")
            A("s_cbranch_scc1 AT_LANDED")
            lwait(A, C_LAND, 16, 126 if False else 12, sleep=1) if False else None
            A.label("AT_LSPIN")
            A(f"ds_read_b32 v{vLW}, v{vT}")
            A("s_waitcnt lgkmcnt(0)")
            A(f"v_readfirstlane_b32 s42, v{vLW}")
            A("s_sleep 1")
            A("s_cmp_ge_u32 s42, 16")
            A("s_cbranch_scc0 AT_LSPIN")
            A.label("AT_LANDED")
            A(f"v_lshlrev_b32 v{vT}, {FS}, v0")
            A(f"s_lshl_b32 s26, s37, {3+FS}")
            A(f"s_add_u32 s26, s26, {WS_F3}")
            A("s_mov_b64 exec, 0xff")
            A(f"buffer_load_dword v{vLW}, v{vT}, {WSRD}, s26 offen sc1")
            A("s_mov_b64 exec, -1")
        if t == 12:
            A("s_waitcnt vmcnt(0)")
            check_or_poll(A, "AT_P3", vT, 26, "0xff", vLW)
            A("s_lshl_b32 s27, s37, 14")
            A("s_lshl_b32 s26, s16, 13")
            A("s_add_u32 s27, s27, s26")
            A(f"s_add_u32 s27, s27, {WS_WOF}")
        if 12 <= t < 20:
            A(f"buffer_load_dwordx4 {v(vLD+4*(t-12),4)}, v{vL16}, {WSRD}, s27 offen sc1")
            A("s_add_u32 s27, s27, 1024")
        if t == 20:
            A("s_sub_u32 s26, s3, 4")
            A("s_cmp_lt_u32 s26, 8")
            A("s_cbranch_scc0 AT_NY0")
            A(f"v_and_b32 v{vT}, 31, v0")
            A(f"v_lshrrev_b32 v{vLW}, 5, v0")
            A(f"v_lshlrev_b32 v{vT}, 16, v{vT}")
            A(f"v_lshl_add_u32 v{vT}, v{vLW}, 13, v{vT}")
            A.label("AT_NY0")
        if 21 <= t < 25:
            r = t - 21
            A("s_sub_u32 s26, s3, 4")
            A("s_cmp_lt_u32 s26, 8")
            A(f"s_cbranch_scc0 AT_NY{r+1}")
            if r == 2: A("s_add_u32 s36, s36, 4096")
            A(f"buffer_store_dword v{vY[r]}, v{vT}, s[8:11], s36 offen" + (" offset:2048" if r % 2 else "") + os.environ.get("YSC", ""))
            A.label(f"AT_NY{r+1}")
        WBL = [int(x) for x in os.environ.get("WBL", "26").split(",") if x]
        if t in WBL:
            A("s_lshr_b32 s26, s2, 3")
            A("s_lshl_b32 s26, s26, 4")
            A("s_add_u32 s26, s26, s3")
            A("s_cmp_eq_u32 s26, 15")
            A(f"s_cbranch_scc0 AT_WB{t}")
            A("buffer_wbl2 sc1")
            A.label(f"AT_WB{t}")

    rdK(0); rdV(0); rdK(1)
    qk(0)
    A(f"v_readfirstlane_b32 s39, v{vM}")
    A("s_nop 7"); A("s_nop 2")
    A.label("AT_LOOP")
    for j in range(8):
        A.comment(f"--- tile 8g+{j}")
        if j == 0:
            for g in range(1, 4):
                A(f"s_cmp_eq_u32 s39, {g}")
                A(f"s_cbranch_scc0 AT_PR{g}")
                A(f"s_setprio {3 - g}")
                A.label(f"AT_PR{g}")
        for tok in SCHED.split():
            if tok[0] == 'e': e(j, int(tok[1:]))
            elif tok[0] == 'c': c(j, int(tok[1:]))
            elif tok == 'PV1':
                if j == 0:
                    A("s_cmp_eq_u32 s39, 0")
                    A("s_cbranch_scc1 AT_NOPV")
                    pv(7, 1)
                    A.label("AT_NOPV")
                else: pv(j - 1, 1)
            elif tok == 'QK': qk(j + 1)
            elif tok == 'PV0':
                q.wait(("V1", j))
                if j == 0:
                    A("s_cmp_eq_u32 s39, 0")
                    A("s_cbranch_scc1 AT_PV0Z")
                    pv(8, 0)
                    A("s_branch AT_PV0E")
                    A.label("AT_PV0Z")
                    pv(0, 0)
                    A.label("AT_PV0E")
                else: pv(j, 0)
            elif tok == 'RK':
                for g in range(4):
                    T_ = Asm(); T_.uid = A.uid
                    events(T_, 8*g + j)
                    A.uid = T_.uid
                    if T_.L:
                        A(f"s_cmp_eq_u32 s39, {g}")
                        A(f"s_cbranch_scc0 AT_EV{g}_{j}")
                        A.L.extend(T_.L)
                        A.label(f"AT_EV{g}_{j}")
                rdK(j + 2)
            elif tok == 'RV': rdV(j + 1)
            else: raise ValueError(tok)
    A(f"v_add_u32 v{vKA}, 32768, v{vKA}")
    A(f"v_add_u32 v{vVA}, 32768, v{vVA}")
    A("s_add_u32 s39, s39, 1")
    A("s_cmp_lt_u32 s39, 4")
    A("s_cbranch_scc1 AT_LOOP")
    A("s_nop 1")
    pv(7, 1)
    A("s_nop 15")
    stamp(A, 5)
    A(f"v_mov_b32 v{vT}, v{vO+8}")
    A("s_nop 1")
    A(f"v_permlane32_swap_b32 v{vT}, v{vO+8}")
    A("s_nop 1")
    A(f"v_mov_b32 v{vO+8}, v{vT}")
    A("s_mov_b32 s28, 0x1f800000")
    A("s_mov_b32 s29, 0x5f800000")
    A(f"v_cmp_le_f32 vcc, s28, v{vO+8}")
    A(f"v_cmp_ge_f32 s[30:31], s29, v{vO+8}")
    A("s_nop 1")
    A("s_and_b64 vcc, vcc, s[30:31]")
    A("s_cmp_eq_u64 vcc, -1")
    A("s_cbranch_scc0 AT_FALLBACK")
    A.label("AT_COMBINE")
    A("s_lshl_b32 s17, s15, 11")
    A(f"s_add_u32 s17, s17, {L_SCR}")
    A(f"v_add_u32 v{vT}, s17, v{vL16}")
    A("v_lshlrev_b32 v12, 3, v0")
    A("s_lshl_b32 s17, s15, 9")
    A(f"s_add_u32 s17, s17, {L_KREV}")
    A(f"v_add_u32 v12, s17, v12")
    A("s_cmp_eq_u32 s16, 0")
    A("s_cbranch_scc1 AT_LOW")
    A(f"ds_write_b128 v{vT}, {v(vO,4)}")
    A(f"ds_write_b128 v{vT}, {v(vO+4,4)} offset:1024")
    A(f"v_mov_b32 v{vO+9}, v{vM}")
    A(f"ds_write_b64 v12, {v(vO+8,2)}")
    A("s_waitcnt lgkmcnt(0)")
    A("s_barrier")
    A("s_branch AT_DONE")
    A.label("AT_LOW")
    A("s_barrier")
    B = vS
    A(f"ds_read_b128 {v(B,4)}, v{vT}")
    A(f"ds_read_b128 {v(B+4,4)}, v{vT} offset:1024")
    A(f"ds_read_b64 {v(B+8,2)}, v12")
    A("s_waitcnt lgkmcnt(0)")
    t0, t1, t2 = 8, 9, 10
    A(f"v_max_f32 v{t0}, v{vM}, v{B+9}")
    A(f"v_sub_f32 v{t1}, v{vM}, v{t0}")
    A(f"v_sub_f32 v{t2}, v{B+9}, v{t0}")
    A(f"v_exp_f32 v{t1}, v{t1}")
    A(f"v_exp_f32 v{t2}, v{t2}")
    A("s_nop 0")
    for i in range(9):
        A(f"v_mul_f32 v{vO+i}, v{vO+i}, v{t1}")
    for i in range(9):
        A(f"v_fmac_f32 v{vO+i}, v{B+i}, v{t2}")
    A(f"v_rcp_f32 v{t0}, v{vO+8}")
    A("s_nop 0")
    for i in range(8):
        A(f"v_mul_f32 v{vO+i}, v{vO+i}, v{t0}")
    for k in range(4):
        A(f"v_cvt_pk_bf16_f32 v{vP+k}, v{vO+2*k}, v{vO+2*k+1}")
    A("s_nop 1")
    A(f"v_permlane32_swap_b32 v{vP}, v{vP+2}")
    A(f"v_permlane32_swap_b32 v{vP+1}, v{vP+3}")
    A(f"s_add_u32 s18, s18, {WS_O}")
    for j in range(4):
        A(f"v_cmp_eq_u32 vcc, -1, v{vP+j}")
        A(f"v_mov_b32 v12, 0xfffefffe")
        A("s_nop 0")
        A(f"v_cndmask_b32 v{vP+j}, v{vP+j}, v12, vcc")
    A(f"buffer_store_dwordx4 {v(vP,4)}, v{vL16}, {WSRD}, s18 offen sc1")
    lsig(A, C_OWN2, 12)
    A.label("AT_DONE")
    stamp(A, 6)

def attention_fallback(A):
    A.label("AT_FALLBACK")
    A(f"v_mov_b32 v{vM}, 0xff800000")
    A(f"v_subrev_u32 v{vT}, 131072, v{vKA}")
    A("s_mov_b32 s17, 0")
    A.label("AT_FB1")
    A(f"ds_read_b128 {v(vKF,4)}, v{vT}")
    A(f"v_add_u32 v{vT}, 4096, v{vT}")
    A("s_waitcnt lgkmcnt(0)")
    A(f"v_mfma_f32_32x32x16_bf16 {v(vS,16)}, {v(vKF,4)}, {v(vQ,4)}, 0")
    A("s_nop 15")
    for k in range(8):
        A(f"v_max3_f32 v{vM}, v{vS+2*k}, v{vS+2*k+1}, v{vM}")
    A("s_add_u32 s17, s17, 1")
    A("s_cmp_lt_u32 s17, 32")
    A("s_cbranch_scc1 AT_FB1")
    A(f"v_mov_b32 v{vT}, v{vM}")
    A(f"v_mov_b32 v12, v{vM}")
    A("s_nop 1")
    A(f"v_permlane32_swap_b32 v{vT}, v12")
    A("s_nop 1")
    A(f"v_max_f32 v{vM}, v{vT}, v12")
    for i in range(16): A(f"v_mov_b32 v{vO+i}, 0")
    A(f"v_subrev_u32 v{vT}, 131072, v{vKA}")
    A(f"v_subrev_u32 v12, 131072, v{vVA}")
    A("s_mov_b32 s17, 0")
    A.label("AT_FB2")
    A(f"ds_read_b128 {v(vKF,4)}, v{vT}")
    A("s_mov_b64 exec, s[20:21]")
    A(f"ds_read_b128 {v(vVF,4)}, v12")
    A(f"ds_read_b128 {v(vVF+4,4)}, v12 offset:512")
    A("s_mov_b64 exec, -1")
    A(f"v_add_u32 v{vT}, 4096, v{vT}")
    A(f"v_add_u32 v12, 4096, v12")
    A("s_waitcnt lgkmcnt(0)")
    A(f"v_mfma_f32_32x32x16_bf16 {v(vS,16)}, {v(vKF,4)}, {v(vQ,4)}, 0")
    A("s_nop 15")
    for i in range(16): A(f"v_sub_f32 v{vS+i}, v{vS+i}, v{vM}")
    for i in range(16): A(f"v_exp_f32 v{vS+i}, v{vS+i}")
    A("s_nop 0")
    for k in range(8): A(f"v_cvt_pk_bf16_f32 v{vP+k}, v{vS+2*k}, v{vS+2*k+1}")
    A("s_nop 1")
    A(f"v_mfma_f32_32x32x16_bf16 {v(vO,16)}, {v(vVF,4)}, {v(vP,4)}, {v(vO,16)}")
    A(f"v_mfma_f32_32x32x16_bf16 {v(vO,16)}, {v(vVF+4,4)}, {v(vP+4,4)}, {v(vO,16)}")
    A("s_add_u32 s17, s17, 1")
    A("s_cmp_lt_u32 s17, 32")
    A("s_cbranch_scc1 AT_FB2")
    A("s_nop 15")
    A(f"v_mov_b32 v{vT}, v{vO+8}")
    A("s_nop 1")
    A(f"v_permlane32_swap_b32 v{vT}, v{vO+8}")
    A("s_nop 1")
    A(f"v_mov_b32 v{vO+8}, v{vT}")
    A("s_branch AT_COMBINE")

def tail(A):
    A("s_and_b32 s12, s2, 7"); A("s_lshl_b32 s12, s12, 3"); A("s_lshr_b32 s13, s2, 5"); A("s_add_u32 s12, s12, s13")
    A("s_lshr_b32 s13, s2, 3"); A("s_and_b32 s13, s13, 3")
    A("v_and_b32 v4, 15, v0")
    A("v_lshrrev_b32 v5, 4, v0")
    A("v_lshlrev_b32 v14, 9, v5")
    A("v_lshl_add_u32 v14, v4, 4, v14")
    A("s_lshl_b32 s17, s16, 14")
    A(f"s_add_u32 s17, s17, {L_OT}")
    A(f"v_add_u32 v14, s17, v14")
    A("v_lshlrev_b32 v15, 11, v4")
    A("v_lshl_add_u32 v15, v5, 3, v15")
    A("s_lshl_b32 s20, s12, 16")
    A("s_lshl_b32 s19, s16, 15")
    A("s_add_u32 s20, s20, s19")
    A("s_lshl_b32 s19, s13, 8")
    A("s_add_u32 s20, s20, s19")
    A("s_lshl_b32 s19, s15, 5")
    A("s_add_u32 s20, s20, s19")
    A("s_add_u32 s20, s20, 1024")
    srd(A, 4, SP['out'], 2048*1024*2)
    A("s_lshl_b32 s17, s3, 10")
    A(f"s_add_u32 s17, s17, {L_PC}")
    A(f"v_add_u32 v6, s17, v{vL16}")
    A("s_xor_b32 s17, s17, 8192")
    A(f"v_add_u32 v7, s17, v{vL16}")
    A("s_lshl_b32 s17, s3, 17")
    A("s_lshl_b32 s18, s12, 10")
    A("s_add_u32 s17, s17, s18")
    A(f"s_add_u32 s17, s17, {WS_O}")
    A("s_lshl_b32 s18, s3, 11")
    A(f"s_add_u32 s18, s18, {L_OT}")
    A(f"v_add_u32 v13, s18, v{vL16}")
    lwait(A, C_F4, 1, 8, sleep=1)
    lwait(A, C_OWN2, 8, 8, sleep=1)
    stamp(A, 43)
    A("s_add_u32 s18, s17, 65536")
    A("s_mov_b32 s29, 0")
    A("s_mov_b32 s28, 3")
    A.label("TL_POLL")
    A("s_bitcmp1_b32 s28, 0")
    A("s_cbranch_scc0 TL_P1")
    A(f"buffer_load_dwordx4 v[16:19], v{vL16}, {WSRD}, s17 offen sc1")
    A.label("TL_P1")
    A("s_bitcmp1_b32 s28, 1")
    A("s_cbranch_scc0 TL_P2")
    A(f"buffer_load_dwordx4 v[20:23], v{vL16}, {WSRD}, s18 offen sc1")
    A.label("TL_P2")
    A("s_add_u32 s29, s29, 1")
    A("s_waitcnt vmcnt(0)")
    A("v_max3_u32 v8, v16, v17, v18")
    A("v_max3_u32 v9, v20, v21, v22")
    A("v_max_u32 v8, v8, v19")
    A("v_max_u32 v9, v9, v23")
    A("v_cmp_eq_u32 vcc, -1, v8")
    A("v_cmp_eq_u32 s[30:31], -1, v9")
    A("s_nop 1")
    A("s_cmp_lg_u64 vcc, 0")
    A("s_cselect_b32 s28, 1, 0")
    A("s_cmp_lg_u64 s[30:31], 0")
    A("s_cselect_b32 s19, 2, 0")
    A("s_or_b32 s28, s28, s19")
    A("s_cmp_gt_u32 s29, 0x8000")
    A("s_cbranch_scc1 TL_GOT")
    A("s_cmp_eq_u32 s28, 0")
    A("s_cbranch_scc1 TL_GOT")
    A("s_sleep 2")
    A("s_branch TL_POLL")
    A.label("TL_GOT")
    A("ds_write_b128 v13, v[16:19]")
    A("ds_write_b128 v13, v[20:23] offset:1024")
    A("s_waitcnt lgkmcnt(0)")
    stamp(A, 44)
    A("s_barrier")
    stamp(A, 45)
    q = DSQ(A)
    FO = 16
    def rd(s_):
        b = s_ % 3
        for th in range(2):
            A(f"ds_read_b128 {v(FO+12*th+4*b,4)}, v14 offset:{s_*2048 + th*256}"); q.issue(("o", s_, th))
    rd(0); rd(1)
    for s_ in range(8):
        if s_ + 2 < 8: rd(s_ + 2)
        b = s_ % 3
        for th in range(2):
            q.wait(("o", s_, th))
            cc = "0" if s_ == 0 else v(40+4*th, 4)
            A(f"v_mfma_f32_16x16x32_bf16 {v(40+4*th,4)}, {v(vLD+4*s_,4)}, {v(FO+12*th+4*b,4)}, {cc}")
    A("s_cmp_eq_u32 s2, 0")
    A("s_cbranch_scc0 TL_NE")
    A("s_cmp_eq_u32 s3, 8")
    A("s_cbranch_scc0 TL_NE")
    A(f"s_mov_b32 s17, {WS_EP}")
    flag_store(A, 17, 12, 13)
    A.label("TL_NE")
    A("s_nop 7")
    A("s_cmp_eq_u32 s16, 0")
    A("s_cbranch_scc1 TL_LO")
    A("ds_write_b128 v6, v[40:43]")
    for i in range(4): A(f"v_mov_b32 v{40+i}, v{44+i}")
    A("s_branch TL_X")
    A.label("TL_LO")
    A("ds_write_b128 v6, v[44:47]")
    A.label("TL_X")
    A("s_waitcnt lgkmcnt(0)")
    A("s_barrier")
    A("ds_read_b128 v[16:19], v7")
    A("s_waitcnt lgkmcnt(0)")
    for i in range(4):
        A(f"v_add_f32 v{40+i}, v{40+i}, v{16+i}")
    A("v_cvt_pk_bf16_f32 v48, v40, v41")
    A("v_cvt_pk_bf16_f32 v49, v42, v43")
    A("buffer_store_dwordx2 v[48:49], v15, s[4:7], s20 offen" + os.environ.get("OUTSC", ""))

def gen():
    A = Asm()
    kernel_begin(A, NAME)
    A.label("K_START")
    if not os.environ.get("NOPF"):
        A("s_getpc_b64 s[4:5]")
        A.label("PF_PC")
        A("v_lshlrev_b32 v2, 7, v0")
        A("v_cmp_gt_u32 vcc, GTAB_END-PF_PC-128, v2")
        A("s_and_saveexec_b64 s[6:7], vcc")
        A("s_cbranch_execz PF_DONE")
        A(f"global_load_dword v{vE}, v2, s[4:5]")
        A.label("PF_DONE")
        A("s_mov_b64 exec, s[6:7]")
    if DBG: A("v_mov_b32 v125, 0")
    if PROF:
        A("v_mov_b32 v125, 0")
        A("s_memrealtime s[38:39]")
    stamp(A, 0)
    A("s_cmp_ge_u32 s2, 256")
    A("s_cbranch_scc1 K_END")
    A("s_load_dwordx16 s[64:79], s[0:1], 0")
    A("s_load_dwordx8 s[80:87], s[0:1], 64")
    A("s_load_dwordx2 s[88:89], s[0:1], 96")
    A("v_lshrrev_b32 v8, 6, v0")
    A("v_and_b32 v0, 63, v0")
    A("v_readfirstlane_b32 s3, v8")
    A(f"v_lshlrev_b32 v{vL16}, 4, v0")
    p1_ids(A)
    A("s_cmp_eq_u32 s3, 12")
    A("s_cbranch_scc0 E_NZ")
    A("v_lshlrev_b32 v20, 2, v0")
    A(f"v_add_u32 v20, {L_CNT}, v20")
    A("v_mov_b32 v24, 0")
    A("ds_write_b32 v20, v24")
    A.label("E_NZ")
    A("s_cmp_ge_u32 s3, 12")
    A("s_cbranch_scc0 E_NG")
    kgen_pre(A)
    A.label("E_NG")
    EARLY = os.environ.get("EARLY")
    if EARLY:
        A("s_sub_u32 s17, s3, 4")
        A("s_cmp_lt_u32 s17, 8")
        A("s_cbranch_scc1 R_LOAD")
    ka_wait(A)
    A("s_barrier")
    A("s_cmp_lt_u32 s3, 4")
    A("s_cbranch_scc1 R_COMPUTE")
    A("s_cmp_ge_u32 s3, 12")
    A("s_cbranch_scc1 R_KGEN")
    A.label("R_LOAD")
    p1_loader(A)
    attn_setup(A)
    A("s_branch R_JOIN")
    A.label("R_KGEN")
    kgen(A)
    A("s_branch R_LD")
    A.label("R_COMPUTE")
    p1_compute(A)
    A.label("R_LD")
    ld_group(A)
    A.label("R_JOIN")
    attention(A)
    tail(A)
    A.label("K_FIN")
    stamp(A, 50)
    A("s_waitcnt vmcnt(0)")
    stamp(A, 51)
    write_stamps(A)
    if DBG:
        A("s_cmp_eq_u32 s2, 8"); A("s_cbranch_scc0 K_END")
        A("s_cmp_eq_u32 s3, 0"); A("s_cbranch_scc0 K_END")
        A("s_memtime s[48:49]"); A("s_memrealtime s[50:51]"); A("s_waitcnt lgkmcnt(0)")
        A("v_readlane_b32 s52, v125, 0"); A("v_readlane_b32 s53, v125, 1")
        A("s_nop 3")
        A("v_writelane_b32 v125, s48, 0"); A("v_writelane_b32 v125, s50, 1")
        A("v_and_b32 v16, 1, v0")
        A("v_cmp_eq_u32 vcc, 0, v16")
        A("v_mov_b32 v17, s53"); A("v_mov_b32 v18, s52")
        A("s_nop 1")
        A("v_cndmask_b32 v17, v17, v18, vcc")
        A("v_sub_u32 v17, v125, v17")
        srd(A, 4, SP['dbg'], 256)
        A("v_lshlrev_b32 v16, 2, v0")
        A("s_mov_b64 exec, 0xffff")
        A("buffer_store_dword v17, v16, s[4:7], 0 offen")
        A("s_waitcnt vmcnt(0)")
    A.label("K_END")
    A("s_endpgm")
    attention_fallback(A)
    A(".p2align 6")
    A(".type GTAB,@object")
    A.label("GTAB")
    t = gather_table()
    for i in range(0, 2048, 16):
        A(".long " + ", ".join(str(int(x)) for x in t[i:i+16]))
    A(".size GTAB, 8192")
    A.label("GTAB_END")
    hdr_src = open("concat_heads__ssm_conv_s4d__mha_block__prompt.s.ref").read().split("\n")
    hdr = [l for l in hdr_src if l.startswith(";") and "@launch" not in l and "Override launch" not in l and "grid=ceil" not in l]
    out = "\n".join(hdr) + "\n; @launch grid=(256,1,1) block=(1024,1,1) lds=163840\n"
    out += '.amdgcn_target "amdgcn-amd-amdhsa--gfx950"\n'
    out += A.text() + kernel_desc(NAME, 128, 100)
    return out

if __name__ == "__main__":
    open(sys.argv[1] if len(sys.argv) > 1 else "fused.s", "w").write(gen())
```
